```python
import torch

def _softmax(x, axis=-1):
    return torch.softmax(x, dim=axis)
def _gelu(x):
    return torch.nn.functional.gelu(x, approximate="tanh")
def _silu(x):
    return torch.nn.functional.silu(x)
def _sigmoid(x):
    return torch.sigmoid(x)
def _layernorm(x, axis=-1, eps=1e-5):
    m = x.mean(dim=axis, keepdim=True)
    v = x.var(dim=axis, keepdim=True, unbiased=False)
    return (x - m) / torch.sqrt(v + eps)
def _scatter_add(tgt, idx, src, axis=0):
    return tgt.clone().index_add_(axis, idx, src)
def _segment_sum(src, seg, n):
    out = torch.zeros((n,) + src.shape[1:], dtype=src.dtype)
    return out.index_add_(0, seg, src)
def _pad(x, pw):
    flat = tuple(v for pair in reversed(pw) for v in pair)
    return torch.nn.functional.pad(x, flat)

kernel_name = 'standalone__molecular_angular_gemnet__graph'

def setup_inputs():

    _w = (lambda a: (lambda t: t.to(torch.bfloat16) if t.is_floating_point() else t)(torch.as_tensor(a)))
    N, deg, De, L = 50000, 16, 4, 2
    E = N * deg
    T = E * deg
    NR = 8
    dist = torch.rand(E).to(float)
    angle = (torch.rand(T) * torch.pi).to(float)
    centers = torch.linspace(0.0, 1.0, NR).to(float)
    ang_freq = torch.arange(1, L + 1).to(float)
    return {
        "m": _w((lambda *s: torch.randn(*s, dtype=torch.bfloat16) * 0.05)(E, De)),
        "idx_in": _w((lambda lo, hi, *s: torch.randint(lo, hi, s))(0, E, T).to(torch.int64)),
        "idx_out": _w((lambda lo, hi, *s: torch.randint(lo, hi, s))(0, E, T).to(torch.int64)),
        "dist": _w(dist),
        "angle": _w(angle),
        "centers": _w(centers),
        "ang_freq": _w(ang_freq),
        "w_rbf": _w((lambda *s: torch.randn(*s, dtype=torch.bfloat16) * 0.2)(NR, De)),
        "w_sbf": _w((lambda *s: torch.randn(*s, dtype=torch.bfloat16) * 0.2)(NR * L, De)),
        "w_down": _w((lambda *s: torch.randn(*s, dtype=torch.bfloat16) * 0.2)(De, De)),
        "w_up": _w((lambda *s: torch.randn(*s, dtype=torch.bfloat16) * 0.2)(De, De)),
    }

def reference(m, idx_in, idx_out, dist, angle, centers, ang_freq, w_rbf, w_sbf, w_down, w_up):
    E, De = m.shape[0], m.shape[1]
    NR = centers.shape[0]
    L = ang_freq.shape[0]
    rbf = torch.exp(-10.0 * (dist[:, None] - centers[None, :]) ** 2)
    cbf = torch.cos(ang_freq[None, :] * angle[:, None])
    rbf_t = rbf[idx_out]
    sbf = torch.reshape(rbf_t[:, :, None] * cbf[:, None, :], (-1, NR * L))
    x = (m[idx_in] @ w_down) * (sbf @ w_sbf)
    agg = _segment_sum(x, idx_out, E)
    return m + (agg @ w_up) * (rbf @ w_rbf)
```

```python
import re

TRANS = ("v_exp_", "v_log_", "v_rcp_", "v_rsq_", "v_sqrt_", "v_sin_", "v_cos_")

def regs_of(tok):
    out = set()
    tok = tok.strip()
    for m in re.finditer(r'(?<![\w])([vs])\[(\d+):(\d+)\]', tok):
        for i in range(int(m.group(2)), int(m.group(3)) + 1):
            out.add((m.group(1), i))
    for m in re.finditer(r'(?<![\w\[])([vs])(\d+)(?![\w:])', tok):
        out.add((m.group(1), int(m.group(2))))
    if re.search(r'\bvcc\b', tok):
        out.add(('s', 'vcc'))
    if re.search(r'\bexec\b', tok):
        out.add(('s', 'exec'))
    return out

def split_ops(line):
    line = line.split(';')[0].strip()
    parts = line.split(None, 1)
    op = parts[0]
    rest = parts[1] if len(parts) > 1 else ''
    ops = []
    depth = 0
    cur = ''
    for ch in rest:
        if ch in '[(':
            depth += 1
        if ch in '])':
            depth -= 1
        if ch == ',' and depth == 0:
            ops.append(cur.strip()); cur = ''
        else:
            cur += ch
    if cur.strip():
        ops.append(cur.strip())
    return op, ops

class Ins:
    def __init__(self, line):
        self.line = line
        op, ops = split_ops(line)
        self.op = op
        self.ops = ops
        self.valu = op.startswith('v_')
        self.vmem = op.startswith('buffer_') or op.startswith('global_')
        self.ds = op.startswith('ds_')
        self.dpp = '_dpp' in op
        self.trans = op.startswith(TRANS)
        self.dot = op.startswith('v_dot')
        self.dst = set(); self.src = set()
        if self.valu:
            ndst = 1
            if op.startswith(('v_add_co', 'v_sub_co', 'v_addc_co', 'v_subb_co', 'v_mad_u64', 'v_div_scale')):
                ndst = 2
            for o in ops[:ndst]:
                self.dst |= regs_of(o)
            for o in ops[ndst:]:
                self.src |= regs_of(o)
            if op.startswith(('v_fmac', 'v_dot2c', 'v_writelane')) or self.dpp:
                self.src |= regs_of(ops[0])
            if op.startswith('v_cmpx'):
                self.dst.add(('s', 'exec'))
        elif self.vmem:
            if '_load' in op:
                self.dst |= regs_of(ops[0])
                for o in ops[1:]: self.src |= regs_of(o)
            else:
                for o in ops: self.src |= regs_of(o)
        elif self.ds:
            has_dst = ('read' in op) or ('rtn' in op) or ('permute' in op) or ('swizzle' in op)
            if has_dst:
                self.dst |= regs_of(ops[0])
                for o in ops[1:]: self.src |= regs_of(o)
            else:
                for o in ops: self.src |= regs_of(o)
        elif op.startswith('s_'):
            if op.startswith(('s_cmp', 's_cbranch', 's_branch', 's_waitcnt', 's_nop', 's_barrier', 's_endpgm', 's_setprio', 's_sleep', 's_bitcmp')):
                for o in ops: self.src |= regs_of(o)
            else:
                if ops:
                    self.dst |= regs_of(ops[0])
                for o in ops[1:]: self.src |= regs_of(o)
        self.widestore = self.vmem and ('store' in op) and ('x3' in op or 'x4' in op)
        if self.widestore:
            self.data = regs_of(ops[0]) if op.startswith('buffer_') else regs_of(ops[1])
        self.states = 1
        if op == 's_nop':
            self.states = int(ops[0], 0) + 1

def need(p, c):
    n = 0
    psg = {r for r in p.dst if r[0] == 's'}
    pvg = {r for r in p.dst if r[0] == 'v'}
    if p.valu:
        if c.vmem and (psg & c.src): n = max(n, 5)
        if c.dpp and (pvg & c.src): n = max(n, 2)
        if c.dpp and ('s', 'exec') in psg: n = max(n, 5)
        if c.valu and (psg & c.src):
            n = max(n, 2)
            if c.op.startswith(('v_readlane', 'v_writelane')): n = max(n, 4)
        if c.op.startswith(('v_readlane', 'v_readfirstlane')) and (pvg & c.src): n = max(n, 1)
        if c.op.startswith(('v_readlane', 'v_readfirstlane', 'v_writelane')) and ('s', 'exec') in psg: n = max(n, 4)
        if p.trans and c.valu and not c.trans and (pvg & c.src): n = max(n, 1)
        if c.op.startswith('v_permlane') and (pvg & (c.src | c.dst)): n = max(n, 2)
        if c.op.startswith('v_div_fmas') and ('s', 'vcc') in psg: n = max(n, 4)
        if p.dot:
            if c.op == p.op and c.dot:
                ab = set()
                for o in c.ops[1:3]: ab |= regs_of(o)
                if pvg & ab: n = max(n, 3)
            elif pvg & (c.src | c.dst):
                n = max(n, 3)
        if 'sdwa' in p.op and 'dst_sel:DWORD' not in p.line and not p.op.startswith('v_cmp') and c.valu and (pvg & (c.src | c.dst)):
            n = max(n, 1)
    if p.widestore and (p.data & c.dst):
        n = max(n, 2 if c.valu else 1)
    return n

def fix_hazards(lines):
    MAXD = 6
    saved = {}
    for _pass in range(4):
        out = []
        hist = []
        changed = False
        dead = False
        for ln in lines:
            t = ln.split(';')[0].strip()
            if not t or t.startswith('.'):
                out.append(ln); continue
            if t.endswith(':'):
                lab = t[:-1]
                h = [] if dead else list(hist)
                for e in saved.get(lab, []):
                    h.append(e)
                hist = h
                dead = False
                out.append(ln); continue
            ins = Ins(t)
            req = 0
            for (p, age) in hist:
                k = need(p, ins) - age
                if k > req: req = k
            if req > 0:
                out.append(f"    s_nop {req-1}")
                hist = [(p, a + req) for (p, a) in hist if a + req < MAXD]
            out.append(ln)
            hist = [(p, a + ins.states) for (p, a) in hist if a + ins.states < MAXD]
            hist.append((ins, 0))
            if ins.op.startswith(('s_cbranch', 's_branch')):
                lab = ins.ops[0]
                cur = saved.setdefault(lab, [])
                key = {(p.line, a) for (p, a) in cur}
                for (p, a) in hist:
                    if (p.line, a) not in key:
                        cur.append((p, a)); changed = True
                if ins.op == 's_branch':
                    dead = True
            if ins.op == 's_endpgm':
                dead = True
        if not changed:
            break
    return out

class Asm:
    def __init__(self):
        self.lines = []
        self.vm = []
        self.lg = []
    def e(self, s):
        for l in s.split('\n'):
            l = l.strip()
            if l:
                self.lines.append(("" if l.endswith(':') else "    ") + l)
    def c(self, s):
        self.lines.append("    ; " + s)
    def vmem(self, s, tag=None):
        self.e(s); self.vm.append(tag)
    def lds(self, s, tag=None):
        self.e(s); self.lg.append(tag)
    def _n(self, lst, tag):
        idx = max(i for i, t in enumerate(lst) if t == tag)
        return len(lst) - 1 - idx, idx
    def wvm(self, tag):
        if tag not in self.vm: return
        n, idx = self._n(self.vm, tag)
        assert n <= 63
        self.e(f"s_waitcnt vmcnt({n})")
        self.vm = self.vm[idx + 1:]
    def wlg(self, tag):
        if tag not in self.lg: return
        n, idx = self._n(self.lg, tag)
        n = min(n, 15)
        self.e(f"s_waitcnt lgkmcnt({n})")
        self.lg = self.lg[len(self.lg) - n:] if n else []
    def wlg0(self):
        self.e("s_waitcnt lgkmcnt(0)"); self.lg = []
    def wvm0(self):
        self.e("s_waitcnt vmcnt(0)"); self.vm = []
    def barrier(self):
        self.wlg0(); self.e("s_barrier")

def vr(a, n=1):
    return f"v{a}" if n == 1 else f"v[{a}:{a+n-1}]"
def sr(a, n=1):
    return f"s{a}" if n == 1 else f"s[{a}:{a+n-1}]"
```

```python
E = 800000
T = 12800000
NWG = 256
EPB = 3125
NT = 512
TILE_B = 150144
WS_BYTES = 268435456
REC_OFF = 0x4A00000
MD_OFF = 0x4E00000
MX_OFF = 0x5500000
MD_WG_B = 25088
MB = 1374390
MJ = 42949
K1_TILE = 8192
K1_WTOT = K1_TILE + TILE_B
K1_MAXC = K1_WTOT + 64
K1_LDS = K1_MAXC + 64
K2_CNT = 0
K2_BASE = 1024
K2_ACC = 2048
ACC_STR = 12512
K2_A = K2_ACC + 4 * ACC_STR
K2_SA = 102400
K2_SW = K2_SA + 16384
K2_SCR = K2_SW + 32768 + 256
K2_NB = K2_SCR + 4096
K2_LDS = K2_NB + 64
CENTERS = [0x0, 0x3e120000, 0x3e920000, 0x3edb0000, 0x3f120000, 0x3f370000, 0x3f5b0000, 0x3f800000]
```

```python
from asmlib import *
from consts import *

def dpp_scan(a, v, op="v_add_u32", full=True):
    for sh in (1, 2, 4, 8):
        a.e(f"{op}_dpp v{v}, v{v}, v{v} row_shr:{sh} row_mask:0xf bank_mask:0xf bound_ctrl:0")
    a.e(f"{op}_dpp v{v}, v{v}, v{v} row_bcast:15 row_mask:0xa bank_mask:0xf")
    if full:
        a.e(f"{op}_dpp v{v}, v{v}, v{v} row_bcast:31 row_mask:0xc bank_mask:0xf")

def gen_k1(cfg):
    a = Asm()
    LDNT = " nt" if cfg.get('k1_ld_nt', True) else ""
    STNT = " nt" if cfg.get('k1_st_nt', False) else ""
    EARLY = cfg.get('k1_early', 2)
    S_IN, S_OUT, S_ANG, S_WS, S_M = 4, 8, 12, 16, 20
    S_WD = 28
    S_WP = 36
    sWAVE, sMB, sMJ, sNEG, sT0, sT1, sT2, sBASE, sOOB = 44, 45, 46, 47, 48, 49, 50, 51, 52
    sTOFF4, sTOFF2, sPAY, sREC, sR6 = 54, 55, 56, 57, 58
    sPAYc, sRECc, sR6c = 60, 61, 62
    sK8192 = 63
    sMASK = 64
    vOFF16, vOFF8, vR64, vR62, vSIX, vONE, vRECO = 1, 2, 3, 4, 5, 6, 7
    def RIN(r): return 8 + 10 * r
    def ROUT(r): return 12 + 10 * r
    def RANG(r): return 16 + 10 * r
    R6IN, R6OUT, R6ANG = 68, 69, 70
    TMP = 72
    vOLD0, vOLD1, vLB0, vLB1, vLB2, vMAX, vX = 112, 113, 114, 115, 116, 117, 118

    a.e(f"s_cmp_ge_u32 s2, {NWG}")
    a.e("s_cbranch_scc1 K1_END")
    a.e(f"s_load_dwordx2 s[{S_IN}:{S_IN+1}], s[0:1], 8")
    a.e(f"s_load_dwordx2 s[{S_OUT}:{S_OUT+1}], s[0:1], 16")
    a.e(f"s_load_dwordx2 s[{S_ANG}:{S_ANG+1}], s[0:1], 32")
    a.e(f"s_load_dwordx2 s[{S_WS}:{S_WS+1}], s[0:1], 104")
    a.e(f"s_load_dwordx2 s[{S_M}:{S_M+1}], s[0:1], 0")
    a.e(f"s_load_dwordx2 s[24:25], s[0:1], 72")
    for s, n in ((S_IN, T * 4), (S_OUT, T * 4), (S_ANG, T * 2), (S_WS, WS_BYTES), (S_M, E * 8)):
        a.e(f"s_mov_b32 s{s+2}, {n}")
        a.e(f"s_mov_b32 s{s+3}, 0x00020000")
    a.e(f"v_lshlrev_b32 v{vOFF16}, 4, v0")
    a.e(f"v_lshlrev_b32 v{vOFF8}, 3, v0")
    a.e(f"v_lshrrev_b32 v{vX}, 6, v0")
    a.e(f"v_readfirstlane_b32 s{sWAVE}, v{vX}")
    a.e(f"s_mov_b32 s{sMB}, {MB}")
    a.e(f"s_mov_b32 s{sMJ}, {MJ}")
    a.e(f"s_mov_b32 s{sNEG}, {-EPB}")
    a.e(f"s_mov_b32 s{sOOB}, 0x80000000")
    a.e(f"s_mov_b32 s{sK8192}, {K1_TILE}")
    a.e(f"v_mov_b32 v{vSIX}, 6")
    a.e(f"v_mov_b32 v{vONE}, 1")
    a.e(f"v_and_b32 v{vRECO}, 127, v0")
    a.e(f"v_lshlrev_b32 v{vRECO}, 6, v{vRECO}")
    a.e(f"v_lshrrev_b32 v{vX}, 7, v0")
    a.e(f"v_lshl_add_u32 v{vRECO}, v{vX}, 2, v{vRECO}")
    a.e(f"v_add_u32 v{vLB0}, {K1_TILE}, v{vOFF16}")
    a.e(f"v_add_u32 v{vLB1}, {K1_TILE + 65536}, v{vOFF16}")
    a.e(f"v_add_u32 v{vLB2}, {K1_TILE + 131072}, v{vOFF16}")
    a.e(f"v_mov_b32 v{vOLD0}, 0")
    a.e(f"v_mov_b32 v{vOLD1}, 0")
    a.e(f"v_mov_b32 v{vMAX}, 0")

    def tile_setup(i):
        a.e(f"s_add_u32 s{sT0}, s2, {NWG * i}")
        a.e(f"s_mul_i32 s{sPAY}, s{sT0}, {TILE_B}")
        a.e(f"s_lshl_b32 s{sREC}, s{sT0}, 13")
        a.e(f"s_add_u32 s{sREC}, s{sREC}, {REC_OFF}")
        a.e(f"s_mul_i32 s{sT1}, s{sT0}, 3125")
        a.e(f"s_add_u32 s{sT2}, s{sT1}, 3125")
        a.e(f"s_lshr_b32 s{sT1}, s{sT1}, 3")
        a.e(f"s_lshr_b32 s{sT2}, s{sT2}, 3")
        a.e(f"s_sub_u32 s{sT2}, s{sT2}, s{sT1}")
        a.e(f"s_sub_u32 s{sT2}, s{sT2}, 384")
        a.e(f"s_lshl_b32 s{sTOFF4}, s{sT1}, 8")
        a.e(f"s_lshl_b32 s{sTOFF2}, s{sT1}, 7")
        a.e(f"s_cmp_lt_u32 s{sWAVE}, s{sT2}")
        a.e(f"s_cselect_b32 s{sR6}, 0, s{sOOB}")
        a.e(f"v_lshlrev_b32 v{vR64}, 2, v0")
        a.e(f"v_lshlrev_b32 v{vR62}, 1, v0")
        a.e(f"v_or_b32 v{vR64}, s{sR6}, v{vR64}")
        a.e(f"v_or_b32 v{vR62}, s{sR6}, v{vR62}")

    def loads(r):
        a.e(f"s_add_u32 s{sT0}, s{sTOFF4}, {r * 16384}")
        a.e(f"s_add_u32 s{sT1}, s{sTOFF2}, {r * 8192}")
        if r < 6:
            a.vmem(f"buffer_load_dwordx4 {vr(RIN(r),4)}, v{vOFF16}, s[{S_IN}:{S_IN+3}], s{sT0} offen{LDNT}", ('L', r))
            a.vmem(f"buffer_load_dwordx4 {vr(ROUT(r),4)}, v{vOFF16}, s[{S_OUT}:{S_OUT+3}], s{sT0} offen{LDNT}", ('L', r))
            a.vmem(f"buffer_load_dwordx2 {vr(RANG(r),2)}, v{vOFF8}, s[{S_ANG}:{S_ANG+3}], s{sT1} offen{LDNT}", ('A', r))
        else:
            a.vmem(f"buffer_load_dword v{R6IN}, v{vR64}, s[{S_IN}:{S_IN+3}], s{sT0} offen{LDNT}", ('L', r))
            a.vmem(f"buffer_load_dword v{R6OUT}, v{vR64}, s[{S_OUT}:{S_OUT+3}], s{sT0} offen{LDNT}", ('L', r))
            a.vmem(f"buffer_load_ushort v{R6ANG}, v{vR62}, s[{S_ANG}:{S_ANG+3}], s{sT1} offen{LDNT}", ('A', r))

    a.e("s_waitcnt lgkmcnt(0)")
    a.e(f"s_load_dwordx8 s[{S_WD}:{S_WD+7}], s[24:25], 0")
    vM0, vM1, vMO0, vMO1 = TMP, TMP + 4, TMP + 8, TMP + 9
    a.e(f"s_mul_i32 s{sT0}, s2, {MD_WG_B}")
    a.e(f"v_add_u32 v{vMO0}, s{sT0}, v{vOFF16}")
    a.e(f"v_add_u32 v{vMO1}, 16384, v{vMO0}")
    a.e(f"v_mov_b32 v{vX}, s{sOOB}")
    a.e(f"v_cmp_gt_u32 vcc, {(MD_WG_B - 16384)//16}, v0")
    a.e(f"v_cndmask_b32 v{vMO1}, v{vX}, v{vMO1}, vcc")
    a.vmem(f"buffer_load_dwordx4 {vr(vM0,4)}, v{vMO0}, s[{S_M}:{S_M+3}], 0 offen", 'M')
    a.vmem(f"buffer_load_dwordx4 {vr(vM1,4)}, v{vMO1}, s[{S_M}:{S_M+3}], 0 offen", 'M')
    tile_setup(0)
    for r in range(7):
        loads(r)
    a.e(f"v_mov_b32 v{TMP+10}, 0")
    a.e(f"v_mov_b32 v{TMP+11}, 0")
    a.e(f"ds_write_b64 v{vOFF8}, {vr(TMP+10,2)}")
    a.e(f"v_mov_b32 v{vX}, {K1_MAXC}")
    a.e(f"ds_write_b32 v{vX}, v{TMP+10}")
    a.e("s_waitcnt lgkmcnt(0)")
    a.e("s_barrier")
    for d in range(4):
        for h in range(2):
            r0 = S_WD + 4 * h + (d >> 1); r1 = r0 + 2
            a.e(f"s_pack_{'hh' if d & 1 else 'll'}_b32_b16 s{S_WP + 2*d + h}, s{r0}, s{r1}")
    a.wvm('M')
    D = TMP + 12
    for ed in range(4):
        m01 = (vM0 if ed < 2 else vM1) + 2 * (ed & 1)
        for d in range(4):
            a.e(f"v_dot2_f32_bf16 v{D+4*ed+d}, v{m01}, s{S_WP+2*d}, 0")
        for d in range(4):
            a.e(f"v_dot2_f32_bf16 v{D+4*ed+d}, v{m01+1}, s{S_WP+2*d+1}, v{D+4*ed+d}")
    for ed in range(4):
        m01 = (vM0 if ed < 2 else vM1) + 2 * (ed & 1)
        a.e(f"v_max3_f32 v{vMAX}, abs(v{D+4*ed}), abs(v{D+4*ed+1}), v{vMAX}")
        a.e(f"v_max3_f32 v{vMAX}, abs(v{D+4*ed+2}), abs(v{D+4*ed+3}), v{vMAX}")
        a.e(f"v_cvt_pk_bf16_f32 v{m01}, v{D+4*ed}, v{D+4*ed+1}")
        a.e(f"v_cvt_pk_bf16_f32 v{m01+1}, v{D+4*ed+2}, v{D+4*ed+3}")
    a.e(f"s_mov_b32 s{sT0}, {MD_OFF}")
    a.vmem(f"buffer_store_dwordx4 {vr(vM0,4)}, v{vMO0}, s[{S_WS}:{S_WS+3}], s{sT0} offen", 'S')
    a.vmem(f"buffer_store_dwordx4 {vr(vM1,4)}, v{vMO1}, s[{S_WS}:{S_WS+3}], s{sT0} offen", 'S')
    dpp_scan(a, vMAX, "v_max_u32")
    a.e("s_lshl_b64 exec, 1, 63")
    a.e(f"ds_max_u32 v{vX}, v{vMAX}")
    a.e("s_mov_b64 exec, -1")

    def hist_item(vi, vo, t0, t1):
        a.e(f"v_mul_hi_u32 v{t0}, v{vo}, s{sMB}")
        a.e(f"v_mul_hi_u32 v{t1}, v{vi}, s{sMJ}")
        a.e(f"v_mad_i32_i24 v{vo}, v{t0}, s{sNEG}, v{vo}")
        a.e(f"v_lshlrev_b32 v{t0}, 2, v{t0}")
        a.e(f"v_lshl_or_b32 v{vi}, v{vo}, 20, v{vi}")
        a.e(f"v_lshl_add_u32 v{vo}, v{t1}, 10, v{t0}")
        a.e(f"ds_add_u32 v{vo}, v{vONE}")

    def hist(r):
        a.wvm(('L', r))
        if r < 6:
            for k in range(4):
                hist_item(RIN(r) + k, ROUT(r) + k, vX, vX + 1)
        else:
            a.e(f"s_cmp_eq_u32 s{sR6c}, 0")
            a.e(f"s_cselect_b64 exec, -1, 0")
            hist_item(R6IN, R6OUT, vX, vX + 1)
            a.e("s_mov_b64 exec, -1")

    def scat_addr(u, wa, aa):
        a.e(f"v_and_b32 v{aa}, 2, v{u}")
        a.e(f"v_add_u32 v{wa}, v{u}, v{aa}")
        a.e(f"v_mad_i32_i24 v{aa}, v{aa}, -2, v{u}")

    for i in range(2):
        a.c(f"---- tile {i}")
        a.e(f"s_mov_b32 s{sPAYc}, s{sPAY}")
        a.e(f"s_mov_b32 s{sRECc}, s{sREC}")
        a.e(f"s_mov_b32 s{sR6c}, s{sR6}")
        for r in range(7):
            hist(r)
        a.barrier()
        C0, C1, SS, W0 = TMP, TMP + 1, TMP + 2, TMP + 4
        a.e(f"ds_read_b64 {vr(C0,2)}, v{vOFF8}")
        if i == 0:
            a.e(f"v_mov_b32 v{W0}, {K1_MAXC}")
            a.e(f"ds_read_b32 v{W0+1}, v{W0}")
            a.e(f"s_lshl_b32 s{sT0}, s2, 2")
            a.e(f"v_mov_b32 v{W0+2}, s{sT0}")
            a.e(f"v_mov_b32 v{W0+3}, s{sOOB}")
            a.e(f"v_cmp_eq_u32 vcc, 0, v0")
            a.e(f"v_cndmask_b32 v{W0+2}, v{W0+3}, v{W0+2}, vcc")
            a.e(f"s_mov_b32 s{sT0}, {MX_OFF}")
        a.e("s_waitcnt lgkmcnt(0)")
        if i == 0:
            a.vmem(f"buffer_store_dword v{W0+1}, v{W0+2}, s[{S_WS}:{S_WS+3}], s{sT0} offen", 'S')
        a.e(f"v_sub_u32 v{C0}, v{C0}, v{vOLD0}")
        a.e(f"v_sub_u32 v{C1}, v{C1}, v{vOLD1}")
        a.e(f"v_add_u32 v{SS}, v{C0}, v{C1}")
        a.e(f"v_mov_b32 v{SS+1}, v{SS}")
        dpp_scan(a, SS)
        a.e(f"s_lshl_b32 s{sT0}, s{sWAVE}, 2")
        a.e(f"s_add_u32 s{sT0}, s{sT0}, {K1_WTOT}")
        a.e(f"v_mov_b32 v{W0}, s{sT0}")
        a.e("s_lshl_b64 exec, 1, 63")
        a.e(f"ds_write_b32 v{W0}, v{SS}")
        a.e("s_mov_b64 exec, -1")
        a.e(f"v_sub_u32 v{SS}, v{SS}, v{SS+1}")
        a.e(f"v_and_b32 v{W0+4}, 15, v0")
        a.e(f"v_lshlrev_b32 v{W0}, 2, v{W0+4}")
        a.e(f"v_add_u32 v{W0}, {K1_WTOT}, v{W0}")
        a.barrier()
        a.e(f"ds_read_b32 v{W0+5}, v{W0}")
        a.e(f"v_cmp_gt_u32 vcc, s{sWAVE}, v{W0+4}")
        a.e("s_waitcnt lgkmcnt(0)")
        a.e(f"v_cndmask_b32 v{W0+5}, 0, v{W0+5}, vcc")
        for sh in (1, 2, 4, 8):
            a.e(f"v_add_u32_dpp v{W0+5}, v{W0+5}, v{W0+5} row_shr:{sh} row_mask:0xf bank_mask:0xf bound_ctrl:0")
        a.e(f"v_readlane_b32 s{sBASE}, v{W0+5}, 15")
        a.e(f"v_add_u32 v{SS}, s{sBASE}, v{SS}")
        a.e(f"v_add_u32 v{C0}, v{SS}, v{C0}")
        a.e(f"v_add_u32 v{C1}, v{C0}, v{C1}")
        a.e(f"v_mad_u32_u24 v{W0}, v{SS}, 6, s{sK8192}")
        a.e(f"v_mad_u32_u24 v{W0+1}, v{C0}, 6, s{sK8192}")
        a.e(f"ds_write_b64 v{vOFF8}, {vr(W0,2)}")
        a.e(f"v_mov_b32 v{vOLD0}, v{W0+1}")
        a.e(f"v_mad_u32_u24 v{vOLD1}, v{C1}, 6, s{sK8192}")
        a.e(f"v_lshl_or_b32 v{W0+2}, v{C0}, 16, v{SS}")
        a.e(f"v_lshl_or_b32 v{W0+3}, v{C1}, 16, v{C0}")
        a.vmem(f"buffer_store_dword v{W0+2}, v{vRECO}, s[{S_WS}:{S_WS+3}], s{sRECc} offen", 'S')
        a.vmem(f"buffer_store_dword v{W0+3}, v{vRECO}, s[{S_WS}:{S_WS+3}], s{sRECc} offen offset:32", 'S')
        a.barrier()
        if i == 0:
            tile_setup(1)
        U = [TMP + 12, TMP + 16]
        WA, AA = TMP + 20, TMP + 24
        def rtn(r):
            for k in range(4):
                a.lds(f"ds_add_rtn_u32 v{U[r&1]+k}, v{ROUT(r)+k}, v{vSIX}", ('R', r))
        rtn(0)
        for r in range(6):
            if r + 1 < 6: rtn(r + 1)
            a.wvm(('A', r))
            a.wlg(('R', r))
            for k in range(4):
                scat_addr(U[r & 1] + k, WA + k, AA + k)
            for k in range(4):
                a.lds(f"ds_write_b32 v{WA+k}, v{RIN(r)+k}")
                a.lds(f"ds_write_b16{'_d16_hi' if k & 1 else ''} v{AA+k}, v{RANG(r)+(k>>1)} offset:4")
            if i == 0 and r < EARLY:
                loads(r)
        a.wvm(('A', 6))
        a.e(f"s_cmp_eq_u32 s{sR6c}, 0")
        a.e(f"s_cselect_b64 exec, -1, 0")
        a.e(f"ds_add_rtn_u32 v{U[0]}, v{R6OUT}, v{vSIX}")
        a.wlg0()
        scat_addr(U[0], WA, AA)
        a.e(f"ds_write_b32 v{WA}, v{R6IN}")
        a.e(f"ds_write_b16 v{AA}, v{R6ANG} offset:4")
        a.e("s_mov_b64 exec, -1")
        a.barrier()
        LB = [vLB0, vLB1, vLB2]
        for q in range(9):
            a.lds(f"ds_read_b128 {vr(TMP+4*q,4)}, v{LB[q>>2]} offset:{(q&3)*16384}", ('W', q))
        a.e(f"v_cmp_gt_u32 vcc, {(TILE_B - 9*16384)//16}, v0")
        a.e(f"v_mov_b32 v{vX}, s{sOOB}")
        a.e(f"v_cndmask_b32 v{vX}, v{vX}, v{vOFF16}, vcc")
        a.e(f"v_cndmask_b32 v{vX+1}, v{vLB0}, v{vLB2}, vcc")
        a.lds(f"ds_read_b128 {vr(TMP+36,4)}, v{vX+1} offset:16384", ('W', 9))
        nxt = EARLY
        for q in range(10):
            a.wlg(('W', q))
            a.e(f"s_add_u32 s{sT2}, s{sPAYc}, {q*16384}")
            a.vmem(f"buffer_store_dwordx4 {vr(TMP+4*q,4)}, v{vOFF16 if q < 9 else vX}, s[{S_WS}:{S_WS+3}], s{sT2} offen{STNT}", 'S')
            if i == 0 and nxt < 7 and (q & 1) == 1:
                loads(nxt); nxt += 1
        if i == 0:
            while nxt < 7:
                loads(nxt); nxt += 1
    a.e("K1_END:")
    a.e("s_endpgm")
    return fix_hazards(a.lines)
```

```python
from asmlib import *
from consts import *
from k1 import dpp_scan

def gen_k2(cfg):
    a = Asm()
    PAYNT = " nt" if cfg.get('k2_pay_nt', False) else ""
    A_LATE = cfg.get('k2_a_late', False)
    S_WS, S_MD = 4, 8
    S_X = 12
    S_Y = 16
    MSK = 20
    sWAVE, sB, sJ, sWIN, sTOT, sN, sCNT, sT0, sT1, sT2, sFFF0, sHI, sFIRST, sOOB = range(36, 50)
    sM = 50
    sUP = 52
    S_W = 54
    S_WA = 56
    S_WG = 88
    vLANE, vL12, vTB, vFL, vCN, vSCR, vFOUR, vL16, vZERO = range(1, 10)
    R = 10
    def P(c): return 18 + 4 * c
    SW_, SA_, G = 34, 42, 50
    U, KA, OLD, GP = 66, 74, 82, 86
    T_ = 94

    a.e(f"s_cmp_ge_u32 s2, {NWG}")
    a.e("s_cbranch_scc1 K2_END")
    a.e(f"s_load_dwordx2 s[{S_WS}:{S_WS+1}], s[0:1], 104")
    a.e(f"s_load_dwordx2 s[{S_X}:{S_X+1}], s[0:1], 24")
    a.e(f"s_load_dwordx4 s[{S_Y}:{S_Y+3}], s[0:1], 56")
    a.e(f"s_mov_b32 s{S_WS+2}, {WS_BYTES}")
    a.e(f"s_mov_b32 s{S_WS+3}, 0x00020000")
    a.e(f"s_mov_b32 s{S_X+2}, {E*2}")
    a.e(f"s_mov_b32 s{S_X+3}, 0x00020000")
    a.e(f"v_lshrrev_b32 v{T_}, 6, v0")
    a.e(f"v_and_b32 v{vLANE}, 63, v0")
    a.e(f"v_readfirstlane_b32 s{sWAVE}, v{T_}")
    a.e(f"s_and_b32 s{sB}, s2, 7")
    a.e(f"s_lshl_b32 s{sB}, s{sB}, 5")
    a.e(f"s_lshr_b32 s{sT0}, s2, 3")
    a.e(f"s_or_b32 s{sB}, s{sB}, s{sT0}")
    a.e(f"s_mov_b32 s{sFFF0}, 0xfff0")
    a.e(f"s_mov_b32 s{sHI}, 0xffff0000")
    a.e(f"s_mov_b32 s{sOOB}, 0x80000000")
    a.e(f"s_mov_b32 s{sUP}, 0")
    a.e(f"s_mov_b32 s{sUP+1}, -1")
    a.e(f"v_mul_u32_u24 v{vL12}, 12, v{vLANE}")
    a.e(f"v_lshlrev_b32 v{vL16}, 4, v{vLANE}")
    a.e(f"v_mov_b32 v{vFOUR}, 4")
    a.e(f"v_mov_b32 v{vZERO}, 0")
    a.e(f"v_and_b32 v{T_+1}, 31, v0")
    a.e(f"v_lshl_add_u32 v{T_+1}, v{T_}, 5, v{T_+1}")
    a.e(f"s_mov_b32 s{sT0}, {TILE_B}")
    a.e(f"v_mul_lo_u32 v{vTB}, v{T_+1}, s{sT0}")
    a.e(f"s_lshl_b32 s{sT0}, s{sB}, 5")
    a.e(f"v_lshlrev_b32 v{T_+1}, 13, v{T_+1}")
    a.e(f"v_add_u32 v{T_+1}, s{sT0}, v{T_+1}")
    a.e(f"v_mov_b32 v{vFL}, 0x40")
    a.e(f"v_mov_b32 v{T_+2}, 0x80")
    a.e(f"v_cndmask_b32 v{vFL}, v{vFL}, v{T_+2}, s[{sUP}:{sUP+1}]")
    a.e(f"v_add_u32 v{T_+2}, -1, v{vLANE}")
    a.e(f"v_cmp_gt_u32 vcc, 31, v{T_+2}")
    a.e(f"v_cndmask_b32 v{vCN}, 0, 1, vcc")
    a.e(f"v_lshlrev_b32 v{vSCR}, 2, v0")
    a.e(f"v_add_u32 v{vSCR}, {K2_SCR}, v{vSCR}")
    a.e("s_waitcnt lgkmcnt(0)")
    a.e(f"s_load_dwordx16 s[{S_WA}:{S_WA+15}], s[{S_Y+2}:{S_Y+3}], 0")
    a.e(f"s_load_dwordx16 s[{S_WA+16}:{S_WA+31}], s[{S_Y+2}:{S_Y+3}], 64")
    a.e(f"s_add_u32 s{S_MD}, s{S_WS}, {MD_OFF}")
    a.e(f"s_addc_u32 s{S_MD+1}, s{S_WS+1}, 0")
    a.e(f"s_or_b32 s{S_MD+1}, s{S_MD+1}, 0x80000")
    a.e(f"s_mov_b32 s{S_MD+2}, {E}")
    a.e(f"s_mov_b32 s{S_MD+3}, 0x00020000")
    a.e(f"s_mov_b32 s{sT0}, {REC_OFF}")
    a.vmem(f"buffer_load_dwordx4 {vr(R,4)}, v{T_+1}, s[{S_WS}:{S_WS+3}], s{sT0} offen", 'R')
    a.vmem(f"buffer_load_dwordx4 {vr(R+4,4)}, v{T_+1}, s[{S_WS}:{S_WS+3}], s{sT0} offen offset:16", 'R')
    a.e(f"s_mov_b32 s{sT1}, {MX_OFF}")
    a.vmem(f"buffer_load_dwordx4 {vr(U,4)}, v{vL16}, s[{S_WS}:{S_WS+3}], s{sT1} offen", 'X')
    a.e(f"s_mul_i32 s{sT0}, s{sB}, {EPB*2}")
    a.e(f"v_lshlrev_b32 v{T_+2}, 1, v0")
    a.e(f"v_add_u32 v{T_+2}, s{sT0}, v{T_+2}")
    a.e(f"v_add_u32 v{T_+3}, 4096, v{T_+2}")
    for k in range(4):
        a.e(f"v_mov_b32 v{GP+2*k}, 0")
    for k in range(4):
        a.vmem(f"buffer_load_short_d16_hi v{GP+2*k}, v{T_+2+(k>>1)}, s[{S_X}:{S_X+3}], 0 offen offset:{(k&1)*2048}", 'D')
    for k in range(4):
        a.e(f"v_mov_b32 v{T_+4+k}, 0")
    a.e(f"v_lshlrev_b32 v{T_+8}, 4, v0")
    for k in range(3):
        a.e(f"ds_write_b128 v{T_+8}, {vr(T_+4,4)} offset:{k*16384}")
    a.e(f"v_cmp_gt_u32 vcc, {(K2_A - 3*16384)//16}, v0")
    a.e(f"s_and_saveexec_b64 s[{sM}:{sM+1}], vcc")
    a.e(f"ds_write_b128 v{T_+8}, {vr(T_+4,4)} offset:{3*16384}")
    a.e(f"s_mov_b64 exec, -1")
    a.e(f"ds_write_b32 v{vSCR}, v{vZERO}")
    for k in range(4):
        a.e(f"v_mov_b32 v{OLD+k}, 0")
    for k in range(8):
        a.e(f"v_mov_b32 v{SA_+k}, 0")
    a.e(f"s_mov_b32 s{sJ}, 8")
    a.e(f"s_mov_b32 s{sWIN}, 0")
    a.e(f"s_mov_b32 s{sCNT}, 0")
    a.e("s_waitcnt lgkmcnt(0)")
    a.wvm('R')
    t = T_
    a.e(f"v_mov_b32 v{t}, 0")
    for k in range(8):
        a.e(f"v_sub_u32_sdwa v{t+1}, v{R+k}, v{R+k} dst_sel:DWORD dst_unused:UNUSED_PAD src0_sel:WORD_1 src1_sel:WORD_0")
        a.e(f"v_add_u32 v{t}, v{t}, v{t+1}")
    dpp_scan(a, t, full=False)
    a.e(f"s_lshl_b32 s{sT0}, s{sWAVE}, 2")
    a.e(f"s_add_u32 s{sT0}, s{sT0}, {K2_NB}")
    a.e(f"v_mov_b32 v{t+1}, s{sT0}")
    a.e("s_lshl_b64 exec, 1, 63")
    a.e(f"ds_write_b32 v{t+1}, v{t}")
    a.e("s_mov_b64 exec, -1")

    uid = [0]
    def flatten():
        uid[0] += 1
        L = f"K2_FL{uid[0]}"
        s_, e_, p0, n_, inc, S_, V_, x_, sl = range(T_, T_ + 9)
        a.e(f"{L}_TOP:")
        a.e(f"v_and_b32 v{s_}, 0xffff, v{R}")
        a.e(f"v_lshrrev_b32 v{e_}, 16, v{R}")
        a.e(f"v_lshrrev_b32 v{p0}, 1, v{s_}")
        a.e(f"v_add_u32 v{n_}, 1, v{e_}")
        a.e(f"v_cmp_gt_u32 s[{sM}:{sM+1}], v{e_}, v{s_}")
        a.e(f"v_lshrrev_b32 v{n_}, 1, v{n_}")
        a.e(f"v_sub_u32 v{n_}, v{n_}, v{p0}")
        a.e(f"v_cndmask_b32 v{n_}, 0, v{n_}, s[{sM}:{sM+1}]")
        a.e(f"v_mov_b32 v{inc}, v{n_}")
        dpp_scan(a, inc, full=False)
        a.e(f"v_readlane_b32 s{sTOT}, v{inc}, 31")
        a.e(f"s_cmp_lt_u32 s{sWIN}, s{sTOT}")
        a.e(f"s_cbranch_scc1 {L}_GO")
        a.e(f"s_cmp_eq_u32 s{sJ}, 0")
        a.e(f"s_cbranch_scc1 {L}_GO")
        for k in range(7):
            a.e(f"v_mov_b32 v{R+k}, v{R+k+1}")
        a.e(f"v_mov_b32 v{R+7}, 0")
        a.e(f"s_sub_u32 s{sJ}, s{sJ}, 1")
        a.e(f"s_mov_b32 s{sWIN}, 0")
        a.e(f"s_branch {L}_TOP")
        a.e(f"{L}_GO:")
        a.e(f"v_sub_u32 v{S_}, v{inc}, v{n_}")
        a.e(f"v_subrev_u32 v{S_}, s{sWIN}, v{S_}")
        a.e(f"v_sub_u32 v{V_}, v{p0}, v{S_}")
        a.e(f"v_mad_i32_i24 v{V_}, v{V_}, 12, v{vTB}")
        a.e(f"v_cndmask_b32 v{x_}, v{s_}, v{e_}, s[{sUP}:{sUP+1}]")
        a.e(f"v_add_u32 v{sl}, -1, v{n_}")
        a.e(f"v_cndmask_b32 v{sl}, 0, v{sl}, s[{sUP}:{sUP+1}]")
        a.e(f"v_add_u32 v{sl}, v{sl}, v{S_}")
        a.e(f"v_and_b32 v{x_}, 1, v{x_}")
        a.e(f"v_cmp_le_i32 vcc, 0, v{sl}")
        a.e(f"s_and_b64 vcc, vcc, s[{sM}:{sM+1}]")
        a.e(f"v_cndmask_b32 v{x_}, 0, v{x_}, vcc")
        a.e(f"v_max_i32 v{sl}, 0, v{sl}")
        a.e(f"v_mad_u32_u24 v{x_}, v{x_}, v{vFL}, v{vCN}")
        a.e(f"v_lshrrev_b32 v{s_}, 3, v{sl}")
        a.e(f"v_and_b32 v{s_}, 0x18, v{s_}")
        a.e(f"v_lshlrev_b32 v{x_}, v{s_}, v{x_}")
        a.e(f"v_cmp_gt_u32 vcc, 256, v{sl}")
        a.e(f"v_and_b32 v{sl}, 63, v{sl}")
        a.e(f"v_sub_u32 v{sl}, v{sl}, v{vLANE}")
        a.e(f"v_lshl_add_u32 v{sl}, v{sl}, 2, v{vSCR}")
        a.e(f"s_mov_b64 exec, vcc")
        a.e(f"ds_add_u32 v{sl}, v{x_}")
        a.e(f"s_mov_b64 exec, -1")
        raw, raw2, cnt = e_, p0, n_
        a.e(f"ds_read_b32 v{raw}, v{vSCR}")
        a.e(f"ds_write_b32 v{vSCR}, v{vZERO}")
        a.e(f"s_sub_u32 s{sT1}, s{sTOT}, s{sWIN}")
        a.e("s_waitcnt lgkmcnt(1)")
        a.e(f"v_and_b32 v{cnt}, 0x3f3f3f3f, v{raw}")
        a.e(f"v_lshlrev_b32 v{raw2}, 1, v{raw}")
        dpp_scan(a, cnt)
        a.e(f"v_readlane_b32 s{sT0}, v{cnt}, 63")
        a.e(f"s_mul_i32 s{sT0}, s{sT0}, 0x01010100")
        a.e(f"v_add_u32 v{cnt}, s{sT0}, v{cnt}")
        AD = T_ + 10
        for c in range(4):
            a.e(f"v_lshlrev_b32_sdwa v{AD+c}, 2, v{cnt} dst_sel:DWORD dst_unused:UNUSED_PAD src0_sel:DWORD src1_sel:BYTE_{c}")
            a.e(f"ds_bpermute_b32 v{AD+c}, v{AD+c}, v{V_}")
        a.e(f"v_mov_b32 v{s_}, s{sOOB}")
        for c in range(4):
            a.e(f"v_cmp_le_i32_sdwa s[{MSK+4*c}:{MSK+4*c+1}], 0, sext(v{raw2}) src0_sel:DWORD src1_sel:BYTE_{c}")
            a.e(f"v_cmp_le_i32_sdwa s[{MSK+4*c+2}:{MSK+4*c+3}], 0, sext(v{raw}) src0_sel:DWORD src1_sel:BYTE_{c}")
        for c in range(4):
            a.e(f"v_cmp_gt_i32 vcc, s{sT1}, v{vLANE}")
            a.e(f"s_sub_u32 s{sT1}, s{sT1}, 64")
            a.e(f"s_and_b64 s[{MSK+4*c}:{MSK+4*c+1}], s[{MSK+4*c}:{MSK+4*c+1}], vcc")
            a.e(f"s_and_b64 s[{MSK+4*c+2}:{MSK+4*c+3}], s[{MSK+4*c+2}:{MSK+4*c+3}], vcc")
            a.e(f"s_waitcnt lgkmcnt({3-c})")
            a.e(f"v_add_u32 v{AD+c}, v{AD+c}, v{vL12}")
            a.e(f"v_cndmask_b32 v{AD+c}, v{s_}, v{AD+c}, vcc")
            a.e(f"buffer_load_dwordx3 {vr(P(c),3)}, v{AD+c}, s[{S_WS}:{S_WS+3}], 0 offen offset:{768*c}{PAYNT}")
        a.e(f"s_add_u32 s{sWIN}, s{sWIN}, 256")
        a.e(f"s_cmp_lt_u32 s{sWIN}, s{sTOT}")
        a.e(f"s_cbranch_scc1 {L}_DONE")
        a.e(f"s_mov_b32 s{sWIN}, 0")
        a.e(f"s_cmp_eq_u32 s{sJ}, 0")
        a.e(f"s_cbranch_scc1 {L}_DONE")
        for k in range(7):
            a.e(f"v_mov_b32 v{R+k}, v{R+k+1}")
        a.e(f"v_mov_b32 v{R+7}, 0")
        a.e(f"s_sub_u32 s{sJ}, s{sJ}, 1")
        a.e(f"{L}_DONE:")

    def a_compute():
        t = T_
        a.e(f"v_and_b32 v{t}, 15, v0")
        a.e(f"v_lshlrev_b32 v{t}, 2, v{t}")
        a.e(f"v_add_u32 v{t}, {K2_NB}, v{t}")
        a.e(f"ds_read_b32 v{t}, v{t}")
        a.e(f"v_max_u32 v{U}, v{U}, v{U+1}")
        a.e(f"v_max_u32 v{U+2}, v{U+2}, v{U+3}")
        a.e(f"v_max_u32 v{U}, v{U}, v{U+2}")
        dpp_scan(a, U, "v_max_u32")
        a.e("s_waitcnt lgkmcnt(0)")
        for sh in (1, 2, 4, 8):
            a.e(f"v_add_u32_dpp v{t}, v{t}, v{t} row_shr:{sh} row_mask:0xf bank_mask:0xf bound_ctrl:0")
        a.e(f"v_cvt_f32_u32 v{t}, v{t}")
        a.e(f"v_mul_f32 v{t}, v{t}, v{U}")
        a.e(f"v_rcp_f32 v{t}, v{t}")
        a.e(f"v_mul_f32 v{t}, 0x4efc0000, v{t}")
        a.e(f"v_min_f32 v{t}, 0x5d800000, v{t}")
        sG = sT2
        a.e(f"v_readlane_b32 s{sG}, v{t}, 63")
        for q in range(4):
            for l in range(2):
                for h in range(2):
                    ra = S_WA + (4 * q + l) * 2 + h; rb = S_WA + (4 * q + 2 + l) * 2 + h
                    a.e(f"s_pack_ll_b32_b16 s{sT0}, s{ra}, s{rb}")
                    a.e(f"s_pack_hh_b32_b16 s{rb}, s{ra}, s{rb}")
                    a.e(f"s_mov_b32 s{ra}, s{sT0}")
        def WA(q, l, d): return S_WA + (4 * q + l + 2 * (d & 1)) * 2 + (d >> 1)
        RB = KA
        RBS = [U, U + 4, KA, KA + 4]
        X = T_
        AV = T_ + 8
        Y = T_ + 16
        def rnd(base):
            for q in range(4):
                a.e(f"v_cvt_pk_bf16_f32 v{base+2*q+1}, v{base+2*q}, v{base+2*q+1}")
            for q in range(4):
                a.e(f"v_lshlrev_b32 v{base+2*q}, 16, v{base+2*q+1}")
                a.e(f"v_and_b32 v{base+2*q+1}, s{sHI}, v{base+2*q+1}")
        a.e(f"v_lshlrev_b32 v{Y+4}, 4, v0")
        for k in range(4):
            if k == 3:
                a.e(f"s_cmp_lg_u32 s{sWAVE}, 0")
                a.e(f"s_cbranch_scc1 K2_A3SKIP")
            dv = GP + 2 * k
            for r in range(8):
                a.e(f"v_subrev_f32 v{X+r}, {hex(CENTERS[r])}, v{dv}")
            rnd(X)
            for r in range(8):
                a.e(f"v_mul_f32 v{X+r}, v{X+r}, v{X+r}")
            rnd(X)
            for r in range(8):
                a.e(f"v_mul_f32 v{X+r}, 0xc1200000, v{X+r}")
            rnd(X)
            for r in range(8):
                a.e(f"v_mul_f32 v{X+r}, 0x3fb8aa3b, v{X+r}")
            for r in range(8):
                a.e(f"v_exp_f32 v{X+r}, v{X+r}")
            rb = RBS[k]
            for q in range(4):
                a.e(f"v_cvt_pk_bf16_f32 v{rb+q}, v{X+2*q}, v{X+2*q+1}")
            for q in range(4):
                for d in range(4):
                    for l in range(2):
                        o = AV + 2 * d + l
                        a.e(f"v_dot2_f32_bf16 v{o}, v{rb+q}, s{WA(q,l,d)}, {'0' if q == 0 else 'v%d' % o}")
            for d in range(4):
                a.e(f"v_add_f32 v{Y+d}, abs(v{AV+2*d}), abs(v{AV+2*d+1})")
            a.e(f"v_max3_f32 v{Y}, v{Y}, v{Y+1}, v{Y+2}")
            a.e(f"v_max_f32 v{Y}, v{Y}, v{Y+3}")
            a.e(f"v_max_f32 v{Y}, 0x21800000, v{Y}")
            a.e(f"v_rcp_f32 v{Y}, v{Y}")
            a.e(f"v_mul_f32 v{Y}, s{sG}, v{Y}")
            a.e(f"v_add_f32 v{Y+1}, v{Y}, v{Y}")
            a.e(f"v_rcp_f32 v{dv+1}, v{Y}")
            for d in range(4):
                a.e(f"v_mul_f32 v{AV+2*d}, v{Y}, v{AV+2*d}")
                a.e(f"v_mul_f32 v{AV+2*d+1}, v{Y+1}, v{AV+2*d+1}")
            for d in range(4):
                a.e(f"v_cvt_pk_bf16_f32 v{X+d}, v{AV+2*d}, v{AV+2*d+1}")
            if k == 3:
                a.e(f"v_cmp_gt_u32 vcc, {EPB - 3072}, v0")
                a.e(f"s_mov_b64 exec, vcc")
            a.e(f"ds_write_b128 v{Y+4}, {vr(X,4)} offset:{K2_A}")
            if k == 3:
                a.e(f"s_mov_b64 exec, -1")
            if k < 3:
                a.e(f"v_add_u32 v{Y+4}, 16384, v{Y+4}")
        a.e("K2_A3SKIP:")
        a.e(f"s_load_dwordx16 s[{S_WA}:{S_WA+15}], s[{S_Y}:{S_Y+1}], 0")
        a.e(f"s_load_dwordx2 s[{S_X}:{S_X+1}], s[0:1], 80")
        a.e("s_waitcnt lgkmcnt(0)")
        a.e(f"s_load_dwordx8 s[{S_WA+16}:{S_WA+23}], s[{S_X}:{S_X+1}], 0")
        for q in range(4):
            for h in range(2):
                ra = S_WA + (2 * q) * 2 + h; rb = S_WA + (2 * q + 1) * 2 + h
                a.e(f"s_pack_ll_b32_b16 s{sT0}, s{ra}, s{rb}")
                a.e(f"s_pack_hh_b32_b16 s{rb}, s{ra}, s{rb}")
                a.e(f"s_mov_b32 s{ra}, s{sT0}")
        def WG(q, d): return S_WA + (2 * q + (d & 1)) * 2 + (d >> 1)
        for k in range(4):
            rb = RBS[k]
            o = X + 4 * k
            for q in range(4):
                for d in range(4):
                    a.e(f"v_dot2_f32_bf16 v{o+d}, v{rb+q}, s{WG(q,d)}, {'0' if q == 0 else 'v%d' % (o+d)}")
        for k in range(4):
            o = X + 4 * k
            for d in range(4):
                a.e(f"v_mul_f32 v{o+d}, v{GP+2*k+1}, v{o+d}")
            a.e(f"v_cvt_pk_bf16_f32 v{GP+2*k}, v{o}, v{o+1}")
            a.e(f"v_cvt_pk_bf16_f32 v{GP+2*k+1}, v{o+2}, v{o+3}")
        a.e("s_waitcnt lgkmcnt(0)")
        for d in range(4):
            for h in range(2):
                src = S_WA + 16 + 2 * d + h
                a.e(f"s_lshl_b32 s{S_WA+4*d+2*h}, s{src}, 16")
                a.e(f"s_and_b32 s{S_WA+4*d+2*h+1}, s{src}, s{sHI}")

    flatten()
    a.e("s_waitcnt lgkmcnt(0)")
    a.e("s_barrier")
    a.e("s_waitcnt vmcnt(4)")
    a_compute()

    a.e("K2_LOOP:")
    vA4, vA2 = T_, T_ + 1
    for s in range(8):
        a.e(f"s_cmp_lt_u32 s{sCNT}, {8 - s}")
        a.e(f"s_cbranch_scc1 K2_RS{s}")
        a.e(f"ds_read_b32 v{SW_+s}, v{vA4} offset:{256*s}")
        a.e(f"ds_read_u16_d16_hi v{SA_+s}, v{vA2} offset:{128*s}")
        a.e(f"K2_RS{s}:")
    a.e("s_waitcnt vmcnt(0)")
    for s in range(8):
        a.e(f"s_cmp_lt_u32 s{sCNT}, {8 - s}")
        a.e(f"s_cbranch_scc1 K2_GS{s}")
        a.e(f"s_waitcnt lgkmcnt({min(15, 2*(7-s)+1)})")
        a.e(f"v_and_b32 v{T_+2+(s&1)}, 0xfffff, v{SW_+s}")
        a.e(f"buffer_load_dwordx2 {vr(G+2*s,2)}, v{T_+2+(s&1)}, s[{S_MD}:{S_MD+3}], 0 idxen")
        a.e(f"K2_GS{s}:")
    for c in range(4):
        for h in range(2):
            i = 2 * c + h
            a.e(f"v_lshlrev_b32_sdwa v{KA+i}, 2, v{P(c)+2*h} dst_sel:DWORD dst_unused:UNUSED_PAD src0_sel:DWORD src1_sel:BYTE_1")
    for i in range(8):
        a.e(f"s_mov_b64 exec, s[{MSK+2*i}:{MSK+2*i+1}]")
        a.e(f"ds_add_rtn_u32 v{U+i}, v{KA+i}, v{vFOUR}")
    a.e("s_mov_b64 exec, -1")
    a.e("s_waitcnt lgkmcnt(0)")
    a.e("s_barrier")
    NW, CC, TT, BS = T_, T_ + 4, T_ + 8, T_ + 12
    a.e(f"ds_read_b128 {vr(NW,4)}, v{vL16}")
    a.e("s_waitcnt lgkmcnt(0)")
    for k in range(4):
        a.e(f"v_sub_u32 v{CC+k}, v{NW+k}, v{OLD+k}")
    a.e(f"v_add_u32 v{TT}, v{CC}, v{CC+1}")
    a.e(f"v_add3_u32 v{TT}, v{TT}, v{CC+2}, v{CC+3}")
    a.e(f"v_sub_u32 v{TT+1}, {K2_SW}, v{TT}")
    dpp_scan(a, TT)
    a.e(f"v_add_u32 v{TT+1}, v{TT+1}, v{TT}")
    a.e(f"v_readlane_b32 s{sN}, v{TT}, 63")
    for k in range(4):
        a.e(f"v_sub_u32 v{BS+k}, v{TT+1}, v{OLD+k}")
        if k < 3:
            a.e(f"v_add_u32 v{TT+1}, v{TT+1}, v{CC+k}")
        a.e(f"v_mov_b32 v{OLD+k}, v{NW+k}")
    a.e(f"ds_write_b128 v{vL16}, {vr(BS,4)} offset:{K2_BASE}")
    for i in range(8):
        a.e(f"ds_read_b32 v{KA+i}, v{KA+i} offset:{K2_BASE}")
    a.e(f"s_cmp_lg_u32 s{sWAVE}, 0")
    a.e(f"s_cbranch_scc1 K2_NOPAD")
    a.e(f"s_add_u32 s{sT0}, s{sN}, {K2_SW}")
    a.e(f"v_lshl_add_u32 v{TT}, v{vLANE}, 2, s{sT0}")
    a.e(f"v_mov_b32 v{TT+1}, {hex(EPB << 20)}")
    a.e(f"ds_write_b32 v{TT}, v{TT+1}")
    a.e("K2_NOPAD:")
    a.e("s_waitcnt lgkmcnt(0)")
    for i in range(8):
        a.e(f"v_add_u32 v{U+i}, v{U+i}, v{KA+i}")
        a.e(f"v_lshrrev_b32 v{KA+i}, 1, v{U+i}")
    for i in range(8):
        c, h = i >> 1, i & 1
        a.e(f"s_mov_b64 exec, s[{MSK+2*i}:{MSK+2*i+1}]")
        a.e(f"ds_write_b32 v{U+i}, v{P(c)+2*h}")
        a.e(f"ds_write_b16{'_d16_hi' if h else ''} v{KA+i}, v{P(c)+1} offset:{K2_SA - K2_SW//2}")
    a.e("s_mov_b64 exec, -1")
    flatten()
    for s in range(8):
        b = T_ + 16 * (s & 1)
        L16, L4, C_, AV, M_ = b, b + 1, b + 2, b + 4, b + 8
        a.e(f"s_cmp_lt_u32 s{sCNT}, {8 - s}")
        a.e(f"s_cbranch_scc1 K2_PS{s}")
        a.e(f"v_and_b32_sdwa v{L16}, v{SW_+s}, s{sFFF0} dst_sel:DWORD dst_unused:UNUSED_PAD src0_sel:WORD_1 src1_sel:DWORD")
        a.e(f"ds_read_b128 {vr(AV,4)}, v{L16} offset:{K2_A}")
        a.e(f"v_mul_f32 v{C_}, 0.15915494, v{SA_+s}")
        a.e(f"v_fract_f32 v{C_}, v{C_}")
        a.e(f"v_cos_f32 v{C_}, v{C_}")
        a.e(f"v_lshrrev_b32 v{L4}, 2, v{L16}")
        a.e(f"v_fma_f32 v{C_+1}, v{C_}, v{C_}, -0.5")
        a.e(f"v_cvt_pk_bf16_f32 v{C_}, v{C_}, v{C_+1}")
        a.e(f"s_waitcnt lgkmcnt(0)")
        for d in range(4):
            a.e(f"v_dot2_f32_bf16 v{AV+d}, v{AV+d}, v{C_}, 0")
        a.e(f"s_waitcnt vmcnt({7 - s + 4})")
        a.e(f"v_lshlrev_b32 v{M_}, 16, v{G+2*s}")
        a.e(f"v_and_b32 v{M_+1}, s{sHI}, v{G+2*s}")
        a.e(f"v_lshlrev_b32 v{M_+2}, 16, v{G+2*s+1}")
        a.e(f"v_and_b32 v{M_+3}, s{sHI}, v{G+2*s+1}")
        for d in range(4):
            a.e(f"v_mul_f32 v{M_+d}, v{M_+d}, v{AV+d}")
        for d in range(4):
            a.e(f"v_cvt_rpi_i32_f32 v{M_+d}, v{M_+d}")
        for d in range(4):
            a.e(f"ds_add_u32 v{L4}, v{M_+d} offset:{K2_ACC + d*ACC_STR}")
        a.e(f"K2_PS{s}:")
    a.e(f"s_add_u32 s{sT0}, s{sN}, 255")
    a.e(f"s_lshr_b32 s{sT0}, s{sT0}, 8")
    a.e(f"s_mul_i32 s{sT1}, s{sT0}, s{sWAVE}")
    a.e(f"s_add_u32 s{sT0}, s{sT1}, s{sT0}")
    a.e(f"s_lshr_b32 s{sT1}, s{sT1}, 4")
    a.e(f"s_lshr_b32 s{sT0}, s{sT0}, 4")
    a.e(f"s_sub_u32 s{sCNT}, s{sT0}, s{sT1}")
    a.e(f"s_lshl_b32 s{sT0}, s{sT0}, 7")
    a.e(f"s_add_u32 s{sT1}, s{sT0}, {K2_SA - 8*128}")
    a.e(f"s_lshl_b32 s{sT0}, s{sT0}, 1")
    a.e(f"s_add_u32 s{sT0}, s{sT0}, {K2_SW - 8*256}")
    a.e("s_waitcnt lgkmcnt(0)")
    a.e(f"v_lshl_add_u32 v{vA4}, v{vLANE}, 2, s{sT0}")
    a.e(f"v_lshl_add_u32 v{vA2}, v{vLANE}, 1, s{sT1}")
    a.e("s_barrier")
    a.e(f"s_cmp_lg_u32 s{sN}, 0")
    a.e("s_cbranch_scc1 K2_LOOP")

    a.e(f"s_load_dwordx2 s[{S_X}:{S_X+1}], s[0:1], 0")
    a.e(f"s_load_dwordx2 s[{S_Y}:{S_Y+1}], s[0:1], 88")
    a.e(f"s_mov_b32 s{S_X+2}, {E*8}")
    a.e(f"s_mov_b32 s{S_X+3}, 0x00020000")
    a.e(f"s_mov_b32 s{S_Y+2}, {E*8}")
    a.e(f"s_mov_b32 s{S_Y+3}, 0x00020000")
    OF = 10
    MM = 14
    AC = 22
    UU = 38
    a.e(f"s_mul_i32 s{sT0}, s{sB}, {EPB*8}")
    a.e(f"v_lshlrev_b32 v{OF}, 3, v0")
    a.e(f"v_add_u32 v{OF}, s{sT0}, v{OF}")
    a.e(f"v_add_u32 v{OF+1}, 8192, v{OF}")
    a.e(f"v_add_u32 v{OF+2}, 16384, v{OF}")
    a.e(f"v_add_u32 v{OF+3}, 24576, v{OF}")
    a.e(f"v_mov_b32 v{T_}, s{sOOB}")
    a.e(f"v_cmp_gt_u32 vcc, {EPB - 3072}, v0")
    a.e(f"v_cndmask_b32 v{OF+3}, v{T_}, v{OF+3}, vcc")
    a.e(f"v_lshlrev_b32 v{T_+1}, 2, v0")
    a.e("s_waitcnt vmcnt(0) lgkmcnt(0)")
    for k in range(4):
        a.e(f"buffer_load_dwordx2 {vr(MM+2*k,2)}, v{OF+k}, s[{S_X}:{S_X+3}], 0 offen")
    for k in range(4):
        for d in range(4):
            a.e(f"ds_read_b32 v{AC+4*k+d}, v{T_+1} offset:{K2_ACC + d*ACC_STR + 4096*k}")
        if k == 1:
            a.e("s_waitcnt lgkmcnt(0)")
    a.e("s_waitcnt lgkmcnt(0)")
    for k in range(4):
        for d in range(4):
            a.e(f"v_cvt_f32_i32 v{AC+4*k+d}, v{AC+4*k+d}")
        for dp in range(4):
            a.e(f"v_mul_f32 v{UU+4*k+dp}, s{S_WA+dp}, v{AC+4*k}")
        for d in range(1, 4):
            for dp in range(4):
                a.e(f"v_fmac_f32 v{UU+4*k+dp}, s{S_WA+4*d+dp}, v{AC+4*k+d}")
        a.e(f"v_lshlrev_b32 v{AC+4*k}, 16, v{GP+2*k}")
        a.e(f"v_and_b32 v{AC+4*k+1}, s{sHI}, v{GP+2*k}")
        a.e(f"v_lshlrev_b32 v{AC+4*k+2}, 16, v{GP+2*k+1}")
        a.e(f"v_and_b32 v{AC+4*k+3}, s{sHI}, v{GP+2*k+1}")
    for k in range(4):
        a.e(f"s_waitcnt vmcnt({3 - k + k})" if False else f"s_waitcnt vmcnt(3)")
        a.e(f"v_lshlrev_b32 v{T_+4}, 16, v{MM+2*k}")
        a.e(f"v_and_b32 v{T_+5}, s{sHI}, v{MM+2*k}")
        a.e(f"v_lshlrev_b32 v{T_+6}, 16, v{MM+2*k+1}")
        a.e(f"v_and_b32 v{T_+7}, s{sHI}, v{MM+2*k+1}")
        for d in range(4):
            a.e(f"v_fmac_f32 v{T_+4+d}, v{UU+4*k+d}, v{AC+4*k+d}")
        a.e(f"v_cvt_pk_bf16_f32 v{MM+2*k}, v{T_+4}, v{T_+5}")
        a.e(f"v_cvt_pk_bf16_f32 v{MM+2*k+1}, v{T_+6}, v{T_+7}")
        a.e(f"buffer_store_dwordx2 {vr(MM+2*k,2)}, v{OF+k}, s[{S_Y}:{S_Y+3}], 0 offen")
    a.e("K2_END:")
    a.e("s_endpgm")
    return fix_hazards(a.lines)
```

```python
import sys, json
from consts import *
from k1 import gen_k1
from k2 import gen_k2

NAME = "standalone__molecular_angular_gemnet__graph"
def build(cfg):
    hdr = open("cdna_kernels/%s.s.ref" % NAME).read().split("; Override launch")[0]
    out = [hdr.rstrip()]
    out.append(f"; @launch kernel=gemnet_part_kernel grid=({NWG},1,1) block=(1024,1,1) lds={K1_LDS}")
    out.append(f"; @launch kernel={NAME}_kernel grid=({NWG},1,1) block=(1024,1,1) lds={K2_LDS}")
    out.append('.amdgcn_target "amdgcn-amd-amdhsa--gfx950"')
    out.append(".text")
    for nm, body in (("gemnet_part_kernel", gen_k1(cfg)), (NAME + "_kernel", gen_k2(cfg))):
        out.append(f".globl {nm}")
        out.append(".p2align 8")
        out.append(f".type {nm},@function")
        out.append(f"{nm}:")
        out += body
    out.append('.section .rodata,"a"')
    for nm in ("gemnet_part_kernel", NAME + "_kernel"):
        out.append(".p2align 6")
        out.append(f".amdhsa_kernel {nm}")
        out.append("  .amdhsa_next_free_vgpr 128")
        out.append("  .amdhsa_next_free_sgpr 102")
        out.append("  .amdhsa_accum_offset 128")
        out.append("  .amdhsa_group_segment_fixed_size 0")
        out.append("  .amdhsa_kernarg_size 112")
        out.append("  .amdhsa_user_sgpr_count 2")
        out.append("  .amdhsa_user_sgpr_kernarg_segment_ptr 1")
        out.append("  .amdhsa_system_sgpr_workgroup_id_x 1")
        out.append(".end_amdhsa_kernel")
    return "\n".join(out) + "\n"

if __name__ == "__main__":
    path = sys.argv[1]
    cfg = json.loads(sys.argv[2]) if len(sys.argv) > 2 else {}
    open(path, "w").write(build(cfg))
```

```python
import re

TRANS = ("v_exp_", "v_log_", "v_rcp_", "v_rsq_", "v_sqrt_", "v_sin_", "v_cos_")

def regs_of(tok):
    out = set()
    tok = tok.strip()
    for m in re.finditer(r'(?<![\w])([vs])\[(\d+):(\d+)\]', tok):
        for i in range(int(m.group(2)), int(m.group(3)) + 1):
            out.add((m.group(1), i))
    for m in re.finditer(r'(?<![\w\[])([vs])(\d+)(?![\w:])', tok):
        out.add((m.group(1), int(m.group(2))))
    if re.search(r'\bvcc\b', tok):
        out.add(('s', 'vcc'))
    if re.search(r'\bexec\b', tok):
        out.add(('s', 'exec'))
    return out

def split_ops(line):
    line = line.split(';')[0].strip()
    parts = line.split(None, 1)
    op = parts[0]
    rest = parts[1] if len(parts) > 1 else ''
    ops = []
    depth = 0
    cur = ''
    for ch in rest:
        if ch in '[(':
            depth += 1
        if ch in '])':
            depth -= 1
        if ch == ',' and depth == 0:
            ops.append(cur.strip()); cur = ''
        else:
            cur += ch
    if cur.strip():
        ops.append(cur.strip())
    return op, ops

class Ins:
    def __init__(self, line):
        self.line = line
        op, ops = split_ops(line)
        self.op = op
        self.ops = ops
        self.valu = op.startswith('v_')
        self.vmem = op.startswith('buffer_') or op.startswith('global_')
        self.ds = op.startswith('ds_')
        self.dpp = '_dpp' in op
        self.trans = op.startswith(TRANS)
        self.dot = op.startswith('v_dot')
        self.mfma = op.startswith('v_mfma')
        self.dst = set(); self.src = set()
        if self.valu:
            ndst = 1
            if op.startswith(('v_add_co', 'v_sub_co', 'v_addc_co', 'v_subb_co', 'v_mad_u64', 'v_div_scale')):
                ndst = 2
            for o in ops[:ndst]:
                self.dst |= regs_of(o)
            for o in ops[ndst:]:
                self.src |= regs_of(o)
            if op.startswith(('v_fmac', 'v_dot2c', 'v_writelane')) or self.dpp:
                self.src |= regs_of(ops[0])
            if op.startswith('v_cmpx'):
                self.dst.add(('s', 'exec'))
        elif self.vmem:
            if '_load' in op:
                self.dst |= regs_of(ops[0])
                for o in ops[1:]: self.src |= regs_of(o)
            else:
                for o in ops: self.src |= regs_of(o)
        elif self.ds:
            has_dst = ('read' in op) or ('rtn' in op) or ('permute' in op) or ('swizzle' in op)
            if has_dst:
                self.dst |= regs_of(ops[0])
                for o in ops[1:]: self.src |= regs_of(o)
            else:
                for o in ops: self.src |= regs_of(o)
        elif op.startswith('s_'):
            if op.startswith(('s_cmp', 's_cbranch', 's_branch', 's_waitcnt', 's_nop', 's_barrier', 's_endpgm', 's_setprio', 's_sleep', 's_bitcmp')):
                for o in ops: self.src |= regs_of(o)
            else:
                if ops:
                    self.dst |= regs_of(ops[0])
                for o in ops[1:]: self.src |= regs_of(o)
        self.widestore = self.vmem and ('store' in op) and ('x3' in op or 'x4' in op)
        if self.widestore:
            self.data = regs_of(ops[0]) if op.startswith('buffer_') else regs_of(ops[1])
        self.states = 1
        if op == 's_nop':
            self.states = int(ops[0], 0) + 1

def need(p, c):
    n = 0
    psg = {r for r in p.dst if r[0] == 's'}
    pvg = {r for r in p.dst if r[0] == 'v'}
    if p.valu:
        if c.vmem and (psg & c.src): n = max(n, 5)
        if c.dpp and (pvg & c.src): n = max(n, 2)
        if c.dpp and ('s', 'exec') in psg: n = max(n, 5)
        if c.valu and (psg & c.src):
            n = max(n, 2)
            if c.op.startswith(('v_readlane', 'v_writelane')): n = max(n, 4)
        if c.op.startswith(('v_readlane', 'v_readfirstlane')) and (pvg & c.src): n = max(n, 1)
        if c.op.startswith(('v_readlane', 'v_readfirstlane', 'v_writelane')) and ('s', 'exec') in psg: n = max(n, 4)
        if p.trans and c.valu and not c.trans and (pvg & c.src): n = max(n, 1)
        if c.op.startswith('v_permlane') and (pvg & (c.src | c.dst)): n = max(n, 2)
        if c.op.startswith('v_div_fmas') and ('s', 'vcc') in psg: n = max(n, 4)
        if p.dot:
            if c.op == p.op and c.dot:
                ab = set()
                for o in c.ops[1:3]: ab |= regs_of(o)
                if pvg & ab: n = max(n, 3)
            elif pvg & (c.src | c.dst):
                n = max(n, 3)
        if 'sdwa' in p.op and 'dst_sel:DWORD' not in p.line and not p.op.startswith('v_cmp') and c.valu and (pvg & (c.src | c.dst)):
            n = max(n, 1)
    if p.valu and not p.mfma and c.mfma and (pvg & c.src): n = max(n, 2)
    if p.mfma and (pvg & (c.src | c.dst)): n = max(n, 6 if '4x4x4' in p.op else 12)
    if p.widestore and (p.data & c.dst):
        n = max(n, 2 if c.valu else 1)
    return n

def fix_hazards(lines):
    MAXD = 13
    saved = {}
    for _pass in range(4):
        out = []
        hist = []
        changed = False
        dead = False
        for ln in lines:
            t = ln.split(';')[0].strip()
            if not t or t.startswith('.'):
                out.append(ln); continue
            if t.endswith(':'):
                lab = t[:-1]
                h = [] if dead else list(hist)
                for e in saved.get(lab, []):
                    h.append(e)
                hist = h
                dead = False
                out.append(ln); continue
            ins = Ins(t)
            req = 0
            for (p, age) in hist:
                k = need(p, ins) - age
                if k > req: req = k
            if req > 0:
                out.append(f"    s_nop {req-1}")
                hist = [(p, a + req) for (p, a) in hist if a + req < MAXD]
            out.append(ln)
            hist = [(p, a + ins.states) for (p, a) in hist if a + ins.states < MAXD]
            hist.append((ins, 0))
            if ins.op.startswith(('s_cbranch', 's_branch')):
                lab = ins.ops[0]
                cur = saved.setdefault(lab, [])
                key = {(p.line, a) for (p, a) in cur}
                for (p, a) in hist:
                    if (p.line, a) not in key:
                        cur.append((p, a)); changed = True
                if ins.op == 's_branch':
                    dead = True
            if ins.op == 's_endpgm':
                dead = True
        if not changed:
            break
    return out

class Asm:
    def __init__(self):
        self.lines = []
        self.vm = []
        self.lg = []
    def e(self, s):
        for l in s.split('\n'):
            l = l.strip()
            if l:
                self.lines.append(("" if l.endswith(':') else "    ") + l)
    def c(self, s):
        self.lines.append("    ; " + s)
    def vmem(self, s, tag=None):
        self.e(s); self.vm.append(tag)
    def lds(self, s, tag=None):
        self.e(s); self.lg.append(tag)
    def _n(self, lst, tag):
        idx = max(i for i, t in enumerate(lst) if t == tag)
        return len(lst) - 1 - idx, idx
    def wvm(self, tag):
        if tag not in self.vm: return
        n, idx = self._n(self.vm, tag)
        assert n <= 63
        self.e(f"s_waitcnt vmcnt({n})")
        self.vm = self.vm[idx + 1:]
    def wlg(self, tag):
        if tag not in self.lg: return
        n, idx = self._n(self.lg, tag)
        n = min(n, 14)
        self.e(f"s_waitcnt lgkmcnt({n})")
        self.lg = self.lg[len(self.lg) - n:] if n else []
    def wlg0(self):
        self.e("s_waitcnt lgkmcnt(0)"); self.lg = []
    def wvm0(self):
        self.e("s_waitcnt vmcnt(0)"); self.vm = []
    def barrier(self):
        self.wlg0(); self.e("s_barrier")

def vr(a, n=1):
    return f"v{a}" if n == 1 else f"v[{a}:{a+n-1}]"
def sr(a, n=1):
    return f"s{a}" if n == 1 else f"s[{a}:{a+n-1}]"
```

```python
E = 800000
T = 12800000
NWG = 256
EPB = 3125
NT = 512
TILE_B = 150144
WS_BYTES = 268435456
REC_OFF = 0x4A00000
MD_OFF = 0x4E00000
MX_OFF = 0x5500000
MD_WG_B = 25088
MB = 1374390
MJ = 42949
K1_TILE = 8192
K1_WTOT = K1_TILE + TILE_B
K1_MAXC = K1_WTOT + 64
K1_LDS = K1_MAXC + 64
K2_CNT = 0
K2_BASE = 1024
K2_NB = 2048
K2_ACC = 2112
ACC_STR = 12512
K2_A = K2_ACC + 4 * ACC_STR
K2_SA = 102400
K2_SW = K2_SA + 16384
K2_SCR = K2_SW + 32768 + 256
K2_LDS = K2_SCR + 4096 + 64
CENTERS = [0x0, 0x3e120000, 0x3e920000, 0x3edb0000, 0x3f120000, 0x3f370000, 0x3f5b0000, 0x3f800000]
K1B_MISC = 8192
K1B_WTOT = K1B_MISC
K1B_FLAG = K1B_MISC + 32
K1B_MAXC = K1B_MISC + 64
K1B_STG = K1B_MISC + 128
K1B_TILE = K1B_STG + 260 * 16
K1B_LDS = K1B_TILE + TILE_B
REC_STR = 4224
```

```python
from asmlib import *
from consts import *

def dpp_scan(a, v, op="v_add_u32", full=True):
    for sh in (1, 2, 4, 8):
        a.e(f"{op}_dpp v{v}, v{v}, v{v} row_shr:{sh} row_mask:0xf bank_mask:0xf bound_ctrl:0")
    a.e(f"{op}_dpp v{v}, v{v}, v{v} row_bcast:15 row_mask:0xa bank_mask:0xf")
    if full:
        a.e(f"{op}_dpp v{v}, v{v}, v{v} row_bcast:31 row_mask:0xc bank_mask:0xf")

def rt_end(a, k, S):
    a.e("s_waitcnt vmcnt(0)")
    a.e("s_barrier")
    a.e("s_memrealtime s[98:99]")
    a.e(f"s_load_dwordx2 s[{S}:{S+1}], s[0:1], 96")
    a.e(f"s_mov_b32 s{S+2}, 4096")
    a.e(f"s_mov_b32 s{S+3}, 0x00020000")
    a.e("s_lshl_b32 s100, s2, 3")
    a.e("s_waitcnt lgkmcnt(0)")
    a.e("v_mov_b32 v2, s96")
    a.e("v_mov_b32 v3, s98")
    a.e("v_mov_b32 v1, s100")
    a.e("v_cmp_eq_u32 vcc, 0, v0")
    a.e("s_and_b64 exec, exec, vcc")
    a.e(f"buffer_store_dwordx2 v[2:3], v1, s[{S}:{S+3}], 0 offen offset:{2048*k}")

def gen_k1(cfg):
    a = Asm()
    LDNT = " nt" if cfg.get('k1_ld_nt', True) else ""
    STNT = " nt" if cfg.get('k1_st_nt', False) else ""
    EARLY = cfg.get('k1_early', 2)
    S_IN, S_OUT, S_ANG, S_WS, S_M = 4, 8, 12, 16, 20
    S_WD = 28
    S_WP = 36
    sWAVE, sMB, sMJ, sNEG, sT0, sT1, sT2, sBASE, sOOB = 44, 45, 46, 47, 48, 49, 50, 51, 52
    sTOFF4, sTOFF2, sPAY, sREC, sR6 = 54, 55, 56, 57, 58
    sPAYc, sRECc, sR6c = 60, 61, 62
    sK8192 = 63
    sMASK = 64
    vOFF16, vOFF8, vR64, vR62, vSIX, vONE, vRECO = 1, 2, 3, 4, 5, 6, 7
    def RIN(r): return 8 + 10 * r
    def ROUT(r): return 12 + 10 * r
    def RANG(r): return 16 + 10 * r
    R6IN, R6OUT, R6ANG = 68, 69, 70
    TMP = 72
    vOLD0, vOLD1, vLB0, vLB1, vLB2, vMAX, vX = 112, 113, 114, 115, 116, 117, 118

    TRACE = cfg.get('trace1', False)
    vTR, sPT, sPA = 124, 88, 90
    def stamp(i):
        if not TRACE: return
        if i < 0:
            a.e(f"s_mov_b32 s{sPA}, 0")
            a.e(f"v_mov_b32 v{vTR}, 0")
            a.e(f"s_memrealtime s[92:93]")
            i = 15
        if i == 8:
            a.e(f"s_memrealtime s[94:95]")
            a.wlg0()
            a.e(f"s_sub_u32 s94, s94, s92")
            a.e(f"v_writelane_b32 v{vTR}, s94, 63")
            a.e(f"v_writelane_b32 v{vTR}, s92, 62")
        a.e(f"s_memtime s[{sPT}:{sPT+1}]")
        a.wlg0()
        a.e(f"s_andn2_b32 s{sPT}, s{sPT}, 15")
        a.e(f"s_or_b32 s{sPT}, s{sPT}, {i}")
        a.e(f"s_mov_b32 m0, s{sPA}")
        a.e(f"s_add_u32 s{sPA}, s{sPA}, 1")
        a.e(f"v_writelane_b32 v{vTR}, s{sPT}, m0")
    a.e(f"s_cmp_ge_u32 s2, {NWG}")
    a.e("s_cbranch_scc1 K1_END")
    stamp(-1)
    if cfg.get('rt'): a.e("s_memrealtime s[96:97]")
    a.e(f"s_load_dwordx2 s[{S_IN}:{S_IN+1}], s[0:1], 8")
    a.e(f"s_load_dwordx2 s[{S_OUT}:{S_OUT+1}], s[0:1], 16")
    a.e(f"s_load_dwordx2 s[{S_ANG}:{S_ANG+1}], s[0:1], 32")
    a.e(f"s_load_dwordx2 s[{S_WS}:{S_WS+1}], s[0:1], 104")
    a.e(f"s_load_dwordx2 s[{S_M}:{S_M+1}], s[0:1], 0")
    a.e(f"s_load_dwordx2 s[24:25], s[0:1], 72")
    for s, n in ((S_IN, T * 4), (S_OUT, T * 4), (S_ANG, T * 2), (S_WS, WS_BYTES), (S_M, E * 8)):
        a.e(f"s_mov_b32 s{s+2}, {n}")
        a.e(f"s_mov_b32 s{s+3}, 0x00020000")
    a.e(f"v_lshlrev_b32 v{vOFF16}, 4, v0")
    a.e(f"v_lshlrev_b32 v{vOFF8}, 3, v0")
    a.e(f"v_lshrrev_b32 v{vX}, 6, v0")
    a.e(f"v_readfirstlane_b32 s{sWAVE}, v{vX}")
    a.e(f"s_mov_b32 s{sMB}, {MB}")
    a.e(f"s_mov_b32 s{sMJ}, {MJ}")
    a.e(f"s_mov_b32 s{sNEG}, {-EPB}")
    a.e(f"s_mov_b32 s{sOOB}, 0x80000000")
    a.e(f"s_mov_b32 s{sK8192}, {K1_TILE}")
    a.e(f"v_mov_b32 v{vSIX}, 6")
    a.e(f"v_mov_b32 v{vONE}, 1")
    a.e(f"v_and_b32 v{vRECO}, 127, v0")
    a.e(f"v_lshlrev_b32 v{vRECO}, 6, v{vRECO}")
    a.e(f"v_lshrrev_b32 v{vX}, 7, v0")
    a.e(f"v_lshl_add_u32 v{vRECO}, v{vX}, 2, v{vRECO}")
    a.e(f"v_add_u32 v{vLB0}, {K1_TILE}, v{vOFF16}")
    a.e(f"v_add_u32 v{vLB1}, {K1_TILE + 65536}, v{vOFF16}")
    a.e(f"v_add_u32 v{vLB2}, {K1_TILE + 131072}, v{vOFF16}")
    a.e(f"v_mov_b32 v{vOLD0}, 0")
    a.e(f"v_mov_b32 v{vOLD1}, 0")
    a.e(f"v_mov_b32 v{vMAX}, 0")

    def tile_setup(i):
        a.e(f"s_add_u32 s{sT0}, s2, {NWG * i}")
        a.e(f"s_mul_i32 s{sPAY}, s{sT0}, {TILE_B}")
        a.e(f"s_lshl_b32 s{sREC}, s{sT0}, 13")
        a.e(f"s_add_u32 s{sREC}, s{sREC}, {REC_OFF}")
        a.e(f"s_mul_i32 s{sT1}, s{sT0}, 3125")
        a.e(f"s_add_u32 s{sT2}, s{sT1}, 3125")
        a.e(f"s_lshr_b32 s{sT1}, s{sT1}, 3")
        a.e(f"s_lshr_b32 s{sT2}, s{sT2}, 3")
        a.e(f"s_sub_u32 s{sT2}, s{sT2}, s{sT1}")
        a.e(f"s_sub_u32 s{sT2}, s{sT2}, 384")
        a.e(f"s_lshl_b32 s{sTOFF4}, s{sT1}, 8")
        a.e(f"s_lshl_b32 s{sTOFF2}, s{sT1}, 7")
        a.e(f"s_cmp_lt_u32 s{sWAVE}, s{sT2}")
        a.e(f"s_cselect_b32 s{sR6}, 0, s{sOOB}")
        a.e(f"v_lshlrev_b32 v{vR64}, 2, v0")
        a.e(f"v_lshlrev_b32 v{vR62}, 1, v0")
        a.e(f"v_or_b32 v{vR64}, s{sR6}, v{vR64}")
        a.e(f"v_or_b32 v{vR62}, s{sR6}, v{vR62}")

    def loads(r):
        a.e(f"s_add_u32 s{sT0}, s{sTOFF4}, {r * 16384}")
        a.e(f"s_add_u32 s{sT1}, s{sTOFF2}, {r * 8192}")
        if r < 6:
            a.vmem(f"buffer_load_dwordx4 {vr(RIN(r),4)}, v{vOFF16}, s[{S_IN}:{S_IN+3}], s{sT0} offen{LDNT}", ('L', r))
            a.vmem(f"buffer_load_dwordx4 {vr(ROUT(r),4)}, v{vOFF16}, s[{S_OUT}:{S_OUT+3}], s{sT0} offen{LDNT}", ('L', r))
            a.vmem(f"buffer_load_dwordx2 {vr(RANG(r),2)}, v{vOFF8}, s[{S_ANG}:{S_ANG+3}], s{sT1} offen{LDNT}", ('A', r))
        else:
            a.vmem(f"buffer_load_dword v{R6IN}, v{vR64}, s[{S_IN}:{S_IN+3}], s{sT0} offen{LDNT}", ('L', r))
            a.vmem(f"buffer_load_dword v{R6OUT}, v{vR64}, s[{S_OUT}:{S_OUT+3}], s{sT0} offen{LDNT}", ('L', r))
            a.vmem(f"buffer_load_ushort v{R6ANG}, v{vR62}, s[{S_ANG}:{S_ANG+3}], s{sT1} offen{LDNT}", ('A', r))

    a.e(f"v_mov_b32 v{TMP+10}, 0")
    a.e(f"v_mov_b32 v{TMP+11}, 0")
    a.e(f"ds_write_b64 v{vOFF8}, {vr(TMP+10,2)}")
    a.e(f"v_mov_b32 v{vX}, {K1_MAXC}")
    a.e(f"ds_write_b32 v{vX}, v{TMP+10}")
    a.e("s_waitcnt lgkmcnt(0)")
    a.e("s_barrier")
    a.e(f"s_load_dwordx8 s[{S_WD}:{S_WD+7}], s[24:25], 0")
    vM0, vM1, vMO0, vMO1 = TMP, TMP + 4, TMP + 8, TMP + 9
    a.e(f"s_mul_i32 s{sT0}, s2, {MD_WG_B}")
    a.e(f"v_add_u32 v{vMO0}, s{sT0}, v{vOFF16}")
    a.e(f"v_add_u32 v{vMO1}, 16384, v{vMO0}")
    a.e(f"v_mov_b32 v{vX}, s{sOOB}")
    a.e(f"v_cmp_gt_u32 vcc, {(MD_WG_B - 16384)//16}, v0")
    a.e(f"v_cndmask_b32 v{vMO1}, v{vX}, v{vMO1}, vcc")
    a.vmem(f"buffer_load_dwordx4 {vr(vM0,4)}, v{vMO0}, s[{S_M}:{S_M+3}], 0 offen", 'M')
    a.vmem(f"buffer_load_dwordx4 {vr(vM1,4)}, v{vMO1}, s[{S_M}:{S_M+3}], 0 offen", 'M')
    tile_setup(0)
    for r in range(7):
        loads(r)
    stamp(0)
    a.e(f"v_mov_b32 v{vX}, {K1_MAXC}")
    a.e("s_waitcnt lgkmcnt(0)")
    for d in range(4):
        for h in range(2):
            r0 = S_WD + 4 * h + (d >> 1); r1 = r0 + 2
            a.e(f"s_pack_{'hh' if d & 1 else 'll'}_b32_b16 s{S_WP + 2*d + h}, s{r0}, s{r1}")
    a.wvm('M')
    D = TMP + 12
    for ed in range(4):
        m01 = (vM0 if ed < 2 else vM1) + 2 * (ed & 1)
        for d in range(4):
            a.e(f"v_dot2_f32_bf16 v{D+4*ed+d}, v{m01}, s{S_WP+2*d}, 0")
        for d in range(4):
            a.e(f"v_dot2_f32_bf16 v{D+4*ed+d}, v{m01+1}, s{S_WP+2*d+1}, v{D+4*ed+d}")
    for ed in range(4):
        m01 = (vM0 if ed < 2 else vM1) + 2 * (ed & 1)
        a.e(f"v_max3_f32 v{vMAX}, abs(v{D+4*ed}), abs(v{D+4*ed+1}), v{vMAX}")
        a.e(f"v_max3_f32 v{vMAX}, abs(v{D+4*ed+2}), abs(v{D+4*ed+3}), v{vMAX}")
        a.e(f"v_cvt_pk_bf16_f32 v{m01}, v{D+4*ed}, v{D+4*ed+1}")
        a.e(f"v_cvt_pk_bf16_f32 v{m01+1}, v{D+4*ed+2}, v{D+4*ed+3}")
    a.e(f"s_mov_b32 s{sT0}, {MD_OFF}")
    a.vmem(f"buffer_store_dwordx4 {vr(vM0,4)}, v{vMO0}, s[{S_WS}:{S_WS+3}], s{sT0} offen", 'S')
    a.vmem(f"buffer_store_dwordx4 {vr(vM1,4)}, v{vMO1}, s[{S_WS}:{S_WS+3}], s{sT0} offen", 'S')
    dpp_scan(a, vMAX, "v_max_u32")
    a.e("s_lshl_b64 exec, 1, 63")
    a.e(f"ds_max_u32 v{vX}, v{vMAX}")
    a.e("s_mov_b64 exec, -1")

    def hist_item(vi, vo, t0, t1):
        a.e(f"v_mul_hi_u32 v{t0}, v{vo}, s{sMB}")
        a.e(f"v_mul_hi_u32 v{t1}, v{vi}, s{sMJ}")
        a.e(f"v_mad_i32_i24 v{vo}, v{t0}, s{sNEG}, v{vo}")
        a.e(f"v_lshlrev_b32 v{t0}, 2, v{t0}")
        a.e(f"v_lshl_or_b32 v{vi}, v{vo}, 20, v{vi}")
        a.e(f"v_lshl_add_u32 v{vo}, v{t1}, 10, v{t0}")
        a.e(f"ds_add_u32 v{vo}, v{vONE}")

    def hist(r):
        a.wvm(('L', r))
        if r < 6:
            for k in range(4):
                hist_item(RIN(r) + k, ROUT(r) + k, vX, vX + 1)
        else:
            a.e(f"s_cmp_eq_u32 s{sR6c}, 0")
            a.e(f"s_cselect_b64 exec, -1, 0")
            hist_item(R6IN, R6OUT, vX, vX + 1)
            a.e("s_mov_b64 exec, -1")

    def scat_addr(u, wa, aa):
        a.e(f"v_and_b32 v{aa}, 2, v{u}")
        a.e(f"v_add_u32 v{wa}, v{u}, v{aa}")
        a.e(f"v_mad_i32_i24 v{aa}, v{aa}, -2, v{u}")

    for i in range(2):
        a.c(f"---- tile {i}")
        a.e(f"s_mov_b32 s{sPAYc}, s{sPAY}")
        a.e(f"s_mov_b32 s{sRECc}, s{sREC}")
        a.e(f"s_mov_b32 s{sR6c}, s{sR6}")
        for r in range(7):
            hist(r)
            if r in (0, 2, 4): stamp(1)
        stamp(2)
        a.barrier()
        stamp(3)
        C0, C1, SS, W0 = TMP, TMP + 1, TMP + 2, TMP + 4
        a.e(f"ds_read_b64 {vr(C0,2)}, v{vOFF8}")
        if i == 0:
            a.e(f"v_mov_b32 v{W0}, {K1_MAXC}")
            a.e(f"ds_read_b32 v{W0+1}, v{W0}")
            a.e(f"s_lshl_b32 s{sT0}, s2, 2")
            a.e(f"v_mov_b32 v{W0+2}, s{sT0}")
            a.e(f"v_mov_b32 v{W0+3}, s{sOOB}")
            a.e(f"v_cmp_eq_u32 vcc, 0, v0")
            a.e(f"v_cndmask_b32 v{W0+2}, v{W0+3}, v{W0+2}, vcc")
            a.e(f"s_mov_b32 s{sT0}, {MX_OFF}")
        a.e("s_waitcnt lgkmcnt(0)")
        if i == 0:
            a.vmem(f"buffer_store_dword v{W0+1}, v{W0+2}, s[{S_WS}:{S_WS+3}], s{sT0} offen", 'S')
        a.e(f"v_sub_u32 v{C0}, v{C0}, v{vOLD0}")
        a.e(f"v_sub_u32 v{C1}, v{C1}, v{vOLD1}")
        a.e(f"v_add_u32 v{SS}, v{C0}, v{C1}")
        a.e(f"v_mov_b32 v{SS+1}, v{SS}")
        dpp_scan(a, SS)
        a.e(f"s_lshl_b32 s{sT0}, s{sWAVE}, 2")
        a.e(f"s_add_u32 s{sT0}, s{sT0}, {K1_WTOT}")
        a.e(f"v_mov_b32 v{W0}, s{sT0}")
        a.e("s_lshl_b64 exec, 1, 63")
        a.e(f"ds_write_b32 v{W0}, v{SS}")
        a.e("s_mov_b64 exec, -1")
        a.e(f"v_sub_u32 v{SS}, v{SS}, v{SS+1}")
        a.e(f"v_and_b32 v{W0+4}, 15, v0")
        a.e(f"v_lshlrev_b32 v{W0}, 2, v{W0+4}")
        a.e(f"v_add_u32 v{W0}, {K1_WTOT}, v{W0}")
        a.barrier()
        a.e(f"ds_read_b32 v{W0+5}, v{W0}")
        a.e(f"v_cmp_gt_u32 vcc, s{sWAVE}, v{W0+4}")
        a.e("s_waitcnt lgkmcnt(0)")
        a.e(f"v_cndmask_b32 v{W0+5}, 0, v{W0+5}, vcc")
        for sh in (1, 2, 4, 8):
            a.e(f"v_add_u32_dpp v{W0+5}, v{W0+5}, v{W0+5} row_shr:{sh} row_mask:0xf bank_mask:0xf bound_ctrl:0")
        a.e(f"v_readlane_b32 s{sBASE}, v{W0+5}, 15")
        a.e(f"v_add_u32 v{SS}, s{sBASE}, v{SS}")
        a.e(f"v_add_u32 v{C0}, v{SS}, v{C0}")
        a.e(f"v_add_u32 v{C1}, v{C0}, v{C1}")
        a.e(f"v_mad_u32_u24 v{W0}, v{SS}, 6, s{sK8192}")
        a.e(f"v_mad_u32_u24 v{W0+1}, v{C0}, 6, s{sK8192}")
        a.e(f"ds_write_b64 v{vOFF8}, {vr(W0,2)}")
        a.e(f"v_mov_b32 v{vOLD0}, v{W0+1}")
        a.e(f"v_mad_u32_u24 v{vOLD1}, v{C1}, 6, s{sK8192}")
        a.e(f"v_lshl_or_b32 v{W0+2}, v{C0}, 16, v{SS}")
        a.e(f"v_lshl_or_b32 v{W0+3}, v{C1}, 16, v{C0}")
        a.vmem(f"buffer_store_dword v{W0+2}, v{vRECO}, s[{S_WS}:{S_WS+3}], s{sRECc} offen", 'S')
        a.vmem(f"buffer_store_dword v{W0+3}, v{vRECO}, s[{S_WS}:{S_WS+3}], s{sRECc} offen offset:32", 'S')
        a.barrier()
        stamp(4)
        if i == 0:
            tile_setup(1)
        U = [TMP + 12, TMP + 16]
        WA, AA = TMP + 20, TMP + 24
        def rtn(r):
            for k in range(4):
                a.lds(f"ds_add_rtn_u32 v{U[r&1]+k}, v{ROUT(r)+k}, v{vSIX}", ('R', r))
        rtn(0)
        for r in range(6):
            if r + 1 < 6: rtn(r + 1)
            a.wvm(('A', r))
            a.wlg(('R', r))
            for k in range(4):
                scat_addr(U[r & 1] + k, WA + k, AA + k)
            for k in range(4):
                a.lds(f"ds_write_b32 v{WA+k}, v{RIN(r)+k}")
                a.lds(f"ds_write_b16{'_d16_hi' if k & 1 else ''} v{AA+k}, v{RANG(r)+(k>>1)} offset:4")
            if i == 0 and r < EARLY:
                loads(r)
        a.wvm(('A', 6))
        a.e(f"s_cmp_eq_u32 s{sR6c}, 0")
        a.e(f"s_cselect_b64 exec, -1, 0")
        a.e(f"ds_add_rtn_u32 v{U[0]}, v{R6OUT}, v{vSIX}")
        a.wlg0()
        scat_addr(U[0], WA, AA)
        a.e(f"ds_write_b32 v{WA}, v{R6IN}")
        a.e(f"ds_write_b16 v{AA}, v{R6ANG} offset:4")
        a.e("s_mov_b64 exec, -1")
        stamp(5)
        a.barrier()
        stamp(6)
        LB = [vLB0, vLB1, vLB2]
        for q in range(9):
            a.lds(f"ds_read_b128 {vr(TMP+4*q,4)}, v{LB[q>>2]} offset:{(q&3)*16384}", ('W', q))
        a.e(f"v_cmp_gt_u32 vcc, {(TILE_B - 9*16384)//16}, v0")
        a.e(f"v_mov_b32 v{vX}, s{sOOB}")
        a.e(f"v_cndmask_b32 v{vX}, v{vX}, v{vOFF16}, vcc")
        a.e(f"v_cndmask_b32 v{vX+1}, v{vLB0}, v{vLB2}, vcc")
        a.lds(f"ds_read_b128 {vr(TMP+36,4)}, v{vX+1} offset:16384", ('W', 9))
        nxt = EARLY
        for q in range(10):
            a.wlg(('W', q))
            a.e(f"s_add_u32 s{sT2}, s{sPAYc}, {q*16384}")
            a.vmem(f"buffer_store_dwordx4 {vr(TMP+4*q,4)}, v{vOFF16 if q < 9 else vX}, s[{S_WS}:{S_WS+3}], s{sT2} offen{STNT}", 'S')
            if i == 0 and nxt < 7 and (q & 1) == 1:
                loads(nxt); nxt += 1
        if i == 0:
            while nxt < 7:
                loads(nxt); nxt += 1
        stamp(7)
    if TRACE:
        a.wvm0()
        stamp(8)
        a.e(f"s_cmp_lg_u32 s2, {cfg.get('trace_wg', 77)}")
        a.e("s_cbranch_scc1 K1_END")
        a.e(f"s_load_dwordx2 s[{S_M}:{S_M+1}], s[0:1], 96")
        a.e(f"s_mov_b32 s{S_M+2}, 4096")
        a.e("s_waitcnt lgkmcnt(0)")
        a.e(f"v_lshlrev_b32 v1, 2, v0")
        a.e(f"buffer_store_dword v{vTR}, v1, s[{S_M}:{S_M+3}], 0 offen")
    if cfg.get('rt'): rt_end(a, 0, S_M)
    a.e("K1_END:")
    a.e("s_endpgm")
    return fix_hazards(a.lines)
```

```python
from asmlib import *
from consts import *
from k1 import dpp_scan, rt_end

def gen_k1(cfg):
    a = Asm()
    LDNT = " nt" if cfg.get('k1_ld_nt', True) else ""
    STNT = " nt" if cfg.get('k1_st_nt', False) else ""
    DEP = cfg.get('k1_dep', 4)
    NR = 12
    S_IN, S_OUT, S_ANG, S_WS, S_M = 4, 8, 12, 16, 20
    S_WD = 28
    S_WP = 36
    sWAVE, sMB, sMJ, sNEG, sT0, sT1, sT2, sBASE, sOOB = 44, 45, 46, 47, 48, 49, 50, 51, 52
    sTOFF4, sTOFF2, sPAY, sREC, sR6, sHI, sK = 54, 55, 56, 57, 58, 59, 60
    vOFF16, vOFF8, vINC, vZERO, vX, vY, vZ = 1, 2, 3, 4, 5, 6, 7
    def RIN(r): return 8 + 8 * r if r < NR else 104
    def ROUT(r): return 12 + 8 * r if r < NR else 105
    RING = 106
    def RANG(r): return RING + 2 * (r % DEP)
    TMP = 116
    assert RING + 2 * DEP <= TMP
    TRACE = cfg.get('trace1', False)
    vTR, sPT, sPA = 127, 88, 90
    def stamp(i):
        if not TRACE: return
        if i < 0:
            a.e(f"s_mov_b32 s{sPA}, 0")
            a.e(f"v_mov_b32 v{vTR}, 0")
            i = 15
        a.e(f"s_memtime s[{sPT}:{sPT+1}]")
        a.wlg0()
        a.e(f"s_andn2_b32 s{sPT}, s{sPT}, 15")
        a.e(f"s_or_b32 s{sPT}, s{sPT}, {i}")
        a.e(f"s_mov_b32 m0, s{sPA}")
        a.e(f"s_add_u32 s{sPA}, s{sPA}, 1")
        a.e(f"v_writelane_b32 v{vTR}, s{sPT}, m0")

    a.e(f"s_cmp_ge_u32 s2, {NWG}")
    a.e("s_cbranch_scc1 K1_END")
    stamp(-1)
    if cfg.get('rt'): a.e("s_memrealtime s[96:97]")
    a.e(f"s_load_dwordx2 s[{S_IN}:{S_IN+1}], s[0:1], 8")
    a.e(f"s_load_dwordx2 s[{S_OUT}:{S_OUT+1}], s[0:1], 16")
    a.e(f"s_load_dwordx2 s[{S_ANG}:{S_ANG+1}], s[0:1], 32")
    a.e(f"s_load_dwordx2 s[{S_WS}:{S_WS+1}], s[0:1], 104")
    a.e(f"s_load_dwordx2 s[{S_M}:{S_M+1}], s[0:1], 0")
    a.e(f"s_load_dwordx2 s[24:25], s[0:1], 72")
    for s, n in ((S_IN, T * 4), (S_OUT, T * 4), (S_ANG, T * 2), (S_WS, WS_BYTES), (S_M, E * 8)):
        a.e(f"s_mov_b32 s{s+2}, {n}")
        a.e(f"s_mov_b32 s{s+3}, 0x00020000")
    a.e(f"v_lshrrev_b32 v{vX}, 6, v0")
    a.e(f"v_readfirstlane_b32 s{sWAVE}, v{vX}")
    a.e(f"v_mov_b32 v{vZERO}, 0")
    a.e(f"v_mov_b32 v{vX}, 0")
    a.e(f"v_lshlrev_b32 v{vY}, 3, v0")
    a.e(f"ds_write_b64 v{vY}, {vr(vZERO,2)}")
    a.e(f"v_and_b32 v{vY}, 0x78, v{vY}")
    a.e(f"ds_write_b64 v{vY}, {vr(vZERO,2)} offset:{K1B_MISC}")
    a.e(f"v_and_b32 v0, 511, v0")
    a.e(f"v_lshlrev_b32 v{vOFF16}, 4, v0")
    a.e(f"v_lshlrev_b32 v{vOFF8}, 3, v0")
    a.e(f"s_mov_b32 s{sMB}, {MB}")
    a.e(f"s_mov_b32 s{sMJ}, {MJ}")
    a.e(f"s_mov_b32 s{sNEG}, {-EPB}")
    a.e(f"s_mov_b32 s{sOOB}, 0x80000000")
    a.e(f"s_mov_b32 s{sHI}, 0xffff0000")
    a.e(f"s_mov_b32 s{sK}, {K1B_TILE}")
    a.e(f"s_lshr_b32 s{sBASE}, s{sWAVE}, 3")
    a.e(f"s_and_b32 s{sWAVE}, s{sWAVE}, 7")
    a.e(f"s_lshl_b32 s{sT0}, s{sBASE}, 8")
    a.e(f"s_add_u32 s{sT0}, s{sT0}, s2")
    a.e(f"s_mul_i32 s{sPAY}, s{sT0}, {TILE_B}")
    a.e(f"s_mul_i32 s{sREC}, s{sT0}, {REC_STR}")
    a.e(f"s_add_u32 s{sREC}, s{sREC}, {REC_OFF}")
    a.e(f"s_mul_i32 s{sT1}, s{sT0}, 3125")
    a.e(f"s_add_u32 s{sT2}, s{sT1}, 3125")
    a.e(f"s_lshr_b32 s{sT1}, s{sT1}, 3")
    a.e(f"s_lshr_b32 s{sT2}, s{sT2}, 3")
    a.e(f"s_sub_u32 s{sT2}, s{sT2}, s{sT1}")
    a.e(f"s_sub_u32 s{sT2}, s{sT2}, 384")
    a.e(f"s_lshl_b32 s{sTOFF4}, s{sT1}, 8")
    a.e(f"s_lshl_b32 s{sTOFF2}, s{sT1}, 7")
    a.e(f"s_cmp_lt_u32 s{sWAVE}, s{sT2}")
    a.e(f"s_cselect_b32 s{sR6}, 0, s{sOOB}")
    a.e("s_waitcnt lgkmcnt(0)")
    a.e("s_barrier")
    a.e(f"s_cmp_lg_u32 s{sBASE}, 0")
    a.e("s_cbranch_scc1 K1_Q")

    def loads(r):
        a.e(f"s_add_u32 s{sT0}, s{sTOFF4}, {r * 8192}")
        a.e(f"s_add_u32 s{sT1}, s{sTOFF2}, {r * 4096}")
        if r < NR:
            a.vmem(f"buffer_load_dwordx4 {vr(RIN(r),4)}, v{vOFF16}, s[{S_IN}:{S_IN+3}], s{sT0} offen{LDNT}", ('L', r))
            a.vmem(f"buffer_load_dwordx4 {vr(ROUT(r),4)}, v{vOFF16}, s[{S_OUT}:{S_OUT+3}], s{sT0} offen{LDNT}", ('L', r))
            a.vmem(f"buffer_load_dwordx2 {vr(RANG(r),2)}, v{vOFF8}, s[{S_ANG}:{S_ANG+3}], s{sT1} offen{LDNT}", ('A', r))
        else:
            a.e(f"v_lshl_or_b32 v{TMP+8}, v0, 2, s{sR6}")
            a.e(f"v_lshl_or_b32 v{TMP+9}, v0, 1, s{sR6}")
            a.vmem(f"buffer_load_dword v{RIN(r)}, v{TMP+8}, s[{S_IN}:{S_IN+3}], s{sT0} offen{LDNT}", ('L', r))
            a.vmem(f"buffer_load_dword v{ROUT(r)}, v{TMP+8}, s[{S_OUT}:{S_OUT+3}], s{sT0} offen{LDNT}", ('L', r))
            a.vmem(f"buffer_load_ushort v{RANG(r)}, v{TMP+9}, s[{S_ANG}:{S_ANG+3}], s{sT1} offen{LDNT}", ('A', r))

    def hist(r):
        a.wvm(('L', r))
        n = 4 if r < NR else 1
        if r == NR:
            a.e(f"s_cmp_eq_u32 s{sR6}, 0")
            a.e(f"s_cselect_b64 exec, -1, 0")
        for k in range(n):
            vi, vo, t0, t1 = RIN(r) + k, ROUT(r) + k, TMP + k, TMP + 4 + k
            a.e(f"v_mul_hi_u32 v{t0}, v{vo}, s{sMB}")
            a.e(f"v_mul_hi_u32 v{t1}, v{vi}, s{sMJ}")
            a.e(f"v_mad_i32_i24 v{vo}, v{t0}, s{sNEG}, v{vo}")
            a.e(f"v_lshlrev_b32 v{t0}, 2, v{t0}")
            a.e(f"v_lshl_or_b32 v{vi}, v{vo}, 20, v{vi}")
            a.e(f"v_lshl_add_u32 v{t0}, v{t1}, 10, v{t0}")
            a.e(f"ds_add_u32 v{t0}, v{vINC}")
        a.wvm(('A', r))
        for k in range(n):
            if k & 1:
                a.e(f"v_and_or_b32 v{ROUT(r)+k}, v{RANG(r)+(k>>1)}, s{sHI}, v{TMP+k}")
            else:
                a.e(f"v_lshl_or_b32 v{ROUT(r)+k}, v{RANG(r)+(k>>1)}, 16, v{TMP+k}")
        if r == NR:
            a.e("s_mov_b64 exec, -1")

    def group(g):
        nsync = [0]
        def sync():
            if g == 1:
                a.barrier(); return
            off = K1B_FLAG + 4 * nsync[0]
            nsync[0] += 1
            a.e("s_mov_b64 exec, 1")
            a.e(f"ds_add_u32 v{vZERO}, v{vINC} offset:{off}")
            a.e("s_mov_b64 exec, -1")
            a.e(f"K1_PL{nsync[0]}:")
            a.e(f"ds_read_b32 v{vZ}, v{vZERO} offset:{off}")
            a.wlg0()
            a.e(f"v_readfirstlane_b32 s{sT0}, v{vZ}")
            a.e(f"s_cmp_lt_u32 s{sT0}, 8")
            a.e(f"s_cbranch_scc1 K1_PL{nsync[0]}")
        a.e(f"v_mov_b32 v{vINC}, {1 if g == 0 else 0x10000}")
        for r in range(DEP):
            loads(r)
        for r in range(NR + 1):
            hist(r)
            if r + DEP <= NR: loads(r + DEP)
            if r in (3, 7): stamp(1)
        stamp(2)
        sync()
        stamp(3)
        C, SS, W0 = 108, 112, 116
        a.e(f"ds_read_b128 {vr(C,4)}, v{vOFF16}")
        if g == 1:
            a.e(f"ds_read_b32 v{W0+1}, v{vZERO} offset:{K1B_MAXC}")
            a.e(f"s_lshl_b32 s{sT0}, s2, 2")
            a.e(f"v_mov_b32 v{W0+2}, s{sT0}")
            a.e(f"v_mov_b32 v{W0+3}, s{sOOB}")
            a.e(f"v_cmp_eq_u32 vcc, 0, v0")
            a.e(f"v_cndmask_b32 v{W0+2}, v{W0+3}, v{W0+2}, vcc")
            a.e(f"s_mov_b32 s{sT0}, {MX_OFF}")
        a.e("s_waitcnt lgkmcnt(0)")
        if g == 1:
            a.vmem(f"buffer_store_dword v{W0+1}, v{W0+2}, s[{S_WS}:{S_WS+3}], s{sT0} offen", 'S')
        for k in range(4):
            a.e(f"v_and_b32 v{C+k}, 0xffff, v{C+k}" if g == 0 else f"v_lshrrev_b32 v{C+k}, 16, v{C+k}")
        a.e(f"v_add_u32 v{SS}, v{C}, v{C+1}")
        a.e(f"v_add3_u32 v{SS}, v{SS}, v{C+2}, v{C+3}")
        a.e(f"v_mov_b32 v{SS+1}, v{SS}")
        dpp_scan(a, SS)
        a.e(f"s_lshl_b32 s{sT0}, s{sWAVE}, 2")
        a.e(f"v_mov_b32 v{W0}, s{sT0}")
        a.e("s_lshl_b64 exec, 1, 63")
        a.e(f"ds_write_b32 v{W0}, v{SS} offset:{K1B_WTOT}")
        a.e("s_mov_b64 exec, -1")
        a.e(f"v_sub_u32 v{SS}, v{SS}, v{SS+1}")
        a.e(f"v_and_b32 v{W0+4}, 7, v0")
        a.e(f"v_lshlrev_b32 v{W0}, 2, v{W0+4}")
        a.e(f"v_and_b32 v{W0+6}, 63, v0")
        a.e(f"s_lshl_b32 s{sT1}, s{sWAVE}, 1")
        a.e(f"v_lshl_add_u32 v{W0+6}, v{W0+6}, 6, s{sT1}")
        sync()
        a.e(f"ds_read_b32 v{W0+5}, v{W0} offset:{K1B_WTOT}")
        a.e(f"v_cmp_gt_u32 vcc, s{sWAVE}, v{W0+4}")
        a.e("s_waitcnt lgkmcnt(0)")
        a.e(f"v_cndmask_b32 v{W0+5}, 0, v{W0+5}, vcc")
        for sh in (1, 2, 4):
            a.e(f"v_add_u32_dpp v{W0+5}, v{W0+5}, v{W0+5} row_shr:{sh} row_mask:0xf bank_mask:0xf bound_ctrl:0")
        a.e(f"v_readlane_b32 s{sBASE}, v{W0+5}, 7")
        a.e(f"v_add_u32 v{W0}, s{sBASE}, v{SS}")
        for k in range(4):
            a.e(f"v_add_u32 v{W0+1+k}, v{W0+k}, v{C+k}")
        if g == 0:
            for k in range(4):
                a.e(f"v_sub_u32 v{C+k}, v{W0+k}, v{C+k}")
            for k in range(4):
                a.e(f"ds_add_u32 v{vOFF16}, v{C+k} offset:{4*k}")
        else:
            for k in range(4):
                a.e(f"v_mad_u32_u24 v{C+k}, v{W0+k}, 6, s{sK}")
            a.e(f"ds_write_b128 v{vOFF16}, {vr(C,4)}")
            a.e(f"v_mov_b32 v{vINC}, 6")
        for k in range(5):
            a.e(f"ds_write_b16 v{W0+6}, v{W0+k} offset:{K1B_STG + 16*k}")
        sync()
        stamp(4)
        U = [106, 110]
        WA, AA = 114, 118
        RS = 120
        a.lds(f"ds_read_b128 {vr(RS,4)}, v{vOFF16} offset:{K1B_STG}", 'RS')
        def rtn(r):
            n = 4 if r < NR else 1
            for k in range(n):
                a.e(f"v_and_b32 v{U[r&1]+k}, 0xffff, v{ROUT(r)+k}")
            if r == NR:
                a.e(f"s_cmp_eq_u32 s{sR6}, 0")
                a.e(f"s_cselect_b64 exec, -1, 0")
            for k in range(n):
                a.lds(f"ds_add_rtn_u32 v{U[r&1]+k}, v{U[r&1]+k}, v{vINC}", ('R', r))
            if r == NR:
                a.e("s_mov_b64 exec, -1")
        rtn(0)
        a.e(f"v_cmp_gt_u32 vcc, 257, v0")
        a.e(f"v_mov_b32 v{vX}, s{sOOB}")
        a.e(f"v_cndmask_b32 v{vX}, v{vX}, v{vOFF16}, vcc")
        a.wlg('RS')
        a.vmem(f"buffer_store_dwordx4 {vr(RS,4)}, v{vX}, s[{S_WS}:{S_WS+3}], s{sREC} offen", 'S')
        for r in range(NR + 1):
            n = 4 if r < NR else 1
            if r + 1 <= NR: rtn(r + 1)
            a.wlg(('R', r))
            for k in range(n):
                u, wa, aa = U[r & 1] + k, WA + k, AA + k
                if g == 0:
                    a.e(f"v_mad_u32_u16 v{u}, v{u}, 6, s{sK}")
                a.e(f"v_and_b32 v{aa}, 2, v{u}")
                a.e(f"v_add_u32 v{wa}, v{u}, v{aa}")
                a.e(f"v_mad_i32_i24 v{aa}, v{aa}, -2, v{u}")
            if r == NR:
                a.e(f"s_cmp_eq_u32 s{sR6}, 0")
                a.e(f"s_cselect_b64 exec, -1, 0")
            for k in range(n):
                a.lds(f"ds_write_b32 v{WA+k}, v{RIN(r)+k}")
                a.lds(f"ds_write_b16_d16_hi v{AA+k}, v{ROUT(r)+k} offset:4")
            if r == NR:
                a.e("s_mov_b64 exec, -1")
        LB = [vX, vY, vZ + 0]
        stamp(5)
        sync()
        stamp(6)
        NQ = 19
        LBR = [116, 117, 118]
        for h in range(3):
            a.e(f"v_add_u32 v{LBR[h]}, {K1B_TILE + 65536*h}, v{vOFF16}")
        a.e(f"v_cmp_gt_u32 vcc, {(TILE_B - 18*8192)//16}, v0")
        a.e(f"v_mov_b32 v{vX}, s{sOOB}")
        a.e(f"v_cndmask_b32 v{vX}, v{vX}, v{vOFF16}, vcc")
        a.e(f"v_cndmask_b32 v{vY}, v{LBR[0]}, v{LBR[2]}, vcc")
        def rd(q):
            a.lds(f"ds_read_b128 {vr(8+4*q,4)}, v{LBR[q>>3] if q < 18 else vY} offset:{(q&7)*8192}", ('W', q))
        for q in range(8): rd(q)
        for q in range(NQ):
            if q + 8 < NQ: rd(q + 8)
            a.wlg(('W', q))
            a.e(f"s_add_u32 s{sT2}, s{sPAY}, {q*8192}")
            a.vmem(f"buffer_store_dwordx4 {vr(8+4*q,4)}, v{vOFF16 if q < 18 else vX}, s[{S_WS}:{S_WS+3}], s{sT2} offen{STNT}", 'S')
        stamp(7)

    def trace_end(g):
        if TRACE:
            a.wvm0()
            stamp(8)
            a.e(f"s_cmp_lg_u32 s2, {cfg.get('trace_wg', 77)}")
            a.e("s_cbranch_scc1 K1_END")
            a.e(f"s_load_dwordx2 s[{S_M}:{S_M+1}], s[0:1], 96")
            a.e(f"s_mov_b32 s{S_M+2}, 4096")
            a.e("s_waitcnt lgkmcnt(0)")
            a.e(f"v_lshlrev_b32 v1, 2, v0")
            a.e(f"buffer_store_dword v{vTR}, v1, s[{S_M}:{S_M+3}], 0 offen offset:{2048*g}")

    if cfg.get('k1_pprio', 1): a.e(f"s_setprio {cfg.get('k1_pprio', 1)}")
    group(0)
    for _ in range(5 if cfg.get('rt') else 4):
        a.e("s_barrier")
    trace_end(0)
    a.e("s_endpgm")
    a.vm = []; a.lg = []

    a.e("K1_Q:")
    a.e("s_setprio 3")
    a.e(f"s_load_dwordx8 s[{S_WD}:{S_WD+7}], s[24:25], 0")
    vM, vMO, D, vMAX = 8, 24, 32, 28
    a.e(f"s_mul_i32 s{sT0}, s2, {MD_WG_B}")
    a.e(f"v_add_u32 v{vMO}, s{sT0}, v{vOFF16}")
    for q in range(1, 4):
        a.e(f"v_add_u32 v{vMO+q}, {8192*q}, v{vMO}")
    a.e(f"v_mov_b32 v{vX}, s{sOOB}")
    a.e(f"v_cmp_gt_u32 vcc, {(MD_WG_B - 3*8192)//16}, v0")
    a.e(f"v_cndmask_b32 v{vMO+3}, v{vX}, v{vMO+3}, vcc")
    for q in range(4):
        a.vmem(f"buffer_load_dwordx4 {vr(vM+4*q,4)}, v{vMO+q}, s[{S_M}:{S_M+3}], 0 offen", ('M', q))
    a.e(f"v_mov_b32 v{vMAX}, 0")
    a.e("s_waitcnt lgkmcnt(0)")
    for d in range(4):
        for h in range(2):
            r0 = S_WD + 4 * h + (d >> 1); r1 = r0 + 2
            a.e(f"s_pack_{'hh' if d & 1 else 'll'}_b32_b16 s{S_WP + 2*d + h}, s{r0}, s{r1}")
    a.e(f"s_mov_b32 s{sT0}, {MD_OFF}")
    a.wvm(('M', 3))
    for ed in range(8):
        m01 = vM + 2 * ed
        for d in range(4):
            a.e(f"v_dot2_f32_bf16 v{D+4*ed+d}, v{m01}, s{S_WP+2*d}, 0")
        for d in range(4):
            a.e(f"v_dot2_f32_bf16 v{D+4*ed+d}, v{m01+1}, s{S_WP+2*d+1}, v{D+4*ed+d}")
    for ed in range(8):
        m01 = vM + 2 * ed
        a.e(f"v_max3_f32 v{vMAX}, abs(v{D+4*ed}), abs(v{D+4*ed+1}), v{vMAX}")
        a.e(f"v_max3_f32 v{vMAX}, abs(v{D+4*ed+2}), abs(v{D+4*ed+3}), v{vMAX}")
        a.e(f"v_cvt_pk_bf16_f32 v{m01}, v{D+4*ed}, v{D+4*ed+1}")
        a.e(f"v_cvt_pk_bf16_f32 v{m01+1}, v{D+4*ed+2}, v{D+4*ed+3}")
    for q in range(4):
        a.vmem(f"buffer_store_dwordx4 {vr(vM+4*q,4)}, v{vMO+q}, s[{S_WS}:{S_WS+3}], s{sT0} offen", 'S')
    dpp_scan(a, vMAX, "v_max_u32")
    a.e("s_lshl_b64 exec, 1, 63")
    a.e(f"ds_max_u32 v{vZERO}, v{vMAX} offset:{K1B_MAXC}")
    a.e("s_mov_b64 exec, -1")
    a.e("s_setprio 0")
    stamp(0)
    group(1)
    trace_end(1)
    if cfg.get('rt'): rt_end(a, 0, S_M)
    a.e("K1_END:")
    a.e("s_endpgm")
    return fix_hazards(a.lines)
```

```python
from asmlib import *
from consts import *
from k1 import dpp_scan

def gen_k2(cfg):
    a = Asm()
    PAYNT = " nt" if cfg.get('k2_pay_nt', False) else ""
    A_LATE = cfg.get('k2_a_late', False)
    S_WS, S_MD = 4, 8
    S_X = 12
    S_Y = 16
    MSK = 20
    sWAVE, sB, sJ, sWIN, sTOT, sN, sCNT, sT0, sT1, sT2, sFFF0, sHI, sFIRST, sOOB = range(36, 50)
    sM = 50
    sUP = 52
    S_W = 54
    S_WA = 56
    S_WG = 88
    vLANE, vL12, vTB, vFL, vCN, vSCR, vFOUR, vL16, vZERO = range(1, 10)
    R = 10
    def P(c): return 18 + 4 * c
    SW_, SA_, G = 34, 42, 50
    U, KA, OLD, GP = 66, 74, 82, 86
    T_ = 94

    PROF = cfg.get('prof', False)
    sPT, sPP, sPA = 88, 90, 91
    def stamp(i):
        if not PROF: return
        a.e(f"s_memtime s[{sPT}:{sPT+1}]")
        a.e("s_waitcnt lgkmcnt(0)")
        if i >= 0:
            a.e(f"s_sub_u32 s{sPP}, s{sPT}, s{sPP}")
            a.e(f"s_add_u32 s{sPA+i}, s{sPA+i}, s{sPP}")
        a.e(f"s_mov_b32 s{sPP}, s{sPT}")
    a.e(f"s_cmp_ge_u32 s2, {NWG}")
    a.e("s_cbranch_scc1 K2_END")
    if PROF:
        for i in range(11): a.e(f"s_mov_b32 s{sPA+i}, 0")
    stamp(-1)
    a.e(f"s_load_dwordx2 s[{S_WS}:{S_WS+1}], s[0:1], 104")
    a.e(f"s_load_dwordx2 s[{S_X}:{S_X+1}], s[0:1], 24")
    a.e(f"s_load_dwordx4 s[{S_Y}:{S_Y+3}], s[0:1], 56")
    a.e(f"s_mov_b32 s{S_WS+2}, {WS_BYTES}")
    a.e(f"s_mov_b32 s{S_WS+3}, 0x00020000")
    a.e(f"s_mov_b32 s{S_X+2}, {E*2}")
    a.e(f"s_mov_b32 s{S_X+3}, 0x00020000")
    a.e(f"v_lshrrev_b32 v{T_}, 6, v0")
    a.e(f"v_and_b32 v{vLANE}, 63, v0")
    a.e(f"v_readfirstlane_b32 s{sWAVE}, v{T_}")
    a.e(f"s_and_b32 s{sB}, s2, 7")
    a.e(f"s_lshl_b32 s{sB}, s{sB}, 5")
    a.e(f"s_lshr_b32 s{sT0}, s2, 3")
    a.e(f"s_or_b32 s{sB}, s{sB}, s{sT0}")
    a.e(f"s_mov_b32 s{sFFF0}, 0xfff0")
    a.e(f"s_mov_b32 s{sHI}, 0xffff0000")
    a.e(f"s_mov_b32 s{sOOB}, 0x80000000")
    a.e(f"s_mov_b32 s{sUP}, 0")
    a.e(f"s_mov_b32 s{sUP+1}, -1")
    a.e(f"v_mul_u32_u24 v{vL12}, 12, v{vLANE}")
    a.e(f"v_lshlrev_b32 v{vL16}, 4, v{vLANE}")
    a.e(f"v_mov_b32 v{vFOUR}, 4")
    a.e(f"v_mov_b32 v{vZERO}, 0")
    a.e(f"v_and_b32 v{T_+1}, 31, v0")
    a.e(f"v_lshl_add_u32 v{T_+1}, v{T_}, 5, v{T_+1}")
    a.e(f"s_mov_b32 s{sT0}, {TILE_B}")
    a.e(f"v_mul_lo_u32 v{vTB}, v{T_+1}, s{sT0}")
    a.e(f"s_lshl_b32 s{sT0}, s{sB}, 5")
    a.e(f"v_lshlrev_b32 v{T_+1}, 13, v{T_+1}")
    a.e(f"v_add_u32 v{T_+1}, s{sT0}, v{T_+1}")
    a.e(f"v_mov_b32 v{vFL}, 0x40")
    a.e(f"v_mov_b32 v{T_+2}, 0x80")
    a.e(f"v_cndmask_b32 v{vFL}, v{vFL}, v{T_+2}, s[{sUP}:{sUP+1}]")
    a.e(f"v_add_u32 v{T_+2}, -1, v{vLANE}")
    a.e(f"v_cmp_gt_u32 vcc, 31, v{T_+2}")
    a.e(f"v_cndmask_b32 v{vCN}, 0, 1, vcc")
    a.e(f"v_lshlrev_b32 v{vSCR}, 2, v0")
    a.e(f"v_add_u32 v{vSCR}, {K2_SCR}, v{vSCR}")
    a.e("s_waitcnt lgkmcnt(0)")
    a.e(f"s_load_dwordx16 s[{S_WA}:{S_WA+15}], s[{S_Y+2}:{S_Y+3}], 0")
    a.e(f"s_load_dwordx16 s[{S_WA+16}:{S_WA+31}], s[{S_Y+2}:{S_Y+3}], 64")
    a.e(f"s_add_u32 s{S_MD}, s{S_WS}, {MD_OFF}")
    a.e(f"s_addc_u32 s{S_MD+1}, s{S_WS+1}, 0")
    a.e(f"s_or_b32 s{S_MD+1}, s{S_MD+1}, 0x80000")
    a.e(f"s_mov_b32 s{S_MD+2}, {E}")
    a.e(f"s_mov_b32 s{S_MD+3}, 0x00020000")
    a.e(f"s_mov_b32 s{sT0}, {REC_OFF}")
    a.vmem(f"buffer_load_dwordx4 {vr(R,4)}, v{T_+1}, s[{S_WS}:{S_WS+3}], s{sT0} offen", 'R')
    a.vmem(f"buffer_load_dwordx4 {vr(R+4,4)}, v{T_+1}, s[{S_WS}:{S_WS+3}], s{sT0} offen offset:16", 'R')
    a.e(f"s_mov_b32 s{sT1}, {MX_OFF}")
    a.vmem(f"buffer_load_dwordx4 {vr(U,4)}, v{vL16}, s[{S_WS}:{S_WS+3}], s{sT1} offen", 'X')
    a.e(f"s_mul_i32 s{sT0}, s{sB}, {EPB*2}")
    a.e(f"v_lshlrev_b32 v{T_+2}, 1, v0")
    a.e(f"v_add_u32 v{T_+2}, s{sT0}, v{T_+2}")
    a.e(f"v_add_u32 v{T_+3}, 4096, v{T_+2}")
    for k in range(4):
        a.e(f"v_mov_b32 v{GP+2*k}, 0")
    for k in range(4):
        a.vmem(f"buffer_load_short_d16_hi v{GP+2*k}, v{T_+2+(k>>1)}, s[{S_X}:{S_X+3}], 0 offen offset:{(k&1)*2048}", 'D')
    for k in range(4):
        a.e(f"v_mov_b32 v{T_+4+k}, 0")
    a.e(f"v_lshlrev_b32 v{T_+8}, 4, v0")
    for k in range(3):
        a.e(f"ds_write_b128 v{T_+8}, {vr(T_+4,4)} offset:{k*16384}")
    a.e(f"v_cmp_gt_u32 vcc, {(K2_A - 3*16384)//16}, v0")
    a.e(f"s_and_saveexec_b64 s[{sM}:{sM+1}], vcc")
    a.e(f"ds_write_b128 v{T_+8}, {vr(T_+4,4)} offset:{3*16384}")
    a.e(f"s_mov_b64 exec, -1")
    a.e(f"ds_write_b32 v{vSCR}, v{vZERO}")
    for k in range(4):
        a.e(f"v_mov_b32 v{OLD+k}, 0")
    for k in range(8):
        a.e(f"v_mov_b32 v{SA_+k}, 0")
    a.e(f"s_mov_b32 s{sJ}, 8")
    a.e(f"s_mov_b32 s{sWIN}, 0")
    a.e(f"s_mov_b32 s{sCNT}, 0")
    a.e("s_waitcnt lgkmcnt(0)")
    a.wvm('R')
    t = T_
    a.e(f"v_mov_b32 v{t}, 0")
    for k in range(8):
        a.e(f"v_sub_u32_sdwa v{t+1}, v{R+k}, v{R+k} dst_sel:DWORD dst_unused:UNUSED_PAD src0_sel:WORD_1 src1_sel:WORD_0")
        a.e(f"v_add_u32 v{t}, v{t}, v{t+1}")
    dpp_scan(a, t, full=False)
    a.e(f"s_lshl_b32 s{sT0}, s{sWAVE}, 2")
    a.e(f"s_add_u32 s{sT0}, s{sT0}, {K2_NB}")
    a.e(f"v_mov_b32 v{t+1}, s{sT0}")
    a.e("s_lshl_b64 exec, 1, 63")
    a.e(f"ds_write_b32 v{t+1}, v{t}")
    a.e("s_mov_b64 exec, -1")

    uid = [0]
    def flatten():
        uid[0] += 1
        L = f"K2_FL{uid[0]}"
        s_, e_, p0, n_, inc, S_, V_, x_, sl = range(T_, T_ + 9)
        a.e(f"{L}_TOP:")
        a.e(f"v_and_b32 v{s_}, 0xffff, v{R}")
        a.e(f"v_lshrrev_b32 v{e_}, 16, v{R}")
        a.e(f"v_lshrrev_b32 v{p0}, 1, v{s_}")
        a.e(f"v_add_u32 v{n_}, 1, v{e_}")
        a.e(f"v_cmp_gt_u32 s[{sM}:{sM+1}], v{e_}, v{s_}")
        a.e(f"v_lshrrev_b32 v{n_}, 1, v{n_}")
        a.e(f"v_sub_u32 v{n_}, v{n_}, v{p0}")
        a.e(f"v_cndmask_b32 v{n_}, 0, v{n_}, s[{sM}:{sM+1}]")
        a.e(f"v_mov_b32 v{inc}, v{n_}")
        dpp_scan(a, inc, full=False)
        a.e(f"v_readlane_b32 s{sTOT}, v{inc}, 31")
        a.e(f"s_cmp_lt_u32 s{sWIN}, s{sTOT}")
        a.e(f"s_cbranch_scc1 {L}_GO")
        a.e(f"s_cmp_eq_u32 s{sJ}, 0")
        a.e(f"s_cbranch_scc1 {L}_GO")
        for k in range(7):
            a.e(f"v_mov_b32 v{R+k}, v{R+k+1}")
        a.e(f"v_mov_b32 v{R+7}, 0")
        a.e(f"s_sub_u32 s{sJ}, s{sJ}, 1")
        a.e(f"s_mov_b32 s{sWIN}, 0")
        a.e(f"s_branch {L}_TOP")
        a.e(f"{L}_GO:")
        a.e(f"v_sub_u32 v{S_}, v{inc}, v{n_}")
        a.e(f"v_subrev_u32 v{S_}, s{sWIN}, v{S_}")
        a.e(f"v_sub_u32 v{V_}, v{p0}, v{S_}")
        a.e(f"v_mad_i32_i24 v{V_}, v{V_}, 12, v{vTB}")
        a.e(f"v_cndmask_b32 v{x_}, v{s_}, v{e_}, s[{sUP}:{sUP+1}]")
        a.e(f"v_add_u32 v{sl}, -1, v{n_}")
        a.e(f"v_cndmask_b32 v{sl}, 0, v{sl}, s[{sUP}:{sUP+1}]")
        a.e(f"v_add_u32 v{sl}, v{sl}, v{S_}")
        a.e(f"v_and_b32 v{x_}, 1, v{x_}")
        a.e(f"v_cmp_le_i32 vcc, 0, v{sl}")
        a.e(f"s_and_b64 vcc, vcc, s[{sM}:{sM+1}]")
        a.e(f"v_cndmask_b32 v{x_}, 0, v{x_}, vcc")
        a.e(f"v_max_i32 v{sl}, 0, v{sl}")
        a.e(f"v_mad_u32_u24 v{x_}, v{x_}, v{vFL}, v{vCN}")
        a.e(f"v_lshrrev_b32 v{s_}, 3, v{sl}")
        a.e(f"v_and_b32 v{s_}, 0x18, v{s_}")
        a.e(f"v_lshlrev_b32 v{x_}, v{s_}, v{x_}")
        a.e(f"v_cmp_gt_u32 vcc, 256, v{sl}")
        a.e(f"v_and_b32 v{sl}, 63, v{sl}")
        a.e(f"v_sub_u32 v{sl}, v{sl}, v{vLANE}")
        a.e(f"v_lshl_add_u32 v{sl}, v{sl}, 2, v{vSCR}")
        a.e(f"s_mov_b64 exec, vcc")
        a.e(f"ds_add_u32 v{sl}, v{x_}")
        a.e(f"s_mov_b64 exec, -1")
        raw, raw2, cnt = e_, p0, n_
        a.e(f"ds_read_b32 v{raw}, v{vSCR}")
        a.e(f"ds_write_b32 v{vSCR}, v{vZERO}")
        a.e(f"s_sub_u32 s{sT1}, s{sTOT}, s{sWIN}")
        a.e("s_waitcnt lgkmcnt(1)")
        a.e(f"v_and_b32 v{cnt}, 0x3f3f3f3f, v{raw}")
        a.e(f"v_lshlrev_b32 v{raw2}, 1, v{raw}")
        dpp_scan(a, cnt)
        a.e(f"v_readlane_b32 s{sT0}, v{cnt}, 63")
        a.e(f"s_mul_i32 s{sT0}, s{sT0}, 0x01010100")
        a.e(f"v_add_u32 v{cnt}, s{sT0}, v{cnt}")
        AD = T_ + 10
        for c in range(4):
            a.e(f"v_lshlrev_b32_sdwa v{AD+c}, 2, v{cnt} dst_sel:DWORD dst_unused:UNUSED_PAD src0_sel:DWORD src1_sel:BYTE_{c}")
            a.e(f"ds_bpermute_b32 v{AD+c}, v{AD+c}, v{V_}")
        a.e(f"v_mov_b32 v{s_}, s{sOOB}")
        for c in range(4):
            a.e(f"v_cmp_le_i32_sdwa s[{MSK+4*c}:{MSK+4*c+1}], 0, sext(v{raw2}) src0_sel:DWORD src1_sel:BYTE_{c}")
            a.e(f"v_cmp_le_i32_sdwa s[{MSK+4*c+2}:{MSK+4*c+3}], 0, sext(v{raw}) src0_sel:DWORD src1_sel:BYTE_{c}")
        for c in range(4):
            a.e(f"v_cmp_gt_i32 vcc, s{sT1}, v{vLANE}")
            a.e(f"s_sub_u32 s{sT1}, s{sT1}, 64")
            a.e(f"s_and_b64 s[{MSK+4*c}:{MSK+4*c+1}], s[{MSK+4*c}:{MSK+4*c+1}], vcc")
            a.e(f"s_and_b64 s[{MSK+4*c+2}:{MSK+4*c+3}], s[{MSK+4*c+2}:{MSK+4*c+3}], vcc")
            a.e(f"s_waitcnt lgkmcnt({3-c})")
            a.e(f"v_add_u32 v{AD+c}, v{AD+c}, v{vL12}")
            a.e(f"v_cndmask_b32 v{AD+c}, v{s_}, v{AD+c}, vcc")
            a.e(f"buffer_load_dwordx3 {vr(P(c),3)}, v{AD+c}, s[{S_WS}:{S_WS+3}], 0 offen offset:{768*c}{PAYNT}")
        a.e(f"s_add_u32 s{sWIN}, s{sWIN}, 256")
        a.e(f"s_cmp_lt_u32 s{sWIN}, s{sTOT}")
        a.e(f"s_cbranch_scc1 {L}_DONE")
        a.e(f"s_mov_b32 s{sWIN}, 0")
        a.e(f"s_cmp_eq_u32 s{sJ}, 0")
        a.e(f"s_cbranch_scc1 {L}_DONE")
        for k in range(7):
            a.e(f"v_mov_b32 v{R+k}, v{R+k+1}")
        a.e(f"v_mov_b32 v{R+7}, 0")
        a.e(f"s_sub_u32 s{sJ}, s{sJ}, 1")
        a.e(f"{L}_DONE:")

    def a_compute():
        t = T_
        a.e(f"v_and_b32 v{t}, 15, v0")
        a.e(f"v_lshlrev_b32 v{t}, 2, v{t}")
        a.e(f"v_add_u32 v{t}, {K2_NB}, v{t}")
        a.e(f"ds_read_b32 v{t}, v{t}")
        a.e(f"v_max_u32 v{U}, v{U}, v{U+1}")
        a.e(f"v_max_u32 v{U+2}, v{U+2}, v{U+3}")
        a.e(f"v_max_u32 v{U}, v{U}, v{U+2}")
        dpp_scan(a, U, "v_max_u32")
        a.e("s_waitcnt lgkmcnt(0)")
        for sh in (1, 2, 4, 8):
            a.e(f"v_add_u32_dpp v{t}, v{t}, v{t} row_shr:{sh} row_mask:0xf bank_mask:0xf bound_ctrl:0")
        a.e(f"v_cvt_f32_u32 v{t}, v{t}")
        a.e(f"v_mul_f32 v{t}, v{t}, v{U}")
        a.e(f"v_rcp_f32 v{t}, v{t}")
        a.e(f"v_mul_f32 v{t}, 0x4efc0000, v{t}")
        a.e(f"v_min_f32 v{t}, 0x5d800000, v{t}")
        sG = sT2
        a.e(f"v_readlane_b32 s{sG}, v{t}, 63")
        for q in range(4):
            for l in range(2):
                for h in range(2):
                    ra = S_WA + (4 * q + l) * 2 + h; rb = S_WA + (4 * q + 2 + l) * 2 + h
                    a.e(f"s_pack_ll_b32_b16 s{sT0}, s{ra}, s{rb}")
                    a.e(f"s_pack_hh_b32_b16 s{rb}, s{ra}, s{rb}")
                    a.e(f"s_mov_b32 s{ra}, s{sT0}")
        def WA(q, l, d): return S_WA + (4 * q + l + 2 * (d & 1)) * 2 + (d >> 1)
        RB = KA
        RBS = [U, U + 4, KA, KA + 4]
        X = T_
        AV = T_ + 8
        Y = T_ + 16
        def rnd(base):
            for q in range(4):
                a.e(f"v_cvt_pk_bf16_f32 v{base+2*q+1}, v{base+2*q}, v{base+2*q+1}")
            for q in range(4):
                a.e(f"v_lshlrev_b32 v{base+2*q}, 16, v{base+2*q+1}")
                a.e(f"v_and_b32 v{base+2*q+1}, s{sHI}, v{base+2*q+1}")
        a.e(f"v_lshlrev_b32 v{Y+4}, 4, v0")
        for k in range(4):
            if k == 3:
                a.e(f"s_cmp_lg_u32 s{sWAVE}, 0")
                a.e(f"s_cbranch_scc1 K2_A3SKIP")
            dv = GP + 2 * k
            for r in range(8):
                a.e(f"v_subrev_f32 v{X+r}, {hex(CENTERS[r])}, v{dv}")
            rnd(X)
            for r in range(8):
                a.e(f"v_mul_f32 v{X+r}, v{X+r}, v{X+r}")
            rnd(X)
            for r in range(8):
                a.e(f"v_mul_f32 v{X+r}, 0xc1200000, v{X+r}")
            rnd(X)
            for r in range(8):
                a.e(f"v_mul_f32 v{X+r}, 0x3fb8aa3b, v{X+r}")
            for r in range(8):
                a.e(f"v_exp_f32 v{X+r}, v{X+r}")
            rb = RBS[k]
            for q in range(4):
                a.e(f"v_cvt_pk_bf16_f32 v{rb+q}, v{X+2*q}, v{X+2*q+1}")
            for q in range(4):
                for d in range(4):
                    for l in range(2):
                        o = AV + 2 * d + l
                        a.e(f"v_dot2_f32_bf16 v{o}, v{rb+q}, s{WA(q,l,d)}, {'0' if q == 0 else 'v%d' % o}")
            for d in range(4):
                a.e(f"v_add_f32 v{Y+d}, abs(v{AV+2*d}), abs(v{AV+2*d+1})")
            a.e(f"v_max3_f32 v{Y}, v{Y}, v{Y+1}, v{Y+2}")
            a.e(f"v_max_f32 v{Y}, v{Y}, v{Y+3}")
            a.e(f"v_max_f32 v{Y}, 0x21800000, v{Y}")
            a.e(f"v_rcp_f32 v{Y}, v{Y}")
            a.e(f"v_mul_f32 v{Y}, s{sG}, v{Y}")
            a.e(f"v_add_f32 v{Y+1}, v{Y}, v{Y}")
            a.e(f"v_rcp_f32 v{dv+1}, v{Y}")
            for d in range(4):
                a.e(f"v_mul_f32 v{AV+2*d}, v{Y}, v{AV+2*d}")
                a.e(f"v_mul_f32 v{AV+2*d+1}, v{Y+1}, v{AV+2*d+1}")
            for d in range(4):
                a.e(f"v_cvt_pk_bf16_f32 v{X+d}, v{AV+2*d}, v{AV+2*d+1}")
            if k == 3:
                a.e(f"v_cmp_gt_u32 vcc, {EPB - 3072}, v0")
                a.e(f"s_mov_b64 exec, vcc")
            a.e(f"ds_write_b128 v{Y+4}, {vr(X,4)} offset:{K2_A}")
            if k == 3:
                a.e(f"s_mov_b64 exec, -1")
            if k < 3:
                a.e(f"v_add_u32 v{Y+4}, 16384, v{Y+4}")
        a.e("K2_A3SKIP:")
        a.e(f"s_load_dwordx16 s[{S_WA}:{S_WA+15}], s[{S_Y}:{S_Y+1}], 0")
        a.e(f"s_load_dwordx2 s[{S_X}:{S_X+1}], s[0:1], 80")
        a.e("s_waitcnt lgkmcnt(0)")
        a.e(f"s_load_dwordx8 s[{S_WA+16}:{S_WA+23}], s[{S_X}:{S_X+1}], 0")
        for q in range(4):
            for h in range(2):
                ra = S_WA + (2 * q) * 2 + h; rb = S_WA + (2 * q + 1) * 2 + h
                a.e(f"s_pack_ll_b32_b16 s{sT0}, s{ra}, s{rb}")
                a.e(f"s_pack_hh_b32_b16 s{rb}, s{ra}, s{rb}")
                a.e(f"s_mov_b32 s{ra}, s{sT0}")
        def WG(q, d): return S_WA + (2 * q + (d & 1)) * 2 + (d >> 1)
        for k in range(4):
            rb = RBS[k]
            o = X + 4 * k
            for q in range(4):
                for d in range(4):
                    a.e(f"v_dot2_f32_bf16 v{o+d}, v{rb+q}, s{WG(q,d)}, {'0' if q == 0 else 'v%d' % (o+d)}")
        for k in range(4):
            o = X + 4 * k
            for d in range(4):
                a.e(f"v_mul_f32 v{o+d}, v{GP+2*k+1}, v{o+d}")
            a.e(f"v_cvt_pk_bf16_f32 v{GP+2*k}, v{o}, v{o+1}")
            a.e(f"v_cvt_pk_bf16_f32 v{GP+2*k+1}, v{o+2}, v{o+3}")
        a.e("s_waitcnt lgkmcnt(0)")
        for d in range(4):
            for h in range(2):
                src = S_WA + 16 + 2 * d + h
                a.e(f"s_lshl_b32 s{S_WA+4*d+2*h}, s{src}, 16")
                a.e(f"s_and_b32 s{S_WA+4*d+2*h+1}, s{src}, s{sHI}")

    flatten()
    a.e("s_waitcnt lgkmcnt(0)")
    a.e("s_barrier")
    a.e("s_waitcnt vmcnt(4)")
    stamp(0)
    a_compute()
    stamp(1)

    a.e("K2_LOOP:")
    vA4, vA2 = T_, T_ + 1
    for s in range(8):
        a.e(f"s_cmp_lt_u32 s{sCNT}, {8 - s}")
        a.e(f"s_cbranch_scc1 K2_RS{s}")
        a.e(f"ds_read_b32 v{SW_+s}, v{vA4} offset:{256*s}")
        a.e(f"ds_read_u16_d16_hi v{SA_+s}, v{vA2} offset:{128*s}")
        a.e(f"K2_RS{s}:")
    a.e("s_waitcnt vmcnt(0)")
    for s in range(8):
        a.e(f"s_cmp_lt_u32 s{sCNT}, {8 - s}")
        a.e(f"s_cbranch_scc1 K2_GS{s}")
        a.e(f"s_waitcnt lgkmcnt({min(15, 2*(7-s)+1)})")
        a.e(f"v_and_b32 v{T_+2+(s&1)}, 0xfffff, v{SW_+s}")
        a.e(f"buffer_load_dwordx2 {vr(G+2*s,2)}, v{T_+2+(s&1)}, s[{S_MD}:{S_MD+3}], 0 idxen")
        a.e(f"K2_GS{s}:")
    stamp(2)
    for c in range(4):
        for h in range(2):
            i = 2 * c + h
            a.e(f"v_lshlrev_b32_sdwa v{KA+i}, 2, v{P(c)+2*h} dst_sel:DWORD dst_unused:UNUSED_PAD src0_sel:DWORD src1_sel:BYTE_1")
    for i in range(8):
        a.e(f"s_mov_b64 exec, s[{MSK+2*i}:{MSK+2*i+1}]")
        a.e(f"ds_add_rtn_u32 v{U+i}, v{KA+i}, v{vFOUR}")
    a.e("s_mov_b64 exec, -1")
    a.e("s_waitcnt lgkmcnt(0)")
    stamp(3)
    a.e("s_barrier")
    stamp(4)
    NW, CC, TT, BS = T_, T_ + 4, T_ + 8, T_ + 12
    a.e(f"ds_read_b128 {vr(NW,4)}, v{vL16}")
    a.e("s_waitcnt lgkmcnt(0)")
    for k in range(4):
        a.e(f"v_sub_u32 v{CC+k}, v{NW+k}, v{OLD+k}")
    a.e(f"v_add_u32 v{TT}, v{CC}, v{CC+1}")
    a.e(f"v_add3_u32 v{TT}, v{TT}, v{CC+2}, v{CC+3}")
    a.e(f"v_sub_u32 v{TT+1}, {K2_SW}, v{TT}")
    dpp_scan(a, TT)
    a.e(f"v_add_u32 v{TT+1}, v{TT+1}, v{TT}")
    a.e(f"v_readlane_b32 s{sN}, v{TT}, 63")
    for k in range(4):
        a.e(f"v_sub_u32 v{BS+k}, v{TT+1}, v{OLD+k}")
        if k < 3:
            a.e(f"v_add_u32 v{TT+1}, v{TT+1}, v{CC+k}")
        a.e(f"v_mov_b32 v{OLD+k}, v{NW+k}")
    a.e(f"ds_write_b128 v{vL16}, {vr(BS,4)} offset:{K2_BASE}")
    for i in range(8):
        a.e(f"ds_read_b32 v{KA+i}, v{KA+i} offset:{K2_BASE}")
    a.e(f"s_cmp_lg_u32 s{sWAVE}, 0")
    a.e(f"s_cbranch_scc1 K2_NOPAD")
    a.e(f"s_add_u32 s{sT0}, s{sN}, {K2_SW}")
    a.e(f"v_lshl_add_u32 v{TT}, v{vLANE}, 2, s{sT0}")
    a.e(f"v_mov_b32 v{TT+1}, {hex(EPB << 20)}")
    a.e(f"ds_write_b32 v{TT}, v{TT+1}")
    a.e("K2_NOPAD:")
    a.e("s_waitcnt lgkmcnt(0)")
    for i in range(8):
        a.e(f"v_add_u32 v{U+i}, v{U+i}, v{KA+i}")
        a.e(f"v_lshrrev_b32 v{KA+i}, 1, v{U+i}")
    for i in range(8):
        c, h = i >> 1, i & 1
        a.e(f"s_mov_b64 exec, s[{MSK+2*i}:{MSK+2*i+1}]")
        a.e(f"ds_write_b32 v{U+i}, v{P(c)+2*h}")
        a.e(f"ds_write_b16{'_d16_hi' if h else ''} v{KA+i}, v{P(c)+1} offset:{K2_SA - K2_SW//2}")
    a.e("s_mov_b64 exec, -1")
    stamp(5)
    flatten()
    stamp(6)
    for s in range(8):
        b = T_ + 16 * (s & 1)
        L16, L4, C_, AV, M_ = b, b + 1, b + 2, b + 4, b + 8
        a.e(f"s_cmp_lt_u32 s{sCNT}, {8 - s}")
        a.e(f"s_cbranch_scc1 K2_PS{s}")
        a.e(f"v_and_b32_sdwa v{L16}, v{SW_+s}, s{sFFF0} dst_sel:DWORD dst_unused:UNUSED_PAD src0_sel:WORD_1 src1_sel:DWORD")
        a.e(f"ds_read_b128 {vr(AV,4)}, v{L16} offset:{K2_A}")
        a.e(f"v_mul_f32 v{C_}, 0.15915494, v{SA_+s}")
        a.e(f"v_fract_f32 v{C_}, v{C_}")
        a.e(f"v_cos_f32 v{C_}, v{C_}")
        a.e(f"v_lshrrev_b32 v{L4}, 2, v{L16}")
        a.e(f"v_fma_f32 v{C_+1}, v{C_}, v{C_}, -0.5")
        a.e(f"v_cvt_pk_bf16_f32 v{C_}, v{C_}, v{C_+1}")
        a.e(f"s_waitcnt lgkmcnt(0)")
        for d in range(4):
            a.e(f"v_dot2_f32_bf16 v{AV+d}, v{AV+d}, v{C_}, 0")
        a.e(f"s_waitcnt vmcnt({7 - s + 4})")
        a.e(f"v_lshlrev_b32 v{M_}, 16, v{G+2*s}")
        a.e(f"v_and_b32 v{M_+1}, s{sHI}, v{G+2*s}")
        a.e(f"v_lshlrev_b32 v{M_+2}, 16, v{G+2*s+1}")
        a.e(f"v_and_b32 v{M_+3}, s{sHI}, v{G+2*s+1}")
        for d in range(4):
            a.e(f"v_mul_f32 v{M_+d}, v{M_+d}, v{AV+d}")
        for d in range(4):
            a.e(f"v_cvt_rpi_i32_f32 v{M_+d}, v{M_+d}")
        for d in range(4):
            a.e(f"ds_add_u32 v{L4}, v{M_+d} offset:{K2_ACC + d*ACC_STR}")
        a.e(f"K2_PS{s}:")
    a.e(f"s_add_u32 s{sT0}, s{sN}, 255")
    a.e(f"s_lshr_b32 s{sT0}, s{sT0}, 8")
    a.e(f"s_mul_i32 s{sT1}, s{sT0}, s{sWAVE}")
    a.e(f"s_add_u32 s{sT0}, s{sT1}, s{sT0}")
    a.e(f"s_lshr_b32 s{sT1}, s{sT1}, 4")
    a.e(f"s_lshr_b32 s{sT0}, s{sT0}, 4")
    a.e(f"s_sub_u32 s{sCNT}, s{sT0}, s{sT1}")
    a.e(f"s_lshl_b32 s{sT0}, s{sT0}, 7")
    a.e(f"s_add_u32 s{sT1}, s{sT0}, {K2_SA - 8*128}")
    a.e(f"s_lshl_b32 s{sT0}, s{sT0}, 1")
    a.e(f"s_add_u32 s{sT0}, s{sT0}, {K2_SW - 8*256}")
    a.e("s_waitcnt lgkmcnt(0)")
    a.e(f"v_lshl_add_u32 v{vA4}, v{vLANE}, 2, s{sT0}")
    a.e(f"v_lshl_add_u32 v{vA2}, v{vLANE}, 1, s{sT1}")
    stamp(7)
    a.e("s_barrier")
    stamp(8)
    a.e(f"s_cmp_lg_u32 s{sN}, 0")
    a.e("s_cbranch_scc1 K2_LOOP")

    a.e(f"s_load_dwordx2 s[{S_X}:{S_X+1}], s[0:1], 0")
    a.e(f"s_load_dwordx2 s[{S_Y}:{S_Y+1}], s[0:1], 88")
    a.e(f"s_mov_b32 s{S_X+2}, {E*8}")
    a.e(f"s_mov_b32 s{S_X+3}, 0x00020000")
    a.e(f"s_mov_b32 s{S_Y+2}, {E*8}")
    a.e(f"s_mov_b32 s{S_Y+3}, 0x00020000")
    OF = 10
    MM = 14
    AC = 22
    UU = 38
    a.e(f"s_mul_i32 s{sT0}, s{sB}, {EPB*8}")
    a.e(f"v_lshlrev_b32 v{OF}, 3, v0")
    a.e(f"v_add_u32 v{OF}, s{sT0}, v{OF}")
    a.e(f"v_add_u32 v{OF+1}, 8192, v{OF}")
    a.e(f"v_add_u32 v{OF+2}, 16384, v{OF}")
    a.e(f"v_add_u32 v{OF+3}, 24576, v{OF}")
    a.e(f"v_mov_b32 v{T_}, s{sOOB}")
    a.e(f"v_cmp_gt_u32 vcc, {EPB - 3072}, v0")
    a.e(f"v_cndmask_b32 v{OF+3}, v{T_}, v{OF+3}, vcc")
    a.e(f"v_lshlrev_b32 v{T_+1}, 2, v0")
    a.e("s_waitcnt vmcnt(0) lgkmcnt(0)")
    for k in range(4):
        a.e(f"buffer_load_dwordx2 {vr(MM+2*k,2)}, v{OF+k}, s[{S_X}:{S_X+3}], 0 offen")
    for k in range(4):
        for d in range(4):
            a.e(f"ds_read_b32 v{AC+4*k+d}, v{T_+1} offset:{K2_ACC + d*ACC_STR + 4096*k}")
        if k == 1:
            a.e("s_waitcnt lgkmcnt(0)")
    a.e("s_waitcnt lgkmcnt(0)")
    for k in range(4):
        for d in range(4):
            a.e(f"v_cvt_f32_i32 v{AC+4*k+d}, v{AC+4*k+d}")
        for dp in range(4):
            a.e(f"v_mul_f32 v{UU+4*k+dp}, s{S_WA+dp}, v{AC+4*k}")
        for d in range(1, 4):
            for dp in range(4):
                a.e(f"v_fmac_f32 v{UU+4*k+dp}, s{S_WA+4*d+dp}, v{AC+4*k+d}")
        a.e(f"v_lshlrev_b32 v{AC+4*k}, 16, v{GP+2*k}")
        a.e(f"v_and_b32 v{AC+4*k+1}, s{sHI}, v{GP+2*k}")
        a.e(f"v_lshlrev_b32 v{AC+4*k+2}, 16, v{GP+2*k+1}")
        a.e(f"v_and_b32 v{AC+4*k+3}, s{sHI}, v{GP+2*k+1}")
    for k in range(4):
        a.e(f"s_waitcnt vmcnt({3 - k + k})" if False else f"s_waitcnt vmcnt(3)")
        a.e(f"v_lshlrev_b32 v{T_+4}, 16, v{MM+2*k}")
        a.e(f"v_and_b32 v{T_+5}, s{sHI}, v{MM+2*k}")
        a.e(f"v_lshlrev_b32 v{T_+6}, 16, v{MM+2*k+1}")
        a.e(f"v_and_b32 v{T_+7}, s{sHI}, v{MM+2*k+1}")
        for d in range(4):
            a.e(f"v_fmac_f32 v{T_+4+d}, v{UU+4*k+d}, v{AC+4*k+d}")
        a.e(f"v_cvt_pk_bf16_f32 v{MM+2*k}, v{T_+4}, v{T_+5}")
        a.e(f"v_cvt_pk_bf16_f32 v{MM+2*k+1}, v{T_+6}, v{T_+7}")
        a.e(f"buffer_store_dwordx2 {vr(MM+2*k,2)}, v{OF+k}, s[{S_Y}:{S_Y+3}], 0 offen")
    if PROF:
        a.e("s_waitcnt vmcnt(0)")
        stamp(9)
        a.e(f"s_load_dwordx2 s[{S_X}:{S_X+1}], s[0:1], 96")
        a.e(f"s_mov_b32 s{S_X+2}, 256")
        a.e("s_waitcnt lgkmcnt(0)")
        a.e("s_mov_b64 exec, 1")
        for i in range(11):
            a.e(f"s_lshr_b32 s{sPA+i}, s{sPA+i}, 4")
            a.e(f"v_mov_b32 v1, s{sPA+i}")
            a.e(f"v_mov_b32 v2, {4*i}")
            a.e(f"buffer_atomic_add v1, v2, s[{S_X}:{S_X+3}], 0 offen")
    a.e("K2_END:")
    a.e("s_endpgm")
    return fix_hazards(a.lines)
```

```python
from asmlib import *
from consts import *
from k1 import dpp_scan, rt_end

NS = 13
DUMMY = (EPB << 20) | 0xFFFFF
K2_FS = K2_NB + 32
K2_NCELL = K2_FS + 4
K2_FH = K2_FS + 8
K2_FR = K2_FS + 12
K2_FP = K2_FS + 16

def gen_k2(cfg):
    a = Asm()
    PAYNT = " nt" if cfg.get('k2_pay_nt', False) else ""
    D = cfg.get('k2_d', 3)
    B1POS = cfg.get('k2_b1', 6)
    LATE = cfg.get('k2_late', 2)
    PPRIO = cfg.get('k2_pprio', 3)
    PROF = cfg.get('prof', False)
    S_WS, S_MD = 4, 8
    S_X = 12
    S_Y = 16
    sWAVE, sB, sJ, sWIN, sTOT, sN, sCNT, sT0, sT1, sT2, sFFF0, sHI, sCNP, sOOB = range(20, 34)
    sM = 34
    sG = 36
    sTG = 37
    puid = [0]
    def poll(vt, off, tgt, first=True):
        puid[0] += 1
        if first:
            a.e(f"K2_PL{puid[0]}:")
            a.e(f"ds_read_b32 v{vt}, v{vZERO} offset:{off}")
            a.e("s_waitcnt lgkmcnt(0)")
            a.e(f"v_readfirstlane_b32 s{sT0}, v{vt}")
            a.e(f"s_cmp_lt_u32 s{sT0}, s{tgt}")
            a.e(f"s_cbranch_scc1 K2_PL{puid[0]}")
    def signal(vone, off):
        a.e("s_mov_b64 exec, 1")
        a.e(f"ds_add_u32 v{vZERO}, v{vone} offset:{off}")
        a.e("s_mov_b64 exec, -1")
    S_WA = 40
    S_WU = 72
    MSK = 40
    sPT, sPP, sPA = 88, 90, 91
    TRACE = cfg.get('trace', False)
    vTR = 88
    def stamp(i):
        if TRACE:
            if i < 0:
                a.e(f"s_mov_b32 s{sPA}, 0")
                a.e(f"v_mov_b32 v{vTR}, 0")
                i = 15
            a.e(f"s_memtime s[{sPT}:{sPT+1}]")
            a.e("s_waitcnt lgkmcnt(0)")
            a.e(f"s_andn2_b32 s{sPT}, s{sPT}, 15")
            a.e(f"s_or_b32 s{sPT}, s{sPT}, {i}")
            a.e(f"s_mov_b32 m0, s{sPA}")
            a.e(f"s_add_u32 s{sPA}, s{sPA}, 1")
            a.e(f"s_min_u32 s{sPA}, s{sPA}, 63")
            a.e(f"v_writelane_b32 v{vTR}, s{sPT}, m0")
            return
        if not PROF: return
        a.e(f"s_memtime s[{sPT}:{sPT+1}]")
        a.e("s_waitcnt lgkmcnt(0)")
        if i >= 0:
            a.e(f"s_sub_u32 s{sPP}, s{sPT}, s{sPP}")
            a.e(f"s_add_u32 s{sPA+i}, s{sPA+i}, s{sPP}")
        a.e(f"s_mov_b32 s{sPP}, s{sPT}")
    vLANE, vZERO = 1, 2
    MM = 74
    def epi_off(OF, tmp):
        a.e(f"s_mul_i32 s{sT0}, s{sB}, {EPB*8}")
        a.e(f"v_lshlrev_b32 v{OF}, 3, v0")
        a.e(f"v_add_u32 v{OF}, s{sT0}, v{OF}")
        a.e(f"v_add_u32 v{OF+1}, 8192, v{OF}")
        a.e(f"v_add_u32 v{OF+2}, 16384, v{OF}")
        a.e(f"v_add_u32 v{OF+3}, 24576, v{OF}")
        a.e(f"v_mov_b32 v{tmp}, s{sOOB}")
        a.e(f"v_cmp_gt_u32 vcc, {EPB - 3072}, v0")
        a.e(f"v_cndmask_b32 v{OF+3}, v{tmp}, v{OF+3}, vcc")
    def epi_pre(OF, tmp):
        a.e(f"s_load_dwordx2 s[{S_X}:{S_X+1}], s[0:1], 0")
        a.e(f"s_mov_b32 s{S_X+2}, {E*8}")
        epi_off(OF, tmp)
        a.e("s_waitcnt lgkmcnt(0)")
        for k in range(4):
            a.e(f"buffer_load_dwordx2 {vr(MM+2*k,2)}, v{OF+k}, s[{S_X}:{S_X+3}], 0 offen")
    T_ = 100

    a.e(f"s_cmp_ge_u32 s2, {NWG}")
    a.e("s_cbranch_scc1 K2_END")
    if cfg.get('rt'): a.e("s_memrealtime s[96:97]")
    if cfg.get('x_stag'):
        a.e(f"s_lshr_b32 s4, s2, 3")
        a.e(f"s_and_b32 s4, s4, {cfg.get('x_stagm', 1)}")
        a.e(f"s_mul_i32 s4, s4, {cfg['x_stag']}")
        a.e("K2_STG:")
        a.e("s_cmp_eq_u32 s4, 0")
        a.e("s_cbranch_scc1 K2_STD")
        a.e("s_sleep 8")
        a.e("s_sub_u32 s4, s4, 1")
        a.e("s_branch K2_STG")
        a.e("K2_STD:")
    if PROF:
        for i in range(11): a.e(f"s_mov_b32 s{sPA+i}, 0")
    stamp(-1)
    a.e(f"s_load_dwordx2 s[{S_WS}:{S_WS+1}], s[0:1], 104")
    a.e(f"s_load_dwordx2 s[{S_X}:{S_X+1}], s[0:1], 24")
    a.e(f"s_load_dwordx4 s[{S_Y}:{S_Y+3}], s[0:1], 56")
    a.e(f"s_load_dwordx2 s[{S_MD}:{S_MD+1}], s[0:1], 80")
    a.e(f"s_mov_b32 s{S_WS+2}, {WS_BYTES}")
    a.e(f"s_mov_b32 s{S_WS+3}, 0x00020000")
    a.e(f"s_mov_b32 s{S_X+2}, {E*2}")
    a.e(f"s_mov_b32 s{S_X+3}, 0x00020000")
    a.e(f"v_lshrrev_b32 v{T_}, 6, v0")
    a.e(f"v_and_b32 v{vLANE}, 63, v0")
    a.e(f"v_readfirstlane_b32 s{sWAVE}, v{T_}")
    a.e(f"s_and_b32 s{sB}, s2, 7")
    a.e(f"s_lshl_b32 s{sB}, s{sB}, 5")
    a.e(f"s_lshr_b32 s{sT0}, s2, 3")
    a.e(f"s_or_b32 s{sB}, s{sB}, s{sT0}")
    a.e(f"s_mov_b32 s{sFFF0}, 0xfff0")
    a.e(f"s_mov_b32 s{sHI}, 0xffff0000")
    a.e(f"s_mov_b32 s{sOOB}, 0x80000000")
    a.e(f"v_mov_b32 v{vZERO}, 0")
    for k in range(4):
        a.e(f"v_mov_b32 v{T_+4+k}, 0")
    a.e(f"v_lshlrev_b32 v{T_+8}, 4, v0")
    for k in range(3):
        a.e(f"ds_write_b128 v{T_+8}, {vr(T_+4,4)} offset:{k*16384}")
    a.e(f"v_cmp_gt_u32 vcc, {(K2_A - 3*16384)//16}, v0")
    a.e(f"s_mov_b64 exec, vcc")
    a.e(f"ds_write_b128 v{T_+8}, {vr(T_+4,4)} offset:{3*16384}")
    a.e(f"s_mov_b64 exec, -1")
    a.e("s_waitcnt lgkmcnt(0)")
    a.e(f"s_load_dwordx8 s[{S_WU+8}:{S_WU+15}], s[{S_MD}:{S_MD+1}], 0")
    a.e(f"s_cmp_ge_u32 s{sWAVE}, 8")
    a.e("s_cbranch_scc1 K2_CONS")

    vL12, vTB, vCN, vSCR, vFOUR, vL16 = range(3, 9)
    R = 10
    def P(c): return 18 + 4 * c
    U, KA, OLD = 50, 66, 82
    if PPRIO: a.e(f"s_setprio {PPRIO}")
    a.e(f"s_mov_b32 s{sT0}, {TILE_B}")
    a.e(f"v_mul_lo_u32 v{vTB}, v0, s{sT0}")
    K1B = cfg.get('k1v', 'b') == 'b'
    RL = 20 if K1B else R
    a.e(f"s_lshl_b32 s{sT0}, s{sB}, {4 if K1B else 5}")
    a.e(f"v_mul_u32_u24 v{T_+1}, {REC_STR if K1B else 8192}, v0")
    a.e(f"v_add_u32 v{T_+1}, s{sT0}, v{T_+1}")
    a.e(f"s_mov_b32 s{sT0}, {REC_OFF}")
    a.e(f"buffer_load_dwordx4 {vr(RL,4)}, v{T_+1}, s[{S_WS}:{S_WS+3}], s{sT0} offen")
    a.e(f"buffer_load_dwordx4 {vr(RL+4,4)}, v{T_+1}, s[{S_WS}:{S_WS+3}], s{sT0} offen offset:16")
    a.e("s_barrier")
    a.e(f"v_mul_u32_u24 v{vL12}, 12, v{vLANE}")
    a.e(f"v_lshlrev_b32 v{vL16}, 4, v{vLANE}")
    a.e(f"v_mov_b32 v{vFOUR}, 4")
    a.e(f"v_min_u32 v{vCN}, 1, v{vLANE}")
    a.e(f"v_lshlrev_b32 v{vSCR}, 3, v0")
    a.e(f"v_add_u32 v{vSCR}, {K2_SCR}, v{vSCR}")
    a.e(f"v_mov_b32 v{T_+2}, 0")
    a.e(f"v_mov_b32 v{T_+3}, 0")
    a.e(f"ds_write_b64 v{vSCR}, {vr(T_+2,2)}")
    a.e(f"s_mov_b32 s{sTG}, 0")
    for k in range(4):
        a.e(f"v_mov_b32 v{OLD+k}, 0")
    vPF, vPD = 86, 87
    PFM = cfg.get('k2_pf', 1)
    if PFM:
        a.e(f"s_lshr_b32 s{sT0}, s2, 3")
        a.e(f"s_lshl_b32 s{sT0}, s{sT0}, 3")
        a.e(f"s_add_u32 s{sT0}, s{sT0}, s{sWAVE}")
        a.e(f"s_mul_i32 s{sT0}, s{sT0}, {25*128}")
        a.e(f"v_min_u32 v{vPF}, 24, v{vLANE}")
        a.e(f"v_lshlrev_b32 v{vPF}, 7, v{vPF}")
        a.e(f"v_add_u32 v{vPF}, s{sT0}, v{vPF}")
    a.e(f"s_mov_b32 s{sJ}, 8")
    a.e(f"s_mov_b32 s{sWIN}, 0")
    a.e(f"s_mov_b32 s{sT0}, 0x05040100")
    a.e(f"s_mov_b32 s{sT1}, 0x07060302")
    a.e("s_waitcnt vmcnt(0) lgkmcnt(0)")
    if K1B:
        for k in range(8):
            a.e(f"v_perm_b32 v{R+k}, v{RL+4+(k>>1)}, v{RL+(k>>1)}, s{sT1 if k & 1 else sT0}")
    t = T_
    a.e(f"v_mov_b32 v{t}, 0")
    for k in range(8):
        a.e(f"v_sub_u32_sdwa v{t+1}, v{R+k}, v{R+k} dst_sel:DWORD dst_unused:UNUSED_PAD src0_sel:WORD_1 src1_sel:WORD_0")
        a.e(f"v_add_u32 v{t}, v{t}, v{t+1}")
    dpp_scan(a, t)
    a.e(f"v_lshl_or_b32 v{t}, v{t}, 4, 1")
    a.e("s_lshl_b64 exec, 1, 63")
    a.e(f"ds_add_u32 v{vZERO}, v{t} offset:{K2_NB}")
    a.e("s_mov_b64 exec, -1")
    stamp(0)

    def rotate():
        for k in range(7):
            a.e(f"v_mov_b32 v{R+k}, v{R+k+1}")
        a.e(f"v_mov_b32 v{R+7}, 0")
        a.e(f"s_sub_u32 s{sJ}, s{sJ}, 1")

    a.e("K2_PLOOP:")
    s_, e_, p0, n_, inc, S_, V_, x_, sl, y_, el = range(T_, T_ + 11)
    a.e(f"v_and_b32 v{s_}, 0xffff, v{R}")
    a.e(f"v_lshrrev_b32 v{e_}, 16, v{R}")
    a.e(f"v_lshrrev_b32 v{p0}, 1, v{s_}")
    a.e(f"v_add_u32 v{n_}, 1, v{e_}")
    a.e(f"v_cmp_gt_u32 s[{sM}:{sM+1}], v{e_}, v{s_}")
    a.e(f"v_lshrrev_b32 v{n_}, 1, v{n_}")
    a.e(f"v_sub_u32 v{n_}, v{n_}, v{p0}")
    a.e(f"v_cndmask_b32 v{n_}, 0, v{n_}, s[{sM}:{sM+1}]")
    a.e(f"v_mov_b32 v{inc}, v{n_}")
    dpp_scan(a, inc)
    a.e(f"v_readlane_b32 s{sTOT}, v{inc}, 63")
    a.e(f"s_cmp_lt_u32 s{sWIN}, s{sTOT}")
    a.e(f"s_cbranch_scc1 K2_FGO")
    a.e(f"s_cmp_eq_u32 s{sJ}, 0")
    a.e(f"s_cbranch_scc1 K2_FGO")
    rotate()
    a.e(f"s_mov_b32 s{sWIN}, 0")
    a.e(f"s_branch K2_PLOOP")
    a.e(f"K2_FGO:")
    def prefetch():
        a.e(f"s_mul_i32 s{sT0}, s{sJ}, 800000")
        a.e(f"s_sub_u32 s{sT0}, {MD_OFF + 8*800000}, s{sT0}")
        a.e(f"buffer_load_dword v{vPD}, v{vPF}, s[{S_WS}:{S_WS+3}], s{sT0} offen")
    if PFM == 1: prefetch()
    a.e(f"v_subrev_u32 v{inc}, s{sWIN}, v{inc}")
    a.e(f"v_sub_u32 v{S_}, v{inc}, v{n_}")
    a.e(f"v_add_u32 v{el}, -1, v{inc}")
    a.e(f"v_sub_u32 v{V_}, v{p0}, v{S_}")
    a.e(f"v_mad_i32_i24 v{V_}, v{V_}, 12, v{vTB}")
    a.e(f"v_cmp_le_i32 vcc, 0, v{S_}")
    a.e(f"v_and_b32 v{x_}, 1, v{s_}")
    a.e(f"s_and_b64 vcc, vcc, s[{sM}:{sM+1}]")
    a.e(f"v_max_i32 v{sl}, 0, v{S_}")
    a.e(f"v_cndmask_b32 v{x_}, 0, v{x_}, vcc")
    a.e(f"v_lshl_or_b32 v{x_}, v{x_}, 6, v{vCN}")
    a.e(f"v_and_b32 v{y_}, 1, v{e_}")
    a.e(f"v_lshlrev_b32 v{y_}, 7, v{y_}")
    def marker(val, slot, tmp):
        a.e(f"v_lshrrev_b32 v{tmp}, 3, v{slot}")
        a.e(f"v_and_b32 v{tmp}, 0x18, v{tmp}")
        a.e(f"v_lshlrev_b32 v{val}, v{tmp}, v{val}")
        a.e(f"v_lshrrev_b32 v{tmp}, 8, v{slot}")
        a.e(f"v_cmp_gt_u32 vcc, 512, v{slot}")
        a.e(f"v_and_b32 v{slot}, 63, v{slot}")
        a.e(f"v_sub_u32 v{slot}, v{slot}, v{vLANE}")
        a.e(f"v_lshl_add_u32 v{slot}, v{slot}, 1, v{tmp}")
        a.e(f"v_lshl_add_u32 v{slot}, v{slot}, 2, v{vSCR}")
    marker(x_, sl, s_)
    a.e(f"s_mov_b64 exec, vcc")
    a.e(f"ds_add_u32 v{sl}, v{x_}")
    a.e(f"s_mov_b64 exec, -1")
    marker(y_, el, s_)
    a.e(f"s_and_b64 exec, vcc, s[{sM}:{sM+1}]")
    a.e(f"ds_add_u32 v{el}, v{y_}")
    a.e(f"s_mov_b64 exec, -1")
    RAW, RW2, CN = T_ + 12, T_ + 14, T_ + 16
    AD = T_ + 18
    a.e(f"ds_read_b64 {vr(RAW,2)}, v{vSCR}")
    a.e(f"v_mov_b32 v{RW2}, 0")
    a.e(f"v_mov_b32 v{RW2+1}, 0")
    a.e(f"ds_write_b64 v{vSCR}, {vr(RW2,2)}")
    a.e(f"s_sub_u32 s{sT2}, s{sTOT}, s{sWIN}")
    a.e("s_waitcnt lgkmcnt(1)")
    for h in range(2):
        a.e(f"v_and_b32 v{CN+h}, 0x3f3f3f3f, v{RAW+h}")
    for h in range(2):
        a.e(f"v_lshlrev_b32 v{RW2+h}, 1, v{RAW+h}")
    mk = []
    for c in range(8):
        mk.append(f"v_cmp_le_i32_sdwa s[{MSK+4*c}:{MSK+4*c+1}], 0, sext(v{RW2+(c>>2)}) src0_sel:DWORD src1_sel:BYTE_{c&3}")
        mk.append(f"v_cmp_le_i32_sdwa s[{MSK+4*c+2}:{MSK+4*c+3}], 0, sext(v{RAW+(c>>2)}) src0_sel:DWORD src1_sel:BYTE_{c&3}")
    dp = [f"row_shr:{sh} row_mask:0xf bank_mask:0xf bound_ctrl:0" for sh in (1, 2, 4, 8)] + \
         ["row_bcast:15 row_mask:0xa bank_mask:0xf", "row_bcast:31 row_mask:0xc bank_mask:0xf"]
    for d_ in dp:
        for h in range(2):
            a.e(f"v_add_u32_dpp v{CN+h}, v{CN+h}, v{CN+h} {d_}")
        a.e(mk.pop(0))
    a.e(f"v_readlane_b32 s{sT0}, v{CN}, 63")
    a.e(f"v_readlane_b32 s{sT1}, v{CN+1}, 63")
    a.e(mk.pop(0)); a.e(mk.pop(0))
    a.e(f"s_mul_i32 s{sM}, s{sT0}, 0x01010101")
    a.e(f"s_lshl_b32 s{sT0}, s{sM}, 8")
    a.e(f"s_lshr_b32 s{sM}, s{sM}, 24")
    a.e(f"s_lshl_b32 s{sT1}, s{sT1}, 8")
    a.e(f"s_add_u32 s{sT1}, s{sT1}, s{sM}")
    a.e(f"s_mul_i32 s{sT1}, s{sT1}, 0x01010101")
    a.e(f"v_add_u32 v{CN}, s{sT0}, v{CN}")
    a.e(f"v_add_u32 v{CN+1}, s{sT1}, v{CN+1}")
    for c in range(8):
        a.e(f"v_lshlrev_b32_sdwa v{AD+c}, 2, v{CN+(c>>2)} dst_sel:DWORD dst_unused:UNUSED_PAD src0_sel:DWORD src1_sel:BYTE_{c&3}")
        a.e(f"ds_bpermute_b32 v{AD+c}, v{AD+c}, v{V_}")
    for m_ in mk: a.e(m_)
    if PFM == 2: prefetch()
    a.e(f"v_mov_b32 v{s_}, s{sOOB}")
    a.e(f"v_add_u32 v{e_}, {768*4}, v{vL12}")
    for c in range(8):
        a.e(f"v_cmp_gt_i32 vcc, s{sT2}, v{vLANE}")
        a.e(f"s_sub_u32 s{sT2}, s{sT2}, 64")
        a.e(f"s_and_b64 s[{MSK+4*c}:{MSK+4*c+1}], s[{MSK+4*c}:{MSK+4*c+1}], vcc")
        a.e(f"s_and_b64 s[{MSK+4*c+2}:{MSK+4*c+3}], s[{MSK+4*c+2}:{MSK+4*c+3}], vcc")
        a.e(f"s_waitcnt lgkmcnt({7-c})")
        a.e(f"v_add_u32 v{AD+c}, v{AD+c}, v{vL12 if c < 4 else e_}")
        a.e(f"v_cndmask_b32 v{AD+c}, v{s_}, v{AD+c}, vcc")
        a.e(f"buffer_load_dwordx3 {vr(P(c),3)}, v{AD+c}, s[{S_WS}:{S_WS+3}], 0 offen offset:{768*(c&3)}{PAYNT}")
    a.e(f"s_add_u32 s{sWIN}, s{sWIN}, 512")
    a.e(f"s_cmp_lt_u32 s{sWIN}, s{sTOT}")
    a.e(f"s_cbranch_scc1 K2_FDONE")
    a.e(f"s_mov_b32 s{sWIN}, 0")
    a.e(f"s_cmp_eq_u32 s{sJ}, 0")
    a.e(f"s_cbranch_scc1 K2_FDONE")
    rotate()
    a.e(f"K2_FDONE:")
    stamp(1)
    if 'k2_sprio' in cfg and cfg.get('k2_sprio_at', 0) == 2: a.e(f"s_setprio {cfg['k2_sprio']}")
    vPL = T_ + 27
    poll(vPL, K2_FP, sTG)
    a.e(f"s_add_u32 s{sTG}, s{sTG}, 32")
    for c in range(8):
        a.e(f"s_waitcnt vmcnt({7-c})")
        for h in range(2):
            i = 2 * c + h
            a.e(f"v_lshlrev_b32_sdwa v{KA+i}, 2, v{P(c)+2*h} dst_sel:DWORD dst_unused:UNUSED_PAD src0_sel:DWORD src1_sel:BYTE_1")
        for h in range(2):
            i = 2 * c + h
            a.e(f"s_mov_b64 exec, s[{MSK+2*i}:{MSK+2*i+1}]")
            a.e(f"ds_add_rtn_u32 v{U+i}, v{KA+i}, v{vFOUR}")
        a.e("s_mov_b64 exec, -1")
    signal(vFOUR, K2_FH)
    stamp(2)
    poll(vPL, K2_FH, sTG)
    stamp(3)
    if 'k2_sprio' in cfg and cfg.get('k2_sprio_at', 0) == 0: a.e(f"s_setprio {cfg['k2_sprio']}")
    NW, CC, TT, BS = T_, T_ + 4, T_ + 8, T_ + 12
    a.e(f"ds_read_b128 {vr(NW,4)}, v{vL16}")
    signal(vFOUR, K2_FP)
    a.e("s_waitcnt lgkmcnt(1)")
    for k in range(4):
        a.e(f"v_sub_u32 v{CC+k}, v{NW+k}, v{OLD+k}")
    a.e(f"v_add_u32 v{TT}, v{CC}, v{CC+1}")
    a.e(f"v_add3_u32 v{TT}, v{TT}, v{CC+2}, v{CC+3}")
    a.e(f"v_sub_u32 v{TT+1}, {K2_SW}, v{TT}")
    dpp_scan(a, TT)
    a.e(f"v_add_u32 v{TT+1}, v{TT+1}, v{TT}")
    a.e(f"v_readlane_b32 s{sN}, v{TT}, 63")
    for k in range(4):
        a.e(f"v_sub_u32 v{BS+k}, v{TT+1}, v{OLD+k}")
        if k < 3:
            a.e(f"v_add_u32 v{TT+1}, v{TT+1}, v{CC+k}")
        a.e(f"v_mov_b32 v{OLD+k}, v{NW+k}")
    a.e(f"ds_write_b128 v{vL16}, {vr(BS,4)} offset:{K2_BASE}")
    for i in range(16):
        a.e(f"ds_read_b32 v{KA+i}, v{KA+i} offset:{K2_BASE}")
    a.e(f"s_sub_u32 s{sT1}, s{sTG}, 32")
    stamp(4)
    poll(vPL, K2_FR, sT1)
    stamp(5)
    if 'k2_sprio' in cfg and cfg.get('k2_sprio_at', 0) == 1: a.e(f"s_setprio {cfg['k2_sprio']}")
    a.e(f"s_cmp_lg_u32 s{sWAVE}, 0")
    a.e(f"s_cbranch_scc1 K2_NOPAD")
    a.e(f"s_add_u32 s{sT0}, s{sN}, {K2_SW}")
    a.e(f"v_lshl_add_u32 v{TT}, v{vLANE}, 2, s{sT0}")
    a.e(f"v_mov_b32 v{TT+1}, {hex(DUMMY)}")
    a.e(f"ds_write_b32 v{TT}, v{TT+1}")
    a.e(f"v_mov_b32 v{TT+3}, s{sN}")
    a.e(f"ds_write_b32 v{vZERO}, v{TT+3} offset:{K2_NCELL}")
    a.e("K2_NOPAD:")
    for i in range(16):
        a.e(f"v_add_u32 v{U+i}, v{U+i}, v{KA+i}")
        a.e(f"v_lshrrev_b32 v{KA+i}, 1, v{U+i}")
    for i in range(16):
        c, h = i >> 1, i & 1
        a.e(f"s_mov_b64 exec, s[{MSK+2*i}:{MSK+2*i+1}]")
        a.e(f"ds_write_b32 v{U+i}, v{P(c)+2*h}")
        a.e(f"ds_write_b16{'_d16_hi' if h else ''} v{KA+i}, v{P(c)+1} offset:{K2_SA - K2_SW//2}")
    signal(vFOUR, K2_FS)
    stamp(4)
    if 'k2_sprio' in cfg: a.e(f"s_setprio {PPRIO}")
    a.e(f"s_cmp_lg_u32 s{sN}, 0")
    a.e("s_cbranch_scc1 K2_PLOOP")
    epi_pre(T_ + 8, T_ + 12)
    a.e("s_branch K2_EPI")

    a.e("K2_CONS:")
    vCT, vA4, vA2 = 3, 4, 5
    SW_, SA_ = 6, 19
    CUR = 32
    NCOL = {3: 5, 2: 4, 4: 7, 5: 7}[D]
    COL = {3: [0,1,2,3,0,1,2,3,0,1,2,3,4], 2: [0,1,2,0,1,2,0,1,2,0,1,2,3],
           4: [0,1,2,3,4,5,0,1,2,3,4,5,6], 5: [0,1,2,3,4,5,0,1,2,3,4,5,6]}[D]
    GP = 60
    assert CUR + 4 * NCOL <= GP
    MXR, WOP = 32, 36
    DB = [T_, 40]
    Y = T_ + 16
    S_W1, S_W2, S_C, sGI = 40, 44, 48, 56
    import math, struct
    def f2h(x): return hex(struct.unpack('<I', struct.pack('<f', x))[0])
    def h2f(x): return struct.unpack('<f', struct.pack('<I', x))[0]
    KAP = math.sqrt(10.0 * math.log2(math.e))
    a.e(f"s_sub_u32 s{sWAVE}, s{sWAVE}, 8")
    a.e(f"v_add_u32 v{vCT}, -512, v0")
    a.e(f"s_mul_i32 s{sT0}, s{sB}, {EPB*2}")
    a.e(f"v_lshlrev_b32 v{T_+2}, 1, v{vCT}")
    a.e(f"v_add_u32 v{T_+2}, s{sT0}, v{T_+2}")
    a.e(f"v_add_u32 v{T_+3}, 4096, v{T_+2}")
    for k in range(7):
        a.e(f"v_mov_b32 v{GP+2*k}, 0")
    for k in range(7):
        a.e(f"buffer_load_short_d16_hi v{GP+2*k}, v{T_+2+(k>>2)}, s[{S_X}:{S_X+3}], 0 offen offset:{(k&3)*1024}")
    a.e("s_barrier")
    a.e(f"v_lshlrev_b32 v{T_}, 4, v{vLANE}")
    a.e(f"s_mov_b32 s{sT1}, {MX_OFF}")
    a.e(f"buffer_load_dwordx4 {vr(MXR,4)}, v{T_}, s[{S_WS}:{S_WS+3}], s{sT1} offen")
    a.e(f"s_mov_b32 s{S_W1}, s{S_Y+2}")
    a.e(f"s_mov_b32 s{S_W1+1}, s{S_Y+3}")
    a.e(f"s_mov_b32 s{S_W1+2}, 128")
    a.e(f"s_mov_b32 s{S_W1+3}, 0x00020000")
    a.e(f"s_mov_b32 s{S_W2}, s{S_Y}")
    a.e(f"s_mov_b32 s{S_W2+1}, s{S_Y+1}")
    a.e(f"s_mov_b32 s{S_W2+2}, 64")
    a.e(f"s_mov_b32 s{S_W2+3}, 0x00020000")
    for q in range(8):
        a.e(f"v_mov_b32 v{WOP+q}, 0")
    a.e(f"v_and_b32 v{T_+4}, 1, v{vLANE}")
    a.e(f"v_and_b32 v{T_+5}, 2, v{vLANE}")
    a.e(f"v_lshl_or_b32 v{T_+4}, v{T_+4}, 3, v{T_+5}")
    a.e(f"v_bfe_u32 v{T_+5}, v{vLANE}, 3, 1")
    a.e(f"v_lshl_or_b32 v{T_+4}, v{T_+5}, 2, v{T_+4}")
    a.e(f"v_and_b32 v{T_+5}, 3, v{vLANE}")
    a.e(f"v_lshlrev_b32 v{T_+5}, 1, v{T_+5}")
    a.e(f"s_mov_b32 exec_lo, 0x00000f0f")
    a.e(f"s_mov_b32 exec_hi, 0x0000f0f0")
    for r in range(8):
        a.e(f"buffer_load_short_d16{'_hi' if r & 1 else ''} v{WOP+(r>>1)+4*(r&1)}, v{T_+4}, s[{S_W1}:{S_W1+3}], 0 offen offset:{16*r}")
    a.e(f"s_mov_b32 exec_lo, 0x000f0000")
    a.e(f"s_mov_b32 exec_hi, 0x00f00000")
    for r in range(8):
        a.e(f"buffer_load_short_d16{'_hi' if r & 1 else ''} v{WOP+(r>>1)+4*(r&1)}, v{T_+5}, s[{S_W2}:{S_W2+3}], 0 offen offset:{8*r}")
    a.e(f"s_mov_b64 exec, -1")
    epi_pre(T_ + 8, T_ + 12)
    a.e(f"s_add_u32 s{S_MD}, s{S_WS}, {MD_OFF}")
    a.e(f"s_addc_u32 s{S_MD+1}, s{S_WS+1}, 0")
    a.e(f"s_or_b32 s{S_MD+1}, s{S_MD+1}, 0x80000")
    a.e(f"s_mov_b32 s{S_MD+2}, {E}")
    a.e(f"s_mov_b32 s{S_MD+3}, 0x00020000")
    for r in range(8):
        a.e(f"s_mov_b32 s{S_C+r}, {f2h(-KAP * h2f(CENTERS[r]))}")
    RBS = [4 + 4 * k for k in range(7)]
    X = Y
    for k in range(7):
        dv = GP + 2 * k
        a.e(f"s_waitcnt vmcnt({6 - k + 21})")
        a.e(f"v_mul_f32 v{dv}, {f2h(KAP)}, v{dv}")
        for q in range(4):
            a.e(f"v_pk_add_f32 {vr(X+2*q,2)}, {vr(dv,2)}, s[{S_C+2*q}:{S_C+2*q+1}] op_sel_hi:[0,1]")
        for q in range(4):
            a.e(f"v_pk_mul_f32 {vr(X+2*q,2)}, {vr(X+2*q,2)}, {vr(X+2*q,2)}")
        for r in range(8):
            a.e(f"v_exp_f32 v{X+r}, -v{X+r}")
        for q in range(4):
            a.e(f"v_cvt_pk_bf16_f32 v{RBS[k]+q}, v{X+2*q}, v{X+2*q+1}")
    a.e("s_waitcnt vmcnt(4)")
    for q in range(4):
        a.e(f"v_or_b32 v{WOP+q}, v{WOP+q}, v{WOP+4+q}")
    def mf(k):
        a.e(f"v_mfma_f32_32x32x16_bf16 {vr(DB[k&1],16)}, {vr(WOP,4)}, {vr(RBS[k],4)}, 0")
    mf(0)
    t = Y
    a.e(f"v_max_u32 v{MXR}, v{MXR}, v{MXR+1}")
    a.e(f"v_max_u32 v{MXR+2}, v{MXR+2}, v{MXR+3}")
    a.e(f"v_max_u32 v{MXR}, v{MXR}, v{MXR+2}")
    dpp_scan(a, MXR, "v_max_u32")
    a.e("K2_NBP:")
    a.e(f"ds_read_b32 v{t}, v{vZERO} offset:{K2_NB}")
    a.e("s_waitcnt lgkmcnt(0)")
    a.e(f"v_readfirstlane_b32 s{sT0}, v{t}")
    a.e(f"s_and_b32 s{sT0}, s{sT0}, 15")
    a.e(f"s_cmp_lt_u32 s{sT0}, 8")
    a.e("s_cbranch_scc1 K2_NBP")
    a.e(f"v_lshrrev_b32 v{t}, 4, v{t}")
    a.e(f"v_cvt_f32_u32 v{t}, v{t}")
    a.e(f"v_mul_f32 v{t}, v{t}, v{MXR}")
    a.e(f"v_rcp_f32 v{t}, v{t}")
    a.e(f"v_mul_f32 v{t}, 0x4efc0000, v{t}")
    a.e(f"v_min_f32 v{t}, 0x5d800000, v{t}")
    a.e(f"v_rcp_f32 v{t+1}, v{t}")
    a.e(f"v_readlane_b32 s{sG}, v{t}, 63")
    a.e(f"v_lshlrev_b32 v{Y+8}, 4, v{vCT}")
    a.e(f"v_add_u32 v{Y+8}, {K2_A}, v{Y+8}")
    a.e(f"v_readlane_b32 s{sGI}, v{t+1}, 63")
    a.e(f"s_mov_b32 s{sT0}, 0x21800000")
    for k in range(7):
        if k < 6: mf(k + 1)
        o = DB[k & 1]
        for d in range(4):
            a.e(f"v_add_f32 v{Y+d}, abs(v{o+2*d}), abs(v{o+2*d+1})")
        a.e(f"v_max3_f32 v{Y}, v{Y}, v{Y+1}, v{Y+2}")
        a.e(f"v_max3_f32 v{Y+2}, v{Y}, v{Y+3}, s{sT0}")
        a.e(f"v_rcp_f32 v{Y}, v{Y+2}")
        a.e(f"v_mul_f32 v{Y+2}, s{sGI}, v{Y+2}")
        a.e(f"v_mul_f32 v{Y}, s{sG}, v{Y}")
        for q in range(2):
            a.e(f"v_pk_mul_f32 {vr(o+8+2*q,2)}, {vr(o+8+2*q,2)}, {vr(Y+2,2)} op_sel_hi:[1,0]")
        a.e(f"v_add_f32 v{Y+1}, v{Y}, v{Y}")
        for q in range(2):
            a.e(f"v_cvt_pk_bf16_f32 v{GP+2*k+q}, v{o+8+2*q}, v{o+9+2*q}")
        for d in range(4):
            a.e(f"v_pk_mul_f32 {vr(o+2*d,2)}, {vr(o+2*d,2)}, {vr(Y,2)}")
        for d in range(4):
            a.e(f"v_cvt_pk_bf16_f32 v{Y+4+d}, v{o+2*d}, v{o+2*d+1}")
        if k == 6:
            a.e(f"v_cmp_gt_u32 vcc, {EPB - 3072}, v{vCT}")
            a.e(f"s_mov_b64 exec, vcc")
        a.e(f"ds_write_b128 v{Y+8}, {vr(Y+4,4)} offset:{8192*k}")
        if k == 6:
            a.e(f"s_mov_b64 exec, -1")
    for s in range(NS):
        a.e(f"v_mov_b32 v{SW_+s}, {hex(DUMMY)}")
        a.e(f"v_mov_b32 v{SA_+s}, 0")
    a.e(f"s_mov_b32 s{sCNT}, 0")
    stamp(6)

    uid = [0]
    stubs = []
    AVB = [T_, T_ + 12, T_ + 16]
    ACOL = [0, 1] * 6 + [2]
    assert LATE == 2
    def alpha1(W, cur):
        G0, L16, C_ = cur, cur + 2, cur + 3
        a.e(f"v_and_b32 v{L16}, {hex(cfg.get('x_gmask', 0xfffff))}, v{W}")
        if not cfg.get('x_nog'):
            a.e(f"buffer_load_dwordx2 {vr(G0,2)}, v{L16}, s[{S_MD}:{S_MD+3}], 0 idxen")
    def alpha2(W, A, cur):
        G0, L16, C_ = cur, cur + 2, cur + 3
        a.e(f"v_mul_f32 v{C_}, 0.15915494, v{A}")
        a.e(f"v_fract_f32 v{C_}, v{C_}")
        a.e(f"v_cos_f32 v{C_}, v{C_}")
        a.e(f"v_and_b32_sdwa v{L16}, v{W}, s{sFFF0} dst_sel:DWORD dst_unused:UNUSED_PAD src0_sel:WORD_1 src1_sel:DWORD" if cfg.get('x_lin',0) < 2 else f"v_lshlrev_b32 v{L16}, 4, v{vLANE}")
        a.e(f"v_fma_f32 v{T_+8}, v{C_}, v{C_}, -0.5")
        a.e(f"v_cvt_pk_bf16_f32 v{C_}, v{C_}, v{T_+8}")
    def rdA(cur, AV_):
        a.e(f"ds_read_b128 {vr(AV_,4)}, v{cur+2} offset:{K2_A}")
    def beta(cur, AV_, lg, vm):
        G0, L16, C_ = cur, cur + 2, cur + 3
        M_ = T_ + 4
        a.e(f"v_lshrrev_b32 v{L16}, 2, v{L16}" if not cfg.get('x_lin') else f"v_lshlrev_b32 v{L16}, 2, v{vLANE}")
        if lg is not None:
            a.e(f"s_waitcnt lgkmcnt({lg})")
        for d in range(4):
            a.e(f"v_dot2_f32_bf16 v{AV_+d}, v{AV_+d}, v{C_}, 0")
        a.e(f"s_waitcnt vmcnt({vm})")
        a.e(f"v_lshlrev_b32 v{M_}, 16, v{G0}")
        a.e(f"v_and_b32 v{M_+1}, s{sHI}, v{G0}")
        a.e(f"v_lshlrev_b32 v{M_+2}, 16, v{G0+1}")
        a.e(f"v_and_b32 v{M_+3}, s{sHI}, v{G0+1}")
        if cfg.get('k2_pk', True):
            for d in range(0, 4, 2):
                a.e(f"v_pk_mul_f32 {vr(M_+d,2)}, {vr(M_+d,2)}, {vr(AV_+d,2)}")
        else:
            for d in range(4):
                a.e(f"v_mul_f32 v{M_+d}, v{M_+d}, v{AV_+d}")
        for d in range(4):
            a.e(f"v_cvt_rpi_i32_f32 v{M_+d}, v{M_+d}")
        for d in range(4):
            a.e(f"ds_add_u32 v{L16}, v{M_+d} offset:{K2_ACC + d*ACC_STR}")
    def cur(s): return CUR + 4 * COL[s]
    def av(s): return AVB[ACOL[s]]
    def step(s, cnt_of, lg, stub=False):
        p = (s - D) % NS
        pn = (p + 1) % NS
        uid[0] += 1
        alpha1(SW_ + s, cur(s))
        rdA(cur(pn), av(pn))
        alpha2(SW_ + s, SA_ + s, cur(s))
        a.e(f"s_cmp_le_u32 s{cnt_of(p)}, {p}")
        if stub:
            a.e(f"s_cbranch_scc1 K2_ST{uid[0]}")
            stubs.append(uid[0])
        else:
            a.e(f"s_cbranch_scc1 K2_SB{uid[0]}")
        beta(cur(p), av(p), lg, D)
        a.e(f"K2_SB{uid[0]}:")
    def readslot(s):
        uid[0] += 1
        a.e(f"s_cmp_le_u32 s{sCNT}, {s}")
        a.e(f"s_cbranch_scc1 K2_RD{uid[0]}")
        a.e(f"ds_read_b32 v{SW_+s}, v{vA4} offset:{256*s}")
        a.e(f"ds_read_u16_d16_hi v{SA_+s}, v{vA2} offset:{128*s}")
        a.e(f"s_branch K2_RE{uid[0]}")
        a.e(f"K2_RD{uid[0]}:")
        a.e(f"v_mov_b32 v{SW_+s}, {hex(DUMMY)}")
        a.e(f"K2_RE{uid[0]}:")
    for c_ in range(NCOL):
        a.e(f"v_mov_b32 v{CUR+4*c_+2}, 0")
    vC4 = T_ + 9
    a.e(f"v_mov_b32 v{vC4}, 4")
    signal(vC4, K2_FS)
    a.e(f"s_mov_b32 s{sTG}, 32")
    if cfg.get('k2_cprio', 0): a.e(f"s_setprio {cfg['k2_cprio']}")
    a.e("K2_CLOOP:")
    a.e(f"ds_read_b64 {vr(T_+10,2)}, v{vZERO} offset:{K2_FS}")
    a.e(f"s_mov_b32 s{sCNP}, s{sCNT}")
    a.e(f"s_add_u32 s{sTG}, s{sTG}, 32")
    step(NS - 2, lambda p: sCNP, 6, stub=True)
    a.e("s_waitcnt lgkmcnt(4)")
    stamp(7)
    a.e("K2_CPOLL:")
    a.e(f"v_readfirstlane_b32 s{sT0}, v{T_+10}")
    a.e(f"v_readfirstlane_b32 s{sN}, v{T_+11}")
    a.e(f"s_cmp_lt_u32 s{sT0}, s{sTG}")
    a.e("s_cbranch_scc1 K2_CPOLL2")
    stamp(8)
    a.e(f"s_add_u32 s{sT0}, s{sN}, 255")
    a.e(f"s_lshr_b32 s{sT0}, s{sT0}, 8")
    a.e(f"s_mul_i32 s{sT1}, s{sT0}, s{sWAVE}")
    a.e(f"s_add_u32 s{sT0}, s{sT1}, s{sT0}")
    a.e(f"s_lshr_b32 s{sT1}, s{sT1}, 3")
    a.e(f"s_lshr_b32 s{sT0}, s{sT0}, 3")
    a.e(f"s_sub_u32 s{sCNT}, s{sT0}, s{sT1}")
    a.e(f"s_lshl_b32 s{sT1}, s{sT1}, 7")
    a.e(f"s_add_u32 s{sT0}, s{sT1}, {K2_SA}")
    a.e(f"s_lshl_b32 s{sT1}, s{sT1}, 1")
    a.e(f"s_add_u32 s{sT1}, s{sT1}, {K2_SW}")
    a.e(f"v_lshl_add_u32 v{vA4}, v{vLANE}, 2, s{sT1}")
    a.e(f"v_lshl_add_u32 v{vA2}, v{vLANE}, 1, s{sT0}")
    a.e(f"s_cmp_lt_u32 s{sCNT}, {NS-1}")
    a.e("s_cbranch_scc1 K2_RSLOW")
    for s in range(NS - 1):
        a.e(f"ds_read_b32 v{SW_+s}, v{vA4} offset:{256*s}")
        a.e(f"ds_read_u16_d16_hi v{SA_+s}, v{vA2} offset:{128*s}")
    a.e("K2_RDONE:")
    step(NS - 1, lambda p: sCNP, None, stub=True)
    a.e(f"s_cmp_eq_u32 s{sN}, 0")
    a.e("s_cbranch_scc1 K2_CFIN")
    a.e("s_waitcnt lgkmcnt(4)")
    readslot(NS - 1)
    a.e(f"s_cmp_gt_u32 s{sCNT}, {NS}")
    a.e("s_cbranch_scc1 K2_EXTRA")
    a.e("K2_NOEXTRA:")
    signal(vC4, K2_FR)
    for s in range(NS - LATE):
        p = (s - D) % NS
        if TRACE and s in cfg.get('trace_steps', [0, 4, 8]): stamp(9)
        step(s, lambda p: sCNP if p >= NS - D else sCNT, None if s == 0 else (1 if p == 0 else 5))
    a.e("s_branch K2_CLOOP")
    for u in stubs:
        a.e(f"K2_ST{u}:")
        a.e("s_waitcnt lgkmcnt(0)")
        a.e(f"s_branch K2_SB{u}")
    a.e("K2_CPOLL2:")
    a.e(f"ds_read_b64 {vr(T_+10,2)}, v{vZERO} offset:{K2_FS}")
    a.e("s_waitcnt lgkmcnt(0)")
    a.e("s_branch K2_CPOLL")
    a.e("K2_RSLOW:")
    for s in range(NS - 1):
        readslot(s)
    a.e("s_branch K2_RDONE")
    a.e("K2_EXTRA:")
    XW, XC, XA = T_ + 20, T_ + 24, T_ - 4
    for s in range(NS, 16):
        if s > NS:
            a.e(f"s_cmp_le_u32 s{sCNT}, {s}")
            a.e("s_cbranch_scc1 K2_NOEXTRA")
        a.e(f"v_mov_b32 v{XW+1}, 0")
        a.e(f"ds_read_b32 v{XW}, v{vA4} offset:{256*s}")
        a.e(f"ds_read_u16_d16_hi v{XW+1}, v{vA2} offset:{128*s}")
        a.e("s_waitcnt lgkmcnt(0)")
        alpha1(XW, XC)
        alpha2(XW, XW + 1, XC)
        rdA(XC, XA)
        beta(XC, XA, 0, 0)
    a.e("s_branch K2_NOEXTRA")
    a.e("K2_CFIN:")
    for i in range(D):
        p = NS - D + i
        uid[0] += 1
        a.e(f"s_cmp_le_u32 s{sCNP}, {p}")
        a.e(f"s_cbranch_scc1 K2_SB{uid[0]}")
        if i > 0: rdA(cur(p), av(p))
        beta(cur(p), av(p), 0, D - 1 - i)
        a.e(f"K2_SB{uid[0]}:")
    a.e(f"v_lshlrev_b32 v{T_}, 3, v{vCT}")
    a.e(f"v_add_u32 v{T_}, {K2_SA}, v{T_}")
    for k in range(7):
        a.e(f"ds_write_b64 v{T_}, {vr(GP+2*k,2)} offset:{4096*k}")

    a.e("K2_EPI:")
    a.e(f"s_load_dwordx2 s[{S_Y}:{S_Y+1}], s[0:1], 88")
    a.e(f"s_mov_b32 s{S_Y+2}, {E*8}")
    a.e(f"s_mov_b32 s{S_Y+3}, 0x00020000")
    OF, AC, UU, GG = 10, 22, 38, 14
    epi_off(OF, T_)
    a.e(f"v_lshlrev_b32 v{T_+1}, 2, v0")
    a.e(f"v_lshlrev_b32 v{T_+2}, 3, v0")
    a.e(f"v_add_u32 v{T_+2}, {K2_SA}, v{T_+2}")
    for d in range(4):
        for h in range(2):
            src = S_WU + 8 + 2 * d + h
            a.e(f"s_lshl_b32 s{S_WA+4*d+2*h}, s{src}, 16")
            a.e(f"s_and_b32 s{S_WA+4*d+2*h+1}, s{src}, s{sHI}")
    a.e("s_waitcnt vmcnt(0) lgkmcnt(0)")
    a.e("s_barrier")
    for k in range(4):
        for d in range(4):
            a.e(f"ds_read_b32 v{AC+4*k+d}, v{T_+1} offset:{K2_ACC + d*ACC_STR + 4096*k}")
        a.e(f"ds_read_b64 {vr(GG+2*k,2)}, v{T_+2} offset:{8192*k}")
        if k == 1:
            a.e("s_waitcnt lgkmcnt(0)")
    a.e("s_waitcnt lgkmcnt(0)")
    for k in range(4):
        for d in range(4):
            a.e(f"v_cvt_f32_i32 v{AC+4*k+d}, v{AC+4*k+d}")
        for dp_ in range(4):
            a.e(f"v_mul_f32 v{UU+4*k+dp_}, s{S_WA+dp_}, v{AC+4*k}")
        for d in range(1, 4):
            for dp_ in range(4):
                a.e(f"v_fmac_f32 v{UU+4*k+dp_}, s{S_WA+4*d+dp_}, v{AC+4*k+d}")
        a.e(f"v_lshlrev_b32 v{AC+4*k}, 16, v{GG+2*k}")
        a.e(f"v_and_b32 v{AC+4*k+1}, s{sHI}, v{GG+2*k}")
        a.e(f"v_lshlrev_b32 v{AC+4*k+2}, 16, v{GG+2*k+1}")
        a.e(f"v_and_b32 v{AC+4*k+3}, s{sHI}, v{GG+2*k+1}")
    for k in range(4):
        a.e(f"v_lshlrev_b32 v{T_+4}, 16, v{MM+2*k}")
        a.e(f"v_and_b32 v{T_+5}, s{sHI}, v{MM+2*k}")
        a.e(f"v_lshlrev_b32 v{T_+6}, 16, v{MM+2*k+1}")
        a.e(f"v_and_b32 v{T_+7}, s{sHI}, v{MM+2*k+1}")
        for d in range(4):
            a.e(f"v_fmac_f32 v{T_+4+d}, v{UU+4*k+d}, v{AC+4*k+d}")
        a.e(f"v_cvt_pk_bf16_f32 v{MM+2*k}, v{T_+4}, v{T_+5}")
        a.e(f"v_cvt_pk_bf16_f32 v{MM+2*k+1}, v{T_+6}, v{T_+7}")
        a.e(f"buffer_store_dwordx2 {vr(MM+2*k,2)}, v{OF+k}, s[{S_Y}:{S_Y+3}], 0 offen")
    if PROF:
        a.e("s_waitcnt vmcnt(0)")
        stamp(10)
        a.e(f"s_cmp_lg_u32 s2, 77")
        a.e("s_cbranch_scc1 K2_END")
        a.e(f"s_load_dwordx2 s[{S_X}:{S_X+1}], s[0:1], 96")
        a.e(f"s_mov_b32 s{S_X+2}, 256")
        a.e("s_waitcnt lgkmcnt(0)")
        a.e("s_mov_b64 exec, 1")
        for i in range(11):
            a.e(f"s_lshl_b32 s{sPA+i}, s{sPA+i}, 5")
            a.e(f"v_mov_b32 v1, s{sPA+i}")
            a.e(f"v_mov_b32 v2, {4*i}")
            a.e(f"buffer_atomic_add v1, v2, s[{S_X}:{S_X+3}], 0 offen")
    if TRACE:
        a.e("s_waitcnt vmcnt(0)")
        stamp(10)
        a.e(f"s_cmp_lg_u32 s2, {cfg.get('trace_wg', 77)}")
        a.e("s_cbranch_scc1 K2_END")
        a.e(f"s_load_dwordx2 s[{S_X}:{S_X+1}], s[0:1], 96")
        a.e(f"s_mov_b32 s{S_X+2}, 4096")
        a.e("s_waitcnt lgkmcnt(0)")
        a.e(f"v_lshlrev_b32 v1, 2, v0")
        a.e(f"buffer_store_dword v{vTR}, v1, s[{S_X}:{S_X+3}], 0 offen")
    if cfg.get('rt'): rt_end(a, 1, S_X)
    a.e("K2_END:")
    a.e("s_endpgm")
    return fix_hazards(a.lines)
```

```python
import sys, json
from consts import *
import k1, k1b
def gen_k1(cfg):
    return (k1 if cfg.get('k1v','b')=='a' else k1b).gen_k1(cfg)
import k2, k2b
def gen_k2(cfg):
    return (k2 if cfg.get("k2v","b")=="a" else k2b).gen_k2(cfg)

NAME = "standalone__molecular_angular_gemnet__graph"
def build(cfg):
    hdr = open("cdna_kernels/%s.s.ref" % NAME).read().split("; Override launch")[0]
    out = [hdr.rstrip()]
    out.append(f"; @launch kernel=gemnet_part_kernel grid=({NWG},1,1) block=(1024,1,1) lds={K1_LDS if cfg.get('k1v','b')=='a' else K1B_LDS}")
    out.append(f"; @launch kernel={NAME}_kernel grid=({NWG},1,1) block=(1024,1,1) lds={K2_LDS}")
    out.append('.amdgcn_target "amdgcn-amd-amdhsa--gfx950"')
    out.append(".text")
    for nm, body in (("gemnet_part_kernel", gen_k1(cfg)), (NAME + "_kernel", gen_k2(cfg))):
        out.append(f".globl {nm}")
        out.append(".p2align 8")
        out.append(f".type {nm},@function")
        out.append(f"{nm}:")
        out += body
    out.append('.section .rodata,"a"')
    for nm in ("gemnet_part_kernel", NAME + "_kernel"):
        out.append(".p2align 6")
        out.append(f".amdhsa_kernel {nm}")
        out.append("  .amdhsa_next_free_vgpr 128")
        out.append("  .amdhsa_next_free_sgpr 102")
        out.append("  .amdhsa_accum_offset 128")
        out.append("  .amdhsa_group_segment_fixed_size 0")
        out.append("  .amdhsa_kernarg_size 112")
        out.append("  .amdhsa_user_sgpr_count 2")
        out.append("  .amdhsa_user_sgpr_kernarg_segment_ptr 1")
        out.append("  .amdhsa_system_sgpr_workgroup_id_x 1")
        out.append(".end_amdhsa_kernel")
    return "\n".join(out) + "\n"

if __name__ == "__main__":
    path = sys.argv[1]
    cfg = {"k2_pf":0,"k2_cprio":1,"k2_pprio":3,"k2_sprio":0,"k2_d":5}
    cfg.update(json.loads(sys.argv[2]) if len(sys.argv) > 2 else {})
    open(path, "w").write(build(cfg))
```

```python
from asmlib import *
from consts import *
from k1 import dpp_scan, rt_end

def gen_k1(cfg):
    a = Asm()
    LDNT = " nt" if cfg.get('k1_ld_nt', True) else ""
    STNT = cfg.get('k1_st', "")
    DEP = cfg.get('k1_dep', 4)
    NR = 12
    S_IN, S_OUT, S_ANG, S_WS, S_M = 4, 8, 12, 16, 20
    S_WD = 28
    S_WP = 36
    sWAVE, sMB, sMJ, sNEG, sT0, sT1, sT2, sBASE, sOOB = 44, 45, 46, 47, 48, 49, 50, 51, 52
    sTOFF4, sTOFF2, sPAY, sREC, sR6, sHI, sK = 54, 55, 56, 57, 58, 59, 60
    vOFF16, vOFF8, vINC, vZERO, vX, vY, vZ = 1, 2, 3, 4, 5, 6, 7
    def RIN(r): return 8 + 8 * r if r < NR else 104
    def ROUT(r): return 12 + 8 * r if r < NR else 105
    RING = 106
    def RANG(r): return RING + 2 * (r % DEP)
    TMP = 116
    assert RING + 2 * DEP <= TMP
    TRACE = cfg.get('trace1', False)
    vTR, sPT, sPA = 127, 88, 90
    def stamp(i):
        if not TRACE: return
        if i < 0:
            a.e(f"s_mov_b32 s{sPA}, 0")
            a.e(f"v_mov_b32 v{vTR}, 0")
            i = 15
        a.e(f"s_memtime s[{sPT}:{sPT+1}]")
        a.wlg0()
        a.e(f"s_andn2_b32 s{sPT}, s{sPT}, 15")
        a.e(f"s_or_b32 s{sPT}, s{sPT}, {i}")
        a.e(f"s_mov_b32 m0, s{sPA}")
        a.e(f"s_add_u32 s{sPA}, s{sPA}, 1")
        a.e(f"v_writelane_b32 v{vTR}, s{sPT}, m0")

    a.e(f"s_cmp_ge_u32 s2, {NWG}")
    a.e("s_cbranch_scc1 K1_END")
    stamp(-1)
    if cfg.get('rt'): a.e("s_memrealtime s[96:97]")
    a.e(f"s_load_dwordx2 s[{S_IN}:{S_IN+1}], s[0:1], 8")
    a.e(f"s_load_dwordx2 s[{S_OUT}:{S_OUT+1}], s[0:1], 16")
    a.e(f"s_load_dwordx2 s[{S_ANG}:{S_ANG+1}], s[0:1], 32")
    a.e(f"s_load_dwordx2 s[{S_WS}:{S_WS+1}], s[0:1], 104")
    a.e(f"s_load_dwordx2 s[{S_M}:{S_M+1}], s[0:1], 0")
    a.e(f"s_load_dwordx2 s[24:25], s[0:1], 72")
    for s, n in ((S_IN, T * 4), (S_OUT, T * 4), (S_ANG, T * 2), (S_WS, WS_BYTES), (S_M, E * 8)):
        a.e(f"s_mov_b32 s{s+2}, {n}")
        a.e(f"s_mov_b32 s{s+3}, 0x00020000")
    a.e(f"v_lshrrev_b32 v{vX}, 6, v0")
    a.e(f"v_readfirstlane_b32 s{sWAVE}, v{vX}")
    a.e(f"v_mov_b32 v{vZERO}, 0")
    a.e(f"v_mov_b32 v{vX}, 0")
    a.e(f"v_lshlrev_b32 v{vY}, 3, v0")
    a.e(f"ds_write_b64 v{vY}, {vr(vZERO,2)}")
    a.e(f"v_and_b32 v{vY}, 0x78, v{vY}")
    a.e(f"ds_write_b64 v{vY}, {vr(vZERO,2)} offset:{K1B_MISC}")
    a.e(f"v_and_b32 v0, 511, v0")
    a.e(f"v_lshlrev_b32 v{vOFF16}, 4, v0")
    a.e(f"v_lshlrev_b32 v{vOFF8}, 3, v0")
    a.e(f"s_mov_b32 s{sMB}, {MB}")
    a.e(f"s_mov_b32 s{sMJ}, {MJ}")
    a.e(f"s_mov_b32 s{sNEG}, {-EPB}")
    a.e(f"s_mov_b32 s{sOOB}, 0x80000000")
    a.e(f"s_mov_b32 s{sHI}, 0xffff0000")
    a.e(f"s_mov_b32 s{sK}, {K1B_TILE}")
    a.e(f"s_lshr_b32 s{sBASE}, s{sWAVE}, 3")
    a.e(f"s_and_b32 s{sWAVE}, s{sWAVE}, 7")
    a.e(f"s_lshl_b32 s{sT0}, s{sBASE}, 8")
    a.e(f"s_add_u32 s{sT0}, s{sT0}, s2")
    a.e(f"s_mul_i32 s{sPAY}, s{sT0}, {TILE_B}")
    a.e(f"s_mul_i32 s{sREC}, s{sT0}, {REC_STR}")
    a.e(f"s_add_u32 s{sREC}, s{sREC}, {REC_OFF}")
    a.e(f"s_mul_i32 s{sT1}, s{sT0}, 3125")
    a.e(f"s_add_u32 s{sT2}, s{sT1}, 3125")
    a.e(f"s_lshr_b32 s{sT1}, s{sT1}, 3")
    a.e(f"s_lshr_b32 s{sT2}, s{sT2}, 3")
    a.e(f"s_sub_u32 s{sT2}, s{sT2}, s{sT1}")
    a.e(f"s_sub_u32 s{sT2}, s{sT2}, 384")
    a.e(f"s_lshl_b32 s{sTOFF4}, s{sT1}, 8")
    a.e(f"s_lshl_b32 s{sTOFF2}, s{sT1}, 7")
    a.e(f"s_cmp_lt_u32 s{sWAVE}, s{sT2}")
    a.e(f"s_cselect_b32 s{sR6}, 0, s{sOOB}")
    a.e("s_waitcnt lgkmcnt(0)")
    a.e("s_barrier")
    a.e(f"s_cmp_lg_u32 s{sBASE}, 0")
    a.e("s_cbranch_scc1 K1_Q")

    def loads(r):
        a.e(f"s_add_u32 s{sT0}, s{sTOFF4}, {r * 8192}")
        a.e(f"s_add_u32 s{sT1}, s{sTOFF2}, {r * 4096}")
        if r < NR:
            a.vmem(f"buffer_load_dwordx4 {vr(RIN(r),4)}, v{vOFF16}, s[{S_IN}:{S_IN+3}], s{sT0} offen{LDNT}", ('L', r))
            a.vmem(f"buffer_load_dwordx4 {vr(ROUT(r),4)}, v{vOFF16}, s[{S_OUT}:{S_OUT+3}], s{sT0} offen{LDNT}", ('L', r))
            a.vmem(f"buffer_load_dwordx2 {vr(RANG(r),2)}, v{vOFF8}, s[{S_ANG}:{S_ANG+3}], s{sT1} offen{LDNT}", ('A', r))
        else:
            a.e(f"v_lshl_or_b32 v{TMP+8}, v0, 2, s{sR6}")
            a.e(f"v_lshl_or_b32 v{TMP+9}, v0, 1, s{sR6}")
            a.vmem(f"buffer_load_dword v{RIN(r)}, v{TMP+8}, s[{S_IN}:{S_IN+3}], s{sT0} offen{LDNT}", ('L', r))
            a.vmem(f"buffer_load_dword v{ROUT(r)}, v{TMP+8}, s[{S_OUT}:{S_OUT+3}], s{sT0} offen{LDNT}", ('L', r))
            a.vmem(f"buffer_load_ushort v{RANG(r)}, v{TMP+9}, s[{S_ANG}:{S_ANG+3}], s{sT1} offen{LDNT}", ('A', r))

    def hist(r):
        a.wvm(('L', r))
        n = 4 if r < NR else 1
        if r == NR:
            a.e(f"s_cmp_eq_u32 s{sR6}, 0")
            a.e(f"s_cselect_b64 exec, -1, 0")
        for k in range(n):
            vi, vo, t0, t1 = RIN(r) + k, ROUT(r) + k, TMP + k, TMP + 4 + k
            a.e(f"v_mul_hi_u32 v{t0}, v{vo}, s{sMB}")
            a.e(f"v_mul_hi_u32 v{t1}, v{vi}, s{sMJ}")
            a.e(f"v_mad_i32_i24 v{vo}, v{t0}, s{sNEG}, v{vo}")
            a.e(f"v_lshlrev_b32 v{t0}, 2, v{t0}")
            a.e(f"v_lshl_or_b32 v{vi}, v{vo}, 20, v{vi}")
            a.e(f"v_lshl_add_u32 v{t0}, v{t1}, 10, v{t0}")
            a.e(f"ds_add_u32 v{t0}, v{vINC}")
        a.wvm(('A', r))
        for k in range(n):
            if k & 1:
                a.e(f"v_and_or_b32 v{ROUT(r)+k}, v{RANG(r)+(k>>1)}, s{sHI}, v{TMP+k}")
            else:
                a.e(f"v_lshl_or_b32 v{ROUT(r)+k}, v{RANG(r)+(k>>1)}, 16, v{TMP+k}")
        if r == NR:
            a.e("s_mov_b64 exec, -1")

    def group(g):
        nsync = [0]
        def sync():
            if g == 1:
                a.barrier(); return
            off = K1B_FLAG + 4 * nsync[0]
            nsync[0] += 1
            a.e("s_mov_b64 exec, 1")
            a.e(f"ds_add_u32 v{vZERO}, v{vINC} offset:{off}")
            a.e("s_mov_b64 exec, -1")
            a.e(f"K1_PL{nsync[0]}:")
            a.e(f"ds_read_b32 v{vZ}, v{vZERO} offset:{off}")
            a.wlg0()
            a.e(f"v_readfirstlane_b32 s{sT0}, v{vZ}")
            a.e(f"s_cmp_lt_u32 s{sT0}, 8")
            a.e(f"s_cbranch_scc1 K1_PL{nsync[0]}")
        a.e(f"v_mov_b32 v{vINC}, {1 if g == 0 else 0x10000}")
        for r in range(DEP):
            loads(r)
        for r in range(NR + 1):
            hist(r)
            if r + DEP <= NR: loads(r + DEP)
            if r in (3, 7): stamp(1)
        stamp(2)
        sync()
        stamp(3)
        C, SS, W0 = 108, 112, 116
        a.e(f"ds_read_b128 {vr(C,4)}, v{vOFF16}")
        if g == 1:
            a.e(f"ds_read_b32 v{W0+1}, v{vZERO} offset:{K1B_MAXC}")
            a.e(f"s_lshl_b32 s{sT0}, s2, 2")
            a.e(f"v_mov_b32 v{W0+2}, s{sT0}")
            a.e(f"v_mov_b32 v{W0+3}, s{sOOB}")
            a.e(f"v_cmp_eq_u32 vcc, 0, v0")
            a.e(f"v_cndmask_b32 v{W0+2}, v{W0+3}, v{W0+2}, vcc")
            a.e(f"s_mov_b32 s{sT0}, {MX_OFF}")
        a.e("s_waitcnt lgkmcnt(0)")
        if g == 1:
            a.vmem(f"buffer_store_dword v{W0+1}, v{W0+2}, s[{S_WS}:{S_WS+3}], s{sT0} offen{STNT}", 'S')
        for k in range(4):
            a.e(f"v_and_b32 v{C+k}, 0xffff, v{C+k}" if g == 0 else f"v_lshrrev_b32 v{C+k}, 16, v{C+k}")
        a.e(f"v_add_u32 v{SS}, v{C}, v{C+1}")
        a.e(f"v_add3_u32 v{SS}, v{SS}, v{C+2}, v{C+3}")
        a.e(f"v_mov_b32 v{SS+1}, v{SS}")
        dpp_scan(a, SS)
        a.e(f"s_lshl_b32 s{sT0}, s{sWAVE}, 2")
        a.e(f"v_mov_b32 v{W0}, s{sT0}")
        a.e("s_lshl_b64 exec, 1, 63")
        a.e(f"ds_write_b32 v{W0}, v{SS} offset:{K1B_WTOT}")
        a.e("s_mov_b64 exec, -1")
        a.e(f"v_sub_u32 v{SS}, v{SS}, v{SS+1}")
        a.e(f"v_and_b32 v{W0+4}, 7, v0")
        a.e(f"v_lshlrev_b32 v{W0}, 2, v{W0+4}")
        a.e(f"v_and_b32 v{W0+6}, 63, v0")
        a.e(f"s_lshl_b32 s{sT1}, s{sWAVE}, 1")
        a.e(f"v_lshl_add_u32 v{W0+6}, v{W0+6}, 6, s{sT1}")
        sync()
        a.e(f"ds_read_b32 v{W0+5}, v{W0} offset:{K1B_WTOT}")
        a.e(f"v_cmp_gt_u32 vcc, s{sWAVE}, v{W0+4}")
        a.e("s_waitcnt lgkmcnt(0)")
        a.e(f"v_cndmask_b32 v{W0+5}, 0, v{W0+5}, vcc")
        for sh in (1, 2, 4):
            a.e(f"v_add_u32_dpp v{W0+5}, v{W0+5}, v{W0+5} row_shr:{sh} row_mask:0xf bank_mask:0xf bound_ctrl:0")
        a.e(f"v_readlane_b32 s{sBASE}, v{W0+5}, 7")
        a.e(f"v_add_u32 v{W0}, s{sBASE}, v{SS}")
        for k in range(4):
            a.e(f"v_add_u32 v{W0+1+k}, v{W0+k}, v{C+k}")
        if g == 0:
            for k in range(4):
                a.e(f"v_sub_u32 v{C+k}, v{W0+k}, v{C+k}")
            for k in range(4):
                a.e(f"ds_add_u32 v{vOFF16}, v{C+k} offset:{4*k}")
        else:
            for k in range(4):
                a.e(f"v_mad_u32_u24 v{C+k}, v{W0+k}, 6, s{sK}")
            a.e(f"ds_write_b128 v{vOFF16}, {vr(C,4)}")
            a.e(f"v_mov_b32 v{vINC}, 6")
        for k in range(5):
            a.e(f"ds_write_b16 v{W0+6}, v{W0+k} offset:{K1B_STG + 16*k}")
        sync()
        stamp(4)
        U = [106, 110]
        WA, AA = 114, 118
        RS = 120
        a.lds(f"ds_read_b128 {vr(RS,4)}, v{vOFF16} offset:{K1B_STG}", 'RS')
        def rtn(r):
            n = 4 if r < NR else 1
            for k in range(n):
                a.e(f"v_and_b32 v{U[r&1]+k}, 0xffff, v{ROUT(r)+k}")
            if r == NR:
                a.e(f"s_cmp_eq_u32 s{sR6}, 0")
                a.e(f"s_cselect_b64 exec, -1, 0")
            for k in range(n):
                a.lds(f"ds_add_rtn_u32 v{U[r&1]+k}, v{U[r&1]+k}, v{vINC}", ('R', r))
            if r == NR:
                a.e("s_mov_b64 exec, -1")
        rtn(0)
        a.e(f"v_cmp_gt_u32 vcc, 257, v0")
        a.e(f"v_mov_b32 v{vX}, s{sOOB}")
        a.e(f"v_cndmask_b32 v{vX}, v{vX}, v{vOFF16}, vcc")
        a.wlg('RS')
        a.vmem(f"buffer_store_dwordx4 {vr(RS,4)}, v{vX}, s[{S_WS}:{S_WS+3}], s{sREC} offen{STNT}", 'S')
        for r in range(NR + 1):
            n = 4 if r < NR else 1
            if r + 1 <= NR: rtn(r + 1)
            a.wlg(('R', r))
            for k in range(n):
                u, wa, aa = U[r & 1] + k, WA + k, AA + k
                if g == 0:
                    a.e(f"v_mad_u32_u16 v{u}, v{u}, 6, s{sK}")
                a.e(f"v_and_b32 v{aa}, 2, v{u}")
                a.e(f"v_add_u32 v{wa}, v{u}, v{aa}")
                a.e(f"v_mad_i32_i24 v{aa}, v{aa}, -2, v{u}")
            if r == NR:
                a.e(f"s_cmp_eq_u32 s{sR6}, 0")
                a.e(f"s_cselect_b64 exec, -1, 0")
            for k in range(n):
                a.lds(f"ds_write_b32 v{WA+k}, v{RIN(r)+k}")
                a.lds(f"ds_write_b16_d16_hi v{AA+k}, v{ROUT(r)+k} offset:4")
            if r == NR:
                a.e("s_mov_b64 exec, -1")
        LB = [vX, vY, vZ + 0]
        stamp(5)
        sync()
        stamp(6)
        NQ = 19
        LBR = [116, 117, 118]
        for h in range(3):
            a.e(f"v_add_u32 v{LBR[h]}, {K1B_TILE + 65536*h}, v{vOFF16}")
        a.e(f"v_cmp_gt_u32 vcc, {(TILE_B - 18*8192)//16}, v0")
        a.e(f"v_mov_b32 v{vX}, s{sOOB}")
        a.e(f"v_cndmask_b32 v{vX}, v{vX}, v{vOFF16}, vcc")
        a.e(f"v_cndmask_b32 v{vY}, v{LBR[0]}, v{LBR[2]}, vcc")
        def rd(q):
            a.lds(f"ds_read_b128 {vr(8+4*q,4)}, v{LBR[q>>3] if q < 18 else vY} offset:{(q&7)*8192}", ('W', q))
        for q in range(8): rd(q)
        for q in range(NQ):
            if q + 8 < NQ: rd(q + 8)
            a.wlg(('W', q))
            a.e(f"s_add_u32 s{sT2}, s{sPAY}, {q*8192}")
            a.vmem(f"buffer_store_dwordx4 {vr(8+4*q,4)}, v{vOFF16 if q < 18 else vX}, s[{S_WS}:{S_WS+3}], s{sT2} offen{STNT}", 'S')
        stamp(7)

    def trace_end(g):
        if TRACE:
            a.wvm0()
            stamp(8)
            a.e(f"s_cmp_lg_u32 s2, {cfg.get('trace_wg', 77)}")
            a.e("s_cbranch_scc1 K1_END")
            a.e(f"s_load_dwordx2 s[{S_M}:{S_M+1}], s[0:1], 96")
            a.e(f"s_mov_b32 s{S_M+2}, 4096")
            a.e("s_waitcnt lgkmcnt(0)")
            a.e(f"v_lshlrev_b32 v1, 2, v0")
            a.e(f"buffer_store_dword v{vTR}, v1, s[{S_M}:{S_M+3}], 0 offen offset:{2048*g}")

    if cfg.get('k1_pprio', 1): a.e(f"s_setprio {cfg.get('k1_pprio', 1)}")
    group(0)
    for _ in range(5 if cfg.get('rt') else 4):
        a.e("s_barrier")
    trace_end(0)
    a.e("s_endpgm")
    a.vm = []; a.lg = []

    a.e("K1_Q:")
    a.e("s_setprio 3")
    a.e(f"s_load_dwordx8 s[{S_WD}:{S_WD+7}], s[24:25], 0")
    vM, vMO, D, vMAX = 8, 24, 32, 28
    a.e(f"s_mul_i32 s{sT0}, s2, {MD_WG_B}")
    a.e(f"v_add_u32 v{vMO}, s{sT0}, v{vOFF16}")
    for q in range(1, 4):
        a.e(f"v_add_u32 v{vMO+q}, {8192*q}, v{vMO}")
    a.e(f"v_mov_b32 v{vX}, s{sOOB}")
    a.e(f"v_cmp_gt_u32 vcc, {(MD_WG_B - 3*8192)//16}, v0")
    a.e(f"v_cndmask_b32 v{vMO+3}, v{vX}, v{vMO+3}, vcc")
    for q in range(4):
        a.vmem(f"buffer_load_dwordx4 {vr(vM+4*q,4)}, v{vMO+q}, s[{S_M}:{S_M+3}], 0 offen", ('M', q))
    a.e(f"v_mov_b32 v{vMAX}, 0")
    a.e("s_waitcnt lgkmcnt(0)")
    for d in range(4):
        for h in range(2):
            r0 = S_WD + 4 * h + (d >> 1); r1 = r0 + 2
            a.e(f"s_pack_{'hh' if d & 1 else 'll'}_b32_b16 s{S_WP + 2*d + h}, s{r0}, s{r1}")
    a.e(f"s_mov_b32 s{sT0}, {MD_OFF}")
    a.wvm(('M', 3))
    for ed in range(8):
        m01 = vM + 2 * ed
        for d in range(4):
            a.e(f"v_dot2_f32_bf16 v{D+4*ed+d}, v{m01}, s{S_WP+2*d}, 0")
        for d in range(4):
            a.e(f"v_dot2_f32_bf16 v{D+4*ed+d}, v{m01+1}, s{S_WP+2*d+1}, v{D+4*ed+d}")
    for ed in range(8):
        m01 = vM + 2 * ed
        a.e(f"v_max3_f32 v{vMAX}, abs(v{D+4*ed}), abs(v{D+4*ed+1}), v{vMAX}")
        a.e(f"v_max3_f32 v{vMAX}, abs(v{D+4*ed+2}), abs(v{D+4*ed+3}), v{vMAX}")
        a.e(f"v_cvt_pk_bf16_f32 v{m01}, v{D+4*ed}, v{D+4*ed+1}")
        a.e(f"v_cvt_pk_bf16_f32 v{m01+1}, v{D+4*ed+2}, v{D+4*ed+3}")
    for q in range(4):
        a.vmem(f"buffer_store_dwordx4 {vr(vM+4*q,4)}, v{vMO+q}, s[{S_WS}:{S_WS+3}], s{sT0} offen{STNT}", 'S')
    dpp_scan(a, vMAX, "v_max_u32")
    a.e("s_lshl_b64 exec, 1, 63")
    a.e(f"ds_max_u32 v{vZERO}, v{vMAX} offset:{K1B_MAXC}")
    a.e("s_mov_b64 exec, -1")
    a.e("s_setprio 0")
    stamp(0)
    group(1)
    trace_end(1)
    if cfg.get('rt'): rt_end(a, 0, S_M)
    a.e("K1_END:")
    a.e("s_endpgm")
    return fix_hazards(a.lines)
```

```python
from asmlib import *
from consts import *
from k1 import dpp_scan, rt_end

NS = 13
DUMMY = (EPB << 20) | 0xFFFFF
K2_FS = K2_NB + 32
K2_NCELL = K2_FS + 4
K2_FH = K2_FS + 8
K2_FR = K2_FS + 12
K2_FP = K2_FS + 16

def gen_k2(cfg):
    a = Asm()
    PAYNT = " nt" if cfg.get('k2_pay_nt', False) else ""
    D = cfg.get('k2_d', 3)
    B1POS = cfg.get('k2_b1', 6)
    LATE = cfg.get('k2_late', 2)
    PPRIO = cfg.get('k2_pprio', 3)
    PROF = cfg.get('prof', False)
    S_WS, S_MD = 4, 8
    S_X = 12
    S_Y = 16
    sWAVE, sB, sJ, sWIN, sTOT, sN, sCNT, sT0, sT1, sT2, sFFF0, sHI, sCNP, sOOB = range(20, 34)
    sM = 34
    sG = 36
    sTG = 37
    puid = [0]
    def poll(vt, off, tgt, first=True):
        puid[0] += 1
        if first:
            SLP = cfg.get('k2_slp', 0)
            if SLP:
                a.e(f"s_branch K2_PM{puid[0]}")
            a.e(f"K2_PL{puid[0]}:")
            if SLP:
                a.e(f"s_sleep {SLP}")
                a.e(f"K2_PM{puid[0]}:")
            a.e(f"ds_read_b32 v{vt}, v{vZERO} offset:{off}")
            a.e("s_waitcnt lgkmcnt(0)")
            a.e(f"v_readfirstlane_b32 s{sT0}, v{vt}")
            a.e(f"s_cmp_lt_u32 s{sT0}, s{tgt}")
            a.e(f"s_cbranch_scc1 K2_PL{puid[0]}")
    def signal(vone, off):
        a.e("s_mov_b64 exec, 1")
        a.e(f"ds_add_u32 v{vZERO}, v{vone} offset:{off}")
        a.e("s_mov_b64 exec, -1")
    S_WA = 40
    S_WU = 72
    MSK = 40
    sPT, sPP, sPA = 88, 90, 91
    TRACE = cfg.get('trace', False)
    vTR = 88
    def stamp(i):
        if TRACE:
            if i < 0:
                a.e(f"s_mov_b32 s{sPA}, 0")
                a.e(f"v_mov_b32 v{vTR}, 0")
                i = 15
            a.e(f"s_memtime s[{sPT}:{sPT+1}]")
            a.e("s_waitcnt lgkmcnt(0)")
            a.e(f"s_andn2_b32 s{sPT}, s{sPT}, 15")
            a.e(f"s_or_b32 s{sPT}, s{sPT}, {i}")
            a.e(f"s_mov_b32 m0, s{sPA}")
            a.e(f"s_add_u32 s{sPA}, s{sPA}, 1")
            a.e(f"s_min_u32 s{sPA}, s{sPA}, 63")
            a.e(f"v_writelane_b32 v{vTR}, s{sPT}, m0")
            return
        if not PROF: return
        a.e(f"s_memtime s[{sPT}:{sPT+1}]")
        a.e("s_waitcnt lgkmcnt(0)")
        if i >= 0:
            a.e(f"s_sub_u32 s{sPP}, s{sPT}, s{sPP}")
            a.e(f"s_add_u32 s{sPA+i}, s{sPA+i}, s{sPP}")
        a.e(f"s_mov_b32 s{sPP}, s{sPT}")
    vLANE, vZERO = 1, 2
    MM = 74
    def epi_off(OF, tmp):
        a.e(f"s_mul_i32 s{sT0}, s{sB}, {EPB*8}")
        a.e(f"v_lshlrev_b32 v{OF}, 3, v0")
        a.e(f"v_add_u32 v{OF}, s{sT0}, v{OF}")
        a.e(f"v_add_u32 v{OF+1}, 8192, v{OF}")
        a.e(f"v_add_u32 v{OF+2}, 16384, v{OF}")
        a.e(f"v_add_u32 v{OF+3}, 24576, v{OF}")
        a.e(f"v_mov_b32 v{tmp}, s{sOOB}")
        a.e(f"v_cmp_gt_u32 vcc, {EPB - 3072}, v0")
        a.e(f"v_cndmask_b32 v{OF+3}, v{tmp}, v{OF+3}, vcc")
    def epi_pre(OF, tmp):
        a.e(f"s_load_dwordx2 s[{S_X}:{S_X+1}], s[0:1], 0")
        a.e(f"s_mov_b32 s{S_X+2}, {E*8}")
        epi_off(OF, tmp)
        a.e("s_waitcnt lgkmcnt(0)")
        for k in range(4):
            a.e(f"buffer_load_dwordx2 {vr(MM+2*k,2)}, v{OF+k}, s[{S_X}:{S_X+3}], 0 offen")
    T_ = 100

    a.e(f"s_cmp_ge_u32 s2, {NWG}")
    a.e("s_cbranch_scc1 K2_END")
    if cfg.get('rt'): a.e("s_memrealtime s[96:97]")
    if cfg.get('x_stag'):
        a.e(f"s_lshr_b32 s4, s2, 3")
        a.e(f"s_and_b32 s4, s4, {cfg.get('x_stagm', 1)}")
        a.e(f"s_mul_i32 s4, s4, {cfg['x_stag']}")
        a.e("K2_STG:")
        a.e("s_cmp_eq_u32 s4, 0")
        a.e("s_cbranch_scc1 K2_STD")
        a.e("s_sleep 8")
        a.e("s_sub_u32 s4, s4, 1")
        a.e("s_branch K2_STG")
        a.e("K2_STD:")
    if PROF:
        for i in range(11): a.e(f"s_mov_b32 s{sPA+i}, 0")
    stamp(-1)
    a.e(f"s_load_dwordx2 s[{S_WS}:{S_WS+1}], s[0:1], 104")
    a.e(f"s_load_dwordx2 s[{S_X}:{S_X+1}], s[0:1], 24")
    a.e(f"s_load_dwordx4 s[{S_Y}:{S_Y+3}], s[0:1], 56")
    a.e(f"s_load_dwordx2 s[{S_MD}:{S_MD+1}], s[0:1], 80")
    a.e(f"s_mov_b32 s{S_WS+2}, {WS_BYTES}")
    a.e(f"s_mov_b32 s{S_WS+3}, 0x00020000")
    a.e(f"s_mov_b32 s{S_X+2}, {E*2}")
    a.e(f"s_mov_b32 s{S_X+3}, 0x00020000")
    a.e(f"v_lshrrev_b32 v{T_}, 6, v0")
    a.e(f"v_and_b32 v{vLANE}, 63, v0")
    a.e(f"v_readfirstlane_b32 s{sWAVE}, v{T_}")
    a.e(f"s_and_b32 s{sB}, s2, 7")
    a.e(f"s_lshl_b32 s{sB}, s{sB}, 5")
    a.e(f"s_lshr_b32 s{sT0}, s2, 3")
    a.e(f"s_or_b32 s{sB}, s{sB}, s{sT0}")
    a.e(f"s_mov_b32 s{sFFF0}, 0xfff0")
    a.e(f"s_mov_b32 s{sHI}, 0xffff0000")
    a.e(f"s_mov_b32 s{sOOB}, 0x80000000")
    a.e(f"v_mov_b32 v{vZERO}, 0")
    for k in range(4):
        a.e(f"v_mov_b32 v{T_+4+k}, 0")
    a.e(f"v_lshlrev_b32 v{T_+8}, 4, v0")
    for k in range(3):
        a.e(f"ds_write_b128 v{T_+8}, {vr(T_+4,4)} offset:{k*16384}")
    a.e(f"v_cmp_gt_u32 vcc, {(K2_A - 3*16384)//16}, v0")
    a.e(f"s_mov_b64 exec, vcc")
    a.e(f"ds_write_b128 v{T_+8}, {vr(T_+4,4)} offset:{3*16384}")
    a.e(f"s_mov_b64 exec, -1")
    a.e("s_waitcnt lgkmcnt(0)")
    a.e(f"s_load_dwordx8 s[{S_WU+8}:{S_WU+15}], s[{S_MD}:{S_MD+1}], 0")
    a.e(f"s_cmp_ge_u32 s{sWAVE}, 8")
    a.e("s_cbranch_scc1 K2_CONS")

    vL12, vTB, vCN, vSCR, vFOUR, vL16 = range(3, 9)
    R = 10
    def P(c): return 18 + 4 * c
    U, KA, OLD = 50, 66, 82
    if PPRIO: a.e(f"s_setprio {PPRIO}")
    a.e(f"s_mov_b32 s{sT0}, {TILE_B}")
    a.e(f"v_mul_lo_u32 v{vTB}, v0, s{sT0}")
    K1B = cfg.get('k1v', 'b') == 'b'
    RL = 20 if K1B else R
    a.e(f"s_lshl_b32 s{sT0}, s{sB}, {4 if K1B else 5}")
    a.e(f"v_mul_u32_u24 v{T_+1}, {REC_STR if K1B else 8192}, v0")
    a.e(f"v_add_u32 v{T_+1}, s{sT0}, v{T_+1}")
    a.e(f"s_mov_b32 s{sT0}, {REC_OFF}")
    a.e(f"buffer_load_dwordx4 {vr(RL,4)}, v{T_+1}, s[{S_WS}:{S_WS+3}], s{sT0} offen")
    a.e(f"buffer_load_dwordx4 {vr(RL+4,4)}, v{T_+1}, s[{S_WS}:{S_WS+3}], s{sT0} offen offset:16")
    a.e("s_barrier")
    a.e(f"v_mul_u32_u24 v{vL12}, 12, v{vLANE}")
    a.e(f"v_lshlrev_b32 v{vL16}, 4, v{vLANE}")
    a.e(f"v_mov_b32 v{vFOUR}, 4")
    a.e(f"v_min_u32 v{vCN}, 1, v{vLANE}")
    a.e(f"v_lshlrev_b32 v{vSCR}, 3, v0")
    a.e(f"v_add_u32 v{vSCR}, {K2_SCR}, v{vSCR}")
    a.e(f"v_mov_b32 v{T_+2}, 0")
    a.e(f"v_mov_b32 v{T_+3}, 0")
    a.e(f"ds_write_b64 v{vSCR}, {vr(T_+2,2)}")
    a.e(f"s_mov_b32 s{sTG}, 0")
    for k in range(4):
        a.e(f"v_mov_b32 v{OLD+k}, 0")
    vPF, vPD = 86, 87
    PFM = cfg.get('k2_pf', 1)
    if PFM:
        a.e(f"s_lshr_b32 s{sT0}, s2, 3")
        a.e(f"s_lshl_b32 s{sT0}, s{sT0}, 3")
        a.e(f"s_add_u32 s{sT0}, s{sT0}, s{sWAVE}")
        a.e(f"s_mul_i32 s{sT0}, s{sT0}, {25*128}")
        a.e(f"v_min_u32 v{vPF}, 24, v{vLANE}")
        a.e(f"v_lshlrev_b32 v{vPF}, 7, v{vPF}")
        a.e(f"v_add_u32 v{vPF}, s{sT0}, v{vPF}")
    a.e(f"s_mov_b32 s{sJ}, 8")
    a.e(f"s_mov_b32 s{sWIN}, 0")
    a.e(f"s_mov_b32 s{sT0}, 0x05040100")
    a.e(f"s_mov_b32 s{sT1}, 0x07060302")
    a.e("s_waitcnt vmcnt(0) lgkmcnt(0)")
    if K1B:
        for k in range(8):
            a.e(f"v_perm_b32 v{R+k}, v{RL+4+(k>>1)}, v{RL+(k>>1)}, s{sT1 if k & 1 else sT0}")
    t = T_
    a.e(f"v_mov_b32 v{t}, 0")
    for k in range(8):
        a.e(f"v_sub_u32_sdwa v{t+1}, v{R+k}, v{R+k} dst_sel:DWORD dst_unused:UNUSED_PAD src0_sel:WORD_1 src1_sel:WORD_0")
        a.e(f"v_add_u32 v{t}, v{t}, v{t+1}")
    dpp_scan(a, t)
    a.e(f"v_lshl_or_b32 v{t}, v{t}, 4, 1")
    a.e("s_lshl_b64 exec, 1, 63")
    a.e(f"ds_add_u32 v{vZERO}, v{t} offset:{K2_NB}")
    a.e("s_mov_b64 exec, -1")
    stamp(0)

    def rotate():
        for k in range(7):
            a.e(f"v_mov_b32 v{R+k}, v{R+k+1}")
        a.e(f"v_mov_b32 v{R+7}, 0")
        a.e(f"s_sub_u32 s{sJ}, s{sJ}, 1")

    a.e("K2_PLOOP:")
    s_, e_, p0, n_, inc, S_, V_, x_, sl, y_, el = range(T_, T_ + 11)
    a.e(f"v_and_b32 v{s_}, 0xffff, v{R}")
    a.e(f"v_lshrrev_b32 v{e_}, 16, v{R}")
    a.e(f"v_lshrrev_b32 v{p0}, 1, v{s_}")
    a.e(f"v_add_u32 v{n_}, 1, v{e_}")
    a.e(f"v_cmp_gt_u32 s[{sM}:{sM+1}], v{e_}, v{s_}")
    a.e(f"v_lshrrev_b32 v{n_}, 1, v{n_}")
    a.e(f"v_sub_u32 v{n_}, v{n_}, v{p0}")
    a.e(f"v_cndmask_b32 v{n_}, 0, v{n_}, s[{sM}:{sM+1}]")
    a.e(f"v_mov_b32 v{inc}, v{n_}")
    dpp_scan(a, inc)
    a.e(f"v_readlane_b32 s{sTOT}, v{inc}, 63")
    a.e(f"s_cmp_lt_u32 s{sWIN}, s{sTOT}")
    a.e(f"s_cbranch_scc1 K2_FGO")
    a.e(f"s_cmp_eq_u32 s{sJ}, 0")
    a.e(f"s_cbranch_scc1 K2_FGO")
    rotate()
    a.e(f"s_mov_b32 s{sWIN}, 0")
    a.e(f"s_branch K2_PLOOP")
    a.e(f"K2_FGO:")
    def prefetch():
        a.e(f"s_mul_i32 s{sT0}, s{sJ}, 800000")
        a.e(f"s_sub_u32 s{sT0}, {MD_OFF + 8*800000}, s{sT0}")
        a.e(f"buffer_load_dword v{vPD}, v{vPF}, s[{S_WS}:{S_WS+3}], s{sT0} offen")
    if PFM == 1: prefetch()
    a.e(f"v_subrev_u32 v{inc}, s{sWIN}, v{inc}")
    a.e(f"v_sub_u32 v{S_}, v{inc}, v{n_}")
    a.e(f"v_add_u32 v{el}, -1, v{inc}")
    a.e(f"v_sub_u32 v{V_}, v{p0}, v{S_}")
    a.e(f"v_mad_i32_i24 v{V_}, v{V_}, 12, v{vTB}")
    a.e(f"v_cmp_le_i32 vcc, 0, v{S_}")
    a.e(f"v_and_b32 v{x_}, 1, v{s_}")
    a.e(f"s_and_b64 vcc, vcc, s[{sM}:{sM+1}]")
    a.e(f"v_max_i32 v{sl}, 0, v{S_}")
    a.e(f"v_cndmask_b32 v{x_}, 0, v{x_}, vcc")
    a.e(f"v_lshl_or_b32 v{x_}, v{x_}, 6, v{vCN}")
    a.e(f"v_and_b32 v{y_}, 1, v{e_}")
    a.e(f"v_lshlrev_b32 v{y_}, 7, v{y_}")
    def marker(val, slot, tmp):
        a.e(f"v_lshrrev_b32 v{tmp}, 3, v{slot}")
        a.e(f"v_and_b32 v{tmp}, 0x18, v{tmp}")
        a.e(f"v_lshlrev_b32 v{val}, v{tmp}, v{val}")
        a.e(f"v_lshrrev_b32 v{tmp}, 8, v{slot}")
        a.e(f"v_cmp_gt_u32 vcc, 512, v{slot}")
        a.e(f"v_and_b32 v{slot}, 63, v{slot}")
        a.e(f"v_sub_u32 v{slot}, v{slot}, v{vLANE}")
        a.e(f"v_lshl_add_u32 v{slot}, v{slot}, 1, v{tmp}")
        a.e(f"v_lshl_add_u32 v{slot}, v{slot}, 2, v{vSCR}")
    marker(x_, sl, s_)
    a.e(f"s_mov_b64 exec, vcc")
    a.e(f"ds_add_u32 v{sl}, v{x_}")
    a.e(f"s_mov_b64 exec, -1")
    marker(y_, el, s_)
    a.e(f"s_and_b64 exec, vcc, s[{sM}:{sM+1}]")
    a.e(f"ds_add_u32 v{el}, v{y_}")
    a.e(f"s_mov_b64 exec, -1")
    RAW, RW2, CN = T_ + 12, T_ + 14, T_ + 16
    AD = T_ + 18
    a.e(f"ds_read_b64 {vr(RAW,2)}, v{vSCR}")
    a.e(f"v_mov_b32 v{RW2}, 0")
    a.e(f"v_mov_b32 v{RW2+1}, 0")
    a.e(f"ds_write_b64 v{vSCR}, {vr(RW2,2)}")
    a.e(f"s_sub_u32 s{sT2}, s{sTOT}, s{sWIN}")
    a.e("s_waitcnt lgkmcnt(1)")
    for h in range(2):
        a.e(f"v_and_b32 v{CN+h}, 0x3f3f3f3f, v{RAW+h}")
    for h in range(2):
        a.e(f"v_lshlrev_b32 v{RW2+h}, 1, v{RAW+h}")
    mk = []
    for c in range(8):
        mk.append(f"v_cmp_le_i32_sdwa s[{MSK+4*c}:{MSK+4*c+1}], 0, sext(v{RW2+(c>>2)}) src0_sel:DWORD src1_sel:BYTE_{c&3}")
        mk.append(f"v_cmp_le_i32_sdwa s[{MSK+4*c+2}:{MSK+4*c+3}], 0, sext(v{RAW+(c>>2)}) src0_sel:DWORD src1_sel:BYTE_{c&3}")
    dp = [f"row_shr:{sh} row_mask:0xf bank_mask:0xf bound_ctrl:0" for sh in (1, 2, 4, 8)] + \
         ["row_bcast:15 row_mask:0xa bank_mask:0xf", "row_bcast:31 row_mask:0xc bank_mask:0xf"]
    for d_ in dp:
        for h in range(2):
            a.e(f"v_add_u32_dpp v{CN+h}, v{CN+h}, v{CN+h} {d_}")
        a.e(mk.pop(0))
    a.e(f"v_readlane_b32 s{sT0}, v{CN}, 63")
    a.e(f"v_readlane_b32 s{sT1}, v{CN+1}, 63")
    a.e(mk.pop(0)); a.e(mk.pop(0))
    a.e(f"s_mul_i32 s{sM}, s{sT0}, 0x01010101")
    a.e(f"s_lshl_b32 s{sT0}, s{sM}, 8")
    a.e(f"s_lshr_b32 s{sM}, s{sM}, 24")
    a.e(f"s_lshl_b32 s{sT1}, s{sT1}, 8")
    a.e(f"s_add_u32 s{sT1}, s{sT1}, s{sM}")
    a.e(f"s_mul_i32 s{sT1}, s{sT1}, 0x01010101")
    a.e(f"v_add_u32 v{CN}, s{sT0}, v{CN}")
    a.e(f"v_add_u32 v{CN+1}, s{sT1}, v{CN+1}")
    for c in range(8):
        a.e(f"v_lshlrev_b32_sdwa v{AD+c}, 2, v{CN+(c>>2)} dst_sel:DWORD dst_unused:UNUSED_PAD src0_sel:DWORD src1_sel:BYTE_{c&3}")
        a.e(f"ds_bpermute_b32 v{AD+c}, v{AD+c}, v{V_}")
    for m_ in mk: a.e(m_)
    if PFM == 2: prefetch()
    a.e(f"v_mov_b32 v{s_}, s{sOOB}")
    a.e(f"v_add_u32 v{e_}, {768*4}, v{vL12}")
    for c in range(8):
        a.e(f"v_cmp_gt_i32 vcc, s{sT2}, v{vLANE}")
        a.e(f"s_sub_u32 s{sT2}, s{sT2}, 64")
        a.e(f"s_and_b64 s[{MSK+4*c}:{MSK+4*c+1}], s[{MSK+4*c}:{MSK+4*c+1}], vcc")
        a.e(f"s_and_b64 s[{MSK+4*c+2}:{MSK+4*c+3}], s[{MSK+4*c+2}:{MSK+4*c+3}], vcc")
        a.e(f"s_waitcnt lgkmcnt({7-c})")
        a.e(f"v_add_u32 v{AD+c}, v{AD+c}, v{vL12 if c < 4 else e_}")
        a.e(f"v_cndmask_b32 v{AD+c}, v{s_}, v{AD+c}, vcc")
        a.e(f"buffer_load_dwordx3 {vr(P(c),3)}, v{AD+c}, s[{S_WS}:{S_WS+3}], 0 offen offset:{768*(c&3)}{PAYNT}")
    a.e(f"s_add_u32 s{sWIN}, s{sWIN}, 512")
    a.e(f"s_cmp_lt_u32 s{sWIN}, s{sTOT}")
    a.e(f"s_cbranch_scc1 K2_FDONE")
    a.e(f"s_mov_b32 s{sWIN}, 0")
    a.e(f"s_cmp_eq_u32 s{sJ}, 0")
    a.e(f"s_cbranch_scc1 K2_FDONE")
    rotate()
    a.e(f"K2_FDONE:")
    stamp(1)
    if 'k2_sprio' in cfg and cfg.get('k2_sprio_at', 0) == 2: a.e(f"s_setprio {cfg['k2_sprio']}")
    vPL = T_ + 27
    poll(vPL, K2_FP, sTG)
    a.e(f"s_add_u32 s{sTG}, s{sTG}, 32")
    for c in range(8):
        a.e(f"s_waitcnt vmcnt({7-c})")
        for h in range(2):
            i = 2 * c + h
            a.e(f"v_lshlrev_b32_sdwa v{KA+i}, 2, v{P(c)+2*h} dst_sel:DWORD dst_unused:UNUSED_PAD src0_sel:DWORD src1_sel:BYTE_1")
        for h in range(2):
            i = 2 * c + h
            a.e(f"s_mov_b64 exec, s[{MSK+2*i}:{MSK+2*i+1}]")
            a.e(f"ds_add_rtn_u32 v{U+i}, v{KA+i}, v{vFOUR}")
        a.e("s_mov_b64 exec, -1")
    signal(vFOUR, K2_FH)
    stamp(2)
    poll(vPL, K2_FH, sTG)
    stamp(3)
    if 'k2_sprio' in cfg and cfg.get('k2_sprio_at', 0) == 0: a.e(f"s_setprio {cfg['k2_sprio']}")
    NW, CC, TT, BS = T_, T_ + 4, T_ + 8, T_ + 12
    a.e(f"ds_read_b128 {vr(NW,4)}, v{vL16}")
    signal(vFOUR, K2_FP)
    a.e("s_waitcnt lgkmcnt(1)")
    for k in range(4):
        a.e(f"v_sub_u32 v{CC+k}, v{NW+k}, v{OLD+k}")
    a.e(f"v_add_u32 v{TT}, v{CC}, v{CC+1}")
    a.e(f"v_add3_u32 v{TT}, v{TT}, v{CC+2}, v{CC+3}")
    a.e(f"v_sub_u32 v{TT+1}, {K2_SW}, v{TT}")
    dpp_scan(a, TT)
    a.e(f"v_add_u32 v{TT+1}, v{TT+1}, v{TT}")
    a.e(f"v_readlane_b32 s{sN}, v{TT}, 63")
    for k in range(4):
        a.e(f"v_sub_u32 v{BS+k}, v{TT+1}, v{OLD+k}")
        if k < 3:
            a.e(f"v_add_u32 v{TT+1}, v{TT+1}, v{CC+k}")
        a.e(f"v_mov_b32 v{OLD+k}, v{NW+k}")
    a.e(f"ds_write_b128 v{vL16}, {vr(BS,4)} offset:{K2_BASE}")
    for i in range(16):
        a.e(f"ds_read_b32 v{KA+i}, v{KA+i} offset:{K2_BASE}")
    a.e(f"s_sub_u32 s{sT1}, s{sTG}, 32")
    stamp(4)
    poll(vPL, K2_FR, sT1)
    stamp(5)
    if 'k2_sprio' in cfg and cfg.get('k2_sprio_at', 0) == 1: a.e(f"s_setprio {cfg['k2_sprio']}")
    a.e(f"s_cmp_lg_u32 s{sWAVE}, 0")
    a.e(f"s_cbranch_scc1 K2_NOPAD")
    a.e(f"s_add_u32 s{sT0}, s{sN}, {K2_SW}")
    a.e(f"v_lshl_add_u32 v{TT}, v{vLANE}, 2, s{sT0}")
    a.e(f"v_mov_b32 v{TT+1}, {hex(DUMMY)}")
    a.e(f"ds_write_b32 v{TT}, v{TT+1}")
    a.e(f"v_mov_b32 v{TT+3}, s{sN}")
    a.e(f"ds_write_b32 v{vZERO}, v{TT+3} offset:{K2_NCELL}")
    a.e("K2_NOPAD:")
    for i in range(16):
        a.e(f"v_add_u32 v{U+i}, v{U+i}, v{KA+i}")
        a.e(f"v_lshrrev_b32 v{KA+i}, 1, v{U+i}")
    for i in range(16):
        c, h = i >> 1, i & 1
        a.e(f"s_mov_b64 exec, s[{MSK+2*i}:{MSK+2*i+1}]")
        a.e(f"ds_write_b32 v{U+i}, v{P(c)+2*h}")
        a.e(f"ds_write_b16{'_d16_hi' if h else ''} v{KA+i}, v{P(c)+1} offset:{K2_SA - K2_SW//2}")
    signal(vFOUR, K2_FS)
    stamp(4)
    if 'k2_sprio' in cfg: a.e(f"s_setprio {PPRIO}")
    a.e(f"s_cmp_lg_u32 s{sN}, 0")
    a.e("s_cbranch_scc1 K2_PLOOP")
    epi_pre(T_ + 8, T_ + 12)
    a.e("s_branch K2_EPI")

    a.e("K2_CONS:")
    vCT, vA4, vA2 = 3, 4, 5
    SW_, SA_ = 6, 19
    CUR = 32
    NCOL = {3: 5, 2: 4, 4: 7, 5: 7}[D]
    COL = {3: [0,1,2,3,0,1,2,3,0,1,2,3,4], 2: [0,1,2,0,1,2,0,1,2,0,1,2,3],
           4: [0,1,2,3,4,5,0,1,2,3,4,5,6], 5: [0,1,2,3,4,5,0,1,2,3,4,5,6]}[D]
    GP = 60
    assert CUR + 4 * NCOL <= GP
    MXR, WOP = 32, 36
    DB = [T_, 40]
    Y = T_ + 16
    S_W1, S_W2, S_C, sGI = 40, 44, 48, 56
    import math, struct
    def f2h(x): return hex(struct.unpack('<I', struct.pack('<f', x))[0])
    def h2f(x): return struct.unpack('<f', struct.pack('<I', x))[0]
    KAP = math.sqrt(10.0 * math.log2(math.e))
    a.e(f"s_sub_u32 s{sWAVE}, s{sWAVE}, 8")
    a.e(f"v_add_u32 v{vCT}, -512, v0")
    a.e(f"s_mul_i32 s{sT0}, s{sB}, {EPB*2}")
    a.e(f"v_lshlrev_b32 v{T_+2}, 1, v{vCT}")
    a.e(f"v_add_u32 v{T_+2}, s{sT0}, v{T_+2}")
    a.e(f"v_add_u32 v{T_+3}, 4096, v{T_+2}")
    for k in range(7):
        a.e(f"v_mov_b32 v{GP+2*k}, 0")
    for k in range(7):
        a.e(f"buffer_load_short_d16_hi v{GP+2*k}, v{T_+2+(k>>2)}, s[{S_X}:{S_X+3}], 0 offen offset:{(k&3)*1024}")
    a.e("s_barrier")
    a.e(f"v_lshlrev_b32 v{T_}, 4, v{vLANE}")
    a.e(f"s_mov_b32 s{sT1}, {MX_OFF}")
    a.e(f"buffer_load_dwordx4 {vr(MXR,4)}, v{T_}, s[{S_WS}:{S_WS+3}], s{sT1} offen")
    a.e(f"s_mov_b32 s{S_W1}, s{S_Y+2}")
    a.e(f"s_mov_b32 s{S_W1+1}, s{S_Y+3}")
    a.e(f"s_mov_b32 s{S_W1+2}, 128")
    a.e(f"s_mov_b32 s{S_W1+3}, 0x00020000")
    a.e(f"s_mov_b32 s{S_W2}, s{S_Y}")
    a.e(f"s_mov_b32 s{S_W2+1}, s{S_Y+1}")
    a.e(f"s_mov_b32 s{S_W2+2}, 64")
    a.e(f"s_mov_b32 s{S_W2+3}, 0x00020000")
    for q in range(8):
        a.e(f"v_mov_b32 v{WOP+q}, 0")
    a.e(f"v_and_b32 v{T_+4}, 1, v{vLANE}")
    a.e(f"v_and_b32 v{T_+5}, 2, v{vLANE}")
    a.e(f"v_lshl_or_b32 v{T_+4}, v{T_+4}, 3, v{T_+5}")
    a.e(f"v_bfe_u32 v{T_+5}, v{vLANE}, 3, 1")
    a.e(f"v_lshl_or_b32 v{T_+4}, v{T_+5}, 2, v{T_+4}")
    a.e(f"v_and_b32 v{T_+5}, 3, v{vLANE}")
    a.e(f"v_lshlrev_b32 v{T_+5}, 1, v{T_+5}")
    a.e(f"s_mov_b32 exec_lo, 0x00000f0f")
    a.e(f"s_mov_b32 exec_hi, 0x0000f0f0")
    for r in range(8):
        a.e(f"buffer_load_short_d16{'_hi' if r & 1 else ''} v{WOP+(r>>1)+4*(r&1)}, v{T_+4}, s[{S_W1}:{S_W1+3}], 0 offen offset:{16*r}")
    a.e(f"s_mov_b32 exec_lo, 0x000f0000")
    a.e(f"s_mov_b32 exec_hi, 0x00f00000")
    for r in range(8):
        a.e(f"buffer_load_short_d16{'_hi' if r & 1 else ''} v{WOP+(r>>1)+4*(r&1)}, v{T_+5}, s[{S_W2}:{S_W2+3}], 0 offen offset:{8*r}")
    a.e(f"s_mov_b64 exec, -1")
    epi_pre(T_ + 8, T_ + 12)
    a.e(f"s_add_u32 s{S_MD}, s{S_WS}, {MD_OFF}")
    a.e(f"s_addc_u32 s{S_MD+1}, s{S_WS+1}, 0")
    a.e(f"s_or_b32 s{S_MD+1}, s{S_MD+1}, 0x80000")
    a.e(f"s_mov_b32 s{S_MD+2}, {E}")
    a.e(f"s_mov_b32 s{S_MD+3}, 0x00020000")
    for r in range(8):
        a.e(f"s_mov_b32 s{S_C+r}, {f2h(-KAP * h2f(CENTERS[r]))}")
    RBS = [4 + 4 * k for k in range(7)]
    X = Y
    for k in range(7):
        dv = GP + 2 * k
        a.e(f"s_waitcnt vmcnt({6 - k + 21})")
        a.e(f"v_mul_f32 v{dv}, {f2h(KAP)}, v{dv}")
        for q in range(4):
            a.e(f"v_pk_add_f32 {vr(X+2*q,2)}, {vr(dv,2)}, s[{S_C+2*q}:{S_C+2*q+1}] op_sel_hi:[0,1]")
        for q in range(4):
            a.e(f"v_pk_mul_f32 {vr(X+2*q,2)}, {vr(X+2*q,2)}, {vr(X+2*q,2)}")
        for r in range(8):
            a.e(f"v_exp_f32 v{X+r}, -v{X+r}")
        for q in range(4):
            a.e(f"v_cvt_pk_bf16_f32 v{RBS[k]+q}, v{X+2*q}, v{X+2*q+1}")
    a.e("s_waitcnt vmcnt(4)")
    for q in range(4):
        a.e(f"v_or_b32 v{WOP+q}, v{WOP+q}, v{WOP+4+q}")
    def mf(k):
        a.e(f"v_mfma_f32_32x32x16_bf16 {vr(DB[k&1],16)}, {vr(WOP,4)}, {vr(RBS[k],4)}, 0")
    mf(0)
    t = Y
    a.e(f"v_max_u32 v{MXR}, v{MXR}, v{MXR+1}")
    a.e(f"v_max_u32 v{MXR+2}, v{MXR+2}, v{MXR+3}")
    a.e(f"v_max_u32 v{MXR}, v{MXR}, v{MXR+2}")
    dpp_scan(a, MXR, "v_max_u32")
    a.e("K2_NBP:")
    a.e(f"ds_read_b32 v{t}, v{vZERO} offset:{K2_NB}")
    a.e("s_waitcnt lgkmcnt(0)")
    a.e(f"v_readfirstlane_b32 s{sT0}, v{t}")
    a.e(f"s_and_b32 s{sT0}, s{sT0}, 15")
    a.e(f"s_cmp_lt_u32 s{sT0}, 8")
    a.e("s_cbranch_scc1 K2_NBP")
    a.e(f"v_lshrrev_b32 v{t}, 4, v{t}")
    a.e(f"v_cvt_f32_u32 v{t}, v{t}")
    a.e(f"v_mul_f32 v{t}, v{t}, v{MXR}")
    a.e(f"v_rcp_f32 v{t}, v{t}")
    a.e(f"v_mul_f32 v{t}, 0x4efc0000, v{t}")
    a.e(f"v_min_f32 v{t}, 0x5d800000, v{t}")
    a.e(f"v_rcp_f32 v{t+1}, v{t}")
    a.e(f"v_readlane_b32 s{sG}, v{t}, 63")
    a.e(f"v_lshlrev_b32 v{Y+8}, 4, v{vCT}")
    a.e(f"v_add_u32 v{Y+8}, {K2_A}, v{Y+8}")
    a.e(f"v_readlane_b32 s{sGI}, v{t+1}, 63")
    a.e(f"s_mov_b32 s{sT0}, 0x21800000")
    for k in range(7):
        if k < 6: mf(k + 1)
        o = DB[k & 1]
        for d in range(4):
            a.e(f"v_add_f32 v{Y+d}, abs(v{o+2*d}), abs(v{o+2*d+1})")
        a.e(f"v_max3_f32 v{Y}, v{Y}, v{Y+1}, v{Y+2}")
        a.e(f"v_max3_f32 v{Y+2}, v{Y}, v{Y+3}, s{sT0}")
        a.e(f"v_rcp_f32 v{Y}, v{Y+2}")
        a.e(f"v_mul_f32 v{Y+2}, s{sGI}, v{Y+2}")
        a.e(f"v_mul_f32 v{Y}, s{sG}, v{Y}")
        for q in range(2):
            a.e(f"v_pk_mul_f32 {vr(o+8+2*q,2)}, {vr(o+8+2*q,2)}, {vr(Y+2,2)} op_sel_hi:[1,0]")
        a.e(f"v_add_f32 v{Y+1}, v{Y}, v{Y}")
        for q in range(2):
            a.e(f"v_cvt_pk_bf16_f32 v{GP+2*k+q}, v{o+8+2*q}, v{o+9+2*q}")
        for d in range(4):
            a.e(f"v_pk_mul_f32 {vr(o+2*d,2)}, {vr(o+2*d,2)}, {vr(Y,2)}")
        for d in range(4):
            a.e(f"v_cvt_pk_bf16_f32 v{Y+4+d}, v{o+2*d}, v{o+2*d+1}")
        if k == 6:
            a.e(f"v_cmp_gt_u32 vcc, {EPB - 3072}, v{vCT}")
            a.e(f"s_mov_b64 exec, vcc")
        a.e(f"ds_write_b128 v{Y+8}, {vr(Y+4,4)} offset:{8192*k}")
        if k == 6:
            a.e(f"s_mov_b64 exec, -1")
    for s in range(NS):
        a.e(f"v_mov_b32 v{SW_+s}, {hex(DUMMY)}")
        a.e(f"v_mov_b32 v{SA_+s}, 0")
    a.e(f"s_mov_b32 s{sCNT}, 0")
    stamp(6)

    uid = [0]
    stubs = []
    AVB = [T_, T_ + 12, T_ + 16]
    ACOL = [0, 1] * 6 + [2]
    assert LATE == 2
    def alpha1(W, cur):
        G0, L16, C_ = cur, cur + 2, cur + 3
        a.e(f"v_and_b32 v{L16}, {hex(cfg.get('x_gmask', 0xfffff))}, v{W}")
        if not cfg.get('x_nog'):
            a.e(f"buffer_load_dwordx2 {vr(G0,2)}, v{L16}, s[{S_MD}:{S_MD+3}], 0 idxen")
    def alpha2(W, A, cur):
        G0, L16, C_ = cur, cur + 2, cur + 3
        a.e(f"v_mul_f32 v{C_}, 0.15915494, v{A}")
        a.e(f"v_fract_f32 v{C_}, v{C_}")
        a.e(f"v_cos_f32 v{C_}, v{C_}")
        a.e(f"v_and_b32_sdwa v{L16}, v{W}, s{sFFF0} dst_sel:DWORD dst_unused:UNUSED_PAD src0_sel:WORD_1 src1_sel:DWORD" if cfg.get('x_lin',0) < 2 else f"v_lshlrev_b32 v{L16}, 4, v{vLANE}")
        a.e(f"v_fma_f32 v{T_+8}, v{C_}, v{C_}, -0.5")
        a.e(f"v_cvt_pk_bf16_f32 v{C_}, v{C_}, v{T_+8}")
    def rdA(cur, AV_):
        a.e(f"ds_read_b128 {vr(AV_,4)}, v{cur+2} offset:{K2_A}")
    def beta(cur, AV_, lg, vm):
        G0, L16, C_ = cur, cur + 2, cur + 3
        M_ = T_ + 4
        a.e(f"v_lshrrev_b32 v{L16}, 2, v{L16}" if not cfg.get('x_lin') else f"v_lshlrev_b32 v{L16}, 2, v{vLANE}")
        if lg is not None:
            a.e(f"s_waitcnt lgkmcnt({lg})")
        for d in range(4):
            a.e(f"v_dot2_f32_bf16 v{AV_+d}, v{AV_+d}, v{C_}, 0")
        a.e(f"s_waitcnt vmcnt({vm})")
        a.e(f"v_lshlrev_b32 v{M_}, 16, v{G0}")
        a.e(f"v_and_b32 v{M_+1}, s{sHI}, v{G0}")
        a.e(f"v_lshlrev_b32 v{M_+2}, 16, v{G0+1}")
        a.e(f"v_and_b32 v{M_+3}, s{sHI}, v{G0+1}")
        if cfg.get('k2_pk', True):
            for d in range(0, 4, 2):
                a.e(f"v_pk_mul_f32 {vr(M_+d,2)}, {vr(M_+d,2)}, {vr(AV_+d,2)}")
        else:
            for d in range(4):
                a.e(f"v_mul_f32 v{M_+d}, v{M_+d}, v{AV_+d}")
        for d in range(4):
            a.e(f"v_cvt_rpi_i32_f32 v{M_+d}, v{M_+d}")
        for d in range(4):
            a.e(f"ds_add_u32 v{L16}, v{M_+d} offset:{K2_ACC + d*ACC_STR}")
    def cur(s): return CUR + 4 * COL[s]
    def av(s): return AVB[ACOL[s]]
    def step(s, cnt_of, lg, stub=False):
        p = (s - D) % NS
        pn = (p + 1) % NS
        uid[0] += 1
        alpha1(SW_ + s, cur(s))
        rdA(cur(pn), av(pn))
        alpha2(SW_ + s, SA_ + s, cur(s))
        a.e(f"s_cmp_le_u32 s{cnt_of(p)}, {p}")
        if stub:
            a.e(f"s_cbranch_scc1 K2_ST{uid[0]}")
            stubs.append(uid[0])
        else:
            a.e(f"s_cbranch_scc1 K2_SB{uid[0]}")
        beta(cur(p), av(p), lg, D)
        a.e(f"K2_SB{uid[0]}:")
    def readslot(s):
        uid[0] += 1
        a.e(f"s_cmp_le_u32 s{sCNT}, {s}")
        a.e(f"s_cbranch_scc1 K2_RD{uid[0]}")
        a.e(f"ds_read_b32 v{SW_+s}, v{vA4} offset:{256*s}")
        a.e(f"ds_read_u16_d16_hi v{SA_+s}, v{vA2} offset:{128*s}")
        a.e(f"s_branch K2_RE{uid[0]}")
        a.e(f"K2_RD{uid[0]}:")
        a.e(f"v_mov_b32 v{SW_+s}, {hex(DUMMY)}")
        a.e(f"K2_RE{uid[0]}:")
    for c_ in range(NCOL):
        a.e(f"v_mov_b32 v{CUR+4*c_+2}, 0")
    vC4 = T_ + 9
    a.e(f"v_mov_b32 v{vC4}, 4")
    signal(vC4, K2_FS)
    a.e(f"s_mov_b32 s{sTG}, 32")
    if cfg.get('k2_cprio', 0): a.e(f"s_setprio {cfg['k2_cprio']}")
    a.e("K2_CLOOP:")
    a.e(f"ds_read_b64 {vr(T_+10,2)}, v{vZERO} offset:{K2_FS}")
    a.e(f"s_mov_b32 s{sCNP}, s{sCNT}")
    a.e(f"s_add_u32 s{sTG}, s{sTG}, 32")
    step(NS - 2, lambda p: sCNP, 6, stub=True)
    a.e("s_waitcnt lgkmcnt(4)")
    stamp(7)
    a.e("K2_CPOLL:")
    a.e(f"v_readfirstlane_b32 s{sT0}, v{T_+10}")
    a.e(f"v_readfirstlane_b32 s{sN}, v{T_+11}")
    a.e(f"s_cmp_lt_u32 s{sT0}, s{sTG}")
    a.e("s_cbranch_scc1 K2_CPOLL2")
    stamp(8)
    a.e(f"s_add_u32 s{sT0}, s{sN}, 255")
    a.e(f"s_lshr_b32 s{sT0}, s{sT0}, 8")
    a.e(f"s_mul_i32 s{sT1}, s{sT0}, s{sWAVE}")
    a.e(f"s_add_u32 s{sT0}, s{sT1}, s{sT0}")
    a.e(f"s_lshr_b32 s{sT1}, s{sT1}, 3")
    a.e(f"s_lshr_b32 s{sT0}, s{sT0}, 3")
    a.e(f"s_sub_u32 s{sCNT}, s{sT0}, s{sT1}")
    a.e(f"s_lshl_b32 s{sT1}, s{sT1}, 7")
    a.e(f"s_add_u32 s{sT0}, s{sT1}, {K2_SA}")
    a.e(f"s_lshl_b32 s{sT1}, s{sT1}, 1")
    a.e(f"s_add_u32 s{sT1}, s{sT1}, {K2_SW}")
    a.e(f"v_lshl_add_u32 v{vA4}, v{vLANE}, 2, s{sT1}")
    a.e(f"v_lshl_add_u32 v{vA2}, v{vLANE}, 1, s{sT0}")
    a.e(f"s_cmp_lt_u32 s{sCNT}, {NS-1}")
    a.e("s_cbranch_scc1 K2_RSLOW")
    for s in range(NS - 1):
        a.e(f"ds_read_b32 v{SW_+s}, v{vA4} offset:{256*s}")
        a.e(f"ds_read_u16_d16_hi v{SA_+s}, v{vA2} offset:{128*s}")
    a.e("K2_RDONE:")
    step(NS - 1, lambda p: sCNP, None, stub=True)
    a.e(f"s_cmp_eq_u32 s{sN}, 0")
    a.e("s_cbranch_scc1 K2_CFIN")
    a.e("s_waitcnt lgkmcnt(4)")
    readslot(NS - 1)
    a.e(f"s_cmp_gt_u32 s{sCNT}, {NS}")
    a.e("s_cbranch_scc1 K2_EXTRA")
    a.e("K2_NOEXTRA:")
    signal(vC4, K2_FR)
    for s in range(NS - LATE):
        p = (s - D) % NS
        if TRACE and s in cfg.get('trace_steps', [0, 4, 8]): stamp(9)
        step(s, lambda p: sCNP if p >= NS - D else sCNT, None if s == 0 else (1 if p == 0 else 5))
    a.e("s_branch K2_CLOOP")
    for u in stubs:
        a.e(f"K2_ST{u}:")
        a.e("s_waitcnt lgkmcnt(0)")
        a.e(f"s_branch K2_SB{u}")
    a.e("K2_CPOLL2:")
    if cfg.get('k2_slp', 0): a.e(f"s_sleep {cfg['k2_slp']}")
    a.e(f"ds_read_b64 {vr(T_+10,2)}, v{vZERO} offset:{K2_FS}")
    a.e("s_waitcnt lgkmcnt(0)")
    a.e("s_branch K2_CPOLL")
    a.e("K2_RSLOW:")
    for s in range(NS - 1):
        readslot(s)
    a.e("s_branch K2_RDONE")
    a.e("K2_EXTRA:")
    XW, XC, XA = T_ + 20, T_ + 24, T_ - 4
    for s in range(NS, 16):
        if s > NS:
            a.e(f"s_cmp_le_u32 s{sCNT}, {s}")
            a.e("s_cbranch_scc1 K2_NOEXTRA")
        a.e(f"v_mov_b32 v{XW+1}, 0")
        a.e(f"ds_read_b32 v{XW}, v{vA4} offset:{256*s}")
        a.e(f"ds_read_u16_d16_hi v{XW+1}, v{vA2} offset:{128*s}")
        a.e("s_waitcnt lgkmcnt(0)")
        alpha1(XW, XC)
        alpha2(XW, XW + 1, XC)
        rdA(XC, XA)
        beta(XC, XA, 0, 0)
    a.e("s_branch K2_NOEXTRA")
    a.e("K2_CFIN:")
    for i in range(D):
        p = NS - D + i
        uid[0] += 1
        a.e(f"s_cmp_le_u32 s{sCNP}, {p}")
        a.e(f"s_cbranch_scc1 K2_SB{uid[0]}")
        if i > 0: rdA(cur(p), av(p))
        beta(cur(p), av(p), 0, D - 1 - i)
        a.e(f"K2_SB{uid[0]}:")
    a.e(f"v_lshlrev_b32 v{T_}, 3, v{vCT}")
    a.e(f"v_add_u32 v{T_}, {K2_SA}, v{T_}")
    for k in range(7):
        a.e(f"ds_write_b64 v{T_}, {vr(GP+2*k,2)} offset:{4096*k}")

    a.e("K2_EPI:")
    a.e(f"s_load_dwordx2 s[{S_Y}:{S_Y+1}], s[0:1], 88")
    a.e(f"s_mov_b32 s{S_Y+2}, {E*8}")
    a.e(f"s_mov_b32 s{S_Y+3}, 0x00020000")
    OF, AC, UU, GG = 10, 22, 38, 14
    epi_off(OF, T_)
    a.e(f"v_lshlrev_b32 v{T_+1}, 2, v0")
    a.e(f"v_lshlrev_b32 v{T_+2}, 3, v0")
    a.e(f"v_add_u32 v{T_+2}, {K2_SA}, v{T_+2}")
    for d in range(4):
        for h in range(2):
            src = S_WU + 8 + 2 * d + h
            a.e(f"s_lshl_b32 s{S_WA+4*d+2*h}, s{src}, 16")
            a.e(f"s_and_b32 s{S_WA+4*d+2*h+1}, s{src}, s{sHI}")
    a.e("s_waitcnt vmcnt(0) lgkmcnt(0)")
    a.e("s_barrier")
    for k in range(4):
        for d in range(4):
            a.e(f"ds_read_b32 v{AC+4*k+d}, v{T_+1} offset:{K2_ACC + d*ACC_STR + 4096*k}")
        a.e(f"ds_read_b64 {vr(GG+2*k,2)}, v{T_+2} offset:{8192*k}")
        if k == 1:
            a.e("s_waitcnt lgkmcnt(0)")
    a.e("s_waitcnt lgkmcnt(0)")
    for k in range(4):
        for d in range(4):
            a.e(f"v_cvt_f32_i32 v{AC+4*k+d}, v{AC+4*k+d}")
        for dp_ in range(4):
            a.e(f"v_mul_f32 v{UU+4*k+dp_}, s{S_WA+dp_}, v{AC+4*k}")
        for d in range(1, 4):
            for dp_ in range(4):
                a.e(f"v_fmac_f32 v{UU+4*k+dp_}, s{S_WA+4*d+dp_}, v{AC+4*k+d}")
        a.e(f"v_lshlrev_b32 v{AC+4*k}, 16, v{GG+2*k}")
        a.e(f"v_and_b32 v{AC+4*k+1}, s{sHI}, v{GG+2*k}")
        a.e(f"v_lshlrev_b32 v{AC+4*k+2}, 16, v{GG+2*k+1}")
        a.e(f"v_and_b32 v{AC+4*k+3}, s{sHI}, v{GG+2*k+1}")
    for k in range(4):
        a.e(f"v_lshlrev_b32 v{T_+4}, 16, v{MM+2*k}")
        a.e(f"v_and_b32 v{T_+5}, s{sHI}, v{MM+2*k}")
        a.e(f"v_lshlrev_b32 v{T_+6}, 16, v{MM+2*k+1}")
        a.e(f"v_and_b32 v{T_+7}, s{sHI}, v{MM+2*k+1}")
        for d in range(4):
            a.e(f"v_fmac_f32 v{T_+4+d}, v{UU+4*k+d}, v{AC+4*k+d}")
        a.e(f"v_cvt_pk_bf16_f32 v{MM+2*k}, v{T_+4}, v{T_+5}")
        a.e(f"v_cvt_pk_bf16_f32 v{MM+2*k+1}, v{T_+6}, v{T_+7}")
        a.e(f"buffer_store_dwordx2 {vr(MM+2*k,2)}, v{OF+k}, s[{S_Y}:{S_Y+3}], 0 offen")
    if PROF:
        a.e("s_waitcnt vmcnt(0)")
        stamp(10)
        a.e(f"s_cmp_lg_u32 s2, 77")
        a.e("s_cbranch_scc1 K2_END")
        a.e(f"s_load_dwordx2 s[{S_X}:{S_X+1}], s[0:1], 96")
        a.e(f"s_mov_b32 s{S_X+2}, 256")
        a.e("s_waitcnt lgkmcnt(0)")
        a.e("s_mov_b64 exec, 1")
        for i in range(11):
            a.e(f"s_lshl_b32 s{sPA+i}, s{sPA+i}, 5")
            a.e(f"v_mov_b32 v1, s{sPA+i}")
            a.e(f"v_mov_b32 v2, {4*i}")
            a.e(f"buffer_atomic_add v1, v2, s[{S_X}:{S_X+3}], 0 offen")
    if TRACE:
        a.e("s_waitcnt vmcnt(0)")
        stamp(10)
        a.e(f"s_cmp_lg_u32 s2, {cfg.get('trace_wg', 77)}")
        a.e("s_cbranch_scc1 K2_END")
        a.e(f"s_load_dwordx2 s[{S_X}:{S_X+1}], s[0:1], 96")
        a.e(f"s_mov_b32 s{S_X+2}, 4096")
        a.e("s_waitcnt lgkmcnt(0)")
        a.e(f"v_lshlrev_b32 v1, 2, v0")
        a.e(f"buffer_store_dword v{vTR}, v1, s[{S_X}:{S_X+3}], 0 offen")
    if cfg.get('rt'): rt_end(a, 1, S_X)
    a.e("K2_END:")
    a.e("s_endpgm")
    return fix_hazards(a.lines)
```

```python
from asmlib import *
from consts import *
from k1 import dpp_scan
import math, struct

L_CNT2 = 0
L_MISC = 1024
L_STG = 1280
L_CNT1 = 5440
L_TILE = 13632
L_TOTAL = L_TILE + TILE_B
M_WTOT = L_MISC
M_PS = L_MISC + 32
M_QS = L_MISC + 48
M_MAXC = L_MISC + 64
M_QM = L_MISC + 68
M_PD = L_MISC + 72
M_Q2 = L_MISC + 76
M_Q3 = L_MISC + 80
M_QR = L_MISC + 84
M_TK = L_MISC + 88
M_G = L_MISC + 100
M_NB = L_MISC + 112
M_FS = L_MISC + 120
M_NCELL = L_MISC + 124
M_FH = L_MISC + 128
M_FR = L_MISC + 132
M_FP = L_MISC + 136
L_BASE = L_CNT1
L_ACC = L_CNT1 + 1024
L_A = L_ACC + 4 * ACC_STR
L_SA = L_A + 3128 * 16
L_SW = L_SA + 16384
L_GP = L_SW + 256
assert L_SW + 32768 + 256 <= L_TOTAL and L_A <= 65535
F_OFF = [0, 64, 128]
NS = 13
MB_OFF = MX_OFF + 0x10000
DUMMY = (EPB << 20) | 0xFFFFF

def f2h(x): return hex(struct.unpack('<I', struct.pack('<f', x))[0])
def h2f(x): return struct.unpack('<f', struct.pack('<I', x))[0]

def gen_km(cfg):
    a = Asm()
    LDNT = " nt"
    ST = " sc1"
    DEP = cfg.get('k1_dep', 5)
    KS = cfg.get('ks', 2)
    NR = 12
    TRACE = cfg.get('trace', False)
    RT = cfg.get('rt', False)
    S_DBG = 92
    sPT, sPA = 88, 90
    sMBX = 91
    trv = [127]
    def stamp(i, wait=True):
        if not TRACE: return
        v = trv[0]
        if i < 0:
            a.e(f"s_mov_b32 s{sPA}, 0")
            a.e(f"v_mov_b32 v{v}, 0")
            i = 15
        a.e(f"s_memtime s[{sPT}:{sPT+1}]")
        a.wlg0()
        a.e(f"s_andn2_b32 s{sPT}, s{sPT}, 15")
        a.e(f"s_or_b32 s{sPT}, s{sPT}, {i}")
        a.e(f"s_mov_b32 m0, s{sPA}")
        a.e(f"s_add_u32 s{sPA}, s{sPA}, 1")
        a.e(f"s_min_u32 s{sPA}, s{sPA}, 63")
        a.e(f"v_writelane_b32 v{v}, s{sPT}, m0")
    def trmove(new):
        if TRACE: a.e(f"v_mov_b32 v{new}, v{trv[0]}")
        trv[0] = new
    uid = [0]
    def lab(p):
        uid[0] += 1
        return f"{p}{uid[0]}"
    SLP = cfg.get('slp', 4)
    def lpoll(vz, vt, st, off, tgt, slp=0):
        l = lab("PL")
        if slp:
            a.e(f"s_branch {l}x")
        a.e(f"{l}:")
        if slp:
            a.e(f"s_sleep {slp}")
            a.e(f"{l}x:")
        a.e(f"ds_read_b32 v{vt}, v{vz} offset:{off}")
        a.wlg0()
        a.e(f"v_readfirstlane_b32 s{st}, v{vt}")
        a.e(f"s_cmp_lt_u32 s{st}, {tgt}")
        a.e(f"s_cbranch_scc1 {l}")
    def lsig(vz, vone, off):
        a.e("s_mov_b64 exec, 1")
        a.lds(f"ds_add_u32 v{vz}, v{vone} offset:{off}")
        a.e("s_mov_b64 exec, -1")
    def last_wave(vz, vt, st, off, skip):
        a.e(f"v_mov_b32 v{vt}, 1")
        a.e("s_mov_b64 exec, 1")
        a.e(f"ds_add_rtn_u32 v{vt}, v{vz}, v{vt} offset:{off}")
        a.wlg0()
        a.e(f"v_readfirstlane_b32 s{st}, v{vt}")
        a.e(f"s_cmp_lg_u32 s{st}, 7")
        a.e(f"s_cbranch_scc1 {skip}")
    def gsig(vz, vt, f):
        a.e(f"v_mov_b32 v{vt}, 1")
        a.e(f"global_atomic_add v{vt}, v{vz}, v{vt}, s[{S_DBG}:{S_DBG+1}] offset:{F_OFF[f]} sc0")
    def relay(vt, va, st, f, skip):
        a.e(f"v_readlane_b32 s{st}, v{vt}, 0")
        a.e(f"s_cmp_lg_u32 s{st}, {NWG - 1}")
        a.e(f"s_cbranch_scc1 {skip}")
        a.e("s_mov_b64 exec, -1")
        a.e(f"v_and_b32 v{va}, 63, v0")
        a.e(f"v_lshlrev_b32 v{va}, 8, v{va}")
        a.e(f"v_mov_b32 v{vt}, 1")
        for q in range(4):
            a.e(f"s_mov_b32 s{st}, {MB_OFF + q*64*256 + 4*f}")
            a.e(f"buffer_store_dword v{vt}, v{va}, s[16:19], s{st} offen sc1")
    def gwait(vz, vt, st, st2, f, acquire):
        lw, lp, ld = lab("GW"), lab("GP"), lab("GD")
        a.e(f"v_mov_b32 v{vt}, 1")
        a.e("s_mov_b64 exec, 1")
        a.e(f"ds_add_rtn_u32 v{vt}, v{vz}, v{vt} offset:{M_TK + 4*f}")
        a.wlg0()
        a.e(f"v_readfirstlane_b32 s{st}, v{vt}")
        a.e(f"s_cmp_lg_u32 s{st}, 0")
        a.e(f"s_cbranch_scc1 {lw}")
        if f == 0: lpoll(vz, vt, st, M_QM, 8)
        a.e(f"s_mov_b32 s{st2}, {cfg.get('spin', 200000)}")
        a.e(f"{lp}:")
        a.e(f"buffer_load_dword v{vt}, v{vz}, s[16:19], s{sMBX} offen offset:{4*f} sc1")
        a.e(f"s_sub_u32 s{st2}, s{st2}, 1")
        a.e(f"s_cbranch_scc1 {ld}")
        a.e("s_waitcnt vmcnt(0)")
        a.e(f"v_readfirstlane_b32 s{st}, v{vt}")
        a.e(f"s_cmp_eq_u32 s{st}, 0")
        a.e(f"s_cbranch_scc1 {lp}")
        a.e(f"{ld}:")
        if acquire:
            a.e("buffer_inv sc1")
        a.e("s_waitcnt vmcnt(0)")
        a.e(f"v_mov_b32 v{vt}, 1")
        a.e(f"ds_write_b32 v{vz}, v{vt} offset:{M_G + 4*f}")
        a.e(f"{lw}:")
        a.e("s_mov_b64 exec, -1")
        lpoll(vz, vt, st, M_G + 4 * f, 1, SLP)

    S_IN, S_OUT, S_ANG, S_WS, S_M = 4, 8, 12, 16, 20
    S_WD, S_WP = 28, 36
    sWAVE, sMB, sMJ, sNEG, sT0, sT1, sT2, sBASE, sOOB = 44, 45, 46, 47, 48, 49, 50, 51, 52
    sTOFF4, sTOFF2, sPAY, sREC, sR6, sHI, sK = 54, 55, 56, 57, 58, 59, 60
    vOFF16, vOFF8, vINC, vZERO, vX, vY, vZ = 1, 2, 3, 4, 5, 6, 7
    def RIN(r): return 8 + 8 * r if r < NR else 104
    def ROUT(r): return 12 + 8 * r if r < NR else 105
    RING = 106
    def RANG(r): return RING + 2 * (r % DEP)
    TMP = 116
    assert RING + 2 * DEP <= TMP

    a.e(f"s_cmp_ge_u32 s2, {NWG}")
    a.e("s_cbranch_scc1 KM_END")
    stamp(-1)
    if RT: a.e("s_memrealtime s[96:97]")
    a.e(f"s_load_dwordx2 s[{S_IN}:{S_IN+1}], s[0:1], 8")
    a.e(f"s_load_dwordx2 s[{S_OUT}:{S_OUT+1}], s[0:1], 16")
    a.e(f"s_load_dwordx2 s[{S_ANG}:{S_ANG+1}], s[0:1], 32")
    a.e(f"s_load_dwordx2 s[{S_WS}:{S_WS+1}], s[0:1], 104")
    a.e(f"s_load_dwordx2 s[{S_M}:{S_M+1}], s[0:1], 0")
    a.e(f"s_load_dwordx2 s[24:25], s[0:1], 72")
    a.e(f"s_load_dwordx2 s[{S_DBG}:{S_DBG+1}], s[0:1], 96")
    for s, n in ((S_IN, T * 4), (S_OUT, T * 4), (S_ANG, T * 2), (S_WS, WS_BYTES), (S_M, E * 8)):
        a.e(f"s_mov_b32 s{s+2}, {n}")
        a.e(f"s_mov_b32 s{s+3}, 0x00020000")
    a.e(f"v_lshrrev_b32 v{vX}, 6, v0")
    a.e(f"v_readfirstlane_b32 s{sWAVE}, v{vX}")
    a.e(f"v_mov_b32 v{vZERO}, 0")
    a.e(f"v_mov_b32 v{vX}, 0")
    a.e(f"v_lshlrev_b32 v{vY}, 3, v0")
    a.e(f"ds_write_b64 v{vY}, {vr(vZERO,2)} offset:{L_CNT1}")
    a.e(f"v_min_u32 v{vY}, {L_STG - 8}, v{vY}")
    a.e(f"ds_write_b64 v{vY}, {vr(vZERO,2)}")
    a.e(f"v_and_b32 v0, 511, v0")
    a.e(f"v_lshlrev_b32 v{vOFF16}, 4, v0")
    a.e(f"v_lshlrev_b32 v{vOFF8}, 3, v0")
    a.e(f"s_mov_b32 s{sMB}, {MB}")
    a.e(f"s_mov_b32 s{sMJ}, {MJ}")
    a.e(f"s_mov_b32 s{sNEG}, {-EPB}")
    a.e(f"s_mov_b32 s{sOOB}, 0x80000000")
    a.e(f"s_mov_b32 s{sHI}, 0xffff0000")
    a.e(f"s_mov_b32 s{sK}, {L_TILE}")
    a.e(f"s_lshl_b32 s{sMBX}, s2, 8")
    a.e(f"s_add_u32 s{sMBX}, s{sMBX}, {MB_OFF}")
    a.e(f"s_lshr_b32 s{sBASE}, s{sWAVE}, 3")
    a.e(f"s_and_b32 s{sWAVE}, s{sWAVE}, 7")
    a.e(f"s_lshl_b32 s{sT0}, s{sBASE}, 8")
    a.e(f"s_add_u32 s{sT0}, s{sT0}, s2")
    a.e(f"s_mul_i32 s{sPAY}, s{sT0}, {TILE_B}")
    a.e(f"s_mul_i32 s{sREC}, s{sT0}, {REC_STR}")
    a.e(f"s_add_u32 s{sREC}, s{sREC}, {REC_OFF}")
    a.e(f"s_mul_i32 s{sT1}, s{sT0}, 3125")
    a.e(f"s_add_u32 s{sT2}, s{sT1}, 3125")
    a.e(f"s_lshr_b32 s{sT1}, s{sT1}, 3")
    a.e(f"s_lshr_b32 s{sT2}, s{sT2}, 3")
    a.e(f"s_sub_u32 s{sT2}, s{sT2}, s{sT1}")
    a.e(f"s_sub_u32 s{sT2}, s{sT2}, 384")
    a.e(f"s_lshl_b32 s{sTOFF4}, s{sT1}, 8")
    a.e(f"s_lshl_b32 s{sTOFF2}, s{sT1}, 7")
    a.e(f"s_cmp_lt_u32 s{sWAVE}, s{sT2}")
    a.e(f"s_cselect_b32 s{sR6}, 0, s{sOOB}")
    a.e("s_waitcnt lgkmcnt(0)")
    a.e("s_barrier")
    a.e(f"s_cmp_lg_u32 s{sBASE}, 0")
    a.e("s_cbranch_scc1 KM_Q")

    def loads(r):
        a.e(f"s_add_u32 s{sT0}, s{sTOFF4}, {r * 8192}")
        a.e(f"s_add_u32 s{sT1}, s{sTOFF2}, {r * 4096}")
        if r < NR:
            a.vmem(f"buffer_load_dwordx4 {vr(RIN(r),4)}, v{vOFF16}, s[{S_IN}:{S_IN+3}], s{sT0} offen{LDNT}", ('L', r))
            a.vmem(f"buffer_load_dwordx4 {vr(ROUT(r),4)}, v{vOFF16}, s[{S_OUT}:{S_OUT+3}], s{sT0} offen{LDNT}", ('L', r))
            a.vmem(f"buffer_load_dwordx2 {vr(RANG(r),2)}, v{vOFF8}, s[{S_ANG}:{S_ANG+3}], s{sT1} offen{LDNT}", ('A', r))
        else:
            a.e(f"v_lshl_or_b32 v{TMP+8}, v0, 2, s{sR6}")
            a.e(f"v_lshl_or_b32 v{TMP+9}, v0, 1, s{sR6}")
            a.vmem(f"buffer_load_dword v{RIN(r)}, v{TMP+8}, s[{S_IN}:{S_IN+3}], s{sT0} offen{LDNT}", ('L', r))
            a.vmem(f"buffer_load_dword v{ROUT(r)}, v{TMP+8}, s[{S_OUT}:{S_OUT+3}], s{sT0} offen{LDNT}", ('L', r))
            a.vmem(f"buffer_load_ushort v{RANG(r)}, v{TMP+9}, s[{S_ANG}:{S_ANG+3}], s{sT1} offen{LDNT}", ('A', r))

    def hist(r):
        a.wvm(('L', r))
        n = 4 if r < NR else 1
        if r == NR:
            a.e(f"s_cmp_eq_u32 s{sR6}, 0")
            a.e(f"s_cselect_b64 exec, -1, 0")
        for k in range(n):
            vi, vo, t0, t1 = RIN(r) + k, ROUT(r) + k, TMP + k, TMP + 4 + k
            a.e(f"v_mul_hi_u32 v{t0}, v{vo}, s{sMB}")
            a.e(f"v_mul_hi_u32 v{t1}, v{vi}, s{sMJ}")
            a.e(f"v_mad_i32_i24 v{vo}, v{t0}, s{sNEG}, v{vo}")
            a.e(f"v_lshlrev_b32 v{t0}, 2, v{t0}")
            a.e(f"v_lshl_or_b32 v{vi}, v{vo}, 20, v{vi}")
            a.e(f"v_lshl_add_u32 v{t0}, v{t1}, 10, v{t0}")
            a.e(f"ds_add_u32 v{t0}, v{vINC} offset:{L_CNT1}")
        a.wvm(('A', r))
        for k in range(n):
            if k & 1:
                a.e(f"v_and_or_b32 v{ROUT(r)+k}, v{RANG(r)+(k>>1)}, s{sHI}, v{TMP+k}")
            else:
                a.e(f"v_lshl_or_b32 v{ROUT(r)+k}, v{RANG(r)+(k>>1)}, 16, v{TMP+k}")
        if r == NR:
            a.e("s_mov_b64 exec, -1")

    def group(g):
        nsync = [0]
        def sync(tgt=8):
            off = (M_QS if g else M_PS) + 4 * nsync[0]
            nsync[0] += 1
            a.e(f"v_mov_b32 v{vZ}, 1")
            lsig(vZERO, vZ, off)
            lpoll(vZERO, vZ, sT0, off, tgt)
        a.e(f"v_mov_b32 v{vINC}, {1 if g == 0 else 0x10000}")
        for r in range(DEP):
            loads(r)
        for r in range(NR + 1):
            hist(r)
            if r + DEP <= NR: loads(r + DEP)
        stamp(2)
        C, SS, W0 = 108, 112, 116
        SC = W0 + 7
        a.e(f"v_lshrrev_b32 v{SS+2}, 7, v0")
        a.e(f"v_and_b32 v{SS+3}, 127, v0")
        a.e(f"v_lshlrev_b32 v{SC}, 11, v{SS+2}")
        a.e(f"v_lshl_add_u32 v{SC}, v{SS+3}, 3, v{SC}")
        a.e(f"v_add_u32 v{SC}, {L_CNT1}, v{SC}")
        a.e(f"v_lshlrev_b32 v{W0+6}, 2, v{SS+2}")
        a.e(f"v_lshl_add_u32 v{W0+6}, v{SS+3}, 5, v{W0+6}")
        sync(16 if g else 8)
        stamp(3)
        a.e(f"ds_read2_b64 {vr(C,4)}, v{SC} offset0:0 offset1:128")
        a.e("s_waitcnt lgkmcnt(0)")
        for k in range(4):
            a.e(f"v_and_b32 v{C+k}, 0xffff, v{C+k}" if g == 0 else f"v_lshrrev_b32 v{C+k}, 16, v{C+k}")
        a.e(f"v_add_u32 v{SS}, v{C}, v{C+1}")
        a.e(f"v_add3_u32 v{SS}, v{SS}, v{C+2}, v{C+3}")
        a.e(f"v_mov_b32 v{SS+1}, v{SS}")
        dpp_scan(a, SS)
        a.e(f"s_lshl_b32 s{sT0}, s{sWAVE}, 2")
        a.e(f"v_mov_b32 v{W0}, s{sT0}")
        a.e("s_lshl_b64 exec, 1, 63")
        a.e(f"ds_write_b32 v{W0}, v{SS} offset:{M_WTOT}")
        a.e("s_mov_b64 exec, -1")
        a.e(f"v_sub_u32 v{SS}, v{SS}, v{SS+1}")
        a.e(f"v_and_b32 v{W0+4}, 7, v0")
        a.e(f"v_lshlrev_b32 v{W0}, 2, v{W0+4}")
        sync()
        a.e(f"ds_read_b32 v{W0+5}, v{W0} offset:{M_WTOT}")
        a.e(f"v_cmp_gt_u32 vcc, s{sWAVE}, v{W0+4}")
        a.e("s_waitcnt lgkmcnt(0)")
        a.e(f"v_cndmask_b32 v{W0+5}, 0, v{W0+5}, vcc")
        for sh in (1, 2, 4):
            a.e(f"v_add_u32_dpp v{W0+5}, v{W0+5}, v{W0+5} row_shr:{sh} row_mask:0xf bank_mask:0xf bound_ctrl:0")
        a.e(f"v_readlane_b32 s{sBASE}, v{W0+5}, 7")
        a.e(f"v_add_u32 v{W0}, s{sBASE}, v{SS}")
        ORD = [0, 2, 1, 3]
        for k in range(4):
            a.e(f"v_add_u32 v{W0+1+k}, v{W0+k}, v{C+ORD[k]}")
        if g == 0:
            for k in range(4):
                a.e(f"v_sub_u32 v{C+ORD[k]}, v{W0+k}, v{C+ORD[k]}")
            for k in range(4):
                a.e(f"ds_add_u32 v{SC}, v{C+k} offset:{4*(k&1) + 1024*(k>>1)}")
        else:
            for k in range(4):
                a.e(f"v_mad_u32_u24 v{C+ORD[k]}, v{W0+k}, 6, s{sK}")
            a.e(f"ds_write2_b64 v{SC}, {vr(C,2)}, {vr(C+2,2)} offset0:0 offset1:128")
            a.e(f"v_mov_b32 v{vINC}, 6")
        a.e(f"v_lshl_or_b32 v{W0}, v{W0+1}, 16, v{W0}")
        a.e(f"v_lshl_or_b32 v{W0+2}, v{W0+3}, 16, v{W0+2}")
        a.e(f"ds_write_b32 v{W0+6}, v{W0} offset:{L_STG}")
        a.e(f"ds_write_b32 v{W0+6}, v{W0+2} offset:{L_STG + 16}")
        a.e(f"ds_write_b16 v{W0+6}, v{W0+4} offset:{L_STG + 32}")
        sync()
        stamp(4)
        U = [106, 110]
        WA, AA = 114, 118
        RS = 120
        a.e(f"v_min_u32 v{vX}, {256*16}, v{vOFF16}")
        a.lds(f"ds_read_b128 {vr(RS,4)}, v{vX} offset:{L_STG}", 'RS')
        def rtn(r):
            n = 4 if r < NR else 1
            for k in range(n):
                a.e(f"v_and_b32 v{U[r&1]+k}, 0xffff, v{ROUT(r)+k}")
            if r == NR:
                a.e(f"s_cmp_eq_u32 s{sR6}, 0")
                a.e(f"s_cselect_b64 exec, -1, 0")
            for k in range(n):
                a.lds(f"ds_add_rtn_u32 v{U[r&1]+k}, v{U[r&1]+k}, v{vINC} offset:{L_CNT1}", ('R', r))
            if r == NR:
                a.e("s_mov_b64 exec, -1")
        rtn(0)
        a.e(f"v_cmp_gt_u32 vcc, 257, v0")
        a.e(f"v_mov_b32 v{vX}, s{sOOB}")
        a.e(f"v_cndmask_b32 v{vX}, v{vX}, v{vOFF16}, vcc")
        a.wlg('RS')
        a.vmem(f"buffer_store_dwordx4 {vr(RS,4)}, v{vX}, s[{S_WS}:{S_WS+3}], s{sREC} offen{ST}", 'S')
        for r in range(NR + 1):
            n = 4 if r < NR else 1
            if g == 1 and r == cfg.get('q2_at', 3):
                a.wvm0()
                last_wave(vZERO, vZ, sT0, M_Q2, "KM_Q2S")
                gsig(vZERO, vZ, 1)
                a.e("KM_Q2S:")
                a.e("s_mov_b64 exec, -1")
            if g == 1 and r == cfg.get('q2_at', 3) + cfg.get('q2_d', 3):
                a.wvm0()
                relay(vZ, vY, sT0, 1, "KM_Q2R")
                a.e("KM_Q2R:")
            if r + 1 <= NR: rtn(r + 1)
            a.wlg(('R', r))
            for k in range(n):
                u, wa, aa = U[r & 1] + k, WA + k, AA + k
                if g == 0:
                    a.e(f"v_mad_u32_u16 v{u}, v{u}, 6, s{sK}")
                a.e(f"v_and_b32 v{aa}, 2, v{u}")
                a.e(f"v_add_u32 v{wa}, v{u}, v{aa}")
                a.e(f"v_mad_i32_i24 v{aa}, v{aa}, -2, v{u}")
            if r == NR:
                a.e(f"s_cmp_eq_u32 s{sR6}, 0")
                a.e(f"s_cselect_b64 exec, -1, 0")
            for k in range(n):
                a.lds(f"ds_write_b32 v{WA+k}, v{RIN(r)+k}")
                a.lds(f"ds_write_b16_d16_hi v{AA+k}, v{ROUT(r)+k} offset:4")
            if r == NR:
                a.e("s_mov_b64 exec, -1")
        stamp(5)
        NQ = 19
        LBR = [116, 117, 118]
        for h in range(3):
            a.e(f"v_add_u32 v{LBR[h]}, {L_TILE + 65536*h}, v{vOFF16}")
        a.e(f"v_cmp_gt_u32 vcc, {(TILE_B - 18*8192)//16}, v0")
        a.e(f"v_mov_b32 v{vX}, s{sOOB}")
        a.e(f"v_cndmask_b32 v{vX}, v{vX}, v{vOFF16}, vcc")
        a.e(f"v_cndmask_b32 v{vY}, v{LBR[0]}, v{LBR[2]}, vcc")
        sync()
        stamp(6)
        for q in range(NQ):
            a.lds(f"ds_read_b128 {vr(8+4*q,4)}, v{LBR[q>>3] if q < 18 else vY} offset:{(q&7)*8192}", ('W', q))
        a.e(f"v_mov_b32 v{vZ}, 1")
        lsig(vZERO, vZ, M_QR if g else M_QS)
        for q in range(NQ):
            a.wlg(('W', q))
            a.e(f"s_add_u32 s{sT2}, s{sPAY}, {q*8192}")
            a.vmem(f"buffer_store_dwordx4 {vr(8+4*q,4)}, v{vOFF16 if q < 18 else vX}, s[{S_WS}:{S_WS+3}], s{sT2} offen{ST}", 'S')
        stamp(7)

    D = cfg.get('k2_d', 5)
    LATE = 2
    PPRIO = cfg.get('k2_pprio', 3)
    S_MD, S_X, S_Y = 8, 12, 4
    kWAVE, kB, kJ, kWIN, kTOT, kN, kCNT, kT0, kT1, kT2, kFFF0, kHI, kCNP, kOOB = range(20, 34)
    kM = 34
    kGI = 36
    kTG = 37
    kF3, kFIRST = 38, 39
    S_WA = 40
    S_WU = 72
    MSK = 40
    vLANE, wZERO = 1, 2
    MM = 74
    T_ = 100
    def k2_common():
        a.e(f"s_mov_b32 s{kWAVE}, s{sWAVE}")
        a.e(f"s_and_b32 s{kB}, s2, 7")
        a.e(f"s_lshl_b32 s{kB}, s{kB}, 5")
        a.e(f"s_lshr_b32 s{kT0}, s2, 3")
        a.e(f"s_or_b32 s{kB}, s{kB}, s{kT0}")
        a.e(f"s_mov_b32 s{kFFF0}, 0xfff0")
        a.e(f"s_mov_b32 s{kHI}, 0xffff0000")
        a.e(f"s_mov_b32 s{kOOB}, 0x80000000")
        a.e(f"v_and_b32 v{vLANE}, 63, v0")
        a.e(f"v_mov_b32 v{wZERO}, 0")
    def epi_off(OF, tmp):
        a.e(f"s_mul_i32 s{kT0}, s{kB}, {EPB*8}")
        a.e(f"v_lshlrev_b32 v{OF}, 3, v0")
        a.e(f"v_add_u32 v{OF}, s{kT0}, v{OF}")
        a.e(f"v_add_u32 v{OF+1}, 8192, v{OF}")
        a.e(f"v_add_u32 v{OF+2}, 16384, v{OF}")
        a.e(f"v_add_u32 v{OF+3}, 24576, v{OF}")
        a.e(f"v_mov_b32 v{tmp}, s{kOOB}")
        a.e(f"v_cmp_gt_u32 vcc, {EPB - 3072}, v0")
        a.e(f"v_cndmask_b32 v{OF+3}, v{tmp}, v{OF+3}, vcc")
    def epi_pre(OF, tmp):
        a.e(f"s_load_dwordx2 s[{S_X}:{S_X+1}], s[0:1], 0")
        a.e(f"s_load_dwordx2 s[{S_Y}:{S_Y+1}], s[0:1], 80")
        a.e(f"s_mov_b32 s{S_X+2}, {E*8}")
        epi_off(OF, tmp)
        a.e("s_waitcnt lgkmcnt(0)")
        a.e(f"s_load_dwordx8 s[{S_WU+8}:{S_WU+15}], s[{S_Y}:{S_Y+1}], 0")
        for k in range(4):
            a.e(f"buffer_load_dwordx2 {vr(MM+2*k,2)}, v{OF+k}, s[{S_X}:{S_X+3}], 0 offen")
        a.e("s_waitcnt lgkmcnt(0)")
    def poll(vt, off, tgt): lpoll(wZERO, vt, kT0, off, f"s{tgt}")
    def signal(vone, off): lsig(wZERO, vone, off)

    a.e(f"s_setprio {cfg.get('k1_pprio', 2)}")
    group(0)
    a.vm = []; a.lg = []
    trmove(49)
    vL12, vTB, vCN, vSCR, vFOUR, vL16, vTQ = range(3, 10)
    R = 10
    def P(c): return 18 + 4 * c
    U, KA, OLD = 50, 66, 82
    GP = 86
    AP = 50
    PR = 78
    RBS = [10 + 4 * k for k in range(7)]
    WOP = 38
    DB, Y = T_, T_ + 16
    S_W1, S_W2, S_C = 40 + 24, 40 + 28, 72
    KAP = math.sqrt(10.0 * math.log2(math.e))
    a.e(f"s_load_dwordx2 s[{S_X}:{S_X+1}], s[0:1], 24")
    a.e(f"s_load_dwordx4 s[{S_Y}:{S_Y+3}], s[0:1], 56")
    a.e(f"s_mov_b32 s{S_X+2}, {E*2}")
    k2_common()
    a.e(f"s_mul_i32 s{kT0}, s{kB}, {EPB*2}")
    a.e(f"v_lshlrev_b32 v{T_+2}, 1, v0")
    a.e(f"v_add_u32 v{T_+2}, s{kT0}, v{T_+2}")
    a.e(f"v_add_u32 v{T_+3}, 4096, v{T_+2}")
    for k in range(7):
        a.e(f"v_mov_b32 v{GP+2*k}, 0")
    for q in range(8):
        a.e(f"v_mov_b32 v{WOP+q}, 0")
    a.e(f"v_and_b32 v{T_+4}, 1, v{vLANE}")
    a.e(f"v_and_b32 v{T_+5}, 2, v{vLANE}")
    a.e(f"v_lshl_or_b32 v{T_+4}, v{T_+4}, 3, v{T_+5}")
    a.e(f"v_bfe_u32 v{T_+5}, v{vLANE}, 3, 1")
    a.e(f"v_lshl_or_b32 v{T_+4}, v{T_+5}, 2, v{T_+4}")
    a.e(f"v_and_b32 v{T_+5}, 3, v{vLANE}")
    a.e(f"v_lshlrev_b32 v{T_+5}, 1, v{T_+5}")
    a.e("s_waitcnt vmcnt(0)")
    stamp(8)
    last_wave(wZERO, T_, kT0, M_PD, "KM_PDS")
    lpoll(wZERO, T_, kT0, M_QM, 9)
    gsig(wZERO, T_ + 1, 0)
    a.e("s_waitcnt vmcnt(0)")
    relay(T_ + 1, T_, kT0, 0, "KM_PDS")
    a.e("KM_PDS:")
    a.e("s_mov_b64 exec, -1")
    a.e("s_waitcnt lgkmcnt(0)")
    for k in range(7):
        a.e(f"buffer_load_short_d16_hi v{GP+2*k}, v{T_+2+(k>>2)}, s[{S_X}:{S_X+3}], 0 offen offset:{(k&3)*1024}")
    a.e(f"s_mov_b32 s{S_W1}, s{S_Y+2}")
    a.e(f"s_mov_b32 s{S_W1+1}, s{S_Y+3}")
    a.e(f"s_mov_b32 s{S_W1+2}, 128")
    a.e(f"s_mov_b32 s{S_W1+3}, 0x00020000")
    a.e(f"s_mov_b32 s{S_W2}, s{S_Y}")
    a.e(f"s_mov_b32 s{S_W2+1}, s{S_Y+1}")
    a.e(f"s_mov_b32 s{S_W2+2}, 64")
    a.e(f"s_mov_b32 s{S_W2+3}, 0x00020000")
    a.e(f"s_mov_b32 exec_lo, 0x00000f0f")
    a.e(f"s_mov_b32 exec_hi, 0x0000f0f0")
    for r in range(8):
        a.e(f"buffer_load_short_d16{'_hi' if r & 1 else ''} v{WOP+(r>>1)+4*(r&1)}, v{T_+4}, s[{S_W1}:{S_W1+3}], 0 offen offset:{16*r}")
    a.e(f"s_mov_b32 exec_lo, 0x000f0000")
    a.e(f"s_mov_b32 exec_hi, 0x00f00000")
    for r in range(8):
        a.e(f"buffer_load_short_d16{'_hi' if r & 1 else ''} v{WOP+(r>>1)+4*(r&1)}, v{T_+5}, s[{S_W2}:{S_W2+3}], 0 offen offset:{8*r}")
    a.e(f"s_mov_b64 exec, -1")
    for r in range(8):
        a.e(f"s_mov_b32 s{S_C+r}, {f2h(-KAP * h2f(CENTERS[r]))}")
    a.e("s_setprio 0")
    a.e("s_waitcnt vmcnt(0)")
    X = Y
    for k in range(7):
        dv = GP + 2 * k
        a.e(f"v_mul_f32 v{dv}, {f2h(KAP)}, v{dv}")
        for q in range(4):
            a.e(f"v_pk_add_f32 {vr(X+2*q,2)}, {vr(dv,2)}, s[{S_C+2*q}:{S_C+2*q+1}] op_sel_hi:[0,1]")
        for q in range(4):
            a.e(f"v_pk_mul_f32 {vr(X+2*q,2)}, {vr(X+2*q,2)}, {vr(X+2*q,2)}")
        for r in range(8):
            a.e(f"v_exp_f32 v{X+r}, -v{X+r}")
        for q in range(4):
            a.e(f"v_cvt_pk_bf16_f32 v{RBS[k]+q}, v{X+2*q}, v{X+2*q+1}")
    for q in range(4):
        a.e(f"v_or_b32 v{WOP+q}, v{WOP+q}, v{WOP+4+q}")
    a.e(f"s_mov_b32 s{kT0}, 0x21800000")
    for k in range(7):
        o = DB
        a.e(f"v_mfma_f32_32x32x16_bf16 {vr(DB,16)}, {vr(WOP,4)}, {vr(RBS[k],4)}, 0")
        for d in range(4):
            a.e(f"v_add_f32 v{Y+d}, abs(v{o+2*d}), abs(v{o+2*d+1})")
        a.e(f"v_max3_f32 v{Y}, v{Y}, v{Y+1}, v{Y+2}")
        a.e(f"v_max3_f32 v{Y+2}, v{Y}, v{Y+3}, s{kT0}")
        a.e(f"v_rcp_f32 v{Y}, v{Y+2}")
        for q in range(2):
            a.e(f"v_pk_mul_f32 {vr(o+8+2*q,2)}, {vr(o+8+2*q,2)}, {vr(Y+2,2)} op_sel_hi:[1,0]")
        a.e(f"v_mul_f32 v{Y}, 0x1f800000, v{Y}")
        for q in range(2):
            a.e(f"v_cvt_pk_bf16_f32 v{GP+2*k+q}, v{o+8+2*q}, v{o+9+2*q}")
        a.e(f"v_add_f32 v{Y+1}, v{Y}, v{Y}")
        for d in range(4):
            a.e(f"v_pk_mul_f32 {vr(o+2*d,2)}, {vr(o+2*d,2)}, {vr(Y,2)}")
        for d in range(4):
            a.e(f"v_cvt_pk_bf16_f32 v{AP+4*k+d}, v{o+2*d}, v{o+2*d+1}")
    stamp(9)
    vRA, vSH = 45, 41
    a.e(f"v_lshrrev_b32 v{T_}, 1, v0")
    a.e(f"s_mov_b32 s{kT0}, {TILE_B}")
    a.e(f"v_mul_lo_u32 v{vTB}, v{T_}, s{kT0}")
    a.e(f"s_lshl_b32 s{kT0}, s{kB}, 4")
    a.e(f"v_mul_u32_u24 v{vRA}, {REC_STR}, v{T_}")
    a.e(f"v_add_u32 v{vRA}, s{kT0}, v{vRA}")
    a.e(f"v_add_u32 v{vTQ}, {256*TILE_B}, v{vTB}")
    a.e(f"v_and_b32 v{vSH}, 1, v0")
    a.e(f"v_lshlrev_b32 v{vSH}, 4, v{vSH}")
    a.e(f"v_mul_u32_u24 v{vL12}, 12, v{vLANE}")
    a.e(f"v_lshlrev_b32 v{vL16}, 4, v{vLANE}")
    a.e(f"v_mov_b32 v{vFOUR}, 4")
    a.e(f"v_min_u32 v{vCN}, 1, v{vLANE}")
    a.e(f"v_lshlrev_b32 v{vSCR}, 3, v0")
    a.e(f"v_add_u32 v{vSCR}, {L_STG}, v{vSCR}")
    a.e(f"s_mov_b32 s{kTG}, 0")
    a.e(f"s_mov_b32 s{kJ}, 8")
    a.e(f"s_mov_b32 s{kWIN}, 0")
    a.e(f"s_mov_b32 s{kF3}, {8 - KS}")
    a.e(f"s_mov_b32 s{kFIRST}, 1")
    a.e(f"s_setprio {cfg.get('p0prio', 3)}")
    gwait(wZERO, T_, kT0, kT1, 0, cfg.get('acq', False))
    stamp(10)
    MXR = R + 2
    a.e(f"s_mov_b32 s{kT0}, {REC_OFF}")
    a.e(f"s_mov_b32 s{kT1}, {MX_OFF}")
    a.e(f"buffer_load_dwordx4 {vr(PR,4)}, v{vRA}, s[{S_WS}:{S_WS+3}], s{kT0} offen sc1")
    a.e(f"buffer_load_dwordx4 {vr(PR+4,4)}, v{vRA}, s[{S_WS}:{S_WS+3}], s{kT0} offen offset:16 sc1")
    a.e(f"buffer_load_dwordx4 {vr(MXR,4)}, v{vL16}, s[{S_WS}:{S_WS+3}], s{kT1} offen sc1")
    lpoll(wZERO, T_, kT0, M_Q2, 8, SLP)
    a.e(f"v_mov_b32 v{T_+2}, 0")
    a.e(f"v_mov_b32 v{T_+3}, 0")
    a.e(f"ds_write_b64 v{vSCR}, {vr(T_+2,2)}")
    a.e("s_waitcnt vmcnt(0)")
    a.e(f"v_alignbit_b32 v{R}, v{PR+4}, v{PR}, v{vSH}")
    a.e(f"v_max_u32 v{MXR}, v{MXR}, v{MXR+1}")
    a.e(f"v_max3_u32 v{MXR}, v{MXR}, v{MXR+2}, v{MXR+3}")
    dpp_scan(a, MXR, "v_max_u32")
    a.e(f"v_readlane_b32 s{kGI}, v{MXR}, 63")
    stamp(0)

    def rotate():
        for k in range(7):
            a.e(f"v_mov_b32 v{R+k}, v{R+k+1}")
        a.e(f"v_mov_b32 v{R+7}, 0")
        a.e(f"s_sub_u32 s{kJ}, s{kJ}, 1")

    a.e("K2_PLOOP:")
    s_, e_, p0, n_, inc, S_, V_, x_, sl, y_, el = range(T_, T_ + 11)
    a.e(f"v_and_b32 v{s_}, 0xffff, v{R}")
    a.e(f"v_lshrrev_b32 v{e_}, 16, v{R}")
    a.e(f"v_lshrrev_b32 v{p0}, 1, v{s_}")
    a.e(f"v_add_u32 v{n_}, 1, v{e_}")
    a.e(f"v_cmp_gt_u32 s[{kM}:{kM+1}], v{e_}, v{s_}")
    a.e(f"v_lshrrev_b32 v{n_}, 1, v{n_}")
    a.e(f"v_sub_u32 v{n_}, v{n_}, v{p0}")
    a.e(f"v_cndmask_b32 v{n_}, 0, v{n_}, s[{kM}:{kM+1}]")
    a.e(f"v_mov_b32 v{inc}, v{n_}")
    dpp_scan(a, inc)
    a.e(f"v_readlane_b32 s{kTOT}, v{inc}, 63")
    a.e(f"s_cmp_lt_u32 s{kWIN}, s{kTOT}")
    a.e(f"s_cbranch_scc1 K2_FGO")
    a.e(f"s_cmp_eq_u32 s{kJ}, 0")
    a.e(f"s_cbranch_scc1 K2_FGO")
    a.e(f"s_cmp_lg_u32 s{kFIRST}, 0")
    a.e(f"s_cbranch_scc1 K2_FGO")
    rotate()
    a.e(f"s_mov_b32 s{kWIN}, 0")
    a.e(f"s_branch K2_PLOOP")
    a.e(f"K2_FGO:")
    a.e(f"s_cmp_le_u32 s{kJ}, {8 - KS}")
    a.e(f"s_cselect_b32 s{kT0}, -1, 0")
    a.e(f"s_cmp_le_u32 s{kJ}, {8 - 2*KS}")
    a.e(f"s_cselect_b32 vcc_lo, 0xaaaaaaaa, s{kT0}")
    a.e(f"s_mov_b32 vcc_hi, vcc_lo")
    a.e(f"v_subrev_u32 v{inc}, s{kWIN}, v{inc}")
    a.e(f"v_cndmask_b32 v{x_}, v{vTB}, v{vTQ}, vcc")
    a.e(f"v_sub_u32 v{S_}, v{inc}, v{n_}")
    a.e(f"v_add_u32 v{el}, -1, v{inc}")
    a.e(f"v_sub_u32 v{V_}, v{p0}, v{S_}")
    a.e(f"v_mad_i32_i24 v{V_}, v{V_}, 12, v{x_}")
    a.e(f"v_cmp_le_i32 vcc, 0, v{S_}")
    a.e(f"v_and_b32 v{x_}, 1, v{s_}")
    a.e(f"s_and_b64 vcc, vcc, s[{kM}:{kM+1}]")
    a.e(f"v_max_i32 v{sl}, 0, v{S_}")
    a.e(f"v_cndmask_b32 v{x_}, 0, v{x_}, vcc")
    a.e(f"v_lshl_or_b32 v{x_}, v{x_}, 6, v{vCN}")
    a.e(f"v_and_b32 v{y_}, 1, v{e_}")
    a.e(f"v_lshlrev_b32 v{y_}, 7, v{y_}")
    def marker(val, slot, tmp):
        a.e(f"v_lshrrev_b32 v{tmp}, 3, v{slot}")
        a.e(f"v_and_b32 v{tmp}, 0x18, v{tmp}")
        a.e(f"v_lshlrev_b32 v{val}, v{tmp}, v{val}")
        a.e(f"v_lshrrev_b32 v{tmp}, 8, v{slot}")
        a.e(f"v_cmp_gt_u32 vcc, 512, v{slot}")
        a.e(f"v_and_b32 v{slot}, 63, v{slot}")
        a.e(f"v_sub_u32 v{slot}, v{slot}, v{vLANE}")
        a.e(f"v_lshl_add_u32 v{slot}, v{slot}, 1, v{tmp}")
        a.e(f"v_lshl_add_u32 v{slot}, v{slot}, 2, v{vSCR}")
    marker(x_, sl, s_)
    a.e(f"s_mov_b64 exec, vcc")
    a.e(f"ds_add_u32 v{sl}, v{x_}")
    a.e(f"s_mov_b64 exec, -1")
    marker(y_, el, s_)
    a.e(f"s_and_b64 exec, vcc, s[{kM}:{kM+1}]")
    a.e(f"ds_add_u32 v{el}, v{y_}")
    a.e(f"s_mov_b64 exec, -1")
    RAW, RW2, CN = T_ + 12, T_ + 14, T_ + 16
    AD = T_ + 18
    a.e(f"ds_read_b64 {vr(RAW,2)}, v{vSCR}")
    a.e(f"v_mov_b32 v{RW2}, 0")
    a.e(f"v_mov_b32 v{RW2+1}, 0")
    a.e(f"ds_write_b64 v{vSCR}, {vr(RW2,2)}")
    a.e(f"s_sub_u32 s{kT2}, s{kTOT}, s{kWIN}")
    a.e("s_waitcnt lgkmcnt(1)")
    for h in range(2):
        a.e(f"v_and_b32 v{CN+h}, 0x3f3f3f3f, v{RAW+h}")
    for h in range(2):
        a.e(f"v_lshlrev_b32 v{RW2+h}, 1, v{RAW+h}")
    mk = []
    for c in range(8):
        mk.append(f"v_cmp_le_i32_sdwa s[{MSK+4*c}:{MSK+4*c+1}], 0, sext(v{RW2+(c>>2)}) src0_sel:DWORD src1_sel:BYTE_{c&3}")
        mk.append(f"v_cmp_le_i32_sdwa s[{MSK+4*c+2}:{MSK+4*c+3}], 0, sext(v{RAW+(c>>2)}) src0_sel:DWORD src1_sel:BYTE_{c&3}")
    dp = [f"row_shr:{sh} row_mask:0xf bank_mask:0xf bound_ctrl:0" for sh in (1, 2, 4, 8)] + \
         ["row_bcast:15 row_mask:0xa bank_mask:0xf", "row_bcast:31 row_mask:0xc bank_mask:0xf"]
    for d_ in dp:
        for h in range(2):
            a.e(f"v_add_u32_dpp v{CN+h}, v{CN+h}, v{CN+h} {d_}")
        a.e(mk.pop(0))
    a.e(f"v_readlane_b32 s{kT0}, v{CN}, 63")
    a.e(f"v_readlane_b32 s{kT1}, v{CN+1}, 63")
    a.e(mk.pop(0)); a.e(mk.pop(0))
    a.e(f"s_mul_i32 s{kM}, s{kT0}, 0x01010101")
    a.e(f"s_lshl_b32 s{kT0}, s{kM}, 8")
    a.e(f"s_lshr_b32 s{kM}, s{kM}, 24")
    a.e(f"s_lshl_b32 s{kT1}, s{kT1}, 8")
    a.e(f"s_add_u32 s{kT1}, s{kT1}, s{kM}")
    a.e(f"s_mul_i32 s{kT1}, s{kT1}, 0x01010101")
    a.e(f"v_add_u32 v{CN}, s{kT0}, v{CN}")
    a.e(f"v_add_u32 v{CN+1}, s{kT1}, v{CN+1}")
    for c in range(8):
        a.e(f"v_lshlrev_b32_sdwa v{AD+c}, 2, v{CN+(c>>2)} dst_sel:DWORD dst_unused:UNUSED_PAD src0_sel:DWORD src1_sel:BYTE_{c&3}")
        a.e(f"ds_bpermute_b32 v{AD+c}, v{AD+c}, v{V_}")
    for m_ in mk: a.e(m_)
    a.e(f"v_mov_b32 v{s_}, s{kOOB}")
    a.e(f"v_add_u32 v{e_}, {768*4}, v{vL12}")
    a.e(f"s_cmp_le_i32 s{kJ}, s{kF3}")
    a.e("s_cbranch_scc1 K2_F3")
    a.e("K2_F3R:")
    for c in range(8):
        a.e(f"v_cmp_gt_i32 vcc, s{kT2}, v{vLANE}")
        a.e(f"s_sub_u32 s{kT2}, s{kT2}, 64")
        a.e(f"s_and_b64 s[{MSK+4*c}:{MSK+4*c+1}], s[{MSK+4*c}:{MSK+4*c+1}], vcc")
        a.e(f"s_and_b64 s[{MSK+4*c+2}:{MSK+4*c+3}], s[{MSK+4*c+2}:{MSK+4*c+3}], vcc")
        a.e(f"s_waitcnt lgkmcnt({7-c})")
        a.e(f"v_add_u32 v{AD+c}, v{AD+c}, v{vL12 if c < 4 else e_}")
        a.e(f"v_cndmask_b32 v{AD+c}, v{s_}, v{AD+c}, vcc")
        a.e(f"buffer_load_dwordx3 {vr(P(c),3)}, v{AD+c}, s[{S_WS}:{S_WS+3}], 0 offen offset:{768*(c&3)}")
    a.e(f"s_cmp_lg_u32 s{kFIRST}, 0")
    a.e("s_cbranch_scc1 K2_HOOK")
    a.e("K2_HOOKR:")
    a.e(f"s_add_u32 s{kWIN}, s{kWIN}, 512")
    a.e(f"s_cmp_lt_u32 s{kWIN}, s{kTOT}")
    a.e(f"s_cbranch_scc1 K2_FDONE")
    a.e(f"s_mov_b32 s{kWIN}, 0")
    a.e(f"s_cmp_eq_u32 s{kJ}, 0")
    a.e(f"s_cbranch_scc1 K2_FDONE")
    rotate()
    a.e(f"K2_FDONE:")
    stamp(1)
    vPL = T_ + 27
    poll(vPL, M_FP, kTG)
    a.e(f"s_add_u32 s{kTG}, s{kTG}, 32")
    for c in range(8):
        a.e(f"s_waitcnt vmcnt({7-c})")
        for h in range(2):
            i = 2 * c + h
            a.e(f"v_lshlrev_b32_sdwa v{KA+i}, 2, v{P(c)+2*h} dst_sel:DWORD dst_unused:UNUSED_PAD src0_sel:DWORD src1_sel:BYTE_1")
        for h in range(2):
            i = 2 * c + h
            a.e(f"s_mov_b64 exec, s[{MSK+2*i}:{MSK+2*i+1}]")
            a.e(f"ds_add_rtn_u32 v{U+i}, v{KA+i}, v{vFOUR} offset:{L_CNT2}")
        a.e("s_mov_b64 exec, -1")
    signal(vFOUR, M_FH)
    stamp(2)
    poll(vPL, M_FH, kTG)
    a.e(f"s_setprio {cfg.get('k2_sprio', 0)}")
    NW, CC, TT, BS = T_, T_ + 4, T_ + 8, T_ + 12
    a.e(f"ds_read_b128 {vr(NW,4)}, v{vL16} offset:{L_CNT2}")
    signal(vFOUR, M_FP)
    a.e("s_waitcnt lgkmcnt(1)")
    for k in range(4):
        a.e(f"v_sub_u32 v{CC+k}, v{NW+k}, v{OLD+k}")
    a.e(f"v_add_u32 v{TT}, v{CC}, v{CC+1}")
    a.e(f"v_add3_u32 v{TT}, v{TT}, v{CC+2}, v{CC+3}")
    a.e(f"v_sub_u32 v{TT+1}, {L_SW}, v{TT}")
    dpp_scan(a, TT)
    a.e(f"v_add_u32 v{TT+1}, v{TT+1}, v{TT}")
    a.e(f"v_readlane_b32 s{kN}, v{TT}, 63")
    for k in range(4):
        a.e(f"v_sub_u32 v{BS+k}, v{TT+1}, v{OLD+k}")
        if k < 3:
            a.e(f"v_add_u32 v{TT+1}, v{TT+1}, v{CC+k}")
        a.e(f"v_mov_b32 v{OLD+k}, v{NW+k}")
    a.e(f"ds_write_b128 v{vL16}, {vr(BS,4)} offset:{L_BASE}")
    for i in range(16):
        a.e(f"ds_read_b32 v{KA+i}, v{KA+i} offset:{L_BASE}")
    a.e(f"s_sub_u32 s{kT1}, s{kTG}, 32")
    poll(vPL, M_FR, kT1)
    stamp(5)
    a.e(f"s_add_u32 s{kT1}, s{kN}, {L_SW}")
    a.e(f"s_max_u32 s{kN}, s{kN}, s{kFIRST}")
    a.e(f"s_mov_b32 s{kFIRST}, 0")
    a.e(f"s_cmp_lg_u32 s{kWAVE}, 0")
    a.e(f"s_cbranch_scc1 K2_NOPAD")
    a.e(f"v_lshl_add_u32 v{TT}, v{vLANE}, 2, s{kT1}")
    a.e(f"v_mov_b32 v{TT+1}, {hex(DUMMY)}")
    a.e(f"ds_write_b32 v{TT}, v{TT+1}")
    a.e(f"v_mov_b32 v{TT+3}, s{kN}")
    a.e(f"ds_write_b32 v{wZERO}, v{TT+3} offset:{M_NCELL}")
    a.e("K2_NOPAD:")
    for i in range(16):
        a.e(f"v_add_u32 v{U+i}, v{U+i}, v{KA+i}")
        a.e(f"v_lshrrev_b32 v{KA+i}, 1, v{U+i}")
    for i in range(16):
        c, h = i >> 1, i & 1
        a.e(f"s_mov_b64 exec, s[{MSK+2*i}:{MSK+2*i+1}]")
        a.e(f"ds_write_b32 v{U+i}, v{P(c)+2*h}")
        a.e(f"ds_write_b16{'_d16_hi' if h else ''} v{KA+i}, v{P(c)+1} offset:{L_SA - L_SW//2}")
    signal(vFOUR, M_FS)
    stamp(4)
    a.e(f"s_setprio {PPRIO}")
    a.e(f"s_cmp_lg_u32 s{kN}, 0")
    a.e("s_cbranch_scc1 K2_PLOOP")
    epi_pre(T_ + 8, T_ + 12)
    a.e(f"v_lshlrev_b32 v{T_}, 3, v0")
    a.e(f"v_add_u32 v{T_}, {L_GP}, v{T_}")
    for k in range(14):
        a.e(f"v_lshlrev_b32 v{T_+2}, 16, v{GP+k}")
        a.e(f"v_and_b32 v{T_+3}, s{kHI}, v{GP+k}")
        a.e(f"v_mul_f32 v{T_+2}, s{kGI}, v{T_+2}")
        a.e(f"v_mul_f32 v{T_+3}, s{kGI}, v{T_+3}")
        a.e(f"v_cvt_pk_bf16_f32 v{GP+k}, v{T_+2}, v{T_+3}")
    for k in range(7):
        a.e(f"ds_write_b64 v{T_}, {vr(GP+2*k,2)} offset:{4096*k}")
    trmove(88)
    a.e("s_branch K2_EPI")
    trv[0] = 49

    a.e("K2_F3:")
    a.e(f"s_mov_b32 s{kF3}, -1")
    stamp(11)
    gwait(wZERO, vPL, kT0, kT1, 2, cfg.get('acq', False))
    stamp(12)
    a.e("s_branch K2_F3R")

    a.e("K2_HOOK:")
    QR_ = T_
    stamp(11)
    gwait(wZERO, vPL, kT0, kT1, 1, False)
    stamp(12)
    a.e(f"s_mov_b32 s{kT0}, {REC_OFF + 256*REC_STR}")
    a.e(f"buffer_load_dwordx4 {vr(QR_,4)}, v{vRA}, s[{S_WS}:{S_WS+3}], s{kT0} offen sc1")
    a.e(f"buffer_load_dwordx4 {vr(QR_+4,4)}, v{vRA}, s[{S_WS}:{S_WS+3}], s{kT0} offen offset:16 sc1")
    for q in range(1, KS):
        a.e(f"v_alignbit_b32 v{R+q}, v{PR+4+q}, v{PR+q}, v{vSH}")
    a.e(f"v_cmp_lt_u32 vcc, 0, v{vSH}")
    a.e("s_waitcnt vmcnt(0)")
    for q in range(KS):
        a.e(f"v_alignbit_b32 v{R+KS+q}, v{QR_+4+q}, v{QR_+q}, v{vSH}")
    for q in range(KS, 4):
        a.e(f"v_cndmask_b32 v{R+2*q}, v{PR+q}, v{QR_+q}, vcc")
        a.e(f"v_cndmask_b32 v{R+2*q+1}, v{PR+4+q}, v{QR_+4+q}, vcc")
        a.e(f"v_alignbit_b32 v{R+2*q+1}, v{R+2*q+1}, v{R+2*q}, 16")
    t = T_ + 8
    a.e(f"v_mov_b32 v{t}, 0")
    for k in range(8):
        a.e(f"v_sub_u32_sdwa v{t+1}, v{R+k}, v{R+k} dst_sel:DWORD dst_unused:UNUSED_PAD src0_sel:WORD_1 src1_sel:WORD_0")
        a.e(f"v_add_u32 v{t}, v{t}, v{t+1}")
    dpp_scan(a, t)
    a.e(f"v_lshl_or_b32 v{t}, v{t}, 4, 1")
    a.e("s_lshl_b64 exec, 1, 63")
    a.e(f"ds_add_u32 v{wZERO}, v{t} offset:{M_NB}")
    a.e("s_mov_b64 exec, -1")
    for k in range(4):
        a.e(f"v_mov_b32 v{OLD+k}, 0")
    a.e(f"v_lshlrev_b32 v{t+2}, 4, v0")
    a.e(f"v_add_u32 v{t+3}, {L_A}, v{t+2}")
    a.e("K2_NBP:")
    a.e(f"ds_read_b32 v{t}, v{wZERO} offset:{M_NB}")
    a.e("s_waitcnt lgkmcnt(0)")
    a.e(f"v_readfirstlane_b32 s{kT0}, v{t}")
    a.e(f"s_and_b32 s{kT0}, s{kT0}, 15")
    a.e(f"s_cmp_lt_u32 s{kT0}, 8")
    a.e("s_cbranch_scc1 K2_NBP")
    a.e(f"v_lshrrev_b32 v{t}, 4, v{t}")
    a.e(f"v_cvt_f32_u32 v{t}, v{t}")
    a.e(f"v_mul_f32 v{t}, s{kGI}, v{t}")
    a.e(f"v_mul_f32 v{t}, {f2h(1.03)}, v{t}")
    a.e(f"v_readfirstlane_b32 s{kT0}, v{t}")
    a.e(f"s_bfe_u32 s{kT0}, s{kT0}, {(8 << 16) | 23}")
    a.e(f"s_max_u32 s{kT0}, s{kT0}, 97")
    a.e(f"s_min_u32 s{kT0}, s{kT0}, 221")
    a.e(f"s_sub_u32 s{kGI}, s{kT0}, 30")
    a.e(f"s_lshl_b32 s{kGI}, s{kGI}, 23")
    a.e(f"s_sub_u32 s{kT0}, 221, s{kT0}")
    a.e(f"s_mul_i32 s{kT1}, s{kT0}, {0x00800080}")
    for k in range(28):
        a.e(f"v_pk_add_u16 v{AP+k}, v{AP+k}, s{kT1}")
    stamp(13)
    lpoll(wZERO, t, kT0, M_QR, 8, min(SLP, 2))
    stamp(14)
    a.e(f"s_setprio {PPRIO}")
    for k in range(7):
        if k == 6:
            a.e(f"v_cmp_gt_u32 vcc, {3128 - 3072}, v0")
            a.e(f"s_mov_b64 exec, vcc")
        a.e(f"ds_write_b128 v{t+3}, {vr(AP+4*k,4)} offset:{8192*k}")
        a.e(f"ds_write_b128 v{t+2}, {vr(OLD,4)} offset:{L_ACC + 8192*k}")
    a.e(f"s_mov_b64 exec, -1")
    a.e("s_branch K2_HOOKR")

    a.vm = []; a.lg = []
    trv[0] = 127
    a.e("KM_Q:")
    a.e("s_setprio 3")
    a.e(f"s_load_dwordx8 s[{S_WD}:{S_WD+7}], s[24:25], 0")
    vM, vMO, DD, vMAX = 8, 24, 32, 28
    a.e(f"s_mul_i32 s{sT0}, s2, {MD_WG_B}")
    a.e(f"v_add_u32 v{vMO}, s{sT0}, v{vOFF16}")
    for q in range(1, 4):
        a.e(f"v_add_u32 v{vMO+q}, {8192*q}, v{vMO}")
    a.e(f"v_mov_b32 v{vX}, s{sOOB}")
    a.e(f"v_cmp_gt_u32 vcc, {(MD_WG_B - 3*8192)//16}, v0")
    a.e(f"v_cndmask_b32 v{vMO+3}, v{vX}, v{vMO+3}, vcc")
    for q in range(4):
        a.vmem(f"buffer_load_dwordx4 {vr(vM+4*q,4)}, v{vMO+q}, s[{S_M}:{S_M+3}], 0 offen", ('M', q))
    a.e(f"v_mov_b32 v{vMAX}, 0")
    a.e("s_waitcnt lgkmcnt(0)")
    for d in range(4):
        for h in range(2):
            r0 = S_WD + 4 * h + (d >> 1); r1 = r0 + 2
            a.e(f"s_pack_{'hh' if d & 1 else 'll'}_b32_b16 s{S_WP + 2*d + h}, s{r0}, s{r1}")
    a.e(f"s_mov_b32 s{sT0}, {MD_OFF}")
    a.wvm(('M', 3))
    for ed in range(8):
        m01 = vM + 2 * ed
        for d in range(4):
            a.e(f"v_dot2_f32_bf16 v{DD+4*ed+d}, v{m01}, s{S_WP+2*d}, 0")
        for d in range(4):
            a.e(f"v_dot2_f32_bf16 v{DD+4*ed+d}, v{m01+1}, s{S_WP+2*d+1}, v{DD+4*ed+d}")
    for ed in range(8):
        m01 = vM + 2 * ed
        a.e(f"v_max3_f32 v{vMAX}, abs(v{DD+4*ed}), abs(v{DD+4*ed+1}), v{vMAX}")
        a.e(f"v_max3_f32 v{vMAX}, abs(v{DD+4*ed+2}), abs(v{DD+4*ed+3}), v{vMAX}")
        a.e(f"v_cvt_pk_bf16_f32 v{m01}, v{DD+4*ed}, v{DD+4*ed+1}")
        a.e(f"v_cvt_pk_bf16_f32 v{m01+1}, v{DD+4*ed+2}, v{DD+4*ed+3}")
    for q in range(4):
        a.vmem(f"buffer_store_dwordx4 {vr(vM+4*q,4)}, v{vMO+q}, s[{S_WS}:{S_WS+3}], s{sT0} offen{ST}", 'S')
    a.e(f"v_lshlrev_b32 v{vY}, 2, v0")
    a.e(f"v_cmp_gt_u32 vcc, 4, v0")
    a.e(f"v_cndmask_b32 v{vY}, v{vX}, v{vY}, vcc")
    a.vmem(f"buffer_store_dword v{vZERO}, v{vY}, s[{S_WS}:{S_WS+3}], s{sMBX} offen{ST}", 'S')
    dpp_scan(a, vMAX, "v_max_u32")
    a.e("s_lshl_b64 exec, 1, 63")
    a.e(f"ds_max_u32 v{vZERO}, v{vMAX} offset:{M_MAXC}")
    a.e("s_mov_b64 exec, -1")
    a.wvm0()
    last_wave(vZERO, vZ, sT0, M_QM, "KM_QMS")
    a.e(f"ds_read_b32 v{vZ}, v{vZERO} offset:{M_MAXC}")
    a.e(f"s_lshl_b32 s{sT0}, s2, 2")
    a.e(f"s_add_u32 s{sT0}, s{sT0}, {MX_OFF}")
    a.e(f"v_mov_b32 v{vY}, 1")
    a.e("s_waitcnt lgkmcnt(0)")
    a.e(f"buffer_store_dword v{vZ}, v{vZERO}, s[{S_WS}:{S_WS+3}], s{sT0} offen{ST}")
    a.e("s_waitcnt vmcnt(0)")
    a.e(f"ds_add_u32 v{vZERO}, v{vY} offset:{M_QM}")
    a.e("KM_QMS:")
    a.e("s_mov_b64 exec, -1")
    a.e(f"s_setprio {cfg.get('k1_qprio', 1)}")
    a.lg = []
    stamp(0)
    group(1)
    a.vm = []; a.lg = []
    trmove(88)

    vA4, vA2 = 4, 5
    SW_, SA_ = 6, 19
    CUR = 32
    NCOL = {3: 5, 2: 4, 4: 7, 5: 7}[D]
    COL = {3: [0,1,2,3,0,1,2,3,0,1,2,3,4], 2: [0,1,2,0,1,2,0,1,2,0,1,2,3],
           4: [0,1,2,3,4,5,0,1,2,3,4,5,6], 5: [0,1,2,3,4,5,0,1,2,3,4,5,6]}[D]
    k2_common()
    a.e(f"v_add_u32 v0, 512, v0")
    a.e(f"s_add_u32 s{S_MD}, s{S_WS}, {MD_OFF}")
    a.e(f"s_addc_u32 s{S_MD+1}, s{S_WS+1}, 0")
    a.e(f"s_or_b32 s{S_MD+1}, s{S_MD+1}, 0x80000")
    a.e(f"s_mov_b32 s{S_MD+2}, {E}")
    a.e(f"s_mov_b32 s{S_MD+3}, 0x00020000")
    epi_pre(T_ + 8, T_ + 12)
    for s in range(NS):
        a.e(f"v_mov_b32 v{SW_+s}, {hex(DUMMY)}")
        a.e(f"v_mov_b32 v{SA_+s}, 0")
    for c_ in range(NCOL):
        a.e(f"v_mov_b32 v{CUR+4*c_+2}, 0")
    vC4 = T_ + 9
    a.e(f"v_mov_b32 v{vC4}, 4")
    a.e(f"s_mov_b32 s{kCNT}, 0")
    a.e(f"s_mov_b32 s{kTG}, 0")
    a.e("s_waitcnt vmcnt(0)")
    last_wave(wZERO, T_, kT0, M_Q3, "KM_Q3S")
    gsig(wZERO, T_, 2)
    a.e("s_waitcnt vmcnt(0)")
    relay(T_, T_ + 1, kT0, 2, "KM_Q3S")
    a.e("KM_Q3S:")
    a.e("s_mov_b64 exec, -1")
    if RT:
        a.e("s_memrealtime s[94:95]")
        a.e("s_waitcnt lgkmcnt(0)")
    stamp(8)

    stubs = []
    AVB = [T_, T_ + 12, T_ + 16]
    ACOL = [0, 1] * 6 + [2]
    def alpha1(W, cur):
        G0, L16, C_ = cur, cur + 2, cur + 3
        a.e(f"v_and_b32 v{L16}, 0xfffff, v{W}")
        a.e(f"buffer_load_dwordx2 {vr(G0,2)}, v{L16}, s[{S_MD}:{S_MD+3}], 0 idxen")
    def alpha2(W, A, cur):
        G0, L16, C_ = cur, cur + 2, cur + 3
        a.e(f"v_mul_f32 v{C_}, 0.15915494, v{A}")
        a.e(f"v_fract_f32 v{C_}, v{C_}")
        a.e(f"v_cos_f32 v{C_}, v{C_}")
        a.e(f"v_and_b32_sdwa v{L16}, v{W}, s{kFFF0} dst_sel:DWORD dst_unused:UNUSED_PAD src0_sel:WORD_1 src1_sel:DWORD")
        a.e(f"v_fma_f32 v{T_+8}, v{C_}, v{C_}, -0.5")
        a.e(f"v_cvt_pk_bf16_f32 v{C_}, v{C_}, v{T_+8}")
    def rdA(cur, AV_):
        a.e(f"ds_read_b128 {vr(AV_,4)}, v{cur+2} offset:{L_A}")
    def beta(cur, AV_, lg, vm):
        G0, L16, C_ = cur, cur + 2, cur + 3
        M_ = T_ + 4
        a.e(f"v_lshrrev_b32 v{L16}, 2, v{L16}")
        if lg is not None:
            a.e(f"s_waitcnt lgkmcnt({lg})")
        for d in range(4):
            a.e(f"v_dot2_f32_bf16 v{AV_+d}, v{AV_+d}, v{C_}, 0")
        a.e(f"s_waitcnt vmcnt({vm})")
        a.e(f"v_lshlrev_b32 v{M_}, 16, v{G0}")
        a.e(f"v_and_b32 v{M_+1}, s{kHI}, v{G0}")
        a.e(f"v_lshlrev_b32 v{M_+2}, 16, v{G0+1}")
        a.e(f"v_and_b32 v{M_+3}, s{kHI}, v{G0+1}")
        for d in range(0, 4, 2):
            a.e(f"v_pk_mul_f32 {vr(M_+d,2)}, {vr(M_+d,2)}, {vr(AV_+d,2)}")
        for d in range(4):
            a.e(f"v_cvt_rpi_i32_f32 v{M_+d}, v{M_+d}")
        for d in range(4):
            a.e(f"ds_add_u32 v{L16}, v{M_+d} offset:{L_ACC + d*ACC_STR}")
    def cur(s): return CUR + 4 * COL[s]
    def av(s): return AVB[ACOL[s]]
    def step(s, cnt_of, lg, stub=False):
        p = (s - D) % NS
        pn = (p + 1) % NS
        uid[0] += 1
        u = uid[0]
        alpha1(SW_ + s, cur(s))
        rdA(cur(pn), av(pn))
        alpha2(SW_ + s, SA_ + s, cur(s))
        a.e(f"s_cmp_le_u32 s{cnt_of(p)}, {p}")
        if stub:
            a.e(f"s_cbranch_scc1 K2_ST{u}")
            stubs.append(u)
        else:
            a.e(f"s_cbranch_scc1 K2_SB{u}")
        beta(cur(p), av(p), lg, D)
        a.e(f"K2_SB{u}:")
    def readslot(s):
        uid[0] += 1
        u = uid[0]
        a.e(f"s_cmp_le_u32 s{kCNT}, {s}")
        a.e(f"s_cbranch_scc1 K2_RD{u}")
        a.e(f"ds_read_b32 v{SW_+s}, v{vA4} offset:{256*s}")
        a.e(f"ds_read_u16_d16_hi v{SA_+s}, v{vA2} offset:{128*s}")
        a.e(f"s_branch K2_RE{u}")
        a.e(f"K2_RD{u}:")
        a.e(f"v_mov_b32 v{SW_+s}, {hex(DUMMY)}")
        a.e(f"K2_RE{u}:")
    a.e(f"s_setprio {cfg.get('k2_cprio', 1)}")
    a.e("K2_CLOOP:")
    a.e(f"ds_read_b64 {vr(T_+10,2)}, v{wZERO} offset:{M_FS}")
    a.e(f"s_mov_b32 s{kCNP}, s{kCNT}")
    a.e(f"s_add_u32 s{kTG}, s{kTG}, 32")
    step(NS - 2, lambda p: kCNP, 6, stub=True)
    a.e("s_waitcnt lgkmcnt(4)")
    stamp(7)
    a.e("K2_CPOLL:")
    a.e(f"v_readfirstlane_b32 s{kT0}, v{T_+10}")
    a.e(f"v_readfirstlane_b32 s{kN}, v{T_+11}")
    a.e(f"s_cmp_lt_u32 s{kT0}, s{kTG}")
    a.e("s_cbranch_scc1 K2_CPOLL2")
    stamp(8)
    a.e(f"s_add_u32 s{kT0}, s{kN}, 255")
    a.e(f"s_lshr_b32 s{kT0}, s{kT0}, 8")
    a.e(f"s_mul_i32 s{kT1}, s{kT0}, s{kWAVE}")
    a.e(f"s_add_u32 s{kT0}, s{kT1}, s{kT0}")
    a.e(f"s_lshr_b32 s{kT1}, s{kT1}, 3")
    a.e(f"s_lshr_b32 s{kT0}, s{kT0}, 3")
    a.e(f"s_sub_u32 s{kCNT}, s{kT0}, s{kT1}")
    a.e(f"s_lshl_b32 s{kT1}, s{kT1}, 7")
    a.e(f"s_add_u32 s{kT0}, s{kT1}, {L_SA}")
    a.e(f"s_lshl_b32 s{kT1}, s{kT1}, 1")
    a.e(f"s_add_u32 s{kT1}, s{kT1}, {L_SW}")
    a.e(f"v_lshl_add_u32 v{vA4}, v{vLANE}, 2, s{kT1}")
    a.e(f"v_lshl_add_u32 v{vA2}, v{vLANE}, 1, s{kT0}")
    a.e(f"s_cmp_lt_u32 s{kCNT}, {NS-1}")
    a.e("s_cbranch_scc1 K2_RSLOW")
    for s in range(NS - 1):
        a.e(f"ds_read_b32 v{SW_+s}, v{vA4} offset:{256*s}")
        a.e(f"ds_read_u16_d16_hi v{SA_+s}, v{vA2} offset:{128*s}")
    a.e("K2_RDONE:")
    step(NS - 1, lambda p: kCNP, None, stub=True)
    a.e(f"s_cmp_eq_u32 s{kN}, 0")
    a.e("s_cbranch_scc1 K2_CFIN")
    a.e("s_waitcnt lgkmcnt(4)")
    readslot(NS - 1)
    a.e(f"s_cmp_gt_u32 s{kCNT}, {NS}")
    a.e("s_cbranch_scc1 K2_EXTRA")
    a.e("K2_NOEXTRA:")
    signal(vC4, M_FR)
    for s in range(NS - LATE):
        p = (s - D) % NS
        if TRACE and s in cfg.get('trace_steps', [0, 5]): stamp(9)
        step(s, lambda p: kCNP if p >= NS - D else kCNT, None if s == 0 else (1 if p == 0 else 5))
    a.e("s_branch K2_CLOOP")
    for u in stubs:
        a.e(f"K2_ST{u}:")
        a.e("s_waitcnt lgkmcnt(0)")
        a.e(f"s_branch K2_SB{u}")
    a.e("K2_CPOLL2:")
    a.e(f"ds_read_b64 {vr(T_+10,2)}, v{wZERO} offset:{M_FS}")
    a.e("s_waitcnt lgkmcnt(0)")
    a.e("s_branch K2_CPOLL")
    a.e("K2_RSLOW:")
    for s in range(NS - 1):
        readslot(s)
    a.e("s_branch K2_RDONE")
    a.e("K2_EXTRA:")
    XW, XC, XA = T_ + 20, T_ + 24, T_ - 4
    for s in range(NS, 16):
        if s > NS:
            a.e(f"s_cmp_le_u32 s{kCNT}, {s}")
            a.e("s_cbranch_scc1 K2_NOEXTRA")
        a.e(f"v_mov_b32 v{XW+1}, 0")
        a.e(f"ds_read_b32 v{XW}, v{vA4} offset:{256*s}")
        a.e(f"ds_read_u16_d16_hi v{XW+1}, v{vA2} offset:{128*s}")
        a.e("s_waitcnt lgkmcnt(0)")
        alpha1(XW, XC)
        alpha2(XW, XW + 1, XC)
        rdA(XC, XA)
        beta(XC, XA, 0, 0)
    a.e("s_branch K2_NOEXTRA")
    a.e("K2_CFIN:")
    for i in range(D):
        p = NS - D + i
        uid[0] += 1
        u = uid[0]
        a.e(f"s_cmp_le_u32 s{kCNP}, {p}")
        a.e(f"s_cbranch_scc1 K2_SB{u}")
        if i > 0: rdA(cur(p), av(p))
        beta(cur(p), av(p), 0, D - 1 - i)
        a.e(f"K2_SB{u}:")

    a.e("K2_EPI:")
    a.e(f"s_load_dwordx2 s[{S_Y}:{S_Y+1}], s[0:1], 88")
    a.e(f"s_mov_b32 s{S_Y+2}, {E*8}")
    a.e(f"s_mov_b32 s{S_Y+3}, 0x00020000")
    OF, AC, UU, GG = 10, 22, 38, 14
    epi_off(OF, T_)
    a.e(f"v_lshlrev_b32 v{T_+1}, 2, v0")
    a.e(f"v_lshlrev_b32 v{T_+2}, 3, v0")
    a.e(f"v_add_u32 v{T_+2}, {L_GP}, v{T_+2}")
    for d in range(4):
        for h in range(2):
            src = S_WU + 8 + 2 * d + h
            a.e(f"s_lshl_b32 s{S_WA+4*d+2*h}, s{src}, 16")
            a.e(f"s_and_b32 s{S_WA+4*d+2*h+1}, s{src}, s{kHI}")
    a.e("s_waitcnt vmcnt(0) lgkmcnt(0)")
    a.e("s_barrier")
    for k in range(4):
        for d in range(4):
            a.e(f"ds_read_b32 v{AC+4*k+d}, v{T_+1} offset:{L_ACC + d*ACC_STR + 4096*k}")
        a.e(f"ds_read_b64 {vr(GG+2*k,2)}, v{T_+2} offset:{8192*k}")
        if k == 1:
            a.e("s_waitcnt lgkmcnt(0)")
    a.e("s_waitcnt lgkmcnt(0)")
    for k in range(4):
        for d in range(4):
            a.e(f"v_cvt_f32_i32 v{AC+4*k+d}, v{AC+4*k+d}")
        for dp_ in range(4):
            a.e(f"v_mul_f32 v{UU+4*k+dp_}, s{S_WA+dp_}, v{AC+4*k}")
        for d in range(1, 4):
            for dp_ in range(4):
                a.e(f"v_fmac_f32 v{UU+4*k+dp_}, s{S_WA+4*d+dp_}, v{AC+4*k+d}")
        a.e(f"v_lshlrev_b32 v{AC+4*k}, 16, v{GG+2*k}")
        a.e(f"v_and_b32 v{AC+4*k+1}, s{kHI}, v{GG+2*k}")
        a.e(f"v_lshlrev_b32 v{AC+4*k+2}, 16, v{GG+2*k+1}")
        a.e(f"v_and_b32 v{AC+4*k+3}, s{kHI}, v{GG+2*k+1}")
    for k in range(4):
        a.e(f"v_lshlrev_b32 v{T_+4}, 16, v{MM+2*k}")
        a.e(f"v_and_b32 v{T_+5}, s{kHI}, v{MM+2*k}")
        a.e(f"v_lshlrev_b32 v{T_+6}, 16, v{MM+2*k+1}")
        a.e(f"v_and_b32 v{T_+7}, s{kHI}, v{MM+2*k+1}")
        for d in range(4):
            a.e(f"v_fmac_f32 v{T_+4+d}, v{UU+4*k+d}, v{AC+4*k+d}")
        a.e(f"v_cvt_pk_bf16_f32 v{MM+2*k}, v{T_+4}, v{T_+5}")
        a.e(f"v_cvt_pk_bf16_f32 v{MM+2*k+1}, v{T_+6}, v{T_+7}")
        a.e(f"buffer_store_dwordx2 {vr(MM+2*k,2)}, v{OF+k}, s[{S_Y}:{S_Y+3}], 0 offen")
    if TRACE:
        a.e("s_waitcnt vmcnt(0)")
        stamp(10)
        a.e(f"s_cmp_lg_u32 s2, {cfg.get('trace_wg', 77)}")
        a.e("s_cbranch_scc1 KM_END")
        a.e(f"v_lshlrev_b32 v1, 2, v0")
        a.e(f"v_add_u32 v1, 4096, v1")
        a.e(f"global_store_dword v1, v{trv[0]}, s[{S_DBG}:{S_DBG+1}]")
    if RT:
        a.e("s_waitcnt vmcnt(0)")
        a.e("s_barrier")
        a.e("s_memrealtime s[98:99]")
        a.e("s_lshl_b32 s100, s2, 4")
        a.e("s_add_u32 s100, s100, 4096")
        a.e("s_waitcnt lgkmcnt(0)")
        a.e("v_mov_b32 v2, s96")
        a.e("v_mov_b32 v3, s94")
        a.e("v_mov_b32 v4, s98")
        a.e("v_mov_b32 v5, s98")
        a.e("v_mov_b32 v1, s100")
        a.e("v_cmp_eq_u32 vcc, 1023, v0")
        a.e("s_and_b64 exec, exec, vcc")
        a.e(f"global_store_dwordx4 v1, v[2:5], s[{S_DBG}:{S_DBG+1}]")
    a.e("KM_END:")
    a.e("s_endpgm")
    return fix_hazards(a.lines)
```

```python
import sys, json
from consts import *
import k1, k1b
def gen_k1(cfg):
    return (k1 if cfg.get('k1v','b')=='a' else k1b).gen_k1(cfg)
import k2, k2b, k2c, k2d
def gen_k2(cfg):
    return {"a": k2, "b": k2b, "c": k2c, "d": k2d}[cfg.get("k2v","b")].gen_k2(cfg)

NAME = "standalone__molecular_angular_gemnet__graph"
def build_m(cfg):
    import km
    hdr = open("cdna_kernels/%s.s.ref" % NAME).read().split("; Override launch")[0]
    out = [hdr.rstrip()]
    nm = NAME + "_kernel"
    out.append(f"; @launch grid=({NWG},1,1) block=(1024,1,1) lds={km.L_TOTAL}")
    out.append('.amdgcn_target "amdgcn-amd-amdhsa--gfx950"')
    out.append(".text")
    out.append(f".globl {nm}")
    out.append(".p2align 8")
    out.append(f".type {nm},@function")
    out.append(f"{nm}:")
    out += km.gen_km(cfg)
    out.append('.section .rodata,"a"')
    out.append(".p2align 6")
    out.append(f".amdhsa_kernel {nm}")
    out.append("  .amdhsa_next_free_vgpr 128")
    out.append("  .amdhsa_next_free_sgpr 102")
    out.append("  .amdhsa_accum_offset 128")
    out.append("  .amdhsa_group_segment_fixed_size 0")
    out.append("  .amdhsa_kernarg_size 112")
    out.append("  .amdhsa_user_sgpr_count 2")
    out.append("  .amdhsa_user_sgpr_kernarg_segment_ptr 1")
    out.append("  .amdhsa_system_sgpr_workgroup_id_x 1")
    out.append(".end_amdhsa_kernel")
    return "\n".join(out) + "\n"

def build(cfg):
    if cfg.get('m', True): return build_m(cfg)
    hdr = open("cdna_kernels/%s.s.ref" % NAME).read().split("; Override launch")[0]
    out = [hdr.rstrip()]
    out.append(f"; @launch kernel=gemnet_part_kernel grid=({NWG},1,1) block=(1024,1,1) lds={K1_LDS if cfg.get('k1v','b')=='a' else K1B_LDS}")
    out.append(f"; @launch kernel={NAME}_kernel grid=({NWG},1,1) block=(1024,1,1) lds={K2_LDS}")
    out.append('.amdgcn_target "amdgcn-amd-amdhsa--gfx950"')
    out.append(".text")
    for nm, body in (("gemnet_part_kernel", gen_k1(cfg)), (NAME + "_kernel", gen_k2(cfg))):
        out.append(f".globl {nm}")
        out.append(".p2align 8")
        out.append(f".type {nm},@function")
        out.append(f"{nm}:")
        out += body
    out.append('.section .rodata,"a"')
    for nm in ("gemnet_part_kernel", NAME + "_kernel"):
        out.append(".p2align 6")
        out.append(f".amdhsa_kernel {nm}")
        out.append("  .amdhsa_next_free_vgpr 128")
        out.append("  .amdhsa_next_free_sgpr 102")
        out.append("  .amdhsa_accum_offset 128")
        out.append("  .amdhsa_group_segment_fixed_size 0")
        out.append("  .amdhsa_kernarg_size 112")
        out.append("  .amdhsa_user_sgpr_count 2")
        out.append("  .amdhsa_user_sgpr_kernarg_segment_ptr 1")
        out.append("  .amdhsa_system_sgpr_workgroup_id_x 1")
        out.append(".end_amdhsa_kernel")
    return "\n".join(out) + "\n"

if __name__ == "__main__":
    path = sys.argv[1]
    cfg = {"k2_pf":0,"k2_cprio":1,"k2_pprio":3,"k2_sprio":0,"k2_d":5}
    cfg.update(json.loads(sys.argv[2]) if len(sys.argv) > 2 else {})
    open(path, "w").write(build(cfg))
```

```python
E = 800000
T = 12800000
NWG = 256
EPB = 3125
NT = 512
TILE_B = 150144
WS_BYTES = 268435456
REC_OFF = 0x4A00000
MD_OFF = 0x4E00000
MX_OFF = 0x5500000
MD_WG_B = 25088
MB = 1374390
MJ = 42949
K1_TILE = 8192
K1_WTOT = K1_TILE + TILE_B
K1_MAXC = K1_WTOT + 64
K1_LDS = K1_MAXC + 64
K2_CNT = 0
K2_BASE = 1024
K2_NB = 2048
K2_ACC = 2112
ACC_STR = 12512
K2_A = K2_ACC + 4 * ACC_STR
K2_SA = 102400
K2_SW = K2_SA + 16384
K2_SCR = K2_SW + 32768 + 256
K2_LDS = K2_SCR + 4096 + 64
CENTERS = [0x0, 0x3e120000, 0x3e920000, 0x3edb0000, 0x3f120000, 0x3f370000, 0x3f5b0000, 0x3f800000]
K1B_MISC = 8192
K1B_WTOT = K1B_MISC
K1B_FLAG = K1B_MISC + 32
K1B_MAXC = K1B_MISC + 64
K1B_STG = K1B_MISC + 128
K1B_TILE = K1B_STG + 260 * 16
K1B_LDS = K1B_TILE + TILE_B
REC_STR = 4224
M6 = 14317
MD_TSTR = 0x320000
FL_OFF = MX_OFF + 0x10000
XB_OFF = 0x5600000
XB_STR = 28672
K2C_FD = 2112
K2C_ACC = 2176
ACC2_STR = 25024
```

```python
from asmlib import *
from consts import *
from k1 import dpp_scan, rt_end

def gen_k1(cfg):
    a = Asm()
    LDNT = " nt" if cfg.get('k1_ld_nt', True) else ""
    STNT = cfg.get('k1_st', "")
    DEP = cfg.get('k1_dep', 4)
    NR = 12
    H2 = cfg.get('k2v', 'b') in 'cd'
    H3 = cfg.get('k2v', 'b') == 'd'
    SPLIT = cfg.get('split', True)
    sM6 = 61
    S_IN, S_OUT, S_ANG, S_WS, S_M = 4, 8, 12, 16, 20
    S_WD = 28
    S_WP = 36
    sWAVE, sMB, sMJ, sNEG, sT0, sT1, sT2, sBASE, sOOB = 44, 45, 46, 47, 48, 49, 50, 51, 52
    sTOFF4, sTOFF2, sPAY, sREC, sR6, sHI, sK = 54, 55, 56, 57, 58, 59, 60
    vOFF16, vOFF8, vINC, vZERO, vX, vY, vZ = 1, 2, 3, 4, 5, 6, 7
    def RIN(r): return 8 + 8 * r if r < NR else 104
    def ROUT(r): return 12 + 8 * r if r < NR else 105
    RING = 106
    def RANG(r): return RING + 2 * (r % DEP)
    TMP = 116
    assert RING + 2 * DEP <= TMP
    TRACE = cfg.get('trace1', False)
    vTR, sPT, sPA = 127, 88, 90
    def stamp(i):
        if not TRACE: return
        if i < 0:
            a.e(f"s_mov_b32 s{sPA}, 0")
            a.e(f"v_mov_b32 v{vTR}, 0")
            i = 15
        a.e(f"s_memtime s[{sPT}:{sPT+1}]")
        a.wlg0()
        a.e(f"s_andn2_b32 s{sPT}, s{sPT}, 15")
        a.e(f"s_or_b32 s{sPT}, s{sPT}, {i}")
        a.e(f"s_mov_b32 m0, s{sPA}")
        a.e(f"s_add_u32 s{sPA}, s{sPA}, 1")
        a.e(f"v_writelane_b32 v{vTR}, s{sPT}, m0")

    a.e(f"s_cmp_ge_u32 s2, {NWG}")
    a.e("s_cbranch_scc1 K1_END")
    stamp(-1)
    if cfg.get('rt'): a.e("s_memrealtime s[96:97]")
    a.e(f"s_load_dwordx2 s[{S_IN}:{S_IN+1}], s[0:1], 8")
    a.e(f"s_load_dwordx2 s[{S_OUT}:{S_OUT+1}], s[0:1], 16")
    a.e(f"s_load_dwordx2 s[{S_ANG}:{S_ANG+1}], s[0:1], 32")
    a.e(f"s_load_dwordx2 s[{S_WS}:{S_WS+1}], s[0:1], 104")
    a.e(f"s_load_dwordx2 s[{S_M}:{S_M+1}], s[0:1], 0")
    a.e(f"s_load_dwordx2 s[24:25], s[0:1], 72")
    for s, n in ((S_IN, T * 4), (S_OUT, T * 4), (S_ANG, T * 2), (S_WS, WS_BYTES), (S_M, E * 8)):
        a.e(f"s_mov_b32 s{s+2}, {n}")
        a.e(f"s_mov_b32 s{s+3}, 0x00020000")
    a.e(f"v_lshrrev_b32 v{vX}, 6, v0")
    a.e(f"v_readfirstlane_b32 s{sWAVE}, v{vX}")
    a.e(f"v_mov_b32 v{vZERO}, 0")
    a.e(f"v_mov_b32 v{vX}, 0")
    a.e(f"v_lshlrev_b32 v{vY}, 3, v0")
    a.e(f"ds_write_b64 v{vY}, {vr(vZERO,2)}")
    a.e(f"v_and_b32 v{vY}, 0x78, v{vY}")
    a.e(f"ds_write_b64 v{vY}, {vr(vZERO,2)} offset:{K1B_MISC}")
    a.e(f"v_and_b32 v0, 511, v0")
    a.e(f"v_lshlrev_b32 v{vOFF16}, 4, v0")
    a.e(f"v_lshlrev_b32 v{vOFF8}, 3, v0")
    a.e(f"s_mov_b32 s{sMB}, {MB * 2 if H2 else MB}")
    a.e(f"s_mov_b32 s{sMJ}, {cfg.get('mj', MJ) * 2 if H2 else MJ}")
    if H2: a.e(f"s_mov_b32 s{sM6}, {cfg.get('m6', M6)}")
    a.e(f"s_mov_b32 s{sNEG}, {-EPB}")
    a.e(f"s_mov_b32 s{sOOB}, 0x80000000")
    a.e(f"s_mov_b32 s{sHI}, 0xffff0000")
    a.e(f"s_mov_b32 s{sK}, {K1B_TILE}")
    a.e(f"s_lshr_b32 s{sBASE}, s{sWAVE}, 3")
    a.e(f"s_and_b32 s{sWAVE}, s{sWAVE}, 7")
    a.e(f"s_lshl_b32 s{sT0}, s{sBASE}, 8")
    a.e(f"s_add_u32 s{sT0}, s{sT0}, s2")
    a.e(f"s_mul_i32 s{sPAY}, s{sT0}, {TILE_B}")
    a.e(f"s_mul_i32 s{sREC}, s{sT0}, {REC_STR}")
    a.e(f"s_add_u32 s{sREC}, s{sREC}, {REC_OFF}")
    a.e(f"s_mul_i32 s{sT1}, s{sT0}, 3125")
    a.e(f"s_add_u32 s{sT2}, s{sT1}, 3125")
    a.e(f"s_lshr_b32 s{sT1}, s{sT1}, 3")
    a.e(f"s_lshr_b32 s{sT2}, s{sT2}, 3")
    a.e(f"s_sub_u32 s{sT2}, s{sT2}, s{sT1}")
    a.e(f"s_sub_u32 s{sT2}, s{sT2}, 384")
    a.e(f"s_lshl_b32 s{sTOFF4}, s{sT1}, 8")
    a.e(f"s_lshl_b32 s{sTOFF2}, s{sT1}, 7")
    a.e(f"s_cmp_lt_u32 s{sWAVE}, s{sT2}")
    a.e(f"s_cselect_b32 s{sR6}, 0, s{sOOB}")
    a.e("s_waitcnt lgkmcnt(0)")
    a.e("s_barrier")
    a.e(f"s_cmp_lg_u32 s{sBASE}, 0")
    a.e("s_cbranch_scc1 K1_Q")

    def loads(r):
        a.e(f"s_add_u32 s{sT0}, s{sTOFF4}, {r * 8192}")
        a.e(f"s_add_u32 s{sT1}, s{sTOFF2}, {r * 4096}")
        if r < NR:
            a.vmem(f"buffer_load_dwordx4 {vr(RIN(r),4)}, v{vOFF16}, s[{S_IN}:{S_IN+3}], s{sT0} offen{LDNT}", ('L', r))
            a.vmem(f"buffer_load_dwordx4 {vr(ROUT(r),4)}, v{vOFF16}, s[{S_OUT}:{S_OUT+3}], s{sT0} offen{LDNT}", ('L', r))
            a.vmem(f"buffer_load_dwordx2 {vr(RANG(r),2)}, v{vOFF8}, s[{S_ANG}:{S_ANG+3}], s{sT1} offen{LDNT}", ('A', r))
        else:
            a.e(f"v_lshl_or_b32 v{TMP+8}, v0, 2, s{sR6}")
            a.e(f"v_lshl_or_b32 v{TMP+9}, v0, 1, s{sR6}")
            a.vmem(f"buffer_load_dword v{RIN(r)}, v{TMP+8}, s[{S_IN}:{S_IN+3}], s{sT0} offen{LDNT}", ('L', r))
            a.vmem(f"buffer_load_dword v{ROUT(r)}, v{TMP+8}, s[{S_OUT}:{S_OUT+3}], s{sT0} offen{LDNT}", ('L', r))
            a.vmem(f"buffer_load_ushort v{RANG(r)}, v{TMP+9}, s[{S_ANG}:{S_ANG+3}], s{sT1} offen{LDNT}", ('A', r))

    def hist(r):
        a.wvm(('L', r))
        n = 4 if r < NR else 1
        if r == NR:
            a.e(f"s_cmp_eq_u32 s{sR6}, 0")
            a.e(f"s_cselect_b64 exec, -1, 0")
        for k in range(n):
            vi, vo, t0, t1 = RIN(r) + k, ROUT(r) + k, TMP + k, TMP + 4 + k
            if H2:
                t2 = vX + (k & 1)
                a.e(f"v_mul_hi_u32_u24 v{t0}, s{sMB}, v{vo}")
                a.e(f"v_mul_hi_u32_u24 v{t1}, s{sMJ}, v{vi}")
                if SPLIT:
                    a.e(f"v_mul_hi_u32_u24 v{t2}, s{sM6}, v{vi}")
                a.e(f"v_lshlrev_b32 v{vo}, 1, v{vo}")
                if SPLIT:
                    a.e(f"v_bfi_b32 v{t1}, v{t2}, v{t0}, v{t1}")
                a.e(f"v_and_b32 v{t0}, 0x1fc, v{t0}")
                a.e(f"v_bfi_b32 v{t1}, 1, v{vi}, v{t1}")
                a.e(f"v_mad_i32_i24 v{vo}, v{t0}, s{sNEG}, v{vo}")
                a.e(f"v_lshrrev_b32 v{vi}, 1, v{vi}")
                a.e(f"v_lshl_or_b32 v{t0}, v{t1}, 9, v{t0}")
                a.e(f"v_lshl_or_b32 v{vi}, v{vo}, 18, v{vi}")
                a.e(f"ds_add_u32 v{t0}, v{vINC}")
                continue
            a.e(f"v_mul_hi_u32 v{t0}, v{vo}, s{sMB}")
            a.e(f"v_mul_hi_u32 v{t1}, v{vi}, s{sMJ}")
            a.e(f"v_mad_i32_i24 v{vo}, v{t0}, s{sNEG}, v{vo}")
            a.e(f"v_lshlrev_b32 v{t0}, 2, v{t0}")
            a.e(f"v_lshl_or_b32 v{vi}, v{vo}, 20, v{vi}")
            a.e(f"v_lshl_add_u32 v{t0}, v{t1}, 10, v{t0}")
            a.e(f"ds_add_u32 v{t0}, v{vINC}")
        a.wvm(('A', r))
        for k in range(n):
            if k & 1:
                a.e(f"v_and_or_b32 v{ROUT(r)+k}, v{RANG(r)+(k>>1)}, s{sHI}, v{TMP+k}")
            else:
                a.e(f"v_lshl_or_b32 v{ROUT(r)+k}, v{RANG(r)+(k>>1)}, 16, v{TMP+k}")
        if r == NR:
            a.e("s_mov_b64 exec, -1")

    def group(g):
        nsync = [0]
        def sync():
            if g == 1:
                a.barrier(); return
            off = K1B_FLAG + 4 * nsync[0]
            nsync[0] += 1
            a.e("s_mov_b64 exec, 1")
            a.e(f"ds_add_u32 v{vZERO}, v{vINC} offset:{off}")
            a.e("s_mov_b64 exec, -1")
            a.e(f"K1_PL{nsync[0]}:")
            a.e(f"ds_read_b32 v{vZ}, v{vZERO} offset:{off}")
            a.wlg0()
            a.e(f"v_readfirstlane_b32 s{sT0}, v{vZ}")
            a.e(f"s_cmp_lt_u32 s{sT0}, 8")
            a.e(f"s_cbranch_scc1 K1_PL{nsync[0]}")
        a.e(f"v_mov_b32 v{vINC}, {1 if g == 0 else 0x10000}")
        for r in range(DEP):
            loads(r)
        for r in range(NR + 1):
            hist(r)
            if r + DEP <= NR: loads(r + DEP)
            if r in (3, 7): stamp(1)
        stamp(2)
        sync()
        stamp(3)
        C, SS, W0 = 108, 112, 116
        a.e(f"ds_read_b128 {vr(C,4)}, v{vOFF16}")
        if g == 1:
            a.e(f"ds_read_b64 {vr(W0,2)}, v{vZERO} offset:{K1B_MAXC}" if H3 else f"ds_read_b32 v{W0+1}, v{vZERO} offset:{K1B_MAXC}")
            a.e(f"s_lshl_b32 s{sT0}, s2, {3 if H3 else 2}")
            a.e(f"v_mov_b32 v{W0+2}, s{sT0}")
            a.e(f"v_mov_b32 v{W0+3}, s{sOOB}")
            a.e(f"v_cmp_eq_u32 vcc, 0, v0")
            a.e(f"v_cndmask_b32 v{W0+2}, v{W0+3}, v{W0+2}, vcc")
            a.e(f"s_mov_b32 s{sT0}, {MX_OFF}")
        a.e("s_waitcnt lgkmcnt(0)")
        if g == 1:
            a.vmem(f"buffer_store_dword{'x2' if H3 else ''} {vr(W0,2) if H3 else vr(W0+1)}, v{W0+2}, s[{S_WS}:{S_WS+3}], s{sT0} offen{STNT}", 'S')
        for k in range(4):
            a.e(f"v_and_b32 v{C+k}, 0xffff, v{C+k}" if g == 0 else f"v_lshrrev_b32 v{C+k}, 16, v{C+k}")
        a.e(f"v_add_u32 v{SS}, v{C}, v{C+1}")
        a.e(f"v_add3_u32 v{SS}, v{SS}, v{C+2}, v{C+3}")
        a.e(f"v_mov_b32 v{SS+1}, v{SS}")
        dpp_scan(a, SS)
        a.e(f"s_lshl_b32 s{sT0}, s{sWAVE}, 2")
        a.e(f"v_mov_b32 v{W0}, s{sT0}")
        a.e("s_lshl_b64 exec, 1, 63")
        a.e(f"ds_write_b32 v{W0}, v{SS} offset:{K1B_WTOT}")
        a.e("s_mov_b64 exec, -1")
        a.e(f"v_sub_u32 v{SS}, v{SS}, v{SS+1}")
        a.e(f"v_and_b32 v{W0+4}, 7, v0")
        a.e(f"v_lshlrev_b32 v{W0}, 2, v{W0+4}")
        a.e(f"v_and_b32 v{W0+6}, 63, v0")
        a.e(f"s_lshl_b32 s{sT1}, s{sWAVE}, 1")
        a.e(f"v_lshl_add_u32 v{W0+6}, v{W0+6}, 6, s{sT1}")
        sync()
        a.e(f"ds_read_b32 v{W0+5}, v{W0} offset:{K1B_WTOT}")
        a.e(f"v_cmp_gt_u32 vcc, s{sWAVE}, v{W0+4}")
        a.e("s_waitcnt lgkmcnt(0)")
        a.e(f"v_cndmask_b32 v{W0+5}, 0, v{W0+5}, vcc")
        for sh in (1, 2, 4):
            a.e(f"v_add_u32_dpp v{W0+5}, v{W0+5}, v{W0+5} row_shr:{sh} row_mask:0xf bank_mask:0xf bound_ctrl:0")
        a.e(f"v_readlane_b32 s{sBASE}, v{W0+5}, 7")
        a.e(f"v_add_u32 v{W0}, s{sBASE}, v{SS}")
        for k in range(4):
            a.e(f"v_add_u32 v{W0+1+k}, v{W0+k}, v{C+k}")
        if g == 0:
            for k in range(4):
                a.e(f"v_sub_u32 v{C+k}, v{W0+k}, v{C+k}")
            for k in range(4):
                a.e(f"ds_add_u32 v{vOFF16}, v{C+k} offset:{4*k}")
        else:
            for k in range(4):
                a.e(f"v_mad_u32_u24 v{C+k}, v{W0+k}, 6, s{sK}")
            a.e(f"ds_write_b128 v{vOFF16}, {vr(C,4)}")
            a.e(f"v_mov_b32 v{vINC}, 6")
        for k in range(5):
            a.e(f"ds_write_b16 v{W0+6}, v{W0+k} offset:{K1B_STG + 16*k}")
        sync()
        stamp(4)
        U = [106, 110]
        WA, AA = 114, 118
        RS = 120
        a.lds(f"ds_read_b128 {vr(RS,4)}, v{vOFF16} offset:{K1B_STG}", 'RS')
        def rtn(r):
            n = 4 if r < NR else 1
            for k in range(n):
                a.e(f"v_and_b32 v{U[r&1]+k}, 0xffff, v{ROUT(r)+k}")
            if r == NR:
                a.e(f"s_cmp_eq_u32 s{sR6}, 0")
                a.e(f"s_cselect_b64 exec, -1, 0")
            for k in range(n):
                a.lds(f"ds_add_rtn_u32 v{U[r&1]+k}, v{U[r&1]+k}, v{vINC}", ('R', r))
            if r == NR:
                a.e("s_mov_b64 exec, -1")
        rtn(0)
        a.e(f"v_cmp_gt_u32 vcc, 257, v0")
        a.e(f"v_mov_b32 v{vX}, s{sOOB}")
        a.e(f"v_cndmask_b32 v{vX}, v{vX}, v{vOFF16}, vcc")
        a.wlg('RS')
        a.vmem(f"buffer_store_dwordx4 {vr(RS,4)}, v{vX}, s[{S_WS}:{S_WS+3}], s{sREC} offen{STNT}", 'S')
        for r in range(NR + 1):
            n = 4 if r < NR else 1
            if r + 1 <= NR: rtn(r + 1)
            a.wlg(('R', r))
            for k in range(n):
                u, wa, aa = U[r & 1] + k, WA + k, AA + k
                if g == 0:
                    a.e(f"v_mad_u32_u16 v{u}, v{u}, 6, s{sK}")
                a.e(f"v_and_b32 v{aa}, 2, v{u}")
                a.e(f"v_add_u32 v{wa}, v{u}, v{aa}")
                a.e(f"v_mad_i32_i24 v{aa}, v{aa}, -2, v{u}")
            if r == NR:
                a.e(f"s_cmp_eq_u32 s{sR6}, 0")
                a.e(f"s_cselect_b64 exec, -1, 0")
            for k in range(n):
                a.lds(f"ds_write_b32 v{WA+k}, v{RIN(r)+k}")
                a.lds(f"ds_write_b16_d16_hi v{AA+k}, v{ROUT(r)+k} offset:4")
            if r == NR:
                a.e("s_mov_b64 exec, -1")
        LB = [vX, vY, vZ + 0]
        stamp(5)
        sync()
        stamp(6)
        NQ = 19
        LBR = [116, 117, 118]
        for h in range(3):
            a.e(f"v_add_u32 v{LBR[h]}, {K1B_TILE + 65536*h}, v{vOFF16}")
        a.e(f"v_cmp_gt_u32 vcc, {(TILE_B - 18*8192)//16}, v0")
        a.e(f"v_mov_b32 v{vX}, s{sOOB}")
        a.e(f"v_cndmask_b32 v{vX}, v{vX}, v{vOFF16}, vcc")
        a.e(f"v_cndmask_b32 v{vY}, v{LBR[0]}, v{LBR[2]}, vcc")
        def rd(q):
            a.lds(f"ds_read_b128 {vr(8+4*q,4)}, v{LBR[q>>3] if q < 18 else vY} offset:{(q&7)*8192}", ('W', q))
        for q in range(8): rd(q)
        for q in range(NQ):
            if q + 8 < NQ: rd(q + 8)
            a.wlg(('W', q))
            a.e(f"s_add_u32 s{sT2}, s{sPAY}, {q*8192}")
            a.vmem(f"buffer_store_dwordx4 {vr(8+4*q,4)}, v{vOFF16 if q < 18 else vX}, s[{S_WS}:{S_WS+3}], s{sT2} offen{STNT}", 'S')
        stamp(7)

    def trace_end(g):
        if TRACE:
            a.wvm0()
            stamp(8)
            a.e(f"s_cmp_lg_u32 s2, {cfg.get('trace_wg', 77)}")
            a.e("s_cbranch_scc1 K1_END")
            a.e(f"s_load_dwordx2 s[{S_M}:{S_M+1}], s[0:1], 96")
            a.e(f"s_mov_b32 s{S_M+2}, 4096")
            a.e("s_waitcnt lgkmcnt(0)")
            a.e(f"v_lshlrev_b32 v1, 2, v0")
            a.e(f"buffer_store_dword v{vTR}, v1, s[{S_M}:{S_M+3}], 0 offen offset:{2048*g}")

    if cfg.get('k1_pprio', 1): a.e(f"s_setprio {cfg.get('k1_pprio', 1)}")
    group(0)
    for _ in range(5 if cfg.get('rt') else 4):
        a.e("s_barrier")
    trace_end(0)
    a.e("s_endpgm")
    a.vm = []; a.lg = []

    a.e("K1_Q:")
    a.e("s_setprio 3")
    a.e(f"s_load_dwordx8 s[{S_WD}:{S_WD+7}], s[24:25], 0")
    vM, vMO, D, vMAX = 8, 24, 32, 28
    a.e(f"s_mul_i32 s{sT0}, s2, {MD_WG_B}")
    a.e(f"v_add_u32 v{vMO}, s{sT0}, v{vOFF16}")
    for q in range(1, 4):
        a.e(f"v_add_u32 v{vMO+q}, {8192*q}, v{vMO}")
    a.e(f"v_mov_b32 v{vX}, s{sOOB}")
    a.e(f"v_cmp_gt_u32 vcc, {(MD_WG_B - 3*8192)//16}, v0")
    a.e(f"v_cndmask_b32 v{vMO+3}, v{vX}, v{vMO+3}, vcc")
    for q in range(4):
        a.vmem(f"buffer_load_dwordx4 {vr(vM+4*q,4)}, v{vMO+q}, s[{S_M}:{S_M+3}], 0 offen", ('M', q))
    a.e(f"v_mov_b32 v{vMAX}, 0")
    a.e("s_waitcnt lgkmcnt(0)")
    for d in range(4):
        for h in range(2):
            r0 = S_WD + 4 * h + (d >> 1); r1 = r0 + 2
            a.e(f"s_pack_{'hh' if d & 1 else 'll'}_b32_b16 s{S_WP + 2*d + h}, s{r0}, s{r1}")
    a.e(f"s_mov_b32 s{sT0}, {MD_OFF}")
    a.wvm(('M', 3))
    for ed in range(8):
        m01 = vM + 2 * ed
        for d in range(4):
            a.e(f"v_dot2_f32_bf16 v{D+4*ed+d}, v{m01}, s{S_WP+2*d}, 0")
        for d in range(4):
            a.e(f"v_dot2_f32_bf16 v{D+4*ed+d}, v{m01+1}, s{S_WP+2*d+1}, v{D+4*ed+d}")
    for ed in range(8):
        m01 = vM + 2 * ed
        a.e(f"v_max3_f32 v{vMAX}, abs(v{D+4*ed}), abs(v{D+4*ed+1}), v{vMAX}")
        a.e(f"v_max3_f32 v{vMAX}, abs(v{D+4*ed+2}), abs(v{D+4*ed+3}), v{vMAX}")
        a.e(f"v_cvt_pk_bf16_f32 v{m01}, v{D+4*ed}, v{D+4*ed+1}")
        a.e(f"v_cvt_pk_bf16_f32 v{m01+1}, v{D+4*ed+2}, v{D+4*ed+3}")
    if H2:
        a.e(f"s_mov_b32 s{sT1}, {MD_OFF + MD_TSTR}")
        for q in range(4):
            a.e(f"v_lshrrev_b32 v{vMO+q}, 1, v{vMO+q}")
        for q in range(4):
            a.vmem(f"buffer_store_dwordx2 {vr(vM+4*q,2)}, v{vMO+q}, s[{S_WS}:{S_WS+3}], s{sT0} offen{STNT}", 'S')
            a.vmem(f"buffer_store_dwordx2 {vr(vM+4*q+2,2)}, v{vMO+q}, s[{S_WS}:{S_WS+3}], s{sT1} offen{STNT}", 'S')
        a.e(f"s_lshl_b32 s{sT1}, s2, 7")
        a.e(f"s_add_u32 s{sT1}, s{sT1}, {FL_OFF}")
        a.e(f"v_cmp_gt_u32 vcc, 8, v0")
        a.e(f"v_cndmask_b32 v{vX}, v{vX}, v{vOFF16}, vcc")
        a.vmem(f"buffer_store_dword v{vZERO}, v{vX}, s[{S_WS}:{S_WS+3}], s{sT1} offen{STNT}", 'S')
    else:
      for q in range(4):
        a.vmem(f"buffer_store_dwordx4 {vr(vM+4*q,4)}, v{vMO+q}, s[{S_WS}:{S_WS+3}], s{sT0} offen{STNT}", 'S')
    if H3:
        for st in (16, 8, 4, 2, 1):
            for i in range(st):
                a.e(f"v_add_f32 v{D+i}, abs(v{D+i}), abs(v{D+i+st})")
        dpp_scan(a, D, "v_add_f32")
    dpp_scan(a, vMAX, "v_max_u32")
    a.e("s_lshl_b64 exec, 1, 63")
    if H3: a.e(f"ds_add_f32 v{vZERO}, v{D} offset:{K1B_MAXC+4}")
    a.e(f"ds_max_u32 v{vZERO}, v{vMAX} offset:{K1B_MAXC}")
    a.e("s_mov_b64 exec, -1")
    a.e("s_setprio 0")
    stamp(0)
    group(1)
    trace_end(1)
    if cfg.get('rt'): rt_end(a, 0, S_M)
    a.e("K1_END:")
    a.e("s_endpgm")
    return fix_hazards(a.lines)
```

```python
from asmlib import *
from consts import *
from k1 import dpp_scan, rt_end

NS = 13
DUMMY = (2 * EPB << 19) | 0x7FFFF
K2_GI = K2_NB + 8
K2_R6 = K2_NB + 12
IDXM = 0x7FFFF
K2_FS = K2_NB + 32
K2_NCELL = K2_FS + 4
K2_FH = K2_FS + 8
K2_FR = K2_FS + 12
K2_FP = K2_FS + 16

def gen_k2(cfg):
    a = Asm()
    PAYNT = " nt" if cfg.get('k2_pay_nt', False) else ""
    D = cfg.get('k2_d', 3)
    B1POS = cfg.get('k2_b1', 6)
    LATE = cfg.get('k2_late', 2)
    PPRIO = cfg.get('k2_pprio', 3)
    PROF = cfg.get('prof', False)
    S_WS, S_MD = 4, 8
    S_X = 12
    S_Y = 16
    sWAVE, sB, sJ, sWIN, sTOT, sN, sCNT, sT0, sT1, sT2, sFFF0, sHI, sCNP, sOOB = range(20, 34)
    sM = 34
    sG = 36
    sTG = 37
    sR6 = 38
    sGH = 39
    SPLIT = cfg.get('split', True)
    import math, struct
    def f2h(x): return hex(struct.unpack('<I', struct.pack('<f', x))[0])
    def h2f(x): return struct.unpack('<f', struct.pack('<I', x))[0]
    KAP = math.sqrt(10.0 * math.log2(math.e))
    puid = [0]
    def poll(vt, off, tgt, first=True):
        puid[0] += 1
        if first:
            SLP = cfg.get('k2_slp', 0)
            if SLP:
                a.e(f"s_branch K2_PM{puid[0]}")
            a.e(f"K2_PL{puid[0]}:")
            if SLP:
                a.e(f"s_sleep {SLP}")
                a.e(f"K2_PM{puid[0]}:")
            a.e(f"ds_read_b32 v{vt}, v{vZERO} offset:{off}")
            a.e("s_waitcnt lgkmcnt(0)")
            a.e(f"v_readfirstlane_b32 s{sT0}, v{vt}")
            a.e(f"s_cmp_lt_u32 s{sT0}, s{tgt}")
            a.e(f"s_cbranch_scc1 K2_PL{puid[0]}")
    def signal(vone, off):
        a.e("s_mov_b64 exec, 1")
        a.e(f"ds_add_u32 v{vZERO}, v{vone} offset:{off}")
        a.e("s_mov_b64 exec, -1")
    S_WA = 40
    S_WU = 72
    MSK = 40
    sPT, sPP, sPA = 88, 90, 91
    TRACE = cfg.get('trace', False)
    vTR = 127
    def stamp(i):
        if TRACE:
            if i < 0:
                a.e(f"s_mov_b32 s{sPA}, 0")
                a.e(f"v_mov_b32 v{vTR}, 0")
                i = 15
            a.e(f"s_memtime s[{sPT}:{sPT+1}]")
            a.e("s_waitcnt lgkmcnt(0)")
            a.e(f"s_andn2_b32 s{sPT}, s{sPT}, 15")
            a.e(f"s_or_b32 s{sPT}, s{sPT}, {i}")
            a.e(f"s_mov_b32 m0, s{sPA}")
            a.e(f"s_add_u32 s{sPA}, s{sPA}, 1")
            a.e(f"s_min_u32 s{sPA}, s{sPA}, 63")
            a.e(f"v_writelane_b32 v{vTR}, s{sPT}, m0")
            return
        if not PROF: return
        a.e(f"s_memtime s[{sPT}:{sPT+1}]")
        a.e("s_waitcnt lgkmcnt(0)")
        if i >= 0:
            a.e(f"s_sub_u32 s{sPP}, s{sPT}, s{sPP}")
            a.e(f"s_add_u32 s{sPA+i}, s{sPA+i}, s{sPP}")
        a.e(f"s_mov_b32 s{sPP}, s{sPT}")
    vLANE, vZERO = 1, 2
    T_ = 100

    a.e(f"s_cmp_ge_u32 s2, {NWG}")
    a.e("s_cbranch_scc1 K2_END")
    if cfg.get('rt'): a.e("s_memrealtime s[96:97]")
    if cfg.get('x_stag'):
        a.e(f"s_lshr_b32 s4, s2, 3")
        a.e(f"s_and_b32 s4, s4, {cfg.get('x_stagm', 1)}")
        a.e(f"s_mul_i32 s4, s4, {cfg['x_stag']}")
        a.e("K2_STG:")
        a.e("s_cmp_eq_u32 s4, 0")
        a.e("s_cbranch_scc1 K2_STD")
        a.e("s_sleep 8")
        a.e("s_sub_u32 s4, s4, 1")
        a.e("s_branch K2_STG")
        a.e("K2_STD:")
    if PROF:
        for i in range(11): a.e(f"s_mov_b32 s{sPA+i}, 0")
    stamp(-1)
    a.e(f"s_load_dwordx2 s[{S_WS}:{S_WS+1}], s[0:1], 104")
    a.e(f"s_mov_b32 s{S_WS+2}, {WS_BYTES}")
    a.e(f"s_mov_b32 s{S_WS+3}, 0x00020000")
    a.e(f"v_lshrrev_b32 v{T_}, 6, v0")
    a.e(f"v_and_b32 v{vLANE}, 63, v0")
    a.e(f"v_readfirstlane_b32 s{sWAVE}, v{T_}")
    a.e(f"s_and_b32 s{sB}, s2, 7")
    a.e(f"s_lshl_b32 s{sB}, s{sB}, 5")
    a.e(f"s_lshr_b32 s{sT0}, s2, 3")
    a.e(f"s_or_b32 s{sB}, s{sB}, s{sT0}")
    a.e(f"s_mov_b32 s{sHI}, 0xffff0000")
    a.e(f"s_mov_b32 s{sOOB}, 0x80000000")
    a.e(f"v_mov_b32 v{vZERO}, 0")
    a.e(f"s_cmp_ge_u32 s{sWAVE}, 8")
    a.e("s_cbranch_scc1 K2_CONS")

    vL12, vTB, vCN, vSCR, vFOUR, vL16 = range(3, 9)
    R = 10
    def P(c): return 18 + 4 * c
    U, KA, OLD = 50, 66, 82
    if PPRIO: a.e(f"s_setprio {PPRIO}")
    a.e(f"s_mov_b32 s{sT0}, {TILE_B}")
    a.e(f"v_mul_lo_u32 v{vTB}, v0, s{sT0}")
    K1B = cfg.get('k1v', 'b') == 'b'
    RL = 20 if K1B else R
    a.e(f"s_lshl_b32 s{sT0}, s{sB}, {4 if K1B else 5}")
    a.e(f"v_mul_u32_u24 v{T_+1}, {REC_STR if K1B else 8192}, v0")
    a.e(f"v_add_u32 v{T_+1}, s{sT0}, v{T_+1}")
    a.e(f"s_mov_b32 s{sT0}, {REC_OFF}")
    a.e("s_waitcnt lgkmcnt(0)")
    a.e(f"buffer_load_dwordx4 {vr(RL,4)}, v{T_+1}, s[{S_WS}:{S_WS+3}], s{sT0} offen")
    a.e(f"buffer_load_dwordx4 {vr(RL+4,4)}, v{T_+1}, s[{S_WS}:{S_WS+3}], s{sT0} offen offset:16")
    a.e("s_barrier")
    a.e(f"v_mul_u32_u24 v{vL12}, 12, v{vLANE}")
    a.e(f"v_lshlrev_b32 v{vL16}, 4, v{vLANE}")
    a.e(f"v_mov_b32 v{vFOUR}, 4")
    a.e(f"v_min_u32 v{vCN}, 1, v{vLANE}")
    a.e(f"v_lshlrev_b32 v{vSCR}, 3, v0")
    a.e(f"v_add_u32 v{vSCR}, {K2_SCR}, v{vSCR}")
    a.e(f"v_mov_b32 v{T_+2}, 0")
    a.e(f"v_mov_b32 v{T_+3}, 0")
    a.e(f"ds_write_b64 v{vSCR}, {vr(T_+2,2)}")
    a.e(f"s_mov_b32 s{sTG}, 0")
    for k in range(4):
        a.e(f"v_mov_b32 v{OLD+k}, 0")
    vPF, vPD = 86, 87
    PFM = cfg.get('k2_pf', 1)
    if PFM:
        a.e(f"s_lshr_b32 s{sT0}, s2, 3")
        a.e(f"s_lshl_b32 s{sT0}, s{sT0}, 3")
        a.e(f"s_add_u32 s{sT0}, s{sT0}, s{sWAVE}")
        a.e(f"s_mul_i32 s{sT0}, s{sT0}, {25*128}")
        a.e(f"v_min_u32 v{vPF}, 24, v{vLANE}")
        a.e(f"v_lshlrev_b32 v{vPF}, 7, v{vPF}")
        a.e(f"v_add_u32 v{vPF}, s{sT0}, v{vPF}")
    a.e(f"s_mov_b32 s{sJ}, 8")
    a.e(f"s_mov_b32 s{sWIN}, 0")
    a.e(f"s_mov_b32 s{sT0}, 0x05040100")
    a.e(f"s_mov_b32 s{sT1}, 0x07060302")
    a.e("s_waitcnt vmcnt(0) lgkmcnt(0)")
    if K1B:
        for k in range(8):
            a.e(f"v_perm_b32 v{R+k}, v{RL+4+(k>>1)}, v{RL+(k>>1)}, s{sT1 if k & 1 else sT0}")
    if SPLIT:
        a.e(f"s_cmp_lt_u32 s{sB}, 128")
        a.e("s_cbranch_scc1 K2_NOSWAP")
        a.e(f"v_swap_b32 v{R+6}, v{R+7}")
        a.e("K2_NOSWAP:")
    a.e(f"s_mov_b32 s{sR6}, 0")
    t = T_
    a.e(f"v_mov_b32 v{t}, 0")
    for k in range(8):
        a.e(f"v_sub_u32_sdwa v{t+1}, v{R+k}, v{R+k} dst_sel:DWORD dst_unused:UNUSED_PAD src0_sel:WORD_1 src1_sel:WORD_0")
        a.e(f"v_add_u32 v{t}, v{t}, v{t+1}")
    dpp_scan(a, t)
    a.e(f"v_lshl_or_b32 v{t}, v{t}, 4, 1")
    a.e("s_lshl_b64 exec, 1, 63")
    a.e(f"ds_add_u32 v{vZERO}, v{t} offset:{K2_NB}")
    a.e("s_mov_b64 exec, -1")
    stamp(0)

    def rotate():
        for k in range(7):
            a.e(f"v_mov_b32 v{R+k}, v{R+k+1}")
        a.e(f"v_mov_b32 v{R+7}, 0")
        a.e(f"s_sub_u32 s{sJ}, s{sJ}, 1")

    a.e("K2_PLOOP:")
    s_, e_, p0, n_, inc, S_, V_, x_, sl, y_, el = range(T_, T_ + 11)
    a.e(f"v_and_b32 v{s_}, 0xffff, v{R}")
    a.e(f"v_lshrrev_b32 v{e_}, 16, v{R}")
    a.e(f"v_lshrrev_b32 v{p0}, 1, v{s_}")
    a.e(f"v_add_u32 v{n_}, 1, v{e_}")
    a.e(f"v_cmp_gt_u32 s[{sM}:{sM+1}], v{e_}, v{s_}")
    a.e(f"v_lshrrev_b32 v{n_}, 1, v{n_}")
    a.e(f"v_sub_u32 v{n_}, v{n_}, v{p0}")
    a.e(f"v_cndmask_b32 v{n_}, 0, v{n_}, s[{sM}:{sM+1}]")
    a.e(f"v_mov_b32 v{inc}, v{n_}")
    dpp_scan(a, inc)
    a.e(f"v_readlane_b32 s{sTOT}, v{inc}, 63")
    a.e(f"s_cmp_lt_u32 s{sWIN}, s{sTOT}")
    a.e(f"s_cbranch_scc1 K2_FGO")
    a.e(f"s_cmp_eq_u32 s{sJ}, 0")
    a.e(f"s_cbranch_scc1 K2_FGO")
    rotate()
    a.e(f"s_mov_b32 s{sWIN}, 0")
    a.e(f"s_branch K2_PLOOP")
    a.e(f"K2_FGO:")
    a.e(f"s_cmp_ge_u32 s{sJ}, {2 if SPLIT else 1}")
    a.e(f"s_cselect_b32 s{sR6}, s{sTG}, s{sR6}")
    def prefetch():
        a.e(f"s_mul_i32 s{sT0}, s{sJ}, 800000")
        a.e(f"s_sub_u32 s{sT0}, {MD_OFF + 8*800000}, s{sT0}")
        a.e(f"buffer_load_dword v{vPD}, v{vPF}, s[{S_WS}:{S_WS+3}], s{sT0} offen")
    if PFM == 1: prefetch()
    a.e(f"v_subrev_u32 v{inc}, s{sWIN}, v{inc}")
    a.e(f"v_sub_u32 v{S_}, v{inc}, v{n_}")
    a.e(f"v_add_u32 v{el}, -1, v{inc}")
    a.e(f"v_sub_u32 v{V_}, v{p0}, v{S_}")
    a.e(f"v_mad_i32_i24 v{V_}, v{V_}, 12, v{vTB}")
    a.e(f"v_cmp_le_i32 vcc, 0, v{S_}")
    a.e(f"v_and_b32 v{x_}, 1, v{s_}")
    a.e(f"s_and_b64 vcc, vcc, s[{sM}:{sM+1}]")
    a.e(f"v_max_i32 v{sl}, 0, v{S_}")
    a.e(f"v_cndmask_b32 v{x_}, 0, v{x_}, vcc")
    a.e(f"v_lshl_or_b32 v{x_}, v{x_}, 6, v{vCN}")
    a.e(f"v_and_b32 v{y_}, 1, v{e_}")
    a.e(f"v_lshlrev_b32 v{y_}, 7, v{y_}")
    def marker(val, slot, tmp):
        a.e(f"v_lshrrev_b32 v{tmp}, 3, v{slot}")
        a.e(f"v_and_b32 v{tmp}, 0x18, v{tmp}")
        a.e(f"v_lshlrev_b32 v{val}, v{tmp}, v{val}")
        a.e(f"v_lshrrev_b32 v{tmp}, 8, v{slot}")
        a.e(f"v_cmp_gt_u32 vcc, 512, v{slot}")
        a.e(f"v_and_b32 v{slot}, 63, v{slot}")
        a.e(f"v_sub_u32 v{slot}, v{slot}, v{vLANE}")
        a.e(f"v_lshl_add_u32 v{slot}, v{slot}, 1, v{tmp}")
        a.e(f"v_lshl_add_u32 v{slot}, v{slot}, 2, v{vSCR}")
    marker(x_, sl, s_)
    a.e(f"s_mov_b64 exec, vcc")
    a.e(f"ds_add_u32 v{sl}, v{x_}")
    a.e(f"s_mov_b64 exec, -1")
    marker(y_, el, s_)
    a.e(f"s_and_b64 exec, vcc, s[{sM}:{sM+1}]")
    a.e(f"ds_add_u32 v{el}, v{y_}")
    a.e(f"s_mov_b64 exec, -1")
    RAW, RW2, CN = T_ + 12, T_ + 14, T_ + 16
    AD = T_ + 18
    a.e(f"ds_read_b64 {vr(RAW,2)}, v{vSCR}")
    a.e(f"v_mov_b32 v{RW2}, 0")
    a.e(f"v_mov_b32 v{RW2+1}, 0")
    a.e(f"ds_write_b64 v{vSCR}, {vr(RW2,2)}")
    a.e(f"s_sub_u32 s{sT2}, s{sTOT}, s{sWIN}")
    a.e("s_waitcnt lgkmcnt(1)")
    for h in range(2):
        a.e(f"v_and_b32 v{CN+h}, 0x3f3f3f3f, v{RAW+h}")
    for h in range(2):
        a.e(f"v_lshlrev_b32 v{RW2+h}, 1, v{RAW+h}")
    mk = []
    for c in range(8):
        mk.append(f"v_cmp_le_i32_sdwa s[{MSK+4*c}:{MSK+4*c+1}], 0, sext(v{RW2+(c>>2)}) src0_sel:DWORD src1_sel:BYTE_{c&3}")
        mk.append(f"v_cmp_le_i32_sdwa s[{MSK+4*c+2}:{MSK+4*c+3}], 0, sext(v{RAW+(c>>2)}) src0_sel:DWORD src1_sel:BYTE_{c&3}")
    dp = [f"row_shr:{sh} row_mask:0xf bank_mask:0xf bound_ctrl:0" for sh in (1, 2, 4, 8)] + \
         ["row_bcast:15 row_mask:0xa bank_mask:0xf", "row_bcast:31 row_mask:0xc bank_mask:0xf"]
    for d_ in dp:
        for h in range(2):
            a.e(f"v_add_u32_dpp v{CN+h}, v{CN+h}, v{CN+h} {d_}")
        a.e(mk.pop(0))
    a.e(f"v_readlane_b32 s{sT0}, v{CN}, 63")
    a.e(f"v_readlane_b32 s{sT1}, v{CN+1}, 63")
    a.e(mk.pop(0)); a.e(mk.pop(0))
    a.e(f"s_mul_i32 s{sM}, s{sT0}, 0x01010101")
    a.e(f"s_lshl_b32 s{sT0}, s{sM}, 8")
    a.e(f"s_lshr_b32 s{sM}, s{sM}, 24")
    a.e(f"s_lshl_b32 s{sT1}, s{sT1}, 8")
    a.e(f"s_add_u32 s{sT1}, s{sT1}, s{sM}")
    a.e(f"s_mul_i32 s{sT1}, s{sT1}, 0x01010101")
    a.e(f"v_add_u32 v{CN}, s{sT0}, v{CN}")
    a.e(f"v_add_u32 v{CN+1}, s{sT1}, v{CN+1}")
    for c in range(8):
        a.e(f"v_lshlrev_b32_sdwa v{AD+c}, 2, v{CN+(c>>2)} dst_sel:DWORD dst_unused:UNUSED_PAD src0_sel:DWORD src1_sel:BYTE_{c&3}")
        a.e(f"ds_bpermute_b32 v{AD+c}, v{AD+c}, v{V_}")
    for m_ in mk: a.e(m_)
    if PFM == 2: prefetch()
    a.e(f"v_mov_b32 v{s_}, s{sOOB}")
    a.e(f"v_add_u32 v{e_}, {768*4}, v{vL12}")
    for c in range(8):
        a.e(f"v_cmp_gt_i32 vcc, s{sT2}, v{vLANE}")
        a.e(f"s_sub_u32 s{sT2}, s{sT2}, 64")
        a.e(f"s_and_b64 s[{MSK+4*c}:{MSK+4*c+1}], s[{MSK+4*c}:{MSK+4*c+1}], vcc")
        a.e(f"s_and_b64 s[{MSK+4*c+2}:{MSK+4*c+3}], s[{MSK+4*c+2}:{MSK+4*c+3}], vcc")
        a.e(f"s_waitcnt lgkmcnt({7-c})")
        a.e(f"v_add_u32 v{AD+c}, v{AD+c}, v{vL12 if c < 4 else e_}")
        a.e(f"v_cndmask_b32 v{AD+c}, v{s_}, v{AD+c}, vcc")
        a.e(f"buffer_load_dwordx3 {vr(P(c),3)}, v{AD+c}, s[{S_WS}:{S_WS+3}], 0 offen offset:{768*(c&3)}{PAYNT}")
    a.e(f"s_add_u32 s{sWIN}, s{sWIN}, 512")
    a.e(f"s_cmp_lt_u32 s{sWIN}, s{sTOT}")
    a.e(f"s_cbranch_scc1 K2_FDONE")
    a.e(f"s_mov_b32 s{sWIN}, 0")
    a.e(f"s_cmp_eq_u32 s{sJ}, 0")
    a.e(f"s_cbranch_scc1 K2_FDONE")
    rotate()
    a.e(f"K2_FDONE:")
    stamp(1)
    if 'k2_sprio' in cfg and cfg.get('k2_sprio_at', 0) == 2: a.e(f"s_setprio {cfg['k2_sprio']}")
    vPL = T_ + 26
    poll(vPL, K2_FP, sTG)
    a.e(f"s_add_u32 s{sTG}, s{sTG}, 32")
    for c in range(8):
        a.e(f"s_waitcnt vmcnt({7-c})")
        for h in range(2):
            i = 2 * c + h
            a.e(f"v_lshlrev_b32_sdwa v{KA+i}, 2, v{P(c)+2*h} dst_sel:DWORD dst_unused:UNUSED_PAD src0_sel:DWORD src1_sel:BYTE_1")
        for h in range(2):
            i = 2 * c + h
            a.e(f"s_mov_b64 exec, s[{MSK+2*i}:{MSK+2*i+1}]")
            a.e(f"ds_add_rtn_u32 v{U+i}, v{KA+i}, v{vFOUR}")
        a.e("s_mov_b64 exec, -1")
    a.e(f"v_mov_b32 v{vPL}, s{sR6}")
    a.e("s_mov_b64 exec, 1")
    a.e(f"ds_max_u32 v{vZERO}, v{vPL} offset:{K2_R6}")
    a.e(f"ds_add_u32 v{vZERO}, v{vFOUR} offset:{K2_FH}")
    a.e("s_mov_b64 exec, -1")
    stamp(2)
    poll(vPL, K2_FH, sTG)
    stamp(3)
    if 'k2_sprio' in cfg and cfg.get('k2_sprio_at', 0) == 0: a.e(f"s_setprio {cfg['k2_sprio']}")
    NW, CC, TT, BS = T_, T_ + 4, T_ + 8, T_ + 12
    a.e(f"ds_read_b128 {vr(NW,4)}, v{vL16}")
    signal(vFOUR, K2_FP)
    a.e("s_waitcnt lgkmcnt(1)")
    for k in range(4):
        a.e(f"v_sub_u32 v{CC+k}, v{NW+k}, v{OLD+k}")
    a.e(f"v_add_u32 v{TT}, v{CC}, v{CC+1}")
    a.e(f"v_add3_u32 v{TT}, v{TT}, v{CC+2}, v{CC+3}")
    a.e(f"v_sub_u32 v{TT+1}, {K2_SW}, v{TT}")
    dpp_scan(a, TT)
    a.e(f"v_add_u32 v{TT+1}, v{TT+1}, v{TT}")
    a.e(f"v_readlane_b32 s{sN}, v{TT}, 63")
    for k in range(4):
        a.e(f"v_sub_u32 v{BS+k}, v{TT+1}, v{OLD+k}")
        if k < 3:
            a.e(f"v_add_u32 v{TT+1}, v{TT+1}, v{CC+k}")
        a.e(f"v_mov_b32 v{OLD+k}, v{NW+k}")
    a.e(f"s_cmp_eq_u32 s{sN}, 0")
    a.e("s_cbranch_scc1 K2_PTAIL")
    a.e(f"ds_write_b128 v{vL16}, {vr(BS,4)} offset:{K2_BASE}")
    for i in range(16):
        a.e(f"ds_read_b32 v{KA+i}, v{KA+i} offset:{K2_BASE}")
    a.e(f"s_sub_u32 s{sT1}, s{sTG}, 32")
    stamp(4)
    poll(vPL, K2_FR, sT1)
    stamp(5)
    if 'k2_sprio' in cfg and cfg.get('k2_sprio_at', 0) == 1: a.e(f"s_setprio {cfg['k2_sprio']}")
    a.e(f"s_cmp_lg_u32 s{sWAVE}, 0")
    a.e(f"s_cbranch_scc1 K2_NOPAD")
    a.e(f"s_add_u32 s{sT0}, s{sN}, {K2_SW}")
    a.e(f"v_lshl_add_u32 v{TT}, v{vLANE}, 2, s{sT0}")
    a.e(f"v_mov_b32 v{TT+1}, {hex(DUMMY)}")
    a.e(f"ds_write_b32 v{TT}, v{TT+1}")
    a.e(f"v_mov_b32 v{TT+3}, s{sN}")
    a.e(f"ds_write_b32 v{vZERO}, v{TT+3} offset:{K2_NCELL}")
    a.e("K2_NOPAD:")
    for i in range(16):
        a.e(f"v_add_u32 v{U+i}, v{U+i}, v{KA+i}")
        a.e(f"v_lshrrev_b32 v{KA+i}, 1, v{U+i}")
    for i in range(16):
        c, h = i >> 1, i & 1
        a.e(f"s_mov_b64 exec, s[{MSK+2*i}:{MSK+2*i+1}]")
        a.e(f"ds_write_b32 v{U+i}, v{P(c)+2*h}")
        a.e(f"ds_write_b16{'_d16_hi' if h else ''} v{KA+i}, v{P(c)+1} offset:{K2_SA - K2_SW//2}")
    signal(vFOUR, K2_FS)
    stamp(4)
    if 'k2_sprio' in cfg: a.e(f"s_setprio {PPRIO}")
    a.e("s_branch K2_PLOOP")

    a.e("K2_PTAIL:")
    a.e(f"s_setprio {cfg.get('k2_tprio', 0)}")
    S_W1, S_W2, S_C, S_D, S_MM = 40, 44, 48, 56, 60
    sGI, sEP, sEO, sLP, sLO = 64, 66, 67, 68, 69
    S_WA = 72
    S_WR = 92 if TRACE or PROF else 88
    DI, WOP, AA, MM, GG = 10, 24, 32, 88, 8
    DB0, XX, RB, vOF = 104, 120, 28, 3
    poll(XX, K2_FS, sTG)
    a.e(f"s_load_dwordx2 s[{S_D}:{S_D+1}], s[0:1], 24")
    a.e(f"s_load_dwordx2 s[{S_W2}:{S_W2+1}], s[0:1], 56")
    a.e(f"s_load_dwordx2 s[{S_W1}:{S_W1+1}], s[0:1], 64")
    a.e(f"s_load_dwordx2 s[{S_MM}:{S_MM+1}], s[0:1], 0")
    a.e(f"s_load_dwordx2 s[{S_X}:{S_X+1}], s[0:1], 80")
    a.e(f"s_load_dwordx2 s[{S_Y}:{S_Y+1}], s[0:1], 88")
    a.e(f"ds_read_b64 {vr(XX,2)}, v{vZERO} offset:{K2_GI}")
    for sr_, n in ((S_D, E * 2), (S_W1, 128), (S_W2, 64), (S_MM, E * 8), (S_Y, E * 8)):
        a.e(f"s_mov_b32 s{sr_+2}, {n}")
        a.e(f"s_mov_b32 s{sr_+3}, 0x00020000")
    a.e(f"s_lshr_b32 s{sT0}, s{sB}, 7")
    a.e(f"s_and_b32 s{sT1}, s{sB}, 127")
    a.e(f"s_mul_i32 s{sLP}, s{sT0}, {EPB}")
    a.e(f"s_sub_u32 s{sLO}, {EPB}, s{sLP}")
    a.e(f"s_mul_i32 s{sT1}, s{sT1}, {2*EPB}")
    a.e(f"s_add_u32 s{sEP}, s{sT1}, s{sLP}")
    a.e(f"s_add_u32 s{sEO}, s{sT1}, s{sLO}")
    for k in range(14):
        a.e(f"v_mov_b32 v{DI+k}, 0")
    for q in range(8):
        a.e(f"v_mov_b32 v{WOP+q}, 0")
    a.e(f"v_add_lshl_u32 v{XX+2}, v0, s{sEP}, 1")
    a.e(f"v_add_lshl_u32 v{XX+4}, v0, s{sEO}, 1")
    a.e(f"v_add_u32 v{XX+3}, 4096, v{XX+2}")
    a.e(f"v_add_u32 v{XX+5}, 4096, v{XX+4}")
    a.e(f"v_and_b32 v{DB0}, 1, v{vLANE}")
    a.e(f"v_and_b32 v{DB0+1}, 2, v{vLANE}")
    a.e(f"v_lshl_or_b32 v{DB0}, v{DB0}, 3, v{DB0+1}")
    a.e(f"v_bfe_u32 v{DB0+1}, v{vLANE}, 3, 1")
    a.e(f"v_lshl_or_b32 v{DB0}, v{DB0+1}, 2, v{DB0}")
    a.e(f"v_and_b32 v{DB0+1}, 3, v{vLANE}")
    a.e(f"v_lshlrev_b32 v{DB0+1}, 1, v{DB0+1}")
    a.e(f"v_lshlrev_b32 v{vOF+2}, 3, v0")
    a.e(f"v_mov_b32 v{DB0+2}, s{sOOB}")
    a.e(f"v_cmp_gt_u32 vcc, {EPB - 3072}, v0")
    a.e(f"v_lshlrev_b32 v{vOF}, 2, v{XX+4}")
    a.e(f"v_add_u32 v{vOF+1}, {6*4096}, v{vOF}")
    a.e(f"v_cndmask_b32 v{vOF+1}, v{DB0+2}, v{vOF+1}, vcc")
    a.e(f"v_cndmask_b32 v{vOF+3}, v{DB0+2}, v{vOF+2}, vcc")
    a.e("s_waitcnt lgkmcnt(0)")
    a.e(f"s_load_dwordx8 s[{S_WR}:{S_WR+7}], s[{S_X}:{S_X+1}], 0")
    a.e(f"v_readfirstlane_b32 s{sGI}, v{XX}")
    a.e(f"v_readfirstlane_b32 s{sR6}, v{XX+1}")
    a.e(f"v_add_f32 v{XX}, v{XX}, v{XX}")
    a.vm = []
    for k in range(7):
        a.vmem(f"buffer_load_short_d16_hi v{DI+k}, v{XX+2+(k>>2)}, s[{S_D}:{S_D+3}], 0 offen offset:{(k&3)*1024}", ('D', k))
    a.e(f"v_readfirstlane_b32 s{sGI+1}, v{XX}")
    a.e(f"s_mov_b32 exec_lo, 0x00000f0f")
    a.e(f"s_mov_b32 exec_hi, 0x0000f0f0")
    for r in range(8):
        a.vmem(f"buffer_load_short_d16{'_hi' if r & 1 else ''} v{WOP+(r>>1)+4*(r&1)}, v{DB0}, s[{S_W1}:{S_W1+3}], 0 offen offset:{16*r}", 'W')
    a.e(f"s_mov_b32 exec_lo, 0x000f0000")
    a.e(f"s_mov_b32 exec_hi, 0x00f00000")
    for r in range(8):
        a.vmem(f"buffer_load_short_d16{'_hi' if r & 1 else ''} v{WOP+(r>>1)+4*(r&1)}, v{DB0+1}, s[{S_W2}:{S_W2+3}], 0 offen offset:{8*r}", 'W')
    a.e(f"s_mov_b64 exec, -1")
    for k in range(7):
        a.vmem(f"buffer_load_short_d16_hi v{DI+7+k}, v{XX+4+(k>>2)}, s[{S_D}:{S_D+3}], 0 offen offset:{(k&3)*1024}", ('D', 7 + k))
    for k in range(7):
        a.e(f"s_mov_b32 s{sT0}, {4096*k if k < 6 else 0}")
        a.vmem(f"buffer_load_dwordx2 {vr(MM+2*k,2)}, v{vOF + (k == 6)}, s[{S_MM}:{S_MM+3}], s{sT0} offen", 'M')
    for r in range(8):
        a.e(f"s_mov_b32 s{S_C+r}, {f2h(-KAP * h2f(CENTERS[r]))}")
    a.e(f"s_add_u32 s{sR6}, s{sR6}, 96")
    a.wvm('W')
    for q in range(4):
        a.e(f"v_or_b32 v{WOP+q}, v{WOP+q}, v{WOP+4+q}")
    def rbf(dv, X):
        a.e(f"v_mul_f32 v{102}, {f2h(KAP)}, v{dv}")
        for q in range(4):
            a.e(f"v_pk_add_f32 {vr(X+2*q,2)}, {vr(102,2)}, s[{S_C+2*q}:{S_C+2*q+1}] op_sel_hi:[0,1]")
        for q in range(4):
            a.e(f"v_pk_mul_f32 {vr(X+2*q,2)}, {vr(X+2*q,2)}, {vr(X+2*q,2)}")
        for r in range(8):
            a.e(f"v_exp_f32 v{X+r}, -v{X+r}")
    def acomp(base, own, hook=None):
        rbf(base, AA)
        for k in range(7):
            X = AA + 8 * k
            for q in range(4):
                a.e(f"v_cvt_pk_bf16_f32 v{RB+q}, v{X+2*q}, v{X+2*q+1}")
            a.e(f"v_mfma_f32_32x32x16_bf16 {vr(DB0,16)}, {vr(WOP,4)}, {vr(RB,4)}, 0")
            if k < 6: rbf(base + k + 1, X + 8)
            for d in range(4):
                a.e(f"v_pk_mul_f32 {vr(X+2*d,2)}, {vr(DB0+2*d,2)}, s[{sGI}:{sGI+1}]")
            if own:
                for q in range(2):
                    a.e(f"v_cvt_pk_bf16_f32 v{GG+2*k+q}, v{DB0+8+2*q}, v{DB0+9+2*q}")
            if hook: hook(k)
    acomp(DI, False)
    a.wvm0()
    stamp(11)
    a.e(f"s_sub_u32 s{sT1}, s{sTG}, 32")
    poll(XX, K2_FR, sT1)
    a.e("s_mov_b64 exec, 1")
    a.e(f"ds_write_b32 v{vZERO}, v{vZERO} offset:{K2_NCELL}")
    a.e(f"ds_add_u32 v{vZERO}, v{vFOUR} offset:{K2_FS}")
    a.e("s_mov_b64 exec, -1")
    a.e(f"v_and_b32 v{XX+1}, 7, v{vLANE}")
    a.e(f"v_lshlrev_b32 v{XX+1}, 2, v{XX+1}")
    a.e(f"v_add_lshl_u32 v{XX+2}, v0, s{sLP}, 2")
    a.e(f"v_add_u32 v{XX+3}, {2*ACC2_STR}, v{XX+2}")
    a.e(f"s_mul_i32 s{sT2}, s{sB}, {XB_STR}")
    a.e(f"s_add_u32 s{sT2}, s{sT2}, {XB_OFF}")
    a.e("s_branch K2_FD1")
    a.e("K2_FD0:")
    a.e(f"s_sleep {cfg.get('k2_fdslp', 2)}")
    a.e("K2_FD1:")
    a.e(f"ds_read_b32 v{XX}, v{XX+1} offset:{K2C_FD}")
    a.e("s_waitcnt lgkmcnt(0)")
    a.e(f"v_cmp_gt_u32 vcc, s{sR6}, v{XX}")
    a.e("s_cbranch_vccnz K2_FD0")
    a.e("s_setprio 3")
    stamp(12)
    SR = [DB0, DB0 + 4, DB0 + 8, DB0 + 12]
    def sread(k):
        for d in range(4):
            a.lds(f"ds_read_b32 v{SR[k%4]+d}, v{XX+2+(d>>1)} offset:{K2C_ACC + (d&1)*ACC2_STR + 2048*k}", ('S', k))
    def agg(k, dst, init=None):
        for d in range(4):
            c0 = "0" if init is None else f"v{init+d}"
            a.e(f"v_fma_mix_f32 v{dst+d}, v{AA+8*k+2*d}, v{SR[k%4]+d}, {c0} op_sel_hi:[0,1,0]")
        for d in range(4):
            a.e(f"v_fma_mix_f32 v{dst+d}, v{AA+8*k+2*d+1}, v{SR[k%4]+d}, v{dst+d} op_sel:[0,1,0] op_sel_hi:[0,1,0]")
    a.lg = []
    for k in range(3): sread(k)
    for k in range(7):
        if k + 3 < 7: sread(k + 3)
        a.wlg(('S', k))
        agg(k, RB)
        a.e(f"v_cvt_pk_bf16_f32 v{AA+8*k}, v{RB}, v{RB+1}")
        a.e(f"v_cvt_pk_bf16_f32 v{AA+8*k+1}, v{RB+2}, v{RB+3}")
        a.vmem(f"buffer_store_dwordx2 {vr(AA+8*k,2)}, v{vOF+2+(k == 6)}, s[{S_WS}:{S_WS+3}], s{sT2} offen sc1", 'X')
        a.e(f"s_add_u32 s{sT2}, s{sT2}, 4096")
    a.e(f"s_setprio {cfg.get('k2_tprio', 0)}")
    stamp(13)
    a.e(f"s_lshl_b32 s{sT1}, s{sWAVE}, 4")
    a.e(f"s_add_u32 s{sT1}, s{sT1}, {FL_OFF}")
    a.e(f"s_lshl_b32 s{sT2}, s{sB}, 7")
    a.e(f"s_add_u32 s{sEP}, s{sT1}, s{sT2}")
    a.e(f"s_xor_b32 s{sT2}, s{sT2}, {128 << 7}")
    a.e(f"s_add_u32 s{sLP}, s{sT1}, s{sT2}")
    FLK = cfg.get('k2_flk', 1)
    def flag(k):
        if k == FLK:
            a.wvm0()
            a.e("s_mov_b64 exec, 1")
            a.e(f"buffer_store_dword v{vFOUR}, v{vZERO}, s[{S_WS}:{S_WS+3}], s{sEP} offen sc1")
            a.e("s_mov_b64 exec, -1")
    DO2 = 120
    for k in range(7):
        a.e(f"v_mov_b32 v{DO2+k}, v{DI+7+k}")
    if FLK < 0: flag(FLK)
    acomp(DO2, True, flag)
    for d in range(4):
        for h in range(2):
            src = S_WR + 2 * d + h
            a.e(f"s_lshl_b32 s{S_WA+4*d+2*h}, s{src}, 16")
            a.e(f"s_and_b32 s{S_WA+4*d+2*h+1}, s{src}, s{sHI}")
    stamp(14)
    a.e(f"s_mov_b32 s{sT0}, {1 << 20}")
    a.e(f"s_xor_b32 s{sT2}, s{sB}, 128")
    a.e(f"s_mul_i32 s{sT2}, s{sT2}, {XB_STR}")
    a.e(f"s_add_u32 s{sT2}, s{sT2}, {XB_OFF}")
    a.e("s_branch K2_FL1")
    a.e("K2_FL0:")
    a.e(f"s_sleep {cfg.get('k2_flslp', 4)}")
    a.e("K2_FL1:")
    a.e(f"buffer_load_dword v{XX}, v{vZERO}, s[{S_WS}:{S_WS+3}], s{sLP} offen sc1")
    a.e(f"s_sub_u32 s{sT0}, s{sT0}, 1")
    a.e("s_cbranch_scc1 K2_FL2")
    a.e("s_waitcnt vmcnt(0)")
    a.e(f"v_cmp_eq_u32 vcc, 0, v{XX}")
    a.e("s_cbranch_vccnz K2_FL0")
    a.e("K2_FL2:")
    a.e("s_setprio 3")
    PP = [22, 24, 26, 102, 116, 118, 124]
    a.vm = []
    for k in range(7):
        a.vmem(f"buffer_load_dwordx2 {vr(PP[k],2)}, v{vOF+2+(k == 6)}, s[{S_WS}:{S_WS+3}], s{sT2} offen sc1", ('P', k))
        a.e(f"s_add_u32 s{sT2}, s{sT2}, 4096")
    a.e(f"v_add_lshl_u32 v{XX+2}, v0, s{sLO}, 2")
    a.e(f"v_add_u32 v{XX+3}, {2*ACC2_STR}, v{XX+2}")
    stamp(6)
    a.e("s_barrier")
    stamp(7)
    SR = [DB0, DB0 + 4, DB0 + 8]
    def sread(k):
        for d in range(4):
            a.lds(f"ds_read_b32 v{SR[k%3]+d}, v{XX+2+(d>>1)} offset:{K2C_ACC + (d&1)*ACC2_STR + 2048*k}", ('S', k))
    a.lg = []
    for k in range(2): sread(k)
    for k in range(7):
        if k + 2 < 7: sread(k + 2)
        X = AA + 8 * k
        if k == 0: a.wvm0()
        a.e(f"v_lshlrev_b32 v{RB}, 16, v{PP[k]}")
        a.e(f"v_and_b32 v{RB+1}, s{sHI}, v{PP[k]}")
        a.e(f"v_lshlrev_b32 v{RB+2}, 16, v{PP[k]+1}")
        a.e(f"v_and_b32 v{RB+3}, s{sHI}, v{PP[k]+1}")
        a.wlg(('S', k))
        for d in range(4):
            a.e(f"v_fma_mix_f32 v{RB+d}, v{X+2*d}, v{SR[k%3]+d}, v{RB+d} op_sel_hi:[0,1,0]")
        for d in range(4):
            a.e(f"v_fma_mix_f32 v{RB+d}, v{X+2*d+1}, v{SR[k%3]+d}, v{RB+d} op_sel:[0,1,0] op_sel_hi:[0,1,0]")
        a.e(f"v_lshlrev_b32 v{X+4}, 16, v{GG+2*k}")
        a.e(f"v_and_b32 v{X+5}, s{sHI}, v{GG+2*k}")
        a.e(f"v_lshlrev_b32 v{X+6}, 16, v{GG+2*k+1}")
        a.e(f"v_and_b32 v{X+7}, s{sHI}, v{GG+2*k+1}")
        for d in range(4):
            os_ = d & 1
            for q in range(2):
                w = f"s[{S_WA+4*d+2*q}:{S_WA+4*d+2*q+1}]"
                if d == 0:
                    a.e(f"v_pk_mul_f32 {vr(X+2*q,2)}, {vr(RB,2)}, {w} op_sel:[0,0] op_sel_hi:[0,1]")
                else:
                    a.e(f"v_pk_fma_f32 {vr(X+2*q,2)}, {vr(RB+(d&2),2)}, {w}, {vr(X+2*q,2)} op_sel:[{os_},0,0] op_sel_hi:[{os_},1,1]")
        a.e(f"v_lshlrev_b32 v{RB}, 16, v{MM+2*k}")
        a.e(f"v_and_b32 v{RB+1}, s{sHI}, v{MM+2*k}")
        a.e(f"v_lshlrev_b32 v{RB+2}, 16, v{MM+2*k+1}")
        a.e(f"v_and_b32 v{RB+3}, s{sHI}, v{MM+2*k+1}")
        for q in range(2):
            a.e(f"v_pk_fma_f32 {vr(X+2*q,2)}, {vr(X+2*q,2)}, {vr(X+4+2*q,2)}, {vr(RB+2*q,2)}")
        a.e(f"v_cvt_pk_bf16_f32 v{MM+2*k}, v{X}, v{X+1}")
        a.e(f"v_cvt_pk_bf16_f32 v{MM+2*k+1}, v{X+2}, v{X+3}")
        a.e(f"s_mov_b32 s{sT0}, {4096*k if k < 6 else 0}")
        a.vmem(f"buffer_store_dwordx2 {vr(MM+2*k,2)}, v{vOF + (k == 6)}, s[{S_Y}:{S_Y+3}], s{sT0} offen", 'O')
    a.e("s_branch K2_FIN")

    a.e("K2_CONS:")
    vCT, vA4, vA2 = 3, 4, 5
    SW_, SA_ = 6, 19
    CUR = 32
    NCOL = {3: 5, 2: 4, 4: 7, 5: 7, 6: 9, 7: 13, 8: 13}[D]
    COL = {3: [0,1,2,3,0,1,2,3,0,1,2,3,4], 2: [0,1,2,0,1,2,0,1,2,0,1,2,3],
           4: [0,1,2,3,4,5,0,1,2,3,4,5,6], 5: [0,1,2,3,4,5,0,1,2,3,4,5,6]}.get(D, list(range(13)))
    RSTR = 6
    if D > 5: NCOL = 13
    assert CUR + RSTR * NCOL <= T_ + 10
    TB = T_ + 10
    MXR = TB
    vFD = 3
    a.e(f"s_sub_u32 s{sWAVE}, s{sWAVE}, 8")
    a.e(f"v_add_u32 v{vCT}, -512, v0")
    for k in range(4):
        a.e(f"v_mov_b32 v{TB+4+k}, 0")
    a.e(f"v_lshlrev_b32 v{TB+8}, 4, v{vCT}")
    a.e(f"ds_write_b128 v{TB+8}, {vr(TB+4,4)}")
    a.e(f"v_lshlrev_b32 v{TB+9}, 4, v{vLANE}")
    a.e(f"s_mov_b32 s{sT1}, {MX_OFF}")
    a.e("s_waitcnt lgkmcnt(0)")
    a.e("s_barrier")
    a.e(f"buffer_load_dwordx4 {vr(MXR,4)}, v{TB+9}, s[{S_WS}:{S_WS+3}], s{sT1} offen")
    for k in range(1, 8):
        a.e(f"ds_write_b128 v{TB+8}, {vr(TB+4,4)} offset:{k*8192}")
    a.e(f"v_add_u32 v{TB+8}, 65536, v{TB+8}")
    for k in range(4):
        a.e(f"ds_write_b128 v{TB+8}, {vr(TB+4,4)} offset:{k*8192}")
    a.e(f"v_cmp_gt_u32 vcc, {(K2_SA - 12*8192)//16}, v{vCT}")
    a.e(f"s_mov_b64 exec, vcc")
    a.e(f"ds_write_b128 v{TB+8}, {vr(TB+4,4)} offset:{4*8192}")
    a.e(f"s_mov_b64 exec, -1")
    a.e(f"s_lshr_b32 s{sT0}, s{sB}, 7")
    a.e(f"s_mul_i32 s{sT0}, s{sT0}, {MD_TSTR}")
    a.e(f"s_add_u32 s{sT0}, s{sT0}, {MD_OFF}")
    a.e(f"s_add_u32 s{S_MD}, s{S_WS}, s{sT0}")
    a.e(f"s_addc_u32 s{S_MD+1}, s{S_WS+1}, 0")
    a.e(f"s_or_b32 s{S_MD+1}, s{S_MD+1}, 0x80000")
    a.e(f"s_mov_b32 s{S_MD+2}, {E//2}")
    a.e(f"s_mov_b32 s{S_MD+3}, 0x00020000")
    a.e(f"s_mov_b32 s{sFFF0}, {2*ACC2_STR}")
    a.e(f"s_lshl_b32 s{sT0}, s{sWAVE}, 2")
    a.e(f"v_mov_b32 v{vFD}, s{sT0}")
    for s in range(NS):
        a.e(f"v_mov_b32 v{SW_+s}, {hex(DUMMY)}")
        a.e(f"v_mov_b32 v{SA_+s}, 0")
    a.e(f"s_mov_b32 s{sCNT}, 0")
    t = TB + 4
    a.e("s_waitcnt vmcnt(0)")
    a.e(f"v_max_u32 v{MXR}, v{MXR}, v{MXR+1}")
    a.e(f"v_max_u32 v{MXR+2}, v{MXR+2}, v{MXR+3}")
    a.e(f"v_max_u32 v{MXR}, v{MXR}, v{MXR+2}")
    dpp_scan(a, MXR, "v_max_u32")
    a.e("s_branch K2_NBQ")
    a.e("K2_NBP:")
    a.e("s_sleep 2")
    a.e("K2_NBQ:")
    a.e(f"ds_read_b32 v{t}, v{vZERO} offset:{K2_NB}")
    a.e("s_waitcnt lgkmcnt(0)")
    a.e(f"v_readfirstlane_b32 s{sT0}, v{t}")
    a.e(f"s_and_b32 s{sT0}, s{sT0}, 15")
    a.e(f"s_cmp_lt_u32 s{sT0}, 8")
    a.e("s_cbranch_scc1 K2_NBP")
    a.e(f"v_lshrrev_b32 v{t}, 4, v{t}")
    a.e(f"v_cvt_f32_u32 v{t}, v{t}")
    a.e(f"v_mul_f32 v{t}, v{t}, v{MXR}")
    a.e(f"v_rcp_f32 v{t}, v{t}")
    a.e(f"v_mul_f32 v{t}, {f2h(30000.0)}, v{t}")
    a.e(f"v_min_f32 v{t}, 0x5d800000, v{t}")
    a.e(f"v_and_b32 v{t}, 0xff800000, v{t}")
    a.e(f"v_rcp_f32 v{t+1}, v{t}")
    a.e(f"v_mul_f32 v{t+2}, -0.5, v{t}")
    a.e(f"v_readlane_b32 s{sG}, v{t}, 63")
    a.e(f"v_readlane_b32 s{sGH}, v{t+2}, 63")
    a.e("s_lshl_b64 exec, 1, 63")
    a.e(f"ds_write_b32 v{vZERO}, v{t+1} offset:{K2_GI}")
    a.e("s_mov_b64 exec, -1")
    stamp(6)

    uid = [0]
    stubs = []
    assert LATE == 2
    def alpha1(W, cur):
        G0, L = cur, cur + 4
        a.e(f"v_and_b32 v{L}, {hex(cfg.get('x_gmask', IDXM))}, v{W}")
        if not cfg.get('x_nog'):
            a.e(f"buffer_load_dwordx2 {vr(G0,2)}, v{L}, s[{S_MD}:{S_MD+3}], 0 idxen")
    def alpha2(W, A, cur):
        C_, L = cur + 2, cur + 4
        a.e(f"v_mul_f32 v{C_+1}, 0.15915494, v{A}")
        a.e(f"v_fract_f32 v{C_+1}, v{C_+1}")
        a.e(f"v_cos_f32 v{C_+1}, v{C_+1}")
        a.e(f"v_lshrrev_b32 v{L}, 19, v{W}")
        a.e(f"v_mul_f32 v{C_}, s{sG}, v{C_+1}")
        a.e(f"v_fma_f32 v{C_+1}, v{C_}, v{C_+1}, s{sGH}")
    def beta(cur, vm):
        G0, C_, L = cur, cur + 2, cur + 4
        M_, X = TB + 4, TB + 8
        a.e(f"v_lshl_add_u32 v{L+1}, v{L}, 2, s{sFFF0}")
        a.e(f"v_lshlrev_b32 v{L}, 2, v{L}")
        a.e(f"s_waitcnt vmcnt({vm})")
        a.e(f"v_lshlrev_b32 v{M_}, 16, v{G0}")
        a.e(f"v_and_b32 v{M_+1}, s{sHI}, v{G0}")
        a.e(f"v_lshlrev_b32 v{M_+2}, 16, v{G0+1}")
        a.e(f"v_and_b32 v{M_+3}, s{sHI}, v{G0+1}")
        for d in range(4):
            a.e(f"v_pk_mul_f32 {vr(X+2*d,2)}, {vr(M_+(d&2),2)}, {vr(C_,2)} op_sel:[{d&1},0] op_sel_hi:[{d&1},1]")
        for d in range(4):
            a.e(f"v_cvt_pk_f16_f32 v{M_+d}, v{X+2*d}, v{X+2*d+1}")
        for d in range(4):
            a.e(f"{cfg.get('x_atom', 'ds_pk_add_f16')} v{L+(d>>1)}, v{M_+d} offset:{K2C_ACC + (d&1)*ACC2_STR}")
    def cur(s): return CUR + RSTR * COL[s]
    def step(s, cnt_of, stub=False):
        p = (s - D) % NS
        uid[0] += 1
        alpha1(SW_ + s, cur(s))
        alpha2(SW_ + s, SA_ + s, cur(s))
        a.e(f"s_cmp_le_u32 s{cnt_of(p)}, {p}")
        if stub:
            a.e(f"s_cbranch_scc1 K2_ST{uid[0]}")
            stubs.append(uid[0])
        else:
            a.e(f"s_cbranch_scc1 K2_SB{uid[0]}")
        beta(cur(p), D)
        a.e(f"K2_SB{uid[0]}:")
    def fdone(val):
        a.e(f"v_mov_b32 v{TB+4}, {val}")
        a.e("s_mov_b64 exec, 1")
        a.e(f"ds_write_b32 v{vFD}, v{TB+4} offset:{K2C_FD}")
        a.e("s_mov_b64 exec, -1")
    def readslot(s):
        uid[0] += 1
        a.e(f"s_cmp_le_u32 s{sCNT}, {s}")
        a.e(f"s_cbranch_scc1 K2_RD{uid[0]}")
        a.e(f"ds_read_b32 v{SW_+s}, v{vA4} offset:{256*s}")
        a.e(f"ds_read_u16_d16_hi v{SA_+s}, v{vA2} offset:{128*s}")
        a.e(f"s_branch K2_RE{uid[0]}")
        a.e(f"K2_RD{uid[0]}:")
        a.e(f"v_mov_b32 v{SW_+s}, {hex(DUMMY)}")
        a.e(f"K2_RE{uid[0]}:")
    vC4 = TB + 16
    a.e(f"v_mov_b32 v{vC4}, 4")
    signal(vC4, K2_FS)
    a.e(f"s_mov_b32 s{sTG}, 32")
    if cfg.get('k2_cprio', 0): a.e(f"s_setprio {cfg['k2_cprio']}")
    a.e("K2_CLOOP:")
    a.e(f"ds_read_b64 {vr(TB,2)}, v{vZERO} offset:{K2_FS}")
    a.e(f"s_mov_b32 s{sCNP}, s{sCNT}")
    a.e(f"s_add_u32 s{sTG}, s{sTG}, 32")
    step(NS - 2, lambda p: sCNP, stub=True)
    a.e("s_waitcnt lgkmcnt(4)")
    stamp(7)
    a.e("K2_CPOLL:")
    a.e(f"v_readfirstlane_b32 s{sT0}, v{TB}")
    a.e(f"v_readfirstlane_b32 s{sN}, v{TB+1}")
    a.e(f"s_cmp_lt_u32 s{sT0}, s{sTG}")
    a.e("s_cbranch_scc1 K2_CPOLL2")
    stamp(8)
    a.e(f"s_add_u32 s{sT0}, s{sN}, 255")
    a.e(f"s_lshr_b32 s{sT0}, s{sT0}, 8")
    a.e(f"s_mul_i32 s{sT1}, s{sT0}, s{sWAVE}")
    a.e(f"s_add_u32 s{sT0}, s{sT1}, s{sT0}")
    a.e(f"s_lshr_b32 s{sT1}, s{sT1}, 3")
    a.e(f"s_lshr_b32 s{sT0}, s{sT0}, 3")
    a.e(f"s_sub_u32 s{sCNT}, s{sT0}, s{sT1}")
    a.e(f"s_lshl_b32 s{sT1}, s{sT1}, 7")
    a.e(f"s_add_u32 s{sT0}, s{sT1}, {K2_SA}")
    a.e(f"s_lshl_b32 s{sT1}, s{sT1}, 1")
    a.e(f"s_add_u32 s{sT1}, s{sT1}, {K2_SW}")
    a.e(f"v_lshl_add_u32 v{vA4}, v{vLANE}, 2, s{sT1}")
    a.e(f"v_lshl_add_u32 v{vA2}, v{vLANE}, 1, s{sT0}")
    a.e(f"s_cmp_lt_u32 s{sCNT}, {NS-1}")
    a.e("s_cbranch_scc1 K2_RSLOW")
    for s in range(NS - 1):
        a.e(f"ds_read_b32 v{SW_+s}, v{vA4} offset:{256*s}")
        a.e(f"ds_read_u16_d16_hi v{SA_+s}, v{vA2} offset:{128*s}")
    a.e("K2_RDONE:")
    step(NS - 1, lambda p: sCNP, stub=True)
    a.e(f"s_cmp_eq_u32 s{sN}, 0")
    a.e("s_cbranch_scc1 K2_CFIN")
    a.e("s_waitcnt lgkmcnt(4)")
    readslot(NS - 1)
    a.e(f"s_cmp_gt_u32 s{sCNT}, {NS}")
    a.e("s_cbranch_scc1 K2_EXTRA")
    a.e("K2_NOEXTRA:")
    signal(vC4, K2_FR)
    for s in range(NS - LATE):
        p = (s - D) % NS
        if TRACE and s in cfg.get('trace_steps', [0, 4, 8]): stamp(9)
        step(s, lambda p: sCNP if p >= NS - D else sCNT)
        if s == D - 1: fdone(f"s{sTG}")
    a.e("s_branch K2_CLOOP")
    for u in stubs:
        a.e(f"K2_ST{u}:")
        a.e("s_waitcnt lgkmcnt(0)")
        a.e(f"s_branch K2_SB{u}")
    a.e("K2_CPOLL2:")
    if cfg.get('k2_slp', 0): a.e(f"s_sleep {cfg['k2_slp']}")
    a.e(f"ds_read_b64 {vr(TB,2)}, v{vZERO} offset:{K2_FS}")
    a.e("s_waitcnt lgkmcnt(0)")
    a.e("s_branch K2_CPOLL")
    a.e("K2_RSLOW:")
    for s in range(NS - 1):
        readslot(s)
    a.e("s_branch K2_RDONE")
    a.e("K2_EXTRA:")
    XW, XC = TB + 2, cur(0)
    for s in range(NS, 16):
        if s > NS:
            a.e(f"s_cmp_le_u32 s{sCNT}, {s}")
            a.e("s_cbranch_scc1 K2_NOEXTRA")
        a.e(f"v_mov_b32 v{XW+1}, 0")
        a.e(f"ds_read_b32 v{XW}, v{vA4} offset:{256*s}")
        a.e(f"ds_read_u16_d16_hi v{XW+1}, v{vA2} offset:{128*s}")
        a.e("s_waitcnt lgkmcnt(0)")
        alpha1(XW, XC)
        alpha2(XW, XW + 1, XC)
        beta(XC, 0)
    a.e("s_branch K2_NOEXTRA")
    a.e("K2_CFIN:")
    for i in range(D):
        p = NS - D + i
        uid[0] += 1
        a.e(f"s_cmp_le_u32 s{sCNP}, {p}")
        a.e(f"s_cbranch_scc1 K2_SB{uid[0]}")
        beta(cur(p), D - 1 - i)
        a.e(f"K2_SB{uid[0]}:")
    fdone("0x7fffffff")
    stamp(10)
    a.e("s_waitcnt lgkmcnt(0)")
    a.e("s_barrier")
    a.e("K2_FIN:")
    if PROF:
        a.e("s_waitcnt vmcnt(0)")
        stamp(10)
        a.e(f"s_cmp_lg_u32 s2, 77")
        a.e("s_cbranch_scc1 K2_END")
        a.e(f"s_load_dwordx2 s[{S_X}:{S_X+1}], s[0:1], 96")
        a.e(f"s_mov_b32 s{S_X+2}, 256")
        a.e("s_waitcnt lgkmcnt(0)")
        a.e("s_mov_b64 exec, 1")
        for i in range(11):
            a.e(f"s_lshl_b32 s{sPA+i}, s{sPA+i}, 5")
            a.e(f"v_mov_b32 v1, s{sPA+i}")
            a.e(f"v_mov_b32 v2, {4*i}")
            a.e(f"buffer_atomic_add v1, v2, s[{S_X}:{S_X+3}], 0 offen")
    if TRACE:
        a.e("s_waitcnt vmcnt(0)")
        stamp(10)
        a.e(f"s_cmp_lg_u32 s2, {cfg.get('trace_wg', 77)}")
        a.e("s_cbranch_scc1 K2_END")
        a.e(f"s_load_dwordx2 s[{S_X}:{S_X+1}], s[0:1], 96")
        a.e(f"s_mov_b32 s{S_X+2}, 4096")
        a.e(f"s_mov_b32 s{S_X+3}, 0x00020000")
        a.e("s_waitcnt lgkmcnt(0)")
        a.e(f"v_lshlrev_b32 v1, 2, v0")
        a.e(f"buffer_store_dword v{vTR}, v1, s[{S_X}:{S_X+3}], 0 offen")
    if cfg.get('rt'): rt_end(a, 1, S_X)
    a.e("K2_END:")
    a.e("s_endpgm")
    return fix_hazards(a.lines)
```

```python
from asmlib import *
from consts import *
from k1 import dpp_scan, rt_end
import math, struct

NS = 13
DUMMY = (2 * EPB << 19) | 0x7FFFF
IDXM = 0x7FFFF
K2_GI = K2_NB + 8
K2_VI = K2_NB + 12
K2_FS = K2_NB + 32
K2_NCELL = K2_FS + 4
K2_FH = K2_FS + 8
K2_DN = K2_FS + 12
K2_FP = K2_FS + 16
K2_FR = K2_FS + 20
ACC = K2C_ACC
STR2 = 2 * ACC2_STR
def f2h(x): return hex(struct.unpack('<I', struct.pack('<f', x))[0])
def h2f(x): return struct.unpack('<f', struct.pack('<I', x))[0]
KAP = math.sqrt(10.0 * math.log2(math.e))

def gen_k2(cfg):
    a = Asm()
    D = cfg.get('k2_d', 5)
    LATE = 2
    PPRIO = cfg.get('k2_pprio', 3)
    SPLIT = cfg.get('split', True)
    S_WS, S_MD, S_X, S_Y = 4, 8, 12, 16
    sWAVE, sB, sJ, sWIN, sTOT, sN, sCNT, sT0, sT1, sT2, sFFF8, sHI, sCNP, sOOB = range(20, 34)
    sM = 34
    sDN = 36
    sTG = 37
    sR6 = 38
    sMODE = 39
    puid = [0]
    def poll(vt, off, tgt, slp=None):
        puid[0] += 1
        SLP = cfg.get('k2_slp', 0) if slp is None else slp
        if SLP:
            a.e(f"s_branch K2_PM{puid[0]}")
        a.e(f"K2_PL{puid[0]}:")
        if SLP:
            a.e(f"s_sleep {SLP}")
            a.e(f"K2_PM{puid[0]}:")
        a.e(f"ds_read_b32 v{vt}, v{vZERO} offset:{off}")
        a.e("s_waitcnt lgkmcnt(0)")
        a.e(f"v_readfirstlane_b32 s{sT0}, v{vt}")
        a.e(f"s_cmp_lt_u32 s{sT0}, {tgt}")
        a.e(f"s_cbranch_scc1 K2_PL{puid[0]}")
    def signal(vone, off):
        a.e("s_mov_b64 exec, 1")
        a.e(f"ds_add_u32 v{vZERO}, v{vone} offset:{off}")
        a.e("s_mov_b64 exec, -1")
    MSK = 40
    sPT, sPA = 88, 91
    TRACE = cfg.get('trace', False)
    vTR = 127
    def stamp(i):
        if TRACE:
            if i < 0:
                a.e(f"s_mov_b32 s{sPA}, 0")
                a.e(f"v_mov_b32 v{vTR}, 0")
                i = 15
            a.e(f"s_memtime s[{sPT}:{sPT+1}]")
            a.e("s_waitcnt lgkmcnt(0)")
            a.e(f"s_andn2_b32 s{sPT}, s{sPT}, 15")
            a.e(f"s_or_b32 s{sPT}, s{sPT}, {i}")
            a.e(f"s_mov_b32 m0, s{sPA}")
            a.e(f"s_add_u32 s{sPA}, s{sPA}, 1")
            a.e(f"s_min_u32 s{sPA}, s{sPA}, 63")
            a.e(f"v_writelane_b32 v{vTR}, s{sPT}, m0")
    vLANE, vZERO = 1, 2
    T_ = 100

    a.e(f"s_cmp_ge_u32 s2, {NWG}")
    a.e("s_cbranch_scc1 K2_END")
    if cfg.get('rt'): a.e("s_memrealtime s[96:97]")
    stamp(-1)
    a.e(f"s_load_dwordx2 s[{S_WS}:{S_WS+1}], s[0:1], 104")
    a.e(f"s_mov_b32 s{S_WS+2}, {WS_BYTES}")
    a.e(f"s_mov_b32 s{S_WS+3}, 0x00020000")
    a.e(f"v_lshrrev_b32 v{T_}, 6, v0")
    a.e(f"v_and_b32 v{vLANE}, 63, v0")
    a.e(f"v_readfirstlane_b32 s{sWAVE}, v{T_}")
    a.e(f"s_and_b32 s{sB}, s2, 7")
    a.e(f"s_lshl_b32 s{sB}, s{sB}, 5")
    a.e(f"s_lshr_b32 s{sT0}, s2, 3")
    a.e(f"s_or_b32 s{sB}, s{sB}, s{sT0}")
    a.e(f"s_mov_b32 s{sHI}, 0xffff0000")
    a.e(f"s_mov_b32 s{sOOB}, 0x80000000")
    a.e(f"v_mov_b32 v{vZERO}, 0")
    a.e(f"s_cmp_ge_u32 s{sWAVE}, 8")
    a.e("s_cbranch_scc1 K2_CONS")

    vL12, vTB, vCN, vSCR, vFOUR, vL16 = range(3, 9)
    R = 10
    def P(c): return 18 + 4 * c
    U, KA, OLD = 50, 66, 82
    if PPRIO: a.e(f"s_setprio {PPRIO}")
    a.e(f"s_mov_b32 s{sT0}, {cfg.get('tile_s', TILE_B)}")
    a.e(f"v_mul_lo_u32 v{vTB}, v0, s{sT0}")
    RL = 20
    a.e(f"s_lshl_b32 s{sT0}, s{sB}, 4")
    a.e(f"v_mul_u32_u24 v{T_+1}, {REC_STR}, v0")
    a.e(f"v_add_u32 v{T_+1}, s{sT0}, v{T_+1}")
    a.e(f"s_mov_b32 s{sT0}, {REC_OFF}")
    a.e("s_waitcnt lgkmcnt(0)")
    a.e(f"buffer_load_dwordx4 {vr(RL,4)}, v{T_+1}, s[{S_WS}:{S_WS+3}], s{sT0} offen")
    a.e(f"buffer_load_dwordx4 {vr(RL+4,4)}, v{T_+1}, s[{S_WS}:{S_WS+3}], s{sT0} offen offset:16")
    a.e("s_barrier")
    a.e(f"v_mul_u32_u24 v{vL12}, 12, v{vLANE}")
    a.e(f"v_lshlrev_b32 v{vL16}, 4, v{vLANE}")
    a.e(f"v_mov_b32 v{vFOUR}, 4")
    a.e(f"v_min_u32 v{vCN}, 1, v{vLANE}")
    a.e(f"v_lshlrev_b32 v{vSCR}, 3, v0")
    a.e(f"v_add_u32 v{vSCR}, {K2_SCR}, v{vSCR}")
    a.e(f"v_mov_b32 v{T_+2}, 0")
    a.e(f"v_mov_b32 v{T_+3}, 0")
    a.e(f"ds_write_b64 v{vSCR}, {vr(T_+2,2)}")
    a.e(f"s_mov_b32 s{sTG}, 0")
    a.e(f"s_mov_b32 s{sDN}, 0")
    a.e(f"s_mov_b32 s{sMODE}, 0")
    for k in range(4):
        a.e(f"v_mov_b32 v{OLD+k}, 0")
    a.e(f"s_mov_b32 s{sJ}, 8")
    a.e(f"s_mov_b32 s{sWIN}, 0")
    a.e(f"s_mov_b32 s{sT0}, 0x05040100")
    a.e(f"s_mov_b32 s{sT1}, 0x07060302")
    a.e("s_waitcnt vmcnt(0) lgkmcnt(0)")
    for k in range(8):
        a.e(f"v_perm_b32 v{R+k}, v{RL+4+(k>>1)}, v{RL+(k>>1)}, s{sT1 if k & 1 else sT0}")
    if SPLIT:
        a.e(f"s_cmp_lt_u32 s{sB}, 128")
        a.e("s_cbranch_scc1 K2_NOSWAP")
        a.e(f"v_swap_b32 v{R+6}, v{R+7}")
        a.e("K2_NOSWAP:")
    stamp(0)

    def rotate():
        for k in range(7):
            a.e(f"v_mov_b32 v{R+k}, v{R+k+1}")
        a.e(f"v_mov_b32 v{R+7}, 0")
        a.e(f"s_sub_u32 s{sJ}, s{sJ}, 1")

    a.e("K2_PLOOP:")
    s_, e_, p0, n_, inc, S_, V_, x_, sl, y_, el = range(T_, T_ + 11)
    a.e(f"v_and_b32 v{s_}, 0xffff, v{R}")
    a.e(f"v_lshrrev_b32 v{e_}, 16, v{R}")
    a.e(f"v_lshrrev_b32 v{p0}, 1, v{s_}")
    a.e(f"v_add_u32 v{n_}, 1, v{e_}")
    a.e(f"v_cmp_gt_u32 s[{sM}:{sM+1}], v{e_}, v{s_}")
    a.e(f"v_lshrrev_b32 v{n_}, 1, v{n_}")
    a.e(f"v_sub_u32 v{n_}, v{n_}, v{p0}")
    a.e(f"v_cndmask_b32 v{n_}, 0, v{n_}, s[{sM}:{sM+1}]")
    a.e(f"v_mov_b32 v{inc}, v{n_}")
    dpp_scan(a, inc)
    a.e(f"v_readlane_b32 s{sTOT}, v{inc}, 63")
    a.e(f"s_cmp_lt_u32 s{sWIN}, s{sTOT}")
    a.e(f"s_cbranch_scc1 K2_FGO")
    a.e(f"s_cmp_eq_u32 s{sJ}, 0")
    a.e(f"s_cbranch_scc1 K2_FGO")
    rotate()
    a.e(f"s_mov_b32 s{sWIN}, 0")
    a.e(f"s_branch K2_PLOOP")
    a.e(f"K2_FGO:")
    a.e(f"v_subrev_u32 v{inc}, s{sWIN}, v{inc}")
    a.e(f"v_sub_u32 v{S_}, v{inc}, v{n_}")
    a.e(f"v_add_u32 v{el}, -1, v{inc}")
    a.e(f"v_sub_u32 v{V_}, v{p0}, v{S_}")
    a.e(f"v_mad_i32_i24 v{V_}, v{V_}, 12, v{vTB}")
    a.e(f"v_cmp_le_i32 vcc, 0, v{S_}")
    a.e(f"v_and_b32 v{x_}, 1, v{s_}")
    a.e(f"s_and_b64 vcc, vcc, s[{sM}:{sM+1}]")
    a.e(f"v_max_i32 v{sl}, 0, v{S_}")
    a.e(f"v_cndmask_b32 v{x_}, 0, v{x_}, vcc")
    a.e(f"v_lshl_or_b32 v{x_}, v{x_}, 6, v{vCN}")
    a.e(f"v_and_b32 v{y_}, 1, v{e_}")
    a.e(f"v_lshlrev_b32 v{y_}, 7, v{y_}")
    def marker(val, slot, tmp):
        a.e(f"v_lshrrev_b32 v{tmp}, 3, v{slot}")
        a.e(f"v_and_b32 v{tmp}, 0x18, v{tmp}")
        a.e(f"v_lshlrev_b32 v{val}, v{tmp}, v{val}")
        a.e(f"v_lshrrev_b32 v{tmp}, 8, v{slot}")
        a.e(f"v_cmp_gt_u32 vcc, 512, v{slot}")
        a.e(f"v_and_b32 v{slot}, 63, v{slot}")
        a.e(f"v_sub_u32 v{slot}, v{slot}, v{vLANE}")
        a.e(f"v_lshl_add_u32 v{slot}, v{slot}, 1, v{tmp}")
        a.e(f"v_lshl_add_u32 v{slot}, v{slot}, 2, v{vSCR}")
    marker(x_, sl, s_)
    a.e(f"s_mov_b64 exec, vcc")
    a.e(f"ds_add_u32 v{sl}, v{x_}")
    a.e(f"s_mov_b64 exec, -1")
    marker(y_, el, s_)
    a.e(f"s_and_b64 exec, vcc, s[{sM}:{sM+1}]")
    a.e(f"ds_add_u32 v{el}, v{y_}")
    a.e(f"s_mov_b64 exec, -1")
    RAW, RW2, CN = T_ + 12, T_ + 14, T_ + 16
    AD = T_ + 18
    a.e(f"ds_read_b64 {vr(RAW,2)}, v{vSCR}")
    a.e(f"v_mov_b32 v{RW2}, 0")
    a.e(f"v_mov_b32 v{RW2+1}, 0")
    a.e(f"ds_write_b64 v{vSCR}, {vr(RW2,2)}")
    a.e(f"s_sub_u32 s{sT2}, s{sTOT}, s{sWIN}")
    a.e("s_waitcnt lgkmcnt(1)")
    for h in range(2):
        a.e(f"v_and_b32 v{CN+h}, 0x3f3f3f3f, v{RAW+h}")
    for h in range(2):
        a.e(f"v_lshlrev_b32 v{RW2+h}, 1, v{RAW+h}")
    mk = []
    for c in range(8):
        mk.append(f"v_cmp_le_i32_sdwa s[{MSK+4*c}:{MSK+4*c+1}], 0, sext(v{RW2+(c>>2)}) src0_sel:DWORD src1_sel:BYTE_{c&3}")
        mk.append(f"v_cmp_le_i32_sdwa s[{MSK+4*c+2}:{MSK+4*c+3}], 0, sext(v{RAW+(c>>2)}) src0_sel:DWORD src1_sel:BYTE_{c&3}")
    dp = [f"row_shr:{sh} row_mask:0xf bank_mask:0xf bound_ctrl:0" for sh in (1, 2, 4, 8)] + \
         ["row_bcast:15 row_mask:0xa bank_mask:0xf", "row_bcast:31 row_mask:0xc bank_mask:0xf"]
    for d_ in dp:
        for h in range(2):
            a.e(f"v_add_u32_dpp v{CN+h}, v{CN+h}, v{CN+h} {d_}")
        a.e(mk.pop(0))
    a.e(f"v_readlane_b32 s{sT0}, v{CN}, 63")
    a.e(f"v_readlane_b32 s{sT1}, v{CN+1}, 63")
    a.e(mk.pop(0)); a.e(mk.pop(0))
    a.e(f"s_mul_i32 s{sM}, s{sT0}, 0x01010101")
    a.e(f"s_lshl_b32 s{sT0}, s{sM}, 8")
    a.e(f"s_lshr_b32 s{sM}, s{sM}, 24")
    a.e(f"s_lshl_b32 s{sT1}, s{sT1}, 8")
    a.e(f"s_add_u32 s{sT1}, s{sT1}, s{sM}")
    a.e(f"s_mul_i32 s{sT1}, s{sT1}, 0x01010101")
    a.e(f"v_add_u32 v{CN}, s{sT0}, v{CN}")
    a.e(f"v_add_u32 v{CN+1}, s{sT1}, v{CN+1}")
    for c in range(8):
        a.e(f"v_lshlrev_b32_sdwa v{AD+c}, 2, v{CN+(c>>2)} dst_sel:DWORD dst_unused:UNUSED_PAD src0_sel:DWORD src1_sel:BYTE_{c&3}")
        a.e(f"ds_bpermute_b32 v{AD+c}, v{AD+c}, v{V_}")
    for m_ in mk: a.e(m_)
    a.e(f"v_mov_b32 v{s_}, s{sOOB}")
    a.e(f"v_add_u32 v{e_}, {768*4}, v{vL12}")
    for c in range(8):
        a.e(f"v_cmp_gt_i32 vcc, s{sT2}, v{vLANE}")
        a.e(f"s_sub_u32 s{sT2}, s{sT2}, 64")
        a.e(f"s_and_b64 s[{MSK+4*c}:{MSK+4*c+1}], s[{MSK+4*c}:{MSK+4*c+1}], vcc")
        a.e(f"s_and_b64 s[{MSK+4*c+2}:{MSK+4*c+3}], s[{MSK+4*c+2}:{MSK+4*c+3}], vcc")
        a.e(f"s_waitcnt lgkmcnt({7-c})")
        a.e(f"v_add_u32 v{AD+c}, v{AD+c}, v{vL12 if c < 4 else e_}")
        a.e(f"v_cndmask_b32 v{AD+c}, v{s_}, v{AD+c}, vcc")
        a.e(f"buffer_load_dwordx3 {vr(P(c),3)}, v{AD+c}, s[{S_WS}:{S_WS+3}], 0 offen offset:{768*(c&3)}")
    a.e(f"s_add_u32 s{sWIN}, s{sWIN}, 512")
    a.e(f"s_cmp_lt_u32 s{sWIN}, s{sTOT}")
    a.e(f"s_cbranch_scc1 K2_FDONE")
    a.e(f"s_mov_b32 s{sWIN}, 0")
    a.e(f"s_cmp_eq_u32 s{sJ}, 0")
    a.e(f"s_cbranch_scc1 K2_FDONE")
    rotate()
    a.e(f"K2_FDONE:")
    stamp(1)
    if 'k2_sprio' in cfg and cfg.get('k2_sprio_at', 0) == 2: a.e(f"s_setprio {cfg['k2_sprio']}")
    vPL = cfg.get('vpl', 86)
    poll(vPL, K2_FP, f"s{sTG}")
    a.e(f"s_add_u32 s{sTG}, s{sTG}, 32")
    a.e(f"s_cmp_lt_u32 s{sDN}, 0xff00")
    a.e(f"s_cselect_b32 s{sR6}, s{sTG}, s{sR6}")
    a.e(f"s_cmp_le_u32 s{sJ}, {1 if SPLIT else 0}")
    a.e(f"s_cselect_b32 s{sT0}, 0x100, 0")
    a.e(f"s_cmp_eq_u32 s{sJ}, 0")
    a.e(f"s_addc_u32 s{sT0}, s{sT0}, 0")
    a.e(f"s_lshl_b32 s{sT0}, s{sT0}, s{sWAVE}")
    a.e(f"v_mov_b32 v{vPL}, s{sT0}")
    for c in range(8):
        a.e(f"s_waitcnt vmcnt({7-c})")
        for h in range(2):
            i = 2 * c + h
            a.e(f"v_lshlrev_b32_sdwa v{KA+i}, 2, v{P(c)+2*h} dst_sel:DWORD dst_unused:UNUSED_PAD src0_sel:DWORD src1_sel:BYTE_1")
        for h in range(2):
            i = 2 * c + h
            a.e(f"s_mov_b64 exec, s[{MSK+2*i}:{MSK+2*i+1}]")
            a.e(f"ds_add_rtn_u32 v{U+i}, v{KA+i}, v{vFOUR}")
        if c < 7: a.e("s_mov_b64 exec, -1")
    a.e("s_mov_b64 exec, 1")
    a.e(f"ds_or_b32 v{vZERO}, v{vPL} offset:{K2_DN}")
    a.e(f"ds_add_u32 v{vZERO}, v{vFOUR} offset:{K2_FH}")
    a.e("s_mov_b64 exec, -1")
    stamp(2)
    a.e(f"K2_PLH:")
    a.e(f"ds_read_b64 {vr(vPL,2)}, v{vZERO} offset:{K2_FH}")
    a.e("s_waitcnt lgkmcnt(0)")
    a.e(f"v_readfirstlane_b32 s{sT0}, v{vPL}")
    a.e(f"s_cmp_lt_u32 s{sT0}, s{sTG}")
    a.e(f"s_cbranch_scc1 K2_PLH")
    stamp(3)
    if 'k2_sprio' in cfg and cfg.get('k2_sprio_at', 0) == 0: a.e(f"s_setprio {cfg['k2_sprio']}")
    NW, CC, TT, BS = T_, T_ + 4, T_ + 8, T_ + 12
    a.e(f"ds_read_b128 {vr(NW,4)}, v{vL16}")
    signal(vFOUR, K2_FP)
    a.e(f"v_readfirstlane_b32 s{sDN}, v{vPL+1}")
    a.e("s_waitcnt lgkmcnt(1)")
    for k in range(4):
        a.e(f"v_sub_u32 v{CC+k}, v{NW+k}, v{OLD+k}")
    a.e(f"v_add_u32 v{TT}, v{CC}, v{CC+1}")
    a.e(f"v_add3_u32 v{TT}, v{TT}, v{CC+2}, v{CC+3}")
    a.e(f"v_sub_u32 v{TT+1}, {K2_SW}, v{TT}")
    dpp_scan(a, TT)
    a.e(f"v_add_u32 v{TT+1}, v{TT+1}, v{TT}")
    a.e(f"v_readlane_b32 s{sN}, v{TT}, 63")
    for k in range(4):
        a.e(f"v_sub_u32 v{BS+k}, v{TT+1}, v{OLD+k}")
        if k < 3:
            a.e(f"v_add_u32 v{TT+1}, v{TT+1}, v{CC+k}")
        a.e(f"v_mov_b32 v{OLD+k}, v{NW+k}")
    a.e(f"ds_write_b128 v{vL16}, {vr(BS,4)} offset:{K2_BASE}")
    for i in range(16):
        a.e(f"ds_read_b32 v{KA+i}, v{KA+i} offset:{K2_BASE}")
    a.e(f"s_sub_u32 s{sT1}, s{sTG}, 32")
    stamp(4)
    poll(vPL, K2_FR, f"s{sT1}")
    stamp(5)
    if 'k2_sprio' in cfg and cfg.get('k2_sprio_at', 0) == 1: a.e(f"s_setprio {cfg['k2_sprio']}")
    a.e(f"s_cmp_lg_u32 s{sWAVE}, 0")
    a.e(f"s_cbranch_scc1 K2_NOPAD")
    a.e(f"s_add_u32 s{sT0}, s{sN}, {K2_SW}")
    a.e(f"v_lshl_add_u32 v{TT}, v{vLANE}, 2, s{sT0}")
    a.e(f"v_mov_b32 v{TT+1}, {hex(DUMMY)}")
    a.e(f"ds_write_b32 v{TT}, v{TT+1}")
    a.e(f"v_lshrrev_b32 v{TT}, 1, v{TT}")
    a.e(f"v_cmp_gt_u32 vcc, {K2_SW//2 + 16384}, v{TT}")
    a.e(f"s_cmp_eq_u32 s{sDN}, 0xffff")
    a.e(f"s_addc_u32 s{sT0}, s{sN}, 0")
    a.e(f"v_mov_b32 v{TT+3}, s{sT0}")
    a.e(f"ds_write_b32 v{vZERO}, v{TT+3} offset:{K2_NCELL}")
    a.e(f"s_mov_b64 exec, vcc")
    if not cfg.get('x_nopad'): a.e(f"ds_write_b16 v{TT}, v{vZERO} offset:{K2_SA - K2_SW//2}")
    a.e(f"s_mov_b64 exec, -1")
    a.e("K2_NOPAD:")
    for i in range(16):
        a.e(f"v_add_u32 v{U+i}, v{U+i}, v{KA+i}")
        a.e(f"v_lshrrev_b32 v{KA+i}, 1, v{U+i}")
    for i in range(16):
        c, h = i >> 1, i & 1
        a.e(f"s_mov_b64 exec, s[{MSK+2*i}:{MSK+2*i+1}]")
        a.e(f"ds_write_b32 v{U+i}, v{P(c)+2*h}")
        a.e(f"ds_write_b16{'_d16_hi' if h else ''} v{KA+i}, v{P(c)+1} offset:{K2_SA - K2_SW//2}")
    signal(vFOUR, K2_FS)
    stamp(4)
    if 'k2_sprio' in cfg: a.e(f"s_setprio {PPRIO}")
    a.e(f"s_cmp_lg_u32 s{sDN}, 0xffff")
    a.e("s_cbranch_scc1 K2_PLOOP")

    a.e("K2_PTAIL:")
    a.e(f"s_setprio {cfg.get('k2_tprio', 2)}")
    S_W1, S_W2, S_C, S_D, S_MM = 40, 44, 48, 56, 60
    sGI, sEP, sEO, sLP, sLO, sK6 = 64, 66, 67, 68, 69, 70
    S_WA = 72
    S_WR = 92 if TRACE else 88
    sBI, sTOP = sJ, sWIN
    DI, WOP, AA, MM, GG = 10, 24, 32, 88, 8
    DB0, XX, RB, vOF, vCK = 104, 120, 28, 3, 126
    a.e(f"s_load_dwordx2 s[{S_D}:{S_D+1}], s[0:1], 24")
    a.e(f"s_load_dwordx2 s[{S_W2}:{S_W2+1}], s[0:1], 56")
    a.e(f"s_load_dwordx2 s[{S_W1}:{S_W1+1}], s[0:1], 64")
    a.e(f"s_load_dwordx2 s[{S_MM}:{S_MM+1}], s[0:1], 0")
    a.e(f"s_load_dwordx2 s[{S_X}:{S_X+1}], s[0:1], 80")
    a.e(f"s_load_dwordx2 s[{S_Y}:{S_Y+1}], s[0:1], 88")
    for sr_, n in ((S_D, E * 2), (S_W1, 128), (S_W2, 64), (S_MM, E * 8), (S_Y, E * 8)):
        a.e(f"s_mov_b32 s{sr_+2}, {n}")
        a.e(f"s_mov_b32 s{sr_+3}, 0x00020000")
    a.e(f"s_lshr_b32 s{sT0}, s{sB}, 7")
    a.e(f"s_and_b32 s{sT1}, s{sB}, 127")
    a.e(f"s_mul_i32 s{sLP}, s{sT0}, {EPB}")
    a.e(f"s_sub_u32 s{sLO}, {EPB}, s{sLP}")
    a.e(f"s_mul_i32 s{sT1}, s{sT1}, {2*EPB}")
    a.e(f"s_add_u32 s{sEP}, s{sT1}, s{sLP}")
    a.e(f"s_add_u32 s{sEO}, s{sT1}, s{sLO}")
    a.e(f"s_mov_b32 s{sBI}, 0x40004000")
    a.e(f"s_mov_b32 s{sTOP}, 0x80008000")
    for k in range(14):
        a.e(f"v_mov_b32 v{DI+k}, 0")
    for q in range(8):
        a.e(f"v_mov_b32 v{WOP+q}, 0")
    a.e(f"v_add_lshl_u32 v{XX+2}, v0, s{sEP}, 1")
    a.e(f"v_add_lshl_u32 v{XX+4}, v0, s{sEO}, 1")
    a.e(f"v_add_u32 v{XX+3}, 4096, v{XX+2}")
    a.e(f"v_add_u32 v{XX+5}, 4096, v{XX+4}")
    a.e(f"v_and_b32 v{DB0+1}, 3, v{vLANE}")
    a.e(f"v_lshlrev_b32 v{DB0+1}, 1, v{DB0+1}")
    a.e(f"v_and_or_b32 v{DB0}, v{vLANE}, 8, v{DB0+1}")
    a.e(f"v_lshlrev_b32 v{vOF+2}, 3, v0")
    a.e(f"v_mov_b32 v{DB0+2}, s{sOOB}")
    a.e(f"v_cmp_gt_u32 s[{sK6}:{sK6+1}], {EPB - 3072}, v0")
    a.e(f"v_lshlrev_b32 v{vOF}, 2, v{XX+4}")
    a.e(f"v_add_u32 v{vOF+1}, {6*4096}, v{vOF}")
    a.e(f"v_cndmask_b32 v{vOF+1}, v{DB0+2}, v{vOF+1}, s[{sK6}:{sK6+1}]")
    a.e(f"v_cndmask_b32 v{vOF+3}, v{DB0+2}, v{vOF+2}, s[{sK6}:{sK6+1}]")
    poll(XX, K2_GI, "1", 0)
    a.e(f"s_mov_b32 s{sGI}, s{sT0}")
    a.e(f"s_mov_b32 s{sGI+1}, s{sT0}")
    a.e(f"s_load_dwordx8 s[{S_WR}:{S_WR+7}], s[{S_X}:{S_X+1}], 0")
    a.vm = []
    for k in range(7):
        a.vmem(f"buffer_load_short_d16_hi v{DI+k}, v{XX+2+(k>>2)}, s[{S_D}:{S_D+3}], 0 offen offset:{(k&3)*1024}", ('D', k))
    a.e(f"s_mov_b32 exec_lo, 0x00000f0f")
    a.e(f"s_mov_b32 exec_hi, 0x0000f0f0")
    for r in range(8):
        a.vmem(f"buffer_load_short_d16{'_hi' if r & 1 else ''} v{WOP+(r>>1)+4*(r&1)}, v{DB0}, s[{S_W1}:{S_W1+3}], 0 offen offset:{16*r}", 'W')
    a.e(f"s_mov_b32 exec_lo, 0x000f0000")
    a.e(f"s_mov_b32 exec_hi, 0x00f00000")
    for r in range(8):
        a.vmem(f"buffer_load_short_d16{'_hi' if r & 1 else ''} v{WOP+(r>>1)+4*(r&1)}, v{DB0+1}, s[{S_W2}:{S_W2+3}], 0 offen offset:{8*r}", 'W')
    a.e(f"s_mov_b64 exec, -1")
    for k in range(7):
        a.vmem(f"buffer_load_short_d16_hi v{DI+7+k}, v{XX+4+(k>>2)}, s[{S_D}:{S_D+3}], 0 offen offset:{(k&3)*1024}", ('D', 7 + k))
    for k in range(7):
        a.e(f"s_mov_b32 s{sT0}, {4096*k if k < 6 else 0}")
        a.vmem(f"buffer_load_dwordx2 {vr(MM+2*k,2)}, v{vOF + (k == 6)}, s[{S_MM}:{S_MM+3}], s{sT0} offen", 'M')
    for r in range(8):
        a.e(f"s_mov_b32 s{S_C+r}, {f2h(-KAP * h2f(CENTERS[r]))}")
    a.e(f"s_add_u32 s{sR6}, s{sR6}, 64")
    a.wvm('W')
    for q in range(4):
        a.e(f"v_or_b32 v{WOP+q}, v{WOP+q}, v{WOP+4+q}")
    def rbf(dv, X):
        a.e(f"v_mul_f32 v{102}, {f2h(KAP)}, v{dv}")
        for q in range(4):
            a.e(f"v_pk_add_f32 {vr(X+2*q,2)}, {vr(102,2)}, s[{S_C+2*q}:{S_C+2*q+1}] op_sel_hi:[0,1]")
        for q in range(4):
            a.e(f"v_pk_mul_f32 {vr(X+2*q,2)}, {vr(X+2*q,2)}, {vr(X+2*q,2)}")
        for r in range(8):
            a.e(f"v_exp_f32 v{X+r}, -v{X+r}")
    def acomp(base, own, hook=None):
        rbf(base, AA)
        for k in range(7):
            X = AA + 8 * k
            for q in range(4):
                a.e(f"v_cvt_pk_bf16_f32 v{RB+q}, v{X+2*q}, v{X+2*q+1}")
            if not cfg.get('x_nomfma'): a.e(f"v_mfma_f32_32x32x16_bf16 {vr(DB0,16)}, {vr(WOP,4)}, {vr(RB,4)}, 0")
            if k < 6: rbf(base + k + 1, X + 8)
            for d in range(4):
                a.e(f"v_pk_mul_f32 {vr(X+2*d,2)}, {vr(DB0+2*d,2)}, s[{sGI}:{sGI+1}]")
            if own:
                for q in range(2):
                    a.e(f"v_cvt_pk_bf16_f32 v{GG+2*k+q}, v{DB0+8+2*q}, v{DB0+9+2*q}")
            if hook: hook(k)
    a.e(f"s_cmp_lg_u32 s{sMODE}, 0")
    a.e("s_cbranch_scc1 K2_TOWN")
    acomp(DI, False)
    stamp(11)
    a.e(f"v_and_b32 v{XX+1}, 7, v{vLANE}")
    a.e(f"v_lshlrev_b32 v{XX+1}, 2, v{XX+1}")
    a.e(f"v_add_lshl_u32 v{XX+2}, v0, s{sLP}, 3")
    a.e(f"v_add_u32 v{XX+3}, {STR2}, v{XX+2}")
    a.e(f"s_mul_i32 s{sT2}, s{sB}, {XB_STR}")
    a.e(f"s_add_u32 s{sT2}, s{sT2}, {XB_OFF}")
    a.wvm0()
    a.e("s_branch K2_FD1")
    a.e("K2_FD0:")
    a.e(f"s_sleep {cfg.get('k2_fdslp', 2)}")
    a.e("K2_FD1:")
    a.e(f"ds_read_b32 v{XX}, v{XX+1} offset:{K2C_FD}")
    a.e("s_waitcnt lgkmcnt(0)")
    a.e(f"v_cmp_gt_u32 vcc, s{sR6}, v{XX}")
    a.e("s_cbranch_vccnz K2_FD0")
    a.e("s_setprio 3")
    stamp(12)
    a.lg = []
    a.lds(f"ds_read_b32 v{vCK}, v{vZERO} offset:{K2_VI}", 'V')
    def sread(k, dst):
        for q in range(2):
            a.lds(f"ds_read_b64 {vr(dst+2*q,2)}, v{XX+2+q} offset:{ACC + 4096*k}", ('S', k))
    def agg(k, S, tmp, init):
        X = AA + 8 * k
        if k == 6: a.e(f"s_mov_b64 exec, s[{sK6}:{sK6+1}]")
        a.e(f"v_or3_b32 v{vCK}, v{vCK}, v{S}, v{S+1}")
        a.e(f"v_or3_b32 v{vCK}, v{vCK}, v{S+2}, v{S+3}")
        if k == 6: a.e(f"s_mov_b64 exec, -1")
        for q in range(4):
            a.e(f"v_pk_sub_i16 v{S+q}, v{S+q}, s{sBI}")
        for d in range(4):
            a.e(f"v_cvt_f32_i32_sdwa v{tmp+d}, sext(v{S+(d>>1)}) dst_sel:DWORD dst_unused:UNUSED_PAD src0_sel:WORD_{d&1}")
        for q in range(2):
            if init:
                a.e(f"v_pk_fma_f32 {vr(RB+2*q,2)}, {vr(X+2*q,2)}, {vr(tmp+2*q,2)}, {vr(RB+2*q,2)}")
            else:
                a.e(f"v_pk_mul_f32 {vr(RB+2*q,2)}, {vr(X+2*q,2)}, {vr(tmp+2*q,2)}")
        for d in range(4):
            a.e(f"v_cvt_f32_i32_sdwa v{X+d}, sext(v{S+2+(d>>1)}) dst_sel:DWORD dst_unused:UNUSED_PAD src0_sel:WORD_{d&1}")
        for q in range(2):
            a.e(f"v_pk_fma_f32 {vr(RB+2*q,2)}, {vr(X+4+2*q,2)}, {vr(X+2*q,2)}, {vr(RB+2*q,2)}")
    for k in range(3): sread(k, DB0 + 4 * k)
    for k in range(7):
        if k + 3 < 7: sread(k + 3, DB0 + 4 * ((k + 3) % 4))
        a.wlg(('S', k))
        agg(k, DB0 + 4 * (k % 4), 8, False)
        a.e(f"v_cvt_pk_bf16_f32 v{AA+8*k}, v{RB}, v{RB+1}")
        a.e(f"v_cvt_pk_bf16_f32 v{AA+8*k+1}, v{RB+2}, v{RB+3}")
        a.vmem(f"buffer_store_dwordx2 {vr(AA+8*k,2)}, v{vOF+2+(k == 6)}, s[{S_WS}:{S_WS+3}], s{sT2} offen sc1", 'X')
        a.e(f"s_add_u32 s{sT2}, s{sT2}, 4096")
    a.e(f"s_setprio {cfg.get('k2_tprio', 2)}")
    a.e(f"v_and_b32 v{vCK}, s{sTOP}, v{vCK}")
    a.e(f"v_cmp_ne_u32 vcc, 0, v{vCK}")
    a.e(f"s_cmp_lg_u64 vcc, 0")
    a.e(f"s_cselect_b32 s{sT0}, 0x8004, 4")
    a.e(f"v_mov_b32 v{vFOUR}, s{sT0}")
    stamp(13)
    a.e(f"s_lshl_b32 s{sT1}, s{sWAVE}, 4")
    a.e(f"s_add_u32 s{sT1}, s{sT1}, {FL_OFF}")
    a.e(f"s_lshl_b32 s{sT2}, s{sB}, 7")
    a.e(f"s_add_u32 s{sEP}, s{sT1}, s{sT2}")
    a.e(f"s_xor_b32 s{sT2}, s{sT2}, {128 << 7}")
    a.e(f"s_add_u32 s{sLP}, s{sT1}, s{sT2}")
    a.e("K2_TOWN:")
    FLK = cfg.get('k2_flk', 1)
    def flag(k):
        if k == FLK:
            a.wvm0()
            a.e(f"s_cmp_lg_u32 s{sMODE}, 0")
            a.e("s_cbranch_scc1 K2_NOFLAG")
            a.e("s_mov_b64 exec, 1")
            a.e(f"buffer_store_dword v{vFOUR}, v{vZERO}, s[{S_WS}:{S_WS+3}], s{sEP} offen sc1")
            a.e("s_mov_b64 exec, -1")
            a.e("K2_NOFLAG:")
    DO2 = 120
    a.e("s_waitcnt vmcnt(7)")
    for k in range(7):
        a.e(f"v_mov_b32 v{DO2+k}, v{DI+7+k}")
    if FLK < 0: flag(FLK)
    acomp(DO2, True, flag)
    a.e("s_waitcnt lgkmcnt(0)")
    for d in range(4):
        for h in range(2):
            src = S_WR + 2 * d + h
            a.e(f"s_lshl_b32 s{S_WA+4*d+2*h}, s{src}, 16")
            a.e(f"s_and_b32 s{S_WA+4*d+2*h+1}, s{src}, s{sHI}")
    a.e(f"s_cmp_lg_u32 s{sMODE}, 0")
    a.e("s_cbranch_scc1 K2_SFIN")
    stamp(14)
    a.e(f"s_mov_b32 s{sT0}, {1 << 14}")
    a.e(f"s_xor_b32 s{sT2}, s{sB}, 128")
    a.e(f"s_mul_i32 s{sT2}, s{sT2}, {XB_STR}")
    a.e(f"s_add_u32 s{sT2}, s{sT2}, {XB_OFF}")
    a.e("s_branch K2_FL1")
    a.e("K2_FL0:")
    a.e(f"s_sleep {cfg.get('k2_flslp', 4)}")
    a.e(f"v_mov_b32 v{vCK}, 0x8000")
    a.e(f"s_sub_u32 s{sT0}, s{sT0}, 1")
    a.e("s_cbranch_scc1 K2_FL2")
    a.e("K2_FL1:")
    a.e(f"buffer_load_dword v{vCK}, v{vZERO}, s[{S_WS}:{S_WS+3}], s{sLP} offen sc1")
    a.e("s_waitcnt vmcnt(0)")
    a.e(f"v_cmp_eq_u32 vcc, 0, v{vCK}")
    a.e("s_cbranch_vccnz K2_FL0")
    a.e("K2_FL2:")
    a.e("s_setprio 3")
    PP = [22, 24, 26, 102, 116, 118, 124]
    for k in range(7):
        a.e(f"buffer_load_dwordx2 {vr(PP[k],2)}, v{vOF+2+(k == 6)}, s[{S_WS}:{S_WS+3}], s{sT2} offen sc1")
        a.e(f"s_add_u32 s{sT2}, s{sT2}, 4096")
    a.e(f"v_add_lshl_u32 v{XX+2}, v0, s{sLO}, 3")
    a.e(f"v_add_u32 v{XX+3}, {STR2}, v{XX+2}")
    stamp(6)
    a.e("s_barrier")
    stamp(7)
    def unpack(dst, src):
        a.e(f"v_lshlrev_b32 v{dst}, 16, v{src}")
        a.e(f"v_and_b32 v{dst+1}, s{sHI}, v{src}")
        a.e(f"v_lshlrev_b32 v{dst+2}, 16, v{src+1}")
        a.e(f"v_and_b32 v{dst+3}, s{sHI}, v{src+1}")
    def finish(k):
        X = AA + 8 * k
        a.e(f"v_mov_b32 v{DB0+8}, v{RB+1}")
        a.e(f"v_mov_b32 v{DB0+10}, v{RB+3}")
        unpack(X + 4, GG + 2 * k)
        for d in range(4):
            src = RB + d if d % 2 == 0 else DB0 + 7 + d
            for q in range(2):
                w = f"s[{S_WA+4*d+2*q}:{S_WA+4*d+2*q+1}]"
                if d == 0:
                    a.e(f"v_pk_mul_f32 {vr(X+2*q,2)}, {vr(RB,2)}, {w} op_sel_hi:[0,1]")
                else:
                    a.e(f"v_pk_fma_f32 {vr(X+2*q,2)}, {vr(src,2)}, {w}, {vr(X+2*q,2)} op_sel_hi:[0,1,1]")
        unpack(RB, MM + 2 * k)
        for q in range(2):
            a.e(f"v_pk_fma_f32 {vr(X+2*q,2)}, {vr(X+2*q,2)}, {vr(X+4+2*q,2)}, {vr(RB+2*q,2)}")
        a.e(f"v_cvt_pk_bf16_f32 v{MM+2*k}, v{X}, v{X+1}")
        a.e(f"v_cvt_pk_bf16_f32 v{MM+2*k+1}, v{X+2}, v{X+3}")
        a.e(f"s_mov_b32 s{sT0}, {4096*k if k < 6 else 0}")
        a.e(f"buffer_store_dwordx2 {vr(MM+2*k,2)}, v{vOF + (k == 6)}, s[{S_Y}:{S_Y+3}], s{sT0} offen")
    a.lg = []
    sread(0, DB0)
    for k in range(7):
        if k + 1 < 7: sread(k + 1, DB0 + 4 * ((k + 1) & 1))
        if k == 0: a.wvm0()
        unpack(RB, PP[k])
        a.wlg(('S', k))
        agg(k, DB0 + 4 * (k & 1), DB0 + 8, True)
        finish(k)
    a.e(f"v_and_b32 v{vCK}, s{sTOP}, v{vCK}")
    a.e(f"v_cmp_ne_u32 vcc, 0, v{vCK}")
    a.e(f"s_and_b64 exec, exec, vcc")
    a.e(f"ds_or_b32 v{vZERO}, v{vCK} offset:{K2_VI}")
    a.e(f"s_mov_b64 exec, -1")
    a.e("s_waitcnt lgkmcnt(0)")
    a.e("s_barrier")
    a.e(f"ds_read_b32 v{vCK}, v{vZERO} offset:{K2_VI}")
    a.e("s_waitcnt lgkmcnt(0)")
    a.e(f"v_cmp_ne_u32 vcc, 0, v{vCK}")
    a.e("s_cbranch_vccz K2_FIN")
    a.e(f"s_mov_b32 s{sMODE}, 1")
    a.e("s_barrier")
    a.e("s_waitcnt vmcnt(0)")
    a.e("s_barrier")
    a.e("s_branch K2_PTAIL")
    a.e("K2_SFIN:")
    a.e(f"v_lshlrev_b32 v{XX+2}, 2, v0")
    a.e(f"v_add_u32 v{XX+3}, {STR2}, v{XX+2}")
    for k in range(7):
        X = AA + 8 * k
        for q in range(8):
            a.e(f"ds_read_b32 v{DB0+q}, v{XX+2+(q>>2)} offset:{ACC + (q&3)*ACC_STR + 2048*k}")
        a.e("s_waitcnt lgkmcnt(0)")
        for q in range(8):
            a.e(f"v_cvt_f32_i32 v{DB0+q}, v{DB0+q}")
        for q in range(2):
            a.e(f"v_pk_mul_f32 {vr(RB+2*q,2)}, {vr(X+2*q,2)}, {vr(DB0+2*q,2)}")
        for q in range(2):
            a.e(f"v_pk_fma_f32 {vr(RB+2*q,2)}, {vr(X+4+2*q,2)}, {vr(DB0+4+2*q,2)}, {vr(RB+2*q,2)}")
        finish(k)
    a.e("s_branch K2_FIN")

    a.e("K2_CONS:")
    vFD, vA4, vA2 = 3, 4, 5
    SW_, SA_ = 6, 19
    CUR = 32
    COL = {3: [0,1,2,3,0,1,2,3,0,1,2,3,4], 2: [0,1,2,0,1,2,0,1,2,0,1,2,3],
           4: [0,1,2,3,4,5,0,1,2,3,4,5,6], 5: [0,1,2,3,4,5,0,1,2,3,4,5,6]}.get(D, list(range(13)))
    NCOL = max(COL) + 1
    RSTR = 6 if D <= 5 else 4
    LB = CUR + 4 * 13
    TB = 104
    RT, vCK, vC4, vCT = 120, 124, 125, 126
    MXR = TB
    sG, sGN, sMG, sNB, sSEL, sMX, sLAST = 40, 42, 44, 46, 48, 49, 50
    def fill(first):
        if first:
            a.e(f"v_cmp_le_u32 vcc, {ACC//16}, v{vCT}")
            a.e(f"s_mov_b64 exec, vcc")
            a.e(f"ds_write_b128 v{TB+8}, {vr(TB+4,4)}")
            a.e(f"s_mov_b64 exec, -1")
        for k in range(1, 8):
            a.e(f"ds_write_b128 v{TB+8}, {vr(TB+4,4)} offset:{k*8192}")
        a.e(f"v_add_u32 v{TB+8}, 65536, v{TB+8}")
        for k in range(4):
            a.e(f"ds_write_b128 v{TB+8}, {vr(TB+4,4)} offset:{k*8192}")
        a.e(f"v_cmp_gt_u32 vcc, {(K2_SA - 12*8192)//16}, v{vCT}")
        a.e(f"s_mov_b64 exec, vcc")
        a.e(f"ds_write_b128 v{TB+8}, {vr(TB+4,4)} offset:{4*8192}")
        a.e(f"s_mov_b64 exec, -1")
    def mdsrd(hreg):
        a.e(f"s_mul_i32 s{sT0}, {hreg}, {MD_TSTR}")
        a.e(f"s_add_u32 s{sT0}, s{sT0}, {MD_OFF}")
        a.e(f"s_add_u32 s{S_MD}, s{S_WS}, s{sT0}")
        a.e(f"s_addc_u32 s{S_MD+1}, s{S_WS+1}, 0")
        a.e(f"s_or_b32 s{S_MD+1}, s{S_MD+1}, 0x80000")
    def setscale(t):
        a.e(f"v_min_f32 v{t}, 0x71800000, v{t}")
        a.e(f"v_rcp_f32 v{t+1}, v{t}")
        a.e(f"v_add_f32 v{t+2}, v{t}, v{t}")
        a.e(f"v_readlane_b32 s{sG}, v{t}, 63")
        a.e(f"v_readlane_b32 s{sG+1}, v{t+2}, 63")
        a.e("s_lshl_b64 exec, 1, 63")
        a.e(f"ds_write_b32 v{vZERO}, v{t+1} offset:{K2_GI}")
        a.e("s_mov_b64 exec, -1")
        a.e(f"s_xor_b32 s{sGN}, s{sG}, 0x80000000")
    a.e(f"s_sub_u32 s{sWAVE}, s{sWAVE}, 8")
    a.e(f"v_add_u32 v{vCT}, -512, v0")
    a.e(f"v_mov_b32 v{TB+9}, 0x40004000")
    a.e(f"v_cmp_le_u32 vcc, {ACC//16}, v{vCT}")
    a.e(f"v_lshlrev_b32 v{TB+8}, 4, v{vCT}")
    for k in range(4):
        a.e(f"v_cndmask_b32 v{TB+4+k}, 0, v{TB+9}, vcc")
    a.e(f"ds_write_b128 v{TB+8}, {vr(TB+4,4)}")
    for k in range(4):
        a.e(f"v_mov_b32 v{TB+4+k}, v{TB+9}")
    a.e(f"v_lshlrev_b32 v{TB+9}, 5, v{vLANE}")
    a.e(f"s_mov_b32 s{sT1}, {MX_OFF}")
    a.e("s_waitcnt lgkmcnt(0)")
    a.e("s_barrier")
    a.e(f"buffer_load_dwordx4 {vr(CUR,4)}, v{TB+9}, s[{S_WS}:{S_WS+3}], s{sT1} offen")
    a.e(f"buffer_load_dwordx4 {vr(CUR+4,4)}, v{TB+9}, s[{S_WS}:{S_WS+3}], s{sT1} offen offset:16")
    fill(False)
    a.e(f"s_lshr_b32 s{sT1}, s{sB}, 7")
    mdsrd(f"s{sT1}")
    a.e(f"s_mov_b32 s{S_MD+2}, {E//2}")
    a.e(f"s_mov_b32 s{S_MD+3}, 0x00020000")
    a.e(f"s_mov_b32 s{sFFF8}, 0xfff8")
    a.e(f"s_mov_b32 s{sMG}, {f2h(8388608.0 + 32768.0)}")
    a.e(f"s_mov_b32 s{sMG+1}, {f2h(8388608.0 + 32768.0)}")
    a.e(f"s_mov_b32 s{sNB}, 0x7fff8000")
    a.e(f"s_mov_b32 s{sNB+1}, 0x7fff7fff")
    a.e(f"s_mov_b32 s{sSEL}, 0x05040100")
    a.e(f"s_lshl_b32 s{sT0}, s{sWAVE}, 2")
    a.e(f"v_mov_b32 v{vFD}, s{sT0}")
    for s in range(NS):
        a.e(f"v_mov_b32 v{SW_+s}, {hex(DUMMY)}")
        a.e(f"v_mov_b32 v{SA_+s}, 0")
    for k in range(4):
        a.e(f"v_mov_b32 v{RT+k}, 0")
    a.e(f"s_mov_b32 s{sCNT}, 0")
    t = TB + 4
    a.e("s_waitcnt vmcnt(0)")
    a.e(f"v_max3_u32 v{MXR}, v{CUR}, v{CUR+2}, v{CUR+4}")
    a.e(f"v_add_f32 v{MXR+1}, v{CUR+1}, v{CUR+3}")
    a.e(f"v_add_f32 v{MXR+2}, v{CUR+5}, v{CUR+7}")
    a.e(f"v_max_u32 v{MXR}, v{MXR}, v{CUR+6}")
    a.e(f"v_add_f32 v{MXR+1}, v{MXR+1}, v{MXR+2}")
    dpp_scan(a, MXR, "v_max_u32")
    dpp_scan(a, MXR + 1, "v_add_f32")
    a.e(f"v_rcp_f32 v{t}, v{MXR}")
    a.e(f"v_mul_f32 v{MXR+2}, {f2h(4.0 * E / cfg.get('crest', 32.0))}, v{MXR}")
    a.e(f"v_readlane_b32 s{sMX}, v{MXR}, 63")
    a.e(f"v_cmp_nle_f32 vcc, v{MXR+2}, v{MXR+1}")
    a.e(f"v_mul_f32 v{t}, {f2h(cfg.get('qmax', 4096.0))}, v{t}")
    a.e(f"s_lshr_b32 s{sT0}, vcc_hi, 16")
    a.e(f"s_and_b32 s{sT0}, s{sT0}, 0x8000")
    a.e(f"v_mov_b32 v{vCK}, s{sT0}")
    setscale(t)
    stamp(6)

    uid = [0]
    stubs = []
    NOX = cfg.get('nox', True)
    def lreg(cur): return cur + (5 if NOX else 4) if D <= 5 else LB + (cur - CUR) // 4
    def alpha1(W, cur):
        L = lreg(cur)
        a.e(f"v_and_b32 v{L}, {hex(cfg.get('x_gmask', IDXM))}, v{W}")
        if not cfg.get('x_nog'):
            a.e(f"buffer_load_dwordx2 {vr(cur,2)}, v{L}, s[{S_MD}:{S_MD+3}], 0 idxen")
    def cosines(A, C_, mid=None, c2=1):
        tc = TB + 2
        a.e(f"v_mul_f32 v{tc}, 0.15915494, v{A}")
        a.e(f"v_fract_f32 v{tc}, v{tc}")
        a.e(f"v_cos_f32 v{tc}, v{tc}")
        if mid: a.e(mid)
        a.e(f"v_pk_mul_f32 {vr(C_,2)}, {vr(tc,2)}, s[{sG}:{sG+1}] op_sel_hi:[0,1]")
        a.e(f"v_fma_f32 v{C_+c2}, v{C_+1}, v{tc}, s{sGN}")
    def alpha2(W, A, cur):
        cosines(A, cur + 2, f"v_and_b32_sdwa v{lreg(cur)}, v{W}, s{sFFF8} dst_sel:DWORD dst_unused:UNUSED_PAD src0_sel:WORD_1 src1_sel:DWORD", 2 if NOX else 1)
    def orrt():
        a.e(f"v_or3_b32 v{vCK}, v{vCK}, v{RT}, v{RT+1}")
        a.e(f"v_or3_b32 v{vCK}, v{vCK}, v{RT+2}, v{RT+3}")
    def beta(cur, vm):
        G0, C_, L = cur, cur + 2, lreg(cur)
        M_, X = TB + 4, TB + 8
        a.e(f"s_waitcnt vmcnt({vm})")
        unpack(M_, G0)
        for l in range(2):
            for q in range(2):
                if NOX:
                    a.e(f"v_pk_fma_f32 {vr(X+4*l+2*q,2)}, {vr(M_+2*q,2)}, {vr(C_+2*l,2)}, s[{sMG}:{sMG+1}] op_sel_hi:[1,0,1]")
                else:
                    a.e(f"v_pk_fma_f32 {vr(X+4*l+2*q,2)}, {vr(M_+2*q,2)}, {vr(C_,2)}, s[{sMG}:{sMG+1}] op_sel:[0,{l},0] op_sel_hi:[1,{l},1]")
        for q in range(4):
            a.e(f"v_perm_b32 v{M_+q}, v{X+2*q+1}, v{X+2*q}, s{sSEL}")
        for l in range(2):
            a.e(f"v_lshl_add_u64 {vr(M_+2*l,2)}, {vr(M_+2*l,2)}, 0, s[{sNB}:{sNB+1}]")
        a.e(f"s_waitcnt lgkmcnt(0)")
        orrt()
        for l in range(2):
            a.e(f"ds_add_rtn_u64 {vr(RT+2*l,2)}, v{L}, {vr(M_+2*l,2)} offset:{ACC + l*STR2}")
    def cur(s): return CUR + RSTR * COL[s]
    def fdone(val):
        uid[0] += 1
        a.e(f"s_waitcnt lgkmcnt(0)")
        orrt()
        a.e(f"v_and_b32 v{vCK}, 0x80008000, v{vCK}")
        a.e(f"v_cmp_ne_u32 vcc, 0, v{vCK}")
        a.e(f"v_mov_b32 v{TB+4}, {val}")
        a.e(f"s_mov_b64 exec, vcc")
        a.e(f"ds_or_b32 v{vZERO}, v{vCK} offset:{K2_VI}")
        a.e("s_mov_b64 exec, 1")
        a.e(f"ds_write_b32 v{vFD}, v{TB+4} offset:{K2C_FD}")
        a.e("s_mov_b64 exec, -1")
    def step(s, cnt_of, stub=False, mid=None):
        p = (s - D) % NS
        alpha1(SW_ + s, cur(s))
        alpha2(SW_ + s, SA_ + s, cur(s))
        if mid: mid()
        uid[0] += 1
        a.e(f"s_cmp_le_u32 s{cnt_of(p)}, {p}")
        if stub:
            a.e(f"s_cbranch_scc1 K2_ST{uid[0]}")
            stubs.append(uid[0])
        else:
            a.e(f"s_cbranch_scc1 K2_SB{uid[0]}")
        u = uid[0]
        beta(cur(p), D)
        a.e(f"K2_SB{u}:")
    def readslot(s):
        uid[0] += 1
        a.e(f"s_cmp_le_u32 s{sCNT}, {s}")
        a.e(f"s_cbranch_scc1 K2_RD{uid[0]}")
        a.e(f"ds_read_b32 v{SW_+s}, v{vA4} offset:{256*s}")
        a.e(f"ds_read_u16_d16_hi v{SA_+s}, v{vA2} offset:{128*s}")
        a.e(f"s_branch K2_RE{uid[0]}")
        a.e(f"K2_RD{uid[0]}:")
        a.e(f"v_mov_b32 v{SW_+s}, {hex(DUMMY)}")
        a.e(f"K2_RE{uid[0]}:")
    a.e(f"v_mov_b32 v{vC4}, 4")
    signal(vC4, K2_FS)
    a.e(f"s_mov_b32 s{sTG}, 32")
    if cfg.get('k2_cprio', 0): a.e(f"s_setprio {cfg['k2_cprio']}")
    a.e("K2_CLOOP:")
    a.e(f"ds_read_b64 {vr(TB,2)}, v{vZERO} offset:{K2_FS}")
    a.e(f"s_mov_b32 s{sCNP}, s{sCNT}")
    a.e(f"s_add_u32 s{sTG}, s{sTG}, 32")
    step(NS - 2, lambda p: sCNP, stub=True)
    stamp(7)
    a.e("K2_CPOLL:")
    a.e(f"v_readfirstlane_b32 s{sT0}, v{TB}")
    a.e(f"v_readfirstlane_b32 s{sN}, v{TB+1}")
    a.e(f"s_cmp_lt_u32 s{sT0}, s{sTG}")
    a.e("s_cbranch_scc1 K2_CPOLL2")
    stamp(8)
    a.e(f"s_and_b32 s{sLAST}, s{sN}, 1")
    a.e(f"s_add_u32 s{sT0}, s{sN}, 252")
    a.e(f"s_lshr_b32 s{sT0}, s{sT0}, 8")
    a.e(f"s_mul_i32 s{sT1}, s{sT0}, s{sWAVE}")
    a.e(f"s_add_u32 s{sT0}, s{sT1}, s{sT0}")
    a.e(f"s_lshr_b32 s{sT1}, s{sT1}, 3")
    a.e(f"s_lshr_b32 s{sT0}, s{sT0}, 3")
    a.e(f"s_sub_u32 s{sCNT}, s{sT0}, s{sT1}")
    a.e(f"s_lshl_b32 s{sT1}, s{sT1}, 7")
    a.e(f"s_add_u32 s{sT0}, s{sT1}, {K2_SA}")
    a.e(f"s_lshl_b32 s{sT1}, s{sT1}, 1")
    a.e(f"s_add_u32 s{sT1}, s{sT1}, {K2_SW}")
    a.e(f"v_lshl_add_u32 v{vA4}, v{vLANE}, 2, s{sT1}")
    a.e(f"v_lshl_add_u32 v{vA2}, v{vLANE}, 1, s{sT0}")
    a.e(f"s_cmp_lt_u32 s{sCNT}, {NS-1}")
    a.e("s_cbranch_scc1 K2_RSLOW")
    for s in range(NS - 1):
        a.e(f"ds_read_b32 v{SW_+s}, v{vA4} offset:{256*s}")
        a.e(f"ds_read_u16_d16_hi v{SA_+s}, v{vA2} offset:{128*s}")
    a.e("K2_RDONE:")
    step(NS - 1, lambda p: sCNP, stub=True)
    readslot(NS - 1)
    a.e(f"s_cmp_gt_u32 s{sCNT}, {NS}")
    a.e("s_cbranch_scc1 K2_EXTRA")
    a.e("K2_NOEXTRA:")
    signal(vC4, K2_FR)
    assert D < NS - LATE
    for s in range(NS - LATE):
        if TRACE and s in cfg.get('trace_steps', [0, 4, 8]): stamp(9)
        step(s, lambda p: sCNP if p >= NS - D else sCNT, mid=(lambda: fdone(f"s{sTG}")) if s == D else None)
    a.e(f"s_cmp_eq_u32 s{sLAST}, 0")
    a.e("s_cbranch_scc1 K2_CLOOP")
    step(NS - 2, lambda p: sCNT)
    step(NS - 1, lambda p: sCNT)
    for i in range(D):
        p = NS - D + i
        uid[0] += 1
        u = uid[0]
        a.e(f"s_cmp_le_u32 s{sCNT}, {p}")
        a.e(f"s_cbranch_scc1 K2_SB{u}")
        beta(cur(p), D - 1 - i)
        a.e(f"K2_SB{u}:")
    fdone("0x7fffffff")
    stamp(10)
    a.e("s_waitcnt lgkmcnt(0)")
    a.e("s_barrier")
    if cfg.get('x_dump'):
        a.e(f"s_mul_i32 s{sT0}, s{sB}, {13*8192}")
        a.e(f"s_add_u32 s{sT0}, s{sT0}, 0x6000000")
        a.e(f"v_lshlrev_b32 v{TB+8}, 4, v{vCT}")
        for k in range(13):
            a.e(f"ds_read_b128 {vr(TB+4,4)}, v{TB+8}")
            a.e("s_waitcnt lgkmcnt(0)")
            a.e(f"buffer_store_dwordx4 {vr(TB+4,4)}, v{TB+8}, s[{S_WS}:{S_WS+3}], s{sT0} offen")
            a.e("s_waitcnt vmcnt(0)")
            a.e(f"v_add_u32 v{TB+8}, 8192, v{TB+8}")
    a.e("s_barrier")
    a.e(f"ds_read_b32 v{vCK}, v{vZERO} offset:{K2_VI}")
    a.e("s_waitcnt vmcnt(0) lgkmcnt(0)")
    a.e(f"v_cmp_ne_u32 vcc, 0, v{vCK}")
    a.e("s_cbranch_vccz K2_FIN")
    RR, QL, vI, vE, vTL, PW, CC2, GM = 6, 32, 22, 23, 24, 26, 30, 40
    a.e(f"s_and_b32 s{sT0}, s{sB}, 127")
    a.e(f"s_lshl_b32 s{sT0}, s{sT0}, 4")
    a.e(f"v_mul_u32_u24 v{vI}, {REC_STR}, v{vCT}")
    a.e(f"v_add_u32 v{vI}, s{sT0}, v{vI}")
    a.e(f"s_mov_b32 s{sT0}, {REC_OFF}")
    for q in range(4):
        a.e(f"buffer_load_dwordx4 {vr(QL+4*q,4)}, v{vI}, s[{S_WS}:{S_WS+3}], s{sT0} offen offset:{(q>>1)*2048 + (q&1)*16}")
    for k in range(4):
        a.e(f"v_mov_b32 v{TB+4+k}, 0")
    a.e(f"v_lshlrev_b32 v{TB+8}, 4, v{vCT}")
    fill(True)
    a.e(f"s_mov_b32 s{sT0}, {cfg.get('tile_s', TILE_B)}")
    a.e(f"v_mul_lo_u32 v{vTL}, v{vCT}, s{sT0}")
    a.e(f"s_mov_b32 s{sT1}, 0x07060302")
    a.e(f"v_mov_b32 v{vI}, 0")
    a.e("s_waitcnt vmcnt(0)")
    for k in range(16):
        b_ = QL + 8 * (k >> 3) + ((k & 7) >> 1)
        a.e(f"v_perm_b32 v{RR+k}, v{b_+4}, v{b_}, s{sT1 if k & 1 else sSEL}")
        a.e(f"v_sub_u32_sdwa v{vE}, v{RR+k}, v{RR+k} dst_sel:DWORD dst_unused:UNUSED_PAD src0_sel:WORD_1 src1_sel:WORD_0")
        a.e(f"v_add_u32 v{vI}, v{vI}, v{vE}")
    a.e(f"ds_add_u32 v{vZERO}, v{vI} offset:{K2_NB}")
    a.e("s_waitcnt lgkmcnt(0)")
    a.e("s_barrier")
    a.e(f"ds_read_b32 v{t}, v{vZERO} offset:{K2_NB}")
    a.e(f"s_lshr_b32 s{sT1}, s{sB}, 7")
    a.e(f"s_mul_i32 s{sT1}, s{sT1}, {EPB}")
    a.e(f"s_sub_u32 s{sLAST}, {EPB}, s{sT1}")
    a.e(f"s_mov_b32 s{sJ}, 0")
    a.e("s_waitcnt lgkmcnt(0)")
    a.e(f"v_cvt_f32_u32 v{t}, v{t}")
    a.e(f"v_mul_f32 v{t}, s{sMX}, v{t}")
    a.e(f"v_rcp_f32 v{t}, v{t}")
    a.e(f"v_mul_f32 v{t}, 0x4efc0000, v{t}")
    setscale(t)
    a.e("K2_SJ:")
    a.e(f"s_lshr_b32 s{sT1}, s{sJ}, 3")
    mdsrd(f"s{sT1}")
    a.e(f"v_and_b32 v{vI}, 0xffff, v{RR}")
    a.e(f"v_lshrrev_b32 v{vE}, 16, v{RR}")
    for k in range(15):
        a.e(f"v_mov_b32 v{RR+k}, v{RR+k+1}")
    a.e("K2_SI:")
    a.e(f"v_cmp_lt_u32 vcc, v{vI}, v{vE}")
    a.e("s_cbranch_vccz K2_SN")
    a.e(f"s_mov_b64 exec, vcc")
    a.e(f"v_lshrrev_b32 v{GM}, 1, v{vI}")
    a.e(f"v_mad_u32_u24 v{GM}, v{GM}, 12, v{vTL}")
    a.e(f"buffer_load_dwordx3 {vr(PW,3)}, v{GM}, s[{S_WS}:{S_WS+3}], 0 offen")
    a.e(f"v_and_b32 v{GM}, 1, v{vI}")
    a.e(f"v_cmp_eq_u32 vcc, 1, v{GM}")
    a.e(f"v_add_u32 v{vI}, 1, v{vI}")
    a.e("s_waitcnt vmcnt(0)")
    a.e(f"v_cndmask_b32 v{PW}, v{PW}, v{PW+2}, vcc")
    a.e(f"v_lshlrev_b32 v{PW+2}, 16, v{PW+1}")
    a.e(f"v_and_b32 v{PW+1}, s{sHI}, v{PW+1}")
    a.e(f"v_cndmask_b32 v{PW+1}, v{PW+2}, v{PW+1}, vcc")
    a.e(f"v_and_b32 v{GM+2}, {hex(IDXM)}, v{PW}")
    a.e(f"buffer_load_dwordx2 {vr(GM,2)}, v{GM+2}, s[{S_MD}:{S_MD+3}], 0 idxen")
    cosines(PW + 1, CC2, None, 2)
    a.e(f"v_lshrrev_b32 v{PW}, 19, v{PW}")
    a.e(f"v_subrev_u32 v{PW}, s{sLAST}, v{PW}")
    a.e(f"v_cmp_gt_u32 vcc, {EPB}, v{PW}")
    a.e(f"v_lshlrev_b32 v{PW}, 2, v{PW}")
    a.e(f"v_add_u32 v{PW+1}, {STR2}, v{PW}")
    a.e("s_waitcnt vmcnt(0)")
    unpack(TB + 4, GM)
    for l in range(2):
        for q in range(2):
            a.e(f"v_pk_mul_f32 {vr(TB+8+4*l+2*q,2)}, {vr(TB+4+2*q,2)}, {vr(CC2+2*l,2)} op_sel_hi:[1,0]")
    for q in range(8):
        a.e(f"v_cvt_rpi_i32_f32 v{TB+8+q}, v{TB+8+q}")
    a.e(f"s_mov_b64 exec, vcc")
    for q in range(8):
        a.e(f"ds_add_u32 v{PW+(q>>2)}, v{TB+8+q} offset:{ACC + (q&3)*ACC_STR}")
    a.e(f"s_mov_b64 exec, -1")
    a.e("s_branch K2_SI")
    a.e("K2_SN:")
    a.e(f"s_add_u32 s{sJ}, s{sJ}, 1")
    a.e(f"s_cmp_lt_u32 s{sJ}, 16")
    a.e("s_cbranch_scc1 K2_SJ")
    a.e("s_waitcnt lgkmcnt(0)")
    a.e("s_barrier")
    a.e("s_branch K2_FIN")

    for u in stubs:
        a.e(f"K2_ST{u}:")
        a.e("s_waitcnt lgkmcnt(0)")
        a.e(f"s_branch K2_SB{u}")
    a.e("K2_CPOLL2:")
    if cfg.get('k2_cslp', 0): a.e(f"s_sleep {cfg['k2_cslp']}")
    a.e(f"ds_read_b64 {vr(TB,2)}, v{vZERO} offset:{K2_FS}")
    a.e("s_waitcnt lgkmcnt(0)")
    a.e("s_branch K2_CPOLL")
    a.e("K2_RSLOW:")
    for s in range(NS - 1):
        readslot(s)
    a.e("s_branch K2_RDONE")
    a.e("K2_EXTRA:")
    XW, XC = TB, cur(0)
    for s in range(NS, 16):
        if s > NS:
            a.e(f"s_cmp_le_u32 s{sCNT}, {s}")
            a.e("s_cbranch_scc1 K2_NOEXTRA")
        a.e(f"v_mov_b32 v{XW+1}, 0")
        a.e(f"ds_read_b32 v{XW}, v{vA4} offset:{256*s}")
        a.e(f"ds_read_u16_d16_hi v{XW+1}, v{vA2} offset:{128*s}")
        a.e("s_waitcnt lgkmcnt(0)")
        alpha1(XW, XC)
        alpha2(XW, XW + 1, XC)
        beta(XC, 0)
    a.e("s_branch K2_NOEXTRA")

    a.e("K2_FIN:")
    if TRACE:
        a.e("s_waitcnt vmcnt(0)")
        stamp(10)
        a.e(f"s_cmp_lg_u32 s2, {cfg.get('trace_wg', 77)}")
        a.e("s_cbranch_scc1 K2_END")
        a.e(f"s_load_dwordx2 s[{S_X}:{S_X+1}], s[0:1], 96")
        a.e(f"s_mov_b32 s{S_X+2}, 4096")
        a.e(f"s_mov_b32 s{S_X+3}, 0x00020000")
        a.e("s_waitcnt lgkmcnt(0)")
        a.e(f"v_lshlrev_b32 v1, 2, v0")
        a.e(f"buffer_store_dword v{vTR}, v1, s[{S_X}:{S_X+3}], 0 offen")
    if cfg.get('rt'): rt_end(a, 1, S_X)
    a.e("K2_END:")
    a.e("s_endpgm")
    return fix_hazards(a.lines)
```

```python
from asmlib import *
from consts import *
from k1 import dpp_scan, rt_end

def gen_k1(cfg):
    a = Asm()
    LDNT = " nt" if cfg.get('k1_ld_nt', True) else ""
    STNT = cfg.get('k1_st', "")
    DEP = cfg.get('k1_dep', 4)
    NR = 12
    H2 = cfg.get('k2v', 'b') in 'cde'
    H3 = cfg.get('k2v', 'b') in 'de'
    SPLIT = cfg.get('split', cfg.get('k2v') != 'e')
    sM6 = 61
    S_IN, S_OUT, S_ANG, S_WS, S_M = 4, 8, 12, 16, 20
    S_WD = 28
    S_WP = 36
    sWAVE, sMB, sMJ, sNEG, sT0, sT1, sT2, sBASE, sOOB = 44, 45, 46, 47, 48, 49, 50, 51, 52
    sTOFF4, sTOFF2, sPAY, sREC, sR6, sHI, sK = 54, 55, 56, 57, 58, 59, 60
    vOFF16, vOFF8, vINC, vZERO, vX, vY, vZ = 1, 2, 3, 4, 5, 6, 7
    def RIN(r): return 8 + 8 * r if r < NR else 104
    def ROUT(r): return 12 + 8 * r if r < NR else 105
    RING = 106
    def RANG(r): return RING + 2 * (r % DEP)
    TMP = 116
    assert RING + 2 * DEP <= TMP
    TRACE = cfg.get('trace1', False)
    vTR, sPT, sPA = 127, 88, 90
    def stamp(i):
        if not TRACE: return
        if i < 0:
            a.e(f"s_mov_b32 s{sPA}, 0")
            a.e(f"v_mov_b32 v{vTR}, 0")
            i = 15
        a.e(f"s_memtime s[{sPT}:{sPT+1}]")
        a.wlg0()
        a.e(f"s_andn2_b32 s{sPT}, s{sPT}, 15")
        a.e(f"s_or_b32 s{sPT}, s{sPT}, {i}")
        a.e(f"s_mov_b32 m0, s{sPA}")
        a.e(f"s_add_u32 s{sPA}, s{sPA}, 1")
        a.e(f"v_writelane_b32 v{vTR}, s{sPT}, m0")

    a.e(f"s_cmp_ge_u32 s2, {NWG}")
    a.e("s_cbranch_scc1 K1_END")
    stamp(-1)
    if cfg.get('rt'): a.e("s_memrealtime s[96:97]")
    a.e(f"s_load_dwordx2 s[{S_IN}:{S_IN+1}], s[0:1], 8")
    a.e(f"s_load_dwordx2 s[{S_OUT}:{S_OUT+1}], s[0:1], 16")
    a.e(f"s_load_dwordx2 s[{S_ANG}:{S_ANG+1}], s[0:1], 32")
    a.e(f"s_load_dwordx2 s[{S_WS}:{S_WS+1}], s[0:1], 104")
    a.e(f"s_load_dwordx2 s[{S_M}:{S_M+1}], s[0:1], 0")
    a.e(f"s_load_dwordx2 s[24:25], s[0:1], 72")
    for s, n in ((S_IN, T * 4), (S_OUT, T * 4), (S_ANG, T * 2), (S_WS, WS_BYTES), (S_M, E * 8)):
        a.e(f"s_mov_b32 s{s+2}, {n}")
        a.e(f"s_mov_b32 s{s+3}, 0x00020000")
    a.e(f"v_lshrrev_b32 v{vX}, 6, v0")
    a.e(f"v_readfirstlane_b32 s{sWAVE}, v{vX}")
    a.e(f"v_mov_b32 v{vZERO}, 0")
    a.e(f"v_mov_b32 v{vX}, 0")
    a.e(f"v_lshlrev_b32 v{vY}, 3, v0")
    a.e(f"ds_write_b64 v{vY}, {vr(vZERO,2)}")
    a.e(f"v_and_b32 v{vY}, 0x78, v{vY}")
    a.e(f"ds_write_b64 v{vY}, {vr(vZERO,2)} offset:{K1B_MISC}")
    a.e(f"v_and_b32 v0, 511, v0")
    a.e(f"v_lshlrev_b32 v{vOFF16}, 4, v0")
    a.e(f"v_lshlrev_b32 v{vOFF8}, 3, v0")
    a.e(f"s_mov_b32 s{sMB}, {MB * 2 if H2 else MB}")
    a.e(f"s_mov_b32 s{sMJ}, {cfg.get('mj', MJ) * 2 if H2 else MJ}")
    if H2: a.e(f"s_mov_b32 s{sM6}, {cfg.get('m6', M6)}")
    a.e(f"s_mov_b32 s{sNEG}, {-EPB}")
    a.e(f"s_mov_b32 s{sOOB}, 0x80000000")
    a.e(f"s_mov_b32 s{sHI}, 0xffff0000")
    a.e(f"s_mov_b32 s{sK}, {K1B_TILE}")
    a.e(f"s_lshr_b32 s{sBASE}, s{sWAVE}, 3")
    a.e(f"s_and_b32 s{sWAVE}, s{sWAVE}, 7")
    a.e(f"s_lshl_b32 s{sT0}, s{sBASE}, 8")
    a.e(f"s_add_u32 s{sT0}, s{sT0}, s2")
    a.e(f"s_mul_i32 s{sPAY}, s{sT0}, {TILE_B}")
    a.e(f"s_mul_i32 s{sREC}, s{sT0}, {REC_STR}")
    a.e(f"s_add_u32 s{sREC}, s{sREC}, {REC_OFF}")
    a.e(f"s_mul_i32 s{sT1}, s{sT0}, 3125")
    a.e(f"s_add_u32 s{sT2}, s{sT1}, 3125")
    a.e(f"s_lshr_b32 s{sT1}, s{sT1}, 3")
    a.e(f"s_lshr_b32 s{sT2}, s{sT2}, 3")
    a.e(f"s_sub_u32 s{sT2}, s{sT2}, s{sT1}")
    a.e(f"s_sub_u32 s{sT2}, s{sT2}, 384")
    a.e(f"s_lshl_b32 s{sTOFF4}, s{sT1}, 8")
    a.e(f"s_lshl_b32 s{sTOFF2}, s{sT1}, 7")
    a.e(f"s_cmp_lt_u32 s{sWAVE}, s{sT2}")
    a.e(f"s_cselect_b32 s{sR6}, 0, s{sOOB}")
    a.e("s_waitcnt lgkmcnt(0)")
    a.e("s_barrier")
    a.e(f"s_cmp_lg_u32 s{sBASE}, 0")
    a.e("s_cbranch_scc1 K1_Q")

    def loads(r):
        a.e(f"s_add_u32 s{sT0}, s{sTOFF4}, {r * 8192}")
        a.e(f"s_add_u32 s{sT1}, s{sTOFF2}, {r * 4096}")
        if r < NR:
            a.vmem(f"buffer_load_dwordx4 {vr(RIN(r),4)}, v{vOFF16}, s[{S_IN}:{S_IN+3}], s{sT0} offen{LDNT}", ('L', r))
            a.vmem(f"buffer_load_dwordx4 {vr(ROUT(r),4)}, v{vOFF16}, s[{S_OUT}:{S_OUT+3}], s{sT0} offen{LDNT}", ('L', r))
            a.vmem(f"buffer_load_dwordx2 {vr(RANG(r),2)}, v{vOFF8}, s[{S_ANG}:{S_ANG+3}], s{sT1} offen{LDNT}", ('A', r))
        else:
            a.e(f"v_lshl_or_b32 v{TMP+8}, v0, 2, s{sR6}")
            a.e(f"v_lshl_or_b32 v{TMP+9}, v0, 1, s{sR6}")
            a.vmem(f"buffer_load_dword v{RIN(r)}, v{TMP+8}, s[{S_IN}:{S_IN+3}], s{sT0} offen{LDNT}", ('L', r))
            a.vmem(f"buffer_load_dword v{ROUT(r)}, v{TMP+8}, s[{S_OUT}:{S_OUT+3}], s{sT0} offen{LDNT}", ('L', r))
            a.vmem(f"buffer_load_ushort v{RANG(r)}, v{TMP+9}, s[{S_ANG}:{S_ANG+3}], s{sT1} offen{LDNT}", ('A', r))

    def hist(r):
        a.wvm(('L', r))
        n = 4 if r < NR else 1
        if r == NR:
            a.e(f"s_cmp_eq_u32 s{sR6}, 0")
            a.e(f"s_cselect_b64 exec, -1, 0")
        for k in range(n):
            vi, vo, t0, t1 = RIN(r) + k, ROUT(r) + k, TMP + k, TMP + 4 + k
            if H2:
                t2 = vX + (k & 1)
                a.e(f"v_mul_hi_u32_u24 v{t0}, s{sMB}, v{vo}")
                a.e(f"v_mul_hi_u32_u24 v{t1}, s{sMJ}, v{vi}")
                if SPLIT:
                    a.e(f"v_mul_hi_u32_u24 v{t2}, s{sM6}, v{vi}")
                a.e(f"v_lshlrev_b32 v{vo}, 1, v{vo}")
                if SPLIT:
                    a.e(f"v_bfi_b32 v{t1}, v{t2}, v{t0}, v{t1}")
                a.e(f"v_and_b32 v{t0}, 0x1fc, v{t0}")
                a.e(f"v_bfi_b32 v{t1}, 1, v{vi}, v{t1}")
                a.e(f"v_mad_i32_i24 v{vo}, v{t0}, s{sNEG}, v{vo}")
                a.e(f"v_lshrrev_b32 v{vi}, 1, v{vi}")
                a.e(f"v_lshl_or_b32 v{t0}, v{t1}, 9, v{t0}")
                a.e(f"v_lshl_or_b32 v{vi}, v{vo}, 18, v{vi}")
                a.e(f"ds_add_u32 v{t0}, v{vINC}")
                continue
            a.e(f"v_mul_hi_u32 v{t0}, v{vo}, s{sMB}")
            a.e(f"v_mul_hi_u32 v{t1}, v{vi}, s{sMJ}")
            a.e(f"v_mad_i32_i24 v{vo}, v{t0}, s{sNEG}, v{vo}")
            a.e(f"v_lshlrev_b32 v{t0}, 2, v{t0}")
            a.e(f"v_lshl_or_b32 v{vi}, v{vo}, 20, v{vi}")
            a.e(f"v_lshl_add_u32 v{t0}, v{t1}, 10, v{t0}")
            a.e(f"ds_add_u32 v{t0}, v{vINC}")
        a.wvm(('A', r))
        for k in range(n):
            if k & 1:
                a.e(f"v_and_or_b32 v{ROUT(r)+k}, v{RANG(r)+(k>>1)}, s{sHI}, v{TMP+k}")
            else:
                a.e(f"v_lshl_or_b32 v{ROUT(r)+k}, v{RANG(r)+(k>>1)}, 16, v{TMP+k}")
        if r == NR:
            a.e("s_mov_b64 exec, -1")

    def group(g):
        nsync = [0]
        def sync():
            if g == 1 and not cfg.get('pad'):
                a.barrier(); return
            if g == 1:
                off = K1B_FLAG + 16 + 4 * nsync[0]
                nsync[0] += 1
                a.e(f"v_mov_b32 v{vZ}, 1")
                a.e("s_mov_b64 exec, 1")
                a.e(f"ds_add_u32 v{vZERO}, v{vZ} offset:{off}")
                a.e("s_mov_b64 exec, -1")
                a.e(f"K1_QL{nsync[0]}:")
                a.e(f"ds_read_b32 v{vZ}, v{vZERO} offset:{off}")
                a.wlg0()
                a.e(f"v_readfirstlane_b32 s{sT0}, v{vZ}")
                a.e(f"s_cmp_lt_u32 s{sT0}, {16 if nsync[0] == 1 else 8}")
                a.e(f"s_cbranch_scc1 K1_QL{nsync[0]}")
                return
            off = K1B_FLAG + 4 * nsync[0]
            nsync[0] += 1
            a.e("s_mov_b64 exec, 1")
            a.e(f"ds_add_u32 v{vZERO}, v{vINC} offset:{off}")
            a.e("s_mov_b64 exec, -1")
            a.e(f"K1_PL{nsync[0]}:")
            a.e(f"ds_read_b32 v{vZ}, v{vZERO} offset:{off}")
            a.wlg0()
            a.e(f"v_readfirstlane_b32 s{sT0}, v{vZ}")
            a.e(f"s_cmp_lt_u32 s{sT0}, 8")
            a.e(f"s_cbranch_scc1 K1_PL{nsync[0]}")
        a.e(f"v_mov_b32 v{vINC}, {1 if g == 0 else 0x10000}")
        for r in range(DEP):
            loads(r)
        for r in range(NR + 1):
            hist(r)
            if r + DEP <= NR: loads(r + DEP)
            if r in (3, 7): stamp(1)
        stamp(2)
        sync()
        stamp(3)
        C, SS, W0 = 108, 112, 116
        a.e(f"ds_read_b128 {vr(C,4)}, v{vOFF16}")
        if g == 1:
            a.e(f"ds_read_b64 {vr(W0,2)}, v{vZERO} offset:{K1B_MAXC}" if H3 else f"ds_read_b32 v{W0+1}, v{vZERO} offset:{K1B_MAXC}")
            a.e(f"s_lshl_b32 s{sT0}, s2, {3 if H3 else 2}")
            a.e(f"v_mov_b32 v{W0+2}, s{sT0}")
            a.e(f"v_mov_b32 v{W0+3}, s{sOOB}")
            a.e(f"v_cmp_eq_u32 vcc, 0, v0")
            a.e(f"v_cndmask_b32 v{W0+2}, v{W0+3}, v{W0+2}, vcc")
            a.e(f"s_mov_b32 s{sT0}, {MX_OFF}")
        a.e("s_waitcnt lgkmcnt(0)")
        if g == 1:
            a.vmem(f"buffer_store_dword{'x2' if H3 else ''} {vr(W0,2) if H3 else vr(W0+1)}, v{W0+2}, s[{S_WS}:{S_WS+3}], s{sT0} offen{STNT}", 'S')
        for k in range(4):
            a.e(f"v_and_b32 v{C+k}, 0xffff, v{C+k}" if g == 0 else f"v_lshrrev_b32 v{C+k}, 16, v{C+k}")
        a.e(f"v_add_u32 v{SS}, v{C}, v{C+1}")
        a.e(f"v_add3_u32 v{SS}, v{SS}, v{C+2}, v{C+3}")
        a.e(f"v_mov_b32 v{SS+1}, v{SS}")
        dpp_scan(a, SS)
        a.e(f"s_lshl_b32 s{sT0}, s{sWAVE}, 2")
        a.e(f"v_mov_b32 v{W0}, s{sT0}")
        a.e("s_lshl_b64 exec, 1, 63")
        a.e(f"ds_write_b32 v{W0}, v{SS} offset:{K1B_WTOT}")
        a.e("s_mov_b64 exec, -1")
        a.e(f"v_sub_u32 v{SS}, v{SS}, v{SS+1}")
        a.e(f"v_and_b32 v{W0+4}, 7, v0")
        a.e(f"v_lshlrev_b32 v{W0}, 2, v{W0+4}")
        a.e(f"v_and_b32 v{W0+6}, 63, v0")
        a.e(f"s_lshl_b32 s{sT1}, s{sWAVE}, 1")
        a.e(f"v_lshl_add_u32 v{W0+6}, v{W0+6}, 6, s{sT1}")
        sync()
        a.e(f"ds_read_b32 v{W0+5}, v{W0} offset:{K1B_WTOT}")
        a.e(f"v_cmp_gt_u32 vcc, s{sWAVE}, v{W0+4}")
        a.e("s_waitcnt lgkmcnt(0)")
        a.e(f"v_cndmask_b32 v{W0+5}, 0, v{W0+5}, vcc")
        for sh in (1, 2, 4):
            a.e(f"v_add_u32_dpp v{W0+5}, v{W0+5}, v{W0+5} row_shr:{sh} row_mask:0xf bank_mask:0xf bound_ctrl:0")
        a.e(f"v_readlane_b32 s{sBASE}, v{W0+5}, 7")
        a.e(f"v_add_u32 v{W0}, s{sBASE}, v{SS}")
        for k in range(4):
            a.e(f"v_add_u32 v{W0+1+k}, v{W0+k}, v{C+k}")
        if g == 0:
            for k in range(4):
                a.e(f"v_sub_u32 v{C+k}, v{W0+k}, v{C+k}")
            for k in range(4):
                a.e(f"ds_add_u32 v{vOFF16}, v{C+k} offset:{4*k}")
        else:
            for k in range(4):
                a.e(f"v_mad_u32_u24 v{C+k}, v{W0+k}, 6, s{sK}")
            a.e(f"ds_write_b128 v{vOFF16}, {vr(C,4)}")
            a.e(f"v_mov_b32 v{vINC}, 6")
        for k in range(5):
            a.e(f"ds_write_b16 v{W0+6}, v{W0+k} offset:{K1B_STG + 16*k}")
        sync()
        stamp(4)
        U = [106, 110]
        WA, AA = 114, 118
        RS = 120
        a.lds(f"ds_read_b128 {vr(RS,4)}, v{vOFF16} offset:{K1B_STG}", 'RS')
        def rtn(r):
            n = 4 if r < NR else 1
            for k in range(n):
                a.e(f"v_and_b32 v{U[r&1]+k}, 0xffff, v{ROUT(r)+k}")
            if r == NR:
                a.e(f"s_cmp_eq_u32 s{sR6}, 0")
                a.e(f"s_cselect_b64 exec, -1, 0")
            for k in range(n):
                a.lds(f"ds_add_rtn_u32 v{U[r&1]+k}, v{U[r&1]+k}, v{vINC}", ('R', r))
            if r == NR:
                a.e("s_mov_b64 exec, -1")
        rtn(0)
        a.e(f"v_cmp_gt_u32 vcc, 257, v0")
        a.e(f"v_mov_b32 v{vX}, s{sOOB}")
        a.e(f"v_cndmask_b32 v{vX}, v{vX}, v{vOFF16}, vcc")
        a.wlg('RS')
        a.vmem(f"buffer_store_dwordx4 {vr(RS,4)}, v{vX}, s[{S_WS}:{S_WS+3}], s{sREC} offen{STNT}", 'S')
        for r in range(NR + 1):
            n = 4 if r < NR else 1
            if r + 1 <= NR: rtn(r + 1)
            a.wlg(('R', r))
            for k in range(n):
                u, wa, aa = U[r & 1] + k, WA + k, AA + k
                if g == 0:
                    a.e(f"v_mad_u32_u16 v{u}, v{u}, 6, s{sK}")
                a.e(f"v_and_b32 v{aa}, 2, v{u}")
                a.e(f"v_add_u32 v{wa}, v{u}, v{aa}")
                a.e(f"v_mad_i32_i24 v{aa}, v{aa}, -2, v{u}")
            if r == NR:
                a.e(f"s_cmp_eq_u32 s{sR6}, 0")
                a.e(f"s_cselect_b64 exec, -1, 0")
            for k in range(n):
                a.lds(f"ds_write_b32 v{WA+k}, v{RIN(r)+k}")
                a.lds(f"ds_write_b16_d16_hi v{AA+k}, v{ROUT(r)+k} offset:4")
            if r == NR:
                a.e("s_mov_b64 exec, -1")
        LB = [vX, vY, vZ + 0]
        stamp(5)
        sync()
        stamp(6)
        NQ = 19
        LBR = [116, 117, 118]
        for h in range(3):
            a.e(f"v_add_u32 v{LBR[h]}, {K1B_TILE + 65536*h}, v{vOFF16}")
        a.e(f"v_cmp_gt_u32 vcc, {(TILE_B - 18*8192)//16}, v0")
        a.e(f"v_mov_b32 v{vX}, s{sOOB}")
        a.e(f"v_cndmask_b32 v{vX}, v{vX}, v{vOFF16}, vcc")
        a.e(f"v_cndmask_b32 v{vY}, v{LBR[0]}, v{LBR[2]}, vcc")
        def rd(q):
            a.lds(f"ds_read_b128 {vr(8+4*q,4)}, v{LBR[q>>3] if q < 18 else vY} offset:{(q&7)*8192}", ('W', q))
        for q in range(8): rd(q)
        for q in range(NQ):
            if q + 8 < NQ: rd(q + 8)
            a.wlg(('W', q))
            a.e(f"s_add_u32 s{sT2}, s{sPAY}, {q*8192}")
            a.vmem(f"buffer_store_dwordx4 {vr(8+4*q,4)}, v{vOFF16 if q < 18 else vX}, s[{S_WS}:{S_WS+3}], s{sT2} offen{STNT}", 'S')
        stamp(7)

    def trace_end(g):
        if TRACE:
            a.wvm0()
            stamp(8)
            a.e(f"s_cmp_lg_u32 s2, {cfg.get('trace_wg', 77)}")
            a.e("s_cbranch_scc1 K1_END")
            a.e(f"s_load_dwordx2 s[{S_M}:{S_M+1}], s[0:1], 96")
            a.e(f"s_mov_b32 s{S_M+2}, 4096")
            a.e("s_waitcnt lgkmcnt(0)")
            a.e(f"v_lshlrev_b32 v1, 2, v0")
            a.e(f"buffer_store_dword v{vTR}, v1, s[{S_M}:{S_M+3}], 0 offen offset:{2048*g}")

    if cfg.get('k1_pprio', 1): a.e(f"s_setprio {cfg.get('k1_pprio', 1)}")
    group(0)
    PFA = cfg.get('k1_pf', -1)
    def codepf():
        KN = "standalone__molecular_angular_gemnet__graph_kernel"
        a.e(f"s_getpc_b64 s[{S_M}:{S_M+1}]")
        a.e("K1_PC:")
        a.e(f"s_add_u32 s{S_M}, s{S_M}, {KN}-K1_PC")
        a.e(f"s_addc_u32 s{S_M+1}, s{S_M+1}, 0")
        a.e(f"s_mov_b32 s{S_M+2}, K2_END-{KN}")
        for q in range(5):
            a.e(f"s_mov_b32 s{sT0}, {8192*q}")
            a.e(f"buffer_load_dwordx4 {vr(88+4*q,4)}, v{vOFF16}, s[{S_M}:{S_M+3}], s{sT0} offen")
    if cfg.get('pad'):
        a.e("s_mov_b64 exec, 1")
        a.e(f"ds_add_u32 v{vZERO}, v{vINC} offset:{K1B_FLAG + 16}")
        a.e("s_mov_b64 exec, -1")
        a.e("s_setprio 0")
        if PFA >= 0: codepf()
        a.e("s_waitcnt vmcnt(0) lgkmcnt(0)")
        a.e("s_mov_b64 exec, 0")
        for w in range(7):
            a.e(f"s_cmp_eq_u32 s{sWAVE}, {w}")
            a.e(f"s_cbranch_scc1 K2_W{w}")
        a.e("s_branch K2_W7")
        PFA = -1
    for i_ in range(0 if cfg.get('pad') else 5 if cfg.get('rt') else 4):
        if i_ == PFA: codepf()
        a.e("s_barrier")
    if PFA == 4 and not cfg.get('rt'): codepf()
    if PFA >= 0: a.e("s_waitcnt vmcnt(0)")
    trace_end(0)
    a.e("s_endpgm")
    a.vm = []; a.lg = []

    a.e("K1_Q:")
    a.e("s_setprio 3")
    a.e(f"s_load_dwordx8 s[{S_WD}:{S_WD+7}], s[24:25], 0")
    vM, vMO, D, vMAX = 8, 24, 32, 28
    a.e(f"s_mul_i32 s{sT0}, s2, {MD_WG_B}")
    a.e(f"v_add_u32 v{vMO}, s{sT0}, v{vOFF16}")
    for q in range(1, 4):
        a.e(f"v_add_u32 v{vMO+q}, {8192*q}, v{vMO}")
    a.e(f"v_mov_b32 v{vX}, s{sOOB}")
    a.e(f"v_cmp_gt_u32 vcc, {(MD_WG_B - 3*8192)//16}, v0")
    a.e(f"v_cndmask_b32 v{vMO+3}, v{vX}, v{vMO+3}, vcc")
    for q in range(4):
        a.vmem(f"buffer_load_dwordx4 {vr(vM+4*q,4)}, v{vMO+q}, s[{S_M}:{S_M+3}], 0 offen", ('M', q))
    a.e(f"v_mov_b32 v{vMAX}, 0")
    a.e("s_waitcnt lgkmcnt(0)")
    for d in range(4):
        for h in range(2):
            r0 = S_WD + 4 * h + (d >> 1); r1 = r0 + 2
            a.e(f"s_pack_{'hh' if d & 1 else 'll'}_b32_b16 s{S_WP + 2*d + h}, s{r0}, s{r1}")
    a.e(f"s_mov_b32 s{sT0}, {MD_OFF}")
    a.wvm(('M', 3))
    for ed in range(8):
        m01 = vM + 2 * ed
        for d in range(4):
            a.e(f"v_dot2_f32_bf16 v{D+4*ed+d}, v{m01}, s{S_WP+2*d}, 0")
        for d in range(4):
            a.e(f"v_dot2_f32_bf16 v{D+4*ed+d}, v{m01+1}, s{S_WP+2*d+1}, v{D+4*ed+d}")
    for ed in range(8):
        m01 = vM + 2 * ed
        a.e(f"v_max3_f32 v{vMAX}, abs(v{D+4*ed}), abs(v{D+4*ed+1}), v{vMAX}")
        a.e(f"v_max3_f32 v{vMAX}, abs(v{D+4*ed+2}), abs(v{D+4*ed+3}), v{vMAX}")
        a.e(f"v_cvt_pk_bf16_f32 v{m01}, v{D+4*ed}, v{D+4*ed+1}")
        a.e(f"v_cvt_pk_bf16_f32 v{m01+1}, v{D+4*ed+2}, v{D+4*ed+3}")
    if H2:
        a.e(f"s_mov_b32 s{sT1}, {MD_OFF + MD_TSTR}")
        for q in range(4):
            a.e(f"v_lshrrev_b32 v{vMO+q}, 1, v{vMO+q}")
        for q in range(4):
            a.vmem(f"buffer_store_dwordx2 {vr(vM+4*q,2)}, v{vMO+q}, s[{S_WS}:{S_WS+3}], s{sT0} offen{STNT}", 'S')
            a.vmem(f"buffer_store_dwordx2 {vr(vM+4*q+2,2)}, v{vMO+q}, s[{S_WS}:{S_WS+3}], s{sT1} offen{STNT}", 'S')
        a.e(f"s_lshl_b32 s{sT1}, s2, 7")
        a.e(f"s_add_u32 s{sT1}, s{sT1}, {FL_OFF}")
        a.e(f"v_cmp_gt_u32 vcc, 8, v0")
        a.e(f"v_cndmask_b32 v{vX}, v{vX}, v{vOFF16}, vcc")
        a.vmem(f"buffer_store_dword v{vZERO}, v{vX}, s[{S_WS}:{S_WS+3}], s{sT1} offen{STNT}", 'S')
    else:
      for q in range(4):
        a.vmem(f"buffer_store_dwordx4 {vr(vM+4*q,4)}, v{vMO+q}, s[{S_WS}:{S_WS+3}], s{sT0} offen{STNT}", 'S')
    if H3:
        for st in (16, 8, 4, 2, 1):
            for i in range(st):
                a.e(f"v_add_f32 v{D+i}, abs(v{D+i}), abs(v{D+i+st})")
        dpp_scan(a, D, "v_add_f32")
    dpp_scan(a, vMAX, "v_max_u32")
    a.e("s_lshl_b64 exec, 1, 63")
    if H3: a.e(f"ds_add_f32 v{vZERO}, v{D} offset:{K1B_MAXC+4}")
    a.e(f"ds_max_u32 v{vZERO}, v{vMAX} offset:{K1B_MAXC}")
    a.e("s_mov_b64 exec, -1")
    a.e("s_setprio 0")
    stamp(0)
    group(1)
    trace_end(1)
    if cfg.get('rt'): rt_end(a, 0, S_M)
    a.e("K1_END:")
    a.e("s_endpgm")
    return fix_hazards(a.lines)
```

```python
from asmlib import *
from consts import *
from k1 import dpp_scan, rt_end
import math, struct

NS = 13
DUMMY = (2 * EPB << 19) | 0x7FFFF
IDXM = 0x7FFFF
K2_BIG = 1024
K2_BASE = 1152
K2_NB = 2176
K2_SCR = 152576
LDS_BYTES = K2_SCR + 8192
XB_STR = 7 * 8192
K2_GI = K2_NB + 8
K2_VI = K2_NB + 12
K2_FS = K2_NB + 32
K2_NCELL = K2_FS + 4
K2_FH = K2_FS + 8
K2_DN = K2_FS + 12
K2_FP = K2_FS + 16
K2_FR = K2_FS + 20
ACC = 2304
STR2 = 2 * ACC2_STR
def f2h(x): return hex(struct.unpack('<I', struct.pack('<f', x))[0])
def h2f(x): return struct.unpack('<f', struct.pack('<I', x))[0]
KAP = math.sqrt(10.0 * math.log2(math.e))

def gen_k2(cfg):
    a = Asm()
    D = cfg.get('k2_d', 5)
    LATE = 2
    PPRIO = cfg.get('k2_pprio', 3)
    S_WS, S_MD, S_X, S_Y = 4, 8, 12, 16
    sWAVE, sB, sJ, sWIN, sTOT, sN, sCNT, sT0, sT1, sT2, sFFF8, sHI, sCNP, sOOB = range(20, 34)
    sM = 34
    sDN = 36
    sTG = 37
    sT7 = 38
    sMODE = 39
    puid = [0]
    def poll(vt, off, tgt, slp=None):
        puid[0] += 1
        SLP = cfg.get('k2_slp', 0) if slp is None else slp
        if SLP:
            a.e(f"s_branch K2_PM{puid[0]}")
        a.e(f"K2_PL{puid[0]}:")
        if SLP:
            a.e(f"s_sleep {SLP}")
            a.e(f"K2_PM{puid[0]}:")
        a.e(f"ds_read_b32 v{vt}, v{vZERO} offset:{off}")
        a.e("s_waitcnt lgkmcnt(0)")
        a.e(f"v_readfirstlane_b32 s{sT0}, v{vt}")
        a.e(f"s_cmp_lt_u32 s{sT0}, {tgt}")
        a.e(f"s_cbranch_scc1 K2_PL{puid[0]}")
    def signal(vone, off):
        a.e("s_mov_b64 exec, 1")
        a.e(f"ds_add_u32 v{vZERO}, v{vone} offset:{off}")
        a.e("s_mov_b64 exec, -1")
    MSK = 40
    sPT, sPA = 88, 91
    TRACE = cfg.get('trace', False)
    vTR = 127
    def stamp(i):
        if TRACE:
            if i < 0:
                a.e(f"s_mov_b32 s{sPA}, 0")
                a.e(f"v_mov_b32 v{vTR}, 0")
                i = 15
            a.e(f"s_memtime s[{sPT}:{sPT+1}]")
            a.e("s_waitcnt lgkmcnt(0)")
            a.e(f"s_andn2_b32 s{sPT}, s{sPT}, 15")
            a.e(f"s_or_b32 s{sPT}, s{sPT}, {i}")
            a.e(f"s_mov_b32 m0, s{sPA}")
            a.e(f"s_add_u32 s{sPA}, s{sPA}, 1")
            a.e(f"s_min_u32 s{sPA}, s{sPA}, 63")
            a.e(f"v_writelane_b32 v{vTR}, s{sPT}, m0")
    vLANE, vZERO = 1, 2
    T_ = 100

    a.e(f"s_cmp_ge_u32 s2, {NWG}")
    a.e("s_cbranch_scc1 K2_END")
    if cfg.get('rt'): a.e("s_memrealtime s[96:97]")
    stamp(-1)
    a.e(f"s_load_dwordx2 s[{S_WS}:{S_WS+1}], s[0:1], 104")
    a.e(f"s_mov_b32 s{S_WS+2}, {WS_BYTES}")
    a.e(f"s_mov_b32 s{S_WS+3}, 0x00020000")
    a.e(f"v_lshrrev_b32 v{T_}, 6, v0")
    a.e(f"v_and_b32 v{vLANE}, 63, v0")
    a.e(f"v_readfirstlane_b32 s{sWAVE}, v{T_}")
    a.e(f"s_and_b32 s{sB}, s2, 7")
    a.e(f"s_lshl_b32 s{sB}, s{sB}, 5")
    a.e(f"s_lshr_b32 s{sT0}, s2, 3")
    a.e(f"s_or_b32 s{sB}, s{sB}, s{sT0}")
    a.e(f"s_mov_b32 s{sHI}, 0xffff0000")
    a.e(f"s_mov_b32 s{sOOB}, 0x80000000")
    a.e(f"v_mov_b32 v{vZERO}, 0")
    a.e(f"s_cmp_ge_u32 s{sWAVE}, 8")
    a.e("s_cbranch_scc1 K2_CONS")

    vL12, vL12b, vTB, vSCR, vFOUR, vL16 = range(4, 10)
    R = 10
    FLG, OLD = 20, 24
    def P(b, c): return 28 + 32 * b + 4 * c
    def KA(i): return 31 + 4 * i
    U = 92
    T_ = 108
    vPL = 124
    sSB, sM80 = 40, 41
    SK7 = cfg.get('k2_sk7', True)
    if PPRIO: a.e(f"s_setprio {PPRIO}")
    RL = 28
    a.e(f"s_lshl_b32 s{sT0}, s{sB}, 4")
    a.e(f"v_mul_u32_u24 v{T_+1}, {REC_STR}, v0")
    a.e(f"v_add_u32 v{T_+1}, s{sT0}, v{T_+1}")
    a.e(f"s_mov_b32 s{sT0}, {REC_OFF}")
    a.e("s_waitcnt lgkmcnt(0)")
    a.e(f"buffer_load_dwordx4 {vr(RL,4)}, v{T_+1}, s[{S_WS}:{S_WS+3}], s{sT0} offen")
    a.e(f"buffer_load_dwordx4 {vr(RL+4,4)}, v{T_+1}, s[{S_WS}:{S_WS+3}], s{sT0} offen offset:16")
    a.e(f"s_mov_b32 s{sT0}, {cfg.get('tile_s', TILE_B)}")
    a.e(f"v_mul_lo_u32 v{vTB}, v0, s{sT0}")
    a.e(f"v_mov_b32 v{vZERO+1}, 0")
    a.e(f"v_lshlrev_b32 v{vSCR}, 4, v0")
    a.e(f"v_add_u32 v{vSCR}, {K2_SCR}, v{vSCR}")
    a.e(f"ds_write_b64 v{vSCR}, {vr(vZERO,2)}")
    a.e(f"ds_write_b64 v{vSCR}, {vr(vZERO,2)} offset:8")
    a.e(f"v_mul_u32_u24 v{vL12}, 12, v{vLANE}")
    a.e(f"v_add_u32 v{vL12b}, {768*4}, v{vL12}")
    a.e(f"v_lshlrev_b32 v{vL16}, 4, v{vLANE}")
    a.e(f"v_mov_b32 v{vFOUR}, 4")
    a.e(f"v_and_b32 v{T_+2}, 31, v{vLANE}")
    a.e(f"v_lshlrev_b32 v{T_+2}, 2, v{T_+2}")
    a.e(f"v_mov_b32 v{T_+3}, s{sOOB}")
    a.e(f"s_mov_b32 s{sTG}, 0")
    a.e(f"s_mov_b32 s{sMODE}, 0")
    a.e(f"s_mov_b32 s{sJ}, 8")
    a.e(f"s_lshl_b32 s{sSB}, s{sWAVE}, 6")
    a.e(f"s_add_u32 s{sSB}, s{sSB}, {K2_SCR // 16}")
    a.e(f"s_mov_b32 s{sM80}, 0x80808080")
    a.e(f"s_mov_b32 s{sT0}, 0x05040100")
    a.e(f"s_mov_b32 s{sT1}, 0x07060302")
    a.e("s_barrier")
    a.e(f"ds_write_b32 v{T_+2}, v{T_+3} offset:{K2_BIG}")
    a.e("s_waitcnt vmcnt(0)")
    for k in range(8):
        a.e(f"v_perm_b32 v{R+k}, v{RL+4+(k>>1)}, v{RL+(k>>1)}, s{sT1 if k & 1 else sT0}")
    a.e(f"v_mov_b32 v{T_}, 0x10001")
    for k in range(8):
        a.e(f"v_cmp_ne_u32_sdwa s[{42+2*k}:{43+2*k}], v{R+k}, v{R+k} src0_sel:WORD_0 src1_sel:WORD_1")
    for k in range(8):
        a.e(f"v_cndmask_b32 v{R+k}, v{T_}, v{R+k}, s[{42+2*k}:{43+2*k}]")
    stamp(0)
    DP = [f"row_shr:{sh} row_mask:0xf bank_mask:0xf bound_ctrl:0" for sh in (1, 2, 4, 8)] + \
         ["row_bcast:15 row_mask:0xa bank_mask:0xf", "row_bcast:31 row_mask:0xc bank_mask:0xf"]
    outl = []
    def F(b, FL, tag, chk=True):
        p0, e_, n_, inc, S_, V_, x_, y_, el, a1, a2 = range(T_, T_ + 11)
        C0, CN = T_ + 12, T_ + 14
        if chk:
            a.e(f"s_cmp_eq_u32 s{sJ}, 0")
            a.e(f"s_cbranch_scc1 K2_FN{tag}")
        a.e(f"v_lshrrev_b32 v{e_}, 16, v{R}")
        a.e(f"v_lshrrev_b32_sdwa v{p0}, 1, v{R} dst_sel:DWORD dst_unused:UNUSED_PAD src0_sel:DWORD src1_sel:WORD_0")
        a.e(f"v_add_u32 v{n_}, 1, v{e_}")
        a.e(f"v_lshrrev_b32 v{n_}, 1, v{n_}")
        a.e(f"v_sub_u32 v{n_}, v{n_}, v{p0}")
        a.e(f"v_lshlrev_b32 v{x_}, 7, v{R}")
        a.e(f"v_lshl_or_b32 v{y_}, v{e_}, 7, 2")
        fl = [f"v_mov_b32 v{a1}, v{R}"] + [f"v_mov_b32 v{R+k}, v{R+k+1}" for k in range(7)] + [f"s_sub_u32 s{sJ}, s{sJ}, 1", "s_nop 0"]
        for i, d_ in enumerate(DP):
            a.e(f"v_add_u32_dpp v{inc}, v{inc if i else n_}, v{inc if i else n_} {d_}")
            if i < 5:
                a.e(fl.pop(0)); a.e(fl.pop(0))
        a.e(f"v_sub_u32 v{S_}, v{inc}, v{n_}")
        a.e(f"v_readlane_b32 s{sTOT}, v{inc}, 63")
        a.e(f"v_add_u32 v{el}, -1, v{inc}")
        a.e(f"v_sub_u32 v{V_}, v{p0}, v{S_}")
        a.e(f"v_mad_i32_i24 v{V_}, v{V_}, 12, v{vTB}")
        a.e(f"s_cmp_gt_u32 s{sTOT}, 512")
        a.e(f"s_cbranch_scc1 K2_FR{tag}")
        a.e(f"K2_FB{tag}:")
        a.e(f"v_and_or_b32 v{a1}, v{S_}, 63, s{sSB}")
        a.e(f"v_lshrrev_b32 v{S_}, 6, v{S_}")
        a.e(f"v_and_or_b32 v{a2}, v{el}, 63, s{sSB}")
        a.e(f"v_lshrrev_b32 v{el}, 6, v{el}")
        a.e(f"v_lshl_add_u32 v{a2}, v{a2}, 4, v{el}")
        a.e(f"v_lshl_add_u32 v{a1}, v{a1}, 4, v{S_}")
        a.e(f"ds_write_b8 v{a2}, v{y_} offset:8")
        a.e(f"ds_write_b8 v{a1}, v{x_}")
        a.e(f"s_mov_b64 exec, -1")
        a.e(f"ds_wrxchg_rtn_b64 {vr(FL+2,2)}, v{vSCR}, {vr(vZERO,2)} offset:8")
        a.e(f"ds_wrxchg_rtn_b64 {vr(FL,2)}, v{vSCR}, {vr(vZERO,2)}")
        a.e("s_waitcnt lgkmcnt(1)")
        for h in range(2):
            a.e(f"v_and_b32 v{C0+h}, 0x02020202, v{FL+2+h}")
        fl = [f"v_xor_b32 v{FL+2+h}, v{FL+2+h}, v{C0+h}" for h in range(2)]
        a.e(fl.pop(0))
        for i, d_ in enumerate(DP):
            for h in range(2):
                a.e(f"v_add_u32_dpp v{CN+h}, v{(CN if i else C0)+h}, v{(CN if i else C0)+h} {d_}")
            if fl: a.e(fl.pop(0))
        a.e(f"v_readlane_b32 s{sT0}, v{CN}, 63")
        a.e(f"v_readlane_b32 s{sT1}, v{CN+1}, 63")
        for h in range(2):
            a.e(f"v_sub_u32 v{CN+h}, v{CN+h}, v{C0+h}")
        a.e(f"s_mul_i32 s{sM}, s{sT0}, 0x01010101")
        a.e(f"s_lshl_b32 s{sT0}, s{sM}, 8")
        a.e(f"s_lshr_b32 s{sM}, s{sM}, 24")
        a.e(f"v_add_u32 v{CN}, s{sT0}, v{CN}")
        a.e(f"s_lshl_b32 s{sT1}, s{sT1}, 8")
        a.e(f"s_add_u32 s{sT1}, s{sT1}, s{sM}")
        a.e(f"s_mul_i32 s{sT1}, s{sT1}, 0x01010101")
        def bp(c):
            a.e(f"v_lshlrev_b32_sdwa v{P(b,c)}, 1, v{CN+(c>>2)} dst_sel:DWORD dst_unused:UNUSED_PAD src0_sel:DWORD src1_sel:BYTE_{c&3}")
            a.e(f"ds_bpermute_b32 v{P(b,c)}, v{P(b,c)}, v{V_}")
        def ld(c):
            a.e(f"v_add_u32 v{P(b,c)}, v{P(b,c)}, v{vL12 if c < 4 else vL12b}")
            a.e(f"buffer_load_dwordx3 {vr(P(b,c),3)}, v{P(b,c)}, s[{S_WS}:{S_WS+3}], 0 offen offset:{768*(c&3)}")
        for c in range(4): bp(c)
        a.e(f"v_add_u32 v{CN+1}, s{sT1}, v{CN+1}")
        NC = 7 if SK7 else 8
        for c in range(4, NC): bp(c)
        for h in range(2):
            a.e(f"v_and_or_b32 v{FL+2+h}, v{CN+h}, s{sM80}, v{FL+2+h}")
        for c in range(NC):
            if c % 2 == 0: a.e(f"s_waitcnt lgkmcnt({max(NC-2-c, 0)})")
            if c == 0:
                for h in range(2):
                    a.e(f"v_and_or_b32 v{FL+h}, v{CN+h}, s{sM80}, v{FL+h}")
            ld(c)
        if SK7:
            a.e(f"s_cmp_gt_u32 s{sTOT}, 448")
            a.e(f"s_cbranch_scc1 K2_F7{tag}")
        a.e(f"K2_FE{tag}:")
        def rare():
            if SK7:
                a.e(f"K2_F7{tag}:")
                bp(7)
                a.e("s_waitcnt lgkmcnt(0)")
                ld(7)
                a.e(f"s_branch K2_FE{tag}")
            if chk:
                a.e(f"K2_FN{tag}:")
                for k in range(4):
                    a.e(f"v_mov_b32 v{FL+k}, s{sM80}")
                a.e(f"s_mov_b32 s{sTOT}, 0")
                a.e(f"s_branch K2_FE{tag}")
            a.e(f"K2_FR{tag}:")
            for k in range(7, 0, -1):
                a.e(f"v_mov_b32 v{R+k}, v{R+k-1}")
            a.e(f"s_add_u32 s{sJ}, s{sJ}, 1")
            a.e(f"v_sub_u32 v{a2}, v{p0}, v{S_}")
            a.e(f"v_add_u32 v{a2}, 512, v{a2}")
            a.e(f"v_lshlrev_b32 v{a2}, 1, v{a2}")
            a.e(f"v_and_or_b32 v{a2}, v{a1}, s{sHI}, v{a2}")
            a.e(f"v_cmp_lt_u32 vcc, 512, v{inc}")
            a.e(f"v_mov_b32 v{n_}, 0x10001")
            a.e(f"v_cndmask_b32 v{a2}, v{n_}, v{a2}, vcc")
            a.e(f"v_cndmask_b32 v{y_}, v{y_}, 2, vcc")
            a.e(f"v_min_u32 v{el}, 511, v{el}")
            a.e(f"v_cmp_gt_u32 vcc, 512, v{S_}")
            a.e(f"v_cndmask_b32 v{R}, v{a1}, v{a2}, vcc")
            a.e(f"s_mov_b64 exec, vcc")
            a.e(f"s_branch K2_FB{tag}")
        outl.append(rare)

    def H(b, FL, tag, first=False, vm=0):
        if not first:
            a.e(f"ds_read_b32 v{vPL}, v{vZERO} offset:{K2_FP}")
            a.e(f"s_mov_b32 s{sT7}, s{sTOT}")
            a.e(f"s_cmp_eq_u32 s{sJ}, 0")
            a.e(f"s_cselect_b32 s{sT1}, 1, 0")
            a.e(f"s_lshl_b32 s{sT1}, s{sT1}, s{sWAVE}")
        a.e(f"s_waitcnt vmcnt({vm})")
        def key(c):
            for h in range(2):
                a.e(f"v_lshlrev_b32_sdwa v{KA(2*c+h)}, 2, v{P(b,c)+2*h} dst_sel:DWORD dst_unused:UNUSED_PAD src0_sel:DWORD src1_sel:BYTE_1")
            for h in range(2):
                a.e(f"v_or_b32_sdwa v{KA(2*c+h)}, v{KA(2*c+h)}, sext(v{FL+2*h+(c>>2)}) dst_sel:DWORD dst_unused:UNUSED_PAD src0_sel:DWORD src1_sel:BYTE_{c&3}")
        def at(c):
            for h in range(2):
                a.e(f"ds_add_rtn_u32 v{U+2*c+h}, v{KA(2*c+h)}, v{vFOUR}")
        NC = 7 if SK7 else 8
        PRE = 0 if first else cfg.get('k2_pre', 3)
        for c in range(PRE): key(c)
        if not first:
            a.e(f"K2_HP{tag}:")
            a.e("s_waitcnt lgkmcnt(0)")
            a.e(f"v_readfirstlane_b32 s{sT0}, v{vPL}")
            a.e(f"s_cmp_lt_u32 s{sT0}, s{sTG}")
            a.e(f"s_cbranch_scc1 K2_HQ{tag}")
            a.e(f"v_mov_b32 v{vPL}, s{sT1}")
        for c in range(PRE): at(c)
        for c in range(PRE, NC):
            key(c); at(c)
        a.e(f"s_add_u32 s{sTG}, s{sTG}, 32")
        if SK7:
            a.e(f"s_cmp_gt_u32 s{sT7}, 448")
            a.e(f"s_cbranch_scc1 K2_H7{tag}")
            a.e(f"K2_HE{tag}:")
        a.e("s_mov_b64 exec, 1")
        if not first: a.e(f"ds_or_b32 v{vZERO}, v{vPL} offset:{K2_DN}")
        a.e(f"ds_add_u32 v{vZERO}, v{vFOUR} offset:{K2_FH}")
        a.e("s_mov_b64 exec, -1")
        def rare():
            if not first:
                a.e(f"K2_HQ{tag}:")
                a.e(f"ds_read_b32 v{vPL}, v{vZERO} offset:{K2_FP}")
                a.e(f"s_branch K2_HP{tag}")
            if SK7:
                a.e(f"K2_H7{tag}:")
                key(7); at(7)
                a.e(f"s_branch K2_HE{tag}")
        outl.append(rare)

    def S(b, tag, first=False):
        NW, CC, TT, BS = T_, T_ + 4, T_ + 8, T_ + 12
        a.e(f"K2_SP{tag}:")
        a.e(f"ds_read_b64 {vr(vPL,2)}, v{vZERO} offset:{K2_FH}")
        a.e(f"ds_read_b128 {vr(NW,4)}, v{vL16}")
        a.e("s_waitcnt lgkmcnt(1)")
        a.e(f"v_readfirstlane_b32 s{sT0}, v{vPL}")
        a.e(f"s_cmp_lt_u32 s{sT0}, s{sTG}")
        a.e(f"s_cbranch_scc1 K2_SP{tag}")
        stamp(3)
        if 'k2_sprio' in cfg and cfg.get('k2_sprio_at', 0) == 0 and not first: a.e(f"s_setprio {cfg['k2_sprio']}")
        signal(vFOUR, K2_FP)
        a.e(f"v_readfirstlane_b32 s{sDN}, v{vPL+1}")
        a.e("s_waitcnt lgkmcnt(1)")
        for k in range(4):
            a.e(f"v_sub_u32 v{CC+k}, v{NW+k}, v{OLD+k}")
        a.e(f"v_add_u32 v{TT}, v{CC}, v{CC+1}")
        a.e(f"v_add3_u32 v{TT}, v{TT}, v{CC+2}, v{CC+3}")
        fl = [f"v_sub_u32 v{TT+1}, {K2_SW}, v{TT}"]
        for k in range(4):
            fl.append(f"v_sub_u32 v{BS+k}, v{TT+1}, v{OLD+k}")
            if k < 3: fl.append(f"v_add_u32 v{TT+1}, v{TT+1}, v{CC+k}")
            fl.append(f"v_mov_b32 v{OLD+k}, v{NW+k}")
        for d_ in DP:
            a.e(fl.pop(0)); a.e(fl.pop(0))
            a.e(f"v_add_u32_dpp v{TT}, v{TT}, v{TT} {d_}")
        assert not fl
        for k in range(4):
            a.e(f"v_add_u32 v{BS+k}, v{BS+k}, v{TT}")
        a.e(f"ds_write_b128 v{vL16}, {vr(BS,4)} offset:{K2_BASE}")
        a.e(f"v_readlane_b32 s{sN}, v{TT}, 63")
        NI = 14 if SK7 else 16
        for i in range(NI):
            a.e(f"ds_read_b32 v{KA(i)}, v{KA(i)} offset:{K2_BASE}")
        def ad(i):
            a.e(f"v_add_u32 v{U+i}, v{U+i}, v{KA(i)}")
            a.e(f"v_lshrrev_b32 v{KA(i)}, 1, v{U+i}")
        def wr(i):
            c, h = i >> 1, i & 1
            a.e(f"ds_write_b32 v{U+i}, v{P(b,c)+2*h}")
            if not cfg.get('x_nosa'): a.e(f"ds_write_b16{'_d16_hi' if h else ''} v{KA(i)}, v{P(b,c)+1} offset:{K2_SA - K2_SW//2}")
        stamp(4)
        if first:
            a.e("s_waitcnt lgkmcnt(0)")
        else:
            a.e(f"s_sub_u32 s{sT1}, s{sTG}, 32")
            a.e(f"ds_read_b32 v{vPL}, v{vZERO} offset:{K2_FR}")
            a.e(f"s_waitcnt lgkmcnt({NI - 7})")
            for i in range(8): ad(i)
            a.e(f"K2_SR{tag}:")
            a.e("s_waitcnt lgkmcnt(0)")
            a.e(f"v_readfirstlane_b32 s{sT0}, v{vPL}")
            a.e(f"s_cmp_lt_u32 s{sT0}, s{sT1}")
            a.e(f"s_cbranch_scc1 K2_SQ{tag}")
        stamp(5)
        if 'k2_sprio' in cfg and cfg.get('k2_sprio_at', 0) == 1: a.e(f"s_setprio {cfg['k2_sprio']}")
        for i in range(NI):
            if first or i >= 8: ad(i)
            wr(i)
        if SK7:
            a.e(f"s_cmp_gt_u32 s{sT7}, 448")
            a.e(f"s_cbranch_scc1 K2_S7{tag}")
            a.e(f"K2_SE{tag}:")
        a.e(f"s_cmp_eq_u32 s{sWAVE}, 0")
        a.e(f"s_cbranch_scc1 K2_PAD{tag}")
        a.e(f"K2_NOPAD{tag}:")
        signal(vFOUR, K2_FS)
        stamp(4)
        if 'k2_sprio' in cfg: a.e(f"s_setprio {PPRIO}")
        def rare():
            if not first:
                a.e(f"K2_SQ{tag}:")
                if cfg.get('k2_slp', 0): a.e(f"s_sleep {cfg['k2_slp']}")
                a.e(f"ds_read_b32 v{vPL}, v{vZERO} offset:{K2_FR}")
                a.e(f"s_branch K2_SR{tag}")
            if SK7:
                a.e(f"K2_S7{tag}:")
                for i in (14, 15):
                    a.e(f"ds_read_b32 v{KA(i)}, v{KA(i)} offset:{K2_BASE}")
                a.e("s_waitcnt lgkmcnt(0)")
                for i in (14, 15):
                    ad(i); wr(i)
                a.e(f"s_branch K2_SE{tag}")
            a.e(f"K2_PAD{tag}:")
            a.e(f"s_add_u32 s{sT0}, s{sN}, {K2_SW}")
            a.e(f"v_lshl_add_u32 v{TT}, v{vLANE}, 2, s{sT0}")
            a.e(f"v_mov_b32 v{TT+1}, {hex(DUMMY)}")
            a.e(f"ds_write_b32 v{TT}, v{TT+1}")
            a.e(f"v_lshrrev_b32 v{TT}, 1, v{TT}")
            a.e(f"v_cmp_gt_u32 vcc, {K2_SW//2 + 16384}, v{TT}")
            a.e(f"s_cmp_eq_u32 s{sDN}, 0xff")
            a.e(f"s_addc_u32 s{sT0}, s{sN}, 0")
            a.e(f"v_mov_b32 v{TT+3}, s{sT0}")
            a.e(f"ds_write_b32 v{vZERO}, v{TT+3} offset:{K2_NCELL}")
            a.e(f"s_mov_b64 exec, vcc")
            a.e(f"ds_write_b16 v{TT}, v{vZERO} offset:{K2_SA - K2_SW//2}")
            a.e(f"s_mov_b64 exec, -1")
            a.e(f"s_branch K2_NOPAD{tag}")
        outl.append(rare)

    PEEL = cfg.get('peel', 1)
    F(0, OLD, 'A', False)
    a.e(f"s_mov_b32 s{sT7}, s{sTOT}")
    stamp(1)
    if PEEL == 0:
        F(1, FLG, 'B', False)
        stamp(1)
    H(0, OLD, 'A', True, 7 if PEEL == 0 else 0)
    for k in range(4):
        a.e(f"v_mov_b32 v{OLD+k}, 0")
    stamp(2)
    if PEEL == 2:
        F(1, FLG, 'B', False)
        stamp(1)
    S(0, 'A', True)
    if PEEL == 1:
        F(1, FLG, 'B', False)
        stamp(1)
    a.e("K2_PLOOP:")
    for b in (1, 0):
        tg = str(b)
        H(b, FLG, tg)
        stamp(2)
        F(1 - b, FLG, tg)
        stamp(1)
        S(b, tg)
        if b == 1:
            a.e(f"s_cmp_eq_u32 s{sDN}, 0xff")
            a.e("s_cbranch_scc1 K2_PTAIL")
        else:
            a.e(f"s_cmp_lg_u32 s{sDN}, 0xff")
            a.e("s_cbranch_scc1 K2_PLOOP")

    a.e("K2_PTAIL:")
    a.e(f"s_setprio {cfg.get('k2_tprio', 0)}")
    S_W1, S_W2, S_C, S_D, S_MM = 40, 44, 48, 56, 60
    sGI, sEO, sLP, sLO, sK6 = 64, 67, 68, 69, 70
    S_WA = 72
    S_WR = 92 if TRACE else 88
    vOF, vXO, vS1, vS2, vCK = 3, 4, 5, 6, 7
    GG, MM, AA, RB, SS, PP = 8, 22, 36, 92, 96, 100
    if TRACE: vOF, vTR2 = 3, 1
    DB0, WOP, vKD = 100, 116, 124
    a.e(f"s_load_dwordx2 s[{S_D}:{S_D+1}], s[0:1], 24")
    a.e(f"s_load_dwordx2 s[{S_W2}:{S_W2+1}], s[0:1], 56")
    a.e(f"s_load_dwordx2 s[{S_W1}:{S_W1+1}], s[0:1], 64")
    a.e(f"s_load_dwordx2 s[{S_MM}:{S_MM+1}], s[0:1], 0")
    a.e(f"s_load_dwordx2 s[{S_X}:{S_X+1}], s[0:1], 80")
    a.e(f"s_load_dwordx2 s[{S_Y}:{S_Y+1}], s[0:1], 88")
    for sr_, n in ((S_D, E * 2), (S_W1, 128), (S_W2, 64), (S_MM, E * 8), (S_Y, E * 8)):
        a.e(f"s_mov_b32 s{sr_+2}, {n}")
        a.e(f"s_mov_b32 s{sr_+3}, 0x00020000")
    a.e(f"s_lshr_b32 s{sT0}, s{sB}, 7")
    a.e(f"s_and_b32 s{sT1}, s{sB}, 127")
    a.e(f"s_mul_i32 s{sLP}, s{sT0}, {EPB}")
    a.e(f"s_sub_u32 s{sLO}, {EPB}, s{sLP}")
    a.e(f"s_mul_i32 s{sT1}, s{sT1}, {2*EPB}")
    a.e(f"s_add_u32 s{sEO}, s{sT1}, s{sLO}")
    a.e("s_waitcnt vmcnt(0)")
    for k in range(7):
        a.e(f"v_mov_b32 v{AA+8*k}, 0")
    for q in range(8):
        a.e(f"v_mov_b32 v{WOP+q}, 0")
    a.e(f"v_add_lshl_u32 v{SS}, v0, s{sEO}, 1")
    a.e(f"v_add_u32 v{SS+1}, 4096, v{SS}")
    a.e(f"v_and_b32 v{DB0+1}, 3, v0")
    a.e(f"v_lshlrev_b32 v{DB0+1}, 1, v{DB0+1}")
    a.e(f"v_and_or_b32 v{DB0}, v0, 8, v{DB0+1}")
    a.e(f"v_lshlrev_b32 v{vXO}, 4, v0")
    a.e(f"v_cmp_gt_u32 s[{sK6}:{sK6+1}], {EPB - 3072}, v0")
    a.e(f"v_lshlrev_b32 v{vOF}, 2, v{SS}")
    poll(RB, K2_GI, "1", 0)
    a.e(f"s_mov_b32 s{sGI}, s{sT0}")
    a.e(f"s_mov_b32 s{sGI+1}, s{sT0}")
    a.e(f"s_load_dwordx8 s[{S_WR}:{S_WR+7}], s[{S_X}:{S_X+1}], 0")
    a.vm = []
    for k in range(7):
        a.vmem(f"buffer_load_short_d16_hi v{AA+8*k}, v{SS+(k>>2)}, s[{S_D}:{S_D+3}], 0 offen offset:{(k&3)*1024}", ('D', k))
    a.e(f"s_mov_b32 exec_lo, 0x00000f0f")
    a.e(f"s_mov_b32 exec_hi, 0x0000f0f0")
    for r in range(8):
        a.vmem(f"buffer_load_short_d16{'_hi' if r & 1 else ''} v{WOP+(r>>1)+4*(r&1)}, v{DB0}, s[{S_W1}:{S_W1+3}], 0 offen offset:{16*r}", 'W')
    a.e(f"s_mov_b32 exec_lo, 0x000f0000")
    a.e(f"s_mov_b32 exec_hi, 0x00f00000")
    for r in range(8):
        a.vmem(f"buffer_load_short_d16{'_hi' if r & 1 else ''} v{WOP+(r>>1)+4*(r&1)}, v{DB0+1}, s[{S_W2}:{S_W2+3}], 0 offen offset:{8*r}", 'W')
    a.e(f"s_mov_b64 exec, -1")
    for k in range(7):
        a.e(f"s_mov_b32 s{sT0}, {4096*k}")
        a.vmem(f"buffer_load_dwordx2 {vr(MM+2*k,2)}, v{vOF}, s[{S_MM}:{S_MM+3}], s{sT0} offen", 'M')
    for r in range(8):
        a.e(f"s_mov_b32 s{S_C+r}, {f2h(-KAP * h2f(CENTERS[r]))}")
    a.e(f"v_add_lshl_u32 v{vS1}, v0, s{sLO}, 3")
    a.e(f"v_add_u32 v{vS2}, {STR2}, v{vS1}")
    a.e(f"s_lshl_b32 s{sT1}, s{sWAVE}, 4")
    a.e(f"s_xor_b32 s{sT2}, s{sB}, 128")
    a.e(f"s_lshl_b32 s{sLP}, s{sT2}, 7")
    a.e(f"s_add_u32 s{sLP}, s{sLP}, s{sT1}")
    a.e(f"s_add_u32 s{sLP}, s{sLP}, {FL_OFF}")
    a.e(f"s_mul_i32 s{sT2}, s{sT2}, {XB_STR}")
    a.e(f"s_add_u32 s{sT2}, s{sT2}, {XB_OFF}")
    a.wvm('W')
    for q in range(4):
        a.e(f"v_or_b32 v{WOP+q}, v{WOP+q}, v{WOP+4+q}")
    def rbf(X):
        a.e(f"v_mul_f32 v{vKD}, {f2h(KAP)}, v{X}")
        for q in range(4):
            a.e(f"v_pk_add_f32 {vr(X+2*q,2)}, {vr(vKD,2)}, s[{S_C+2*q}:{S_C+2*q+1}] op_sel_hi:[0,1]")
        for q in range(4):
            a.e(f"v_pk_mul_f32 {vr(X+2*q,2)}, {vr(X+2*q,2)}, {vr(X+2*q,2)}")
        for r in range(8):
            a.e(f"v_exp_f32 v{X+r}, -v{X+r}")
    rbf(AA)
    for k in range(7):
        X = AA + 8 * k
        for q in range(4):
            a.e(f"v_cvt_pk_bf16_f32 v{RB+q}, v{X+2*q}, v{X+2*q+1}")
        a.e(f"v_mfma_f32_32x32x16_bf16 {vr(DB0,16)}, {vr(WOP,4)}, {vr(RB,4)}, 0")
        if k < 6: rbf(X + 8)
        for d in range(4):
            a.e(f"v_pk_mul_f32 {vr(X+2*d,2)}, {vr(DB0+2*d,2)}, s[{sGI}:{sGI+1}]")
        for q in range(2):
            a.e(f"v_cvt_pk_bf16_f32 v{GG+2*k+q}, v{DB0+8+2*q}, v{DB0+9+2*q}")
    a.e("s_waitcnt lgkmcnt(0)")
    for d in range(4):
        for h in range(2):
            src = S_WR + 2 * d + h
            a.e(f"s_lshl_b32 s{S_WA+4*d+2*h}, s{src}, 16")
            a.e(f"s_and_b32 s{S_WA+4*d+2*h+1}, s{src}, s{sHI}")
    a.e(f"s_cmp_lg_u32 s{sMODE}, 0")
    a.e("s_cbranch_scc1 K2_SFIN")
    stamp(11)
    if TRACE: a.e(f"v_mov_b32 v{vTR2}, v{vTR}")
    a.e(f"s_mov_b32 s{sT0}, {1 << 14}")
    a.e("s_barrier")
    a.e("s_branch K2_FL1")
    a.e("K2_FL0:")
    a.e(f"s_sleep {cfg.get('k2_flslp', 2)}")
    a.e(f"v_mov_b32 v{vCK}, 0x8000")
    a.e(f"s_sub_u32 s{sT0}, s{sT0}, 1")
    a.e("s_cbranch_scc1 K2_FL2")
    a.e("K2_FL1:")
    a.e(f"buffer_load_dword v{vCK}, v{vZERO}, s[{S_WS}:{S_WS+3}], s{sLP} offen sc1")
    a.e("s_waitcnt vmcnt(0)")
    a.e(f"v_cmp_eq_u32 vcc, 0, v{vCK}")
    a.e("s_cbranch_vccnz K2_FL0")
    a.e("K2_FL2:")
    a.e("s_setprio 3")
    if TRACE: a.e(f"s_memtime s[{S_D}:{S_D+1}]")
    a.vm = []
    for k in range(7):
        if k == 6: a.e(f"s_mov_b64 exec, s[{sK6}:{sK6+1}]")
        a.vmem(f"buffer_load_dwordx4 {vr(PP+4*k,4)}, v{vXO}, s[{S_WS}:{S_WS+3}], s{sT2} offen sc1", ('P', k))
        a.e(f"s_add_u32 s{sT2}, s{sT2}, 8192")
    a.e(f"s_mov_b64 exec, -1")
    def sread(k):
        for q in range(2):
            a.e(f"ds_read_b64 {vr(SS+2*q,2)}, v{vS1+q} offset:{ACC + 4096*k}")
    sread(0)
    a.e(f"v_and_b32 v{vCK}, 0x8000, v{vCK}")
    a.e("s_mov_b64 exec, 1")
    a.e(f"ds_or_b32 v{vZERO}, v{vCK} offset:{K2_VI}")
    a.e(f"s_mov_b64 exec, -1")
    def unpack(dst, src):
        a.e(f"v_lshlrev_b32 v{dst}, 16, v{src}")
        a.e(f"v_and_b32 v{dst+1}, s{sHI}, v{src}")
        a.e(f"v_lshlrev_b32 v{dst+2}, 16, v{src+1}")
        a.e(f"v_and_b32 v{dst+3}, s{sHI}, v{src+1}")
    def finish(k, T):
        X = AA + 8 * k
        a.e(f"v_mov_b32 v{T}, v{RB+1}")
        a.e(f"v_mov_b32 v{T+2}, v{RB+3}")
        unpack(X + 4, GG + 2 * k)
        for d in range(4):
            src = RB + d if d % 2 == 0 else T - 1 + d
            for q in range(2):
                w = f"s[{S_WA+4*d+2*q}:{S_WA+4*d+2*q+1}]"
                if d == 0:
                    a.e(f"v_pk_mul_f32 {vr(X+2*q,2)}, {vr(RB,2)}, {w} op_sel_hi:[0,1]")
                else:
                    a.e(f"v_pk_fma_f32 {vr(X+2*q,2)}, {vr(src,2)}, {w}, {vr(X+2*q,2)} op_sel_hi:[0,1,1]")
        unpack(RB, MM + 2 * k)
        for q in range(2):
            a.e(f"v_pk_fma_f32 {vr(X+2*q,2)}, {vr(X+2*q,2)}, {vr(X+4+2*q,2)}, {vr(RB+2*q,2)}")
        a.e(f"v_cvt_pk_bf16_f32 v{MM+2*k}, v{X}, v{X+1}")
        a.e(f"v_cvt_pk_bf16_f32 v{MM+2*k+1}, v{X+2}, v{X+3}")
        a.e(f"s_mov_b32 s{sT0}, {4096*k}")
        if k == 6: a.e(f"s_mov_b64 exec, s[{sK6}:{sK6+1}]")
        a.vmem(f"buffer_store_dwordx2 {vr(MM+2*k,2)}, v{vOF}, s[{S_Y}:{S_Y+3}], s{sT0} offen", 'O')
        if k == 6: a.e(f"s_mov_b64 exec, -1")
    for k in range(7):
        X, S_ = AA + 8 * k, PP + 4 * k
        if k == 6:
            a.e(f"s_cmp_lg_u32 s{sWAVE}, 0")
            a.e("s_cbranch_scc1 K2_TE")
        a.wvm(('P', k))
        a.e("s_waitcnt lgkmcnt(0)")
        for q in range(4):
            a.e(f"v_pk_add_u16 v{S_+q}, v{S_+q}, v{SS+q}")
        if k + 1 < 7: sread(k + 1)
        for d in range(4):
            a.e(f"v_cvt_f32_i32_sdwa v{RB+d}, sext(v{S_+(d>>1)}) dst_sel:DWORD dst_unused:UNUSED_PAD src0_sel:WORD_{d&1}")
        for q in range(2):
            a.e(f"v_pk_mul_f32 {vr(RB+2*q,2)}, {vr(X+2*q,2)}, {vr(RB+2*q,2)}")
        for d in range(4):
            a.e(f"v_cvt_f32_i32_sdwa v{X+d}, sext(v{S_+2+(d>>1)}) dst_sel:DWORD dst_unused:UNUSED_PAD src0_sel:WORD_{d&1}")
        for q in range(2):
            a.e(f"v_pk_fma_f32 {vr(RB+2*q,2)}, {vr(X+4+2*q,2)}, {vr(X+2*q,2)}, {vr(RB+2*q,2)}")
        finish(k, S_)
    a.e("K2_TE:")
    if TRACE:
        a.e("s_waitcnt vmcnt(0)")
        a.e(f"v_mov_b32 v{vTR}, v{vTR2}")
        a.e(f"s_andn2_b32 s{S_D}, s{S_D}, 15")
        a.e(f"s_or_b32 s{S_D}, s{S_D}, 6")
        a.e(f"s_mov_b32 m0, s{sPA}")
        a.e(f"s_add_u32 s{sPA}, s{sPA}, 1")
        a.e(f"v_writelane_b32 v{vTR}, s{S_D}, m0")
    a.e("s_waitcnt lgkmcnt(0)")
    a.e("s_barrier")
    a.e(f"ds_read_b32 v{vCK}, v{vZERO} offset:{K2_VI}")
    a.e("s_waitcnt lgkmcnt(0)")
    a.e(f"v_cmp_ne_u32 vcc, 0, v{vCK}")
    a.e("s_cbranch_vccz K2_FIN")
    a.e(f"s_mov_b32 s{sMODE}, 1")
    a.e("s_barrier")
    a.e("s_waitcnt vmcnt(0)")
    a.e("s_barrier")
    a.e("s_branch K2_PTAIL")
    a.e("K2_SFIN:")
    a.e(f"v_lshlrev_b32 v{vS1}, 2, v0")
    a.e(f"v_add_u32 v{vS2}, {STR2}, v{vS1}")
    a.e("s_waitcnt vmcnt(0)")
    for k in range(7):
        X = AA + 8 * k
        for q in range(8):
            a.e(f"ds_read_b32 v{DB0+q}, v{vS1+(q>>2)} offset:{ACC + (q&3)*ACC_STR + 2048*k}")
        a.e("s_waitcnt lgkmcnt(0)")
        for q in range(8):
            a.e(f"v_cvt_f32_i32 v{DB0+q}, v{DB0+q}")
        for q in range(2):
            a.e(f"v_pk_mul_f32 {vr(RB+2*q,2)}, {vr(X+2*q,2)}, {vr(DB0+2*q,2)}")
        for q in range(2):
            a.e(f"v_pk_fma_f32 {vr(RB+2*q,2)}, {vr(X+4+2*q,2)}, {vr(DB0+4+2*q,2)}, {vr(RB+2*q,2)}")
        finish(k, DB0 + 8)
    a.e("s_branch K2_FIN")
    for f_ in outl: f_()

    a.e("K2_CONS:")
    vFD, vA4, vA2 = 3, 4, 5
    SW_, SA_ = 6, 19
    CUR = 32
    COL = {3: [0,1,2,3,0,1,2,3,0,1,2,3,4], 2: [0,1,2,0,1,2,0,1,2,0,1,2,3],
           4: [0,1,2,3,4,5,0,1,2,3,4,5,6], 5: [0,1,2,3,4,5,0,1,2,3,4,5,6]}.get(D, list(range(13)))
    NCOL = max(COL) + 1
    RSTR = 4
    GB = CUR + RSTR * NCOL
    assert GB + 2 * (NS + 1) <= 96
    GRP = cfg.get('k2_grp', [[q, [q]] for q in range(NS)])
    AT = {st_: sl_ for st_, sl_ in GRP}
    ISS = {q: st_ for st_, sl_ in GRP for q in sl_}
    assert sorted(ISS) == list(range(NS))
    for q in range(NS):
        assert ISS[q] <= q and ISS[q] > q + D - NS
    ORD = [q for st_ in range(NS) for q in AT.get(st_, [])]
    def vmw(p, drain=False):
        s_ = p + D
        n = len([q for q in ORD[ORD.index(p) + 1:] if ISS[q] <= s_])
        if s_ >= NS and not drain:
            n += len([q for q in ORD if ISS[q] <= s_ - NS])
        return n
    TB = 104
    RT, vCK, vC4, vCT = 120, 124, 125, 126
    MXR = TB
    sG, sGN, sMG, sNB, sSEL, sMX, sLAST = 40, 42, 44, 46, 48, 49, 50
    def fill(first):
        if first:
            a.e(f"v_cmp_le_u32 vcc, {ACC//16}, v{vCT}")
            a.e(f"s_mov_b64 exec, vcc")
            a.e(f"ds_write_b128 v{TB+8}, {vr(TB+4,4)}")
            a.e(f"s_mov_b64 exec, -1")
        for k in range(1, 8):
            a.e(f"ds_write_b128 v{TB+8}, {vr(TB+4,4)} offset:{k*8192}")
        a.e(f"v_add_u32 v{TB+8}, 65536, v{TB+8}")
        for k in range(4):
            a.e(f"ds_write_b128 v{TB+8}, {vr(TB+4,4)} offset:{k*8192}")
        a.e(f"v_cmp_gt_u32 vcc, {(K2_SA - 12*8192)//16}, v{vCT}")
        a.e(f"s_mov_b64 exec, vcc")
        a.e(f"ds_write_b128 v{TB+8}, {vr(TB+4,4)} offset:{4*8192}")
        a.e(f"s_mov_b64 exec, -1")
    def mdsrd(hreg):
        a.e(f"s_mul_i32 s{sT0}, {hreg}, {MD_TSTR}")
        a.e(f"s_add_u32 s{sT0}, s{sT0}, {MD_OFF}")
        a.e(f"s_add_u32 s{S_MD}, s{S_WS}, s{sT0}")
        a.e(f"s_addc_u32 s{S_MD+1}, s{S_WS+1}, 0")
        a.e(f"s_or_b32 s{S_MD+1}, s{S_MD+1}, 0x80000")
    def setscale(t):
        a.e(f"v_min_f32 v{t}, 0x71800000, v{t}")
        a.e(f"v_rcp_f32 v{t+1}, v{t}")
        a.e(f"v_add_f32 v{t+2}, v{t}, v{t}")
        a.e(f"v_readlane_b32 s{sG}, v{t}, 63")
        a.e(f"v_readlane_b32 s{sG+1}, v{t+2}, 63")
        a.e("s_lshl_b64 exec, 1, 63")
        a.e(f"ds_write_b32 v{vZERO}, v{t+1} offset:{K2_GI}")
        a.e("s_mov_b64 exec, -1")
        a.e(f"s_xor_b32 s{sGN}, s{sG}, 0x80000000")
    a.e(f"s_sub_u32 s{sWAVE}, s{sWAVE}, 8")
    a.e(f"v_add_u32 v{vCT}, -512, v0")
    a.e(f"v_mov_b32 v{TB+9}, 0x40004000")
    a.e(f"v_cmp_le_u32 vcc, {ACC//16}, v{vCT}")
    a.e(f"v_lshlrev_b32 v{TB+8}, 4, v{vCT}")
    for k in range(4):
        a.e(f"v_cndmask_b32 v{TB+4+k}, 0, v{TB+9}, vcc")
    a.e(f"ds_write_b128 v{TB+8}, {vr(TB+4,4)}")
    for k in range(4):
        a.e(f"v_mov_b32 v{TB+4+k}, v{TB+9}")
    a.e(f"v_lshlrev_b32 v{TB+9}, 5, v{vLANE}")
    a.e(f"s_mov_b32 s{sT1}, {MX_OFF}")
    a.e("s_waitcnt lgkmcnt(0)")
    a.e("s_barrier")
    a.e(f"buffer_load_dwordx4 {vr(CUR,4)}, v{TB+9}, s[{S_WS}:{S_WS+3}], s{sT1} offen")
    a.e(f"buffer_load_dwordx4 {vr(CUR+4,4)}, v{TB+9}, s[{S_WS}:{S_WS+3}], s{sT1} offen offset:16")
    fill(False)
    a.e(f"s_lshr_b32 s{sT1}, s{sB}, 7")
    mdsrd(f"s{sT1}")
    a.e(f"s_mov_b32 s{S_MD+2}, {E//2}")
    a.e(f"s_mov_b32 s{S_MD+3}, 0x00020000")
    a.e(f"s_mov_b32 s{sFFF8}, 0xfff8")
    a.e(f"s_mov_b32 s{sMG}, {f2h(8388608.0 + 32768.0)}")
    a.e(f"s_mov_b32 s{sMG+1}, {f2h(8388608.0 + 32768.0)}")
    a.e(f"s_mov_b32 s{sNB}, 0x7fff8000")
    a.e(f"s_mov_b32 s{sNB+1}, 0x7fff7fff")
    a.e(f"s_mov_b32 s{sSEL}, 0x05040100")
    for s in range(NS):
        a.e(f"v_mov_b32 v{SW_+s}, {hex(DUMMY)}")
        a.e(f"v_mov_b32 v{SA_+s}, 0")
    for k in range(4):
        for R_ in (RT, 100, 96): a.e(f"v_mov_b32 v{R_+k}, 0")
    a.e(f"s_mov_b32 s{sCNT}, 0")
    t = TB + 4
    a.e("s_waitcnt vmcnt(0)")
    a.e(f"v_max3_u32 v{MXR}, v{CUR}, v{CUR+2}, v{CUR+4}")
    a.e(f"v_add_f32 v{MXR+1}, v{CUR+1}, v{CUR+3}")
    a.e(f"v_add_f32 v{MXR+2}, v{CUR+5}, v{CUR+7}")
    a.e(f"v_max_u32 v{MXR}, v{MXR}, v{CUR+6}")
    a.e(f"v_add_f32 v{MXR+1}, v{MXR+1}, v{MXR+2}")
    dpp_scan(a, MXR, "v_max_u32")
    dpp_scan(a, MXR + 1, "v_add_f32")
    a.e(f"v_rcp_f32 v{t}, v{MXR}")
    a.e(f"v_mul_f32 v{MXR+2}, {f2h(4.0 * E / cfg.get('crest', 32.0))}, v{MXR}")
    a.e(f"v_readlane_b32 s{sMX}, v{MXR}, 63")
    a.e(f"v_cmp_nle_f32 vcc, v{MXR+2}, v{MXR+1}")
    a.e(f"v_mul_f32 v{t}, {f2h(cfg.get('qmax', 4096.0))}, v{t}")
    a.e(f"s_lshr_b32 s{sT0}, vcc_hi, 16")
    a.e(f"s_and_b32 s{sT0}, s{sT0}, 0x8000")
    a.e(f"v_mov_b32 v{vCK}, s{sT0}")
    setscale(t)
    stamp(6)

    uid = [0]
    stubs = []
    def alpha1(W, G0):
        a.e(f"v_and_b32 v{G0}, {hex(cfg.get('x_gmask', IDXM))}, v{W}")
        if not cfg.get('x_nog'):
            a.e(f"buffer_load_dwordx2 {vr(G0,2)}, v{G0}, s[{S_MD}:{S_MD+3}], 0 idxen")
    def cosines(A, C_, mid=None, c2=1):
        tc = TB + 2
        a.e(f"v_mul_f32 v{tc}, 0.15915494, v{A}")
        a.e(f"v_fract_f32 v{tc}, v{tc}")
        if not cfg.get('x_nocos'): a.e(f"v_cos_f32 v{tc}, v{tc}")
        if mid: a.e(mid)
        a.e(f"v_pk_mul_f32 {vr(C_,2)}, {vr(tc,2)}, s[{sG}:{sG+1}] op_sel_hi:[0,1]")
        a.e(f"v_fma_f32 v{C_+c2}, v{C_+1}, v{tc}, s{sGN}")
    def alpha2(W, A, cur):
        cosines(A, cur, f"v_and_b32_sdwa v{cur+3}, v{W}, s{sFFF8} dst_sel:DWORD dst_unused:UNUSED_PAD src0_sel:WORD_1 src1_sel:DWORD", 2)
    NRT = cfg.get('k2_nrt', 2)
    RTS = [RT, 100, 96][:NRT]
    def orrt(R_):
        a.e(f"v_or3_b32 v{vCK}, v{vCK}, v{R_}, v{R_+1}")
        a.e(f"v_or3_b32 v{vCK}, v{vCK}, v{R_+2}, v{R_+3}")
    def beta(cur, G0, vm, p=0, full=True):
        C_, L = cur, cur + 3
        M_, X = TB + 4, TB + 8
        a.e(f"s_waitcnt vmcnt({vm})")
        unpack(M_, G0)
        for l in range(2):
            for q in range(2):
                a.e(f"v_pk_fma_f32 {vr(X+4*l+2*q,2)}, {vr(M_+2*q,2)}, {vr(C_+2*l,2)}, s[{sMG}:{sMG+1}] op_sel_hi:[1,0,1]")
        for q in range(4):
            a.e(f"v_perm_b32 v{M_+q}, v{X+2*q+1}, v{X+2*q}, s{sSEL}")
        for l in range(2):
            a.e(f"v_lshl_add_u64 {vr(M_+2*l,2)}, {vr(M_+2*l,2)}, 0, s[{sNB}:{sNB+1}]")
        R_ = RTS[p % NRT]
        if p >= NRT or full:
            a.e(f"s_waitcnt lgkmcnt({0 if full else 2*(NRT-1)})")
            orrt(R_)
        for l in range(2):
            xa = cfg.get('x_at', 0)
            if xa == 1: a.e(f"ds_add_u64 v{L}, {vr(M_+2*l,2)} offset:{ACC + l*STR2}")
            elif xa == 2: a.e(f"ds_add_rtn_u32 v{R_+2*l}, v{L}, v{M_+2*l} offset:{ACC + l*STR2}")
            elif xa == 3: a.e(f"ds_read_b32 v{R_+2*l}, v{vZERO} offset:{ACC + l*STR2}")
            else: a.e(f"ds_add_rtn_u64 {vr(R_+2*l,2)}, v{L}, {vr(M_+2*l,2)} offset:{ACC + l*STR2}")
    def cur(s): return CUR + RSTR * COL[s]
    def viol(v):
        a.e(f"v_and_b32 v{v}, 0x80008000, v{v}")
        a.e(f"v_cmp_ne_u32 vcc, 0, v{v}")
        a.e(f"s_mov_b64 exec, vcc")
        a.e(f"ds_or_b32 v{vZERO}, v{v} offset:{K2_VI}")
        a.e("s_mov_b64 exec, -1")
    def fdone():
        a.e(f"s_waitcnt lgkmcnt(0)")
        for R_ in RTS: orrt(R_)
    def step(s, cnt_of, stub=False, mid=None):
        p = (s - D) % NS
        for q in AT.get(s, []): alpha1(SW_ + q, GB + 2 * q)
        alpha2(SW_ + s, SA_ + s, cur(s))
        if mid: mid()
        uid[0] += 1
        a.e(f"s_cmp_le_u32 s{cnt_of(p)}, {p}")
        if stub:
            a.e(f"s_cbranch_scc1 K2_ST{uid[0]}")
            stubs.append(uid[0])
        else:
            a.e(f"s_cbranch_scc1 K2_SB{uid[0]}")
        u = uid[0]
        beta(cur(p), GB + 2 * p, vmw(p), p, stub)
        a.e(f"K2_SB{u}:")
    def readslot(s):
        uid[0] += 1
        a.e(f"s_cmp_le_u32 s{sCNT}, {s}")
        a.e(f"s_cbranch_scc1 K2_RD{uid[0]}")
        a.e(f"ds_read_b32 v{SW_+s}, v{vA4} offset:{256*s}")
        a.e(f"ds_read_u16_d16_hi v{SA_+s}, v{vA2} offset:{128*s}")
        a.e(f"s_branch K2_RE{uid[0]}")
        a.e(f"K2_RD{uid[0]}:")
        a.e(f"v_mov_b32 v{SW_+s}, {hex(DUMMY)}")
        a.e(f"K2_RE{uid[0]}:")
    a.e(f"v_mov_b32 v{vC4}, 4")
    signal(vC4, K2_FS)
    a.e(f"s_mov_b32 s{sTG}, 32")
    if cfg.get('k2_cprio', 0): a.e(f"s_setprio {cfg['k2_cprio']}")
    a.e("K2_CLOOP:")
    a.e(f"ds_read_b64 {vr(TB,2)}, v{vZERO} offset:{K2_FS}")
    a.e(f"s_mov_b32 s{sCNP}, s{sCNT}")
    a.e(f"s_add_u32 s{sTG}, s{sTG}, 32")
    step(NS - 2, lambda p: sCNP, stub=True)
    stamp(7)
    a.e("K2_CPOLL:")
    a.e(f"v_readfirstlane_b32 s{sT0}, v{TB}")
    a.e(f"v_readfirstlane_b32 s{sN}, v{TB+1}")
    a.e(f"s_cmp_lt_u32 s{sT0}, s{sTG}")
    a.e("s_cbranch_scc1 K2_CPOLL2")
    stamp(8)
    a.e(f"s_and_b32 s{sLAST}, s{sN}, 1")
    a.e(f"s_add_u32 s{sT0}, s{sN}, 252")
    a.e(f"s_lshr_b32 s{sT0}, s{sT0}, 8")
    a.e(f"s_mul_i32 s{sT1}, s{sT0}, s{sWAVE}")
    a.e(f"s_add_u32 s{sT0}, s{sT1}, s{sT0}")
    a.e(f"s_lshr_b32 s{sT1}, s{sT1}, 3")
    a.e(f"s_lshr_b32 s{sT0}, s{sT0}, 3")
    a.e(f"s_sub_u32 s{sCNT}, s{sT0}, s{sT1}")
    a.e(f"s_lshl_b32 s{sT1}, s{sT1}, 7")
    a.e(f"s_add_u32 s{sT0}, s{sT1}, {K2_SA}")
    a.e(f"s_lshl_b32 s{sT1}, s{sT1}, 1")
    a.e(f"s_add_u32 s{sT1}, s{sT1}, {K2_SW}")
    a.e(f"v_lshl_add_u32 v{vA4}, v{vLANE}, 2, s{sT1}")
    a.e(f"v_lshl_add_u32 v{vA2}, v{vLANE}, 1, s{sT0}")
    CP = cfg.get('k2_cp')
    def cprio(s):
        if CP:
            for st_, pr_ in CP:
                if st_ == s: a.e(f"s_setprio {pr_}")
    def reads():
        a.e(f"s_cmp_lt_u32 s{sCNT}, {NS-1}")
        a.e("s_cbranch_scc1 K2_RSLOW")
        for s in range(NS - 1):
            a.e(f"ds_read_b32 v{SW_+s}, v{vA4} offset:{256*s}")
            a.e(f"ds_read_u16_d16_hi v{SA_+s}, v{vA2} offset:{128*s}")
        a.e("K2_RDONE:")
    def reads2():
        readslot(NS - 1)
        a.e(f"s_cmp_gt_u32 s{sCNT}, {NS}")
        a.e("s_cbranch_scc1 K2_EXTRA")
        a.e("K2_NOEXTRA:")
        signal(vC4, K2_FR)
    cprio(-1)
    reads()
    if cfg.get('k2_efr', True):
        step(NS - 1, lambda p: sCNP, stub=True, mid=reads2)
    else:
        step(NS - 1, lambda p: sCNP, stub=True)
        reads2()
    assert D < NS - LATE
    for s in range(NS - LATE):
        if TRACE and s in cfg.get('trace_steps', [0, 4, 8]): stamp(9)
        cprio(s)
        step(s, lambda p: sCNP if p >= NS - D else sCNT, mid=fdone if s == D else None)
    a.e(f"s_cmp_eq_u32 s{sLAST}, 0")
    a.e("s_cbranch_scc1 K2_CLOOP")
    step(NS - 2, lambda p: sCNT)
    step(NS - 1, lambda p: sCNT)
    for i in range(D):
        p = NS - D + i
        uid[0] += 1
        u = uid[0]
        a.e(f"s_cmp_le_u32 s{sCNT}, {p}")
        a.e(f"s_cbranch_scc1 K2_SB{u}")
        beta(cur(p), GB + 2 * p, vmw(p, True), p, False)
        a.e(f"K2_SB{u}:")
    vQ1, vQ2, vO1, vO2, vXC, vC2, QP, QO = 6, 7, 8, 9, 10, 11, 32, 64
    sXB, sFL, sTOP = 52, 53, 54
    a.e(f"s_lshr_b32 s{sT0}, s{sB}, 7")
    a.e(f"s_mul_i32 s{sT0}, s{sT0}, {EPB}")
    a.e(f"s_sub_u32 s{sT1}, {EPB}, s{sT0}")
    a.e(f"v_add_lshl_u32 v{vQ1}, v{vCT}, s{sT0}, 3")
    a.e(f"v_add_lshl_u32 v{vO1}, v{vCT}, s{sT1}, 3")
    a.e(f"v_add_u32 v{vQ2}, {STR2}, v{vQ1}")
    a.e(f"v_add_u32 v{vO2}, {STR2}, v{vO1}")
    a.e(f"v_lshlrev_b32 v{vXC}, 4, v{vCT}")
    a.e(f"v_mov_b32 v{vC2}, 0")
    a.e(f"s_mul_i32 s{sXB}, s{sB}, {XB_STR}")
    a.e(f"s_add_u32 s{sXB}, s{sXB}, {XB_OFF}")
    a.e(f"s_lshl_b32 s{sFL}, s{sB}, 7")
    a.e(f"s_lshl_b32 s{sT1}, s{sWAVE}, 4")
    a.e(f"s_add_u32 s{sFL}, s{sFL}, s{sT1}")
    a.e(f"s_add_u32 s{sFL}, s{sFL}, {FL_OFF}")
    a.e(f"s_mov_b32 s{sTOP}, 0x80008000")
    a.e(f"v_cmp_gt_u32 s[{sM}:{sM+1}], {EPB - 3072}, v{vCT}")
    fdone()
    viol(vCK)
    stamp(10)
    a.e("s_waitcnt vmcnt(0) lgkmcnt(0)")
    a.e("s_barrier")
    a.e("s_setprio 3")
    a.lg = []
    for k in range(7):
        for q in range(2):
            a.lds(f"ds_read_b64 {vr(QP+4*k+2*q,2)}, v{vQ1+q} offset:{ACC + 4096*k}", ('S', k))
    a.lds(f"ds_read_b32 v{vCK}, v{vZERO} offset:{K2_VI}", 'V')
    for k in range(7):
        a.wlg(('S', k))
        for q in range(4):
            a.e(f"v_xor_b32 v{QO+4*k+q}, s{sTOP}, v{QP+4*k+q}")
        if k == 6: a.e(f"s_mov_b64 exec, s[{sM}:{sM+1}]")
        a.e(f"buffer_store_dwordx4 {vr(QO+4*k,4)}, v{vXC}, s[{S_WS}:{S_WS+3}], s{sXB} offen sc1")
        a.e(f"s_add_u32 s{sXB}, s{sXB}, 8192")
    a.wlg0()
    for k in range(6, -1, -1):
        for q in range(2):
            a.e(f"v_or3_b32 v{vCK}, v{vCK}, v{QP+4*k+2*q}, v{QP+4*k+2*q+1}")
        if k == 6: a.e(f"s_mov_b64 exec, -1")
    for k in range(7):
        for q in range(2):
            a.e(f"ds_read_b64 {vr(QP+4*k+2*q,2)}, v{vO1+q} offset:{ACC + 4096*k}")
    a.e(f"v_and_b32 v{vCK}, s{sTOP}, v{vCK}")
    a.e(f"v_cmp_ne_u32 vcc, 0, v{vCK}")
    a.e(f"s_cmp_lg_u64 vcc, 0")
    a.e(f"s_cselect_b32 s{sT0}, 0x8004, 4")
    a.e(f"v_mov_b32 v{vCK}, s{sT0}")
    stamp(12)
    a.e("s_waitcnt vmcnt(0)")
    a.e("s_mov_b64 exec, 1")
    a.e(f"buffer_store_dword v{vCK}, v{vZERO}, s[{S_WS}:{S_WS+3}], s{sFL} offen sc1")
    a.e(f"s_mov_b64 exec, s[{sM}:{sM+1}]")
    a.e("s_setprio 0")
    stamp(13)
    a.e("s_waitcnt lgkmcnt(0)")
    for k in range(6, -1, -1):
        for q in range(2):
            a.e(f"v_or3_b32 v{vC2}, v{vC2}, v{QP+4*k+2*q}, v{QP+4*k+2*q+1}")
        if k == 6: a.e(f"s_mov_b64 exec, -1")
    viol(vC2)
    a.e("s_waitcnt lgkmcnt(0)")
    if cfg.get('x_dump'):
        a.e(f"s_mul_i32 s{sT0}, s{sB}, {13*8192}")
        a.e(f"s_add_u32 s{sT0}, s{sT0}, 0x7000000")
        a.e(f"v_lshlrev_b32 v{TB+8}, 4, v{vCT}")
        for k in range(13):
            a.e(f"ds_read_b128 {vr(TB+4,4)}, v{TB+8}")
            a.e("s_waitcnt lgkmcnt(0)")
            a.e(f"buffer_store_dwordx4 {vr(TB+4,4)}, v{TB+8}, s[{S_WS}:{S_WS+3}], s{sT0} offen")
            a.e("s_waitcnt vmcnt(0)")
            a.e(f"v_add_u32 v{TB+8}, 8192, v{TB+8}")
    a.e("s_barrier")
    a.e(f"ds_read_b32 v{vCK}, v{vZERO} offset:{K2_VI}")
    a.e("s_waitcnt vmcnt(0) lgkmcnt(0)")
    a.e(f"v_cmp_ne_u32 vcc, 0, v{vCK}")
    a.e("s_cbranch_vccz K2_FIN")
    RR, QL, vI, vE, vTL, PW, CC2, GM = 6, 32, 22, 23, 24, 26, 30, 40
    a.e(f"s_and_b32 s{sT0}, s{sB}, 127")
    a.e(f"s_lshl_b32 s{sT0}, s{sT0}, 4")
    a.e(f"v_mul_u32_u24 v{vI}, {REC_STR}, v{vCT}")
    a.e(f"v_add_u32 v{vI}, s{sT0}, v{vI}")
    a.e(f"s_mov_b32 s{sT0}, {REC_OFF}")
    for q in range(4):
        a.e(f"buffer_load_dwordx4 {vr(QL+4*q,4)}, v{vI}, s[{S_WS}:{S_WS+3}], s{sT0} offen offset:{(q>>1)*2048 + (q&1)*16}")
    for k in range(4):
        a.e(f"v_mov_b32 v{TB+4+k}, 0")
    a.e(f"v_lshlrev_b32 v{TB+8}, 4, v{vCT}")
    fill(True)
    a.e(f"s_mov_b32 s{sT0}, {cfg.get('tile_s', TILE_B)}")
    a.e(f"v_mul_lo_u32 v{vTL}, v{vCT}, s{sT0}")
    a.e(f"s_mov_b32 s{sT1}, 0x07060302")
    a.e(f"v_mov_b32 v{vI}, 0")
    a.e("s_waitcnt vmcnt(0)")
    for k in range(16):
        b_ = QL + 8 * (k >> 3) + ((k & 7) >> 1)
        a.e(f"v_perm_b32 v{RR+k}, v{b_+4}, v{b_}, s{sT1 if k & 1 else sSEL}")
        a.e(f"v_sub_u32_sdwa v{vE}, v{RR+k}, v{RR+k} dst_sel:DWORD dst_unused:UNUSED_PAD src0_sel:WORD_1 src1_sel:WORD_0")
        a.e(f"v_add_u32 v{vI}, v{vI}, v{vE}")
    a.e(f"ds_add_u32 v{vZERO}, v{vI} offset:{K2_NB}")
    a.e("s_waitcnt lgkmcnt(0)")
    a.e("s_barrier")
    a.e(f"ds_read_b32 v{t}, v{vZERO} offset:{K2_NB}")
    a.e(f"s_lshr_b32 s{sT1}, s{sB}, 7")
    a.e(f"s_mul_i32 s{sT1}, s{sT1}, {EPB}")
    a.e(f"s_sub_u32 s{sLAST}, {EPB}, s{sT1}")
    a.e(f"s_mov_b32 s{sJ}, 0")
    a.e("s_waitcnt lgkmcnt(0)")
    a.e(f"v_cvt_f32_u32 v{t}, v{t}")
    a.e(f"v_mul_f32 v{t}, s{sMX}, v{t}")
    a.e(f"v_rcp_f32 v{t}, v{t}")
    a.e(f"v_mul_f32 v{t}, 0x4efc0000, v{t}")
    setscale(t)
    a.e("K2_SJ:")
    a.e(f"s_lshr_b32 s{sT1}, s{sJ}, 3")
    mdsrd(f"s{sT1}")
    a.e(f"v_and_b32 v{vI}, 0xffff, v{RR}")
    a.e(f"v_lshrrev_b32 v{vE}, 16, v{RR}")
    for k in range(15):
        a.e(f"v_mov_b32 v{RR+k}, v{RR+k+1}")
    a.e("K2_SI:")
    a.e(f"v_cmp_lt_u32 vcc, v{vI}, v{vE}")
    a.e("s_cbranch_vccz K2_SN")
    a.e(f"s_mov_b64 exec, vcc")
    a.e(f"v_lshrrev_b32 v{GM}, 1, v{vI}")
    a.e(f"v_mad_u32_u24 v{GM}, v{GM}, 12, v{vTL}")
    a.e(f"buffer_load_dwordx3 {vr(PW,3)}, v{GM}, s[{S_WS}:{S_WS+3}], 0 offen")
    a.e(f"v_and_b32 v{GM}, 1, v{vI}")
    a.e(f"v_cmp_eq_u32 vcc, 1, v{GM}")
    a.e(f"v_add_u32 v{vI}, 1, v{vI}")
    a.e("s_waitcnt vmcnt(0)")
    a.e(f"v_cndmask_b32 v{PW}, v{PW}, v{PW+2}, vcc")
    a.e(f"v_lshlrev_b32 v{PW+2}, 16, v{PW+1}")
    a.e(f"v_and_b32 v{PW+1}, s{sHI}, v{PW+1}")
    a.e(f"v_cndmask_b32 v{PW+1}, v{PW+2}, v{PW+1}, vcc")
    a.e(f"v_and_b32 v{GM+2}, {hex(IDXM)}, v{PW}")
    a.e(f"buffer_load_dwordx2 {vr(GM,2)}, v{GM+2}, s[{S_MD}:{S_MD+3}], 0 idxen")
    cosines(PW + 1, CC2, None, 2)
    a.e(f"v_lshrrev_b32 v{PW}, 19, v{PW}")
    a.e(f"v_subrev_u32 v{PW}, s{sLAST}, v{PW}")
    a.e(f"v_cmp_gt_u32 vcc, {EPB}, v{PW}")
    a.e(f"v_lshlrev_b32 v{PW}, 2, v{PW}")
    a.e(f"v_add_u32 v{PW+1}, {STR2}, v{PW}")
    a.e("s_waitcnt vmcnt(0)")
    unpack(TB + 4, GM)
    for l in range(2):
        for q in range(2):
            a.e(f"v_pk_mul_f32 {vr(TB+8+4*l+2*q,2)}, {vr(TB+4+2*q,2)}, {vr(CC2+2*l,2)} op_sel_hi:[1,0]")
    for q in range(8):
        a.e(f"v_cvt_rpi_i32_f32 v{TB+8+q}, v{TB+8+q}")
    a.e(f"s_mov_b64 exec, vcc")
    for q in range(8):
        a.e(f"ds_add_u32 v{PW+(q>>2)}, v{TB+8+q} offset:{ACC + (q&3)*ACC_STR}")
    a.e(f"s_mov_b64 exec, -1")
    a.e("s_branch K2_SI")
    a.e("K2_SN:")
    a.e(f"s_add_u32 s{sJ}, s{sJ}, 1")
    a.e(f"s_cmp_lt_u32 s{sJ}, 16")
    a.e("s_cbranch_scc1 K2_SJ")
    a.e("s_waitcnt lgkmcnt(0)")
    a.e("s_barrier")
    a.e("s_branch K2_FIN")

    for u in stubs:
        a.e(f"K2_ST{u}:")
        a.e("s_waitcnt lgkmcnt(0)")
        a.e(f"s_branch K2_SB{u}")
    a.e("K2_CPOLL2:")
    if cfg.get('k2_cslp', 0): a.e(f"s_sleep {cfg['k2_cslp']}")
    a.e(f"ds_read_b64 {vr(TB,2)}, v{vZERO} offset:{K2_FS}")
    a.e("s_waitcnt lgkmcnt(0)")
    a.e("s_branch K2_CPOLL")
    a.e("K2_RSLOW:")
    for s in range(NS - 1):
        readslot(s)
    a.e("s_branch K2_RDONE")
    a.e("K2_EXTRA:")
    XW, XC = TB, cur(0)
    for s in range(NS, 16):
        if s > NS:
            a.e(f"s_cmp_le_u32 s{sCNT}, {s}")
            a.e("s_cbranch_scc1 K2_NOEXTRA")
        a.e(f"v_mov_b32 v{XW+1}, 0")
        a.e(f"ds_read_b32 v{XW}, v{vA4} offset:{256*s}")
        a.e(f"ds_read_u16_d16_hi v{XW+1}, v{vA2} offset:{128*s}")
        a.e("s_waitcnt lgkmcnt(0)")
        alpha1(XW, GB + 2 * NS)
        alpha2(XW, XW + 1, XC)
        beta(XC, GB + 2 * NS, 0)
        a.e("s_waitcnt lgkmcnt(0)")
    a.e("s_branch K2_NOEXTRA")

    a.e("K2_FIN:")
    if TRACE:
        a.e("s_waitcnt vmcnt(0)")
        stamp(10)
        a.e(f"s_cmp_lg_u32 s2, {cfg.get('trace_wg', 77)}")
        a.e("s_cbranch_scc1 K2_END")
        a.e(f"s_load_dwordx2 s[{S_X}:{S_X+1}], s[0:1], 96")
        a.e(f"s_mov_b32 s{S_X+2}, 4096")
        a.e(f"s_mov_b32 s{S_X+3}, 0x00020000")
        a.e("s_waitcnt lgkmcnt(0)")
        a.e(f"v_lshlrev_b32 v1, 2, v0")
        a.e(f"buffer_store_dword v{vTR}, v1, s[{S_X}:{S_X+3}], 0 offen")
    if cfg.get('rt'): rt_end(a, 1, S_X)
    a.e("K2_END:")
    a.e("s_endpgm")
    return fix_hazards(a.lines)
```

```python
import sys, json
from consts import *
import k1, k1b
def gen_k1(cfg):
    return (k1 if cfg.get('k1v','b')=='a' else k1b).gen_k1(cfg)
import k2, k2b, k2c, k2d, k2e
def gen_k2(cfg):
    return {"a": k2, "b": k2b, "c": k2c, "d": k2d, "e": k2e}[cfg.get("k2v","b")].gen_k2(cfg)

NAME = "standalone__molecular_angular_gemnet__graph"
def build_m(cfg):
    import km
    hdr = open("cdna_kernels/%s.s.ref" % NAME).read().split("; Override launch")[0]
    out = [hdr.rstrip()]
    nm = NAME + "_kernel"
    out.append(f"; @launch grid=({NWG},1,1) block=(1024,1,1) lds={km.L_TOTAL}")
    out.append('.amdgcn_target "amdgcn-amd-amdhsa--gfx950"')
    out.append(".text")
    out.append(f".globl {nm}")
    out.append(".p2align 8")
    out.append(f".type {nm},@function")
    out.append(f"{nm}:")
    out += km.gen_km(cfg)
    out.append('.section .rodata,"a"')
    out.append(".p2align 6")
    out.append(f".amdhsa_kernel {nm}")
    out.append("  .amdhsa_next_free_vgpr 128")
    out.append("  .amdhsa_next_free_sgpr 102")
    out.append("  .amdhsa_accum_offset 128")
    out.append("  .amdhsa_group_segment_fixed_size 0")
    out.append("  .amdhsa_kernarg_size 112")
    out.append("  .amdhsa_user_sgpr_count 2")
    out.append("  .amdhsa_user_sgpr_kernarg_segment_ptr 1")
    out.append("  .amdhsa_system_sgpr_workgroup_id_x 1")
    out.append(".end_amdhsa_kernel")
    return "\n".join(out) + "\n"

def build(cfg):
    if cfg.get('m', True): return build_m(cfg)
    hdr = open("cdna_kernels/%s.s.ref" % NAME).read().split("; Override launch")[0]
    out = [hdr.rstrip()]
    out.append(f"; @launch kernel=gemnet_part_kernel grid=({NWG},1,1) block=(1024,1,1) lds={K1_LDS if cfg.get('k1v','b')=='a' else K1B_LDS}")
    out.append(f"; @launch kernel={NAME}_kernel grid=({NWG},1,1) block=(1024,1,1) lds={k2e.LDS_BYTES if cfg.get('k2v')=='e' else K2_LDS + (1024 if cfg.get('k2_wl') else 0)}")
    out.append('.amdgcn_target "amdgcn-amd-amdhsa--gfx950"')
    out.append(".text")
    b2 = gen_k2(cfg)
    if cfg.get('pad'):
        import pads
        b2 = pads.addpads(["    s_mov_b64 exec, -1"] + b2, cfg['pad'], cfg.get('pad_skip', []), 8, "K2_END", "K2_W")
    for nm, body in (("gemnet_part_kernel", gen_k1(cfg)), (NAME + "_kernel", b2)):
        out.append(f".globl {nm}")
        out.append(".p2align 8")
        out.append(f".type {nm},@function")
        out.append(f"{nm}:")
        out += body
    out.append('.section .rodata,"a"')
    for nm in ("gemnet_part_kernel", NAME + "_kernel"):
        out.append(".p2align 6")
        out.append(f".amdhsa_kernel {nm}")
        out.append("  .amdhsa_next_free_vgpr 128")
        out.append("  .amdhsa_next_free_sgpr 102")
        out.append("  .amdhsa_accum_offset 128")
        out.append("  .amdhsa_group_segment_fixed_size 0")
        out.append("  .amdhsa_kernarg_size 112")
        out.append("  .amdhsa_user_sgpr_count 2")
        out.append("  .amdhsa_user_sgpr_kernarg_segment_ptr 1")
        out.append("  .amdhsa_system_sgpr_workgroup_id_x 1")
        out.append(".end_amdhsa_kernel")
    return "\n".join(out) + "\n"

if __name__ == "__main__":
    path = sys.argv[1]
    cfg = {"k2_pf":0,"k2_cprio":1,"k2_pprio":3,"k2_sprio":0,"k2_d":5}
    cfg.update(json.loads(sys.argv[2]) if len(sys.argv) > 2 else {})
    open(path, "w").write(build(cfg))
```

```python
from asmlib import *
from consts import *
from k1 import dpp_scan, rt_end

def gen_k1(cfg):
    a = Asm()
    LDNT = " nt" if cfg.get('k1_ld_nt', True) else ""
    STNT = cfg.get('k1_st', "")
    DEP = cfg.get('k1_dep', 4)
    NR = 12
    H2 = cfg.get('k2v', 'b') in 'cde'
    H3 = cfg.get('k2v', 'b') in 'de'
    SPLIT = cfg.get('split', cfg.get('k2v') != 'e')
    sM6 = 61
    MDT = cfg.get('mdt', 0)
    S_IN, S_OUT, S_ANG, S_WS, S_M = 4, 8, 12, 16, 20
    S_WD = 28
    S_WP = 36
    sWAVE, sMB, sMJ, sNEG, sT0, sT1, sT2, sBASE, sOOB = 44, 45, 46, 47, 48, 49, 50, 51, 52
    sTOFF4, sTOFF2, sPAY, sREC, sR6, sHI, sK = 54, 55, 56, 57, 58, 59, 60
    vOFF16, vOFF8, vINC, vZERO, vX, vY, vZ = 1, 2, 3, 4, 5, 6, 7
    def RIN(r): return 8 + 8 * r if r < NR else 104
    def ROUT(r): return 12 + 8 * r if r < NR else 105
    RING = 106
    def RANG(r): return RING + 2 * (r % DEP)
    TMP = 116
    assert RING + 2 * DEP <= TMP or cfg.get('k1_def') == 3
    TRACE = cfg.get('trace1', False)
    vTR, sPT, sPA = 127, 88, 90
    def stamp(i):
        if not TRACE: return
        if i < 0:
            a.e(f"s_mov_b32 s{sPA}, 0")
            a.e(f"v_mov_b32 v{vTR}, 0")
            i = 15
        a.e(f"s_memtime s[{sPT}:{sPT+1}]")
        a.wlg0()
        a.e(f"s_andn2_b32 s{sPT}, s{sPT}, 15")
        a.e(f"s_or_b32 s{sPT}, s{sPT}, {i}")
        a.e(f"s_mov_b32 m0, s{sPA}")
        a.e(f"s_add_u32 s{sPA}, s{sPA}, 1")
        a.e(f"v_writelane_b32 v{vTR}, s{sPT}, m0")

    a.e(f"s_cmp_ge_u32 s2, {NWG}")
    a.e("s_cbranch_scc1 K1_END")
    stamp(-1)
    if cfg.get('rt'): a.e("s_memrealtime s[96:97]")
    a.e(f"s_load_dwordx2 s[{S_IN}:{S_IN+1}], s[0:1], 8")
    a.e(f"s_load_dwordx2 s[{S_OUT}:{S_OUT+1}], s[0:1], 16")
    a.e(f"s_load_dwordx2 s[{S_ANG}:{S_ANG+1}], s[0:1], 32")
    a.e(f"s_load_dwordx2 s[{S_WS}:{S_WS+1}], s[0:1], 104")
    a.e(f"s_load_dwordx2 s[{S_M}:{S_M+1}], s[0:1], 0")
    a.e(f"s_load_dwordx2 s[24:25], s[0:1], 72")
    for s, n in ((S_IN, T * 4), (S_OUT, T * 4), (S_ANG, T * 2), (S_WS, WS_BYTES), (S_M, E * 8)):
        a.e(f"s_mov_b32 s{s+2}, {n}")
        a.e(f"s_mov_b32 s{s+3}, 0x00020000")
    a.e(f"v_lshrrev_b32 v{vX}, 6, v0")
    a.e(f"v_readfirstlane_b32 s{sWAVE}, v{vX}")
    a.e(f"v_mov_b32 v{vZERO}, 0")
    a.e(f"v_mov_b32 v{vX}, 0")
    a.e(f"v_lshlrev_b32 v{vY}, 3, v0")
    a.e(f"ds_write_b64 v{vY}, {vr(vZERO,2)}")
    a.e(f"v_and_b32 v{vY}, 0x78, v{vY}")
    a.e(f"ds_write_b64 v{vY}, {vr(vZERO,2)} offset:{K1B_MISC}")
    a.e(f"v_and_b32 v0, 511, v0")
    a.e(f"v_lshlrev_b32 v{vOFF16}, 4, v0")
    a.e(f"v_lshlrev_b32 v{vOFF8}, 3, v0")
    a.e(f"s_mov_b32 s{sMB}, {MB * 2 if H2 else MB}")
    a.e(f"s_mov_b32 s{sMJ}, {cfg.get('mj', MJ) * 2 if H2 else MJ}")
    if H2: a.e(f"s_mov_b32 s{sM6}, {cfg.get('m6', M6)}")
    a.e(f"s_mov_b32 s{sNEG}, {-EPB}")
    a.e(f"s_mov_b32 s{sOOB}, 0x80000000")
    a.e(f"s_mov_b32 s{sHI}, 0xffff0000")
    a.e(f"s_mov_b32 s{sK}, {K1B_TILE}")
    a.e(f"s_lshr_b32 s{sBASE}, s{sWAVE}, 3")
    a.e(f"s_and_b32 s{sWAVE}, s{sWAVE}, 7")
    a.e(f"s_lshl_b32 s{sT0}, s{sBASE}, 8")
    a.e(f"s_add_u32 s{sT0}, s{sT0}, s2")
    if cfg.get('x_tx'): a.e(f"s_xor_b32 s{sT0}, s{sT0}, {cfg['x_tx']}")
    a.e(f"s_mul_i32 s{sPAY}, s{sT0}, {cfg.get('tile_s', TILE_B)}")
    a.e(f"s_mul_i32 s{sREC}, s{sT0}, {REC_STR}")
    a.e(f"s_add_u32 s{sREC}, s{sREC}, {REC_OFF}")
    a.e(f"s_mul_i32 s{sT1}, s{sT0}, 3125")
    a.e(f"s_add_u32 s{sT2}, s{sT1}, 3125")
    a.e(f"s_lshr_b32 s{sT1}, s{sT1}, 3")
    a.e(f"s_lshr_b32 s{sT2}, s{sT2}, 3")
    a.e(f"s_sub_u32 s{sT2}, s{sT2}, s{sT1}")
    a.e(f"s_sub_u32 s{sT2}, s{sT2}, 384")
    a.e(f"s_lshl_b32 s{sTOFF4}, s{sT1}, 8")
    a.e(f"s_lshl_b32 s{sTOFF2}, s{sT1}, 7")
    a.e(f"s_cmp_lt_u32 s{sWAVE}, s{sT2}")
    a.e(f"s_cselect_b32 s{sR6}, 0, s{sOOB}")
    a.e("s_waitcnt lgkmcnt(0)")
    a.e("s_barrier")
    a.e(f"s_cmp_lg_u32 s{sBASE}, 0")
    a.e("s_cbranch_scc1 K1_Q")

    DEF = [False]
    NRG = cfg.get('k1_nrg', 4)
    def AREG(r): return RING + 2 * r if r < NRG else RIN((r - NRG) >> 1) + 2 * ((r - NRG) & 1)
    def aload(r):
        a.e(f"s_add_u32 s{sT1}, s{sTOFF2}, {r * 4096}")
        if r < NR:
            a.vmem(f"buffer_load_dwordx2 {vr(AREG(r),2)}, v{vOFF8}, s[{S_ANG}:{S_ANG+3}], s{sT1} offen{LDNT}", ('A', r))
        else:
            a.e(f"v_lshl_or_b32 v{AREG(r)}, v0, 1, s{sR6}")
            a.vmem(f"buffer_load_ushort v{AREG(r)}, v{AREG(r)}, s[{S_ANG}:{S_ANG+3}], s{sT1} offen{LDNT}", ('A', r))
    def loads(r):
        a.e(f"s_add_u32 s{sT0}, s{sTOFF4}, {r * 8192}")
        if DEF[0]:
            if r < NR:
                a.vmem(f"buffer_load_dwordx4 {vr(RIN(r),4)}, v{vOFF16}, s[{S_IN}:{S_IN+3}], s{sT0} offen{LDNT}", ('L', r))
                a.vmem(f"buffer_load_dwordx4 {vr(ROUT(r),4)}, v{vOFF16}, s[{S_OUT}:{S_OUT+3}], s{sT0} offen{LDNT}", ('L', r))
            else:
                a.e(f"v_lshl_or_b32 v{TMP+8}, v0, 2, s{sR6}")
                a.vmem(f"buffer_load_dword v{RIN(r)}, v{TMP+8}, s[{S_IN}:{S_IN+3}], s{sT0} offen{LDNT}", ('L', r))
                a.vmem(f"buffer_load_dword v{ROUT(r)}, v{TMP+8}, s[{S_OUT}:{S_OUT+3}], s{sT0} offen{LDNT}", ('L', r))
            return
        a.e(f"s_add_u32 s{sT1}, s{sTOFF2}, {r * 4096}")
        if r < NR:
            a.vmem(f"buffer_load_dwordx4 {vr(RIN(r),4)}, v{vOFF16}, s[{S_IN}:{S_IN+3}], s{sT0} offen{LDNT}", ('L', r))
            a.vmem(f"buffer_load_dwordx4 {vr(ROUT(r),4)}, v{vOFF16}, s[{S_OUT}:{S_OUT+3}], s{sT0} offen{LDNT}", ('L', r))
            a.vmem(f"buffer_load_dwordx2 {vr(RANG(r),2)}, v{vOFF8}, s[{S_ANG}:{S_ANG+3}], s{sT1} offen{LDNT}", ('A', r))
        else:
            a.e(f"v_lshl_or_b32 v{TMP+8}, v0, 2, s{sR6}")
            a.e(f"v_lshl_or_b32 v{TMP+9}, v0, 1, s{sR6}")
            a.vmem(f"buffer_load_dword v{RIN(r)}, v{TMP+8}, s[{S_IN}:{S_IN+3}], s{sT0} offen{LDNT}", ('L', r))
            a.vmem(f"buffer_load_dword v{ROUT(r)}, v{TMP+8}, s[{S_OUT}:{S_OUT+3}], s{sT0} offen{LDNT}", ('L', r))
            a.vmem(f"buffer_load_ushort v{RANG(r)}, v{TMP+9}, s[{S_ANG}:{S_ANG+3}], s{sT1} offen{LDNT}", ('A', r))

    def hist(r):
        a.wvm(('L', r))
        n = 4 if r < NR else 1
        if r == NR:
            a.e(f"s_cmp_eq_u32 s{sR6}, 0")
            a.e(f"s_cselect_b64 exec, -1, 0")
        for k in range(n):
            vi, vo, t0, t1 = RIN(r) + k, ROUT(r) + k, TMP + k, TMP + 4 + k
            if H2:
                t2 = vX + (k & 1)
                a.e(f"v_mul_hi_u32_u24 v{t0}, s{sMB}, v{vo}")
                a.e(f"v_mul_hi_u32_u24 v{t1}, s{sMJ}, v{vi}")
                if SPLIT:
                    a.e(f"v_mul_hi_u32_u24 v{t2}, s{sM6}, v{vi}")
                a.e(f"v_lshlrev_b32 v{vo}, 1, v{vo}")
                if SPLIT:
                    a.e(f"v_bfi_b32 v{t1}, v{t2}, v{t0}, v{t1}")
                a.e(f"v_and_b32 v{t0}, 0x1fc, v{t0}")
                a.e(f"v_bfi_b32 v{t1}, 1, v{vi}, v{t1}")
                a.e(f"v_mad_i32_i24 v{vo}, v{t0}, s{sNEG}, v{vo}")
                a.e(f"v_lshrrev_b32 v{vi}, 1, v{vi}")
                if DEF[0]:
                    a.e(f"v_lshl_or_b32 v{vi}, v{vo}, 18, v{vi}")
                    a.e(f"v_lshl_or_b32 v{vo}, v{t1}, 9, v{t0}")
                    a.e(f"ds_add_u32 v{vo}, v{vINC}")
                    continue
                a.e(f"v_lshl_or_b32 v{t0}, v{t1}, 9, v{t0}")
                a.e(f"v_lshl_or_b32 v{vi}, v{vo}, 18, v{vi}")
                a.e(f"ds_add_u32 v{t0}, v{vINC}")
                continue
            a.e(f"v_mul_hi_u32 v{t0}, v{vo}, s{sMB}")
            a.e(f"v_mul_hi_u32 v{t1}, v{vi}, s{sMJ}")
            a.e(f"v_mad_i32_i24 v{vo}, v{t0}, s{sNEG}, v{vo}")
            a.e(f"v_lshlrev_b32 v{t0}, 2, v{t0}")
            a.e(f"v_lshl_or_b32 v{vi}, v{vo}, 20, v{vi}")
            a.e(f"v_lshl_add_u32 v{t0}, v{t1}, 10, v{t0}")
            a.e(f"ds_add_u32 v{t0}, v{vINC}")
        if not DEF[0]: a.wvm(('A', r))
        for k in range(0 if DEF[0] else n):
            if k & 1:
                a.e(f"v_and_or_b32 v{ROUT(r)+k}, v{RANG(r)+(k>>1)}, s{sHI}, v{TMP+k}")
            else:
                a.e(f"v_lshl_or_b32 v{ROUT(r)+k}, v{RANG(r)+(k>>1)}, 16, v{TMP+k}")
        if r == NR:
            a.e("s_mov_b64 exec, -1")

    def group(g):
        nsync = [0]
        def sync():
            if g == 1 and MDT and nsync[0] == 0:
                nsync[0] += 1
                a.barrier(); return
            if g == 1 and not (cfg.get('pad') or MDT):
                a.barrier(); return
            if g == 1:
                off = K1B_FLAG + 16 + 4 * nsync[0]
                nsync[0] += 1
                a.e(f"v_mov_b32 v{vZ}, 1")
                a.e("s_mov_b64 exec, 1")
                a.e(f"ds_add_u32 v{vZERO}, v{vZ} offset:{off}")
                a.e("s_mov_b64 exec, -1")
                a.e(f"K1_QL{nsync[0]}:")
                a.e(f"ds_read_b32 v{vZ}, v{vZERO} offset:{off}")
                a.wlg0()
                a.e(f"v_readfirstlane_b32 s{sT0}, v{vZ}")
                a.e(f"s_cmp_lt_u32 s{sT0}, {16 if nsync[0] == 1 else 8}")
                a.e(f"s_cbranch_scc1 K1_QL{nsync[0]}")
                return
            off = K1B_FLAG + 4 * nsync[0]
            nsync[0] += 1
            a.e("s_mov_b64 exec, 1")
            a.e(f"ds_add_u32 v{vZERO}, v{vINC} offset:{off}")
            a.e("s_mov_b64 exec, -1")
            a.e(f"K1_PL{nsync[0]}:")
            a.e(f"ds_read_b32 v{vZ}, v{vZERO} offset:{off}")
            a.wlg0()
            a.e(f"v_readfirstlane_b32 s{sT0}, v{vZ}")
            a.e(f"s_cmp_lt_u32 s{sT0}, 8")
            a.e(f"s_cbranch_scc1 K1_PL{nsync[0]}")
        a.e(f"v_mov_b32 v{vINC}, {1 if g == 0 else 0x10000}")
        DEF[0] = bool(cfg.get('k1_def', 0) >> g & 1)
        DP = cfg.get('k1_dep%d' % g, DEP) if DEF[0] else DEP
        THR = cfg.get('k1_thr%d' % g, cfg.get('k1_thr', 0))
        if THR:
            a.e(f"s_and_b32 vcc_lo, s2, 1")
            a.e(f"s_mov_b32 vcc_hi, 0")
        def tloads(i):
            per = 2 if DEF[0] else 3
            nmax = round((DP - THR - 1) * per)
            if THR and i * per > nmax:
                a.e(f"s_cbranch_vccnz K1_T{g}_{i}")
                a.e(f"s_waitcnt vmcnt({nmax})")
                a.e(f"K1_T{g}_{i}:")
            loads(i)
        for r in range(DP):
            tloads(r)
        for r in range(NR + 1):
            hist(r)
            if r + DP <= NR: tloads(r + DP)
            if DEF[0] and r >= NR + 1 - NRG: aload(r - (NR + 1 - NRG))
            if r in (3, 7): stamp(1)
        stamp(2)
        sync()
        stamp(3)
        C, SS, W0 = (116, 114, 120) if DEF[0] else (108, 112, 116)
        a.e(f"ds_read_b128 {vr(C,4)}, v{vOFF16}")
        if g == 1 and not MDT:
            a.e(f"ds_read_b64 {vr(W0,2)}, v{vZERO} offset:{K1B_MAXC}" if H3 else f"ds_read_b32 v{W0+1}, v{vZERO} offset:{K1B_MAXC}")
            a.e(f"s_lshl_b32 s{sT0}, s2, {3 if H3 else 2}")
            a.e(f"v_mov_b32 v{W0+2}, s{sT0}")
            a.e(f"v_mov_b32 v{W0+3}, s{sOOB}")
            a.e(f"v_cmp_eq_u32 vcc, 0, v0")
            a.e(f"v_cndmask_b32 v{W0+2}, v{W0+3}, v{W0+2}, vcc")
            a.e(f"s_mov_b32 s{sT0}, {MX_OFF}")
        a.e("s_waitcnt lgkmcnt(0)")
        if g == 1 and not MDT:
            a.vmem(f"buffer_store_dword{'x2' if H3 else ''} {vr(W0,2) if H3 else vr(W0+1)}, v{W0+2}, s[{S_WS}:{S_WS+3}], s{sT0} offen{STNT}", 'S')
        for k in range(4):
            a.e(f"v_and_b32 v{C+k}, 0xffff, v{C+k}" if g == 0 else f"v_lshrrev_b32 v{C+k}, 16, v{C+k}")
        a.e(f"v_add_u32 v{SS}, v{C}, v{C+1}")
        a.e(f"v_add3_u32 v{SS}, v{SS}, v{C+2}, v{C+3}")
        a.e(f"v_mov_b32 v{SS+1}, v{SS}")
        dpp_scan(a, SS)
        a.e(f"s_lshl_b32 s{sT0}, s{sWAVE}, 2")
        a.e(f"v_mov_b32 v{W0}, s{sT0}")
        a.e("s_lshl_b64 exec, 1, 63")
        a.e(f"ds_write_b32 v{W0}, v{SS} offset:{K1B_WTOT}")
        a.e("s_mov_b64 exec, -1")
        a.e(f"v_sub_u32 v{SS}, v{SS}, v{SS+1}")
        a.e(f"v_and_b32 v{W0+4}, 7, v0")
        a.e(f"v_lshlrev_b32 v{W0}, 2, v{W0+4}")
        a.e(f"v_and_b32 v{W0+6}, 63, v0")
        a.e(f"s_lshl_b32 s{sT1}, s{sWAVE}, 1")
        a.e(f"v_lshl_add_u32 v{W0+6}, v{W0+6}, 6, s{sT1}")
        sync()
        a.e(f"ds_read_b32 v{W0+5}, v{W0} offset:{K1B_WTOT}")
        a.e(f"v_cmp_gt_u32 vcc, s{sWAVE}, v{W0+4}")
        a.e("s_waitcnt lgkmcnt(0)")
        a.e(f"v_cndmask_b32 v{W0+5}, 0, v{W0+5}, vcc")
        for sh in (1, 2, 4):
            a.e(f"v_add_u32_dpp v{W0+5}, v{W0+5}, v{W0+5} row_shr:{sh} row_mask:0xf bank_mask:0xf bound_ctrl:0")
        a.e(f"v_readlane_b32 s{sBASE}, v{W0+5}, 7")
        a.e(f"v_add_u32 v{W0}, s{sBASE}, v{SS}")
        for k in range(4):
            a.e(f"v_add_u32 v{W0+1+k}, v{W0+k}, v{C+k}")
        if g == 0:
            for k in range(4):
                a.e(f"v_sub_u32 v{C+k}, v{W0+k}, v{C+k}")
            for k in range(4):
                a.e(f"ds_add_u32 v{vOFF16}, v{C+k} offset:{4*k}")
        else:
            for k in range(4):
                a.e(f"v_mad_u32_u24 v{C+k}, v{W0+k}, 6, s{sK}")
            a.e(f"ds_write_b128 v{vOFF16}, {vr(C,4)}")
            a.e(f"v_mov_b32 v{vINC}, 6")
        for k in range(5):
            a.e(f"ds_write_b16 v{W0+6}, v{W0+k} offset:{K1B_STG + 16*k}")
        sync()
        stamp(4)
        U = [106, 110]
        WA, AA = 114, 118
        RS = 120
        a.lds(f"ds_read_b128 {vr(RS,4)}, v{vOFF16} offset:{K1B_STG}", 'RS')
        if DEF[0]:
            U = [ROUT(r) for r in range(NR + 1)]
            WA, AA = 116, 124
        else:
            U = [U[r & 1] for r in range(NR + 1)]
        def rtn(r):
            n = 4 if r < NR else 1
            for k in range(0 if DEF[0] else n):
                a.e(f"v_and_b32 v{U[r]+k}, 0xffff, v{ROUT(r)+k}")
            if r == NR:
                a.e(f"s_cmp_eq_u32 s{sR6}, 0")
                a.e(f"s_cselect_b64 exec, -1, 0")
            for k in range(n):
                a.lds(f"ds_add_rtn_u32 v{U[r]+k}, v{U[r]+k}, v{vINC}", ('R', r))
            if r == NR:
                a.e("s_mov_b64 exec, -1")
        rtn(0)
        a.e(f"v_cmp_gt_u32 vcc, 257, v0")
        a.e(f"v_mov_b32 v{vX}, s{sOOB}")
        a.e(f"v_cndmask_b32 v{vX}, v{vX}, v{vOFF16}, vcc")
        a.wlg('RS')
        a.vmem(f"buffer_store_dwordx4 {vr(RS,4)}, v{vX}, s[{S_WS}:{S_WS+3}], s{sREC} offen{STNT}", 'S')
        for r in range(NR + 1):
            n = 4 if r < NR else 1
            if r + 1 <= NR: rtn(r + 1)
            a.wlg(('R', r))
            for k in range(n):
                u, wa, aa = U[r] + k, WA + k, AA + k
                if DEF[0]: aa = 114 + (k & 1)
                if g == 0:
                    a.e(f"v_mad_u32_u16 v{u}, v{u}, 6, s{sK}")
                a.e(f"v_and_b32 v{aa}, 2, v{u}")
                a.e(f"v_add_u32 v{wa}, v{u}, v{aa}")
                a.e(f"v_mad_i32_i24 v{u if DEF[0] else aa}, v{aa}, -2, v{u}")
            if DEF[0]: a.wvm(('A', r))
            if r == NR:
                a.e(f"s_cmp_eq_u32 s{sR6}, 0")
                a.e(f"s_cselect_b64 exec, -1, 0")
            for k in range(n):
                a.lds(f"ds_write_b32 v{WA+k}, v{RIN(r)+k}")
                if DEF[0]:
                    a.lds(f"ds_write_b16{'_d16_hi' if k & 1 else ''} v{U[r]+k}, v{AREG(r)+(k>>1)} offset:4")
                else:
                    a.lds(f"ds_write_b16_d16_hi v{AA+k}, v{ROUT(r)+k} offset:4")
            if DEF[0]:
                for r2 in (NRG + 2 * r, NRG + 2 * r + 1):
                    if r2 <= NR: aload(r2)
            if r == NR:
                a.e("s_mov_b64 exec, -1")
        LB = [vX, vY, vZ + 0]
        stamp(5)
        sync()
        stamp(6)
        NQ = 19
        LBR = [116, 117, 118]
        for h in range(3):
            a.e(f"v_add_u32 v{LBR[h]}, {K1B_TILE + 65536*h}, v{vOFF16}")
        a.e(f"v_cmp_gt_u32 vcc, {(TILE_B - 18*8192)//16}, v0")
        a.e(f"v_mov_b32 v{vX}, s{sOOB}")
        a.e(f"v_cndmask_b32 v{vX}, v{vX}, v{vOFF16}, vcc")
        a.e(f"v_cndmask_b32 v{vY}, v{LBR[0]}, v{LBR[2]}, vcc")
        def rd(q):
            a.lds(f"ds_read_b128 {vr(8+4*q,4)}, v{LBR[q>>3] if q < 18 else vY} offset:{(q&7)*8192}", ('W', q))
        for q in range(8): rd(q)
        STH = cfg.get('k1_sthr%d' % g, -1)
        if STH >= 0:
            a.e(f"s_and_b32 vcc_lo, s2, 1")
            a.e(f"s_mov_b32 vcc_hi, 0")
        if cfg.get('k1_wprio%d' % g, -1) >= 0: a.e(f"s_setprio {cfg['k1_wprio%d' % g]}")
        for q in range(NQ):
            if q + 8 < NQ: rd(q + 8)
            a.wlg(('W', q))
            if STH >= 0 and q > STH:
                a.e(f"s_cbranch_vccnz K1_S{g}_{q}")
                a.e(f"s_waitcnt vmcnt({STH})")
                a.e(f"K1_S{g}_{q}:")
            a.e(f"s_add_u32 s{sT2}, s{sPAY}, {q*8192}")
            a.vmem(f"buffer_store_dwordx4 {vr(8+4*q,4)}, v{vOFF16 if q < 18 else vX}, s[{S_WS}:{S_WS+3}], s{sT2} offen{STNT}", 'S')
        stamp(7)

    def trace_end(g):
        if TRACE:
            a.wvm0()
            stamp(8)
            a.e(f"s_cmp_lg_u32 s2, {cfg.get('trace_wg', 77)}")
            a.e("s_cbranch_scc1 K1_END")
            a.e(f"s_load_dwordx2 s[{S_M}:{S_M+1}], s[0:1], 96")
            a.e(f"s_mov_b32 s{S_M+2}, 4096")
            a.e("s_waitcnt lgkmcnt(0)")
            a.e(f"v_lshlrev_b32 v1, 2, v0")
            a.e(f"buffer_store_dword v{vTR}, v1, s[{S_M}:{S_M+3}], 0 offen offset:{2048*g}")

    def mdblock():
        a.e(f"s_load_dwordx8 s[{S_WD}:{S_WD+7}], s[24:25], 0")
        vM, vMO, D, vMAX = 8, 24, 32, 28
        a.e(f"s_mul_i32 s{sT0}, s2, {MD_WG_B}")
        a.e(f"v_add_u32 v{vMO}, s{sT0}, v{vOFF16}")
        for q in range(1, 4):
            a.e(f"v_add_u32 v{vMO+q}, {8192*q}, v{vMO}")
        a.e(f"v_mov_b32 v{vX}, s{sOOB}")
        a.e(f"v_cmp_gt_u32 vcc, {(MD_WG_B - 3*8192)//16}, v0")
        a.e(f"v_cndmask_b32 v{vMO+3}, v{vX}, v{vMO+3}, vcc")
        for q in range(4):
            a.vmem(f"buffer_load_dwordx4 {vr(vM+4*q,4)}, v{vMO+q}, s[{S_M}:{S_M+3}], 0 offen", ('M', q))
        a.e(f"v_mov_b32 v{vMAX}, 0")
        a.e("s_waitcnt lgkmcnt(0)")
        for d in range(4):
            for h in range(2):
                r0 = S_WD + 4 * h + (d >> 1); r1 = r0 + 2
                a.e(f"s_pack_{'hh' if d & 1 else 'll'}_b32_b16 s{S_WP + 2*d + h}, s{r0}, s{r1}")
        a.e(f"s_mov_b32 s{sT0}, {MD_OFF}")
        a.wvm(('M', 3))
        for ed in range(8):
            m01 = vM + 2 * ed
            for d in range(4):
                a.e(f"v_dot2_f32_bf16 v{D+4*ed+d}, v{m01}, s{S_WP+2*d}, 0")
            for d in range(4):
                a.e(f"v_dot2_f32_bf16 v{D+4*ed+d}, v{m01+1}, s{S_WP+2*d+1}, v{D+4*ed+d}")
        for ed in range(8):
            m01 = vM + 2 * ed
            a.e(f"v_max3_f32 v{vMAX}, abs(v{D+4*ed}), abs(v{D+4*ed+1}), v{vMAX}")
            a.e(f"v_max3_f32 v{vMAX}, abs(v{D+4*ed+2}), abs(v{D+4*ed+3}), v{vMAX}")
            a.e(f"v_cvt_pk_bf16_f32 v{m01}, v{D+4*ed}, v{D+4*ed+1}")
            a.e(f"v_cvt_pk_bf16_f32 v{m01+1}, v{D+4*ed+2}, v{D+4*ed+3}")
        if H2:
            a.e(f"s_mov_b32 s{sT1}, {MD_OFF + MD_TSTR}")
            for q in range(4):
                a.e(f"v_lshrrev_b32 v{vMO+q}, 1, v{vMO+q}")
            for q in range(4):
                a.vmem(f"buffer_store_dwordx2 {vr(vM+4*q,2)}, v{vMO+q}, s[{S_WS}:{S_WS+3}], s{sT0} offen{STNT}", 'S')
                a.vmem(f"buffer_store_dwordx2 {vr(vM+4*q+2,2)}, v{vMO+q}, s[{S_WS}:{S_WS+3}], s{sT1} offen{STNT}", 'S')
            a.e(f"s_lshl_b32 s{sT1}, s2, 7")
            a.e(f"s_add_u32 s{sT1}, s{sT1}, {FL_OFF}")
            a.e(f"v_cmp_gt_u32 vcc, 8, v0")
            a.e(f"v_cndmask_b32 v{vX}, v{vX}, v{vOFF16}, vcc")
            a.vmem(f"buffer_store_dword v{vZERO}, v{vX}, s[{S_WS}:{S_WS+3}], s{sT1} offen{STNT}", 'S')
        else:
          for q in range(4):
            a.vmem(f"buffer_store_dwordx4 {vr(vM+4*q,4)}, v{vMO+q}, s[{S_WS}:{S_WS+3}], s{sT0} offen{STNT}", 'S')
        if H3:
            for st in (16, 8, 4, 2, 1):
                for i in range(st):
                    a.e(f"v_add_f32 v{D+i}, abs(v{D+i}), abs(v{D+i+st})")
            dpp_scan(a, D, "v_add_f32")
        dpp_scan(a, vMAX, "v_max_u32")
        a.e("s_lshl_b64 exec, 1, 63")
        if H3: a.e(f"ds_add_f32 v{vZERO}, v{D} offset:{K1B_MAXC+4}")
        a.e(f"ds_max_u32 v{vZERO}, v{vMAX} offset:{K1B_MAXC}")
        a.e("s_mov_b64 exec, -1")

    if cfg.get('k1_pprio', 1): a.e(f"s_setprio {cfg.get('k1_pprio', 1)}")
    group(0)
    PFA = cfg.get('k1_pf', -1)
    def codepf():
        KN = "standalone__molecular_angular_gemnet__graph_kernel"
        a.e(f"s_getpc_b64 s[{S_M}:{S_M+1}]")
        a.e("K1_PC:")
        a.e(f"s_add_u32 s{S_M}, s{S_M}, {KN}-K1_PC")
        a.e(f"s_addc_u32 s{S_M+1}, s{S_M+1}, 0")
        a.e(f"s_mov_b32 s{S_M+2}, K2_END-{KN}")
        for q in range(5):
            a.e(f"s_mov_b32 s{sT0}, {8192*q}")
            a.e(f"buffer_load_dwordx4 {vr(88+4*q,4)}, v{vOFF16}, s[{S_M}:{S_M+3}], s{sT0} offen")
    if MDT:
        if MDT == 1: a.e("s_barrier")
        a.e(f"s_setprio {cfg.get('mdprio', 0)}")
        a.wvm0()
        mdblock()
        if MDT == 2: a.e("s_barrier")
        a.e("s_mov_b64 exec, 1")
        a.e(f"ds_add_rtn_u32 v{vZ}, v{vZERO}, v{vINC} offset:{K1B_FLAG + 16}")
        a.e(f"ds_read_b64 v[30:31], v{vZERO} offset:{K1B_MAXC}")
        a.e(f"s_lshl_b32 s{sT0}, s2, 3")
        a.e(f"s_add_u32 s{sT0}, s{sT0}, {MX_OFF}")
        a.e(f"v_mov_b32 v{vX}, s{sOOB}")
        a.e("s_waitcnt lgkmcnt(0)")
        a.e(f"v_cmp_eq_u32 vcc, 7, v{vZ}")
        a.e(f"v_cndmask_b32 v{vX}, v{vX}, v{vZERO}, vcc")
        a.e(f"buffer_store_dwordx2 v[30:31], v{vX}, s[{S_WS}:{S_WS+3}], s{sT0} offen{STNT}")
        a.e("s_mov_b64 exec, -1")
        if PFA >= 0 and not cfg.get('pad'):
            codepf()
            a.e("s_waitcnt vmcnt(0)")
            PFA = -1
    if cfg.get('pad'):
        if not MDT:
            a.e("s_mov_b64 exec, 1")
            a.e(f"ds_add_u32 v{vZERO}, v{vINC} offset:{K1B_FLAG + 16}")
            a.e("s_mov_b64 exec, -1")
        a.e("s_setprio 0")
        if PFA >= 0: codepf()
        a.e("s_waitcnt vmcnt(0) lgkmcnt(0)")
        a.e("s_mov_b64 exec, 0")
        for w in range(7):
            a.e(f"s_cmp_eq_u32 s{sWAVE}, {w}")
            a.e(f"s_cbranch_scc1 K2_W{w}")
        a.e("s_branch K2_W7")
        PFA = -1
    for i_ in range(0 if (cfg.get('pad') or MDT) else 5 if cfg.get('rt') else 4):
        if i_ == PFA: codepf()
        a.e("s_barrier")
    if PFA == 4 and not cfg.get('rt'): codepf()
    if PFA >= 0: a.e("s_waitcnt vmcnt(0)")
    trace_end(0)
    a.e("s_endpgm")
    a.vm = []; a.lg = []

    a.e("K1_Q:")
    if not MDT:
        a.e("s_setprio 3")
        mdblock()
    a.e("s_setprio 0")
    stamp(0)
    group(1)
    trace_end(1)
    if cfg.get('rt'): rt_end(a, 0, S_M)
    a.e("K1_END:")
    a.e("s_endpgm")
    return fix_hazards(a.lines)
```

```python
from asmlib import *
from consts import *
from k1 import dpp_scan, rt_end

def gen_k1(cfg):
    a = Asm()
    LDNT = " nt" if cfg.get('k1_ld_nt', True) else ""
    STNT = cfg.get('k1_st', "")
    DEP = cfg.get('k1_dep', 4)
    NR = 12
    H2 = cfg.get('k2v', 'b') in 'cde'
    H3 = cfg.get('k2v', 'b') in 'de'
    SPLIT = cfg.get('split', cfg.get('k2v') != 'e')
    sM6 = 61
    MDT = cfg.get('mdt', 0)
    S_IN, S_OUT, S_ANG, S_WS, S_M = 4, 8, 12, 16, 20
    S_WD = 28
    S_WP = 36
    sWAVE, sMB, sMJ, sNEG, sT0, sT1, sT2, sBASE, sOOB = 44, 45, 46, 47, 48, 49, 50, 51, 52
    sTOFF4, sTOFF2, sPAY, sREC, sR6, sHI, sK = 54, 55, 56, 57, 58, 59, 60
    vOFF16, vOFF8, vINC, vZERO, vX, vY, vZ = 1, 2, 3, 4, 5, 6, 7
    def RIN(r): return 8 + 8 * r if r < NR else 104
    def ROUT(r): return 12 + 8 * r if r < NR else 105
    RING = 106
    def RANG(r): return RING + 2 * (r % DEP)
    TMP = 116
    assert RING + 2 * DEP <= TMP or cfg.get('k1_def') == 3
    TRACE = cfg.get('trace1', False)
    vTR, sPT, sPA = 127, 88, 90
    def stamp(i):
        if not TRACE: return
        if i < 0:
            a.e(f"s_mov_b32 s{sPA}, 0")
            a.e(f"v_mov_b32 v{vTR}, 0")
            i = 15
        a.e(f"s_memtime s[{sPT}:{sPT+1}]")
        a.wlg0()
        a.e(f"s_andn2_b32 s{sPT}, s{sPT}, 15")
        a.e(f"s_or_b32 s{sPT}, s{sPT}, {i}")
        a.e(f"s_mov_b32 m0, s{sPA}")
        a.e(f"s_add_u32 s{sPA}, s{sPA}, 1")
        a.e(f"v_writelane_b32 v{vTR}, s{sPT}, m0")

    a.e(f"s_cmp_ge_u32 s2, {NWG}")
    a.e("s_cbranch_scc1 K1_END")
    stamp(-1)
    if cfg.get('rt'): a.e("s_memrealtime s[96:97]")
    a.e(f"s_load_dwordx2 s[{S_IN}:{S_IN+1}], s[0:1], 8")
    a.e(f"s_load_dwordx2 s[{S_OUT}:{S_OUT+1}], s[0:1], 16")
    a.e(f"s_load_dwordx2 s[{S_ANG}:{S_ANG+1}], s[0:1], 32")
    a.e(f"s_load_dwordx2 s[{S_WS}:{S_WS+1}], s[0:1], 104")
    a.e(f"s_load_dwordx2 s[{S_M}:{S_M+1}], s[0:1], 0")
    a.e(f"s_load_dwordx2 s[24:25], s[0:1], 72")
    for s, n in ((S_IN, T * 4), (S_OUT, T * 4), (S_ANG, T * 2), (S_WS, WS_BYTES), (S_M, E * 8)):
        a.e(f"s_mov_b32 s{s+2}, {n}")
        a.e(f"s_mov_b32 s{s+3}, 0x00020000")
    a.e(f"v_lshrrev_b32 v{vX}, 6, v0")
    a.e(f"v_readfirstlane_b32 s{sWAVE}, v{vX}")
    a.e(f"v_mov_b32 v{vZERO}, 0")
    a.e(f"v_mov_b32 v{vX}, 0")
    a.e(f"v_lshlrev_b32 v{vY}, 3, v0")
    a.e(f"ds_write_b64 v{vY}, {vr(vZERO,2)}")
    a.e(f"v_and_b32 v{vY}, 0x78, v{vY}")
    a.e(f"ds_write_b64 v{vY}, {vr(vZERO,2)} offset:{K1B_MISC}")
    a.e(f"v_and_b32 v0, 511, v0")
    a.e(f"v_lshlrev_b32 v{vOFF16}, 4, v0")
    a.e(f"v_lshlrev_b32 v{vOFF8}, 3, v0")
    a.e(f"s_mov_b32 s{sMB}, {MB * 2 if H2 else MB}")
    a.e(f"s_mov_b32 s{sMJ}, {cfg.get('mj', MJ) * 2 if H2 else MJ}")
    if H2: a.e(f"s_mov_b32 s{sM6}, {cfg.get('m6', M6)}")
    a.e(f"s_mov_b32 s{sNEG}, {-EPB}")
    a.e(f"s_mov_b32 s{sOOB}, 0x80000000")
    a.e(f"s_mov_b32 s{sHI}, 0xffff0000")
    a.e(f"s_mov_b32 s{sK}, {K1B_TILE}")
    a.e(f"s_lshr_b32 s{sBASE}, s{sWAVE}, 3")
    a.e(f"s_and_b32 s{sWAVE}, s{sWAVE}, 7")
    a.e(f"s_lshl_b32 s{sT0}, s{sBASE}, 8")
    a.e(f"s_add_u32 s{sT0}, s{sT0}, s2")
    if cfg.get('x_tx'): a.e(f"s_xor_b32 s{sT0}, s{sT0}, {cfg['x_tx']}")
    a.e(f"s_mul_i32 s{sPAY}, s{sT0}, {cfg.get('tile_s', TILE_B)}")
    a.e(f"s_mul_i32 s{sREC}, s{sT0}, {REC_STR}")
    a.e(f"s_add_u32 s{sREC}, s{sREC}, {REC_OFF}")
    a.e(f"s_mul_i32 s{sT1}, s{sT0}, 3125")
    a.e(f"s_add_u32 s{sT2}, s{sT1}, 3125")
    a.e(f"s_lshr_b32 s{sT1}, s{sT1}, 3")
    a.e(f"s_lshr_b32 s{sT2}, s{sT2}, 3")
    a.e(f"s_sub_u32 s{sT2}, s{sT2}, s{sT1}")
    a.e(f"s_sub_u32 s{sT2}, s{sT2}, 384")
    a.e(f"s_lshl_b32 s{sTOFF4}, s{sT1}, 8")
    a.e(f"s_lshl_b32 s{sTOFF2}, s{sT1}, 7")
    a.e(f"s_cmp_lt_u32 s{sWAVE}, s{sT2}")
    a.e(f"s_cselect_b32 s{sR6}, 0, s{sOOB}")
    a.e("s_waitcnt lgkmcnt(0)")
    a.e("s_barrier")
    a.e(f"s_cmp_lg_u32 s{sBASE}, 0")
    a.e("s_cbranch_scc1 K1_Q")

    DEF = [False]
    NRG = cfg.get('k1_nrg', 4)
    def AREG(r): return RING + 2 * r if r < NRG else RIN((r - NRG) >> 1) + 2 * ((r - NRG) & 1)
    def aload(r):
        a.e(f"s_add_u32 s{sT1}, s{sTOFF2}, {r * 4096}")
        if r < NR:
            a.vmem(f"buffer_load_dwordx2 {vr(AREG(r),2)}, v{vOFF8}, s[{S_ANG}:{S_ANG+3}], s{sT1} offen{LDNT}", ('A', r))
        else:
            a.e(f"v_lshl_or_b32 v{AREG(r)}, v0, 1, s{sR6}")
            a.vmem(f"buffer_load_ushort v{AREG(r)}, v{AREG(r)}, s[{S_ANG}:{S_ANG+3}], s{sT1} offen{LDNT}", ('A', r))
    def loads(r):
        a.e(f"s_add_u32 s{sT0}, s{sTOFF4}, {r * 8192}")
        if DEF[0]:
            if r < NR:
                a.vmem(f"buffer_load_dwordx4 {vr(RIN(r),4)}, v{vOFF16}, s[{S_IN}:{S_IN+3}], s{sT0} offen{LDNT}", ('L', r))
                a.vmem(f"buffer_load_dwordx4 {vr(ROUT(r),4)}, v{vOFF16}, s[{S_OUT}:{S_OUT+3}], s{sT0} offen{LDNT}", ('L', r))
            else:
                a.e(f"v_lshl_or_b32 v{TMP+8}, v0, 2, s{sR6}")
                a.vmem(f"buffer_load_dword v{RIN(r)}, v{TMP+8}, s[{S_IN}:{S_IN+3}], s{sT0} offen{LDNT}", ('L', r))
                a.vmem(f"buffer_load_dword v{ROUT(r)}, v{TMP+8}, s[{S_OUT}:{S_OUT+3}], s{sT0} offen{LDNT}", ('L', r))
            return
        a.e(f"s_add_u32 s{sT1}, s{sTOFF2}, {r * 4096}")
        if r < NR:
            a.vmem(f"buffer_load_dwordx4 {vr(RIN(r),4)}, v{vOFF16}, s[{S_IN}:{S_IN+3}], s{sT0} offen{LDNT}", ('L', r))
            a.vmem(f"buffer_load_dwordx4 {vr(ROUT(r),4)}, v{vOFF16}, s[{S_OUT}:{S_OUT+3}], s{sT0} offen{LDNT}", ('L', r))
            a.vmem(f"buffer_load_dwordx2 {vr(RANG(r),2)}, v{vOFF8}, s[{S_ANG}:{S_ANG+3}], s{sT1} offen{LDNT}", ('A', r))
        else:
            a.e(f"v_lshl_or_b32 v{TMP+8}, v0, 2, s{sR6}")
            a.e(f"v_lshl_or_b32 v{TMP+9}, v0, 1, s{sR6}")
            a.vmem(f"buffer_load_dword v{RIN(r)}, v{TMP+8}, s[{S_IN}:{S_IN+3}], s{sT0} offen{LDNT}", ('L', r))
            a.vmem(f"buffer_load_dword v{ROUT(r)}, v{TMP+8}, s[{S_OUT}:{S_OUT+3}], s{sT0} offen{LDNT}", ('L', r))
            a.vmem(f"buffer_load_ushort v{RANG(r)}, v{TMP+9}, s[{S_ANG}:{S_ANG+3}], s{sT1} offen{LDNT}", ('A', r))

    def hist(r):
        a.wvm(('L', r))
        n = 4 if r < NR else 1
        if r == NR:
            a.e(f"s_cmp_eq_u32 s{sR6}, 0")
            a.e(f"s_cselect_b64 exec, -1, 0")
        for k in range(n):
            vi, vo, t0, t1 = RIN(r) + k, ROUT(r) + k, TMP + k, TMP + 4 + k
            if H2:
                t2 = vX + (k & 1)
                a.e(f"v_mul_hi_u32_u24 v{t0}, s{sMB}, v{vo}")
                a.e(f"v_mul_hi_u32_u24 v{t1}, s{sMJ}, v{vi}")
                if SPLIT:
                    a.e(f"v_mul_hi_u32_u24 v{t2}, s{sM6}, v{vi}")
                a.e(f"v_lshlrev_b32 v{vo}, 1, v{vo}")
                if SPLIT:
                    a.e(f"v_bfi_b32 v{t1}, v{t2}, v{t0}, v{t1}")
                a.e(f"v_and_b32 v{t0}, 0x1fc, v{t0}")
                a.e(f"v_bfi_b32 v{t1}, 1, v{vi}, v{t1}")
                a.e(f"v_mad_i32_i24 v{vo}, v{t0}, s{sNEG}, v{vo}")
                a.e(f"v_lshrrev_b32 v{vi}, 1, v{vi}")
                if DEF[0]:
                    a.e(f"v_lshl_or_b32 v{vi}, v{vo}, 18, v{vi}")
                    a.e(f"v_lshl_or_b32 v{vo}, v{t1}, 9, v{t0}")
                    a.e(f"ds_add_u32 v{vo}, v{vINC}")
                    continue
                a.e(f"v_lshl_or_b32 v{t0}, v{t1}, 9, v{t0}")
                a.e(f"v_lshl_or_b32 v{vi}, v{vo}, 18, v{vi}")
                a.e(f"ds_add_u32 v{t0}, v{vINC}")
                continue
            a.e(f"v_mul_hi_u32 v{t0}, v{vo}, s{sMB}")
            a.e(f"v_mul_hi_u32 v{t1}, v{vi}, s{sMJ}")
            a.e(f"v_mad_i32_i24 v{vo}, v{t0}, s{sNEG}, v{vo}")
            a.e(f"v_lshlrev_b32 v{t0}, 2, v{t0}")
            a.e(f"v_lshl_or_b32 v{vi}, v{vo}, 20, v{vi}")
            a.e(f"v_lshl_add_u32 v{t0}, v{t1}, 10, v{t0}")
            a.e(f"ds_add_u32 v{t0}, v{vINC}")
        if not DEF[0]: a.wvm(('A', r))
        for k in range(0 if DEF[0] else n):
            if k & 1:
                a.e(f"v_and_or_b32 v{ROUT(r)+k}, v{RANG(r)+(k>>1)}, s{sHI}, v{TMP+k}")
            else:
                a.e(f"v_lshl_or_b32 v{ROUT(r)+k}, v{RANG(r)+(k>>1)}, 16, v{TMP+k}")
        if r == NR:
            a.e("s_mov_b64 exec, -1")

    def group(g):
        nsync = [0]
        def sync():
            if g == 1 and MDT and nsync[0] == 0:
                nsync[0] += 1
                a.barrier(); return
            if g == 1 and not (cfg.get('pad') or MDT):
                a.barrier(); return
            if g == 1:
                off = K1B_FLAG + 16 + 4 * nsync[0]
                nsync[0] += 1
                a.e(f"v_mov_b32 v{vZ}, 1")
                a.e("s_mov_b64 exec, 1")
                a.e(f"ds_add_u32 v{vZERO}, v{vZ} offset:{off}")
                a.e("s_mov_b64 exec, -1")
                a.e(f"K1_QL{nsync[0]}:")
                a.e(f"ds_read_b32 v{vZ}, v{vZERO} offset:{off}")
                a.wlg0()
                a.e(f"v_readfirstlane_b32 s{sT0}, v{vZ}")
                a.e(f"s_cmp_lt_u32 s{sT0}, {16 if nsync[0] == 1 else 8}")
                a.e(f"s_cbranch_scc1 K1_QL{nsync[0]}")
                return
            off = K1B_FLAG + 4 * nsync[0]
            nsync[0] += 1
            a.e("s_mov_b64 exec, 1")
            a.e(f"ds_add_u32 v{vZERO}, v{vINC} offset:{off}")
            a.e("s_mov_b64 exec, -1")
            a.e(f"K1_PL{nsync[0]}:")
            a.e(f"ds_read_b32 v{vZ}, v{vZERO} offset:{off}")
            a.wlg0()
            a.e(f"v_readfirstlane_b32 s{sT0}, v{vZ}")
            a.e(f"s_cmp_lt_u32 s{sT0}, 8")
            a.e(f"s_cbranch_scc1 K1_PL{nsync[0]}")
        a.e(f"v_mov_b32 v{vINC}, {1 if g == 0 else 0x10000}")
        DEF[0] = bool(cfg.get('k1_def', 0) >> g & 1)
        DP = cfg.get('k1_dep%d' % g, DEP) if DEF[0] else DEP
        THR = cfg.get('k1_thr%d' % g, cfg.get('k1_thr', 0))
        if THR:
            a.e(f"s_and_b32 vcc_lo, s2, 1")
            a.e(f"s_mov_b32 vcc_hi, 0")
        def tloads(i):
            per = 2 if DEF[0] else 3
            nmax = round((DP - THR - 1) * per)
            if THR and i * per > nmax:
                a.e(f"s_cbranch_vccnz K1_T{g}_{i}")
                a.e(f"s_waitcnt vmcnt({nmax})")
                a.e(f"K1_T{g}_{i}:")
            loads(i)
        for r in range(DP):
            tloads(r)
        for r in range(NR + 1):
            hist(r)
            if r + DP <= NR: tloads(r + DP)
            if DEF[0] and r >= NR + 1 - NRG: aload(r - (NR + 1 - NRG))
            if r in (3, 7): stamp(1)
        stamp(2)
        sync()
        stamp(3)
        C, SS, W0 = (116, 114, 120) if DEF[0] else (108, 112, 116)
        a.e(f"ds_read_b128 {vr(C,4)}, v{vOFF16}")
        if g == 1 and not MDT:
            a.e(f"ds_read_b64 {vr(W0,2)}, v{vZERO} offset:{K1B_MAXC}" if H3 else f"ds_read_b32 v{W0+1}, v{vZERO} offset:{K1B_MAXC}")
            a.e(f"s_lshl_b32 s{sT0}, s2, {3 if H3 else 2}")
            a.e(f"v_mov_b32 v{W0+2}, s{sT0}")
            a.e(f"v_mov_b32 v{W0+3}, s{sOOB}")
            a.e(f"v_cmp_eq_u32 vcc, 0, v0")
            a.e(f"v_cndmask_b32 v{W0+2}, v{W0+3}, v{W0+2}, vcc")
            a.e(f"s_mov_b32 s{sT0}, {MX_OFF}")
        a.e("s_waitcnt lgkmcnt(0)")
        if g == 1 and not MDT:
            a.vmem(f"buffer_store_dword{'x2' if H3 else ''} {vr(W0,2) if H3 else vr(W0+1)}, v{W0+2}, s[{S_WS}:{S_WS+3}], s{sT0} offen{STNT}", 'S')
        for k in range(4):
            a.e(f"v_and_b32 v{C+k}, 0xffff, v{C+k}" if g == 0 else f"v_lshrrev_b32 v{C+k}, 16, v{C+k}")
        a.e(f"v_add_u32 v{SS}, v{C}, v{C+1}")
        a.e(f"v_add3_u32 v{SS}, v{SS}, v{C+2}, v{C+3}")
        a.e(f"v_mov_b32 v{SS+1}, v{SS}")
        dpp_scan(a, SS)
        a.e(f"s_lshl_b32 s{sT0}, s{sWAVE}, 2")
        a.e(f"v_mov_b32 v{W0}, s{sT0}")
        a.e("s_lshl_b64 exec, 1, 63")
        a.e(f"ds_write_b32 v{W0}, v{SS} offset:{K1B_WTOT}")
        a.e("s_mov_b64 exec, -1")
        a.e(f"v_sub_u32 v{SS}, v{SS}, v{SS+1}")
        a.e(f"v_and_b32 v{W0+4}, 7, v0")
        a.e(f"v_lshlrev_b32 v{W0}, 2, v{W0+4}")
        a.e(f"v_and_b32 v{W0+6}, 63, v0")
        a.e(f"s_lshl_b32 s{sT1}, s{sWAVE}, 1")
        a.e(f"v_lshl_add_u32 v{W0+6}, v{W0+6}, 6, s{sT1}")
        sync()
        a.e(f"ds_read_b32 v{W0+5}, v{W0} offset:{K1B_WTOT}")
        a.e(f"v_cmp_gt_u32 vcc, s{sWAVE}, v{W0+4}")
        a.e("s_waitcnt lgkmcnt(0)")
        a.e(f"v_cndmask_b32 v{W0+5}, 0, v{W0+5}, vcc")
        for sh in (1, 2, 4):
            a.e(f"v_add_u32_dpp v{W0+5}, v{W0+5}, v{W0+5} row_shr:{sh} row_mask:0xf bank_mask:0xf bound_ctrl:0")
        a.e(f"v_readlane_b32 s{sBASE}, v{W0+5}, 7")
        a.e(f"v_add_u32 v{W0}, s{sBASE}, v{SS}")
        for k in range(4):
            a.e(f"v_add_u32 v{W0+1+k}, v{W0+k}, v{C+k}")
        if g == 0:
            for k in range(4):
                a.e(f"v_sub_u32 v{C+k}, v{W0+k}, v{C+k}")
            for k in range(4):
                a.e(f"ds_add_u32 v{vOFF16}, v{C+k} offset:{4*k}")
        else:
            for k in range(4):
                a.e(f"v_mad_u32_u24 v{C+k}, v{W0+k}, 6, s{sK}")
            a.e(f"ds_write_b128 v{vOFF16}, {vr(C,4)}")
            a.e(f"v_mov_b32 v{vINC}, 6")
        for k in range(5):
            a.e(f"ds_write_b16 v{W0+6}, v{W0+k} offset:{K1B_STG + 16*k}")
        sync()
        stamp(4)
        if cfg.get('k1_sprio%d' % g, -1) >= 0: a.e(f"s_setprio {cfg['k1_sprio%d' % g]}")
        U = [106, 110]
        WA, AA = 114, 118
        RS = 120
        RLATE = g == 1 and cfg.get('k1_rl', 0)
        if not RLATE: a.lds(f"ds_read_b128 {vr(RS,4)}, v{vOFF16} offset:{K1B_STG}", 'RS')
        if DEF[0]:
            U = [ROUT(r) for r in range(NR + 1)]
            WA, AA = 116, 124
        else:
            U = [U[r & 1] for r in range(NR + 1)]
        def rtn(r):
            n = 4 if r < NR else 1
            for k in range(0 if DEF[0] else n):
                a.e(f"v_and_b32 v{U[r]+k}, 0xffff, v{ROUT(r)+k}")
            if r == NR:
                a.e(f"s_cmp_eq_u32 s{sR6}, 0")
                a.e(f"s_cselect_b64 exec, -1, 0")
            for k in range(n):
                a.lds(f"ds_add_rtn_u32 v{U[r]+k}, v{U[r]+k}, v{vINC}", ('R', r))
            if r == NR:
                a.e("s_mov_b64 exec, -1")
        rtn(0)
        def recst():
            a.e(f"v_cmp_gt_u32 vcc, 257, v0")
            a.e(f"v_mov_b32 v{vX}, s{sOOB}")
            a.e(f"v_cndmask_b32 v{vX}, v{vX}, v{vOFF16}, vcc")
            a.wlg('RS')
            a.vmem(f"buffer_store_dwordx4 {vr(RS,4)}, v{vX}, s[{S_WS}:{S_WS+3}], s{sREC} offen{STNT}", 'S')
        if not RLATE: recst()
        for r in range(NR + 1):
            n = 4 if r < NR else 1
            if r + 1 <= NR: rtn(r + 1)
            a.wlg(('R', r))
            for k in range(n):
                u, wa, aa = U[r] + k, WA + k, AA + k
                if DEF[0]: aa = 114 + (k & 1)
                if g == 0:
                    a.e(f"v_mad_u32_u16 v{u}, v{u}, 6, s{sK}")
                a.e(f"v_and_b32 v{aa}, 2, v{u}")
                a.e(f"v_add_u32 v{wa}, v{u}, v{aa}")
                a.e(f"v_mad_i32_i24 v{u if DEF[0] else aa}, v{aa}, -2, v{u}")
            if DEF[0]: a.wvm(('A', r))
            if r == NR:
                a.e(f"s_cmp_eq_u32 s{sR6}, 0")
                a.e(f"s_cselect_b64 exec, -1, 0")
            for k in range(n):
                a.lds(f"ds_write_b32 v{WA+k}, v{RIN(r)+k}")
                if DEF[0]:
                    a.lds(f"ds_write_b16{'_d16_hi' if k & 1 else ''} v{U[r]+k}, v{AREG(r)+(k>>1)} offset:4")
                else:
                    a.lds(f"ds_write_b16_d16_hi v{AA+k}, v{ROUT(r)+k} offset:4")
            if DEF[0]:
                for r2 in (NRG + 2 * r, NRG + 2 * r + 1):
                    if r2 <= NR: aload(r2)
            if r == NR:
                a.e("s_mov_b64 exec, -1")
        LB = [vX, vY, vZ + 0]
        stamp(5)
        if RLATE: a.lds(f"ds_read_b128 {vr(RS,4)}, v{vOFF16} offset:{K1B_STG}", 'RS')
        sync()
        stamp(6)
        if RLATE: recst()
        NQ = 19
        LBR = [116, 117, 118]
        for h in range(3):
            a.e(f"v_add_u32 v{LBR[h]}, {K1B_TILE + 65536*h}, v{vOFF16}")
        a.e(f"v_cmp_gt_u32 vcc, {(TILE_B - 18*8192)//16}, v0")
        a.e(f"v_mov_b32 v{vX}, s{sOOB}")
        a.e(f"v_cndmask_b32 v{vX}, v{vX}, v{vOFF16}, vcc")
        a.e(f"v_cndmask_b32 v{vY}, v{LBR[0]}, v{LBR[2]}, vcc")
        def rd(q):
            a.lds(f"ds_read_b128 {vr(8+4*q,4)}, v{LBR[q>>3] if q < 18 else vY} offset:{(q&7)*8192}", ('W', q))
        EW = cfg.get('k1_ew', -1) if g == 0 else -1
        RA = NQ if EW >= 0 else 8
        for q in range(RA): rd(q)
        STH = cfg.get('k1_sthr%d' % g, -1)
        if STH >= 0:
            a.e(f"s_and_b32 vcc_lo, s2, 1")
            a.e(f"s_mov_b32 vcc_hi, 0")
        if cfg.get('k1_wprio%d' % g, -1) >= 0: a.e(f"s_setprio {cfg['k1_wprio%d' % g]}")
        for q in range(NQ):
            if q + RA < NQ: rd(q + RA)
            if q == EW:
                if MDL == 2: mdload()
                a.barrier()
                if MDL == 1: mdload()
                stamp(9)
                if cfg.get('k1_eprio', -1) >= 0: a.e(f"s_setprio {cfg['k1_eprio']}")
            if EW < 0 or q < EW: a.wlg(('W', q))
            if STH >= 0 and q > STH:
                if not cfg.get('k1_sall'): a.e(f"s_cbranch_vccnz K1_S{g}_{q}")
                a.e(f"s_waitcnt vmcnt({STH})")
                a.e(f"K1_S{g}_{q}:")
            a.e(f"s_add_u32 s{sT2}, s{sPAY}, {q*8192}")
            a.vmem(f"buffer_store_dwordx4 {vr(8+4*q,4)}, v{vOFF16 if q < 18 else vX}, s[{S_WS}:{S_WS+3}], s{sT2} offen{STNT}", 'S')
        stamp(7)

    def trace_end(g):
        if TRACE:
            a.wvm0()
            stamp(8)
            a.e(f"s_cmp_lg_u32 s2, {cfg.get('trace_wg', 77)}")
            a.e("s_cbranch_scc1 K1_END")
            a.e(f"s_load_dwordx2 s[{S_M}:{S_M+1}], s[0:1], 96")
            a.e(f"s_mov_b32 s{S_M+2}, 4096")
            a.e("s_waitcnt lgkmcnt(0)")
            a.e(f"v_lshlrev_b32 v1, 2, v0")
            a.e(f"buffer_store_dword v{vTR}, v1, s[{S_M}:{S_M+3}], 0 offen offset:{2048*g}")

    MDL = cfg.get('mdl', 0)
    vM, vMO, D, vMAX = (84, 100, 32, 28) if MDL else (8, 24, 32, 28)
    def mdload():
        a.e(f"s_load_dwordx8 s[{S_WD}:{S_WD+7}], s[24:25], 0")
        a.e(f"s_mul_i32 s{sT0}, s2, {MD_WG_B}")
        a.e(f"v_add_u32 v{vMO}, s{sT0}, v{vOFF16}")
        for q in range(1, 4):
            a.e(f"v_add_u32 v{vMO+q}, {8192*q}, v{vMO}")
        a.e(f"v_mov_b32 v{vZ}, s{sOOB}")
        a.e(f"v_cmp_gt_u32 vcc, {(MD_WG_B - 3*8192)//16}, v0")
        a.e(f"v_cndmask_b32 v{vMO+3}, v{vZ}, v{vMO+3}, vcc")
        for q in range(4):
            a.vmem(f"buffer_load_dwordx4 {vr(vM+4*q,4)}, v{vMO+q}, s[{S_M}:{S_M+3}], 0 offen", ('M', q))
    def mdblock():
        if not MDL: mdload()
        a.e(f"v_mov_b32 v{vX}, s{sOOB}")
        a.e(f"v_mov_b32 v{vMAX}, 0")
        a.e("s_waitcnt lgkmcnt(0)")
        for d in range(4):
            for h in range(2):
                r0 = S_WD + 4 * h + (d >> 1); r1 = r0 + 2
                a.e(f"s_pack_{'hh' if d & 1 else 'll'}_b32_b16 s{S_WP + 2*d + h}, s{r0}, s{r1}")
        a.e(f"s_mov_b32 s{sT0}, {MD_OFF}")
        a.wvm(('M', 3))
        for ed in range(8):
            m01 = vM + 2 * ed
            for d in range(4):
                a.e(f"v_dot2_f32_bf16 v{D+4*ed+d}, v{m01}, s{S_WP+2*d}, 0")
            for d in range(4):
                a.e(f"v_dot2_f32_bf16 v{D+4*ed+d}, v{m01+1}, s{S_WP+2*d+1}, v{D+4*ed+d}")
        for ed in range(8):
            m01 = vM + 2 * ed
            a.e(f"v_max3_f32 v{vMAX}, abs(v{D+4*ed}), abs(v{D+4*ed+1}), v{vMAX}")
            a.e(f"v_max3_f32 v{vMAX}, abs(v{D+4*ed+2}), abs(v{D+4*ed+3}), v{vMAX}")
            a.e(f"v_cvt_pk_bf16_f32 v{m01}, v{D+4*ed}, v{D+4*ed+1}")
            a.e(f"v_cvt_pk_bf16_f32 v{m01+1}, v{D+4*ed+2}, v{D+4*ed+3}")
        if H2:
            a.e(f"s_mov_b32 s{sT1}, {MD_OFF + MD_TSTR}")
            for q in range(4):
                a.e(f"v_lshrrev_b32 v{vMO+q}, 1, v{vMO+q}")
            for q in range(4):
                a.vmem(f"buffer_store_dwordx2 {vr(vM+4*q,2)}, v{vMO+q}, s[{S_WS}:{S_WS+3}], s{sT0} offen{STNT}", 'S')
                a.vmem(f"buffer_store_dwordx2 {vr(vM+4*q+2,2)}, v{vMO+q}, s[{S_WS}:{S_WS+3}], s{sT1} offen{STNT}", 'S')
            a.e(f"s_lshl_b32 s{sT1}, s2, 7")
            a.e(f"s_add_u32 s{sT1}, s{sT1}, {FL_OFF}")
            a.e(f"v_cmp_gt_u32 vcc, 8, v0")
            a.e(f"v_cndmask_b32 v{vX}, v{vX}, v{vOFF16}, vcc")
            a.vmem(f"buffer_store_dword v{vZERO}, v{vX}, s[{S_WS}:{S_WS+3}], s{sT1} offen{STNT}", 'S')
        else:
          for q in range(4):
            a.vmem(f"buffer_store_dwordx4 {vr(vM+4*q,4)}, v{vMO+q}, s[{S_WS}:{S_WS+3}], s{sT0} offen{STNT}", 'S')
        if H3:
            for st in (16, 8, 4, 2, 1):
                for i in range(st):
                    a.e(f"v_add_f32 v{D+i}, abs(v{D+i}), abs(v{D+i+st})")
            dpp_scan(a, D, "v_add_f32")
        dpp_scan(a, vMAX, "v_max_u32")
        a.e("s_lshl_b64 exec, 1, 63")
        if H3: a.e(f"ds_add_f32 v{vZERO}, v{D} offset:{K1B_MAXC+4}")
        a.e(f"ds_max_u32 v{vZERO}, v{vMAX} offset:{K1B_MAXC}")
        a.e("s_mov_b64 exec, -1")

    def mdeven():
        vMs, vMOs, D, vMAX, vSUM = (8, 64), (24, 80), 32, 28, 29
        a.e(f"s_load_dwordx8 s[{S_WD}:{S_WD+7}], s[24:25], 0")
        a.e(f"s_mul_i32 s{sT0}, s2, {MD_WG_B}")
        a.e(f"v_mov_b32 v{vX}, s{sOOB}")
        a.e(f"v_cmp_gt_u32 vcc, {(2*MD_WG_B - 6*8192)//16}, v0")
        a.e(f"v_add_u32 v{vMOs[0]}, s{sT0}, v{vOFF16}")
        for q in range(1, 7):
            a.e(f"v_add_u32 v{vMOs[q>>2]+(q&3)}, {8192*q}, v{vMOs[0]}")
        a.e(f"v_cndmask_b32 v{vMOs[1]+2}, v{vX}, v{vMOs[1]+2}, vcc")
        for q in range(7):
            a.vmem(f"buffer_load_dwordx4 {vr(vMs[q>>2]+4*(q&3),4)}, v{vMOs[q>>2]+(q&3)}, s[{S_M}:{S_M+3}], 0 offen", ('M', q))
        a.e(f"v_mov_b32 v{vMAX}, 0")
        a.e(f"v_mov_b32 v{vSUM}, 0")
        a.e(f"s_lshl_b32 s{sT1}, s2, 7")
        a.e(f"s_add_u32 s{sT1}, s{sT1}, {FL_OFF}")
        a.e(f"v_cmp_gt_u32 vcc, 16, v0")
        a.e(f"v_cndmask_b32 v{vX}, v{vX}, v{vOFF16}, vcc")
        a.vmem(f"buffer_store_dword v{vZERO}, v{vX}, s[{S_WS}:{S_WS+3}], s{sT1} offen{STNT}", 'S')
        a.e("s_waitcnt lgkmcnt(0)")
        for d in range(4):
            for h in range(2):
                r0 = S_WD + 4 * h + (d >> 1); r1 = r0 + 2
                a.e(f"s_pack_{'hh' if d & 1 else 'll'}_b32_b16 s{S_WP + 2*d + h}, s{r0}, s{r1}")
        a.e(f"s_mov_b32 s{sT0}, {MD_OFF}")
        a.e(f"s_mov_b32 s{sT1}, {MD_OFF + MD_TSTR}")
        for p in range(2):
            nq = 4 - p
            vM, vMO = vMs[p], vMOs[p]
            a.wvm(('M', 4 * p + nq - 1))
            for ed in range(2 * nq):
                m01 = vM + 2 * ed
                for d in range(4):
                    a.e(f"v_dot2_f32_bf16 v{D+4*ed+d}, v{m01}, s{S_WP+2*d}, 0")
                for d in range(4):
                    a.e(f"v_dot2_f32_bf16 v{D+4*ed+d}, v{m01+1}, s{S_WP+2*d+1}, v{D+4*ed+d}")
            for ed in range(2 * nq):
                m01 = vM + 2 * ed
                a.e(f"v_max3_f32 v{vMAX}, abs(v{D+4*ed}), abs(v{D+4*ed+1}), v{vMAX}")
                a.e(f"v_max3_f32 v{vMAX}, abs(v{D+4*ed+2}), abs(v{D+4*ed+3}), v{vMAX}")
                a.e(f"v_cvt_pk_bf16_f32 v{m01}, v{D+4*ed}, v{D+4*ed+1}")
                a.e(f"v_cvt_pk_bf16_f32 v{m01+1}, v{D+4*ed+2}, v{D+4*ed+3}")
            for q in range(nq):
                a.e(f"v_lshrrev_b32 v{vMO+q}, 1, v{vMO+q}")
            for q in range(nq):
                a.vmem(f"buffer_store_dwordx2 {vr(vM+4*q,2)}, v{vMO+q}, s[{S_WS}:{S_WS+3}], s{sT0} offen{STNT}", 'S')
                a.vmem(f"buffer_store_dwordx2 {vr(vM+4*q+2,2)}, v{vMO+q}, s[{S_WS}:{S_WS+3}], s{sT1} offen{STNT}", 'S')
            n = 8 * nq
            while n > 1:
                h = n // 2
                for i in range(h):
                    a.e(f"v_add_f32 v{D+i}, abs(v{D+i}), abs(v{D+n-1-i})")
                n -= h
            a.e(f"v_add_f32 v{vSUM}, v{vSUM}, v{D}")
        dpp_scan(a, vSUM, "v_add_f32")
        dpp_scan(a, vMAX, "v_max_u32")
        a.e("s_lshl_b64 exec, 1, 63")
        a.e(f"ds_add_f32 v{vZERO}, v{vSUM} offset:{K1B_MAXC+4}")
        a.e(f"ds_max_u32 v{vZERO}, v{vMAX} offset:{K1B_MAXC}")

    if cfg.get('k1_pprio', 1): a.e(f"s_setprio {cfg.get('k1_pprio', 1)}")
    group(0)
    PFA = cfg.get('k1_pf', -1)
    def codepf():
        KN = "standalone__molecular_angular_gemnet__graph_kernel"
        a.e(f"s_getpc_b64 s[{S_M}:{S_M+1}]")
        a.e("K1_PC:")
        a.e(f"s_add_u32 s{S_M}, s{S_M}, {KN}-K1_PC")
        a.e(f"s_addc_u32 s{S_M+1}, s{S_M+1}, 0")
        a.e(f"s_mov_b32 s{S_M+2}, K2_END-{KN}")
        for q in range(5):
            a.e(f"s_mov_b32 s{sT0}, {8192*q}")
            a.e(f"buffer_load_dwordx4 {vr(88+4*q,4)}, v{vOFF16}, s[{S_M}:{S_M+3}], s{sT0} offen")
    if MDT:
        if MDT == 1 and cfg.get('k1_ew', -1) < 0: a.e("s_barrier")
        a.e(f"s_setprio {cfg.get('mdprio', 0)}")
        if cfg.get('k1_ew', -1) < 0: a.wvm0()
        MDE = cfg.get('mde', 0)
        if MDE:
            a.e(f"s_bitcmp1_b32 s2, 0")
            a.e(f"s_cbranch_scc1 K1_NOMD")
            mdeven()
        else:
            mdblock()
        if MDT == 2: a.e("s_barrier")
        a.e("s_mov_b64 exec, 1")
        a.e(f"ds_add_rtn_u32 v{vZ}, v{vZERO}, v{vINC} offset:{K1B_FLAG + 16}")
        a.e(f"ds_read_b128 v[84:87], v{vZERO} offset:{K1B_MAXC}" if MDE else f"ds_read_b64 v[30:31], v{vZERO} offset:{K1B_MAXC}")
        a.e(f"s_lshl_b32 s{sT0}, s2, 3")
        a.e(f"s_add_u32 s{sT0}, s{sT0}, {MX_OFF}")
        a.e(f"v_mov_b32 v{vX}, s{sOOB}")
        a.e("s_waitcnt lgkmcnt(0)")
        a.e(f"v_cmp_eq_u32 vcc, 7, v{vZ}")
        a.e(f"v_cndmask_b32 v{vX}, v{vX}, v{vZERO}, vcc")
        a.e(f"buffer_store_dword{'x4 v[84:87]' if MDE else 'x2 v[30:31]'}, v{vX}, s[{S_WS}:{S_WS+3}], s{sT0} offen{STNT}")
        a.e("s_mov_b64 exec, -1")
        if MDE: a.e("K1_NOMD:")
        if PFA >= 0 and not cfg.get('pad'):
            codepf()
            a.e("s_waitcnt vmcnt(0)")
            PFA = -1
    if cfg.get('pad'):
        if not MDT:
            a.e("s_mov_b64 exec, 1")
            a.e(f"ds_add_u32 v{vZERO}, v{vINC} offset:{K1B_FLAG + 16}")
            a.e("s_mov_b64 exec, -1")
        a.e("s_setprio 0")
        if PFA >= 0: codepf()
        a.e("s_waitcnt vmcnt(0) lgkmcnt(0)")
        a.e("s_mov_b64 exec, 0")
        for w in range(7):
            a.e(f"s_cmp_eq_u32 s{sWAVE}, {w}")
            a.e(f"s_cbranch_scc1 K2_W{w}")
        a.e("s_branch K2_W7")
        PFA = -1
    for i_ in range(0 if (cfg.get('pad') or MDT) else 5 if cfg.get('rt') else 4):
        if i_ == PFA: codepf()
        a.e("s_barrier")
    if PFA == 4 and not cfg.get('rt'): codepf()
    if PFA >= 0: a.e("s_waitcnt vmcnt(0)")
    trace_end(0)
    a.e("s_endpgm")
    a.vm = []; a.lg = []

    a.e("K1_Q:")
    if not MDT:
        a.e("s_setprio 3")
        mdblock()
    a.e(f"s_setprio {cfg.get('k1_gprio1', 0)}")
    stamp(0)
    group(1)
    trace_end(1)
    if cfg.get('rt'): rt_end(a, 0, S_M)
    a.e("K1_END:")
    a.e("s_endpgm")
    return fix_hazards(a.lines)
```

```python
from asmlib import *
from consts import *
from k1 import dpp_scan, rt_end
import math, struct

NS = 13
DUMMY = (2 * EPB << 19) | 0x7FFFF
IDXM = 0x7FFFF
K2_GI = K2_NB + 8
K2_VI = K2_NB + 12
K2_FS = K2_NB + 32
K2_NCELL = K2_FS + 4
K2_FH = K2_FS + 8
K2_DN = K2_FS + 12
K2_FP = K2_FS + 16
K2_FR = K2_FS + 20
ACC = K2C_ACC
STR2 = 2 * ACC2_STR
def f2h(x): return hex(struct.unpack('<I', struct.pack('<f', x))[0])
def h2f(x): return struct.unpack('<f', struct.pack('<I', x))[0]
KAP = math.sqrt(10.0 * math.log2(math.e))

def gen_k2(cfg):
    a = Asm()
    D = cfg.get('k2_d', 5)
    LATE = 2
    PPRIO = cfg.get('k2_pprio', 3)
    SPLIT = cfg.get('split', True)
    S_WS, S_MD, S_X, S_Y = 4, 8, 12, 16
    sWAVE, sB, sJ, sWIN, sTOT, sN, sCNT, sT0, sT1, sT2, sFFF8, sHI, sCNP, sOOB = range(20, 34)
    sM = 34
    sDN = 36
    sTG = 37
    sR6 = 38
    sMODE = 39
    puid = [0]
    def poll(vt, off, tgt, slp=None):
        puid[0] += 1
        SLP = cfg.get('k2_slp', 0) if slp is None else slp
        if SLP:
            a.e(f"s_branch K2_PM{puid[0]}")
        a.e(f"K2_PL{puid[0]}:")
        if SLP:
            a.e(f"s_sleep {SLP}")
            a.e(f"K2_PM{puid[0]}:")
        a.e(f"ds_read_b32 v{vt}, v{vZERO} offset:{off}")
        a.e("s_waitcnt lgkmcnt(0)")
        a.e(f"v_readfirstlane_b32 s{sT0}, v{vt}")
        a.e(f"s_cmp_lt_u32 s{sT0}, {tgt}")
        a.e(f"s_cbranch_scc1 K2_PL{puid[0]}")
    def signal(vone, off):
        a.e("s_mov_b64 exec, 1")
        a.e(f"ds_add_u32 v{vZERO}, v{vone} offset:{off}")
        a.e("s_mov_b64 exec, -1")
    MSK = 40
    sPT, sPA = 88, 91
    TRACE = cfg.get('trace', False)
    vTR = 127
    def stamp(i):
        if TRACE:
            if i < 0:
                a.e(f"s_mov_b32 s{sPA}, 0")
                a.e(f"v_mov_b32 v{vTR}, 0")
                i = 15
            a.e(f"s_memtime s[{sPT}:{sPT+1}]")
            a.e("s_waitcnt lgkmcnt(0)")
            a.e(f"s_andn2_b32 s{sPT}, s{sPT}, 15")
            a.e(f"s_or_b32 s{sPT}, s{sPT}, {i}")
            a.e(f"s_mov_b32 m0, s{sPA}")
            a.e(f"s_add_u32 s{sPA}, s{sPA}, 1")
            a.e(f"s_min_u32 s{sPA}, s{sPA}, 63")
            a.e(f"v_writelane_b32 v{vTR}, s{sPT}, m0")
    vLANE, vZERO = 1, 2
    T_ = 100

    a.e(f"s_cmp_ge_u32 s2, {NWG}")
    a.e("s_cbranch_scc1 K2_END")
    if cfg.get('rt'): a.e("s_memrealtime s[96:97]")
    stamp(-1)
    a.e(f"s_load_dwordx2 s[{S_WS}:{S_WS+1}], s[0:1], 104")
    a.e(f"s_mov_b32 s{S_WS+2}, {WS_BYTES}")
    a.e(f"s_mov_b32 s{S_WS+3}, 0x00020000")
    a.e(f"v_lshrrev_b32 v{T_}, 6, v0")
    a.e(f"v_and_b32 v{vLANE}, 63, v0")
    a.e(f"v_readfirstlane_b32 s{sWAVE}, v{T_}")
    a.e(f"s_and_b32 s{sB}, s2, 7")
    a.e(f"s_lshl_b32 s{sB}, s{sB}, 5")
    a.e(f"s_lshr_b32 s{sT0}, s2, 3")
    a.e(f"s_or_b32 s{sB}, s{sB}, s{sT0}")
    a.e(f"s_mov_b32 s{sHI}, 0xffff0000")
    a.e(f"s_mov_b32 s{sOOB}, 0x80000000")
    a.e(f"v_mov_b32 v{vZERO}, 0")
    a.e(f"s_cmp_ge_u32 s{sWAVE}, 8")
    a.e("s_cbranch_scc1 K2_CONS")

    vL12, vTB, vCN, vSCR, vFOUR, vL16 = range(3, 9)
    R = 10
    def P(c): return 18 + 4 * c
    U, KA, OLD = 50, 66, 82
    if PPRIO: a.e(f"s_setprio {PPRIO}")
    a.e(f"s_mov_b32 s{sT0}, {cfg.get('tile_s', TILE_B)}")
    a.e(f"v_mul_lo_u32 v{vTB}, v0, s{sT0}")
    RL = 20
    a.e(f"s_lshl_b32 s{sT0}, s{sB}, 4")
    a.e(f"v_mul_u32_u24 v{T_+1}, {REC_STR}, v0")
    a.e(f"v_add_u32 v{T_+1}, s{sT0}, v{T_+1}")
    a.e(f"s_mov_b32 s{sT0}, {REC_OFF}")
    a.e("s_waitcnt lgkmcnt(0)")
    a.e(f"buffer_load_dwordx4 {vr(RL,4)}, v{T_+1}, s[{S_WS}:{S_WS+3}], s{sT0} offen")
    a.e(f"buffer_load_dwordx4 {vr(RL+4,4)}, v{T_+1}, s[{S_WS}:{S_WS+3}], s{sT0} offen offset:16")
    a.e("s_barrier")
    a.e(f"v_mul_u32_u24 v{vL12}, 12, v{vLANE}")
    a.e(f"v_lshlrev_b32 v{vL16}, 4, v{vLANE}")
    a.e(f"v_mov_b32 v{vFOUR}, 4")
    a.e(f"v_min_u32 v{vCN}, 1, v{vLANE}")
    a.e(f"v_lshlrev_b32 v{vSCR}, 3, v0")
    a.e(f"v_add_u32 v{vSCR}, {K2_SCR}, v{vSCR}")
    a.e(f"v_mov_b32 v{T_+2}, 0")
    a.e(f"v_mov_b32 v{T_+3}, 0")
    a.e(f"ds_write_b64 v{vSCR}, {vr(T_+2,2)}")
    a.e(f"s_mov_b32 s{sTG}, 0")
    a.e(f"s_mov_b32 s{sDN}, 0")
    a.e(f"s_mov_b32 s{sMODE}, 0")
    for k in range(4):
        a.e(f"v_mov_b32 v{OLD+k}, 0")
    a.e(f"s_mov_b32 s{sJ}, 8")
    a.e(f"s_mov_b32 s{sWIN}, 0")
    a.e(f"s_mov_b32 s{sT0}, 0x05040100")
    a.e(f"s_mov_b32 s{sT1}, 0x07060302")
    a.e("s_waitcnt vmcnt(0) lgkmcnt(0)")
    for k in range(8):
        a.e(f"v_perm_b32 v{R+k}, v{RL+4+(k>>1)}, v{RL+(k>>1)}, s{sT1 if k & 1 else sT0}")
    if SPLIT:
        a.e(f"s_cmp_lt_u32 s{sB}, 128")
        a.e("s_cbranch_scc1 K2_NOSWAP")
        a.e(f"v_swap_b32 v{R+6}, v{R+7}")
        a.e("K2_NOSWAP:")
    stamp(0)

    def rotate():
        for k in range(7):
            a.e(f"v_mov_b32 v{R+k}, v{R+k+1}")
        a.e(f"v_mov_b32 v{R+7}, 0")
        a.e(f"s_sub_u32 s{sJ}, s{sJ}, 1")

    a.e("K2_PLOOP:")
    s_, e_, p0, n_, inc, S_, V_, x_, sl, y_, el = range(T_, T_ + 11)
    a.e(f"v_and_b32 v{s_}, 0xffff, v{R}")
    a.e(f"v_lshrrev_b32 v{e_}, 16, v{R}")
    a.e(f"v_lshrrev_b32 v{p0}, 1, v{s_}")
    a.e(f"v_add_u32 v{n_}, 1, v{e_}")
    a.e(f"v_cmp_gt_u32 s[{sM}:{sM+1}], v{e_}, v{s_}")
    a.e(f"v_lshrrev_b32 v{n_}, 1, v{n_}")
    a.e(f"v_sub_u32 v{n_}, v{n_}, v{p0}")
    a.e(f"v_cndmask_b32 v{n_}, 0, v{n_}, s[{sM}:{sM+1}]")
    a.e(f"v_mov_b32 v{inc}, v{n_}")
    dpp_scan(a, inc)
    a.e(f"v_readlane_b32 s{sTOT}, v{inc}, 63")
    a.e(f"s_cmp_lt_u32 s{sWIN}, s{sTOT}")
    a.e(f"s_cbranch_scc1 K2_FGO")
    a.e(f"s_cmp_eq_u32 s{sJ}, 0")
    a.e(f"s_cbranch_scc1 K2_FGO")
    rotate()
    a.e(f"s_mov_b32 s{sWIN}, 0")
    a.e(f"s_branch K2_PLOOP")
    a.e(f"K2_FGO:")
    a.e(f"v_subrev_u32 v{inc}, s{sWIN}, v{inc}")
    a.e(f"v_sub_u32 v{S_}, v{inc}, v{n_}")
    a.e(f"v_add_u32 v{el}, -1, v{inc}")
    if cfg.get('x_al'):
        a.e(f"v_mul_u32_u24 v{V_}, 3, v{p0}")
        a.e(f"v_and_b32 v{V_}, 0xffe0, v{V_}")
        a.e(f"v_add_u32 v{V_}, 2, v{V_}")
        a.e(f"v_mul_u32_u24 v{V_}, 21846, v{V_}")
        a.e(f"v_lshrrev_b32 v{V_}, 16, v{V_}")
        a.e(f"v_sub_u32 v{V_}, v{V_}, v{S_}")
    else:
        a.e(f"v_sub_u32 v{V_}, v{p0}, v{S_}")
    a.e(f"v_mad_i32_i24 v{V_}, v{V_}, 12, v{vTB}")
    a.e(f"v_cmp_le_i32 vcc, 0, v{S_}")
    a.e(f"v_and_b32 v{x_}, 1, v{s_}")
    a.e(f"s_and_b64 vcc, vcc, s[{sM}:{sM+1}]")
    a.e(f"v_max_i32 v{sl}, 0, v{S_}")
    a.e(f"v_cndmask_b32 v{x_}, 0, v{x_}, vcc")
    a.e(f"v_lshl_or_b32 v{x_}, v{x_}, 6, v{vCN}")
    a.e(f"v_and_b32 v{y_}, 1, v{e_}")
    a.e(f"v_lshlrev_b32 v{y_}, 7, v{y_}")
    def marker(val, slot, tmp):
        a.e(f"v_lshrrev_b32 v{tmp}, 3, v{slot}")
        a.e(f"v_and_b32 v{tmp}, 0x18, v{tmp}")
        a.e(f"v_lshlrev_b32 v{val}, v{tmp}, v{val}")
        a.e(f"v_lshrrev_b32 v{tmp}, 8, v{slot}")
        a.e(f"v_cmp_gt_u32 vcc, 512, v{slot}")
        a.e(f"v_and_b32 v{slot}, 63, v{slot}")
        a.e(f"v_sub_u32 v{slot}, v{slot}, v{vLANE}")
        a.e(f"v_lshl_add_u32 v{slot}, v{slot}, 1, v{tmp}")
        a.e(f"v_lshl_add_u32 v{slot}, v{slot}, 2, v{vSCR}")
    marker(x_, sl, s_)
    a.e(f"s_mov_b64 exec, vcc")
    a.e(f"ds_add_u32 v{sl}, v{x_}")
    a.e(f"s_mov_b64 exec, -1")
    marker(y_, el, s_)
    a.e(f"s_and_b64 exec, vcc, s[{sM}:{sM+1}]")
    a.e(f"ds_add_u32 v{el}, v{y_}")
    a.e(f"s_mov_b64 exec, -1")
    RAW, RW2, CN = T_ + 12, T_ + 14, T_ + 16
    AD = T_ + 18
    a.e(f"ds_read_b64 {vr(RAW,2)}, v{vSCR}")
    a.e(f"v_mov_b32 v{RW2}, 0")
    a.e(f"v_mov_b32 v{RW2+1}, 0")
    a.e(f"ds_write_b64 v{vSCR}, {vr(RW2,2)}")
    a.e(f"s_sub_u32 s{sT2}, s{sTOT}, s{sWIN}")
    a.e("s_waitcnt lgkmcnt(1)")
    for h in range(2):
        a.e(f"v_and_b32 v{CN+h}, 0x3f3f3f3f, v{RAW+h}")
    for h in range(2):
        a.e(f"v_lshlrev_b32 v{RW2+h}, 1, v{RAW+h}")
    mk = []
    for c in range(8):
        mk.append(f"v_cmp_le_i32_sdwa s[{MSK+4*c}:{MSK+4*c+1}], 0, sext(v{RW2+(c>>2)}) src0_sel:DWORD src1_sel:BYTE_{c&3}")
        mk.append(f"v_cmp_le_i32_sdwa s[{MSK+4*c+2}:{MSK+4*c+3}], 0, sext(v{RAW+(c>>2)}) src0_sel:DWORD src1_sel:BYTE_{c&3}")
    dp = [f"row_shr:{sh} row_mask:0xf bank_mask:0xf bound_ctrl:0" for sh in (1, 2, 4, 8)] + \
         ["row_bcast:15 row_mask:0xa bank_mask:0xf", "row_bcast:31 row_mask:0xc bank_mask:0xf"]
    for d_ in dp:
        for h in range(2):
            a.e(f"v_add_u32_dpp v{CN+h}, v{CN+h}, v{CN+h} {d_}")
        a.e(mk.pop(0))
    a.e(f"v_readlane_b32 s{sT0}, v{CN}, 63")
    a.e(f"v_readlane_b32 s{sT1}, v{CN+1}, 63")
    a.e(mk.pop(0)); a.e(mk.pop(0))
    a.e(f"s_mul_i32 s{sM}, s{sT0}, 0x01010101")
    a.e(f"s_lshl_b32 s{sT0}, s{sM}, 8")
    a.e(f"s_lshr_b32 s{sM}, s{sM}, 24")
    a.e(f"s_lshl_b32 s{sT1}, s{sT1}, 8")
    a.e(f"s_add_u32 s{sT1}, s{sT1}, s{sM}")
    a.e(f"s_mul_i32 s{sT1}, s{sT1}, 0x01010101")
    a.e(f"v_add_u32 v{CN}, s{sT0}, v{CN}")
    a.e(f"v_add_u32 v{CN+1}, s{sT1}, v{CN+1}")
    for c in range(8):
        a.e(f"v_lshlrev_b32_sdwa v{AD+c}, 2, v{CN+(c>>2)} dst_sel:DWORD dst_unused:UNUSED_PAD src0_sel:DWORD src1_sel:BYTE_{c&3}")
        a.e(f"ds_bpermute_b32 v{AD+c}, v{AD+c}, v{V_}")
    for m_ in mk: a.e(m_)
    a.e(f"v_mov_b32 v{s_}, s{sOOB}")
    a.e(f"v_add_u32 v{e_}, {768*4}, v{vL12}")
    for c in range(8):
        a.e(f"v_cmp_gt_i32 vcc, s{sT2}, v{vLANE}")
        a.e(f"s_sub_u32 s{sT2}, s{sT2}, 64")
        a.e(f"s_and_b64 s[{MSK+4*c}:{MSK+4*c+1}], s[{MSK+4*c}:{MSK+4*c+1}], vcc")
        a.e(f"s_and_b64 s[{MSK+4*c+2}:{MSK+4*c+3}], s[{MSK+4*c+2}:{MSK+4*c+3}], vcc")
        a.e(f"s_waitcnt lgkmcnt({7-c})")
        a.e(f"v_add_u32 v{AD+c}, v{AD+c}, v{vL12 if c < 4 else e_}")
        a.e(f"v_cndmask_b32 v{AD+c}, v{s_}, v{AD+c}, vcc")
        a.e(f"buffer_load_dwordx3 {vr(P(c),3)}, v{AD+c}, s[{S_WS}:{S_WS+3}], 0 offen offset:{768*(c&3)}")
    a.e(f"s_add_u32 s{sWIN}, s{sWIN}, 512")
    a.e(f"s_cmp_lt_u32 s{sWIN}, s{sTOT}")
    a.e(f"s_cbranch_scc1 K2_FDONE")
    a.e(f"s_mov_b32 s{sWIN}, 0")
    a.e(f"s_cmp_eq_u32 s{sJ}, 0")
    a.e(f"s_cbranch_scc1 K2_FDONE")
    rotate()
    a.e(f"K2_FDONE:")
    stamp(1)
    if 'k2_sprio' in cfg and cfg.get('k2_sprio_at', 0) == 2: a.e(f"s_setprio {cfg['k2_sprio']}")
    vPL = cfg.get('vpl', 86)
    poll(vPL, K2_FP, f"s{sTG}")
    a.e(f"s_add_u32 s{sTG}, s{sTG}, 32")
    a.e(f"s_cmp_lt_u32 s{sDN}, 0xff00")
    a.e(f"s_cselect_b32 s{sR6}, s{sTG}, s{sR6}")
    a.e(f"s_cmp_le_u32 s{sJ}, {1 if SPLIT else 0}")
    a.e(f"s_cselect_b32 s{sT0}, 0x100, 0")
    a.e(f"s_cmp_eq_u32 s{sJ}, 0")
    a.e(f"s_addc_u32 s{sT0}, s{sT0}, 0")
    a.e(f"s_lshl_b32 s{sT0}, s{sT0}, s{sWAVE}")
    a.e(f"v_mov_b32 v{vPL}, s{sT0}")
    for c in range(8):
        a.e(f"s_waitcnt vmcnt({7-c})")
        for h in range(2):
            i = 2 * c + h
            a.e(f"v_lshlrev_b32_sdwa v{KA+i}, 2, v{P(c)+2*h} dst_sel:DWORD dst_unused:UNUSED_PAD src0_sel:DWORD src1_sel:BYTE_1")
        for h in range(2):
            i = 2 * c + h
            a.e(f"s_mov_b64 exec, s[{MSK+2*i}:{MSK+2*i+1}]")
            a.e(f"ds_add_rtn_u32 v{U+i}, v{KA+i}, v{vFOUR}")
        if c < 7: a.e("s_mov_b64 exec, -1")
    a.e("s_mov_b64 exec, 1")
    a.e(f"ds_or_b32 v{vZERO}, v{vPL} offset:{K2_DN}")
    a.e(f"ds_add_u32 v{vZERO}, v{vFOUR} offset:{K2_FH}")
    a.e("s_mov_b64 exec, -1")
    stamp(2)
    a.e(f"K2_PLH:")
    a.e(f"ds_read_b64 {vr(vPL,2)}, v{vZERO} offset:{K2_FH}")
    a.e("s_waitcnt lgkmcnt(0)")
    a.e(f"v_readfirstlane_b32 s{sT0}, v{vPL}")
    a.e(f"s_cmp_lt_u32 s{sT0}, s{sTG}")
    a.e(f"s_cbranch_scc1 K2_PLH")
    stamp(3)
    if 'k2_sprio' in cfg and cfg.get('k2_sprio_at', 0) == 0: a.e(f"s_setprio {cfg['k2_sprio']}")
    NW, CC, TT, BS = T_, T_ + 4, T_ + 8, T_ + 12
    a.e(f"ds_read_b128 {vr(NW,4)}, v{vL16}")
    signal(vFOUR, K2_FP)
    a.e(f"v_readfirstlane_b32 s{sDN}, v{vPL+1}")
    a.e("s_waitcnt lgkmcnt(1)")
    for k in range(4):
        a.e(f"v_sub_u32 v{CC+k}, v{NW+k}, v{OLD+k}")
    a.e(f"v_add_u32 v{TT}, v{CC}, v{CC+1}")
    a.e(f"v_add3_u32 v{TT}, v{TT}, v{CC+2}, v{CC+3}")
    a.e(f"v_sub_u32 v{TT+1}, {K2_SW}, v{TT}")
    dpp_scan(a, TT)
    a.e(f"v_add_u32 v{TT+1}, v{TT+1}, v{TT}")
    a.e(f"v_readlane_b32 s{sN}, v{TT}, 63")
    for k in range(4):
        a.e(f"v_sub_u32 v{BS+k}, v{TT+1}, v{OLD+k}")
        if k < 3:
            a.e(f"v_add_u32 v{TT+1}, v{TT+1}, v{CC+k}")
        a.e(f"v_mov_b32 v{OLD+k}, v{NW+k}")
    a.e(f"ds_write_b128 v{vL16}, {vr(BS,4)} offset:{K2_BASE}")
    for i in range(16):
        a.e(f"ds_read_b32 v{KA+i}, v{KA+i} offset:{K2_BASE}")
    a.e(f"s_sub_u32 s{sT1}, s{sTG}, 32")
    stamp(4)
    poll(vPL, K2_FR, f"s{sT1}")
    stamp(5)
    if 'k2_sprio' in cfg and cfg.get('k2_sprio_at', 0) == 1: a.e(f"s_setprio {cfg['k2_sprio']}")
    a.e(f"s_cmp_lg_u32 s{sWAVE}, 0")
    a.e(f"s_cbranch_scc1 K2_NOPAD")
    a.e(f"s_add_u32 s{sT0}, s{sN}, {K2_SW}")
    a.e(f"v_lshl_add_u32 v{TT}, v{vLANE}, 2, s{sT0}")
    a.e(f"v_mov_b32 v{TT+1}, {hex(DUMMY)}")
    a.e(f"ds_write_b32 v{TT}, v{TT+1}")
    a.e(f"v_lshrrev_b32 v{TT}, 1, v{TT}")
    a.e(f"v_cmp_gt_u32 vcc, {K2_SW//2 + 16384}, v{TT}")
    a.e(f"s_cmp_eq_u32 s{sDN}, 0xffff")
    a.e(f"s_addc_u32 s{sT0}, s{sN}, 0")
    a.e(f"v_mov_b32 v{TT+3}, s{sT0}")
    a.e(f"ds_write_b32 v{vZERO}, v{TT+3} offset:{K2_NCELL}")
    a.e(f"s_mov_b64 exec, vcc")
    if not cfg.get('x_nopad'): a.e(f"ds_write_b16 v{TT}, v{vZERO} offset:{K2_SA - K2_SW//2}")
    a.e(f"s_mov_b64 exec, -1")
    a.e("K2_NOPAD:")
    for i in range(16):
        a.e(f"v_add_u32 v{U+i}, v{U+i}, v{KA+i}")
        a.e(f"v_lshrrev_b32 v{KA+i}, 1, v{U+i}")
    for i in range(16):
        c, h = i >> 1, i & 1
        a.e(f"s_mov_b64 exec, s[{MSK+2*i}:{MSK+2*i+1}]")
        a.e(f"ds_write_b32 v{U+i}, v{P(c)+2*h}")
        a.e(f"ds_write_b16{'_d16_hi' if h else ''} v{KA+i}, v{P(c)+1} offset:{K2_SA - K2_SW//2}")
    signal(vFOUR, K2_FS)
    stamp(4)
    if 'k2_sprio' in cfg: a.e(f"s_setprio {PPRIO}")
    a.e(f"s_cmp_lg_u32 s{sDN}, 0xffff")
    a.e("s_cbranch_scc1 K2_PLOOP")

    a.e("K2_PTAIL:")
    a.e(f"s_setprio {cfg.get('k2_tprio', 2)}")
    S_W1, S_W2, S_C, S_D, S_MM = 40, 44, 48, 56, 60
    sGI, sEP, sEO, sLP, sLO, sK6 = 64, 66, 67, 68, 69, 70
    S_WA = 72
    S_WR = 92 if TRACE else 88
    sBI, sTOP = sJ, sWIN
    DI, WOP, AA, MM, GG = 10, 24, 32, 88, 8
    DB0, XX, RB, vOF, vCK = 104, 120, 28, 3, 126
    a.e(f"s_load_dwordx2 s[{S_D}:{S_D+1}], s[0:1], 24")
    a.e(f"s_load_dwordx2 s[{S_W2}:{S_W2+1}], s[0:1], 56")
    a.e(f"s_load_dwordx2 s[{S_W1}:{S_W1+1}], s[0:1], 64")
    a.e(f"s_load_dwordx2 s[{S_MM}:{S_MM+1}], s[0:1], 0")
    a.e(f"s_load_dwordx2 s[{S_X}:{S_X+1}], s[0:1], 80")
    a.e(f"s_load_dwordx2 s[{S_Y}:{S_Y+1}], s[0:1], 88")
    for sr_, n in ((S_D, E * 2), (S_W1, 128), (S_W2, 64), (S_MM, E * 8), (S_Y, E * 8)):
        a.e(f"s_mov_b32 s{sr_+2}, {n}")
        a.e(f"s_mov_b32 s{sr_+3}, 0x00020000")
    a.e(f"s_lshr_b32 s{sT0}, s{sB}, 7")
    a.e(f"s_and_b32 s{sT1}, s{sB}, 127")
    a.e(f"s_mul_i32 s{sLP}, s{sT0}, {EPB}")
    a.e(f"s_sub_u32 s{sLO}, {EPB}, s{sLP}")
    a.e(f"s_mul_i32 s{sT1}, s{sT1}, {2*EPB}")
    a.e(f"s_add_u32 s{sEP}, s{sT1}, s{sLP}")
    a.e(f"s_add_u32 s{sEO}, s{sT1}, s{sLO}")
    a.e(f"s_mov_b32 s{sBI}, 0x40004000")
    a.e(f"s_mov_b32 s{sTOP}, 0x80008000")
    for k in range(14):
        a.e(f"v_mov_b32 v{DI+k}, 0")
    for q in range(8):
        a.e(f"v_mov_b32 v{WOP+q}, 0")
    a.e(f"v_add_lshl_u32 v{XX+2}, v0, s{sEP}, 1")
    a.e(f"v_add_lshl_u32 v{XX+4}, v0, s{sEO}, 1")
    a.e(f"v_add_u32 v{XX+3}, 4096, v{XX+2}")
    a.e(f"v_add_u32 v{XX+5}, 4096, v{XX+4}")
    a.e(f"v_and_b32 v{DB0+1}, 3, v{vLANE}")
    a.e(f"v_lshlrev_b32 v{DB0+1}, 1, v{DB0+1}")
    a.e(f"v_and_or_b32 v{DB0}, v{vLANE}, 8, v{DB0+1}")
    a.e(f"v_lshlrev_b32 v{vOF+2}, 3, v0")
    a.e(f"v_mov_b32 v{DB0+2}, s{sOOB}")
    a.e(f"v_cmp_gt_u32 s[{sK6}:{sK6+1}], {EPB - 3072}, v0")
    a.e(f"v_lshlrev_b32 v{vOF}, 2, v{XX+4}")
    a.e(f"v_add_u32 v{vOF+1}, {6*4096}, v{vOF}")
    a.e(f"v_cndmask_b32 v{vOF+1}, v{DB0+2}, v{vOF+1}, s[{sK6}:{sK6+1}]")
    a.e(f"v_cndmask_b32 v{vOF+3}, v{DB0+2}, v{vOF+2}, s[{sK6}:{sK6+1}]")
    poll(XX, K2_GI, "1", 0)
    a.e(f"s_mov_b32 s{sGI}, s{sT0}")
    a.e(f"s_mov_b32 s{sGI+1}, s{sT0}")
    a.e(f"s_load_dwordx8 s[{S_WR}:{S_WR+7}], s[{S_X}:{S_X+1}], 0")
    a.vm = []
    for k in range(7):
        a.vmem(f"buffer_load_short_d16_hi v{DI+k}, v{XX+2+(k>>2)}, s[{S_D}:{S_D+3}], 0 offen offset:{(k&3)*1024}", ('D', k))
    a.e(f"s_mov_b32 exec_lo, 0x00000f0f")
    a.e(f"s_mov_b32 exec_hi, 0x0000f0f0")
    for r in range(8):
        a.vmem(f"buffer_load_short_d16{'_hi' if r & 1 else ''} v{WOP+(r>>1)+4*(r&1)}, v{DB0}, s[{S_W1}:{S_W1+3}], 0 offen offset:{16*r}", 'W')
    a.e(f"s_mov_b32 exec_lo, 0x000f0000")
    a.e(f"s_mov_b32 exec_hi, 0x00f00000")
    for r in range(8):
        a.vmem(f"buffer_load_short_d16{'_hi' if r & 1 else ''} v{WOP+(r>>1)+4*(r&1)}, v{DB0+1}, s[{S_W2}:{S_W2+3}], 0 offen offset:{8*r}", 'W')
    a.e(f"s_mov_b64 exec, -1")
    for k in range(7):
        a.vmem(f"buffer_load_short_d16_hi v{DI+7+k}, v{XX+4+(k>>2)}, s[{S_D}:{S_D+3}], 0 offen offset:{(k&3)*1024}", ('D', 7 + k))
    for k in range(7):
        a.e(f"s_mov_b32 s{sT0}, {4096*k if k < 6 else 0}")
        a.vmem(f"buffer_load_dwordx2 {vr(MM+2*k,2)}, v{vOF + (k == 6)}, s[{S_MM}:{S_MM+3}], s{sT0} offen", 'M')
    for r in range(8):
        a.e(f"s_mov_b32 s{S_C+r}, {f2h(-KAP * h2f(CENTERS[r]))}")
    a.e(f"s_add_u32 s{sR6}, s{sR6}, 64")
    a.wvm('W')
    for q in range(4):
        a.e(f"v_or_b32 v{WOP+q}, v{WOP+q}, v{WOP+4+q}")
    def rbf(dv, X):
        a.e(f"v_mul_f32 v{102}, {f2h(KAP)}, v{dv}")
        for q in range(4):
            a.e(f"v_pk_add_f32 {vr(X+2*q,2)}, {vr(102,2)}, s[{S_C+2*q}:{S_C+2*q+1}] op_sel_hi:[0,1]")
        for q in range(4):
            a.e(f"v_pk_mul_f32 {vr(X+2*q,2)}, {vr(X+2*q,2)}, {vr(X+2*q,2)}")
        for r in range(8):
            a.e(f"v_exp_f32 v{X+r}, -v{X+r}")
    def acomp(base, own, hook=None):
        rbf(base, AA)
        for k in range(7):
            X = AA + 8 * k
            for q in range(4):
                a.e(f"v_cvt_pk_bf16_f32 v{RB+q}, v{X+2*q}, v{X+2*q+1}")
            if not cfg.get('x_nomfma'): a.e(f"v_mfma_f32_32x32x16_bf16 {vr(DB0,16)}, {vr(WOP,4)}, {vr(RB,4)}, 0")
            if k < 6: rbf(base + k + 1, X + 8)
            for d in range(4):
                a.e(f"v_pk_mul_f32 {vr(X+2*d,2)}, {vr(DB0+2*d,2)}, s[{sGI}:{sGI+1}]")
            if own:
                for q in range(2):
                    a.e(f"v_cvt_pk_bf16_f32 v{GG+2*k+q}, v{DB0+8+2*q}, v{DB0+9+2*q}")
            if hook: hook(k)
    a.e(f"s_cmp_lg_u32 s{sMODE}, 0")
    a.e("s_cbranch_scc1 K2_TOWN")
    acomp(DI, False)
    stamp(11)
    a.e(f"v_and_b32 v{XX+1}, 7, v{vLANE}")
    a.e(f"v_lshlrev_b32 v{XX+1}, 2, v{XX+1}")
    a.e(f"v_add_lshl_u32 v{XX+2}, v0, s{sLP}, 3")
    a.e(f"v_add_u32 v{XX+3}, {STR2}, v{XX+2}")
    a.e(f"s_mul_i32 s{sT2}, s{sB}, {XB_STR}")
    a.e(f"s_add_u32 s{sT2}, s{sT2}, {XB_OFF}")
    a.wvm0()
    a.e("s_branch K2_FD1")
    a.e("K2_FD0:")
    a.e(f"s_sleep {cfg.get('k2_fdslp', 2)}")
    a.e("K2_FD1:")
    a.e(f"ds_read_b32 v{XX}, v{XX+1} offset:{K2C_FD}")
    a.e("s_waitcnt lgkmcnt(0)")
    a.e(f"v_cmp_gt_u32 vcc, s{sR6}, v{XX}")
    a.e("s_cbranch_vccnz K2_FD0")
    a.e("s_setprio 3")
    stamp(12)
    a.lg = []
    a.lds(f"ds_read_b32 v{vCK}, v{vZERO} offset:{K2_VI}", 'V')
    def sread(k, dst):
        for q in range(2):
            a.lds(f"ds_read_b64 {vr(dst+2*q,2)}, v{XX+2+q} offset:{ACC + 4096*k}", ('S', k))
    def agg(k, S, tmp, init):
        X = AA + 8 * k
        if k == 6: a.e(f"s_mov_b64 exec, s[{sK6}:{sK6+1}]")
        a.e(f"v_or3_b32 v{vCK}, v{vCK}, v{S}, v{S+1}")
        a.e(f"v_or3_b32 v{vCK}, v{vCK}, v{S+2}, v{S+3}")
        if k == 6: a.e(f"s_mov_b64 exec, -1")
        for q in range(4):
            a.e(f"v_pk_sub_i16 v{S+q}, v{S+q}, s{sBI}")
        for d in range(4):
            a.e(f"v_cvt_f32_i32_sdwa v{tmp+d}, sext(v{S+(d>>1)}) dst_sel:DWORD dst_unused:UNUSED_PAD src0_sel:WORD_{d&1}")
        for q in range(2):
            if init:
                a.e(f"v_pk_fma_f32 {vr(RB+2*q,2)}, {vr(X+2*q,2)}, {vr(tmp+2*q,2)}, {vr(RB+2*q,2)}")
            else:
                a.e(f"v_pk_mul_f32 {vr(RB+2*q,2)}, {vr(X+2*q,2)}, {vr(tmp+2*q,2)}")
        for d in range(4):
            a.e(f"v_cvt_f32_i32_sdwa v{X+d}, sext(v{S+2+(d>>1)}) dst_sel:DWORD dst_unused:UNUSED_PAD src0_sel:WORD_{d&1}")
        for q in range(2):
            a.e(f"v_pk_fma_f32 {vr(RB+2*q,2)}, {vr(X+4+2*q,2)}, {vr(X+2*q,2)}, {vr(RB+2*q,2)}")
    for k in range(3): sread(k, DB0 + 4 * k)
    for k in range(7):
        if k + 3 < 7: sread(k + 3, DB0 + 4 * ((k + 3) % 4))
        a.wlg(('S', k))
        agg(k, DB0 + 4 * (k % 4), 8, False)
        a.e(f"v_cvt_pk_bf16_f32 v{AA+8*k}, v{RB}, v{RB+1}")
        a.e(f"v_cvt_pk_bf16_f32 v{AA+8*k+1}, v{RB+2}, v{RB+3}")
        a.vmem(f"buffer_store_dwordx2 {vr(AA+8*k,2)}, v{vOF+2+(k == 6)}, s[{S_WS}:{S_WS+3}], s{sT2} offen sc1", 'X')
        a.e(f"s_add_u32 s{sT2}, s{sT2}, 4096")
    a.e(f"s_setprio {cfg.get('k2_tprio', 2)}")
    a.e(f"v_and_b32 v{vCK}, s{sTOP}, v{vCK}")
    a.e(f"v_cmp_ne_u32 vcc, 0, v{vCK}")
    a.e(f"s_cmp_lg_u64 vcc, 0")
    a.e(f"s_cselect_b32 s{sT0}, 0x8004, 4")
    a.e(f"v_mov_b32 v{vFOUR}, s{sT0}")
    stamp(13)
    a.e(f"s_lshl_b32 s{sT1}, s{sWAVE}, 4")
    a.e(f"s_add_u32 s{sT1}, s{sT1}, {FL_OFF}")
    a.e(f"s_lshl_b32 s{sT2}, s{sB}, 7")
    a.e(f"s_add_u32 s{sEP}, s{sT1}, s{sT2}")
    a.e(f"s_xor_b32 s{sT2}, s{sT2}, {128 << 7}")
    a.e(f"s_add_u32 s{sLP}, s{sT1}, s{sT2}")
    a.e("K2_TOWN:")
    FLK = cfg.get('k2_flk', 1)
    def flag(k):
        if k == FLK:
            a.wvm0()
            a.e(f"s_cmp_lg_u32 s{sMODE}, 0")
            a.e("s_cbranch_scc1 K2_NOFLAG")
            a.e("s_mov_b64 exec, 1")
            a.e(f"buffer_store_dword v{vFOUR}, v{vZERO}, s[{S_WS}:{S_WS+3}], s{sEP} offen sc1")
            a.e("s_mov_b64 exec, -1")
            a.e("K2_NOFLAG:")
    DO2 = 120
    a.e("s_waitcnt vmcnt(7)")
    for k in range(7):
        a.e(f"v_mov_b32 v{DO2+k}, v{DI+7+k}")
    if FLK < 0: flag(FLK)
    acomp(DO2, True, flag)
    a.e("s_waitcnt lgkmcnt(0)")
    for d in range(4):
        for h in range(2):
            src = S_WR + 2 * d + h
            a.e(f"s_lshl_b32 s{S_WA+4*d+2*h}, s{src}, 16")
            a.e(f"s_and_b32 s{S_WA+4*d+2*h+1}, s{src}, s{sHI}")
    a.e(f"s_cmp_lg_u32 s{sMODE}, 0")
    a.e("s_cbranch_scc1 K2_SFIN")
    stamp(14)
    a.e(f"s_mov_b32 s{sT0}, {1 << 14}")
    a.e(f"s_xor_b32 s{sT2}, s{sB}, 128")
    a.e(f"s_mul_i32 s{sT2}, s{sT2}, {XB_STR}")
    a.e(f"s_add_u32 s{sT2}, s{sT2}, {XB_OFF}")
    a.e("s_branch K2_FL1")
    a.e("K2_FL0:")
    a.e(f"s_sleep {cfg.get('k2_flslp', 4)}")
    a.e(f"v_mov_b32 v{vCK}, 0x8000")
    a.e(f"s_sub_u32 s{sT0}, s{sT0}, 1")
    a.e("s_cbranch_scc1 K2_FL2")
    a.e("K2_FL1:")
    a.e(f"buffer_load_dword v{vCK}, v{vZERO}, s[{S_WS}:{S_WS+3}], s{sLP} offen sc1")
    a.e("s_waitcnt vmcnt(0)")
    a.e(f"v_cmp_eq_u32 vcc, 0, v{vCK}")
    a.e("s_cbranch_vccnz K2_FL0")
    a.e("K2_FL2:")
    a.e("s_setprio 3")
    PP = [22, 24, 26, 102, 116, 118, 124]
    for k in range(7):
        a.e(f"buffer_load_dwordx2 {vr(PP[k],2)}, v{vOF+2+(k == 6)}, s[{S_WS}:{S_WS+3}], s{sT2} offen sc1")
        a.e(f"s_add_u32 s{sT2}, s{sT2}, 4096")
    a.e(f"v_add_lshl_u32 v{XX+2}, v0, s{sLO}, 3")
    a.e(f"v_add_u32 v{XX+3}, {STR2}, v{XX+2}")
    stamp(6)
    a.e("s_barrier")
    stamp(7)
    def unpack(dst, src):
        a.e(f"v_lshlrev_b32 v{dst}, 16, v{src}")
        a.e(f"v_and_b32 v{dst+1}, s{sHI}, v{src}")
        a.e(f"v_lshlrev_b32 v{dst+2}, 16, v{src+1}")
        a.e(f"v_and_b32 v{dst+3}, s{sHI}, v{src+1}")
    def finish(k):
        X = AA + 8 * k
        a.e(f"v_mov_b32 v{DB0+8}, v{RB+1}")
        a.e(f"v_mov_b32 v{DB0+10}, v{RB+3}")
        unpack(X + 4, GG + 2 * k)
        for d in range(4):
            src = RB + d if d % 2 == 0 else DB0 + 7 + d
            for q in range(2):
                w = f"s[{S_WA+4*d+2*q}:{S_WA+4*d+2*q+1}]"
                if d == 0:
                    a.e(f"v_pk_mul_f32 {vr(X+2*q,2)}, {vr(RB,2)}, {w} op_sel_hi:[0,1]")
                else:
                    a.e(f"v_pk_fma_f32 {vr(X+2*q,2)}, {vr(src,2)}, {w}, {vr(X+2*q,2)} op_sel_hi:[0,1,1]")
        unpack(RB, MM + 2 * k)
        for q in range(2):
            a.e(f"v_pk_fma_f32 {vr(X+2*q,2)}, {vr(X+2*q,2)}, {vr(X+4+2*q,2)}, {vr(RB+2*q,2)}")
        a.e(f"v_cvt_pk_bf16_f32 v{MM+2*k}, v{X}, v{X+1}")
        a.e(f"v_cvt_pk_bf16_f32 v{MM+2*k+1}, v{X+2}, v{X+3}")
        a.e(f"s_mov_b32 s{sT0}, {4096*k if k < 6 else 0}")
        a.e(f"buffer_store_dwordx2 {vr(MM+2*k,2)}, v{vOF + (k == 6)}, s[{S_Y}:{S_Y+3}], s{sT0} offen")
    a.lg = []
    sread(0, DB0)
    for k in range(7):
        if k + 1 < 7: sread(k + 1, DB0 + 4 * ((k + 1) & 1))
        if k == 0: a.wvm0()
        unpack(RB, PP[k])
        a.wlg(('S', k))
        agg(k, DB0 + 4 * (k & 1), DB0 + 8, True)
        finish(k)
    a.e(f"v_and_b32 v{vCK}, s{sTOP}, v{vCK}")
    a.e(f"v_cmp_ne_u32 vcc, 0, v{vCK}")
    a.e(f"s_and_b64 exec, exec, vcc")
    a.e(f"ds_or_b32 v{vZERO}, v{vCK} offset:{K2_VI}")
    a.e(f"s_mov_b64 exec, -1")
    a.e("s_waitcnt lgkmcnt(0)")
    a.e("s_barrier")
    a.e(f"ds_read_b32 v{vCK}, v{vZERO} offset:{K2_VI}")
    a.e("s_waitcnt lgkmcnt(0)")
    a.e(f"v_cmp_ne_u32 vcc, 0, v{vCK}")
    a.e("s_cbranch_vccz K2_FIN")
    a.e(f"s_mov_b32 s{sMODE}, 1")
    a.e("s_barrier")
    a.e("s_waitcnt vmcnt(0)")
    a.e("s_barrier")
    a.e("s_branch K2_PTAIL")
    a.e("K2_SFIN:")
    a.e(f"v_lshlrev_b32 v{XX+2}, 2, v0")
    a.e(f"v_add_u32 v{XX+3}, {STR2}, v{XX+2}")
    for k in range(7):
        X = AA + 8 * k
        for q in range(8):
            a.e(f"ds_read_b32 v{DB0+q}, v{XX+2+(q>>2)} offset:{ACC + (q&3)*ACC_STR + 2048*k}")
        a.e("s_waitcnt lgkmcnt(0)")
        for q in range(8):
            a.e(f"v_cvt_f32_i32 v{DB0+q}, v{DB0+q}")
        for q in range(2):
            a.e(f"v_pk_mul_f32 {vr(RB+2*q,2)}, {vr(X+2*q,2)}, {vr(DB0+2*q,2)}")
        for q in range(2):
            a.e(f"v_pk_fma_f32 {vr(RB+2*q,2)}, {vr(X+4+2*q,2)}, {vr(DB0+4+2*q,2)}, {vr(RB+2*q,2)}")
        finish(k)
    a.e("s_branch K2_FIN")

    a.e("K2_CONS:")
    vFD, vA4, vA2 = 3, 4, 5
    SW_, SA_ = 6, 19
    CUR = 32
    COL = {3: [0,1,2,3,0,1,2,3,0,1,2,3,4], 2: [0,1,2,0,1,2,0,1,2,0,1,2,3],
           4: [0,1,2,3,4,5,0,1,2,3,4,5,6], 5: [0,1,2,3,4,5,0,1,2,3,4,5,6]}.get(D, list(range(13)))
    NCOL = max(COL) + 1
    RSTR = 6 if D <= 5 else 4
    LB = CUR + 4 * 13
    TB = 104
    RT, vCK, vC4, vCT = 120, 124, 125, 126
    MXR = TB
    sG, sGN, sMG, sNB, sSEL, sMX, sLAST = 40, 42, 44, 46, 48, 49, 50
    def fill(first):
        if first:
            a.e(f"v_cmp_le_u32 vcc, {ACC//16}, v{vCT}")
            a.e(f"s_mov_b64 exec, vcc")
            a.e(f"ds_write_b128 v{TB+8}, {vr(TB+4,4)}")
            a.e(f"s_mov_b64 exec, -1")
        for k in range(1, 8):
            a.e(f"ds_write_b128 v{TB+8}, {vr(TB+4,4)} offset:{k*8192}")
        a.e(f"v_add_u32 v{TB+8}, 65536, v{TB+8}")
        for k in range(4):
            a.e(f"ds_write_b128 v{TB+8}, {vr(TB+4,4)} offset:{k*8192}")
        a.e(f"v_cmp_gt_u32 vcc, {(K2_SA - 12*8192)//16}, v{vCT}")
        a.e(f"s_mov_b64 exec, vcc")
        a.e(f"ds_write_b128 v{TB+8}, {vr(TB+4,4)} offset:{4*8192}")
        a.e(f"s_mov_b64 exec, -1")
    def mdsrd(hreg):
        a.e(f"s_mul_i32 s{sT0}, {hreg}, {MD_TSTR}")
        a.e(f"s_add_u32 s{sT0}, s{sT0}, {MD_OFF}")
        a.e(f"s_add_u32 s{S_MD}, s{S_WS}, s{sT0}")
        a.e(f"s_addc_u32 s{S_MD+1}, s{S_WS+1}, 0")
        a.e(f"s_or_b32 s{S_MD+1}, s{S_MD+1}, 0x80000")
    def setscale(t):
        a.e(f"v_min_f32 v{t}, 0x71800000, v{t}")
        a.e(f"v_rcp_f32 v{t+1}, v{t}")
        a.e(f"v_add_f32 v{t+2}, v{t}, v{t}")
        a.e(f"v_readlane_b32 s{sG}, v{t}, 63")
        a.e(f"v_readlane_b32 s{sG+1}, v{t+2}, 63")
        a.e("s_lshl_b64 exec, 1, 63")
        a.e(f"ds_write_b32 v{vZERO}, v{t+1} offset:{K2_GI}")
        a.e("s_mov_b64 exec, -1")
        a.e(f"s_xor_b32 s{sGN}, s{sG}, 0x80000000")
    a.e(f"s_sub_u32 s{sWAVE}, s{sWAVE}, 8")
    a.e(f"v_add_u32 v{vCT}, -512, v0")
    a.e(f"v_mov_b32 v{TB+9}, 0x40004000")
    a.e(f"v_cmp_le_u32 vcc, {ACC//16}, v{vCT}")
    a.e(f"v_lshlrev_b32 v{TB+8}, 4, v{vCT}")
    for k in range(4):
        a.e(f"v_cndmask_b32 v{TB+4+k}, 0, v{TB+9}, vcc")
    a.e(f"ds_write_b128 v{TB+8}, {vr(TB+4,4)}")
    for k in range(4):
        a.e(f"v_mov_b32 v{TB+4+k}, v{TB+9}")
    a.e(f"v_lshlrev_b32 v{TB+9}, 5, v{vLANE}")
    a.e(f"s_mov_b32 s{sT1}, {MX_OFF}")
    a.e("s_waitcnt lgkmcnt(0)")
    a.e("s_barrier")
    a.e(f"buffer_load_dwordx4 {vr(CUR,4)}, v{TB+9}, s[{S_WS}:{S_WS+3}], s{sT1} offen")
    a.e(f"buffer_load_dwordx4 {vr(CUR+4,4)}, v{TB+9}, s[{S_WS}:{S_WS+3}], s{sT1} offen offset:16")
    fill(False)
    a.e(f"s_lshr_b32 s{sT1}, s{sB}, 7")
    mdsrd(f"s{sT1}")
    a.e(f"s_mov_b32 s{S_MD+2}, {E//2}")
    a.e(f"s_mov_b32 s{S_MD+3}, 0x00020000")
    a.e(f"s_mov_b32 s{sFFF8}, 0xfff8")
    a.e(f"s_mov_b32 s{sMG}, {f2h(8388608.0 + 32768.0)}")
    a.e(f"s_mov_b32 s{sMG+1}, {f2h(8388608.0 + 32768.0)}")
    a.e(f"s_mov_b32 s{sNB}, 0x7fff8000")
    a.e(f"s_mov_b32 s{sNB+1}, 0x7fff7fff")
    a.e(f"s_mov_b32 s{sSEL}, 0x05040100")
    a.e(f"s_lshl_b32 s{sT0}, s{sWAVE}, 2")
    a.e(f"v_mov_b32 v{vFD}, s{sT0}")
    for s in range(NS):
        a.e(f"v_mov_b32 v{SW_+s}, {hex(DUMMY)}")
        a.e(f"v_mov_b32 v{SA_+s}, 0")
    for k in range(4):
        a.e(f"v_mov_b32 v{RT+k}, 0")
    a.e(f"s_mov_b32 s{sCNT}, 0")
    t = TB + 4
    a.e("s_waitcnt vmcnt(0)")
    a.e(f"v_max3_u32 v{MXR}, v{CUR}, v{CUR+2}, v{CUR+4}")
    a.e(f"v_add_f32 v{MXR+1}, v{CUR+1}, v{CUR+3}")
    a.e(f"v_add_f32 v{MXR+2}, v{CUR+5}, v{CUR+7}")
    a.e(f"v_max_u32 v{MXR}, v{MXR}, v{CUR+6}")
    a.e(f"v_add_f32 v{MXR+1}, v{MXR+1}, v{MXR+2}")
    dpp_scan(a, MXR, "v_max_u32")
    dpp_scan(a, MXR + 1, "v_add_f32")
    a.e(f"v_rcp_f32 v{t}, v{MXR}")
    a.e(f"v_mul_f32 v{MXR+2}, {f2h(4.0 * E / cfg.get('crest', 32.0))}, v{MXR}")
    a.e(f"v_readlane_b32 s{sMX}, v{MXR}, 63")
    a.e(f"v_cmp_nle_f32 vcc, v{MXR+2}, v{MXR+1}")
    a.e(f"v_mul_f32 v{t}, {f2h(cfg.get('qmax', 4096.0))}, v{t}")
    a.e(f"s_lshr_b32 s{sT0}, vcc_hi, 16")
    a.e(f"s_and_b32 s{sT0}, s{sT0}, 0x8000")
    a.e(f"v_mov_b32 v{vCK}, s{sT0}")
    setscale(t)
    stamp(6)

    uid = [0]
    stubs = []
    NOX = cfg.get('nox', True)
    def lreg(cur): return cur + (5 if NOX else 4) if D <= 5 else LB + (cur - CUR) // 4
    def alpha1(W, cur):
        L = lreg(cur)
        a.e(f"v_and_b32 v{L}, {hex(cfg.get('x_gmask', IDXM))}, v{W}")
        if not cfg.get('x_nog'):
            a.e(f"buffer_load_dwordx2 {vr(cur,2)}, v{L}, s[{S_MD}:{S_MD+3}], 0 idxen")
    def cosines(A, C_, mid=None, c2=1):
        tc = TB + 2
        a.e(f"v_mul_f32 v{tc}, 0.15915494, v{A}")
        a.e(f"v_fract_f32 v{tc}, v{tc}")
        a.e(f"v_cos_f32 v{tc}, v{tc}")
        if mid: a.e(mid)
        a.e(f"v_pk_mul_f32 {vr(C_,2)}, {vr(tc,2)}, s[{sG}:{sG+1}] op_sel_hi:[0,1]")
        a.e(f"v_fma_f32 v{C_+c2}, v{C_+1}, v{tc}, s{sGN}")
    def alpha2(W, A, cur):
        cosines(A, cur + 2, f"v_and_b32_sdwa v{lreg(cur)}, v{W}, s{sFFF8} dst_sel:DWORD dst_unused:UNUSED_PAD src0_sel:WORD_1 src1_sel:DWORD", 2 if NOX else 1)
    def orrt():
        a.e(f"v_or3_b32 v{vCK}, v{vCK}, v{RT}, v{RT+1}")
        a.e(f"v_or3_b32 v{vCK}, v{vCK}, v{RT+2}, v{RT+3}")
    def beta(cur, vm):
        G0, C_, L = cur, cur + 2, lreg(cur)
        M_, X = TB + 4, TB + 8
        a.e(f"s_waitcnt vmcnt({vm})")
        unpack(M_, G0)
        for l in range(2):
            for q in range(2):
                if NOX:
                    a.e(f"v_pk_fma_f32 {vr(X+4*l+2*q,2)}, {vr(M_+2*q,2)}, {vr(C_+2*l,2)}, s[{sMG}:{sMG+1}] op_sel_hi:[1,0,1]")
                else:
                    a.e(f"v_pk_fma_f32 {vr(X+4*l+2*q,2)}, {vr(M_+2*q,2)}, {vr(C_,2)}, s[{sMG}:{sMG+1}] op_sel:[0,{l},0] op_sel_hi:[1,{l},1]")
        for q in range(4):
            a.e(f"v_perm_b32 v{M_+q}, v{X+2*q+1}, v{X+2*q}, s{sSEL}")
        for l in range(2):
            a.e(f"v_lshl_add_u64 {vr(M_+2*l,2)}, {vr(M_+2*l,2)}, 0, s[{sNB}:{sNB+1}]")
        a.e(f"s_waitcnt lgkmcnt(0)")
        orrt()
        for l in range(2):
            a.e(f"ds_add_rtn_u64 {vr(RT+2*l,2)}, v{L}, {vr(M_+2*l,2)} offset:{ACC + l*STR2}")
    def cur(s): return CUR + RSTR * COL[s]
    def fdone(val):
        uid[0] += 1
        a.e(f"s_waitcnt lgkmcnt(0)")
        orrt()
        a.e(f"v_and_b32 v{vCK}, 0x80008000, v{vCK}")
        a.e(f"v_cmp_ne_u32 vcc, 0, v{vCK}")
        a.e(f"v_mov_b32 v{TB+4}, {val}")
        a.e(f"s_mov_b64 exec, vcc")
        a.e(f"ds_or_b32 v{vZERO}, v{vCK} offset:{K2_VI}")
        a.e("s_mov_b64 exec, 1")
        a.e(f"ds_write_b32 v{vFD}, v{TB+4} offset:{K2C_FD}")
        a.e("s_mov_b64 exec, -1")
    def step(s, cnt_of, stub=False, mid=None):
        p = (s - D) % NS
        alpha1(SW_ + s, cur(s))
        alpha2(SW_ + s, SA_ + s, cur(s))
        if mid: mid()
        uid[0] += 1
        a.e(f"s_cmp_le_u32 s{cnt_of(p)}, {p}")
        if stub:
            a.e(f"s_cbranch_scc1 K2_ST{uid[0]}")
            stubs.append(uid[0])
        else:
            a.e(f"s_cbranch_scc1 K2_SB{uid[0]}")
        u = uid[0]
        beta(cur(p), D)
        a.e(f"K2_SB{u}:")
    def readslot(s):
        uid[0] += 1
        a.e(f"s_cmp_le_u32 s{sCNT}, {s}")
        a.e(f"s_cbranch_scc1 K2_RD{uid[0]}")
        a.e(f"ds_read_b32 v{SW_+s}, v{vA4} offset:{256*s}")
        a.e(f"ds_read_u16_d16_hi v{SA_+s}, v{vA2} offset:{128*s}")
        a.e(f"s_branch K2_RE{uid[0]}")
        a.e(f"K2_RD{uid[0]}:")
        a.e(f"v_mov_b32 v{SW_+s}, {hex(DUMMY)}")
        a.e(f"K2_RE{uid[0]}:")
    a.e(f"v_mov_b32 v{vC4}, 4")
    signal(vC4, K2_FS)
    a.e(f"s_mov_b32 s{sTG}, 32")
    if cfg.get('k2_cprio', 0): a.e(f"s_setprio {cfg['k2_cprio']}")
    a.e("K2_CLOOP:")
    a.e(f"ds_read_b64 {vr(TB,2)}, v{vZERO} offset:{K2_FS}")
    a.e(f"s_mov_b32 s{sCNP}, s{sCNT}")
    a.e(f"s_add_u32 s{sTG}, s{sTG}, 32")
    step(NS - 2, lambda p: sCNP, stub=True)
    stamp(7)
    a.e("K2_CPOLL:")
    a.e(f"v_readfirstlane_b32 s{sT0}, v{TB}")
    a.e(f"v_readfirstlane_b32 s{sN}, v{TB+1}")
    a.e(f"s_cmp_lt_u32 s{sT0}, s{sTG}")
    a.e("s_cbranch_scc1 K2_CPOLL2")
    stamp(8)
    a.e(f"s_and_b32 s{sLAST}, s{sN}, 1")
    a.e(f"s_add_u32 s{sT0}, s{sN}, 252")
    a.e(f"s_lshr_b32 s{sT0}, s{sT0}, 8")
    a.e(f"s_mul_i32 s{sT1}, s{sT0}, s{sWAVE}")
    a.e(f"s_add_u32 s{sT0}, s{sT1}, s{sT0}")
    a.e(f"s_lshr_b32 s{sT1}, s{sT1}, 3")
    a.e(f"s_lshr_b32 s{sT0}, s{sT0}, 3")
    a.e(f"s_sub_u32 s{sCNT}, s{sT0}, s{sT1}")
    a.e(f"s_lshl_b32 s{sT1}, s{sT1}, 7")
    a.e(f"s_add_u32 s{sT0}, s{sT1}, {K2_SA}")
    a.e(f"s_lshl_b32 s{sT1}, s{sT1}, 1")
    a.e(f"s_add_u32 s{sT1}, s{sT1}, {K2_SW}")
    a.e(f"v_lshl_add_u32 v{vA4}, v{vLANE}, 2, s{sT1}")
    a.e(f"v_lshl_add_u32 v{vA2}, v{vLANE}, 1, s{sT0}")
    a.e(f"s_cmp_lt_u32 s{sCNT}, {NS-1}")
    a.e("s_cbranch_scc1 K2_RSLOW")
    for s in range(NS - 1):
        a.e(f"ds_read_b32 v{SW_+s}, v{vA4} offset:{256*s}")
        a.e(f"ds_read_u16_d16_hi v{SA_+s}, v{vA2} offset:{128*s}")
    a.e("K2_RDONE:")
    step(NS - 1, lambda p: sCNP, stub=True)
    readslot(NS - 1)
    a.e(f"s_cmp_gt_u32 s{sCNT}, {NS}")
    a.e("s_cbranch_scc1 K2_EXTRA")
    a.e("K2_NOEXTRA:")
    signal(vC4, K2_FR)
    assert D < NS - LATE
    for s in range(NS - LATE):
        if TRACE and s in cfg.get('trace_steps', [0, 4, 8]): stamp(9)
        step(s, lambda p: sCNP if p >= NS - D else sCNT, mid=(lambda: fdone(f"s{sTG}")) if s == D else None)
    a.e(f"s_cmp_eq_u32 s{sLAST}, 0")
    a.e("s_cbranch_scc1 K2_CLOOP")
    step(NS - 2, lambda p: sCNT)
    step(NS - 1, lambda p: sCNT)
    for i in range(D):
        p = NS - D + i
        uid[0] += 1
        u = uid[0]
        a.e(f"s_cmp_le_u32 s{sCNT}, {p}")
        a.e(f"s_cbranch_scc1 K2_SB{u}")
        beta(cur(p), D - 1 - i)
        a.e(f"K2_SB{u}:")
    fdone("0x7fffffff")
    stamp(10)
    a.e("s_waitcnt lgkmcnt(0)")
    a.e("s_barrier")
    if cfg.get('x_dump'):
        a.e(f"s_mul_i32 s{sT0}, s{sB}, {13*8192}")
        a.e(f"s_add_u32 s{sT0}, s{sT0}, 0x6000000")
        a.e(f"v_lshlrev_b32 v{TB+8}, 4, v{vCT}")
        for k in range(13):
            a.e(f"ds_read_b128 {vr(TB+4,4)}, v{TB+8}")
            a.e("s_waitcnt lgkmcnt(0)")
            a.e(f"buffer_store_dwordx4 {vr(TB+4,4)}, v{TB+8}, s[{S_WS}:{S_WS+3}], s{sT0} offen")
            a.e("s_waitcnt vmcnt(0)")
            a.e(f"v_add_u32 v{TB+8}, 8192, v{TB+8}")
    a.e("s_barrier")
    a.e(f"ds_read_b32 v{vCK}, v{vZERO} offset:{K2_VI}")
    a.e("s_waitcnt vmcnt(0) lgkmcnt(0)")
    a.e(f"v_cmp_ne_u32 vcc, 0, v{vCK}")
    a.e("s_cbranch_vccz K2_FIN")
    RR, QL, vI, vE, vTL, PW, CC2, GM = 6, 32, 22, 23, 24, 26, 30, 40
    a.e(f"s_and_b32 s{sT0}, s{sB}, 127")
    a.e(f"s_lshl_b32 s{sT0}, s{sT0}, 4")
    a.e(f"v_mul_u32_u24 v{vI}, {REC_STR}, v{vCT}")
    a.e(f"v_add_u32 v{vI}, s{sT0}, v{vI}")
    a.e(f"s_mov_b32 s{sT0}, {REC_OFF}")
    for q in range(4):
        a.e(f"buffer_load_dwordx4 {vr(QL+4*q,4)}, v{vI}, s[{S_WS}:{S_WS+3}], s{sT0} offen offset:{(q>>1)*2048 + (q&1)*16}")
    for k in range(4):
        a.e(f"v_mov_b32 v{TB+4+k}, 0")
    a.e(f"v_lshlrev_b32 v{TB+8}, 4, v{vCT}")
    fill(True)
    a.e(f"s_mov_b32 s{sT0}, {cfg.get('tile_s', TILE_B)}")
    a.e(f"v_mul_lo_u32 v{vTL}, v{vCT}, s{sT0}")
    a.e(f"s_mov_b32 s{sT1}, 0x07060302")
    a.e(f"v_mov_b32 v{vI}, 0")
    a.e("s_waitcnt vmcnt(0)")
    for k in range(16):
        b_ = QL + 8 * (k >> 3) + ((k & 7) >> 1)
        a.e(f"v_perm_b32 v{RR+k}, v{b_+4}, v{b_}, s{sT1 if k & 1 else sSEL}")
        a.e(f"v_sub_u32_sdwa v{vE}, v{RR+k}, v{RR+k} dst_sel:DWORD dst_unused:UNUSED_PAD src0_sel:WORD_1 src1_sel:WORD_0")
        a.e(f"v_add_u32 v{vI}, v{vI}, v{vE}")
    a.e(f"ds_add_u32 v{vZERO}, v{vI} offset:{K2_NB}")
    a.e("s_waitcnt lgkmcnt(0)")
    a.e("s_barrier")
    a.e(f"ds_read_b32 v{t}, v{vZERO} offset:{K2_NB}")
    a.e(f"s_lshr_b32 s{sT1}, s{sB}, 7")
    a.e(f"s_mul_i32 s{sT1}, s{sT1}, {EPB}")
    a.e(f"s_sub_u32 s{sLAST}, {EPB}, s{sT1}")
    a.e(f"s_mov_b32 s{sJ}, 0")
    a.e("s_waitcnt lgkmcnt(0)")
    a.e(f"v_cvt_f32_u32 v{t}, v{t}")
    a.e(f"v_mul_f32 v{t}, s{sMX}, v{t}")
    a.e(f"v_rcp_f32 v{t}, v{t}")
    a.e(f"v_mul_f32 v{t}, 0x4efc0000, v{t}")
    setscale(t)
    a.e("K2_SJ:")
    a.e(f"s_lshr_b32 s{sT1}, s{sJ}, 3")
    mdsrd(f"s{sT1}")
    a.e(f"v_and_b32 v{vI}, 0xffff, v{RR}")
    a.e(f"v_lshrrev_b32 v{vE}, 16, v{RR}")
    for k in range(15):
        a.e(f"v_mov_b32 v{RR+k}, v{RR+k+1}")
    a.e("K2_SI:")
    a.e(f"v_cmp_lt_u32 vcc, v{vI}, v{vE}")
    a.e("s_cbranch_vccz K2_SN")
    a.e(f"s_mov_b64 exec, vcc")
    a.e(f"v_lshrrev_b32 v{GM}, 1, v{vI}")
    a.e(f"v_mad_u32_u24 v{GM}, v{GM}, 12, v{vTL}")
    a.e(f"buffer_load_dwordx3 {vr(PW,3)}, v{GM}, s[{S_WS}:{S_WS+3}], 0 offen")
    a.e(f"v_and_b32 v{GM}, 1, v{vI}")
    a.e(f"v_cmp_eq_u32 vcc, 1, v{GM}")
    a.e(f"v_add_u32 v{vI}, 1, v{vI}")
    a.e("s_waitcnt vmcnt(0)")
    a.e(f"v_cndmask_b32 v{PW}, v{PW}, v{PW+2}, vcc")
    a.e(f"v_lshlrev_b32 v{PW+2}, 16, v{PW+1}")
    a.e(f"v_and_b32 v{PW+1}, s{sHI}, v{PW+1}")
    a.e(f"v_cndmask_b32 v{PW+1}, v{PW+2}, v{PW+1}, vcc")
    a.e(f"v_and_b32 v{GM+2}, {hex(IDXM)}, v{PW}")
    a.e(f"buffer_load_dwordx2 {vr(GM,2)}, v{GM+2}, s[{S_MD}:{S_MD+3}], 0 idxen")
    cosines(PW + 1, CC2, None, 2)
    a.e(f"v_lshrrev_b32 v{PW}, 19, v{PW}")
    a.e(f"v_subrev_u32 v{PW}, s{sLAST}, v{PW}")
    a.e(f"v_cmp_gt_u32 vcc, {EPB}, v{PW}")
    a.e(f"v_lshlrev_b32 v{PW}, 2, v{PW}")
    a.e(f"v_add_u32 v{PW+1}, {STR2}, v{PW}")
    a.e("s_waitcnt vmcnt(0)")
    unpack(TB + 4, GM)
    for l in range(2):
        for q in range(2):
            a.e(f"v_pk_mul_f32 {vr(TB+8+4*l+2*q,2)}, {vr(TB+4+2*q,2)}, {vr(CC2+2*l,2)} op_sel_hi:[1,0]")
    for q in range(8):
        a.e(f"v_cvt_rpi_i32_f32 v{TB+8+q}, v{TB+8+q}")
    a.e(f"s_mov_b64 exec, vcc")
    for q in range(8):
        a.e(f"ds_add_u32 v{PW+(q>>2)}, v{TB+8+q} offset:{ACC + (q&3)*ACC_STR}")
    a.e(f"s_mov_b64 exec, -1")
    a.e("s_branch K2_SI")
    a.e("K2_SN:")
    a.e(f"s_add_u32 s{sJ}, s{sJ}, 1")
    a.e(f"s_cmp_lt_u32 s{sJ}, 16")
    a.e("s_cbranch_scc1 K2_SJ")
    a.e("s_waitcnt lgkmcnt(0)")
    a.e("s_barrier")
    a.e("s_branch K2_FIN")

    for u in stubs:
        a.e(f"K2_ST{u}:")
        a.e("s_waitcnt lgkmcnt(0)")
        a.e(f"s_branch K2_SB{u}")
    a.e("K2_CPOLL2:")
    if cfg.get('k2_cslp', 0): a.e(f"s_sleep {cfg['k2_cslp']}")
    a.e(f"ds_read_b64 {vr(TB,2)}, v{vZERO} offset:{K2_FS}")
    a.e("s_waitcnt lgkmcnt(0)")
    a.e("s_branch K2_CPOLL")
    a.e("K2_RSLOW:")
    for s in range(NS - 1):
        readslot(s)
    a.e("s_branch K2_RDONE")
    a.e("K2_EXTRA:")
    XW, XC = TB, cur(0)
    for s in range(NS, 16):
        if s > NS:
            a.e(f"s_cmp_le_u32 s{sCNT}, {s}")
            a.e("s_cbranch_scc1 K2_NOEXTRA")
        a.e(f"v_mov_b32 v{XW+1}, 0")
        a.e(f"ds_read_b32 v{XW}, v{vA4} offset:{256*s}")
        a.e(f"ds_read_u16_d16_hi v{XW+1}, v{vA2} offset:{128*s}")
        a.e("s_waitcnt lgkmcnt(0)")
        alpha1(XW, XC)
        alpha2(XW, XW + 1, XC)
        beta(XC, 0)
    a.e("s_branch K2_NOEXTRA")

    a.e("K2_FIN:")
    if TRACE:
        a.e("s_waitcnt vmcnt(0)")
        stamp(10)
        a.e(f"s_cmp_lg_u32 s2, {cfg.get('trace_wg', 77)}")
        a.e("s_cbranch_scc1 K2_END")
        a.e(f"s_load_dwordx2 s[{S_X}:{S_X+1}], s[0:1], 96")
        a.e(f"s_mov_b32 s{S_X+2}, 4096")
        a.e(f"s_mov_b32 s{S_X+3}, 0x00020000")
        a.e("s_waitcnt lgkmcnt(0)")
        a.e(f"v_lshlrev_b32 v1, 2, v0")
        a.e(f"buffer_store_dword v{vTR}, v1, s[{S_X}:{S_X+3}], 0 offen")
    if cfg.get('rt'): rt_end(a, 1, S_X)
    a.e("K2_END:")
    a.e("s_endpgm")
    return fix_hazards(a.lines)
```

```python
from asmlib import *
from consts import *
from k1 import dpp_scan, rt_end
import math, struct

NS = 13
DUMMY = (2 * EPB << 19) | 0x7FFFF
IDXM = 0x7FFFF
K2_BIG = 1024
K2_BASE = 1152
K2_NB = 2176
K2_SCR = 152576
LDS_BYTES = K2_SCR + 8192
XB_STR = 7 * 8192
K2_GI = K2_NB + 8
K2_VI = K2_NB + 12
K2_FS = K2_NB + 32
K2_NCELL = K2_FS + 4
K2_FH = K2_FS + 8
K2_DN = K2_FS + 12
K2_FP = K2_FS + 16
K2_FR = K2_FS + 20
ACC = 2304
STR2 = 2 * ACC2_STR
def f2h(x): return hex(struct.unpack('<I', struct.pack('<f', x))[0])
def h2f(x): return struct.unpack('<f', struct.pack('<I', x))[0]
KAP = math.sqrt(10.0 * math.log2(math.e))

def gen_k2(cfg):
    a = Asm()
    D = cfg.get('k2_d', 5)
    LATE = 2
    PPRIO = cfg.get('k2_pprio', 3)
    S_WS, S_MD, S_X, S_Y = 4, 8, 12, 16
    sWAVE, sB, sJ, sWIN, sTOT, sN, sCNT, sT0, sT1, sT2, sFFF8, sHI, sCNP, sOOB = range(20, 34)
    sM = 34
    sDN = 36
    sTG = 37
    sT7 = 38
    sMODE = 39
    puid = [0]
    def poll(vt, off, tgt, slp=None):
        puid[0] += 1
        SLP = cfg.get('k2_slp', 0) if slp is None else slp
        if SLP:
            a.e(f"s_branch K2_PM{puid[0]}")
        a.e(f"K2_PL{puid[0]}:")
        if SLP:
            a.e(f"s_sleep {SLP}")
            a.e(f"K2_PM{puid[0]}:")
        a.e(f"ds_read_b32 v{vt}, v{vZERO} offset:{off}")
        a.e("s_waitcnt lgkmcnt(0)")
        a.e(f"v_readfirstlane_b32 s{sT0}, v{vt}")
        a.e(f"s_cmp_lt_u32 s{sT0}, {tgt}")
        a.e(f"s_cbranch_scc1 K2_PL{puid[0]}")
    def signal(vone, off):
        a.e("s_mov_b64 exec, 1")
        a.e(f"ds_add_u32 v{vZERO}, v{vone} offset:{off}")
        a.e("s_mov_b64 exec, -1")
    MSK = 40
    sPT, sPA = 88, 91
    TRACE = cfg.get('trace', False)
    vTR = 127
    def stamp(i):
        if TRACE:
            if i < 0:
                a.e(f"s_mov_b32 s{sPA}, 0")
                a.e(f"v_mov_b32 v{vTR}, 0")
                i = 15
            a.e(f"s_memtime s[{sPT}:{sPT+1}]")
            a.e("s_waitcnt lgkmcnt(0)")
            a.e(f"s_andn2_b32 s{sPT}, s{sPT}, 15")
            a.e(f"s_or_b32 s{sPT}, s{sPT}, {i}")
            a.e(f"s_mov_b32 m0, s{sPA}")
            a.e(f"s_add_u32 s{sPA}, s{sPA}, 1")
            a.e(f"s_min_u32 s{sPA}, s{sPA}, 63")
            a.e(f"v_writelane_b32 v{vTR}, s{sPT}, m0")
    vLANE, vZERO = 1, 2
    T_ = 100

    a.e(f"s_cmp_ge_u32 s2, {NWG}")
    a.e("s_cbranch_scc1 K2_END")
    if cfg.get('rt'): a.e("s_memrealtime s[96:97]")
    stamp(-1)
    a.e(f"s_load_dwordx2 s[{S_WS}:{S_WS+1}], s[0:1], 104")
    a.e(f"s_mov_b32 s{S_WS+2}, {WS_BYTES}")
    a.e(f"s_mov_b32 s{S_WS+3}, 0x00020000")
    a.e(f"v_lshrrev_b32 v{T_}, 6, v0")
    a.e(f"v_and_b32 v{vLANE}, 63, v0")
    a.e(f"v_readfirstlane_b32 s{sWAVE}, v{T_}")
    a.e(f"s_and_b32 s{sB}, s2, 7")
    a.e(f"s_lshl_b32 s{sB}, s{sB}, 5")
    a.e(f"s_lshr_b32 s{sT0}, s2, 3")
    a.e(f"s_or_b32 s{sB}, s{sB}, s{sT0}")
    a.e(f"s_mov_b32 s{sHI}, 0xffff0000")
    a.e(f"s_mov_b32 s{sOOB}, 0x80000000")
    a.e(f"v_mov_b32 v{vZERO}, 0")
    a.e(f"s_cmp_ge_u32 s{sWAVE}, 8")
    a.e("s_cbranch_scc1 K2_CONS")

    vL12, vL12b, vTB, vSCR, vFOUR, vL16 = range(4, 10)
    R = 10
    FLG, OLD = 20, 24
    def P(b, c): return 28 + 32 * b + 4 * c
    def KA(i): return 31 + 4 * i
    U = 92
    T_ = 108
    vPL = 124
    sSB, sM80 = 40, 41
    SK7 = cfg.get('k2_sk7', True)
    if PPRIO: a.e(f"s_setprio {PPRIO}")
    RL = 28
    a.e(f"s_lshl_b32 s{sT0}, s{sB}, 4")
    a.e(f"v_mul_u32_u24 v{T_+1}, {REC_STR}, v0")
    a.e(f"v_add_u32 v{T_+1}, s{sT0}, v{T_+1}")
    a.e(f"s_mov_b32 s{sT0}, {REC_OFF}")
    a.e("s_waitcnt lgkmcnt(0)")
    a.e(f"buffer_load_dwordx4 {vr(RL,4)}, v{T_+1}, s[{S_WS}:{S_WS+3}], s{sT0} offen")
    a.e(f"buffer_load_dwordx4 {vr(RL+4,4)}, v{T_+1}, s[{S_WS}:{S_WS+3}], s{sT0} offen offset:16")
    a.e(f"s_mov_b32 s{sT0}, {cfg.get('tile_s', TILE_B)}")
    a.e(f"v_mul_lo_u32 v{vTB}, v0, s{sT0}")
    a.e(f"v_mov_b32 v{vZERO+1}, 0")
    a.e(f"v_lshlrev_b32 v{vSCR}, 4, v0")
    a.e(f"v_add_u32 v{vSCR}, {K2_SCR}, v{vSCR}")
    a.e(f"ds_write_b64 v{vSCR}, {vr(vZERO,2)}")
    a.e(f"ds_write_b64 v{vSCR}, {vr(vZERO,2)} offset:8")
    a.e(f"v_mul_u32_u24 v{vL12}, 12, v{vLANE}")
    a.e(f"v_add_u32 v{vL12b}, {768*4}, v{vL12}")
    a.e(f"v_lshlrev_b32 v{vL16}, 4, v{vLANE}")
    a.e(f"v_mov_b32 v{vFOUR}, 4")
    a.e(f"v_and_b32 v{T_+2}, 31, v{vLANE}")
    a.e(f"v_lshlrev_b32 v{T_+2}, 2, v{T_+2}")
    a.e(f"v_mov_b32 v{T_+3}, s{sOOB}")
    a.e(f"s_mov_b32 s{sTG}, 0")
    a.e(f"s_mov_b32 s{sMODE}, 0")
    a.e(f"s_mov_b32 s{sJ}, 8")
    a.e(f"s_lshl_b32 s{sSB}, s{sWAVE}, 6")
    a.e(f"s_add_u32 s{sSB}, s{sSB}, {K2_SCR // 16}")
    a.e(f"s_mov_b32 s{sM80}, 0x80808080")
    a.e(f"s_mov_b32 s{sT0}, 0x05040100")
    a.e(f"s_mov_b32 s{sT1}, 0x07060302")
    a.e("s_barrier")
    a.e(f"ds_write_b32 v{T_+2}, v{T_+3} offset:{K2_BIG}")
    a.e("s_waitcnt vmcnt(0)")
    for k in range(8):
        a.e(f"v_perm_b32 v{R+k}, v{RL+4+(k>>1)}, v{RL+(k>>1)}, s{sT1 if k & 1 else sT0}")
    a.e(f"v_mov_b32 v{T_}, 0x10001")
    for k in range(8):
        a.e(f"v_cmp_ne_u32_sdwa s[{42+2*k}:{43+2*k}], v{R+k}, v{R+k} src0_sel:WORD_0 src1_sel:WORD_1")
    for k in range(8):
        a.e(f"v_cndmask_b32 v{R+k}, v{T_}, v{R+k}, s[{42+2*k}:{43+2*k}]")
    stamp(0)
    DP = [f"row_shr:{sh} row_mask:0xf bank_mask:0xf bound_ctrl:0" for sh in (1, 2, 4, 8)] + \
         ["row_bcast:15 row_mask:0xa bank_mask:0xf", "row_bcast:31 row_mask:0xc bank_mask:0xf"]
    outl = []
    def F(b, FL, tag, chk=True):
        p0, e_, n_, inc, S_, V_, x_, y_, el, a1, a2 = range(T_, T_ + 11)
        C0, CN = T_ + 12, T_ + 14
        if chk:
            a.e(f"s_cmp_eq_u32 s{sJ}, 0")
            a.e(f"s_cbranch_scc1 K2_FN{tag}")
        a.e(f"v_lshrrev_b32 v{e_}, 16, v{R}")
        a.e(f"v_lshrrev_b32_sdwa v{p0}, 1, v{R} dst_sel:DWORD dst_unused:UNUSED_PAD src0_sel:DWORD src1_sel:WORD_0")
        a.e(f"v_add_u32 v{n_}, 1, v{e_}")
        a.e(f"v_lshrrev_b32 v{n_}, 1, v{n_}")
        a.e(f"v_sub_u32 v{n_}, v{n_}, v{p0}")
        a.e(f"v_lshlrev_b32 v{x_}, 7, v{R}")
        a.e(f"v_lshl_or_b32 v{y_}, v{e_}, 7, 2")
        fl = [f"v_mov_b32 v{a1}, v{R}"] + [f"v_mov_b32 v{R+k}, v{R+k+1}" for k in range(7)] + [f"s_sub_u32 s{sJ}, s{sJ}, 1", "s_nop 0"]
        for i, d_ in enumerate(DP):
            a.e(f"v_add_u32_dpp v{inc}, v{inc if i else n_}, v{inc if i else n_} {d_}")
            if i < 5:
                a.e(fl.pop(0)); a.e(fl.pop(0))
        a.e(f"v_sub_u32 v{S_}, v{inc}, v{n_}")
        a.e(f"v_readlane_b32 s{sTOT}, v{inc}, 63")
        a.e(f"v_add_u32 v{el}, -1, v{inc}")
        if cfg.get('x_al'):
            a.e(f"v_mul_u32_u24 v{V_}, 3, v{p0}")
            a.e(f"v_and_b32 v{V_}, 0xffe0, v{V_}")
            a.e(f"v_add_u32 v{V_}, 2, v{V_}")
            a.e(f"v_mul_u32_u24 v{V_}, 21846, v{V_}")
            a.e(f"v_lshrrev_b32 v{V_}, 16, v{V_}")
            a.e(f"v_sub_u32 v{V_}, v{V_}, v{S_}")
        else:
            a.e(f"v_sub_u32 v{V_}, v{p0}, v{S_}")
        a.e(f"v_mad_i32_i24 v{V_}, v{V_}, 12, v{vTB}")
        a.e(f"s_cmp_gt_u32 s{sTOT}, 512")
        a.e(f"s_cbranch_scc1 K2_FR{tag}")
        a.e(f"K2_FB{tag}:")
        a.e(f"v_and_or_b32 v{a1}, v{S_}, 63, s{sSB}")
        a.e(f"v_lshrrev_b32 v{S_}, 6, v{S_}")
        a.e(f"v_and_or_b32 v{a2}, v{el}, 63, s{sSB}")
        a.e(f"v_lshrrev_b32 v{el}, 6, v{el}")
        a.e(f"v_lshl_add_u32 v{a2}, v{a2}, 4, v{el}")
        a.e(f"v_lshl_add_u32 v{a1}, v{a1}, 4, v{S_}")
        a.e(f"ds_write_b8 v{a2}, v{y_} offset:8")
        a.e(f"ds_write_b8 v{a1}, v{x_}")
        a.e(f"s_mov_b64 exec, -1")
        a.e(f"ds_wrxchg_rtn_b64 {vr(FL+2,2)}, v{vSCR}, {vr(vZERO,2)} offset:8")
        a.e(f"ds_wrxchg_rtn_b64 {vr(FL,2)}, v{vSCR}, {vr(vZERO,2)}")
        a.e("s_waitcnt lgkmcnt(1)")
        for h in range(2):
            a.e(f"v_and_b32 v{C0+h}, 0x02020202, v{FL+2+h}")
        fl = [f"v_xor_b32 v{FL+2+h}, v{FL+2+h}, v{C0+h}" for h in range(2)]
        a.e(fl.pop(0))
        for i, d_ in enumerate(DP):
            for h in range(2):
                a.e(f"v_add_u32_dpp v{CN+h}, v{(CN if i else C0)+h}, v{(CN if i else C0)+h} {d_}")
            if fl: a.e(fl.pop(0))
        a.e(f"v_readlane_b32 s{sT0}, v{CN}, 63")
        a.e(f"v_readlane_b32 s{sT1}, v{CN+1}, 63")
        for h in range(2):
            a.e(f"v_sub_u32 v{CN+h}, v{CN+h}, v{C0+h}")
        a.e(f"s_mul_i32 s{sM}, s{sT0}, 0x01010101")
        a.e(f"s_lshl_b32 s{sT0}, s{sM}, 8")
        a.e(f"s_lshr_b32 s{sM}, s{sM}, 24")
        a.e(f"v_add_u32 v{CN}, s{sT0}, v{CN}")
        a.e(f"s_lshl_b32 s{sT1}, s{sT1}, 8")
        a.e(f"s_add_u32 s{sT1}, s{sT1}, s{sM}")
        a.e(f"s_mul_i32 s{sT1}, s{sT1}, 0x01010101")
        def bp(c):
            a.e(f"v_lshlrev_b32_sdwa v{P(b,c)}, 1, v{CN+(c>>2)} dst_sel:DWORD dst_unused:UNUSED_PAD src0_sel:DWORD src1_sel:BYTE_{c&3}")
            a.e(f"ds_bpermute_b32 v{P(b,c)}, v{P(b,c)}, v{V_}")
        def ld(c):
            a.e(f"v_add_u32 v{P(b,c)}, v{P(b,c)}, v{vL12 if c < 4 else vL12b}")
            a.e(f"buffer_load_dwordx3 {vr(P(b,c),3)}, v{P(b,c)}, s[{S_WS}:{S_WS+3}], 0 offen offset:{768*(c&3)}")
        for c in range(4): bp(c)
        a.e(f"v_add_u32 v{CN+1}, s{sT1}, v{CN+1}")
        NC = 7 if SK7 else 8
        for c in range(4, NC): bp(c)
        for h in range(2):
            a.e(f"v_and_or_b32 v{FL+2+h}, v{CN+h}, s{sM80}, v{FL+2+h}")
        for c in range(NC):
            if c % 2 == 0: a.e(f"s_waitcnt lgkmcnt({max(NC-2-c, 0)})")
            if c == 0:
                for h in range(2):
                    a.e(f"v_and_or_b32 v{FL+h}, v{CN+h}, s{sM80}, v{FL+h}")
            ld(c)
        if SK7:
            a.e(f"s_cmp_gt_u32 s{sTOT}, 448")
            a.e(f"s_cbranch_scc1 K2_F7{tag}")
        a.e(f"K2_FE{tag}:")
        def rare():
            if SK7:
                a.e(f"K2_F7{tag}:")
                bp(7)
                a.e("s_waitcnt lgkmcnt(0)")
                ld(7)
                a.e(f"s_branch K2_FE{tag}")
            if chk:
                a.e(f"K2_FN{tag}:")
                for k in range(4):
                    a.e(f"v_mov_b32 v{FL+k}, s{sM80}")
                a.e(f"s_mov_b32 s{sTOT}, 0")
                a.e(f"s_branch K2_FE{tag}")
            a.e(f"K2_FR{tag}:")
            for k in range(7, 0, -1):
                a.e(f"v_mov_b32 v{R+k}, v{R+k-1}")
            a.e(f"s_add_u32 s{sJ}, s{sJ}, 1")
            a.e(f"v_sub_u32 v{a2}, v{p0}, v{S_}")
            a.e(f"v_add_u32 v{a2}, 512, v{a2}")
            a.e(f"v_lshlrev_b32 v{a2}, 1, v{a2}")
            a.e(f"v_and_or_b32 v{a2}, v{a1}, s{sHI}, v{a2}")
            a.e(f"v_cmp_lt_u32 vcc, 512, v{inc}")
            a.e(f"v_mov_b32 v{n_}, 0x10001")
            a.e(f"v_cndmask_b32 v{a2}, v{n_}, v{a2}, vcc")
            a.e(f"v_cndmask_b32 v{y_}, v{y_}, 2, vcc")
            a.e(f"v_min_u32 v{el}, 511, v{el}")
            a.e(f"v_cmp_gt_u32 vcc, 512, v{S_}")
            a.e(f"v_cndmask_b32 v{R}, v{a1}, v{a2}, vcc")
            a.e(f"s_mov_b64 exec, vcc")
            a.e(f"s_branch K2_FB{tag}")
        outl.append(rare)

    def H(b, FL, tag, first=False, vm=0):
        if not first:
            a.e(f"ds_read_b32 v{vPL}, v{vZERO} offset:{K2_FP}")
            a.e(f"s_mov_b32 s{sT7}, s{sTOT}")
            a.e(f"s_cmp_eq_u32 s{sJ}, 0")
            a.e(f"s_cselect_b32 s{sT1}, 1, 0")
            a.e(f"s_lshl_b32 s{sT1}, s{sT1}, s{sWAVE}")
        a.e(f"s_waitcnt vmcnt({vm})")
        def key(c):
            for h in range(2):
                a.e(f"v_lshlrev_b32_sdwa v{KA(2*c+h)}, 2, v{P(b,c)+2*h} dst_sel:DWORD dst_unused:UNUSED_PAD src0_sel:DWORD src1_sel:BYTE_1")
            for h in range(2):
                a.e(f"v_or_b32_sdwa v{KA(2*c+h)}, v{KA(2*c+h)}, sext(v{FL+2*h+(c>>2)}) dst_sel:DWORD dst_unused:UNUSED_PAD src0_sel:DWORD src1_sel:BYTE_{c&3}")
        def at(c):
            for h in range(2):
                a.e(f"ds_add_rtn_u32 v{U+2*c+h}, v{KA(2*c+h)}, v{vFOUR}")
        NC = 7 if SK7 else 8
        PRE = 0 if first else cfg.get('k2_pre', 3)
        for c in range(PRE): key(c)
        if not first:
            a.e(f"K2_HP{tag}:")
            a.e("s_waitcnt lgkmcnt(0)")
            a.e(f"v_readfirstlane_b32 s{sT0}, v{vPL}")
            a.e(f"s_cmp_lt_u32 s{sT0}, s{sTG}")
            a.e(f"s_cbranch_scc1 K2_HQ{tag}")
            a.e(f"v_mov_b32 v{vPL}, s{sT1}")
        for c in range(PRE): at(c)
        for c in range(PRE, NC):
            key(c); at(c)
        a.e(f"s_add_u32 s{sTG}, s{sTG}, 32")
        if SK7:
            a.e(f"s_cmp_gt_u32 s{sT7}, 448")
            a.e(f"s_cbranch_scc1 K2_H7{tag}")
            a.e(f"K2_HE{tag}:")
        a.e("s_mov_b64 exec, 1")
        if not first: a.e(f"ds_or_b32 v{vZERO}, v{vPL} offset:{K2_DN}")
        a.e(f"ds_add_u32 v{vZERO}, v{vFOUR} offset:{K2_FH}")
        a.e("s_mov_b64 exec, -1")
        def rare():
            if not first:
                a.e(f"K2_HQ{tag}:")
                a.e(f"ds_read_b32 v{vPL}, v{vZERO} offset:{K2_FP}")
                a.e(f"s_branch K2_HP{tag}")
            if SK7:
                a.e(f"K2_H7{tag}:")
                key(7); at(7)
                a.e(f"s_branch K2_HE{tag}")
        outl.append(rare)

    def S(b, tag, first=False):
        NW, CC, TT, BS = T_, T_ + 4, T_ + 8, T_ + 12
        a.e(f"K2_SP{tag}:")
        a.e(f"ds_read_b64 {vr(vPL,2)}, v{vZERO} offset:{K2_FH}")
        a.e(f"ds_read_b128 {vr(NW,4)}, v{vL16}")
        a.e("s_waitcnt lgkmcnt(1)")
        a.e(f"v_readfirstlane_b32 s{sT0}, v{vPL}")
        a.e(f"s_cmp_lt_u32 s{sT0}, s{sTG}")
        a.e(f"s_cbranch_scc1 K2_SP{tag}")
        stamp(3)
        if 'k2_sprio' in cfg and cfg.get('k2_sprio_at', 0) == 0 and not first: a.e(f"s_setprio {cfg['k2_sprio']}")
        signal(vFOUR, K2_FP)
        a.e(f"v_readfirstlane_b32 s{sDN}, v{vPL+1}")
        a.e("s_waitcnt lgkmcnt(1)")
        for k in range(4):
            a.e(f"v_sub_u32 v{CC+k}, v{NW+k}, v{OLD+k}")
        a.e(f"v_add_u32 v{TT}, v{CC}, v{CC+1}")
        a.e(f"v_add3_u32 v{TT}, v{TT}, v{CC+2}, v{CC+3}")
        fl = [f"v_sub_u32 v{TT+1}, {K2_SW}, v{TT}"]
        for k in range(4):
            fl.append(f"v_sub_u32 v{BS+k}, v{TT+1}, v{OLD+k}")
            if k < 3: fl.append(f"v_add_u32 v{TT+1}, v{TT+1}, v{CC+k}")
            fl.append(f"v_mov_b32 v{OLD+k}, v{NW+k}")
        for d_ in DP:
            a.e(fl.pop(0)); a.e(fl.pop(0))
            a.e(f"v_add_u32_dpp v{TT}, v{TT}, v{TT} {d_}")
        assert not fl
        for k in range(4):
            a.e(f"v_add_u32 v{BS+k}, v{BS+k}, v{TT}")
        a.e(f"ds_write_b128 v{vL16}, {vr(BS,4)} offset:{K2_BASE}")
        a.e(f"v_readlane_b32 s{sN}, v{TT}, 63")
        NI = 14 if SK7 else 16
        for i in range(NI):
            a.e(f"ds_read_b32 v{KA(i)}, v{KA(i)} offset:{K2_BASE}")
        def ad(i):
            a.e(f"v_add_u32 v{U+i}, v{U+i}, v{KA(i)}")
            a.e(f"v_lshrrev_b32 v{KA(i)}, 1, v{U+i}")
        def wr(i):
            c, h = i >> 1, i & 1
            a.e(f"ds_write_b32 v{U+i}, v{P(b,c)+2*h}")
            if not cfg.get('x_nosa'): a.e(f"ds_write_b16{'_d16_hi' if h else ''} v{KA(i)}, v{P(b,c)+1} offset:{K2_SA - K2_SW//2}")
        stamp(4)
        if first:
            a.e("s_waitcnt lgkmcnt(0)")
        else:
            a.e(f"s_sub_u32 s{sT1}, s{sTG}, 32")
            a.e(f"ds_read_b32 v{vPL}, v{vZERO} offset:{K2_FR}")
            a.e(f"s_waitcnt lgkmcnt({NI - 7})")
            for i in range(8): ad(i)
            a.e(f"K2_SR{tag}:")
            a.e("s_waitcnt lgkmcnt(0)")
            a.e(f"v_readfirstlane_b32 s{sT0}, v{vPL}")
            a.e(f"s_cmp_lt_u32 s{sT0}, s{sT1}")
            a.e(f"s_cbranch_scc1 K2_SQ{tag}")
        stamp(5)
        if 'k2_sprio' in cfg and cfg.get('k2_sprio_at', 0) == 1: a.e(f"s_setprio {cfg['k2_sprio']}")
        for i in range(NI):
            if first or i >= 8: ad(i)
            wr(i)
        if SK7:
            a.e(f"s_cmp_gt_u32 s{sT7}, 448")
            a.e(f"s_cbranch_scc1 K2_S7{tag}")
            a.e(f"K2_SE{tag}:")
        a.e(f"s_cmp_eq_u32 s{sWAVE}, 0")
        a.e(f"s_cbranch_scc1 K2_PAD{tag}")
        a.e(f"K2_NOPAD{tag}:")
        signal(vFOUR, K2_FS)
        stamp(4)
        if 'k2_sprio' in cfg: a.e(f"s_setprio {PPRIO}")
        def rare():
            if not first:
                a.e(f"K2_SQ{tag}:")
                if cfg.get('k2_slp', 0): a.e(f"s_sleep {cfg['k2_slp']}")
                a.e(f"ds_read_b32 v{vPL}, v{vZERO} offset:{K2_FR}")
                a.e(f"s_branch K2_SR{tag}")
            if SK7:
                a.e(f"K2_S7{tag}:")
                for i in (14, 15):
                    a.e(f"ds_read_b32 v{KA(i)}, v{KA(i)} offset:{K2_BASE}")
                a.e("s_waitcnt lgkmcnt(0)")
                for i in (14, 15):
                    ad(i); wr(i)
                a.e(f"s_branch K2_SE{tag}")
            a.e(f"K2_PAD{tag}:")
            a.e(f"s_add_u32 s{sT0}, s{sN}, {K2_SW}")
            a.e(f"v_lshl_add_u32 v{TT}, v{vLANE}, 2, s{sT0}")
            a.e(f"v_mov_b32 v{TT+1}, {hex(DUMMY)}")
            a.e(f"ds_write_b32 v{TT}, v{TT+1}")
            a.e(f"v_lshrrev_b32 v{TT}, 1, v{TT}")
            a.e(f"v_cmp_gt_u32 vcc, {K2_SW//2 + 16384}, v{TT}")
            a.e(f"s_cmp_eq_u32 s{sDN}, 0xff")
            a.e(f"s_addc_u32 s{sT0}, s{sN}, 0")
            a.e(f"v_mov_b32 v{TT+3}, s{sT0}")
            a.e(f"ds_write_b32 v{vZERO}, v{TT+3} offset:{K2_NCELL}")
            a.e(f"s_mov_b64 exec, vcc")
            a.e(f"ds_write_b16 v{TT}, v{vZERO} offset:{K2_SA - K2_SW//2}")
            a.e(f"s_mov_b64 exec, -1")
            a.e(f"s_branch K2_NOPAD{tag}")
        outl.append(rare)

    PEEL = cfg.get('peel', 1)
    F(0, OLD, 'A', False)
    a.e(f"s_mov_b32 s{sT7}, s{sTOT}")
    stamp(1)
    if PEEL == 0:
        F(1, FLG, 'B', False)
        stamp(1)
    H(0, OLD, 'A', True, 7 if PEEL == 0 else 0)
    for k in range(4):
        a.e(f"v_mov_b32 v{OLD+k}, 0")
    stamp(2)
    if PEEL == 2:
        F(1, FLG, 'B', False)
        stamp(1)
    S(0, 'A', True)
    if PEEL == 1:
        F(1, FLG, 'B', False)
        stamp(1)
    a.e("K2_PLOOP:")
    for b in (1, 0):
        tg = str(b)
        H(b, FLG, tg)
        stamp(2)
        F(1 - b, FLG, tg)
        stamp(1)
        S(b, tg)
        if b == 1:
            a.e(f"s_cmp_eq_u32 s{sDN}, 0xff")
            a.e("s_cbranch_scc1 K2_PTAIL")
        else:
            a.e(f"s_cmp_lg_u32 s{sDN}, 0xff")
            a.e("s_cbranch_scc1 K2_PLOOP")

    a.e("K2_PTAIL:")
    a.e(f"s_setprio {cfg.get('k2_tprio', 0)}")
    S_W1, S_W2, S_C, S_D, S_MM = 40, 44, 48, 56, 60
    sGI, sEO, sLP, sLO, sK6 = 64, 67, 68, 69, 70
    S_WA = 72
    S_WR = 92 if TRACE else 88
    vOF, vXO, vS1, vS2, vCK = 3, 4, 5, 6, 7
    GG, MM, AA, RB, SS, PP = 8, 22, 36, 92, 96, 100
    if TRACE: vOF, vTR2 = 3, 1
    DB0, WOP, vKD = 100, 116, 124
    a.e(f"s_load_dwordx2 s[{S_D}:{S_D+1}], s[0:1], 24")
    a.e(f"s_load_dwordx2 s[{S_W2}:{S_W2+1}], s[0:1], 56")
    a.e(f"s_load_dwordx2 s[{S_W1}:{S_W1+1}], s[0:1], 64")
    a.e(f"s_load_dwordx2 s[{S_MM}:{S_MM+1}], s[0:1], 0")
    a.e(f"s_load_dwordx2 s[{S_X}:{S_X+1}], s[0:1], 80")
    a.e(f"s_load_dwordx2 s[{S_Y}:{S_Y+1}], s[0:1], 88")
    for sr_, n in ((S_D, E * 2), (S_W1, 128), (S_W2, 64), (S_MM, E * 8), (S_Y, E * 8)):
        a.e(f"s_mov_b32 s{sr_+2}, {n}")
        a.e(f"s_mov_b32 s{sr_+3}, 0x00020000")
    a.e(f"s_lshr_b32 s{sT0}, s{sB}, 7")
    a.e(f"s_and_b32 s{sT1}, s{sB}, 127")
    a.e(f"s_mul_i32 s{sLP}, s{sT0}, {EPB}")
    a.e(f"s_sub_u32 s{sLO}, {EPB}, s{sLP}")
    a.e(f"s_mul_i32 s{sT1}, s{sT1}, {2*EPB}")
    a.e(f"s_add_u32 s{sEO}, s{sT1}, s{sLO}")
    a.e("s_waitcnt vmcnt(0)")
    for k in range(7):
        a.e(f"v_mov_b32 v{AA+8*k}, 0")
    for q in range(8):
        a.e(f"v_mov_b32 v{WOP+q}, 0")
    a.e(f"v_add_lshl_u32 v{SS}, v0, s{sEO}, 1")
    a.e(f"v_add_u32 v{SS+1}, 4096, v{SS}")
    a.e(f"v_and_b32 v{DB0+1}, 3, v0")
    a.e(f"v_lshlrev_b32 v{DB0+1}, 1, v{DB0+1}")
    a.e(f"v_and_or_b32 v{DB0}, v0, 8, v{DB0+1}")
    a.e(f"v_lshlrev_b32 v{vXO}, 4, v0")
    a.e(f"v_cmp_gt_u32 s[{sK6}:{sK6+1}], {EPB - 3072}, v0")
    a.e(f"v_lshlrev_b32 v{vOF}, 2, v{SS}")
    poll(RB, K2_GI, "1", 0)
    a.e(f"s_mov_b32 s{sGI}, s{sT0}")
    a.e(f"s_mov_b32 s{sGI+1}, s{sT0}")
    a.e(f"s_load_dwordx8 s[{S_WR}:{S_WR+7}], s[{S_X}:{S_X+1}], 0")
    a.vm = []
    for k in range(7):
        a.vmem(f"buffer_load_short_d16_hi v{AA+8*k}, v{SS+(k>>2)}, s[{S_D}:{S_D+3}], 0 offen offset:{(k&3)*1024}", ('D', k))
    a.e(f"s_mov_b32 exec_lo, 0x00000f0f")
    a.e(f"s_mov_b32 exec_hi, 0x0000f0f0")
    for r in range(8):
        a.vmem(f"buffer_load_short_d16{'_hi' if r & 1 else ''} v{WOP+(r>>1)+4*(r&1)}, v{DB0}, s[{S_W1}:{S_W1+3}], 0 offen offset:{16*r}", 'W')
    a.e(f"s_mov_b32 exec_lo, 0x000f0000")
    a.e(f"s_mov_b32 exec_hi, 0x00f00000")
    for r in range(8):
        a.vmem(f"buffer_load_short_d16{'_hi' if r & 1 else ''} v{WOP+(r>>1)+4*(r&1)}, v{DB0+1}, s[{S_W2}:{S_W2+3}], 0 offen offset:{8*r}", 'W')
    a.e(f"s_mov_b64 exec, -1")
    for k in range(7):
        a.e(f"s_mov_b32 s{sT0}, {4096*k}")
        a.vmem(f"buffer_load_dwordx2 {vr(MM+2*k,2)}, v{vOF}, s[{S_MM}:{S_MM+3}], s{sT0} offen", 'M')
    for r in range(8):
        a.e(f"s_mov_b32 s{S_C+r}, {f2h(-KAP * h2f(CENTERS[r]))}")
    a.e(f"v_add_lshl_u32 v{vS1}, v0, s{sLO}, 3")
    a.e(f"v_add_u32 v{vS2}, {STR2}, v{vS1}")
    a.e(f"s_lshl_b32 s{sT1}, s{sWAVE}, 4")
    a.e(f"s_xor_b32 s{sT2}, s{sB}, 128")
    a.e(f"s_lshl_b32 s{sLP}, s{sT2}, 7")
    a.e(f"s_add_u32 s{sLP}, s{sLP}, s{sT1}")
    a.e(f"s_add_u32 s{sLP}, s{sLP}, {FL_OFF}")
    a.e(f"s_mul_i32 s{sT2}, s{sT2}, {XB_STR}")
    a.e(f"s_add_u32 s{sT2}, s{sT2}, {XB_OFF}")
    a.wvm('W')
    for q in range(4):
        a.e(f"v_or_b32 v{WOP+q}, v{WOP+q}, v{WOP+4+q}")
    def rbf(X):
        a.e(f"v_mul_f32 v{vKD}, {f2h(KAP)}, v{X}")
        for q in range(4):
            a.e(f"v_pk_add_f32 {vr(X+2*q,2)}, {vr(vKD,2)}, s[{S_C+2*q}:{S_C+2*q+1}] op_sel_hi:[0,1]")
        for q in range(4):
            a.e(f"v_pk_mul_f32 {vr(X+2*q,2)}, {vr(X+2*q,2)}, {vr(X+2*q,2)}")
        for r in range(8):
            a.e(f"v_exp_f32 v{X+r}, -v{X+r}")
    rbf(AA)
    for k in range(7):
        X = AA + 8 * k
        for q in range(4):
            a.e(f"v_cvt_pk_bf16_f32 v{RB+q}, v{X+2*q}, v{X+2*q+1}")
        a.e(f"v_mfma_f32_32x32x16_bf16 {vr(DB0,16)}, {vr(WOP,4)}, {vr(RB,4)}, 0")
        if k < 6: rbf(X + 8)
        for d in range(4):
            a.e(f"v_pk_mul_f32 {vr(X+2*d,2)}, {vr(DB0+2*d,2)}, s[{sGI}:{sGI+1}]")
        for q in range(2):
            a.e(f"v_cvt_pk_bf16_f32 v{GG+2*k+q}, v{DB0+8+2*q}, v{DB0+9+2*q}")
    a.e("s_waitcnt lgkmcnt(0)")
    for d in range(4):
        for h in range(2):
            src = S_WR + 2 * d + h
            a.e(f"s_lshl_b32 s{S_WA+4*d+2*h}, s{src}, 16")
            a.e(f"s_and_b32 s{S_WA+4*d+2*h+1}, s{src}, s{sHI}")
    a.e(f"s_cmp_lg_u32 s{sMODE}, 0")
    a.e("s_cbranch_scc1 K2_SFIN")
    stamp(11)
    if TRACE: a.e(f"v_mov_b32 v{vTR2}, v{vTR}")
    a.e(f"s_mov_b32 s{sT0}, {1 << 14}")
    a.e("s_barrier")
    a.e("s_branch K2_FL1")
    a.e("K2_FL0:")
    a.e(f"s_sleep {cfg.get('k2_flslp', 2)}")
    a.e(f"v_mov_b32 v{vCK}, 0x8000")
    a.e(f"s_sub_u32 s{sT0}, s{sT0}, 1")
    a.e("s_cbranch_scc1 K2_FL2")
    a.e("K2_FL1:")
    a.e(f"buffer_load_dword v{vCK}, v{vZERO}, s[{S_WS}:{S_WS+3}], s{sLP} offen sc1")
    a.e("s_waitcnt vmcnt(0)")
    a.e(f"v_cmp_eq_u32 vcc, 0, v{vCK}")
    a.e("s_cbranch_vccnz K2_FL0")
    a.e("K2_FL2:")
    a.e("s_setprio 3")
    if TRACE: a.e(f"s_memtime s[{S_D}:{S_D+1}]")
    a.vm = []
    for k in range(7):
        if k == 6: a.e(f"s_mov_b64 exec, s[{sK6}:{sK6+1}]")
        a.vmem(f"buffer_load_dwordx4 {vr(PP+4*k,4)}, v{vXO}, s[{S_WS}:{S_WS+3}], s{sT2} offen sc1", ('P', k))
        a.e(f"s_add_u32 s{sT2}, s{sT2}, 8192")
    a.e(f"s_mov_b64 exec, -1")
    def sread(k):
        for q in range(2):
            a.e(f"ds_read_b64 {vr(SS+2*q,2)}, v{vS1+q} offset:{ACC + 4096*k}")
    sread(0)
    a.e(f"v_and_b32 v{vCK}, 0x8000, v{vCK}")
    a.e("s_mov_b64 exec, 1")
    a.e(f"ds_or_b32 v{vZERO}, v{vCK} offset:{K2_VI}")
    a.e(f"s_mov_b64 exec, -1")
    def unpack(dst, src):
        a.e(f"v_lshlrev_b32 v{dst}, 16, v{src}")
        a.e(f"v_and_b32 v{dst+1}, s{sHI}, v{src}")
        a.e(f"v_lshlrev_b32 v{dst+2}, 16, v{src+1}")
        a.e(f"v_and_b32 v{dst+3}, s{sHI}, v{src+1}")
    def finish(k, T):
        X = AA + 8 * k
        a.e(f"v_mov_b32 v{T}, v{RB+1}")
        a.e(f"v_mov_b32 v{T+2}, v{RB+3}")
        unpack(X + 4, GG + 2 * k)
        for d in range(4):
            src = RB + d if d % 2 == 0 else T - 1 + d
            for q in range(2):
                w = f"s[{S_WA+4*d+2*q}:{S_WA+4*d+2*q+1}]"
                if d == 0:
                    a.e(f"v_pk_mul_f32 {vr(X+2*q,2)}, {vr(RB,2)}, {w} op_sel_hi:[0,1]")
                else:
                    a.e(f"v_pk_fma_f32 {vr(X+2*q,2)}, {vr(src,2)}, {w}, {vr(X+2*q,2)} op_sel_hi:[0,1,1]")
        unpack(RB, MM + 2 * k)
        for q in range(2):
            a.e(f"v_pk_fma_f32 {vr(X+2*q,2)}, {vr(X+2*q,2)}, {vr(X+4+2*q,2)}, {vr(RB+2*q,2)}")
        a.e(f"v_cvt_pk_bf16_f32 v{MM+2*k}, v{X}, v{X+1}")
        a.e(f"v_cvt_pk_bf16_f32 v{MM+2*k+1}, v{X+2}, v{X+3}")
        a.e(f"s_mov_b32 s{sT0}, {4096*k}")
        if k == 6: a.e(f"s_mov_b64 exec, s[{sK6}:{sK6+1}]")
        a.vmem(f"buffer_store_dwordx2 {vr(MM+2*k,2)}, v{vOF}, s[{S_Y}:{S_Y+3}], s{sT0} offen", 'O')
        if k == 6: a.e(f"s_mov_b64 exec, -1")
    for k in range(7):
        X, S_ = AA + 8 * k, PP + 4 * k
        if k == 6:
            a.e(f"s_cmp_lg_u32 s{sWAVE}, 0")
            a.e("s_cbranch_scc1 K2_TE")
        a.wvm(('P', k))
        a.e("s_waitcnt lgkmcnt(0)")
        for q in range(4):
            a.e(f"v_pk_add_u16 v{S_+q}, v{S_+q}, v{SS+q}")
        if k + 1 < 7: sread(k + 1)
        for d in range(4):
            a.e(f"v_cvt_f32_i32_sdwa v{RB+d}, sext(v{S_+(d>>1)}) dst_sel:DWORD dst_unused:UNUSED_PAD src0_sel:WORD_{d&1}")
        for q in range(2):
            a.e(f"v_pk_mul_f32 {vr(RB+2*q,2)}, {vr(X+2*q,2)}, {vr(RB+2*q,2)}")
        for d in range(4):
            a.e(f"v_cvt_f32_i32_sdwa v{X+d}, sext(v{S_+2+(d>>1)}) dst_sel:DWORD dst_unused:UNUSED_PAD src0_sel:WORD_{d&1}")
        for q in range(2):
            a.e(f"v_pk_fma_f32 {vr(RB+2*q,2)}, {vr(X+4+2*q,2)}, {vr(X+2*q,2)}, {vr(RB+2*q,2)}")
        finish(k, S_)
    a.e("K2_TE:")
    if TRACE:
        a.e("s_waitcnt vmcnt(0)")
        a.e(f"v_mov_b32 v{vTR}, v{vTR2}")
        a.e(f"s_andn2_b32 s{S_D}, s{S_D}, 15")
        a.e(f"s_or_b32 s{S_D}, s{S_D}, 6")
        a.e(f"s_mov_b32 m0, s{sPA}")
        a.e(f"s_add_u32 s{sPA}, s{sPA}, 1")
        a.e(f"v_writelane_b32 v{vTR}, s{S_D}, m0")
    a.e("s_waitcnt lgkmcnt(0)")
    a.e("s_barrier")
    a.e(f"ds_read_b32 v{vCK}, v{vZERO} offset:{K2_VI}")
    a.e("s_waitcnt lgkmcnt(0)")
    a.e(f"v_cmp_ne_u32 vcc, 0, v{vCK}")
    a.e("s_cbranch_vccz K2_FIN")
    a.e(f"s_mov_b32 s{sMODE}, 1")
    a.e("s_barrier")
    a.e("s_waitcnt vmcnt(0)")
    a.e("s_barrier")
    a.e("s_branch K2_PTAIL")
    a.e("K2_SFIN:")
    a.e(f"v_lshlrev_b32 v{vS1}, 2, v0")
    a.e(f"v_add_u32 v{vS2}, {STR2}, v{vS1}")
    a.e("s_waitcnt vmcnt(0)")
    for k in range(7):
        X = AA + 8 * k
        for q in range(8):
            a.e(f"ds_read_b32 v{DB0+q}, v{vS1+(q>>2)} offset:{ACC + (q&3)*ACC_STR + 2048*k}")
        a.e("s_waitcnt lgkmcnt(0)")
        for q in range(8):
            a.e(f"v_cvt_f32_i32 v{DB0+q}, v{DB0+q}")
        for q in range(2):
            a.e(f"v_pk_mul_f32 {vr(RB+2*q,2)}, {vr(X+2*q,2)}, {vr(DB0+2*q,2)}")
        for q in range(2):
            a.e(f"v_pk_fma_f32 {vr(RB+2*q,2)}, {vr(X+4+2*q,2)}, {vr(DB0+4+2*q,2)}, {vr(RB+2*q,2)}")
        finish(k, DB0 + 8)
    a.e("s_branch K2_FIN")
    for f_ in outl: f_()

    a.e("K2_CONS:")
    vFD, vA4, vA2 = 3, 4, 5
    SW_, SA_ = 6, 19
    CUR = 32
    COL = {3: [0,1,2,3,0,1,2,3,0,1,2,3,4], 2: [0,1,2,0,1,2,0,1,2,0,1,2,3],
           4: [0,1,2,3,4,5,0,1,2,3,4,5,6], 5: [0,1,2,3,4,5,0,1,2,3,4,5,6]}.get(D, list(range(13)))
    NCOL = max(COL) + 1
    RSTR = 4
    GB = CUR + RSTR * NCOL
    assert GB + 2 * (NS + 1) <= 96
    GRP = cfg.get('k2_grp', [[q, [q]] for q in range(NS)])
    AT = {st_: sl_ for st_, sl_ in GRP}
    ISS = {q: st_ for st_, sl_ in GRP for q in sl_}
    assert sorted(ISS) == list(range(NS))
    for q in range(NS):
        assert ISS[q] <= q and ISS[q] > q + D - NS
    ORD = [q for st_ in range(NS) for q in AT.get(st_, [])]
    def vmw(p, drain=False):
        s_ = p + D
        n = len([q for q in ORD[ORD.index(p) + 1:] if ISS[q] <= s_])
        if s_ >= NS and not drain:
            n += len([q for q in ORD if ISS[q] <= s_ - NS])
        return n
    TB = 104
    RT, vCK, vC4, vCT = 120, 124, 125, 126
    MXR = TB
    sG, sGN, sMG, sNB, sSEL, sMX, sLAST = 40, 42, 44, 46, 48, 49, 50
    def fill(first):
        if first:
            a.e(f"v_cmp_le_u32 vcc, {ACC//16}, v{vCT}")
            a.e(f"s_mov_b64 exec, vcc")
            a.e(f"ds_write_b128 v{TB+8}, {vr(TB+4,4)}")
            a.e(f"s_mov_b64 exec, -1")
        for k in range(1, 8):
            a.e(f"ds_write_b128 v{TB+8}, {vr(TB+4,4)} offset:{k*8192}")
        a.e(f"v_add_u32 v{TB+8}, 65536, v{TB+8}")
        for k in range(4):
            a.e(f"ds_write_b128 v{TB+8}, {vr(TB+4,4)} offset:{k*8192}")
        a.e(f"v_cmp_gt_u32 vcc, {(K2_SA - 12*8192)//16}, v{vCT}")
        a.e(f"s_mov_b64 exec, vcc")
        a.e(f"ds_write_b128 v{TB+8}, {vr(TB+4,4)} offset:{4*8192}")
        a.e(f"s_mov_b64 exec, -1")
    def mdsrd(hreg):
        a.e(f"s_mul_i32 s{sT0}, {hreg}, {MD_TSTR}")
        a.e(f"s_add_u32 s{sT0}, s{sT0}, {MD_OFF}")
        a.e(f"s_add_u32 s{S_MD}, s{S_WS}, s{sT0}")
        a.e(f"s_addc_u32 s{S_MD+1}, s{S_WS+1}, 0")
        a.e(f"s_or_b32 s{S_MD+1}, s{S_MD+1}, 0x80000")
    def setscale(t):
        a.e(f"v_min_f32 v{t}, 0x71800000, v{t}")
        a.e(f"v_rcp_f32 v{t+1}, v{t}")
        a.e(f"v_add_f32 v{t+2}, v{t}, v{t}")
        a.e(f"v_readlane_b32 s{sG}, v{t}, 63")
        a.e(f"v_readlane_b32 s{sG+1}, v{t+2}, 63")
        a.e("s_lshl_b64 exec, 1, 63")
        a.e(f"ds_write_b32 v{vZERO}, v{t+1} offset:{K2_GI}")
        a.e("s_mov_b64 exec, -1")
        a.e(f"s_xor_b32 s{sGN}, s{sG}, 0x80000000")
    a.e(f"s_sub_u32 s{sWAVE}, s{sWAVE}, 8")
    a.e(f"v_add_u32 v{vCT}, -512, v0")
    a.e(f"v_mov_b32 v{TB+9}, 0x40004000")
    a.e(f"v_cmp_le_u32 vcc, {ACC//16}, v{vCT}")
    a.e(f"v_lshlrev_b32 v{TB+8}, 4, v{vCT}")
    for k in range(4):
        a.e(f"v_cndmask_b32 v{TB+4+k}, 0, v{TB+9}, vcc")
    a.e(f"ds_write_b128 v{TB+8}, {vr(TB+4,4)}")
    for k in range(4):
        a.e(f"v_mov_b32 v{TB+4+k}, v{TB+9}")
    a.e(f"v_lshlrev_b32 v{TB+9}, 5, v{vLANE}")
    a.e(f"s_mov_b32 s{sT1}, {MX_OFF}")
    a.e("s_waitcnt lgkmcnt(0)")
    a.e("s_barrier")
    a.e(f"buffer_load_dwordx4 {vr(CUR,4)}, v{TB+9}, s[{S_WS}:{S_WS+3}], s{sT1} offen")
    a.e(f"buffer_load_dwordx4 {vr(CUR+4,4)}, v{TB+9}, s[{S_WS}:{S_WS+3}], s{sT1} offen offset:16")
    fill(False)
    a.e(f"s_lshr_b32 s{sT1}, s{sB}, 7")
    mdsrd(f"s{sT1}")
    a.e(f"s_mov_b32 s{S_MD+2}, {E//2}")
    a.e(f"s_mov_b32 s{S_MD+3}, 0x00020000")
    a.e(f"s_mov_b32 s{sFFF8}, 0xfff8")
    a.e(f"s_mov_b32 s{sMG}, {f2h(8388608.0 + 32768.0)}")
    a.e(f"s_mov_b32 s{sMG+1}, {f2h(8388608.0 + 32768.0)}")
    a.e(f"s_mov_b32 s{sNB}, 0x7fff8000")
    a.e(f"s_mov_b32 s{sNB+1}, 0x7fff7fff")
    a.e(f"s_mov_b32 s{sSEL}, 0x05040100")
    for s in range(NS):
        a.e(f"v_mov_b32 v{SW_+s}, {hex(DUMMY)}")
        a.e(f"v_mov_b32 v{SA_+s}, 0")
    for k in range(4):
        for R_ in (RT, 100, 96): a.e(f"v_mov_b32 v{R_+k}, 0")
    a.e(f"s_mov_b32 s{sCNT}, 0")
    t = TB + 4
    a.e("s_waitcnt vmcnt(0)")
    a.e(f"v_max3_u32 v{MXR}, v{CUR}, v{CUR+2}, v{CUR+4}")
    a.e(f"v_add_f32 v{MXR+1}, v{CUR+1}, v{CUR+3}")
    a.e(f"v_add_f32 v{MXR+2}, v{CUR+5}, v{CUR+7}")
    a.e(f"v_max_u32 v{MXR}, v{MXR}, v{CUR+6}")
    a.e(f"v_add_f32 v{MXR+1}, v{MXR+1}, v{MXR+2}")
    dpp_scan(a, MXR, "v_max_u32")
    dpp_scan(a, MXR + 1, "v_add_f32")
    a.e(f"v_rcp_f32 v{t}, v{MXR}")
    a.e(f"v_mul_f32 v{MXR+2}, {f2h(4.0 * E / cfg.get('crest', 32.0))}, v{MXR}")
    a.e(f"v_readlane_b32 s{sMX}, v{MXR}, 63")
    a.e(f"v_cmp_nle_f32 vcc, v{MXR+2}, v{MXR+1}")
    a.e(f"v_mul_f32 v{t}, {f2h(cfg.get('qmax', 4096.0))}, v{t}")
    a.e(f"s_lshr_b32 s{sT0}, vcc_hi, 16")
    a.e(f"s_and_b32 s{sT0}, s{sT0}, 0x8000")
    a.e(f"v_mov_b32 v{vCK}, s{sT0}")
    setscale(t)
    stamp(6)

    uid = [0]
    stubs = []
    def alpha1(W, G0):
        a.e(f"v_and_b32 v{G0}, {hex(cfg.get('x_gmask', IDXM))}, v{W}")
        if not cfg.get('x_nog'):
            a.e(f"buffer_load_dwordx2 {vr(G0,2)}, v{G0}, s[{S_MD}:{S_MD+3}], 0 idxen")
    def cosines(A, C_, mid=None, c2=1):
        tc = TB + 2
        a.e(f"v_mul_f32 v{tc}, 0.15915494, v{A}")
        a.e(f"v_fract_f32 v{tc}, v{tc}")
        if not cfg.get('x_nocos'): a.e(f"v_cos_f32 v{tc}, v{tc}")
        if mid: a.e(mid)
        a.e(f"v_pk_mul_f32 {vr(C_,2)}, {vr(tc,2)}, s[{sG}:{sG+1}] op_sel_hi:[0,1]")
        a.e(f"v_fma_f32 v{C_+c2}, v{C_+1}, v{tc}, s{sGN}")
    def alpha2(W, A, cur):
        cosines(A, cur, f"v_and_b32_sdwa v{cur+3}, v{W}, s{sFFF8} dst_sel:DWORD dst_unused:UNUSED_PAD src0_sel:WORD_1 src1_sel:DWORD", 2)
    NRT = cfg.get('k2_nrt', 2)
    RTS = [RT, 100, 96][:NRT]
    def orrt(R_):
        a.e(f"v_or3_b32 v{vCK}, v{vCK}, v{R_}, v{R_+1}")
        a.e(f"v_or3_b32 v{vCK}, v{vCK}, v{R_+2}, v{R_+3}")
    def beta(cur, G0, vm, p=0, full=True):
        C_, L = cur, cur + 3
        M_, X = TB + 4, TB + 8
        a.e(f"s_waitcnt vmcnt({vm})")
        unpack(M_, G0)
        for l in range(2):
            for q in range(2):
                a.e(f"v_pk_fma_f32 {vr(X+4*l+2*q,2)}, {vr(M_+2*q,2)}, {vr(C_+2*l,2)}, s[{sMG}:{sMG+1}] op_sel_hi:[1,0,1]")
        for q in range(4):
            a.e(f"v_perm_b32 v{M_+q}, v{X+2*q+1}, v{X+2*q}, s{sSEL}")
        for l in range(2):
            a.e(f"v_lshl_add_u64 {vr(M_+2*l,2)}, {vr(M_+2*l,2)}, 0, s[{sNB}:{sNB+1}]")
        R_ = RTS[p % NRT]
        if p >= NRT or full:
            a.e(f"s_waitcnt lgkmcnt({0 if full else 2*(NRT-1)})")
            orrt(R_)
        for l in range(2):
            xa = cfg.get('x_at', 0)
            if xa == 1: a.e(f"ds_add_u64 v{L}, {vr(M_+2*l,2)} offset:{ACC + l*STR2}")
            elif xa == 2: a.e(f"ds_add_rtn_u32 v{R_+2*l}, v{L}, v{M_+2*l} offset:{ACC + l*STR2}")
            elif xa == 3: a.e(f"ds_read_b32 v{R_+2*l}, v{vZERO} offset:{ACC + l*STR2}")
            else: a.e(f"ds_add_rtn_u64 {vr(R_+2*l,2)}, v{L}, {vr(M_+2*l,2)} offset:{ACC + l*STR2}")
    def cur(s): return CUR + RSTR * COL[s]
    def viol(v):
        a.e(f"v_and_b32 v{v}, 0x80008000, v{v}")
        a.e(f"v_cmp_ne_u32 vcc, 0, v{v}")
        a.e(f"s_mov_b64 exec, vcc")
        a.e(f"ds_or_b32 v{vZERO}, v{v} offset:{K2_VI}")
        a.e("s_mov_b64 exec, -1")
    def fdone():
        a.e(f"s_waitcnt lgkmcnt(0)")
        for R_ in RTS: orrt(R_)
    def step(s, cnt_of, stub=False, mid=None):
        p = (s - D) % NS
        for q in AT.get(s, []): alpha1(SW_ + q, GB + 2 * q)
        alpha2(SW_ + s, SA_ + s, cur(s))
        if mid: mid()
        uid[0] += 1
        a.e(f"s_cmp_le_u32 s{cnt_of(p)}, {p}")
        if stub:
            a.e(f"s_cbranch_scc1 K2_ST{uid[0]}")
            stubs.append(uid[0])
        else:
            a.e(f"s_cbranch_scc1 K2_SB{uid[0]}")
        u = uid[0]
        beta(cur(p), GB + 2 * p, vmw(p), p, stub)
        a.e(f"K2_SB{u}:")
    def readslot(s):
        uid[0] += 1
        a.e(f"s_cmp_le_u32 s{sCNT}, {s}")
        a.e(f"s_cbranch_scc1 K2_RD{uid[0]}")
        a.e(f"ds_read_b32 v{SW_+s}, v{vA4} offset:{256*s}")
        a.e(f"ds_read_u16_d16_hi v{SA_+s}, v{vA2} offset:{128*s}")
        a.e(f"s_branch K2_RE{uid[0]}")
        a.e(f"K2_RD{uid[0]}:")
        a.e(f"v_mov_b32 v{SW_+s}, {hex(DUMMY)}")
        a.e(f"K2_RE{uid[0]}:")
    a.e(f"v_mov_b32 v{vC4}, 4")
    signal(vC4, K2_FS)
    a.e(f"s_mov_b32 s{sTG}, 32")
    if cfg.get('k2_cprio', 0): a.e(f"s_setprio {cfg['k2_cprio']}")
    a.e("K2_CLOOP:")
    a.e(f"ds_read_b64 {vr(TB,2)}, v{vZERO} offset:{K2_FS}")
    a.e(f"s_mov_b32 s{sCNP}, s{sCNT}")
    a.e(f"s_add_u32 s{sTG}, s{sTG}, 32")
    step(NS - 2, lambda p: sCNP, stub=True)
    stamp(7)
    a.e("K2_CPOLL:")
    a.e(f"v_readfirstlane_b32 s{sT0}, v{TB}")
    a.e(f"v_readfirstlane_b32 s{sN}, v{TB+1}")
    a.e(f"s_cmp_lt_u32 s{sT0}, s{sTG}")
    a.e("s_cbranch_scc1 K2_CPOLL2")
    stamp(8)
    a.e(f"s_and_b32 s{sLAST}, s{sN}, 1")
    a.e(f"s_add_u32 s{sT0}, s{sN}, 252")
    a.e(f"s_lshr_b32 s{sT0}, s{sT0}, 8")
    a.e(f"s_mul_i32 s{sT1}, s{sT0}, s{sWAVE}")
    a.e(f"s_add_u32 s{sT0}, s{sT1}, s{sT0}")
    a.e(f"s_lshr_b32 s{sT1}, s{sT1}, 3")
    a.e(f"s_lshr_b32 s{sT0}, s{sT0}, 3")
    a.e(f"s_sub_u32 s{sCNT}, s{sT0}, s{sT1}")
    a.e(f"s_lshl_b32 s{sT1}, s{sT1}, 7")
    a.e(f"s_add_u32 s{sT0}, s{sT1}, {K2_SA}")
    a.e(f"s_lshl_b32 s{sT1}, s{sT1}, 1")
    a.e(f"s_add_u32 s{sT1}, s{sT1}, {K2_SW}")
    a.e(f"v_lshl_add_u32 v{vA4}, v{vLANE}, 2, s{sT1}")
    a.e(f"v_lshl_add_u32 v{vA2}, v{vLANE}, 1, s{sT0}")
    CP = cfg.get('k2_cp')
    def cprio(s):
        if CP:
            for st_, pr_ in CP:
                if st_ == s: a.e(f"s_setprio {pr_}")
    def reads():
        a.e(f"s_cmp_lt_u32 s{sCNT}, {NS-1}")
        a.e("s_cbranch_scc1 K2_RSLOW")
        for s in range(NS - 1):
            a.e(f"ds_read_b32 v{SW_+s}, v{vA4} offset:{256*s}")
            a.e(f"ds_read_u16_d16_hi v{SA_+s}, v{vA2} offset:{128*s}")
        a.e("K2_RDONE:")
    def reads2():
        readslot(NS - 1)
        a.e(f"s_cmp_gt_u32 s{sCNT}, {NS}")
        a.e("s_cbranch_scc1 K2_EXTRA")
        a.e("K2_NOEXTRA:")
        signal(vC4, K2_FR)
    cprio(-1)
    reads()
    if cfg.get('k2_efr', True):
        step(NS - 1, lambda p: sCNP, stub=True, mid=reads2)
    else:
        step(NS - 1, lambda p: sCNP, stub=True)
        reads2()
    assert D < NS - LATE
    for s in range(NS - LATE):
        if TRACE and s in cfg.get('trace_steps', [0, 4, 8]): stamp(9)
        cprio(s)
        step(s, lambda p: sCNP if p >= NS - D else sCNT, mid=fdone if s == D else None)
    a.e(f"s_cmp_eq_u32 s{sLAST}, 0")
    a.e("s_cbranch_scc1 K2_CLOOP")
    step(NS - 2, lambda p: sCNT)
    step(NS - 1, lambda p: sCNT)
    for i in range(D):
        p = NS - D + i
        uid[0] += 1
        u = uid[0]
        a.e(f"s_cmp_le_u32 s{sCNT}, {p}")
        a.e(f"s_cbranch_scc1 K2_SB{u}")
        beta(cur(p), GB + 2 * p, vmw(p, True), p, False)
        a.e(f"K2_SB{u}:")
    vQ1, vQ2, vO1, vO2, vXC, vC2, QP, QO = 6, 7, 8, 9, 10, 11, 32, 64
    sXB, sFL, sTOP = 52, 53, 54
    a.e(f"s_lshr_b32 s{sT0}, s{sB}, 7")
    a.e(f"s_mul_i32 s{sT0}, s{sT0}, {EPB}")
    a.e(f"s_sub_u32 s{sT1}, {EPB}, s{sT0}")
    a.e(f"v_add_lshl_u32 v{vQ1}, v{vCT}, s{sT0}, 3")
    a.e(f"v_add_lshl_u32 v{vO1}, v{vCT}, s{sT1}, 3")
    a.e(f"v_add_u32 v{vQ2}, {STR2}, v{vQ1}")
    a.e(f"v_add_u32 v{vO2}, {STR2}, v{vO1}")
    a.e(f"v_lshlrev_b32 v{vXC}, 4, v{vCT}")
    a.e(f"v_mov_b32 v{vC2}, 0")
    a.e(f"s_mul_i32 s{sXB}, s{sB}, {XB_STR}")
    a.e(f"s_add_u32 s{sXB}, s{sXB}, {XB_OFF}")
    a.e(f"s_lshl_b32 s{sFL}, s{sB}, 7")
    a.e(f"s_lshl_b32 s{sT1}, s{sWAVE}, 4")
    a.e(f"s_add_u32 s{sFL}, s{sFL}, s{sT1}")
    a.e(f"s_add_u32 s{sFL}, s{sFL}, {FL_OFF}")
    a.e(f"s_mov_b32 s{sTOP}, 0x80008000")
    a.e(f"v_cmp_gt_u32 s[{sM}:{sM+1}], {EPB - 3072}, v{vCT}")
    fdone()
    viol(vCK)
    stamp(10)
    a.e("s_waitcnt vmcnt(0) lgkmcnt(0)")
    a.e("s_barrier")
    a.e("s_setprio 3")
    a.lg = []
    for k in range(7):
        for q in range(2):
            a.lds(f"ds_read_b64 {vr(QP+4*k+2*q,2)}, v{vQ1+q} offset:{ACC + 4096*k}", ('S', k))
    a.lds(f"ds_read_b32 v{vCK}, v{vZERO} offset:{K2_VI}", 'V')
    for k in range(7):
        a.wlg(('S', k))
        for q in range(4):
            a.e(f"v_xor_b32 v{QO+4*k+q}, s{sTOP}, v{QP+4*k+q}")
        if k == 6: a.e(f"s_mov_b64 exec, s[{sM}:{sM+1}]")
        a.e(f"buffer_store_dwordx4 {vr(QO+4*k,4)}, v{vXC}, s[{S_WS}:{S_WS+3}], s{sXB} offen sc1")
        a.e(f"s_add_u32 s{sXB}, s{sXB}, 8192")
    a.wlg0()
    for k in range(6, -1, -1):
        for q in range(2):
            a.e(f"v_or3_b32 v{vCK}, v{vCK}, v{QP+4*k+2*q}, v{QP+4*k+2*q+1}")
        if k == 6: a.e(f"s_mov_b64 exec, -1")
    for k in range(7):
        for q in range(2):
            a.e(f"ds_read_b64 {vr(QP+4*k+2*q,2)}, v{vO1+q} offset:{ACC + 4096*k}")
    a.e(f"v_and_b32 v{vCK}, s{sTOP}, v{vCK}")
    a.e(f"v_cmp_ne_u32 vcc, 0, v{vCK}")
    a.e(f"s_cmp_lg_u64 vcc, 0")
    a.e(f"s_cselect_b32 s{sT0}, 0x8004, 4")
    a.e(f"v_mov_b32 v{vCK}, s{sT0}")
    stamp(12)
    a.e("s_waitcnt vmcnt(0)")
    a.e("s_mov_b64 exec, 1")
    a.e(f"buffer_store_dword v{vCK}, v{vZERO}, s[{S_WS}:{S_WS+3}], s{sFL} offen sc1")
    a.e(f"s_mov_b64 exec, s[{sM}:{sM+1}]")
    a.e("s_setprio 0")
    stamp(13)
    a.e("s_waitcnt lgkmcnt(0)")
    for k in range(6, -1, -1):
        for q in range(2):
            a.e(f"v_or3_b32 v{vC2}, v{vC2}, v{QP+4*k+2*q}, v{QP+4*k+2*q+1}")
        if k == 6: a.e(f"s_mov_b64 exec, -1")
    viol(vC2)
    a.e("s_waitcnt lgkmcnt(0)")
    if cfg.get('x_dump'):
        a.e(f"s_mul_i32 s{sT0}, s{sB}, {13*8192}")
        a.e(f"s_add_u32 s{sT0}, s{sT0}, 0x7000000")
        a.e(f"v_lshlrev_b32 v{TB+8}, 4, v{vCT}")
        for k in range(13):
            a.e(f"ds_read_b128 {vr(TB+4,4)}, v{TB+8}")
            a.e("s_waitcnt lgkmcnt(0)")
            a.e(f"buffer_store_dwordx4 {vr(TB+4,4)}, v{TB+8}, s[{S_WS}:{S_WS+3}], s{sT0} offen")
            a.e("s_waitcnt vmcnt(0)")
            a.e(f"v_add_u32 v{TB+8}, 8192, v{TB+8}")
    a.e("s_barrier")
    a.e(f"ds_read_b32 v{vCK}, v{vZERO} offset:{K2_VI}")
    a.e("s_waitcnt vmcnt(0) lgkmcnt(0)")
    a.e(f"v_cmp_ne_u32 vcc, 0, v{vCK}")
    a.e("s_cbranch_vccz K2_FIN")
    RR, QL, vI, vE, vTL, PW, CC2, GM = 6, 32, 22, 23, 24, 26, 30, 40
    a.e(f"s_and_b32 s{sT0}, s{sB}, 127")
    a.e(f"s_lshl_b32 s{sT0}, s{sT0}, 4")
    a.e(f"v_mul_u32_u24 v{vI}, {REC_STR}, v{vCT}")
    a.e(f"v_add_u32 v{vI}, s{sT0}, v{vI}")
    a.e(f"s_mov_b32 s{sT0}, {REC_OFF}")
    for q in range(4):
        a.e(f"buffer_load_dwordx4 {vr(QL+4*q,4)}, v{vI}, s[{S_WS}:{S_WS+3}], s{sT0} offen offset:{(q>>1)*2048 + (q&1)*16}")
    for k in range(4):
        a.e(f"v_mov_b32 v{TB+4+k}, 0")
    a.e(f"v_lshlrev_b32 v{TB+8}, 4, v{vCT}")
    fill(True)
    a.e(f"s_mov_b32 s{sT0}, {cfg.get('tile_s', TILE_B)}")
    a.e(f"v_mul_lo_u32 v{vTL}, v{vCT}, s{sT0}")
    a.e(f"s_mov_b32 s{sT1}, 0x07060302")
    a.e(f"v_mov_b32 v{vI}, 0")
    a.e("s_waitcnt vmcnt(0)")
    for k in range(16):
        b_ = QL + 8 * (k >> 3) + ((k & 7) >> 1)
        a.e(f"v_perm_b32 v{RR+k}, v{b_+4}, v{b_}, s{sT1 if k & 1 else sSEL}")
        a.e(f"v_sub_u32_sdwa v{vE}, v{RR+k}, v{RR+k} dst_sel:DWORD dst_unused:UNUSED_PAD src0_sel:WORD_1 src1_sel:WORD_0")
        a.e(f"v_add_u32 v{vI}, v{vI}, v{vE}")
    a.e(f"ds_add_u32 v{vZERO}, v{vI} offset:{K2_NB}")
    a.e("s_waitcnt lgkmcnt(0)")
    a.e("s_barrier")
    a.e(f"ds_read_b32 v{t}, v{vZERO} offset:{K2_NB}")
    a.e(f"s_lshr_b32 s{sT1}, s{sB}, 7")
    a.e(f"s_mul_i32 s{sT1}, s{sT1}, {EPB}")
    a.e(f"s_sub_u32 s{sLAST}, {EPB}, s{sT1}")
    a.e(f"s_mov_b32 s{sJ}, 0")
    a.e("s_waitcnt lgkmcnt(0)")
    a.e(f"v_cvt_f32_u32 v{t}, v{t}")
    a.e(f"v_mul_f32 v{t}, s{sMX}, v{t}")
    a.e(f"v_rcp_f32 v{t}, v{t}")
    a.e(f"v_mul_f32 v{t}, 0x4efc0000, v{t}")
    setscale(t)
    a.e("K2_SJ:")
    a.e(f"s_lshr_b32 s{sT1}, s{sJ}, 3")
    mdsrd(f"s{sT1}")
    a.e(f"v_and_b32 v{vI}, 0xffff, v{RR}")
    a.e(f"v_lshrrev_b32 v{vE}, 16, v{RR}")
    for k in range(15):
        a.e(f"v_mov_b32 v{RR+k}, v{RR+k+1}")
    a.e("K2_SI:")
    a.e(f"v_cmp_lt_u32 vcc, v{vI}, v{vE}")
    a.e("s_cbranch_vccz K2_SN")
    a.e(f"s_mov_b64 exec, vcc")
    a.e(f"v_lshrrev_b32 v{GM}, 1, v{vI}")
    a.e(f"v_mad_u32_u24 v{GM}, v{GM}, 12, v{vTL}")
    a.e(f"buffer_load_dwordx3 {vr(PW,3)}, v{GM}, s[{S_WS}:{S_WS+3}], 0 offen")
    a.e(f"v_and_b32 v{GM}, 1, v{vI}")
    a.e(f"v_cmp_eq_u32 vcc, 1, v{GM}")
    a.e(f"v_add_u32 v{vI}, 1, v{vI}")
    a.e("s_waitcnt vmcnt(0)")
    a.e(f"v_cndmask_b32 v{PW}, v{PW}, v{PW+2}, vcc")
    a.e(f"v_lshlrev_b32 v{PW+2}, 16, v{PW+1}")
    a.e(f"v_and_b32 v{PW+1}, s{sHI}, v{PW+1}")
    a.e(f"v_cndmask_b32 v{PW+1}, v{PW+2}, v{PW+1}, vcc")
    a.e(f"v_and_b32 v{GM+2}, {hex(IDXM)}, v{PW}")
    a.e(f"buffer_load_dwordx2 {vr(GM,2)}, v{GM+2}, s[{S_MD}:{S_MD+3}], 0 idxen")
    cosines(PW + 1, CC2, None, 2)
    a.e(f"v_lshrrev_b32 v{PW}, 19, v{PW}")
    a.e(f"v_subrev_u32 v{PW}, s{sLAST}, v{PW}")
    a.e(f"v_cmp_gt_u32 vcc, {EPB}, v{PW}")
    a.e(f"v_lshlrev_b32 v{PW}, 2, v{PW}")
    a.e(f"v_add_u32 v{PW+1}, {STR2}, v{PW}")
    a.e("s_waitcnt vmcnt(0)")
    unpack(TB + 4, GM)
    for l in range(2):
        for q in range(2):
            a.e(f"v_pk_mul_f32 {vr(TB+8+4*l+2*q,2)}, {vr(TB+4+2*q,2)}, {vr(CC2+2*l,2)} op_sel_hi:[1,0]")
    for q in range(8):
        a.e(f"v_cvt_rpi_i32_f32 v{TB+8+q}, v{TB+8+q}")
    a.e(f"s_mov_b64 exec, vcc")
    for q in range(8):
        a.e(f"ds_add_u32 v{PW+(q>>2)}, v{TB+8+q} offset:{ACC + (q&3)*ACC_STR}")
    a.e(f"s_mov_b64 exec, -1")
    a.e("s_branch K2_SI")
    a.e("K2_SN:")
    a.e(f"s_add_u32 s{sJ}, s{sJ}, 1")
    a.e(f"s_cmp_lt_u32 s{sJ}, 16")
    a.e("s_cbranch_scc1 K2_SJ")
    a.e("s_waitcnt lgkmcnt(0)")
    a.e("s_barrier")
    a.e("s_branch K2_FIN")

    for u in stubs:
        a.e(f"K2_ST{u}:")
        a.e("s_waitcnt lgkmcnt(0)")
        a.e(f"s_branch K2_SB{u}")
    a.e("K2_CPOLL2:")
    if cfg.get('k2_cslp', 0): a.e(f"s_sleep {cfg['k2_cslp']}")
    a.e(f"ds_read_b64 {vr(TB,2)}, v{vZERO} offset:{K2_FS}")
    a.e("s_waitcnt lgkmcnt(0)")
    a.e("s_branch K2_CPOLL")
    a.e("K2_RSLOW:")
    for s in range(NS - 1):
        readslot(s)
    a.e("s_branch K2_RDONE")
    a.e("K2_EXTRA:")
    XW, XC = TB, cur(0)
    for s in range(NS, 16):
        if s > NS:
            a.e(f"s_cmp_le_u32 s{sCNT}, {s}")
            a.e("s_cbranch_scc1 K2_NOEXTRA")
        a.e(f"v_mov_b32 v{XW+1}, 0")
        a.e(f"ds_read_b32 v{XW}, v{vA4} offset:{256*s}")
        a.e(f"ds_read_u16_d16_hi v{XW+1}, v{vA2} offset:{128*s}")
        a.e("s_waitcnt lgkmcnt(0)")
        alpha1(XW, GB + 2 * NS)
        alpha2(XW, XW + 1, XC)
        beta(XC, GB + 2 * NS, 0)
        a.e("s_waitcnt lgkmcnt(0)")
    a.e("s_branch K2_NOEXTRA")

    a.e("K2_FIN:")
    if TRACE:
        a.e("s_waitcnt vmcnt(0)")
        stamp(10)
        a.e(f"s_cmp_lg_u32 s2, {cfg.get('trace_wg', 77)}")
        a.e("s_cbranch_scc1 K2_END")
        a.e(f"s_load_dwordx2 s[{S_X}:{S_X+1}], s[0:1], 96")
        a.e(f"s_mov_b32 s{S_X+2}, 4096")
        a.e(f"s_mov_b32 s{S_X+3}, 0x00020000")
        a.e("s_waitcnt lgkmcnt(0)")
        a.e(f"v_lshlrev_b32 v1, 2, v0")
        a.e(f"buffer_store_dword v{vTR}, v1, s[{S_X}:{S_X+3}], 0 offen")
    if cfg.get('rt'): rt_end(a, 1, S_X)
    a.e("K2_END:")
    a.e("s_endpgm")
    return fix_hazards(a.lines)
```

```python
from asmlib import *
from consts import *
from k1 import dpp_scan, rt_end
import math, struct

NS = 13
DUMMY = (2 * EPB << 19) | 0x7FFFF
IDXM = 0x7FFFF
K2_GI = K2_NB + 8
K2_VI = K2_NB + 12
K2_FS = K2_NB + 32
K2_NCELL = K2_FS + 4
K2_FH = K2_FS + 8
K2_DN = K2_FS + 12
K2_FP = K2_FS + 16
K2_FR = K2_FS + 20
ACC = K2C_ACC
STR2 = 2 * ACC2_STR
def f2h(x): return hex(struct.unpack('<I', struct.pack('<f', x))[0])
def h2f(x): return struct.unpack('<f', struct.pack('<I', x))[0]
KAP = math.sqrt(10.0 * math.log2(math.e))

def gen_k2(cfg):
    a = Asm()
    D = cfg.get('k2_d', 5)
    LATE = 2
    PPRIO = cfg.get('k2_pprio', 3)
    SPLIT = cfg.get('split', True)
    S_WS, S_MD, S_X, S_Y = 4, 8, 12, 16
    sWAVE, sB, sJ, sWIN, sTOT, sN, sCNT, sT0, sT1, sT2, sFFF8, sHI, sCNP, sOOB = range(20, 34)
    sM = 34
    sDN = 36
    sTG = 37
    sR6 = 38
    sMODE = 39
    puid = [0]
    def poll(vt, off, tgt, slp=None):
        puid[0] += 1
        SLP = cfg.get('k2_slp', 0) if slp is None else slp
        if SLP:
            a.e(f"s_branch K2_PM{puid[0]}")
        a.e(f"K2_PL{puid[0]}:")
        if SLP:
            a.e(f"s_sleep {SLP}")
            a.e(f"K2_PM{puid[0]}:")
        a.e(f"ds_read_b32 v{vt}, v{vZERO} offset:{off}")
        a.e("s_waitcnt lgkmcnt(0)")
        a.e(f"v_readfirstlane_b32 s{sT0}, v{vt}")
        a.e(f"s_cmp_lt_u32 s{sT0}, {tgt}")
        a.e(f"s_cbranch_scc1 K2_PL{puid[0]}")
    def signal(vone, off):
        a.e("s_mov_b64 exec, 1")
        a.e(f"ds_add_u32 v{vZERO}, v{vone} offset:{off}")
        a.e("s_mov_b64 exec, -1")
    MSK = 40
    sPT, sPA = 88, 91
    TRACE = cfg.get('trace', False)
    vTR = 127
    def stamp(i):
        if TRACE:
            if i < 0:
                a.e(f"s_mov_b32 s{sPA}, 0")
                a.e(f"v_mov_b32 v{vTR}, 0")
                i = 15
            a.e(f"s_memtime s[{sPT}:{sPT+1}]")
            a.e("s_waitcnt lgkmcnt(0)")
            a.e(f"s_andn2_b32 s{sPT}, s{sPT}, 15")
            a.e(f"s_or_b32 s{sPT}, s{sPT}, {i}")
            a.e(f"s_mov_b32 m0, s{sPA}")
            a.e(f"s_add_u32 s{sPA}, s{sPA}, 1")
            a.e(f"s_min_u32 s{sPA}, s{sPA}, 63")
            a.e(f"v_writelane_b32 v{vTR}, s{sPT}, m0")
    vLANE, vZERO = 1, 2
    T_ = 100

    a.e(f"s_cmp_ge_u32 s2, {NWG}")
    a.e("s_cbranch_scc1 K2_END")
    if cfg.get('rt'): a.e("s_memrealtime s[96:97]")
    stamp(-1)
    a.e(f"s_load_dwordx2 s[{S_WS}:{S_WS+1}], s[0:1], 104")
    a.e(f"s_mov_b32 s{S_WS+2}, {WS_BYTES}")
    a.e(f"s_mov_b32 s{S_WS+3}, 0x00020000")
    a.e(f"v_lshrrev_b32 v{T_}, 6, v0")
    a.e(f"v_and_b32 v{vLANE}, 63, v0")
    a.e(f"v_readfirstlane_b32 s{sWAVE}, v{T_}")
    a.e(f"s_and_b32 s{sB}, s2, 7")
    a.e(f"s_lshl_b32 s{sB}, s{sB}, 5")
    a.e(f"s_lshr_b32 s{sT0}, s2, 3")
    a.e(f"s_or_b32 s{sB}, s{sB}, s{sT0}")
    a.e(f"s_mov_b32 s{sHI}, 0xffff0000")
    a.e(f"s_mov_b32 s{sOOB}, 0x80000000")
    a.e(f"v_mov_b32 v{vZERO}, 0")
    a.e(f"s_cmp_ge_u32 s{sWAVE}, 8")
    a.e("s_cbranch_scc1 K2_CONS")

    vL12, vTB, vCN, vSCR, vFOUR, vL16 = range(3, 9)
    R = 10
    def P(c): return 18 + 4 * c
    U, KA, OLD = 50, 66, 82
    if PPRIO: a.e(f"s_setprio {PPRIO}")
    a.e(f"s_mov_b32 s{sT0}, {cfg.get('tile_s', TILE_B)}")
    a.e(f"v_mul_lo_u32 v{vTB}, v0, s{sT0}")
    RL = 20
    a.e(f"s_lshl_b32 s{sT0}, s{sB}, 4")
    a.e(f"v_mul_u32_u24 v{T_+1}, {REC_STR}, v0")
    a.e(f"v_add_u32 v{T_+1}, s{sT0}, v{T_+1}")
    a.e(f"s_mov_b32 s{sT0}, {REC_OFF}")
    a.e("s_waitcnt lgkmcnt(0)")
    a.e(f"buffer_load_dwordx4 {vr(RL,4)}, v{T_+1}, s[{S_WS}:{S_WS+3}], s{sT0} offen")
    a.e(f"buffer_load_dwordx4 {vr(RL+4,4)}, v{T_+1}, s[{S_WS}:{S_WS+3}], s{sT0} offen offset:16")
    a.e("s_barrier")
    a.e(f"v_mul_u32_u24 v{vL12}, 12, v{vLANE}")
    a.e(f"v_lshlrev_b32 v{vL16}, 4, v{vLANE}")
    a.e(f"v_mov_b32 v{vFOUR}, 4")
    a.e(f"v_min_u32 v{vCN}, 1, v{vLANE}")
    a.e(f"v_lshlrev_b32 v{vSCR}, 3, v0")
    a.e(f"v_add_u32 v{vSCR}, {K2_SCR}, v{vSCR}")
    a.e(f"v_mov_b32 v{T_+2}, 0")
    a.e(f"v_mov_b32 v{T_+3}, 0")
    a.e(f"ds_write_b64 v{vSCR}, {vr(T_+2,2)}")
    a.e(f"s_mov_b32 s{sTG}, 0")
    a.e(f"s_mov_b32 s{sDN}, 0")
    PZL = cfg.get('t5') and cfg.get('k2_pzl', 1)
    if PZL:
        a.e(f"s_lshl_b32 s{sMODE}, s{sB}, 15")
        a.e(f"s_add_u32 s{sMODE}, s{sMODE}, {XB_OFF}")
        for q in range(4): a.e(f"v_mov_b32 v{88+q}, -1")
        a.e(f"v_lshlrev_b32 v92, 4, v0")
    else: a.e(f"s_mov_b32 s{sMODE}, 0")
    def pzone(lab):
        a.e(f"s_and_b32 s{sT0}, s{sMODE}, 0x6000")
        a.e(f"s_cmp_eq_u32 s{sT0}, 0x6000")
        a.e(f"s_cbranch_scc1 {lab}")
        a.e(f"buffer_store_dwordx4 v[88:91], v92, s[{S_WS}:{S_WS+3}], s{sMODE} offen sc1")
        a.e(f"s_add_u32 s{sMODE}, s{sMODE}, 8192")
    for k in range(4):
        a.e(f"v_mov_b32 v{OLD+k}, 0")
    a.e(f"s_mov_b32 s{sJ}, 8")
    a.e(f"s_mov_b32 s{sWIN}, 0")
    a.e(f"s_mov_b32 s{sT0}, 0x05040100")
    a.e(f"s_mov_b32 s{sT1}, 0x07060302")
    a.e("s_waitcnt vmcnt(0) lgkmcnt(0)")
    for k in range(8):
        a.e(f"v_perm_b32 v{R+k}, v{RL+4+(k>>1)}, v{RL+(k>>1)}, s{sT1 if k & 1 else sT0}")
    if SPLIT:
        a.e(f"s_cmp_lt_u32 s{sB}, 128")
        a.e("s_cbranch_scc1 K2_NOSWAP")
        a.e(f"v_swap_b32 v{R+6}, v{R+7}")
        a.e("K2_NOSWAP:")
    stamp(0)

    def rotate():
        for k in range(7):
            a.e(f"v_mov_b32 v{R+k}, v{R+k+1}")
        a.e(f"v_mov_b32 v{R+7}, 0")
        a.e(f"s_sub_u32 s{sJ}, s{sJ}, 1")

    a.e("K2_PLOOP:")
    s_, e_, p0, n_, inc, S_, V_, x_, sl, y_, el = range(T_, T_ + 11)
    a.e(f"v_and_b32 v{s_}, 0xffff, v{R}")
    a.e(f"v_lshrrev_b32 v{e_}, 16, v{R}")
    a.e(f"v_lshrrev_b32 v{p0}, 1, v{s_}")
    a.e(f"v_add_u32 v{n_}, 1, v{e_}")
    a.e(f"v_cmp_gt_u32 s[{sM}:{sM+1}], v{e_}, v{s_}")
    a.e(f"v_lshrrev_b32 v{n_}, 1, v{n_}")
    a.e(f"v_sub_u32 v{n_}, v{n_}, v{p0}")
    a.e(f"v_cndmask_b32 v{n_}, 0, v{n_}, s[{sM}:{sM+1}]")
    a.e(f"v_mov_b32 v{inc}, v{n_}")
    dpp_scan(a, inc)
    a.e(f"v_readlane_b32 s{sTOT}, v{inc}, 63")
    a.e(f"s_cmp_lt_u32 s{sWIN}, s{sTOT}")
    a.e(f"s_cbranch_scc1 K2_FGO")
    a.e(f"s_cmp_eq_u32 s{sJ}, 0")
    a.e(f"s_cbranch_scc1 K2_FGO")
    rotate()
    a.e(f"s_mov_b32 s{sWIN}, 0")
    a.e(f"s_branch K2_PLOOP")
    a.e(f"K2_FGO:")
    a.e(f"v_subrev_u32 v{inc}, s{sWIN}, v{inc}")
    a.e(f"v_sub_u32 v{S_}, v{inc}, v{n_}")
    a.e(f"v_add_u32 v{el}, -1, v{inc}")
    if cfg.get('x_al'):
        a.e(f"v_mul_u32_u24 v{V_}, 3, v{p0}")
        a.e(f"v_and_b32 v{V_}, 0xffe0, v{V_}")
        a.e(f"v_add_u32 v{V_}, 2, v{V_}")
        a.e(f"v_mul_u32_u24 v{V_}, 21846, v{V_}")
        a.e(f"v_lshrrev_b32 v{V_}, 16, v{V_}")
        a.e(f"v_sub_u32 v{V_}, v{V_}, v{S_}")
    else:
        a.e(f"v_sub_u32 v{V_}, v{p0}, v{S_}")
    a.e(f"v_mad_i32_i24 v{V_}, v{V_}, 12, v{vTB}")
    a.e(f"v_cmp_le_i32 vcc, 0, v{S_}")
    a.e(f"v_and_b32 v{x_}, 1, v{s_}")
    a.e(f"s_and_b64 vcc, vcc, s[{sM}:{sM+1}]")
    a.e(f"v_max_i32 v{sl}, 0, v{S_}")
    a.e(f"v_cndmask_b32 v{x_}, 0, v{x_}, vcc")
    a.e(f"v_lshl_or_b32 v{x_}, v{x_}, 6, v{vCN}")
    a.e(f"v_and_b32 v{y_}, 1, v{e_}")
    a.e(f"v_lshlrev_b32 v{y_}, 7, v{y_}")
    def marker(val, slot, tmp):
        a.e(f"v_lshrrev_b32 v{tmp}, 3, v{slot}")
        a.e(f"v_and_b32 v{tmp}, 0x18, v{tmp}")
        a.e(f"v_lshlrev_b32 v{val}, v{tmp}, v{val}")
        a.e(f"v_lshrrev_b32 v{tmp}, 8, v{slot}")
        a.e(f"v_cmp_gt_u32 vcc, 512, v{slot}")
        a.e(f"v_and_b32 v{slot}, 63, v{slot}")
        a.e(f"v_sub_u32 v{slot}, v{slot}, v{vLANE}")
        a.e(f"v_lshl_add_u32 v{slot}, v{slot}, 1, v{tmp}")
        a.e(f"v_lshl_add_u32 v{slot}, v{slot}, 2, v{vSCR}")
    marker(x_, sl, s_)
    a.e(f"s_mov_b64 exec, vcc")
    a.e(f"ds_add_u32 v{sl}, v{x_}")
    a.e(f"s_mov_b64 exec, -1")
    marker(y_, el, s_)
    a.e(f"s_and_b64 exec, vcc, s[{sM}:{sM+1}]")
    a.e(f"ds_add_u32 v{el}, v{y_}")
    a.e(f"s_mov_b64 exec, -1")
    RAW, RW2, CN = T_ + 12, T_ + 14, T_ + 16
    AD = T_ + 18
    a.e(f"ds_read_b64 {vr(RAW,2)}, v{vSCR}")
    a.e(f"v_mov_b32 v{RW2}, 0")
    a.e(f"v_mov_b32 v{RW2+1}, 0")
    a.e(f"ds_write_b64 v{vSCR}, {vr(RW2,2)}")
    a.e(f"s_sub_u32 s{sT2}, s{sTOT}, s{sWIN}")
    a.e("s_waitcnt lgkmcnt(1)")
    for h in range(2):
        a.e(f"v_and_b32 v{CN+h}, 0x3f3f3f3f, v{RAW+h}")
    for h in range(2):
        a.e(f"v_lshlrev_b32 v{RW2+h}, 1, v{RAW+h}")
    mk = []
    for c in range(8):
        mk.append(f"v_cmp_le_i32_sdwa s[{MSK+4*c}:{MSK+4*c+1}], 0, sext(v{RW2+(c>>2)}) src0_sel:DWORD src1_sel:BYTE_{c&3}")
        mk.append(f"v_cmp_le_i32_sdwa s[{MSK+4*c+2}:{MSK+4*c+3}], 0, sext(v{RAW+(c>>2)}) src0_sel:DWORD src1_sel:BYTE_{c&3}")
    dp = [f"row_shr:{sh} row_mask:0xf bank_mask:0xf bound_ctrl:0" for sh in (1, 2, 4, 8)] + \
         ["row_bcast:15 row_mask:0xa bank_mask:0xf", "row_bcast:31 row_mask:0xc bank_mask:0xf"]
    for d_ in dp:
        for h in range(2):
            a.e(f"v_add_u32_dpp v{CN+h}, v{CN+h}, v{CN+h} {d_}")
        a.e(mk.pop(0))
    a.e(f"v_readlane_b32 s{sT0}, v{CN}, 63")
    a.e(f"v_readlane_b32 s{sT1}, v{CN+1}, 63")
    a.e(mk.pop(0)); a.e(mk.pop(0))
    a.e(f"s_mul_i32 s{sM}, s{sT0}, 0x01010101")
    a.e(f"s_lshl_b32 s{sT0}, s{sM}, 8")
    a.e(f"s_lshr_b32 s{sM}, s{sM}, 24")
    a.e(f"s_lshl_b32 s{sT1}, s{sT1}, 8")
    a.e(f"s_add_u32 s{sT1}, s{sT1}, s{sM}")
    a.e(f"s_mul_i32 s{sT1}, s{sT1}, 0x01010101")
    a.e(f"v_add_u32 v{CN}, s{sT0}, v{CN}")
    a.e(f"v_add_u32 v{CN+1}, s{sT1}, v{CN+1}")
    for c in range(8):
        a.e(f"v_lshlrev_b32_sdwa v{AD+c}, 2, v{CN+(c>>2)} dst_sel:DWORD dst_unused:UNUSED_PAD src0_sel:DWORD src1_sel:BYTE_{c&3}")
        a.e(f"ds_bpermute_b32 v{AD+c}, v{AD+c}, v{V_}")
    for m_ in mk: a.e(m_)
    a.e(f"v_mov_b32 v{s_}, s{sOOB}")
    a.e(f"v_add_u32 v{e_}, {768*4}, v{vL12}")
    for c in range(8):
        a.e(f"v_cmp_gt_i32 vcc, s{sT2}, v{vLANE}")
        a.e(f"s_sub_u32 s{sT2}, s{sT2}, 64")
        a.e(f"s_and_b64 s[{MSK+4*c}:{MSK+4*c+1}], s[{MSK+4*c}:{MSK+4*c+1}], vcc")
        a.e(f"s_and_b64 s[{MSK+4*c+2}:{MSK+4*c+3}], s[{MSK+4*c+2}:{MSK+4*c+3}], vcc")
        a.e(f"s_waitcnt lgkmcnt({7-c})")
        a.e(f"v_add_u32 v{AD+c}, v{AD+c}, v{vL12 if c < 4 else e_}")
        a.e(f"v_cndmask_b32 v{AD+c}, v{s_}, v{AD+c}, vcc")
        a.e(f"buffer_load_dwordx3 {vr(P(c),3)}, v{AD+c}, s[{S_WS}:{S_WS+3}], 0 offen offset:{768*(c&3)}")
    a.e(f"s_add_u32 s{sWIN}, s{sWIN}, 512")
    a.e(f"s_cmp_lt_u32 s{sWIN}, s{sTOT}")
    a.e(f"s_cbranch_scc1 K2_FDONE")
    a.e(f"s_mov_b32 s{sWIN}, 0")
    a.e(f"s_cmp_eq_u32 s{sJ}, 0")
    a.e(f"s_cbranch_scc1 K2_FDONE")
    rotate()
    a.e(f"K2_FDONE:")
    stamp(1)
    if 'k2_sprio' in cfg and cfg.get('k2_sprio_at', 0) == 2: a.e(f"s_setprio {cfg['k2_sprio']}")
    vPL = cfg.get('vpl', 86)
    poll(vPL, K2_FP, f"s{sTG}")
    a.e(f"s_add_u32 s{sTG}, s{sTG}, 32")
    a.e(f"s_cmp_lt_u32 s{sDN}, 0xff00")
    a.e(f"s_cselect_b32 s{sR6}, s{sTG}, s{sR6}")
    a.e(f"s_cmp_le_u32 s{sJ}, {1 if SPLIT else 0}")
    a.e(f"s_cselect_b32 s{sT0}, 0x100, 0")
    a.e(f"s_cmp_eq_u32 s{sJ}, 0")
    a.e(f"s_addc_u32 s{sT0}, s{sT0}, 0")
    a.e(f"s_lshl_b32 s{sT0}, s{sT0}, s{sWAVE}")
    a.e(f"v_mov_b32 v{vPL}, s{sT0}")
    for c in range(8):
        a.e(f"s_waitcnt vmcnt({7-c})")
        for h in range(2):
            i = 2 * c + h
            a.e(f"v_lshlrev_b32_sdwa v{KA+i}, 2, v{P(c)+2*h} dst_sel:DWORD dst_unused:UNUSED_PAD src0_sel:DWORD src1_sel:BYTE_1")
        for h in range(2):
            i = 2 * c + h
            a.e(f"s_mov_b64 exec, s[{MSK+2*i}:{MSK+2*i+1}]")
            a.e(f"ds_add_rtn_u32 v{U+i}, v{KA+i}, v{vFOUR}")
        if c < 7: a.e("s_mov_b64 exec, -1")
    a.e("s_mov_b64 exec, 1")
    a.e(f"ds_or_b32 v{vZERO}, v{vPL} offset:{K2_DN}")
    a.e(f"ds_add_u32 v{vZERO}, v{vFOUR} offset:{K2_FH}")
    a.e("s_mov_b64 exec, -1")
    stamp(2)
    if PZL:
        if PZL > 1:
            a.e(f"s_cmp_lt_u32 s{sTG}, {32*PZL}")
            a.e(f"s_cbranch_scc1 K2_PLH")
        pzone("K2_PLH")
    a.e(f"K2_PLH:")
    a.e(f"ds_read_b64 {vr(vPL,2)}, v{vZERO} offset:{K2_FH}")
    a.e("s_waitcnt lgkmcnt(0)")
    a.e(f"v_readfirstlane_b32 s{sT0}, v{vPL}")
    a.e(f"s_cmp_lt_u32 s{sT0}, s{sTG}")
    a.e(f"s_cbranch_scc1 K2_PLH")
    stamp(3)
    if 'k2_sprio' in cfg and cfg.get('k2_sprio_at', 0) == 0: a.e(f"s_setprio {cfg['k2_sprio']}")
    NW, CC, TT, BS = T_, T_ + 4, T_ + 8, T_ + 12
    a.e(f"ds_read_b128 {vr(NW,4)}, v{vL16}")
    signal(vFOUR, K2_FP)
    a.e(f"v_readfirstlane_b32 s{sDN}, v{vPL+1}")
    a.e("s_waitcnt lgkmcnt(1)")
    for k in range(4):
        a.e(f"v_sub_u32 v{CC+k}, v{NW+k}, v{OLD+k}")
    a.e(f"v_add_u32 v{TT}, v{CC}, v{CC+1}")
    a.e(f"v_add3_u32 v{TT}, v{TT}, v{CC+2}, v{CC+3}")
    a.e(f"v_sub_u32 v{TT+1}, {K2_SW}, v{TT}")
    dpp_scan(a, TT)
    a.e(f"v_add_u32 v{TT+1}, v{TT+1}, v{TT}")
    a.e(f"v_readlane_b32 s{sN}, v{TT}, 63")
    for k in range(4):
        a.e(f"v_sub_u32 v{BS+k}, v{TT+1}, v{OLD+k}")
        if k < 3:
            a.e(f"v_add_u32 v{TT+1}, v{TT+1}, v{CC+k}")
        a.e(f"v_mov_b32 v{OLD+k}, v{NW+k}")
    a.e(f"ds_write_b128 v{vL16}, {vr(BS,4)} offset:{K2_BASE}")
    for i in range(16):
        a.e(f"ds_read_b32 v{KA+i}, v{KA+i} offset:{K2_BASE}")
    a.e(f"s_sub_u32 s{sT1}, s{sTG}, 32")
    stamp(4)
    poll(vPL, K2_FR, f"s{sT1}")
    stamp(5)
    if 'k2_sprio' in cfg and cfg.get('k2_sprio_at', 0) == 1: a.e(f"s_setprio {cfg['k2_sprio']}")
    a.e(f"s_cmp_lg_u32 s{sWAVE}, 0")
    a.e(f"s_cbranch_scc1 K2_NOPAD")
    a.e(f"s_add_u32 s{sT0}, s{sN}, {K2_SW}")
    a.e(f"v_lshl_add_u32 v{TT}, v{vLANE}, 2, s{sT0}")
    a.e(f"v_mov_b32 v{TT+1}, {hex(DUMMY)}")
    a.e(f"ds_write_b32 v{TT}, v{TT+1}")
    a.e(f"v_lshrrev_b32 v{TT}, 1, v{TT}")
    a.e(f"v_cmp_gt_u32 vcc, {K2_SW//2 + 16384}, v{TT}")
    a.e(f"s_cmp_eq_u32 s{sDN}, 0xffff")
    a.e(f"s_addc_u32 s{sT0}, s{sN}, 0")
    a.e(f"v_mov_b32 v{TT+3}, s{sT0}")
    a.e(f"ds_write_b32 v{vZERO}, v{TT+3} offset:{K2_NCELL}")
    a.e(f"s_mov_b64 exec, vcc")
    if not cfg.get('x_nopad'): a.e(f"ds_write_b16 v{TT}, v{vZERO} offset:{K2_SA - K2_SW//2}")
    a.e(f"s_mov_b64 exec, -1")
    a.e("K2_NOPAD:")
    for i in range(16):
        a.e(f"v_add_u32 v{U+i}, v{U+i}, v{KA+i}")
        a.e(f"v_lshrrev_b32 v{KA+i}, 1, v{U+i}")
    for i in range(16):
        c, h = i >> 1, i & 1
        a.e(f"s_mov_b64 exec, s[{MSK+2*i}:{MSK+2*i+1}]")
        a.e(f"ds_write_b32 v{U+i}, v{P(c)+2*h}")
        a.e(f"ds_write_b16{'_d16_hi' if h else ''} v{KA+i}, v{P(c)+1} offset:{K2_SA - K2_SW//2}")
    signal(vFOUR, K2_FS)
    stamp(4)
    if 'k2_sprio' in cfg: a.e(f"s_setprio {PPRIO}")
    a.e(f"s_cmp_lg_u32 s{sDN}, 0xffff")
    a.e("s_cbranch_scc1 K2_PLOOP")

    def tail_old():
        a.e("K2_PTAIL:")
        a.e(f"s_setprio {cfg.get('k2_tprio', 2)}")
        S_W1, S_W2, S_C, S_D, S_MM = 40, 44, 48, 56, 60
        sGI, sEP, sEO, sLP, sLO, sK6 = 64, 66, 67, 68, 69, 70
        S_WA = 72
        S_WR = 92 if TRACE else 88
        sBI, sTOP = sJ, sWIN
        DI, WOP, AA, MM, GG = 10, 24, 32, 88, 8
        DB0, XX, RB, vOF, vCK = 104, 120, 28, 3, 126
        a.e(f"s_load_dwordx2 s[{S_D}:{S_D+1}], s[0:1], 24")
        a.e(f"s_load_dwordx2 s[{S_W2}:{S_W2+1}], s[0:1], 56")
        a.e(f"s_load_dwordx2 s[{S_W1}:{S_W1+1}], s[0:1], 64")
        a.e(f"s_load_dwordx2 s[{S_MM}:{S_MM+1}], s[0:1], 0")
        a.e(f"s_load_dwordx2 s[{S_X}:{S_X+1}], s[0:1], 80")
        a.e(f"s_load_dwordx2 s[{S_Y}:{S_Y+1}], s[0:1], 88")
        for sr_, n in ((S_D, E * 2), (S_W1, 128), (S_W2, 64), (S_MM, E * 8), (S_Y, E * 8)):
            a.e(f"s_mov_b32 s{sr_+2}, {n}")
            a.e(f"s_mov_b32 s{sr_+3}, 0x00020000")
        a.e(f"s_lshr_b32 s{sT0}, s{sB}, 7")
        a.e(f"s_and_b32 s{sT1}, s{sB}, 127")
        a.e(f"s_mul_i32 s{sLP}, s{sT0}, {EPB}")
        a.e(f"s_sub_u32 s{sLO}, {EPB}, s{sLP}")
        a.e(f"s_mul_i32 s{sT1}, s{sT1}, {2*EPB}")
        a.e(f"s_add_u32 s{sEP}, s{sT1}, s{sLP}")
        a.e(f"s_add_u32 s{sEO}, s{sT1}, s{sLO}")
        a.e(f"s_mov_b32 s{sBI}, 0x40004000")
        a.e(f"s_mov_b32 s{sTOP}, 0x80008000")
        for k in range(14):
            a.e(f"v_mov_b32 v{DI+k}, 0")
        for q in range(8):
            a.e(f"v_mov_b32 v{WOP+q}, 0")
        a.e(f"v_add_lshl_u32 v{XX+2}, v0, s{sEP}, 1")
        a.e(f"v_add_lshl_u32 v{XX+4}, v0, s{sEO}, 1")
        a.e(f"v_add_u32 v{XX+3}, 4096, v{XX+2}")
        a.e(f"v_add_u32 v{XX+5}, 4096, v{XX+4}")
        a.e(f"v_and_b32 v{DB0+1}, 3, v{vLANE}")
        a.e(f"v_lshlrev_b32 v{DB0+1}, 1, v{DB0+1}")
        a.e(f"v_and_or_b32 v{DB0}, v{vLANE}, 8, v{DB0+1}")
        a.e(f"v_lshlrev_b32 v{vOF+2}, 3, v0")
        a.e(f"v_mov_b32 v{DB0+2}, s{sOOB}")
        a.e(f"v_cmp_gt_u32 s[{sK6}:{sK6+1}], {EPB - 3072}, v0")
        a.e(f"v_lshlrev_b32 v{vOF}, 2, v{XX+4}")
        a.e(f"v_add_u32 v{vOF+1}, {6*4096}, v{vOF}")
        a.e(f"v_cndmask_b32 v{vOF+1}, v{DB0+2}, v{vOF+1}, s[{sK6}:{sK6+1}]")
        a.e(f"v_cndmask_b32 v{vOF+3}, v{DB0+2}, v{vOF+2}, s[{sK6}:{sK6+1}]")
        poll(XX, K2_GI, "1", 0)
        a.e(f"s_mov_b32 s{sGI}, s{sT0}")
        a.e(f"s_mov_b32 s{sGI+1}, s{sT0}")
        a.e(f"s_load_dwordx8 s[{S_WR}:{S_WR+7}], s[{S_X}:{S_X+1}], 0")
        a.vm = []
        for k in range(7):
            a.vmem(f"buffer_load_short_d16_hi v{DI+k}, v{XX+2+(k>>2)}, s[{S_D}:{S_D+3}], 0 offen offset:{(k&3)*1024}", ('D', k))
        a.e(f"s_mov_b32 exec_lo, 0x00000f0f")
        a.e(f"s_mov_b32 exec_hi, 0x0000f0f0")
        for r in range(8):
            a.vmem(f"buffer_load_short_d16{'_hi' if r & 1 else ''} v{WOP+(r>>1)+4*(r&1)}, v{DB0}, s[{S_W1}:{S_W1+3}], 0 offen offset:{16*r}", 'W')
        a.e(f"s_mov_b32 exec_lo, 0x000f0000")
        a.e(f"s_mov_b32 exec_hi, 0x00f00000")
        for r in range(8):
            a.vmem(f"buffer_load_short_d16{'_hi' if r & 1 else ''} v{WOP+(r>>1)+4*(r&1)}, v{DB0+1}, s[{S_W2}:{S_W2+3}], 0 offen offset:{8*r}", 'W')
        a.e(f"s_mov_b64 exec, -1")
        for k in range(7):
            a.vmem(f"buffer_load_short_d16_hi v{DI+7+k}, v{XX+4+(k>>2)}, s[{S_D}:{S_D+3}], 0 offen offset:{(k&3)*1024}", ('D', 7 + k))
        for k in range(7):
            a.e(f"s_mov_b32 s{sT0}, {4096*k if k < 6 else 0}")
            a.vmem(f"buffer_load_dwordx2 {vr(MM+2*k,2)}, v{vOF + (k == 6)}, s[{S_MM}:{S_MM+3}], s{sT0} offen", 'M')
        for r in range(8):
            a.e(f"s_mov_b32 s{S_C+r}, {f2h(-KAP * h2f(CENTERS[r]))}")
        a.e(f"s_add_u32 s{sR6}, s{sR6}, 64")
        a.wvm('W')
        for q in range(4):
            a.e(f"v_or_b32 v{WOP+q}, v{WOP+q}, v{WOP+4+q}")
        def rbf(dv, X):
            a.e(f"v_mul_f32 v{102}, {f2h(KAP)}, v{dv}")
            for q in range(4):
                a.e(f"v_pk_add_f32 {vr(X+2*q,2)}, {vr(102,2)}, s[{S_C+2*q}:{S_C+2*q+1}] op_sel_hi:[0,1]")
            for q in range(4):
                a.e(f"v_pk_mul_f32 {vr(X+2*q,2)}, {vr(X+2*q,2)}, {vr(X+2*q,2)}")
            for r in range(8):
                a.e(f"v_exp_f32 v{X+r}, -v{X+r}")
        def acomp(base, own, hook=None):
            rbf(base, AA)
            for k in range(7):
                X = AA + 8 * k
                for q in range(4):
                    a.e(f"v_cvt_pk_bf16_f32 v{RB+q}, v{X+2*q}, v{X+2*q+1}")
                if not cfg.get('x_nomfma'): a.e(f"v_mfma_f32_32x32x16_bf16 {vr(DB0,16)}, {vr(WOP,4)}, {vr(RB,4)}, 0")
                if k < 6: rbf(base + k + 1, X + 8)
                for d in range(4):
                    a.e(f"v_pk_mul_f32 {vr(X+2*d,2)}, {vr(DB0+2*d,2)}, s[{sGI}:{sGI+1}]")
                if own:
                    for q in range(2):
                        a.e(f"v_cvt_pk_bf16_f32 v{GG+2*k+q}, v{DB0+8+2*q}, v{DB0+9+2*q}")
                if hook: hook(k)
        a.e(f"s_cmp_lg_u32 s{sMODE}, 0")
        a.e("s_cbranch_scc1 K2_TOWN")
        acomp(DI, False)
        stamp(11)
        a.e(f"v_and_b32 v{XX+1}, 7, v{vLANE}")
        a.e(f"v_lshlrev_b32 v{XX+1}, 2, v{XX+1}")
        a.e(f"v_add_lshl_u32 v{XX+2}, v0, s{sLP}, 3")
        a.e(f"v_add_u32 v{XX+3}, {STR2}, v{XX+2}")
        a.e(f"s_mul_i32 s{sT2}, s{sB}, {XB_STR}")
        a.e(f"s_add_u32 s{sT2}, s{sT2}, {XB_OFF}")
        a.wvm0()
        a.e("s_branch K2_FD1")
        a.e("K2_FD0:")
        a.e(f"s_sleep {cfg.get('k2_fdslp', 2)}")
        a.e("K2_FD1:")
        a.e(f"ds_read_b32 v{XX}, v{XX+1} offset:{K2C_FD}")
        a.e("s_waitcnt lgkmcnt(0)")
        a.e(f"v_cmp_gt_u32 vcc, s{sR6}, v{XX}")
        a.e("s_cbranch_vccnz K2_FD0")
        a.e("s_setprio 3")
        stamp(12)
        a.lg = []
        a.lds(f"ds_read_b32 v{vCK}, v{vZERO} offset:{K2_VI}", 'V')
        def sread(k, dst):
            for q in range(2):
                a.lds(f"ds_read_b64 {vr(dst+2*q,2)}, v{XX+2+q} offset:{ACC + 4096*k}", ('S', k))
        def agg(k, S, tmp, init):
            X = AA + 8 * k
            if k == 6: a.e(f"s_mov_b64 exec, s[{sK6}:{sK6+1}]")
            a.e(f"v_or3_b32 v{vCK}, v{vCK}, v{S}, v{S+1}")
            a.e(f"v_or3_b32 v{vCK}, v{vCK}, v{S+2}, v{S+3}")
            if k == 6: a.e(f"s_mov_b64 exec, -1")
            for q in range(4):
                a.e(f"v_pk_sub_i16 v{S+q}, v{S+q}, s{sBI}")
            for d in range(4):
                a.e(f"v_cvt_f32_i32_sdwa v{tmp+d}, sext(v{S+(d>>1)}) dst_sel:DWORD dst_unused:UNUSED_PAD src0_sel:WORD_{d&1}")
            for q in range(2):
                if init:
                    a.e(f"v_pk_fma_f32 {vr(RB+2*q,2)}, {vr(X+2*q,2)}, {vr(tmp+2*q,2)}, {vr(RB+2*q,2)}")
                else:
                    a.e(f"v_pk_mul_f32 {vr(RB+2*q,2)}, {vr(X+2*q,2)}, {vr(tmp+2*q,2)}")
            for d in range(4):
                a.e(f"v_cvt_f32_i32_sdwa v{X+d}, sext(v{S+2+(d>>1)}) dst_sel:DWORD dst_unused:UNUSED_PAD src0_sel:WORD_{d&1}")
            for q in range(2):
                a.e(f"v_pk_fma_f32 {vr(RB+2*q,2)}, {vr(X+4+2*q,2)}, {vr(X+2*q,2)}, {vr(RB+2*q,2)}")
        for k in range(3): sread(k, DB0 + 4 * k)
        for k in range(7):
            if k + 3 < 7: sread(k + 3, DB0 + 4 * ((k + 3) % 4))
            a.wlg(('S', k))
            agg(k, DB0 + 4 * (k % 4), 8, False)
            a.e(f"v_cvt_pk_bf16_f32 v{AA+8*k}, v{RB}, v{RB+1}")
            a.e(f"v_cvt_pk_bf16_f32 v{AA+8*k+1}, v{RB+2}, v{RB+3}")
            a.vmem(f"buffer_store_dwordx2 {vr(AA+8*k,2)}, v{vOF+2+(k == 6)}, s[{S_WS}:{S_WS+3}], s{sT2} offen sc1", 'X')
            a.e(f"s_add_u32 s{sT2}, s{sT2}, 4096")
        a.e(f"s_setprio {cfg.get('k2_tprio', 2)}")
        a.e(f"v_and_b32 v{vCK}, s{sTOP}, v{vCK}")
        a.e(f"v_cmp_ne_u32 vcc, 0, v{vCK}")
        a.e(f"s_cmp_lg_u64 vcc, 0")
        a.e(f"s_cselect_b32 s{sT0}, 0x8004, 4")
        a.e(f"v_mov_b32 v{vFOUR}, s{sT0}")
        stamp(13)
        a.e(f"s_lshl_b32 s{sT1}, s{sWAVE}, 4")
        a.e(f"s_add_u32 s{sT1}, s{sT1}, {FL_OFF}")
        a.e(f"s_lshl_b32 s{sT2}, s{sB}, 7")
        a.e(f"s_add_u32 s{sEP}, s{sT1}, s{sT2}")
        a.e(f"s_xor_b32 s{sT2}, s{sT2}, {128 << 7}")
        a.e(f"s_add_u32 s{sLP}, s{sT1}, s{sT2}")
        a.e("K2_TOWN:")
        FLK = cfg.get('k2_flk', 1)
        def flag(k):
            if k == FLK:
                a.wvm0()
                a.e(f"s_cmp_lg_u32 s{sMODE}, 0")
                a.e("s_cbranch_scc1 K2_NOFLAG")
                a.e("s_mov_b64 exec, 1")
                a.e(f"buffer_store_dword v{vFOUR}, v{vZERO}, s[{S_WS}:{S_WS+3}], s{sEP} offen sc1")
                a.e("s_mov_b64 exec, -1")
                a.e("K2_NOFLAG:")
        DO2 = 120
        a.e("s_waitcnt vmcnt(7)")
        for k in range(7):
            a.e(f"v_mov_b32 v{DO2+k}, v{DI+7+k}")
        if FLK < 0: flag(FLK)
        acomp(DO2, True, flag)
        a.e("s_waitcnt lgkmcnt(0)")
        for d in range(4):
            for h in range(2):
                src = S_WR + 2 * d + h
                a.e(f"s_lshl_b32 s{S_WA+4*d+2*h}, s{src}, 16")
                a.e(f"s_and_b32 s{S_WA+4*d+2*h+1}, s{src}, s{sHI}")
        a.e(f"s_cmp_lg_u32 s{sMODE}, 0")
        a.e("s_cbranch_scc1 K2_SFIN")
        stamp(14)
        a.e(f"s_mov_b32 s{sT0}, {1 << 14}")
        a.e(f"s_xor_b32 s{sT2}, s{sB}, 128")
        a.e(f"s_mul_i32 s{sT2}, s{sT2}, {XB_STR}")
        a.e(f"s_add_u32 s{sT2}, s{sT2}, {XB_OFF}")
        a.e("s_branch K2_FL1")
        a.e("K2_FL0:")
        a.e(f"s_sleep {cfg.get('k2_flslp', 4)}")
        a.e(f"v_mov_b32 v{vCK}, 0x8000")
        a.e(f"s_sub_u32 s{sT0}, s{sT0}, 1")
        a.e("s_cbranch_scc1 K2_FL2")
        a.e("K2_FL1:")
        a.e(f"buffer_load_dword v{vCK}, v{vZERO}, s[{S_WS}:{S_WS+3}], s{sLP} offen sc1")
        a.e("s_waitcnt vmcnt(0)")
        a.e(f"v_cmp_eq_u32 vcc, 0, v{vCK}")
        a.e("s_cbranch_vccnz K2_FL0")
        a.e("K2_FL2:")
        a.e("s_setprio 3")
        PP = [22, 24, 26, 102, 116, 118, 124]
        for k in range(7):
            a.e(f"buffer_load_dwordx2 {vr(PP[k],2)}, v{vOF+2+(k == 6)}, s[{S_WS}:{S_WS+3}], s{sT2} offen sc1")
            a.e(f"s_add_u32 s{sT2}, s{sT2}, 4096")
        a.e(f"v_add_lshl_u32 v{XX+2}, v0, s{sLO}, 3")
        a.e(f"v_add_u32 v{XX+3}, {STR2}, v{XX+2}")
        stamp(6)
        a.e("s_barrier")
        stamp(7)
        def unpack(dst, src):
            a.e(f"v_lshlrev_b32 v{dst}, 16, v{src}")
            a.e(f"v_and_b32 v{dst+1}, s{sHI}, v{src}")
            a.e(f"v_lshlrev_b32 v{dst+2}, 16, v{src+1}")
            a.e(f"v_and_b32 v{dst+3}, s{sHI}, v{src+1}")
        def finish(k):
            X = AA + 8 * k
            a.e(f"v_mov_b32 v{DB0+8}, v{RB+1}")
            a.e(f"v_mov_b32 v{DB0+10}, v{RB+3}")
            unpack(X + 4, GG + 2 * k)
            for d in range(4):
                src = RB + d if d % 2 == 0 else DB0 + 7 + d
                for q in range(2):
                    w = f"s[{S_WA+4*d+2*q}:{S_WA+4*d+2*q+1}]"
                    if d == 0:
                        a.e(f"v_pk_mul_f32 {vr(X+2*q,2)}, {vr(RB,2)}, {w} op_sel_hi:[0,1]")
                    else:
                        a.e(f"v_pk_fma_f32 {vr(X+2*q,2)}, {vr(src,2)}, {w}, {vr(X+2*q,2)} op_sel_hi:[0,1,1]")
            unpack(RB, MM + 2 * k)
            for q in range(2):
                a.e(f"v_pk_fma_f32 {vr(X+2*q,2)}, {vr(X+2*q,2)}, {vr(X+4+2*q,2)}, {vr(RB+2*q,2)}")
            a.e(f"v_cvt_pk_bf16_f32 v{MM+2*k}, v{X}, v{X+1}")
            a.e(f"v_cvt_pk_bf16_f32 v{MM+2*k+1}, v{X+2}, v{X+3}")
            a.e(f"s_mov_b32 s{sT0}, {4096*k if k < 6 else 0}")
            a.e(f"buffer_store_dwordx2 {vr(MM+2*k,2)}, v{vOF + (k == 6)}, s[{S_Y}:{S_Y+3}], s{sT0} offen")
        a.lg = []
        sread(0, DB0)
        for k in range(7):
            if k + 1 < 7: sread(k + 1, DB0 + 4 * ((k + 1) & 1))
            if k == 0: a.wvm0()
            unpack(RB, PP[k])
            a.wlg(('S', k))
            agg(k, DB0 + 4 * (k & 1), DB0 + 8, True)
            finish(k)
        a.e(f"v_and_b32 v{vCK}, s{sTOP}, v{vCK}")
        a.e(f"v_cmp_ne_u32 vcc, 0, v{vCK}")
        a.e(f"s_and_b64 exec, exec, vcc")
        a.e(f"ds_or_b32 v{vZERO}, v{vCK} offset:{K2_VI}")
        a.e(f"s_mov_b64 exec, -1")
        a.e("s_waitcnt lgkmcnt(0)")
        a.e("s_barrier")
        a.e(f"ds_read_b32 v{vCK}, v{vZERO} offset:{K2_VI}")
        a.e("s_waitcnt lgkmcnt(0)")
        a.e(f"v_cmp_ne_u32 vcc, 0, v{vCK}")
        a.e("s_cbranch_vccz K2_FIN")
        a.e(f"s_mov_b32 s{sMODE}, 1")
        a.e("s_barrier")
        a.e("s_waitcnt vmcnt(0)")
        a.e("s_barrier")
        a.e("s_branch K2_PTAIL")
        a.e("K2_SFIN:")
        a.e(f"v_lshlrev_b32 v{XX+2}, 2, v0")
        a.e(f"v_add_u32 v{XX+3}, {STR2}, v{XX+2}")
        for k in range(7):
            X = AA + 8 * k
            for q in range(8):
                a.e(f"ds_read_b32 v{DB0+q}, v{XX+2+(q>>2)} offset:{ACC + (q&3)*ACC_STR + 2048*k}")
            a.e("s_waitcnt lgkmcnt(0)")
            for q in range(8):
                a.e(f"v_cvt_f32_i32 v{DB0+q}, v{DB0+q}")
            for q in range(2):
                a.e(f"v_pk_mul_f32 {vr(RB+2*q,2)}, {vr(X+2*q,2)}, {vr(DB0+2*q,2)}")
            for q in range(2):
                a.e(f"v_pk_fma_f32 {vr(RB+2*q,2)}, {vr(X+4+2*q,2)}, {vr(DB0+4+2*q,2)}, {vr(RB+2*q,2)}")
            finish(k)
        a.e("s_branch K2_FIN")
    def unpack(dst, src):
        a.e(f"v_lshlrev_b32 v{dst}, 16, v{src}")
        a.e(f"v_and_b32 v{dst+1}, s{sHI}, v{src}")
        a.e(f"v_lshlrev_b32 v{dst+2}, 16, v{src+1}")
        a.e(f"v_and_b32 v{dst+3}, s{sHI}, v{src+1}")
    T5 = cfg.get('t5', False)
    XBS = 32768 if T5 else 7 * 8192
    S_W1, S_W2, S_C, S_D, S_MM = 52, 56, 8, 60, 64
    sGI, sK6, S_WA = 68, 70, 72
    S_WR = 92 if TRACE else 88
    sLP, sLO, sOM, sXS, sXR, sTOP = sJ, sWIN, sTOT, sDN, sR6, sOOB
    def t4_setup(tid, T, WOP, dregs, SC, pre=None):
        a.e(f"s_load_dwordx2 s[{S_D}:{S_D+1}], s[0:1], 24")
        a.e(f"s_load_dwordx2 s[{S_W2}:{S_W2+1}], s[0:1], 56")
        a.e(f"s_load_dwordx2 s[{S_W1}:{S_W1+1}], s[0:1], 64")
        a.e(f"s_load_dwordx2 s[{S_MM}:{S_MM+1}], s[0:1], 0")
        a.e(f"s_load_dwordx2 s[{S_WA}:{S_WA+1}], s[0:1], 80")
        a.e(f"s_load_dwordx2 s[{S_Y}:{S_Y+1}], s[0:1], 88")
        for sr_, n in ((S_D, E * 2), (S_W1, 128), (S_W2, 64), (S_MM, E * 8), (S_Y, E * 8)):
            a.e(f"s_mov_b32 s{sr_+2}, {n}")
            a.e(f"s_mov_b32 s{sr_+3}, 0x00020000")
        a.e(f"s_lshr_b32 s{sT0}, s{sB}, 7")
        a.e(f"s_and_b32 s{sT1}, s{sB}, 127")
        a.e(f"s_mul_i32 s{sLP}, s{sT0}, {EPB}")
        a.e(f"s_sub_u32 s{sLO}, {EPB}, s{sLP}")
        a.e(f"s_mul_i32 s{sT1}, s{sT1}, {2*EPB}")
        a.e(f"s_lshl_b32 s{sOM}, s{sT1}, 3")
        a.e(f"s_add_u32 s{sT1}, s{sT1}, s{sLO}")
        a.e(f"s_mul_i32 s{sXS}, s{sB}, {XBS}")
        a.e(f"s_add_u32 s{sXS}, s{sXS}, {XB_OFF}")
        a.e(f"s_xor_b32 s{sT2}, s{sB}, 128")
        a.e(f"s_mul_i32 s{sXR}, s{sT2}, {XBS}")
        a.e(f"s_add_u32 s{sXR}, s{sXR}, {XB_OFF}")
        a.e(f"s_mov_b32 s{sTOP}, 0x80008000")
        for k, r_ in dregs: a.e(f"v_mov_b32 v{r_}, 0")
        for q in range(8): a.e(f"v_mov_b32 v{WOP+q}, 0")
        a.e(f"v_add_lshl_u32 v{T+2}, v{tid}, s{sT1}, 1")
        a.e(f"v_add_u32 v{T+3}, 4096, v{T+2}")
        a.e(f"v_and_b32 v{T+1}, 3, v{tid}")
        a.e(f"v_lshlrev_b32 v{T+1}, 1, v{T+1}")
        a.e(f"v_and_or_b32 v{T}, v{tid}, 8, v{T+1}")
        a.e(f"v_cmp_gt_u32 s[{sK6}:{sK6+1}], {EPB - 3072}, v{tid}")
        if pre: pre()
        a.e("s_waitcnt lgkmcnt(0)")
        a.e(f"s_load_dwordx8 s[{S_WR}:{S_WR+7}], s[{S_WA}:{S_WA+1}], 0")
        for k, r_ in dregs:
            a.e(f"buffer_load_short_d16_hi v{r_}, v{T+2+(k>>2)}, s[{S_D}:{S_D+3}], 0 offen offset:{(k&3)*1024}")
        a.e(f"s_mov_b32 exec_lo, 0x00000f0f")
        a.e(f"s_mov_b32 exec_hi, 0x0000f0f0")
        for r in range(8):
            a.e(f"buffer_load_short_d16{'_hi' if r & 1 else ''} v{WOP+(r>>1)+4*(r&1)}, v{T}, s[{S_W1}:{S_W1+3}], 0 offen offset:{16*r}")
        a.e(f"s_mov_b32 exec_lo, 0x000f0000")
        a.e(f"s_mov_b32 exec_hi, 0x00f00000")
        for r in range(8):
            a.e(f"buffer_load_short_d16{'_hi' if r & 1 else ''} v{WOP+(r>>1)+4*(r&1)}, v{T+1}, s[{S_W2}:{S_W2+3}], 0 offen offset:{8*r}")
        a.e(f"s_mov_b64 exec, -1")
    def t4_consts(WOP, SC, dst=None):
        for q in range(4):
            a.e(f"v_or_b32 v{(WOP if dst is None else dst)+q}, v{WOP+q}, v{WOP+4+q}")
        for r in range(8):
            a.e(f"s_mov_b32 s{SC+r}, {f2h(-KAP * h2f(CENTERS[r]))}")
        for d in range(4):
            for h in range(2):
                src = S_WR + 2 * d + h
                a.e(f"s_lshl_b32 s{S_WA+4*d+2*h}, s{src}, 16")
                a.e(f"s_and_b32 s{S_WA+4*d+2*h+1}, s{src}, s{sHI}")
    def t4_acomp(items, KD, DB0, WOP, RB, SC):
        def rbf(X):
            a.e(f"v_mul_f32 v{KD}, {f2h(KAP)}, v{X}")
            for q in range(4):
                a.e(f"v_pk_add_f32 {vr(X+2*q,2)}, {vr(KD,2)}, s[{SC+2*q}:{SC+2*q+1}] op_sel_hi:[0,1]")
            for q in range(4):
                a.e(f"v_pk_mul_f32 {vr(X+2*q,2)}, {vr(X+2*q,2)}, {vr(X+2*q,2)}")
            for r in range(8):
                a.e(f"v_exp_f32 v{X+r}, -v{X+r}")
        rbf(items[0][0])
        for i, (X, G) in enumerate(items):
            for q in range(4):
                a.e(f"v_cvt_pk_bf16_f32 v{RB+q}, v{X+2*q}, v{X+2*q+1}")
            a.e(f"v_mfma_f32_32x32x16_bf16 {vr(DB0,16)}, {vr(WOP,4)}, {vr(RB,4)}, 0")
            if i + 1 < len(items): rbf(items[i+1][0])
            for d in range(4):
                a.e(f"v_pk_mul_f32 {vr(X+2*d,2)}, {vr(DB0+2*d,2)}, s[{sGI}:{sGI+1}]")
            for q in range(2 if G is not None else 0):
                a.e(f"v_cvt_pk_bf16_f32 v{G+q}, v{DB0+8+2*q}, v{DB0+9+2*q}")
    def t4_fin(X, GU, MU, RB, T, soff, vO):
        a.e(f"v_mov_b32 v{T}, v{RB+1}")
        a.e(f"v_mov_b32 v{T+2}, v{RB+3}")
        for d in (0, 2, 1, 3):
            src = RB + d if d % 2 == 0 else T - 1 + d
            for q in range(2):
                w = f"s[{S_WA+4*d+2*q}:{S_WA+4*d+2*q+1}]"
                if d == 0:
                    a.e(f"v_pk_mul_f32 {vr(X+2*q,2)}, {vr(RB,2)}, {w} op_sel_hi:[0,1]")
                else:
                    a.e(f"v_pk_fma_f32 {vr(X+2*q,2)}, {vr(src,2)}, {w}, {vr(X+2*q,2)} op_sel_hi:[0,1,1]")
        for q in range(2):
            a.e(f"v_pk_fma_f32 {vr(X+2*q,2)}, {vr(X+2*q,2)}, {vr(GU+2*q,2)}, {vr(MU+2*q,2)}")
        a.e(f"v_cvt_pk_bf16_f32 v{MU}, v{X}, v{X+1}")
        a.e(f"v_cvt_pk_bf16_f32 v{MU+1}, v{X+2}, v{X+3}")
        a.e(f"buffer_store_dwordx2 {vr(MU,2)}, v{vO}, s[{S_Y}:{S_Y+3}], {soff} offen")
    def t4_addr(tid, V):
        a.e(f"v_add_lshl_u32 v{V[0]}, v{tid}, s{sLP}, 3")
        a.e(f"v_add_lshl_u32 v{V[2]}, v{tid}, s{sLO}, 3")
        a.e(f"v_lshlrev_b32 v{V[4]}, {3 if T5 else 4}, v{tid}")
        a.e(f"v_add_u32 v{V[1]}, {STR2}, v{V[0]}")
        a.e(f"v_add_u32 v{V[3]}, {STR2}, v{V[2]}")
    def t4_mload(ks, M2, V):
        for k in ks:
            a.e(f"s_add_u32 s{sT0}, s{sOM}, {4096*k}")
            if k == 6: a.e(f"s_mov_b64 exec, s[{sK6}:{sK6+1}]")
            a.e(f"buffer_load_dwordx2 {vr(M2[k],2)}, v{V[2]}, s[{S_MM}:{S_MM+3}], s{sT0} offen")
            if k == 6: a.e(f"s_mov_b64 exec, -1")
    def t4_post(tg, ks, X, GU, MU, SO, PP, RB, V, vCK, mid=None):
        def m6(k, on):
            if k == 6: a.e(f"s_mov_b64 exec, s[{sK6}:{sK6+1}]" if on else "s_mov_b64 exec, -1")
        a.e("s_setprio 3")
        a.e("s_waitcnt lgkmcnt(0)")
        a.e("s_barrier")
        stamp(12)
        a.lg = []
        a.lds(f"ds_read_b32 v{vCK}, v{vZERO} offset:{K2_VI}", 'V')
        for k in ks:
            for q in range(2):
                a.lds(f"ds_read_b64 {vr(PP[k]+2*q,2)}, v{V[q]} offset:{ACC + 4096*k}", ('S', k))
        for k in ks:
            m6(k, 1)
            for q in range(2):
                a.lds(f"ds_read_b64 {vr(SO[k]+2*q,2)}, v{V[2+q]} offset:{ACC + 4096*k}", ('O', k))
            m6(k, 0)
        for k in ks:
            a.e(f"s_add_u32 s{sT0}, s{sXS}, {8192*k}")
            a.wlg(('S', k))
            if k == ks[0]: a.e(f"v_or_b32 v{PP[k]}, v{PP[k]}, v{vCK}")
            m6(k, 1)
            a.e(f"buffer_store_dwordx4 {vr(PP[k],4)}, v{V[4]}, s[{S_WS}:{S_WS+3}], s{sT0} offen sc1")
            m6(k, 0)
        stamp(13)
        a.e(f"v_readfirstlane_b32 s{sT2}, v{vCK}")
        if mid: mid()
        if 6 in ks:
            for q in range(4): a.e(f"v_mov_b32 v{PP[6]+q}, 0")
        a.wlg0()
        for k in ks:
            for q in range(2):
                a.e(f"v_or3_b32 v{vCK}, v{vCK}, v{SO[k]+2*q}, v{SO[k]+2*q+1}")
            for q in range(4):
                a.e(f"v_xor_b32 v{SO[k]+q}, s{sTOP}, v{SO[k]+q}")
        a.e(f"v_and_b32 v{vCK}, s{sTOP}, v{vCK}")
        a.e(f"s_mov_b32 s{sT1}, {1 << 14}")
        a.e(f"s_cmp_lg_u32 s{sT2}, 0")
        a.e(f"s_cbranch_scc1 K2_TE{tg}")
        if cfg.get('k2_w1', 1): a.e("s_waitcnt vmcnt(0)")
        stamp(14)
        a.e(f"K2_PW{tg}:")
        for k in ks:
            a.e(f"s_add_u32 s{sT0}, s{sXR}, {8192*k}")
            m6(k, 1)
            a.e(f"buffer_load_dwordx4 {vr(PP[k],4)}, v{V[4]}, s[{S_WS}:{S_WS+3}], s{sT0} offen sc1")
            m6(k, 0)
        a.e("s_waitcnt vmcnt(0)")
        for i, k in enumerate(ks):
            a.e(f"v_or3_b32 v{RB}, v{PP[k]}, v{PP[k]+1}, {'v%d' % RB if i else 0}")
            a.e(f"v_or3_b32 v{RB}, v{PP[k]+2}, v{PP[k]+3}, v{RB}")
        a.e(f"v_and_b32 v{RB}, s{sTOP}, v{RB}")
        a.e(f"v_cmp_ne_u32 vcc, 0, v{RB}")
        a.e(f"s_cbranch_vccnz K2_PR{tg}")
        stamp(7)
        for k in ks:
            S_ = PP[k]
            if k == 6:
                a.e(f"s_cmp_lg_u32 s{sWAVE}, 0")
                a.e(f"s_cbranch_scc1 K2_TE{tg}")
            m6(k, 1)
            for q in range(4):
                a.e(f"v_pk_add_u16 v{S_+q}, v{S_+q}, v{SO[k]+q}")
            for d in range(4):
                a.e(f"v_cvt_f32_i32_sdwa v{RB+d}, sext(v{S_+(d>>1)}) dst_sel:DWORD dst_unused:UNUSED_PAD src0_sel:WORD_{d&1}")
            for d in range(4):
                a.e(f"v_cvt_f32_i32_sdwa v{SO[k]+d}, sext(v{S_+2+(d>>1)}) dst_sel:DWORD dst_unused:UNUSED_PAD src0_sel:WORD_{d&1}")
            for q in range(2):
                a.e(f"v_pk_mul_f32 {vr(RB+2*q,2)}, {vr(X[k]+2*q,2)}, {vr(RB+2*q,2)}")
            a.e(f"s_add_u32 s{sT0}, s{sOM}, {4096*k}")
            for q in range(2):
                a.e(f"v_pk_fma_f32 {vr(RB+2*q,2)}, {vr(X[k]+4+2*q,2)}, {vr(SO[k]+2*q,2)}, {vr(RB+2*q,2)}")
            t4_fin(X[k], GU[k], MU[k], RB, S_, f"s{sT0}", V[2])
            m6(k, 0)
        a.e(f"K2_TE{tg}:")
        stamp(9)
        vTRq = vTR
        a.e(f"v_cmp_ne_u32 vcc, 0, v{vCK}")
        a.e(f"s_and_b64 exec, exec, vcc")
        a.e(f"ds_or_b32 v{vZERO}, v{vCK} offset:{K2_VI}")
        a.e(f"s_mov_b64 exec, -1")
        a.e("s_waitcnt lgkmcnt(0)")
        def retry():
            a.e(f"K2_PR{tg}:")
            for i, k in enumerate(ks):
                a.e(f"v_max3_u32 v{RB}, v{PP[k]}, v{PP[k]+1}, {'v%d' % RB if i else 0}")
                a.e(f"v_max3_u32 v{RB}, v{PP[k]+2}, v{PP[k]+3}, v{RB}")
            a.e(f"v_cmp_eq_u32 vcc, -1, v{RB}")
            a.e(f"s_cbranch_vccz K2_PV{tg}")
            if cfg.get('k2_prslp', 0): a.e(f"s_sleep {cfg['k2_prslp']}")
            nonlocal vTR
            sv = vTR; vTR = vTRq
            stamp(8)
            vTR = sv
            a.e(f"s_sub_u32 s{sT1}, s{sT1}, 1")
            a.e(f"s_cbranch_scc0 K2_PW{tg}")
            a.e(f"K2_PV{tg}:")
            a.e(f"v_mov_b32 v{vCK}, 0x8000")
            a.e(f"s_branch K2_TE{tg}")
        return retry
    def t5_dist(ks, X, vA, tmp):
        a.e(f"v_lshrrev_b32 v{tmp}, 2, v{vA}")
        for k in ks: a.e(f"v_mov_b32 v{X[k]}, 0")
        a.e(f"s_lshr_b32 s{sT1}, s{sOM}, 2")
        for k in ks:
            a.e(f"s_add_u32 s{sT0}, s{sT1}, {1024*k}")
            if k == 6: a.e(f"s_mov_b64 exec, s[{sK6}:{sK6+1}]")
            a.e(f"buffer_load_short_d16_hi v{X[k]}, v{tmp}, s[{S_D}:{S_D+3}], s{sT0} offen")
            if k == 6: a.e(f"s_mov_b64 exec, -1")
    def t5_agg(X, S, RB, out, sBI):
        for q in range(4):
            a.e(f"v_pk_sub_i16 v{S+q}, v{S+q}, s{sBI}")
        for d in range(4):
            a.e(f"v_cvt_f32_i32_sdwa v{RB+d}, sext(v{S+(d>>1)}) dst_sel:DWORD dst_unused:UNUSED_PAD src0_sel:WORD_{d&1}")
        for q in range(2):
            a.e(f"v_pk_mul_f32 {vr(RB+2*q,2)}, {vr(X+2*q,2)}, {vr(RB+2*q,2)}")
        for d in range(4):
            a.e(f"v_cvt_f32_i32_sdwa v{X+d}, sext(v{S+2+(d>>1)}) dst_sel:DWORD dst_unused:UNUSED_PAD src0_sel:WORD_{d&1}")
        for q in range(2):
            a.e(f"v_pk_fma_f32 {vr(out+2*q,2)}, {vr(X+4+2*q,2)}, {vr(X+2*q,2)}, {vr(RB+2*q,2)}")
    def t5_post(tg, ks, XP, X, G, M, SP, SO, RB, V, vCK, mid=None):
        def m6(k, on):
            if k == 6: a.e(f"s_mov_b64 exec, s[{sK6}:{sK6+1}]" if on else "s_mov_b64 exec, -1")
        def skip6(k, lab):
            if k == 6:
                a.e(f"s_cmp_lg_u32 s{sWAVE}, 0")
                a.e(f"s_cbranch_scc1 {lab}")
        sBI = sN
        a.e(f"s_mov_b32 s{sBI}, 0x40004000")
        a.e("s_setprio 3")
        a.e("s_waitcnt lgkmcnt(0)")
        a.e("s_barrier")
        stamp(12)
        a.lg = []
        a.lds(f"ds_read_b32 v{vCK}, v{vZERO} offset:{K2_VI}", 'V')
        for R_, o, nm in ((SP, 0, 'S'), (SO, 2, 'O')):
            for k in ks:
                m6(k, 1)
                for q in range(2):
                    a.lds(f"ds_read_b64 {vr(R_[k]+2*q,2)}, v{V[o+q]} offset:{ACC + 4096*k}", (nm, k))
                m6(k, 0)
        a.wlg(('S', ks[-1]))
        for k in ks:
            for q in range(2):
                a.e(f"v_or3_b32 v{vCK}, v{vCK}, v{SP[k]+2*q}, v{SP[k]+2*q+1}")
        a.e(f"v_and_b32 v{vCK}, s{sTOP}, v{vCK}")
        a.e(f"v_cmp_eq_u32 vcc, 0, v{vCK}")
        for k in ks:
            skip6(k, f"K2_NS{tg}")
            m6(k, 1)
            t5_agg(XP[k], SP[k], RB, RB, sBI)
            a.e(f"s_add_u32 s{sT0}, s{sXS}, {4096*k}")
            a.e(f"v_cvt_pk_bf16_f32 v{SP[k]}, v{RB}, v{RB+1}")
            a.e(f"v_cvt_pk_bf16_f32 v{SP[k]+1}, v{RB+2}, v{RB+3}")
            if k == ks[0]: a.e(f"v_cndmask_b32 v{SP[k]}, -2, v{SP[k]}, vcc")
            a.e(f"buffer_store_dwordx2 {vr(SP[k],2)}, v{V[4]}, s[{S_WS}:{S_WS+3}], s{sT0} offen sc1")
            m6(k, 0)
        a.e(f"K2_NS{tg}:")
        stamp(13)
        if mid: mid()
        a.wlg0()
        for k in ks:
            for q in range(2):
                a.e(f"v_or3_b32 v{vCK}, v{vCK}, v{SO[k]+2*q}, v{SO[k]+2*q+1}")
        a.e(f"v_and_b32 v{vCK}, s{sTOP}, v{vCK}")
        a.e(f"v_cmp_ne_u32 vcc, 0, v{vCK}")
        a.e(f"s_cbranch_vccnz K2_TE{tg}")
        def loads():
            for k in ks:
                a.e(f"s_add_u32 s{sT0}, s{sXR}, {4096*k}")
                m6(k, 1)
                a.e(f"buffer_load_dwordx2 {vr(SP[k],2)}, v{V[4]}, s[{S_WS}:{S_WS+3}], s{sT0} offen sc1")
                m6(k, 0)
        EL = cfg.get('k2_el' + tg, 0)
        if EL: loads()
        for k in ks:
            skip6(k, f"K2_NO{tg}")
            t5_agg(X[k], SO[k], RB, SO[k], sBI)
            unpack(XP[k], G[k]); unpack(XP[k] + 4, M[k])
        a.e(f"K2_NO{tg}:")
        a.e(f"s_mov_b32 s{sT1}, {1 << 14}")
        a.e(f"s_mov_b32 s{sT2}, 0xff800000")
        if EL: a.e(f"s_branch K2_PX{tg}")
        elif cfg.get('k2_w1' + tg, 0): a.e("s_waitcnt vmcnt(0)")
        stamp(14)
        a.e(f"K2_PW{tg}:")
        loads()
        a.e(f"K2_PX{tg}:")
        a.e("s_waitcnt vmcnt(0)")
        for i, k in enumerate(ks):
            a.e(f"v_max3_u32 v{RB}, v{SP[k]}, v{SP[k]+1}, {'v%d' % RB if i else 0}")
        a.e(f"v_cmp_le_u32 vcc, s{sT2}, v{RB}")
        a.e(f"s_cbranch_vccnz K2_PR{tg}")
        stamp(7)
        for k in ks:
            skip6(k, f"K2_TE{tg}")
            m6(k, 1)
            unpack(RB, SP[k])
            a.e(f"s_add_u32 s{sT0}, s{sOM}, {4096*k}")
            for q in range(2):
                a.e(f"v_pk_add_f32 {vr(RB+2*q,2)}, {vr(RB+2*q,2)}, {vr(SO[k]+2*q,2)}")
            t4_fin(X[k], XP[k], XP[k] + 4, RB, SP[k], f"s{sT0}", V[2])
            m6(k, 0)
        a.e(f"K2_TE{tg}:")
        stamp(9)
        vTRq = vTR
        a.e(f"v_cmp_ne_u32 vcc, 0, v{vCK}")
        a.e(f"s_and_b64 exec, exec, vcc")
        a.e(f"ds_or_b32 v{vZERO}, v{vCK} offset:{K2_VI}")
        a.e(f"s_mov_b64 exec, -1")
        a.e("s_waitcnt lgkmcnt(0)")
        def retry():
            nonlocal vTR
            a.e(f"K2_PR{tg}:")
            a.e(f"v_cmp_eq_u32 vcc, -1, v{RB}")
            a.e(f"s_cbranch_vccz K2_PV{tg}")
            if cfg.get('k2_prslp', 0): a.e(f"s_sleep {cfg['k2_prslp']}")
            sv = vTR; vTR = vTRq
            stamp(8)
            vTR = sv
            a.e(f"s_sub_u32 s{sT1}, s{sT1}, 1")
            a.e(f"s_cbranch_scc0 K2_PW{tg}")
            a.e(f"K2_PV{tg}:")
            a.e(f"v_mov_b32 v{vCK}, 0x8000")
            a.e(f"s_branch K2_TE{tg}")
        return retry
    def tail5_head(ks, V, vCK, DB0, WOP, RB):
        nonlocal vTR
        mk = lambda b_, n: {k: b_ + n * i for i, k in enumerate(ks)}
        XP, X, G, M, SP, SO = mk(8, 8), mk(40, 8), mk(72, 2), mk(80, 2), mk(88, 4), mk(104, 4)
        if TRACE:
            a.e(f"v_mov_b32 v87, v{vTR}")
            vTR = 87
        def pre():
            for q in range(4): a.e(f"v_mov_b32 v{SP[0]+q}, -1")
            a.e(f"v_lshlrev_b32 v{V[4]}, 4, v0")
            if PZL:
                a.e("K2_PZ0:")
                pzone("K2_PZ1")
                a.e("s_branch K2_PZ0")
                a.e("K2_PZ1:")
            for k in range(3 if PZL else 0, 4):
                a.e(f"s_add_u32 s{sT0}, s{sXS}, {8192*k}")
                if k == 3: a.e(f"s_mov_b64 exec, s[{sK6}:{sK6+1}]")
                a.e(f"buffer_store_dwordx4 {vr(SP[0],4)}, v{V[4]}, s[{S_WS}:{S_WS+3}], s{sT0} offen sc1")
            a.e("s_mov_b64 exec, -1")
            poll(DB0 + 6, K2_GI, "1", 0)
            a.e(f"s_mov_b32 s{sGI}, s{sT0}")
            a.e(f"s_mov_b32 s{sGI+1}, s{sT0}")
        t4_setup(0, DB0, WOP, [], S_C, pre)
        t4_addr(0, V)
        t5_dist(ks, XP, V[0], DB0 + 2)
        t5_dist(ks, X, V[2], DB0 + 3)
        t4_mload(ks[:3] if TRACE else ks, M, V)
        a.e(f"s_lshl_b32 s{sT1}, s{sWAVE}, 4")
        a.e(f"s_lshl_b32 s{sT2}, s{sT2}, 7")
        a.e(f"s_add_u32 s{sT2}, s{sT1}, s{sT2}")
        a.e(f"s_xor_b32 s{sT1}, s{sT2}, {128 << 7}")
        a.e(f"s_add_u32 s{sT2}, s{sT2}, {FL_OFF}")
        a.e(f"s_add_u32 s{sT1}, s{sT1}, {FL_OFF}")
        a.e("s_waitcnt vmcnt(0) lgkmcnt(0)")
        a.e("s_mov_b64 exec, 1")
        a.e(f"buffer_store_dword v{SP[0]}, v{vZERO}, s[{S_WS}:{S_WS+3}], s{sT1} offen sc1")
        a.e("s_mov_b64 exec, -1")
        stamp(6)
        t4_consts(WOP, S_C)
        KD = SP[1]
        t4_acomp([(XP[k], None) for k in ks[:3]] + [(X[k], G[k]) for k in ks[:3]], KD, DB0, WOP, RB, S_C)
        a.e(f"s_cmp_lg_u32 s{sWAVE}, 0")
        a.e("s_cbranch_scc1 K2_NA6")
        t4_acomp([(XP[6], None), (X[6], G[6])], KD, DB0, WOP, RB, S_C)
        a.e("K2_NA6:")
        for q in range(4):
            a.e(f"v_mov_b32 v{SO[6]+q}, 0")
            a.e(f"v_mov_b32 v{SP[6]+q}, 0")
        return lambda: t5_post("P", ks, XP, X, G, M, SP, SO, RB, V, vCK)
    def tail3():
        nonlocal vTR
        ks = [0, 1, 2, 6]
        X = {k: 8 + 24 * i for i, k in enumerate(ks)}
        GU = {k: X[k] + 8 for k in ks}; MU = {k: X[k] + 12 for k in ks}
        SO = {k: X[k] + 16 for k in ks}; PP = {k: X[k] + 20 for k in ks}
        DB0, WOP, RB, KD, vCK = 104, 120, 124, 6, 7
        V = [1, 3, 4, 5, 6]
        a.e("K2_PTAIL:")
        a.e(f"s_setprio {cfg.get('k2_tprio', 2)}")
        if T5:
            post5 = tail5_head(ks, V, vCK, DB0, WOP, RB)
        else:
            if TRACE:
                a.e(f"v_mov_b32 v{MU[6]+3}, v{vTR}")
                vTR = MU[6] + 3
            def pre():
                poll(DB0 + 6, K2_GI, "1", 0)
                a.e(f"s_mov_b32 s{sGI}, s{sT0}")
                a.e(f"s_mov_b32 s{sGI+1}, s{sT0}")
            t4_setup(0, DB0, WOP, [(k, X[k]) for k in ks], S_C, pre)
            t4_addr(0, V)
            t4_mload(ks, PP, V)
            a.e(f"s_lshl_b32 s{sT1}, s{sWAVE}, 4")
            a.e(f"s_lshl_b32 s{sT2}, s{sT2}, 7")
            a.e(f"s_add_u32 s{sT2}, s{sT1}, s{sT2}")
            a.e(f"s_add_u32 s{sT2}, s{sT2}, {FL_OFF}")
            a.e("s_waitcnt vmcnt(0) lgkmcnt(0)")
            t4_consts(WOP, S_C)
            t4_acomp([(X[k], SO[k]) for k in ks[:3]], SO[6] + 2, DB0, WOP, RB, S_C)
            for k in ks[:3]:
                unpack(GU[k], SO[k]); unpack(MU[k], PP[k])
            a.e(f"s_cmp_lg_u32 s{sWAVE}, 0")
            a.e("s_cbranch_scc1 K2_NA6")
            t4_acomp([(X[6], SO[6])], SO[6] + 2, DB0, WOP, RB, S_C)
            unpack(GU[6], SO[6])
            if not TRACE: unpack(MU[6], PP[6])
            a.e("K2_NA6:")
            for q in range(4): a.e(f"v_mov_b32 v{SO[6]+q}, 0")
        stamp(11)
        a.e(f"s_mov_b32 s{sT0}, {1 << 14}")
        a.e("s_branch K2_FL1")
        a.e("K2_FL0:")
        a.e(f"s_sleep {cfg.get('k2_flslp', 4)}")
        a.e(f"s_sub_u32 s{sT0}, s{sT0}, 1")
        a.e("s_cbranch_scc0 K2_FL1")
        a.e(f"v_mov_b32 v{vCK}, 0x8000")
        a.e(f"ds_or_b32 v{vZERO}, v{vCK} offset:{K2_VI}")
        a.e("s_branch K2_FL2")
        a.e("K2_FL1:")
        a.e(f"buffer_load_dword v{vCK}, v{vZERO}, s[{S_WS}:{S_WS+3}], s{sT2} offen sc1")
        a.e("s_waitcnt vmcnt(0)")
        a.e(f"v_cmp_eq_u32 vcc, 0, v{vCK}")
        a.e("s_cbranch_vccnz K2_FL0")
        a.e("K2_FL2:")
        retry = post5() if T5 else t4_post("P", ks, X, GU, MU, SO, PP, RB, V, vCK)
        if TRACE:
            a.e(f"v_mov_b32 v127, v{vTR}")
            vTR = 127
        a.e("s_barrier")
        a.e(f"ds_read_b32 v{vCK}, v{vZERO} offset:{K2_VI}")
        a.e("s_waitcnt lgkmcnt(0)")
        a.e(f"v_cmp_ne_u32 vcc, 0, v{vCK}")
        a.e("s_cbranch_vccz K2_FIN")
        a.e("s_barrier")
        a.e("s_waitcnt vmcnt(0)")
        a.e("s_barrier")
        a.e("K2_SFIN:")
        x, vT, vL = X[0], V[0], X[1]
        a.e(f"ds_read_b32 v{vCK}, v{vZERO} offset:{K2_GI}")
        a.e(f"v_mov_b32 v{vT}, v0")
        a.e(f"s_lshr_b32 s{sT2}, s{sOM}, 2")
        a.e(f"s_mov_b32 s{sT1}, 0")
        a.e("s_waitcnt lgkmcnt(0)")
        a.e(f"v_readfirstlane_b32 s{sGI}, v{vCK}")
        a.e(f"v_readfirstlane_b32 s{sGI+1}, v{vCK}")
        a.e("K2_SFL:")
        a.e(f"v_min_u32 v{vL}, {EPB - 1}, v{vT}")
        a.e(f"v_add_lshl_u32 v{V[2]}, v{vL}, s{sLO}, 3")
        a.e(f"v_lshlrev_b32 v{vL}, 2, v{vL}")
        a.e(f"v_add_u32 v{vL+1}, {STR2}, v{vL}")
        a.e(f"v_lshrrev_b32 v{vL+2}, 2, v{V[2]}")
        a.e(f"buffer_load_ushort v{x}, v{vL+2}, s[{S_D}:{S_D+3}], s{sT2} offen")
        a.e(f"buffer_load_dwordx2 {vr(PP[0],2)}, v{V[2]}, s[{S_MM}:{S_MM+3}], s{sOM} offen")
        a.e("s_waitcnt vmcnt(0)")
        a.e(f"v_lshlrev_b32 v{x}, 16, v{x}")
        t4_acomp([(x, SO[0])], SO[6] + 2, DB0, WOP, RB, S_C)
        unpack(GU[0], SO[0]); unpack(MU[0], PP[0])
        for q in range(8):
            a.e(f"ds_read_b32 v{DB0+q}, v{vL+(q>>2)} offset:{ACC + (q&3)*ACC_STR}")
        a.e("s_waitcnt lgkmcnt(0)")
        for q in range(8):
            a.e(f"v_cvt_f32_i32 v{DB0+q}, v{DB0+q}")
        for q in range(2):
            a.e(f"v_pk_mul_f32 {vr(RB+2*q,2)}, {vr(x+2*q,2)}, {vr(DB0+2*q,2)}")
        for q in range(2):
            a.e(f"v_pk_fma_f32 {vr(RB+2*q,2)}, {vr(x+4+2*q,2)}, {vr(DB0+4+2*q,2)}, {vr(RB+2*q,2)}")
        t4_fin(x, GU[0], MU[0], RB, DB0 + 8, f"s{sOM}", V[2])
        a.e(f"v_add_u32 v{vT}, 512, v{vT}")
        a.e(f"s_add_u32 s{sT1}, s{sT1}, 1")
        a.e(f"s_cmp_lt_u32 s{sT1}, 7")
        a.e("s_cbranch_scc1 K2_SFL")
        a.e("s_branch K2_FIN")
        retry()
    T3 = cfg.get('t3', False)
    if T3: tail3()
    else: tail_old()

    a.e("K2_CONS:")
    vFD, vA4, vA2 = 3, 4, 5
    SW_, SA_ = 6, 19
    CUR = 32
    COL = {3: [0,1,2,3,0,1,2,3,0,1,2,3,4], 2: [0,1,2,0,1,2,0,1,2,0,1,2,3],
           4: [0,1,2,3,4,5,0,1,2,3,4,5,6], 5: [0,1,2,3,4,5,0,1,2,3,4,5,6]}.get(D, list(range(13)))
    NCOL = max(COL) + 1
    RSTR = 6 if D <= 5 else 4
    LB = CUR + 4 * 13
    TB = 104
    RT, vCK, vC4, vCT = 120, 124, 125, 126
    MXR = TB
    sG, sGN, sMG, sNB, sSEL, sMX, sLAST = 40, 42, 44, 46, 48, 49, 50
    def fill(first):
        if first:
            a.e(f"v_cmp_le_u32 vcc, {ACC//16}, v{vCT}")
            a.e(f"s_mov_b64 exec, vcc")
            a.e(f"ds_write_b128 v{TB+8}, {vr(TB+4,4)}")
            a.e(f"s_mov_b64 exec, -1")
        for k in range(1, 8):
            a.e(f"ds_write_b128 v{TB+8}, {vr(TB+4,4)} offset:{k*8192}")
        a.e(f"v_add_u32 v{TB+8}, 65536, v{TB+8}")
        for k in range(4):
            a.e(f"ds_write_b128 v{TB+8}, {vr(TB+4,4)} offset:{k*8192}")
        a.e(f"v_cmp_gt_u32 vcc, {(K2_SA - 12*8192)//16}, v{vCT}")
        a.e(f"s_mov_b64 exec, vcc")
        a.e(f"ds_write_b128 v{TB+8}, {vr(TB+4,4)} offset:{4*8192}")
        a.e(f"s_mov_b64 exec, -1")
    def mdsrd(hreg):
        a.e(f"s_mul_i32 s{sT0}, {hreg}, {MD_TSTR}")
        a.e(f"s_add_u32 s{sT0}, s{sT0}, {MD_OFF}")
        a.e(f"s_add_u32 s{S_MD}, s{S_WS}, s{sT0}")
        a.e(f"s_addc_u32 s{S_MD+1}, s{S_WS+1}, 0")
        a.e(f"s_or_b32 s{S_MD+1}, s{S_MD+1}, 0x80000")
    def setscale(t):
        a.e(f"v_min_f32 v{t}, 0x71800000, v{t}")
        a.e(f"v_rcp_f32 v{t+1}, v{t}")
        a.e(f"v_add_f32 v{t+2}, v{t}, v{t}")
        a.e(f"v_readlane_b32 s{sG}, v{t}, 63")
        a.e(f"v_readlane_b32 s{sG+1}, v{t+2}, 63")
        a.e("s_lshl_b64 exec, 1, 63")
        a.e(f"ds_write_b32 v{vZERO}, v{t+1} offset:{K2_GI}")
        a.e("s_mov_b64 exec, -1")
        a.e(f"s_xor_b32 s{sGN}, s{sG}, 0x80000000")
    a.e(f"s_sub_u32 s{sWAVE}, s{sWAVE}, 8")
    a.e(f"v_add_u32 v{vCT}, -512, v0")
    a.e(f"v_mov_b32 v{TB+9}, 0x40004000")
    a.e(f"v_cmp_le_u32 vcc, {ACC//16}, v{vCT}")
    a.e(f"v_lshlrev_b32 v{TB+8}, 4, v{vCT}")
    for k in range(4):
        a.e(f"v_cndmask_b32 v{TB+4+k}, 0, v{TB+9}, vcc")
    a.e(f"ds_write_b128 v{TB+8}, {vr(TB+4,4)}")
    for k in range(4):
        a.e(f"v_mov_b32 v{TB+4+k}, v{TB+9}")
    a.e(f"v_lshlrev_b32 v{TB+9}, 5, v{vLANE}")
    a.e(f"s_mov_b32 s{sT1}, {MX_OFF}")
    a.e("s_waitcnt lgkmcnt(0)")
    a.e("s_barrier")
    a.e(f"buffer_load_dwordx4 {vr(CUR,4)}, v{TB+9}, s[{S_WS}:{S_WS+3}], s{sT1} offen")
    a.e(f"buffer_load_dwordx4 {vr(CUR+4,4)}, v{TB+9}, s[{S_WS}:{S_WS+3}], s{sT1} offen offset:16")
    CK = [3, 4, 5]
    CX = {k: 74 + 10 * i for i, k in enumerate(CK)}
    CWOP, CSC = 56, 52
    if T5:
        CX = {k: 74 + 8 * i for i, k in enumerate(CK)}
        t4_setup(vCT, 64, CWOP, [], CSC)
        a.e(f"v_add_lshl_u32 v66, v{vCT}, s{sLP}, 3")
        t5_dist(CK, CX, 66, 66)
    elif T3: t4_setup(vCT, 64, CWOP, [(k, CX[k]) for k in CK], CSC)
    fill(False)
    a.e(f"s_lshr_b32 s{sT1}, s{sB}, 7")
    mdsrd(f"s{sT1}")
    a.e(f"s_mov_b32 s{S_MD+2}, {E//2}")
    a.e(f"s_mov_b32 s{S_MD+3}, 0x00020000")
    a.e(f"s_mov_b32 s{sFFF8}, 0xfff8")
    a.e(f"s_mov_b32 s{sMG}, {f2h(8388608.0 + 32768.0)}")
    a.e(f"s_mov_b32 s{sMG+1}, {f2h(8388608.0 + 32768.0)}")
    a.e(f"s_mov_b32 s{sNB}, 0x7fff8000")
    a.e(f"s_mov_b32 s{sNB+1}, 0x7fff7fff")
    a.e(f"s_mov_b32 s{sSEL}, 0x05040100")
    a.e(f"s_lshl_b32 s{sT0}, s{sWAVE}, 2")
    a.e(f"v_mov_b32 v{vFD}, s{sT0}")
    for s in range(NS):
        a.e(f"v_mov_b32 v{SW_+s}, {hex(DUMMY)}")
        a.e(f"v_mov_b32 v{SA_+s}, 0")
    for k in range(4):
        a.e(f"v_mov_b32 v{RT+k}, 0")
    a.e(f"s_mov_b32 s{sCNT}, 0")
    t = TB + 4
    a.e("s_waitcnt vmcnt(0)")
    a.e(f"v_max3_u32 v{MXR}, v{CUR}, v{CUR+2}, v{CUR+4}")
    a.e(f"v_add_f32 v{MXR+1}, v{CUR+1}, v{CUR+3}")
    a.e(f"v_add_f32 v{MXR+2}, v{CUR+5}, v{CUR+7}")
    a.e(f"v_max_u32 v{MXR}, v{MXR}, v{CUR+6}")
    a.e(f"v_add_f32 v{MXR+1}, v{MXR+1}, v{MXR+2}")
    dpp_scan(a, MXR, "v_max_u32")
    dpp_scan(a, MXR + 1, "v_add_f32")
    a.e(f"v_rcp_f32 v{t}, v{MXR}")
    a.e(f"v_mul_f32 v{MXR+2}, {f2h(4.0 * E / cfg.get('crest', 32.0))}, v{MXR}")
    a.e(f"v_readlane_b32 s{sMX}, v{MXR}, 63")
    a.e(f"v_cmp_nle_f32 vcc, v{MXR+2}, v{MXR+1}")
    a.e(f"v_mul_f32 v{t}, {f2h(cfg.get('qmax', 4096.0))}, v{t}")
    a.e(f"s_lshr_b32 s{sT0}, vcc_hi, 16")
    a.e(f"s_and_b32 s{sT0}, s{sT0}, 0x8000")
    a.e(f"v_mov_b32 v{vCK}, s{sT0}")
    setscale(t)
    stamp(6)

    uid = [0]
    stubs = []
    NOX = cfg.get('nox', True)
    def lreg(cur): return cur + (5 if NOX else 4) if D <= 5 else LB + (cur - CUR) // 4
    def alpha1(W, cur):
        L = lreg(cur)
        a.e(f"v_and_b32 v{L}, {hex(cfg.get('x_gmask', IDXM))}, v{W}")
        if not cfg.get('x_nog'):
            a.e(f"buffer_load_dwordx2 {vr(cur,2)}, v{L}, s[{S_MD}:{S_MD+3}], 0 idxen")
    def cosines(A, C_, mid=None, c2=1):
        tc = TB + 2
        a.e(f"v_mul_f32 v{tc}, 0.15915494, v{A}")
        a.e(f"v_fract_f32 v{tc}, v{tc}")
        a.e(f"v_cos_f32 v{tc}, v{tc}")
        if mid: a.e(mid)
        a.e(f"v_pk_mul_f32 {vr(C_,2)}, {vr(tc,2)}, s[{sG}:{sG+1}] op_sel_hi:[0,1]")
        a.e(f"v_fma_f32 v{C_+c2}, v{C_+1}, v{tc}, s{sGN}")
    def alpha2(W, A, cur):
        cosines(A, cur + 2, f"v_and_b32_sdwa v{lreg(cur)}, v{W}, s{sFFF8} dst_sel:DWORD dst_unused:UNUSED_PAD src0_sel:WORD_1 src1_sel:DWORD", 2 if NOX else 1)
    def orrt():
        a.e(f"v_or3_b32 v{vCK}, v{vCK}, v{RT}, v{RT+1}")
        a.e(f"v_or3_b32 v{vCK}, v{vCK}, v{RT+2}, v{RT+3}")
    def beta(cur, vm):
        G0, C_, L = cur, cur + 2, lreg(cur)
        M_, X = TB + 4, TB + 8
        a.e(f"s_waitcnt vmcnt({vm})")
        unpack(M_, G0)
        for l in range(2):
            for q in range(2):
                if NOX:
                    a.e(f"v_pk_fma_f32 {vr(X+4*l+2*q,2)}, {vr(M_+2*q,2)}, {vr(C_+2*l,2)}, s[{sMG}:{sMG+1}] op_sel_hi:[1,0,1]")
                else:
                    a.e(f"v_pk_fma_f32 {vr(X+4*l+2*q,2)}, {vr(M_+2*q,2)}, {vr(C_,2)}, s[{sMG}:{sMG+1}] op_sel:[0,{l},0] op_sel_hi:[1,{l},1]")
        for q in range(4):
            a.e(f"v_perm_b32 v{M_+q}, v{X+2*q+1}, v{X+2*q}, s{sSEL}")
        for l in range(2):
            a.e(f"v_lshl_add_u64 {vr(M_+2*l,2)}, {vr(M_+2*l,2)}, 0, s[{sNB}:{sNB+1}]")
        a.e(f"s_waitcnt lgkmcnt(0)")
        orrt()
        for l in range(2):
            a.e(f"ds_add_rtn_u64 {vr(RT+2*l,2)}, v{L}, {vr(M_+2*l,2)} offset:{ACC + l*STR2}")
    def cur(s): return CUR + RSTR * COL[s]
    def fdone(val):
        uid[0] += 1
        a.e(f"s_waitcnt lgkmcnt(0)")
        orrt()
        a.e(f"v_and_b32 v{vCK}, 0x80008000, v{vCK}")
        a.e(f"v_cmp_ne_u32 vcc, 0, v{vCK}")
        a.e(f"v_mov_b32 v{TB+4}, {val}")
        a.e(f"s_mov_b64 exec, vcc")
        a.e(f"ds_or_b32 v{vZERO}, v{vCK} offset:{K2_VI}")
        a.e("s_mov_b64 exec, 1")
        a.e(f"ds_write_b32 v{vFD}, v{TB+4} offset:{K2C_FD}")
        a.e("s_mov_b64 exec, -1")
    def step(s, cnt_of, stub=False, mid=None):
        p = (s - D) % NS
        alpha1(SW_ + s, cur(s))
        alpha2(SW_ + s, SA_ + s, cur(s))
        if mid: mid()
        uid[0] += 1
        a.e(f"s_cmp_le_u32 s{cnt_of(p)}, {p}")
        if stub:
            a.e(f"s_cbranch_scc1 K2_ST{uid[0]}")
            stubs.append(uid[0])
        else:
            a.e(f"s_cbranch_scc1 K2_SB{uid[0]}")
        u = uid[0]
        beta(cur(p), D)
        a.e(f"K2_SB{u}:")
    def readslot(s):
        uid[0] += 1
        a.e(f"s_cmp_le_u32 s{sCNT}, {s}")
        a.e(f"s_cbranch_scc1 K2_RD{uid[0]}")
        a.e(f"ds_read_b32 v{SW_+s}, v{vA4} offset:{256*s}")
        a.e(f"ds_read_u16_d16_hi v{SA_+s}, v{vA2} offset:{128*s}")
        a.e(f"s_branch K2_RE{uid[0]}")
        a.e(f"K2_RD{uid[0]}:")
        a.e(f"v_mov_b32 v{SW_+s}, {hex(DUMMY)}")
        a.e(f"K2_RE{uid[0]}:")
    a.e(f"v_mov_b32 v{vC4}, 4")
    signal(vC4, K2_FS)
    if T3:
        a.e(f"v_readlane_b32 s{sGI}, v{t+1}, 63")
        a.e(f"v_readlane_b32 s{sGI+1}, v{t+1}, 63")
        a.e("s_waitcnt lgkmcnt(0)")
    if T5:
        t4_consts(CWOP, CSC, 98)
        t4_acomp([(CX[k], None) for k in CK], 64, 32, 98, 60, CSC)
        stamp(5)
    elif T3:
        t4_consts(CWOP, CSC)
        t4_acomp([(CX[k], CX[k] + 8) for k in CK], 64, 32, CWOP, 60, CSC)
        stamp(5)
        for q in range(4): a.e(f"v_mov_b32 v{TB+4+q}, -1")
        a.e(f"v_lshlrev_b32 v{TB+8}, 4, v{vCT}")
        if cfg.get('k2_pzw', 32): poll(TB, K2_FH, str(cfg.get('k2_pzw', 32)), 2)
        for k in range(7):
            a.e(f"s_add_u32 s{sT0}, s{sXS}, {8192*k}")
            if k == 6: a.e(f"s_mov_b64 exec, s[{sK6}:{sK6+1}]")
            a.e(f"buffer_store_dwordx4 {vr(TB+4,4)}, v{TB+8}, s[{S_WS}:{S_WS+3}], s{sT0} offen sc1")
        a.e(f"s_lshl_b32 s{sT0}, s{sB}, 7")
        a.e(f"s_lshl_b32 s{sT1}, s{sWAVE}, 4")
        a.e(f"s_add_u32 s{sT0}, s{sT0}, s{sT1}")
        a.e(f"s_add_u32 s{sT0}, s{sT0}, {FL_OFF}")
        a.e("s_waitcnt vmcnt(0)")
        a.e("s_mov_b64 exec, 1")
        a.e(f"buffer_store_dword v{vC4}, v{vZERO}, s[{S_WS}:{S_WS+3}], s{sT0} offen sc1")
        a.e("s_mov_b64 exec, -1")
    a.e(f"s_mov_b32 s{sTG}, 32")
    if cfg.get('k2_cprio', 0): a.e(f"s_setprio {cfg['k2_cprio']}")
    a.e("K2_CLOOP:")
    a.e(f"ds_read_b64 {vr(TB,2)}, v{vZERO} offset:{K2_FS}")
    a.e(f"s_mov_b32 s{sCNP}, s{sCNT}")
    a.e(f"s_add_u32 s{sTG}, s{sTG}, 32")
    step(NS - 2, lambda p: sCNP, stub=True)
    stamp(7)
    a.e("K2_CPOLL:")
    a.e(f"v_readfirstlane_b32 s{sT0}, v{TB}")
    a.e(f"v_readfirstlane_b32 s{sN}, v{TB+1}")
    a.e(f"s_cmp_lt_u32 s{sT0}, s{sTG}")
    a.e("s_cbranch_scc1 K2_CPOLL2")
    stamp(8)
    a.e(f"s_and_b32 s{sLAST}, s{sN}, 1")
    a.e(f"s_add_u32 s{sT0}, s{sN}, 252")
    a.e(f"s_lshr_b32 s{sT0}, s{sT0}, 8")
    a.e(f"s_mul_i32 s{sT1}, s{sT0}, s{sWAVE}")
    a.e(f"s_add_u32 s{sT0}, s{sT1}, s{sT0}")
    a.e(f"s_lshr_b32 s{sT1}, s{sT1}, 3")
    a.e(f"s_lshr_b32 s{sT0}, s{sT0}, 3")
    a.e(f"s_sub_u32 s{sCNT}, s{sT0}, s{sT1}")
    a.e(f"s_lshl_b32 s{sT1}, s{sT1}, 7")
    a.e(f"s_add_u32 s{sT0}, s{sT1}, {K2_SA}")
    a.e(f"s_lshl_b32 s{sT1}, s{sT1}, 1")
    a.e(f"s_add_u32 s{sT1}, s{sT1}, {K2_SW}")
    a.e(f"v_lshl_add_u32 v{vA4}, v{vLANE}, 2, s{sT1}")
    a.e(f"v_lshl_add_u32 v{vA2}, v{vLANE}, 1, s{sT0}")
    a.e(f"s_cmp_lt_u32 s{sCNT}, {NS-1}")
    a.e("s_cbranch_scc1 K2_RSLOW")
    for s in range(NS - 1):
        a.e(f"ds_read_b32 v{SW_+s}, v{vA4} offset:{256*s}")
        a.e(f"ds_read_u16_d16_hi v{SA_+s}, v{vA2} offset:{128*s}")
    a.e("K2_RDONE:")
    step(NS - 1, lambda p: sCNP, stub=True)
    readslot(NS - 1)
    a.e(f"s_cmp_gt_u32 s{sCNT}, {NS}")
    a.e("s_cbranch_scc1 K2_EXTRA")
    a.e("K2_NOEXTRA:")
    signal(vC4, K2_FR)
    assert D < NS - LATE
    for s in range(NS - LATE):
        if TRACE and s in cfg.get('trace_steps', [0, 4, 8]): stamp(9)
        step(s, lambda p: sCNP if p >= NS - D else sCNT, mid=(lambda: fdone(f"s{sTG}")) if s == D and not T3 else None)
    a.e(f"s_cmp_eq_u32 s{sLAST}, 0")
    a.e("s_cbranch_scc1 K2_CLOOP")
    step(NS - 2, lambda p: sCNT)
    step(NS - 1, lambda p: sCNT)
    for i in range(D):
        p = NS - D + i
        uid[0] += 1
        u = uid[0]
        a.e(f"s_cmp_le_u32 s{sCNT}, {p}")
        a.e(f"s_cbranch_scc1 K2_SB{u}")
        beta(cur(p), D - 1 - i)
        a.e(f"K2_SB{u}:")
    fdone("0x7fffffff")
    stamp(10)
    if T5:
        mk = lambda b_, n: {k: b_ + n * i for i, k in enumerate(CK)}
        CV = [68, 69, 70, 71, 72]
        CO, CG, CM = mk(8, 8), mk(32, 2), mk(38, 2)
        a.e("s_waitcnt vmcnt(0)")
        t4_addr(vCT, CV)
        t5_dist(CK, CO, CV[2], 73)
        t4_mload(CK, CM, CV)
        def cmid():
            a.e(f"s_waitcnt vmcnt({len(CK)})")
            t4_acomp([(CO[k], CG[k]) for k in CK], 6, 104, 98, 120, CSC)
        cretry = t5_post("C", CK, CX, CO, CG, CM, mk(44, 4), mk(56, 4), 120, CV, vCK, cmid)
    elif T3:
        CV = [62, 63, 64, 65, 66]
        CM = {k: 56 + 2 * i for i, k in enumerate(CK)}
        CG = {k: 8 + 16 * i for i, k in enumerate(CK)}
        a.e("s_waitcnt vmcnt(0)")
        t4_addr(vCT, CV)
        t4_mload(CK, CM, CV)
        def cmid():
            for k in CK: unpack(CG[k], CX[k] + 8)
            a.e(f"s_waitcnt vmcnt({len(CK)})")
            for k in CK: unpack(CG[k] + 4, CM[k])
        cretry = t4_post("C", CK, CX, CG, {k: CG[k] + 4 for k in CK}, {k: CG[k] + 8 for k in CK}, {k: CG[k] + 12 for k in CK}, TB, CV, vCK, cmid)
    else:
        a.e("s_waitcnt lgkmcnt(0)")
        a.e("s_barrier")
    if cfg.get('x_dump'):
        a.e(f"s_mul_i32 s{sT0}, s{sB}, {13*8192}")
        a.e(f"s_add_u32 s{sT0}, s{sT0}, 0x6000000")
        a.e(f"v_lshlrev_b32 v{TB+8}, 4, v{vCT}")
        for k in range(13):
            a.e(f"ds_read_b128 {vr(TB+4,4)}, v{TB+8}")
            a.e("s_waitcnt lgkmcnt(0)")
            a.e(f"buffer_store_dwordx4 {vr(TB+4,4)}, v{TB+8}, s[{S_WS}:{S_WS+3}], s{sT0} offen")
            a.e("s_waitcnt vmcnt(0)")
            a.e(f"v_add_u32 v{TB+8}, 8192, v{TB+8}")
    a.e("s_barrier")
    a.e(f"ds_read_b32 v{vCK}, v{vZERO} offset:{K2_VI}")
    a.e("s_waitcnt vmcnt(0) lgkmcnt(0)")
    a.e(f"v_cmp_ne_u32 vcc, 0, v{vCK}")
    a.e("s_cbranch_vccz K2_FIN")
    RR, QL, vI, vE, vTL, PW, CC2, GM = 6, 32, 22, 23, 24, 26, 30, 40
    a.e(f"s_and_b32 s{sT0}, s{sB}, 127")
    a.e(f"s_lshl_b32 s{sT0}, s{sT0}, 4")
    a.e(f"v_mul_u32_u24 v{vI}, {REC_STR}, v{vCT}")
    a.e(f"v_add_u32 v{vI}, s{sT0}, v{vI}")
    a.e(f"s_mov_b32 s{sT0}, {REC_OFF}")
    for q in range(4):
        a.e(f"buffer_load_dwordx4 {vr(QL+4*q,4)}, v{vI}, s[{S_WS}:{S_WS+3}], s{sT0} offen offset:{(q>>1)*2048 + (q&1)*16}")
    for k in range(4):
        a.e(f"v_mov_b32 v{TB+4+k}, 0")
    a.e(f"v_lshlrev_b32 v{TB+8}, 4, v{vCT}")
    fill(True)
    a.e(f"s_mov_b32 s{sT0}, {cfg.get('tile_s', TILE_B)}")
    a.e(f"v_mul_lo_u32 v{vTL}, v{vCT}, s{sT0}")
    a.e(f"s_mov_b32 s{sT1}, 0x07060302")
    a.e(f"v_mov_b32 v{vI}, 0")
    a.e("s_waitcnt vmcnt(0)")
    for k in range(16):
        b_ = QL + 8 * (k >> 3) + ((k & 7) >> 1)
        a.e(f"v_perm_b32 v{RR+k}, v{b_+4}, v{b_}, s{sT1 if k & 1 else sSEL}")
        a.e(f"v_sub_u32_sdwa v{vE}, v{RR+k}, v{RR+k} dst_sel:DWORD dst_unused:UNUSED_PAD src0_sel:WORD_1 src1_sel:WORD_0")
        a.e(f"v_add_u32 v{vI}, v{vI}, v{vE}")
    a.e(f"ds_add_u32 v{vZERO}, v{vI} offset:{K2_NB}")
    a.e("s_waitcnt lgkmcnt(0)")
    a.e("s_barrier")
    a.e(f"ds_read_b32 v{t}, v{vZERO} offset:{K2_NB}")
    a.e(f"s_lshr_b32 s{sT1}, s{sB}, 7")
    a.e(f"s_mul_i32 s{sT1}, s{sT1}, {EPB}")
    a.e(f"s_sub_u32 s{sLAST}, {EPB}, s{sT1}")
    a.e(f"s_mov_b32 s{sJ}, 0")
    a.e("s_waitcnt lgkmcnt(0)")
    a.e(f"v_cvt_f32_u32 v{t}, v{t}")
    a.e(f"v_mul_f32 v{t}, s{sMX}, v{t}")
    a.e(f"v_rcp_f32 v{t}, v{t}")
    a.e(f"v_mul_f32 v{t}, 0x4efc0000, v{t}")
    setscale(t)
    a.e("K2_SJ:")
    a.e(f"s_lshr_b32 s{sT1}, s{sJ}, 3")
    mdsrd(f"s{sT1}")
    a.e(f"v_and_b32 v{vI}, 0xffff, v{RR}")
    a.e(f"v_lshrrev_b32 v{vE}, 16, v{RR}")
    for k in range(15):
        a.e(f"v_mov_b32 v{RR+k}, v{RR+k+1}")
    a.e("K2_SI:")
    a.e(f"v_cmp_lt_u32 vcc, v{vI}, v{vE}")
    a.e("s_cbranch_vccz K2_SN")
    a.e(f"s_mov_b64 exec, vcc")
    a.e(f"v_lshrrev_b32 v{GM}, 1, v{vI}")
    a.e(f"v_mad_u32_u24 v{GM}, v{GM}, 12, v{vTL}")
    a.e(f"buffer_load_dwordx3 {vr(PW,3)}, v{GM}, s[{S_WS}:{S_WS+3}], 0 offen")
    a.e(f"v_and_b32 v{GM}, 1, v{vI}")
    a.e(f"v_cmp_eq_u32 vcc, 1, v{GM}")
    a.e(f"v_add_u32 v{vI}, 1, v{vI}")
    a.e("s_waitcnt vmcnt(0)")
    a.e(f"v_cndmask_b32 v{PW}, v{PW}, v{PW+2}, vcc")
    a.e(f"v_lshlrev_b32 v{PW+2}, 16, v{PW+1}")
    a.e(f"v_and_b32 v{PW+1}, s{sHI}, v{PW+1}")
    a.e(f"v_cndmask_b32 v{PW+1}, v{PW+2}, v{PW+1}, vcc")
    a.e(f"v_and_b32 v{GM+2}, {hex(IDXM)}, v{PW}")
    a.e(f"buffer_load_dwordx2 {vr(GM,2)}, v{GM+2}, s[{S_MD}:{S_MD+3}], 0 idxen")
    cosines(PW + 1, CC2, None, 2)
    a.e(f"v_lshrrev_b32 v{PW}, 19, v{PW}")
    a.e(f"v_subrev_u32 v{PW}, s{sLAST}, v{PW}")
    a.e(f"v_cmp_gt_u32 vcc, {EPB}, v{PW}")
    a.e(f"v_lshlrev_b32 v{PW}, 2, v{PW}")
    a.e(f"v_add_u32 v{PW+1}, {STR2}, v{PW}")
    a.e("s_waitcnt vmcnt(0)")
    unpack(TB + 4, GM)
    for l in range(2):
        for q in range(2):
            a.e(f"v_pk_mul_f32 {vr(TB+8+4*l+2*q,2)}, {vr(TB+4+2*q,2)}, {vr(CC2+2*l,2)} op_sel_hi:[1,0]")
    for q in range(8):
        a.e(f"v_cvt_rpi_i32_f32 v{TB+8+q}, v{TB+8+q}")
    a.e(f"s_mov_b64 exec, vcc")
    for q in range(8):
        a.e(f"ds_add_u32 v{PW+(q>>2)}, v{TB+8+q} offset:{ACC + (q&3)*ACC_STR}")
    a.e(f"s_mov_b64 exec, -1")
    a.e("s_branch K2_SI")
    a.e("K2_SN:")
    a.e(f"s_add_u32 s{sJ}, s{sJ}, 1")
    a.e(f"s_cmp_lt_u32 s{sJ}, 16")
    a.e("s_cbranch_scc1 K2_SJ")
    a.e("s_waitcnt lgkmcnt(0)")
    a.e("s_barrier")
    a.e("s_branch K2_FIN")

    if T3: cretry()
    for u in stubs:
        a.e(f"K2_ST{u}:")
        a.e("s_waitcnt lgkmcnt(0)")
        a.e(f"s_branch K2_SB{u}")
    a.e("K2_CPOLL2:")
    if cfg.get('k2_cslp', 0): a.e(f"s_sleep {cfg['k2_cslp']}")
    a.e(f"ds_read_b64 {vr(TB,2)}, v{vZERO} offset:{K2_FS}")
    a.e("s_waitcnt lgkmcnt(0)")
    a.e("s_branch K2_CPOLL")
    a.e("K2_RSLOW:")
    for s in range(NS - 1):
        readslot(s)
    a.e("s_branch K2_RDONE")
    a.e("K2_EXTRA:")
    XW, XC = TB, cur(0)
    for s in range(NS, 16):
        if s > NS:
            a.e(f"s_cmp_le_u32 s{sCNT}, {s}")
            a.e("s_cbranch_scc1 K2_NOEXTRA")
        a.e(f"v_mov_b32 v{XW+1}, 0")
        a.e(f"ds_read_b32 v{XW}, v{vA4} offset:{256*s}")
        a.e(f"ds_read_u16_d16_hi v{XW+1}, v{vA2} offset:{128*s}")
        a.e("s_waitcnt lgkmcnt(0)")
        alpha1(XW, XC)
        alpha2(XW, XW + 1, XC)
        beta(XC, 0)
    a.e("s_branch K2_NOEXTRA")

    a.e("K2_FIN:")
    if TRACE:
        a.e("s_waitcnt vmcnt(0)")
        stamp(10)
        a.e(f"s_cmp_lg_u32 s2, {cfg.get('trace_wg', 77)}")
        a.e("s_cbranch_scc1 K2_END")
        a.e(f"s_load_dwordx2 s[{S_X}:{S_X+1}], s[0:1], 96")
        a.e(f"s_mov_b32 s{S_X+2}, 4096")
        a.e(f"s_mov_b32 s{S_X+3}, 0x00020000")
        a.e("s_waitcnt lgkmcnt(0)")
        a.e(f"v_lshlrev_b32 v1, 2, v0")
        a.e(f"buffer_store_dword v{vTR}, v1, s[{S_X}:{S_X+3}], 0 offen")
    if cfg.get('rt'): rt_end(a, 1, S_X)
    a.e("K2_END:")
    a.e("s_endpgm")
    return fix_hazards(a.lines)
```

```python
from asmlib import *
from consts import *
from k1 import dpp_scan, rt_end
import math, struct

NS = 13
DUMMY = (2 * EPB << 19) | 0x7FFFF
IDXM = 0x7FFFF
K2_GI = K2_NB + 8
K2_VI = K2_NB + 12
K2_FS = K2_NB + 32
K2_NCELL = K2_FS + 4
K2_FH = K2_FS + 8
K2_DN = K2_FS + 12
K2_FP = K2_FS + 16
K2_FR = K2_FS + 20
ACC = K2C_ACC
STR2 = 2 * ACC2_STR
def f2h(x): return hex(struct.unpack('<I', struct.pack('<f', x))[0])
def h2f(x): return struct.unpack('<f', struct.pack('<I', x))[0]
KAP = math.sqrt(10.0 * math.log2(math.e))

def gen_k2(cfg):
    a = Asm()
    D = cfg.get('k2_d', 5)
    LATE = 2
    PPRIO = cfg.get('k2_pprio', 3)
    SPLIT = cfg.get('split', True)
    S_WS, S_MD, S_X, S_Y = 4, 8, 12, 16
    sWAVE, sB, sJ, sWIN, sTOT, sN, sCNT, sT0, sT1, sT2, sFFF8, sHI, sCNP, sOOB = range(20, 34)
    sM = 34
    sDN = 36
    sTG = 37
    sR6 = 38
    sMODE = 39
    puid = [0]
    def poll(vt, off, tgt, slp=None):
        puid[0] += 1
        SLP = cfg.get('k2_slp', 0) if slp is None else slp
        if SLP:
            a.e(f"s_branch K2_PM{puid[0]}")
        a.e(f"K2_PL{puid[0]}:")
        if SLP:
            a.e(f"s_sleep {SLP}")
            a.e(f"K2_PM{puid[0]}:")
        a.e(f"ds_read_b32 v{vt}, v{vZERO} offset:{off}")
        a.e("s_waitcnt lgkmcnt(0)")
        a.e(f"v_readfirstlane_b32 s{sT0}, v{vt}")
        a.e(f"s_cmp_lt_u32 s{sT0}, {tgt}")
        a.e(f"s_cbranch_scc1 K2_PL{puid[0]}")
    def signal(vone, off):
        a.e("s_mov_b64 exec, 1")
        a.e(f"ds_add_u32 v{vZERO}, v{vone} offset:{off}")
        a.e("s_mov_b64 exec, -1")
    MSK = 40
    sPT, sPA = 88, 91
    TRACE = cfg.get('trace', False)
    vTR = 127
    def stamp(i):
        if TRACE:
            if i < 0:
                a.e(f"s_mov_b32 s{sPA}, 0")
                a.e(f"v_mov_b32 v{vTR}, 0")
                i = 15
            a.e(f"s_memtime s[{sPT}:{sPT+1}]")
            a.e("s_waitcnt lgkmcnt(0)")
            a.e(f"s_andn2_b32 s{sPT}, s{sPT}, 15")
            a.e(f"s_or_b32 s{sPT}, s{sPT}, {i}")
            a.e(f"s_mov_b32 m0, s{sPA}")
            a.e(f"s_add_u32 s{sPA}, s{sPA}, 1")
            a.e(f"s_min_u32 s{sPA}, s{sPA}, 63")
            a.e(f"v_writelane_b32 v{vTR}, s{sPT}, m0")
    vLANE, vZERO = 1, 2
    T_ = 100

    a.e(f"s_cmp_ge_u32 s2, {NWG}")
    a.e("s_cbranch_scc1 K2_END")
    if cfg.get('rt'): a.e("s_memrealtime s[96:97]")
    stamp(-1)
    a.e(f"s_load_dwordx2 s[{S_WS}:{S_WS+1}], s[0:1], 104")
    a.e(f"s_mov_b32 s{S_WS+2}, {WS_BYTES}")
    a.e(f"s_mov_b32 s{S_WS+3}, 0x00020000")
    a.e(f"v_lshrrev_b32 v{T_}, 6, v0")
    a.e(f"v_and_b32 v{vLANE}, 63, v0")
    a.e(f"v_readfirstlane_b32 s{sWAVE}, v{T_}")
    a.e(f"s_and_b32 s{sB}, s2, 7")
    a.e(f"s_lshl_b32 s{sB}, s{sB}, 5")
    a.e(f"s_lshr_b32 s{sT0}, s2, 3")
    a.e(f"s_or_b32 s{sB}, s{sB}, s{sT0}")
    a.e(f"s_mov_b32 s{sHI}, 0xffff0000")
    a.e(f"s_mov_b32 s{sOOB}, 0x80000000")
    a.e(f"v_mov_b32 v{vZERO}, 0")
    a.e(f"s_cmp_ge_u32 s{sWAVE}, 8")
    a.e("s_cbranch_scc1 K2_CONS")

    vL12, vTB, vCN, vSCR, vFOUR, vL16 = range(3, 9)
    R = 10
    def P(c): return 18 + 4 * c
    U, KA, OLD = 50, 66, 82
    if PPRIO: a.e(f"s_setprio {PPRIO}")
    a.e(f"s_mov_b32 s{sT0}, {cfg.get('tile_s', TILE_B)}")
    a.e(f"v_mul_lo_u32 v{vTB}, v0, s{sT0}")
    RL = 20
    a.e(f"s_lshl_b32 s{sT0}, s{sB}, 4")
    a.e(f"v_mul_u32_u24 v{T_+1}, {REC_STR}, v0")
    a.e(f"v_add_u32 v{T_+1}, s{sT0}, v{T_+1}")
    a.e(f"s_mov_b32 s{sT0}, {REC_OFF}")
    a.e("s_waitcnt lgkmcnt(0)")
    a.e(f"buffer_load_dwordx4 {vr(RL,4)}, v{T_+1}, s[{S_WS}:{S_WS+3}], s{sT0} offen")
    a.e(f"buffer_load_dwordx4 {vr(RL+4,4)}, v{T_+1}, s[{S_WS}:{S_WS+3}], s{sT0} offen offset:16")
    a.e("s_barrier")
    a.e(f"v_mul_u32_u24 v{vL12}, 12, v{vLANE}")
    a.e(f"v_lshlrev_b32 v{vL16}, 4, v{vLANE}")
    a.e(f"v_mov_b32 v{vFOUR}, 4")
    a.e(f"v_min_u32 v{vCN}, 1, v{vLANE}")
    a.e(f"v_lshlrev_b32 v{vSCR}, 3, v0")
    a.e(f"v_add_u32 v{vSCR}, {K2_SCR}, v{vSCR}")
    a.e(f"v_mov_b32 v{T_+2}, 0")
    a.e(f"v_mov_b32 v{T_+3}, 0")
    a.e(f"ds_write_b64 v{vSCR}, {vr(T_+2,2)}")
    a.e(f"s_mov_b32 s{sTG}, 0")
    a.e(f"s_mov_b32 s{sDN}, 0")
    PZL = cfg.get('t5') and cfg.get('k2_pzl', 1)
    if PZL:
        a.e(f"s_lshl_b32 s{sMODE}, s{sB}, 15")
        a.e(f"s_add_u32 s{sMODE}, s{sMODE}, {XB_OFF}")
        for q in range(4): a.e(f"v_mov_b32 v{88+q}, -1")
        a.e(f"v_lshlrev_b32 v92, 4, v0")
    else: a.e(f"s_mov_b32 s{sMODE}, 0")
    def pzone(lab):
        a.e(f"s_and_b32 s{sT0}, s{sMODE}, 0x6000")
        a.e(f"s_cmp_eq_u32 s{sT0}, 0x6000")
        a.e(f"s_cbranch_scc1 {lab}")
        a.e(f"buffer_store_dwordx4 v[88:91], v92, s[{S_WS}:{S_WS+3}], s{sMODE} offen sc1")
        a.e(f"s_add_u32 s{sMODE}, s{sMODE}, 8192")
    for k in range(4):
        a.e(f"v_mov_b32 v{OLD+k}, 0")
    a.e(f"s_mov_b32 s{sJ}, 8")
    a.e(f"s_mov_b32 s{sWIN}, 0")
    a.e(f"s_mov_b32 s{sT0}, 0x05040100")
    a.e(f"s_mov_b32 s{sT1}, 0x07060302")
    a.e("s_waitcnt vmcnt(0) lgkmcnt(0)")
    for k in range(8):
        a.e(f"v_perm_b32 v{R+k}, v{RL+4+(k>>1)}, v{RL+(k>>1)}, s{sT1 if k & 1 else sT0}")
    if SPLIT:
        a.e(f"s_cmp_lt_u32 s{sB}, 128")
        a.e("s_cbranch_scc1 K2_NOSWAP")
        a.e(f"v_swap_b32 v{R+6}, v{R+7}")
        a.e("K2_NOSWAP:")
    stamp(0)

    def rotate():
        for k in range(7):
            a.e(f"v_mov_b32 v{R+k}, v{R+k+1}")
        a.e(f"v_mov_b32 v{R+7}, 0")
        a.e(f"s_sub_u32 s{sJ}, s{sJ}, 1")

    a.e("K2_PLOOP:")
    s_, e_, p0, n_, inc, S_, V_, x_, sl, y_, el = range(T_, T_ + 11)
    a.e(f"v_and_b32 v{s_}, 0xffff, v{R}")
    a.e(f"v_lshrrev_b32 v{e_}, 16, v{R}")
    a.e(f"v_lshrrev_b32 v{p0}, 1, v{s_}")
    a.e(f"v_add_u32 v{n_}, 1, v{e_}")
    a.e(f"v_cmp_gt_u32 s[{sM}:{sM+1}], v{e_}, v{s_}")
    a.e(f"v_lshrrev_b32 v{n_}, 1, v{n_}")
    a.e(f"v_sub_u32 v{n_}, v{n_}, v{p0}")
    a.e(f"v_cndmask_b32 v{n_}, 0, v{n_}, s[{sM}:{sM+1}]")
    a.e(f"v_mov_b32 v{inc}, v{n_}")
    dpp_scan(a, inc)
    a.e(f"v_readlane_b32 s{sTOT}, v{inc}, 63")
    a.e(f"s_cmp_lt_u32 s{sWIN}, s{sTOT}")
    a.e(f"s_cbranch_scc1 K2_FGO")
    a.e(f"s_cmp_eq_u32 s{sJ}, 0")
    a.e(f"s_cbranch_scc1 K2_FGO")
    rotate()
    a.e(f"s_mov_b32 s{sWIN}, 0")
    a.e(f"s_branch K2_PLOOP")
    a.e(f"K2_FGO:")
    a.e(f"v_subrev_u32 v{inc}, s{sWIN}, v{inc}")
    a.e(f"v_sub_u32 v{S_}, v{inc}, v{n_}")
    a.e(f"v_add_u32 v{el}, -1, v{inc}")
    if cfg.get('x_al'):
        a.e(f"v_mul_u32_u24 v{V_}, 3, v{p0}")
        a.e(f"v_and_b32 v{V_}, 0xffe0, v{V_}")
        a.e(f"v_add_u32 v{V_}, 2, v{V_}")
        a.e(f"v_mul_u32_u24 v{V_}, 21846, v{V_}")
        a.e(f"v_lshrrev_b32 v{V_}, 16, v{V_}")
        a.e(f"v_sub_u32 v{V_}, v{V_}, v{S_}")
    else:
        a.e(f"v_sub_u32 v{V_}, v{p0}, v{S_}")
    a.e(f"v_mad_i32_i24 v{V_}, v{V_}, 12, v{vTB}")
    a.e(f"v_cmp_le_i32 vcc, 0, v{S_}")
    a.e(f"v_and_b32 v{x_}, 1, v{s_}")
    a.e(f"s_and_b64 vcc, vcc, s[{sM}:{sM+1}]")
    a.e(f"v_max_i32 v{sl}, 0, v{S_}")
    a.e(f"v_cndmask_b32 v{x_}, 0, v{x_}, vcc")
    a.e(f"v_lshl_or_b32 v{x_}, v{x_}, 6, v{vCN}")
    a.e(f"v_and_b32 v{y_}, 1, v{e_}")
    a.e(f"v_lshlrev_b32 v{y_}, 7, v{y_}")
    def marker(val, slot, tmp):
        a.e(f"v_lshrrev_b32 v{tmp}, 3, v{slot}")
        a.e(f"v_and_b32 v{tmp}, 0x18, v{tmp}")
        a.e(f"v_lshlrev_b32 v{val}, v{tmp}, v{val}")
        a.e(f"v_lshrrev_b32 v{tmp}, 8, v{slot}")
        a.e(f"v_cmp_gt_u32 vcc, 512, v{slot}")
        a.e(f"v_and_b32 v{slot}, 63, v{slot}")
        a.e(f"v_sub_u32 v{slot}, v{slot}, v{vLANE}")
        a.e(f"v_lshl_add_u32 v{slot}, v{slot}, 1, v{tmp}")
        a.e(f"v_lshl_add_u32 v{slot}, v{slot}, 2, v{vSCR}")
    marker(x_, sl, s_)
    a.e(f"s_mov_b64 exec, vcc")
    a.e(f"ds_add_u32 v{sl}, v{x_}")
    a.e(f"s_mov_b64 exec, -1")
    marker(y_, el, s_)
    a.e(f"s_and_b64 exec, vcc, s[{sM}:{sM+1}]")
    a.e(f"ds_add_u32 v{el}, v{y_}")
    a.e(f"s_mov_b64 exec, -1")
    RAW, RW2, CN = T_ + 12, T_ + 14, T_ + 16
    AD = T_ + 18
    a.e(f"ds_read_b64 {vr(RAW,2)}, v{vSCR}")
    a.e(f"v_mov_b32 v{RW2}, 0")
    a.e(f"v_mov_b32 v{RW2+1}, 0")
    a.e(f"ds_write_b64 v{vSCR}, {vr(RW2,2)}")
    a.e(f"s_sub_u32 s{sT2}, s{sTOT}, s{sWIN}")
    a.e("s_waitcnt lgkmcnt(1)")
    for h in range(2):
        a.e(f"v_and_b32 v{CN+h}, 0x3f3f3f3f, v{RAW+h}")
    for h in range(2):
        a.e(f"v_lshlrev_b32 v{RW2+h}, 1, v{RAW+h}")
    mk = []
    for c in range(8):
        mk.append(f"v_cmp_le_i32_sdwa s[{MSK+4*c}:{MSK+4*c+1}], 0, sext(v{RW2+(c>>2)}) src0_sel:DWORD src1_sel:BYTE_{c&3}")
        mk.append(f"v_cmp_le_i32_sdwa s[{MSK+4*c+2}:{MSK+4*c+3}], 0, sext(v{RAW+(c>>2)}) src0_sel:DWORD src1_sel:BYTE_{c&3}")
    dp = [f"row_shr:{sh} row_mask:0xf bank_mask:0xf bound_ctrl:0" for sh in (1, 2, 4, 8)] + \
         ["row_bcast:15 row_mask:0xa bank_mask:0xf", "row_bcast:31 row_mask:0xc bank_mask:0xf"]
    for d_ in dp:
        for h in range(2):
            a.e(f"v_add_u32_dpp v{CN+h}, v{CN+h}, v{CN+h} {d_}")
        a.e(mk.pop(0))
    a.e(f"v_readlane_b32 s{sT0}, v{CN}, 63")
    a.e(f"v_readlane_b32 s{sT1}, v{CN+1}, 63")
    a.e(mk.pop(0)); a.e(mk.pop(0))
    a.e(f"s_mul_i32 s{sM}, s{sT0}, 0x01010101")
    a.e(f"s_lshl_b32 s{sT0}, s{sM}, 8")
    a.e(f"s_lshr_b32 s{sM}, s{sM}, 24")
    a.e(f"s_lshl_b32 s{sT1}, s{sT1}, 8")
    a.e(f"s_add_u32 s{sT1}, s{sT1}, s{sM}")
    a.e(f"s_mul_i32 s{sT1}, s{sT1}, 0x01010101")
    a.e(f"v_add_u32 v{CN}, s{sT0}, v{CN}")
    a.e(f"v_add_u32 v{CN+1}, s{sT1}, v{CN+1}")
    for c in range(8):
        a.e(f"v_lshlrev_b32_sdwa v{AD+c}, 2, v{CN+(c>>2)} dst_sel:DWORD dst_unused:UNUSED_PAD src0_sel:DWORD src1_sel:BYTE_{c&3}")
        a.e(f"ds_bpermute_b32 v{AD+c}, v{AD+c}, v{V_}")
    for m_ in mk: a.e(m_)
    a.e(f"v_mov_b32 v{s_}, s{sOOB}")
    a.e(f"v_add_u32 v{e_}, {768*4}, v{vL12}")
    for c in range(8):
        a.e(f"v_cmp_gt_i32 vcc, s{sT2}, v{vLANE}")
        a.e(f"s_sub_u32 s{sT2}, s{sT2}, 64")
        a.e(f"s_and_b64 s[{MSK+4*c}:{MSK+4*c+1}], s[{MSK+4*c}:{MSK+4*c+1}], vcc")
        a.e(f"s_and_b64 s[{MSK+4*c+2}:{MSK+4*c+3}], s[{MSK+4*c+2}:{MSK+4*c+3}], vcc")
        a.e(f"s_waitcnt lgkmcnt({7-c})")
        a.e(f"v_add_u32 v{AD+c}, v{AD+c}, v{vL12 if c < 4 else e_}")
        a.e(f"v_cndmask_b32 v{AD+c}, v{s_}, v{AD+c}, vcc")
        a.e(f"buffer_load_dwordx3 {vr(P(c),3)}, v{AD+c}, s[{S_WS}:{S_WS+3}], 0 offen offset:{768*(c&3)}")
    a.e(f"s_add_u32 s{sWIN}, s{sWIN}, 512")
    a.e(f"s_cmp_lt_u32 s{sWIN}, s{sTOT}")
    a.e(f"s_cbranch_scc1 K2_FDONE")
    a.e(f"s_mov_b32 s{sWIN}, 0")
    a.e(f"s_cmp_eq_u32 s{sJ}, 0")
    a.e(f"s_cbranch_scc1 K2_FDONE")
    rotate()
    a.e(f"K2_FDONE:")
    stamp(1)
    if 'k2_sprio' in cfg and cfg.get('k2_sprio_at', 0) == 2: a.e(f"s_setprio {cfg['k2_sprio']}")
    vPL = cfg.get('vpl', 86)
    poll(vPL, K2_FP, f"s{sTG}")
    a.e(f"s_add_u32 s{sTG}, s{sTG}, 32")
    a.e(f"s_cmp_lt_u32 s{sDN}, 0xff00")
    a.e(f"s_cselect_b32 s{sR6}, s{sTG}, s{sR6}")
    a.e(f"s_cmp_le_u32 s{sJ}, {1 if SPLIT else 0}")
    a.e(f"s_cselect_b32 s{sT0}, 0x100, 0")
    a.e(f"s_cmp_eq_u32 s{sJ}, 0")
    a.e(f"s_addc_u32 s{sT0}, s{sT0}, 0")
    a.e(f"s_lshl_b32 s{sT0}, s{sT0}, s{sWAVE}")
    a.e(f"v_mov_b32 v{vPL}, s{sT0}")
    for c in range(8):
        a.e(f"s_waitcnt vmcnt({7-c})")
        for h in range(2):
            i = 2 * c + h
            a.e(f"v_lshlrev_b32_sdwa v{KA+i}, 2, v{P(c)+2*h} dst_sel:DWORD dst_unused:UNUSED_PAD src0_sel:DWORD src1_sel:BYTE_1")
        for h in range(2):
            i = 2 * c + h
            a.e(f"s_mov_b64 exec, s[{MSK+2*i}:{MSK+2*i+1}]")
            a.e(f"ds_add_rtn_u32 v{U+i}, v{KA+i}, v{vFOUR}")
        if c < 7: a.e("s_mov_b64 exec, -1")
    a.e("s_mov_b64 exec, 1")
    a.e(f"ds_or_b32 v{vZERO}, v{vPL} offset:{K2_DN}")
    a.e(f"ds_add_u32 v{vZERO}, v{vFOUR} offset:{K2_FH}")
    a.e("s_mov_b64 exec, -1")
    stamp(2)
    if PZL:
        if PZL > 1:
            a.e(f"s_cmp_lt_u32 s{sTG}, {32*PZL}")
            a.e(f"s_cbranch_scc1 K2_PLH")
        pzone("K2_PLH")
    a.e(f"K2_PLH:")
    a.e(f"ds_read_b64 {vr(vPL,2)}, v{vZERO} offset:{K2_FH}")
    a.e("s_waitcnt lgkmcnt(0)")
    a.e(f"v_readfirstlane_b32 s{sT0}, v{vPL}")
    a.e(f"s_cmp_lt_u32 s{sT0}, s{sTG}")
    a.e(f"s_cbranch_scc1 K2_PLH")
    stamp(3)
    if 'k2_sprio' in cfg and cfg.get('k2_sprio_at', 0) == 0: a.e(f"s_setprio {cfg['k2_sprio']}")
    NW, CC, TT, BS = T_, T_ + 4, T_ + 8, T_ + 12
    a.e(f"ds_read_b128 {vr(NW,4)}, v{vL16}")
    signal(vFOUR, K2_FP)
    a.e(f"v_readfirstlane_b32 s{sDN}, v{vPL+1}")
    a.e("s_waitcnt lgkmcnt(1)")
    for k in range(4):
        a.e(f"v_sub_u32 v{CC+k}, v{NW+k}, v{OLD+k}")
    a.e(f"v_add_u32 v{TT}, v{CC}, v{CC+1}")
    a.e(f"v_add3_u32 v{TT}, v{TT}, v{CC+2}, v{CC+3}")
    a.e(f"v_sub_u32 v{TT+1}, {K2_SW}, v{TT}")
    dpp_scan(a, TT)
    a.e(f"v_add_u32 v{TT+1}, v{TT+1}, v{TT}")
    a.e(f"v_readlane_b32 s{sN}, v{TT}, 63")
    for k in range(4):
        a.e(f"v_sub_u32 v{BS+k}, v{TT+1}, v{OLD+k}")
        if k < 3:
            a.e(f"v_add_u32 v{TT+1}, v{TT+1}, v{CC+k}")
        a.e(f"v_mov_b32 v{OLD+k}, v{NW+k}")
    a.e(f"ds_write_b128 v{vL16}, {vr(BS,4)} offset:{K2_BASE}")
    for i in range(16):
        a.e(f"ds_read_b32 v{KA+i}, v{KA+i} offset:{K2_BASE}")
    a.e(f"s_sub_u32 s{sT1}, s{sTG}, 32")
    stamp(4)
    poll(vPL, K2_FR, f"s{sT1}")
    stamp(5)
    if 'k2_sprio' in cfg and cfg.get('k2_sprio_at', 0) == 1: a.e(f"s_setprio {cfg['k2_sprio']}")
    a.e(f"s_cmp_lg_u32 s{sWAVE}, 0")
    a.e(f"s_cbranch_scc1 K2_NOPAD")
    a.e(f"s_add_u32 s{sT0}, s{sN}, {K2_SW}")
    a.e(f"v_lshl_add_u32 v{TT}, v{vLANE}, 2, s{sT0}")
    a.e(f"v_mov_b32 v{TT+1}, {hex(DUMMY)}")
    a.e(f"ds_write_b32 v{TT}, v{TT+1}")
    a.e(f"v_lshrrev_b32 v{TT}, 1, v{TT}")
    a.e(f"v_cmp_gt_u32 vcc, {K2_SW//2 + 16384}, v{TT}")
    a.e(f"s_cmp_eq_u32 s{sDN}, 0xffff")
    a.e(f"s_addc_u32 s{sT0}, s{sN}, 0")
    a.e(f"v_mov_b32 v{TT+3}, s{sT0}")
    a.e(f"ds_write_b32 v{vZERO}, v{TT+3} offset:{K2_NCELL}")
    a.e(f"s_mov_b64 exec, vcc")
    if not cfg.get('x_nopad'): a.e(f"ds_write_b16 v{TT}, v{vZERO} offset:{K2_SA - K2_SW//2}")
    a.e(f"s_mov_b64 exec, -1")
    a.e("K2_NOPAD:")
    for i in range(16):
        a.e(f"v_add_u32 v{U+i}, v{U+i}, v{KA+i}")
        a.e(f"v_lshrrev_b32 v{KA+i}, 1, v{U+i}")
    for i in range(16):
        c, h = i >> 1, i & 1
        a.e(f"s_mov_b64 exec, s[{MSK+2*i}:{MSK+2*i+1}]")
        a.e(f"ds_write_b32 v{U+i}, v{P(c)+2*h}")
        a.e(f"ds_write_b16{'_d16_hi' if h else ''} v{KA+i}, v{P(c)+1} offset:{K2_SA - K2_SW//2}")
    signal(vFOUR, K2_FS)
    stamp(4)
    if 'k2_sprio' in cfg: a.e(f"s_setprio {PPRIO}")
    a.e(f"s_cmp_lg_u32 s{sDN}, 0xffff")
    a.e("s_cbranch_scc1 K2_PLOOP")

    def tail_old():
        a.e("K2_PTAIL:")
        a.e(f"s_setprio {cfg.get('k2_tprio', 2)}")
        S_W1, S_W2, S_C, S_D, S_MM = 40, 44, 48, 56, 60
        sGI, sEP, sEO, sLP, sLO, sK6 = 64, 66, 67, 68, 69, 70
        S_WA = 72
        S_WR = 92 if TRACE else 88
        sBI, sTOP = sJ, sWIN
        DI, WOP, AA, MM, GG = 10, 24, 32, 88, 8
        DB0, XX, RB, vOF, vCK = 104, 120, 28, 3, 126
        a.e(f"s_load_dwordx2 s[{S_D}:{S_D+1}], s[0:1], 24")
        a.e(f"s_load_dwordx2 s[{S_W2}:{S_W2+1}], s[0:1], 56")
        a.e(f"s_load_dwordx2 s[{S_W1}:{S_W1+1}], s[0:1], 64")
        a.e(f"s_load_dwordx2 s[{S_MM}:{S_MM+1}], s[0:1], 0")
        a.e(f"s_load_dwordx2 s[{S_X}:{S_X+1}], s[0:1], 80")
        a.e(f"s_load_dwordx2 s[{S_Y}:{S_Y+1}], s[0:1], 88")
        for sr_, n in ((S_D, E * 2), (S_W1, 128), (S_W2, 64), (S_MM, E * 8), (S_Y, E * 8)):
            a.e(f"s_mov_b32 s{sr_+2}, {n}")
            a.e(f"s_mov_b32 s{sr_+3}, 0x00020000")
        a.e(f"s_lshr_b32 s{sT0}, s{sB}, 7")
        a.e(f"s_and_b32 s{sT1}, s{sB}, 127")
        a.e(f"s_mul_i32 s{sLP}, s{sT0}, {EPB}")
        a.e(f"s_sub_u32 s{sLO}, {EPB}, s{sLP}")
        a.e(f"s_mul_i32 s{sT1}, s{sT1}, {2*EPB}")
        a.e(f"s_add_u32 s{sEP}, s{sT1}, s{sLP}")
        a.e(f"s_add_u32 s{sEO}, s{sT1}, s{sLO}")
        a.e(f"s_mov_b32 s{sBI}, 0x40004000")
        a.e(f"s_mov_b32 s{sTOP}, 0x80008000")
        for k in range(14):
            a.e(f"v_mov_b32 v{DI+k}, 0")
        for q in range(8):
            a.e(f"v_mov_b32 v{WOP+q}, 0")
        a.e(f"v_add_lshl_u32 v{XX+2}, v0, s{sEP}, 1")
        a.e(f"v_add_lshl_u32 v{XX+4}, v0, s{sEO}, 1")
        a.e(f"v_add_u32 v{XX+3}, 4096, v{XX+2}")
        a.e(f"v_add_u32 v{XX+5}, 4096, v{XX+4}")
        a.e(f"v_and_b32 v{DB0+1}, 3, v{vLANE}")
        a.e(f"v_lshlrev_b32 v{DB0+1}, 1, v{DB0+1}")
        a.e(f"v_and_or_b32 v{DB0}, v{vLANE}, 8, v{DB0+1}")
        a.e(f"v_lshlrev_b32 v{vOF+2}, 3, v0")
        a.e(f"v_mov_b32 v{DB0+2}, s{sOOB}")
        a.e(f"v_cmp_gt_u32 s[{sK6}:{sK6+1}], {EPB - 3072}, v0")
        a.e(f"v_lshlrev_b32 v{vOF}, 2, v{XX+4}")
        a.e(f"v_add_u32 v{vOF+1}, {6*4096}, v{vOF}")
        a.e(f"v_cndmask_b32 v{vOF+1}, v{DB0+2}, v{vOF+1}, s[{sK6}:{sK6+1}]")
        a.e(f"v_cndmask_b32 v{vOF+3}, v{DB0+2}, v{vOF+2}, s[{sK6}:{sK6+1}]")
        poll(XX, K2_GI, "1", 0)
        a.e(f"s_mov_b32 s{sGI}, s{sT0}")
        a.e(f"s_mov_b32 s{sGI+1}, s{sT0}")
        a.e(f"s_load_dwordx8 s[{S_WR}:{S_WR+7}], s[{S_X}:{S_X+1}], 0")
        a.vm = []
        for k in range(7):
            a.vmem(f"buffer_load_short_d16_hi v{DI+k}, v{XX+2+(k>>2)}, s[{S_D}:{S_D+3}], 0 offen offset:{(k&3)*1024}", ('D', k))
        a.e(f"s_mov_b32 exec_lo, 0x00000f0f")
        a.e(f"s_mov_b32 exec_hi, 0x0000f0f0")
        for r in range(8):
            a.vmem(f"buffer_load_short_d16{'_hi' if r & 1 else ''} v{WOP+(r>>1)+4*(r&1)}, v{DB0}, s[{S_W1}:{S_W1+3}], 0 offen offset:{16*r}", 'W')
        a.e(f"s_mov_b32 exec_lo, 0x000f0000")
        a.e(f"s_mov_b32 exec_hi, 0x00f00000")
        for r in range(8):
            a.vmem(f"buffer_load_short_d16{'_hi' if r & 1 else ''} v{WOP+(r>>1)+4*(r&1)}, v{DB0+1}, s[{S_W2}:{S_W2+3}], 0 offen offset:{8*r}", 'W')
        a.e(f"s_mov_b64 exec, -1")
        for k in range(7):
            a.vmem(f"buffer_load_short_d16_hi v{DI+7+k}, v{XX+4+(k>>2)}, s[{S_D}:{S_D+3}], 0 offen offset:{(k&3)*1024}", ('D', 7 + k))
        for k in range(7):
            a.e(f"s_mov_b32 s{sT0}, {4096*k if k < 6 else 0}")
            a.vmem(f"buffer_load_dwordx2 {vr(MM+2*k,2)}, v{vOF + (k == 6)}, s[{S_MM}:{S_MM+3}], s{sT0} offen", 'M')
        for r in range(8):
            a.e(f"s_mov_b32 s{S_C+r}, {f2h(-KAP * h2f(CENTERS[r]))}")
        a.e(f"s_add_u32 s{sR6}, s{sR6}, 64")
        a.wvm('W')
        for q in range(4):
            a.e(f"v_or_b32 v{WOP+q}, v{WOP+q}, v{WOP+4+q}")
        def rbf(dv, X):
            a.e(f"v_mul_f32 v{102}, {f2h(KAP)}, v{dv}")
            for q in range(4):
                a.e(f"v_pk_add_f32 {vr(X+2*q,2)}, {vr(102,2)}, s[{S_C+2*q}:{S_C+2*q+1}] op_sel_hi:[0,1]")
            for q in range(4):
                a.e(f"v_pk_mul_f32 {vr(X+2*q,2)}, {vr(X+2*q,2)}, {vr(X+2*q,2)}")
            for r in range(8):
                a.e(f"v_exp_f32 v{X+r}, -v{X+r}")
        def acomp(base, own, hook=None):
            rbf(base, AA)
            for k in range(7):
                X = AA + 8 * k
                for q in range(4):
                    a.e(f"v_cvt_pk_bf16_f32 v{RB+q}, v{X+2*q}, v{X+2*q+1}")
                if not cfg.get('x_nomfma'): a.e(f"v_mfma_f32_32x32x16_bf16 {vr(DB0,16)}, {vr(WOP,4)}, {vr(RB,4)}, 0")
                if k < 6: rbf(base + k + 1, X + 8)
                for d in range(4):
                    a.e(f"v_pk_mul_f32 {vr(X+2*d,2)}, {vr(DB0+2*d,2)}, s[{sGI}:{sGI+1}]")
                if own:
                    for q in range(2):
                        a.e(f"v_cvt_pk_bf16_f32 v{GG+2*k+q}, v{DB0+8+2*q}, v{DB0+9+2*q}")
                if hook: hook(k)
        a.e(f"s_cmp_lg_u32 s{sMODE}, 0")
        a.e("s_cbranch_scc1 K2_TOWN")
        acomp(DI, False)
        stamp(11)
        a.e(f"v_and_b32 v{XX+1}, 7, v{vLANE}")
        a.e(f"v_lshlrev_b32 v{XX+1}, 2, v{XX+1}")
        a.e(f"v_add_lshl_u32 v{XX+2}, v0, s{sLP}, 3")
        a.e(f"v_add_u32 v{XX+3}, {STR2}, v{XX+2}")
        a.e(f"s_mul_i32 s{sT2}, s{sB}, {XB_STR}")
        a.e(f"s_add_u32 s{sT2}, s{sT2}, {XB_OFF}")
        a.wvm0()
        a.e("s_branch K2_FD1")
        a.e("K2_FD0:")
        a.e(f"s_sleep {cfg.get('k2_fdslp', 2)}")
        a.e("K2_FD1:")
        a.e(f"ds_read_b32 v{XX}, v{XX+1} offset:{K2C_FD}")
        a.e("s_waitcnt lgkmcnt(0)")
        a.e(f"v_cmp_gt_u32 vcc, s{sR6}, v{XX}")
        a.e("s_cbranch_vccnz K2_FD0")
        a.e("s_setprio 3")
        stamp(12)
        a.lg = []
        a.lds(f"ds_read_b32 v{vCK}, v{vZERO} offset:{K2_VI}", 'V')
        def sread(k, dst):
            for q in range(2):
                a.lds(f"ds_read_b64 {vr(dst+2*q,2)}, v{XX+2+q} offset:{ACC + 4096*k}", ('S', k))
        def agg(k, S, tmp, init):
            X = AA + 8 * k
            if k == 6: a.e(f"s_mov_b64 exec, s[{sK6}:{sK6+1}]")
            a.e(f"v_or3_b32 v{vCK}, v{vCK}, v{S}, v{S+1}")
            a.e(f"v_or3_b32 v{vCK}, v{vCK}, v{S+2}, v{S+3}")
            if k == 6: a.e(f"s_mov_b64 exec, -1")
            for q in range(4):
                a.e(f"v_pk_sub_i16 v{S+q}, v{S+q}, s{sBI}")
            for d in range(4):
                a.e(f"v_cvt_f32_i32_sdwa v{tmp+d}, sext(v{S+(d>>1)}) dst_sel:DWORD dst_unused:UNUSED_PAD src0_sel:WORD_{d&1}")
            for q in range(2):
                if init:
                    a.e(f"v_pk_fma_f32 {vr(RB+2*q,2)}, {vr(X+2*q,2)}, {vr(tmp+2*q,2)}, {vr(RB+2*q,2)}")
                else:
                    a.e(f"v_pk_mul_f32 {vr(RB+2*q,2)}, {vr(X+2*q,2)}, {vr(tmp+2*q,2)}")
            for d in range(4):
                a.e(f"v_cvt_f32_i32_sdwa v{X+d}, sext(v{S+2+(d>>1)}) dst_sel:DWORD dst_unused:UNUSED_PAD src0_sel:WORD_{d&1}")
            for q in range(2):
                a.e(f"v_pk_fma_f32 {vr(RB+2*q,2)}, {vr(X+4+2*q,2)}, {vr(X+2*q,2)}, {vr(RB+2*q,2)}")
        for k in range(3): sread(k, DB0 + 4 * k)
        for k in range(7):
            if k + 3 < 7: sread(k + 3, DB0 + 4 * ((k + 3) % 4))
            a.wlg(('S', k))
            agg(k, DB0 + 4 * (k % 4), 8, False)
            a.e(f"v_cvt_pk_bf16_f32 v{AA+8*k}, v{RB}, v{RB+1}")
            a.e(f"v_cvt_pk_bf16_f32 v{AA+8*k+1}, v{RB+2}, v{RB+3}")
            a.vmem(f"buffer_store_dwordx2 {vr(AA+8*k,2)}, v{vOF+2+(k == 6)}, s[{S_WS}:{S_WS+3}], s{sT2} offen sc1", 'X')
            a.e(f"s_add_u32 s{sT2}, s{sT2}, 4096")
        a.e(f"s_setprio {cfg.get('k2_tprio', 2)}")
        a.e(f"v_and_b32 v{vCK}, s{sTOP}, v{vCK}")
        a.e(f"v_cmp_ne_u32 vcc, 0, v{vCK}")
        a.e(f"s_cmp_lg_u64 vcc, 0")
        a.e(f"s_cselect_b32 s{sT0}, 0x8004, 4")
        a.e(f"v_mov_b32 v{vFOUR}, s{sT0}")
        stamp(13)
        a.e(f"s_lshl_b32 s{sT1}, s{sWAVE}, 4")
        a.e(f"s_add_u32 s{sT1}, s{sT1}, {FL_OFF}")
        a.e(f"s_lshl_b32 s{sT2}, s{sB}, 7")
        a.e(f"s_add_u32 s{sEP}, s{sT1}, s{sT2}")
        a.e(f"s_xor_b32 s{sT2}, s{sT2}, {128 << 7}")
        a.e(f"s_add_u32 s{sLP}, s{sT1}, s{sT2}")
        a.e("K2_TOWN:")
        FLK = cfg.get('k2_flk', 1)
        def flag(k):
            if k == FLK:
                a.wvm0()
                a.e(f"s_cmp_lg_u32 s{sMODE}, 0")
                a.e("s_cbranch_scc1 K2_NOFLAG")
                a.e("s_mov_b64 exec, 1")
                a.e(f"buffer_store_dword v{vFOUR}, v{vZERO}, s[{S_WS}:{S_WS+3}], s{sEP} offen sc1")
                a.e("s_mov_b64 exec, -1")
                a.e("K2_NOFLAG:")
        DO2 = 120
        a.e("s_waitcnt vmcnt(7)")
        for k in range(7):
            a.e(f"v_mov_b32 v{DO2+k}, v{DI+7+k}")
        if FLK < 0: flag(FLK)
        acomp(DO2, True, flag)
        a.e("s_waitcnt lgkmcnt(0)")
        for d in range(4):
            for h in range(2):
                src = S_WR + 2 * d + h
                a.e(f"s_lshl_b32 s{S_WA+4*d+2*h}, s{src}, 16")
                a.e(f"s_and_b32 s{S_WA+4*d+2*h+1}, s{src}, s{sHI}")
        a.e(f"s_cmp_lg_u32 s{sMODE}, 0")
        a.e("s_cbranch_scc1 K2_SFIN")
        stamp(14)
        a.e(f"s_mov_b32 s{sT0}, {1 << 14}")
        a.e(f"s_xor_b32 s{sT2}, s{sB}, 128")
        a.e(f"s_mul_i32 s{sT2}, s{sT2}, {XB_STR}")
        a.e(f"s_add_u32 s{sT2}, s{sT2}, {XB_OFF}")
        a.e("s_branch K2_FL1")
        a.e("K2_FL0:")
        a.e(f"s_sleep {cfg.get('k2_flslp', 4)}")
        a.e(f"v_mov_b32 v{vCK}, 0x8000")
        a.e(f"s_sub_u32 s{sT0}, s{sT0}, 1")
        a.e("s_cbranch_scc1 K2_FL2")
        a.e("K2_FL1:")
        a.e(f"buffer_load_dword v{vCK}, v{vZERO}, s[{S_WS}:{S_WS+3}], s{sLP} offen sc1")
        a.e("s_waitcnt vmcnt(0)")
        a.e(f"v_cmp_eq_u32 vcc, 0, v{vCK}")
        a.e("s_cbranch_vccnz K2_FL0")
        a.e("K2_FL2:")
        a.e("s_setprio 3")
        PP = [22, 24, 26, 102, 116, 118, 124]
        for k in range(7):
            a.e(f"buffer_load_dwordx2 {vr(PP[k],2)}, v{vOF+2+(k == 6)}, s[{S_WS}:{S_WS+3}], s{sT2} offen sc1")
            a.e(f"s_add_u32 s{sT2}, s{sT2}, 4096")
        a.e(f"v_add_lshl_u32 v{XX+2}, v0, s{sLO}, 3")
        a.e(f"v_add_u32 v{XX+3}, {STR2}, v{XX+2}")
        stamp(6)
        a.e("s_barrier")
        stamp(7)
        def unpack(dst, src):
            a.e(f"v_lshlrev_b32 v{dst}, 16, v{src}")
            a.e(f"v_and_b32 v{dst+1}, s{sHI}, v{src}")
            a.e(f"v_lshlrev_b32 v{dst+2}, 16, v{src+1}")
            a.e(f"v_and_b32 v{dst+3}, s{sHI}, v{src+1}")
        def finish(k):
            X = AA + 8 * k
            a.e(f"v_mov_b32 v{DB0+8}, v{RB+1}")
            a.e(f"v_mov_b32 v{DB0+10}, v{RB+3}")
            unpack(X + 4, GG + 2 * k)
            for d in range(4):
                src = RB + d if d % 2 == 0 else DB0 + 7 + d
                for q in range(2):
                    w = f"s[{S_WA+4*d+2*q}:{S_WA+4*d+2*q+1}]"
                    if d == 0:
                        a.e(f"v_pk_mul_f32 {vr(X+2*q,2)}, {vr(RB,2)}, {w} op_sel_hi:[0,1]")
                    else:
                        a.e(f"v_pk_fma_f32 {vr(X+2*q,2)}, {vr(src,2)}, {w}, {vr(X+2*q,2)} op_sel_hi:[0,1,1]")
            unpack(RB, MM + 2 * k)
            for q in range(2):
                a.e(f"v_pk_fma_f32 {vr(X+2*q,2)}, {vr(X+2*q,2)}, {vr(X+4+2*q,2)}, {vr(RB+2*q,2)}")
            a.e(f"v_cvt_pk_bf16_f32 v{MM+2*k}, v{X}, v{X+1}")
            a.e(f"v_cvt_pk_bf16_f32 v{MM+2*k+1}, v{X+2}, v{X+3}")
            a.e(f"s_mov_b32 s{sT0}, {4096*k if k < 6 else 0}")
            a.e(f"buffer_store_dwordx2 {vr(MM+2*k,2)}, v{vOF + (k == 6)}, s[{S_Y}:{S_Y+3}], s{sT0} offen")
        a.lg = []
        sread(0, DB0)
        for k in range(7):
            if k + 1 < 7: sread(k + 1, DB0 + 4 * ((k + 1) & 1))
            if k == 0: a.wvm0()
            unpack(RB, PP[k])
            a.wlg(('S', k))
            agg(k, DB0 + 4 * (k & 1), DB0 + 8, True)
            finish(k)
        a.e(f"v_and_b32 v{vCK}, s{sTOP}, v{vCK}")
        a.e(f"v_cmp_ne_u32 vcc, 0, v{vCK}")
        a.e(f"s_and_b64 exec, exec, vcc")
        a.e(f"ds_or_b32 v{vZERO}, v{vCK} offset:{K2_VI}")
        a.e(f"s_mov_b64 exec, -1")
        a.e("s_waitcnt lgkmcnt(0)")
        a.e("s_barrier")
        a.e(f"ds_read_b32 v{vCK}, v{vZERO} offset:{K2_VI}")
        a.e("s_waitcnt lgkmcnt(0)")
        a.e(f"v_cmp_ne_u32 vcc, 0, v{vCK}")
        a.e("s_cbranch_vccz K2_FIN")
        a.e(f"s_mov_b32 s{sMODE}, 1")
        a.e("s_barrier")
        a.e("s_waitcnt vmcnt(0)")
        a.e("s_barrier")
        a.e("s_branch K2_PTAIL")
        a.e("K2_SFIN:")
        a.e(f"v_lshlrev_b32 v{XX+2}, 2, v0")
        a.e(f"v_add_u32 v{XX+3}, {STR2}, v{XX+2}")
        for k in range(7):
            X = AA + 8 * k
            for q in range(8):
                a.e(f"ds_read_b32 v{DB0+q}, v{XX+2+(q>>2)} offset:{ACC + (q&3)*ACC_STR + 2048*k}")
            a.e("s_waitcnt lgkmcnt(0)")
            for q in range(8):
                a.e(f"v_cvt_f32_i32 v{DB0+q}, v{DB0+q}")
            for q in range(2):
                a.e(f"v_pk_mul_f32 {vr(RB+2*q,2)}, {vr(X+2*q,2)}, {vr(DB0+2*q,2)}")
            for q in range(2):
                a.e(f"v_pk_fma_f32 {vr(RB+2*q,2)}, {vr(X+4+2*q,2)}, {vr(DB0+4+2*q,2)}, {vr(RB+2*q,2)}")
            finish(k)
        a.e("s_branch K2_FIN")
    def unpack(dst, src):
        a.e(f"v_lshlrev_b32 v{dst}, 16, v{src}")
        a.e(f"v_and_b32 v{dst+1}, s{sHI}, v{src}")
        a.e(f"v_lshlrev_b32 v{dst+2}, 16, v{src+1}")
        a.e(f"v_and_b32 v{dst+3}, s{sHI}, v{src+1}")
    T5 = cfg.get('t5', False)
    XBS = 32768 if T5 else 7 * 8192
    S_W1, S_W2, S_C, S_D, S_MM = 52, 56, 8, 60, 64
    sGI, sK6, S_WA = 68, 70, 72
    S_WR = 92 if TRACE else 88
    sLP, sLO, sOM, sXS, sXR, sTOP = sJ, sWIN, sTOT, sDN, sR6, sOOB
    def t4_setup(tid, T, WOP, dregs, SC, pre=None):
        a.e(f"s_load_dwordx2 s[{S_D}:{S_D+1}], s[0:1], 24")
        a.e(f"s_load_dwordx2 s[{S_W2}:{S_W2+1}], s[0:1], 56")
        a.e(f"s_load_dwordx2 s[{S_W1}:{S_W1+1}], s[0:1], 64")
        a.e(f"s_load_dwordx2 s[{S_MM}:{S_MM+1}], s[0:1], 0")
        a.e(f"s_load_dwordx2 s[{S_WA}:{S_WA+1}], s[0:1], 80")
        a.e(f"s_load_dwordx2 s[{S_Y}:{S_Y+1}], s[0:1], 88")
        for sr_, n in ((S_D, E * 2), (S_W1, 128), (S_W2, 64), (S_MM, E * 8), (S_Y, E * 8)):
            a.e(f"s_mov_b32 s{sr_+2}, {n}")
            a.e(f"s_mov_b32 s{sr_+3}, 0x00020000")
        a.e(f"s_lshr_b32 s{sT0}, s{sB}, 7")
        a.e(f"s_and_b32 s{sT1}, s{sB}, 127")
        a.e(f"s_mul_i32 s{sLP}, s{sT0}, {EPB}")
        a.e(f"s_sub_u32 s{sLO}, {EPB}, s{sLP}")
        a.e(f"s_mul_i32 s{sT1}, s{sT1}, {2*EPB}")
        a.e(f"s_lshl_b32 s{sOM}, s{sT1}, 3")
        a.e(f"s_add_u32 s{sT1}, s{sT1}, s{sLO}")
        a.e(f"s_mul_i32 s{sXS}, s{sB}, {XBS}")
        a.e(f"s_add_u32 s{sXS}, s{sXS}, {XB_OFF}")
        a.e(f"s_xor_b32 s{sT2}, s{sB}, 128")
        a.e(f"s_mul_i32 s{sXR}, s{sT2}, {XBS}")
        a.e(f"s_add_u32 s{sXR}, s{sXR}, {XB_OFF}")
        a.e(f"s_mov_b32 s{sTOP}, 0x80008000")
        for k, r_ in dregs: a.e(f"v_mov_b32 v{r_}, 0")
        for q in range(8): a.e(f"v_mov_b32 v{WOP+q}, 0")
        a.e(f"v_add_lshl_u32 v{T+2}, v{tid}, s{sT1}, 1")
        a.e(f"v_add_u32 v{T+3}, 4096, v{T+2}")
        a.e(f"v_and_b32 v{T+1}, 3, v{tid}")
        a.e(f"v_lshlrev_b32 v{T+1}, 1, v{T+1}")
        a.e(f"v_and_or_b32 v{T}, v{tid}, 8, v{T+1}")
        a.e(f"v_cmp_gt_u32 s[{sK6}:{sK6+1}], {EPB - 3072}, v{tid}")
        if pre: pre()
        a.e("s_waitcnt lgkmcnt(0)")
        a.e(f"s_load_dwordx8 s[{S_WR}:{S_WR+7}], s[{S_WA}:{S_WA+1}], 0")
        for k, r_ in dregs:
            a.e(f"buffer_load_short_d16_hi v{r_}, v{T+2+(k>>2)}, s[{S_D}:{S_D+3}], 0 offen offset:{(k&3)*1024}")
        a.e(f"s_mov_b32 exec_lo, 0x00000f0f")
        a.e(f"s_mov_b32 exec_hi, 0x0000f0f0")
        for r in range(8):
            a.e(f"buffer_load_short_d16{'_hi' if r & 1 else ''} v{WOP+(r>>1)+4*(r&1)}, v{T}, s[{S_W1}:{S_W1+3}], 0 offen offset:{16*r}")
        a.e(f"s_mov_b32 exec_lo, 0x000f0000")
        a.e(f"s_mov_b32 exec_hi, 0x00f00000")
        for r in range(8):
            a.e(f"buffer_load_short_d16{'_hi' if r & 1 else ''} v{WOP+(r>>1)+4*(r&1)}, v{T+1}, s[{S_W2}:{S_W2+3}], 0 offen offset:{8*r}")
        a.e(f"s_mov_b64 exec, -1")
    def t4_consts(WOP, SC, dst=None):
        for q in range(4):
            a.e(f"v_or_b32 v{(WOP if dst is None else dst)+q}, v{WOP+q}, v{WOP+4+q}")
        for r in range(8):
            a.e(f"s_mov_b32 s{SC+r}, {f2h(-KAP * h2f(CENTERS[r]))}")
        for d in range(4):
            for h in range(2):
                src = S_WR + 2 * d + h
                a.e(f"s_lshl_b32 s{S_WA+4*d+2*h}, s{src}, 16")
                a.e(f"s_and_b32 s{S_WA+4*d+2*h+1}, s{src}, s{sHI}")
    def t4_acomp(items, KD, DB0, WOP, RB, SC):
        def rbf(X):
            a.e(f"v_mul_f32 v{KD}, {f2h(KAP)}, v{X}")
            for q in range(4):
                a.e(f"v_pk_add_f32 {vr(X+2*q,2)}, {vr(KD,2)}, s[{SC+2*q}:{SC+2*q+1}] op_sel_hi:[0,1]")
            for q in range(4):
                a.e(f"v_pk_mul_f32 {vr(X+2*q,2)}, {vr(X+2*q,2)}, {vr(X+2*q,2)}")
            for r in range(8):
                a.e(f"v_exp_f32 v{X+r}, -v{X+r}")
        rbf(items[0][0])
        for i, (X, G) in enumerate(items):
            for q in range(4):
                a.e(f"v_cvt_pk_bf16_f32 v{RB+q}, v{X+2*q}, v{X+2*q+1}")
            a.e(f"v_mfma_f32_32x32x16_bf16 {vr(DB0,16)}, {vr(WOP,4)}, {vr(RB,4)}, 0")
            if i + 1 < len(items): rbf(items[i+1][0])
            for d in range(4):
                a.e(f"v_pk_mul_f32 {vr(X+2*d,2)}, {vr(DB0+2*d,2)}, s[{sGI}:{sGI+1}]")
            for q in range(2 if G is not None else 0):
                a.e(f"v_cvt_pk_bf16_f32 v{G+q}, v{DB0+8+2*q}, v{DB0+9+2*q}")
    def t4_fin(X, GU, MU, RB, T, soff, vO):
        a.e(f"v_mov_b32 v{T}, v{RB+1}")
        a.e(f"v_mov_b32 v{T+2}, v{RB+3}")
        for d in (0, 2, 1, 3):
            src = RB + d if d % 2 == 0 else T - 1 + d
            for q in range(2):
                w = f"s[{S_WA+4*d+2*q}:{S_WA+4*d+2*q+1}]"
                if d == 0:
                    a.e(f"v_pk_mul_f32 {vr(X+2*q,2)}, {vr(RB,2)}, {w} op_sel_hi:[0,1]")
                else:
                    a.e(f"v_pk_fma_f32 {vr(X+2*q,2)}, {vr(src,2)}, {w}, {vr(X+2*q,2)} op_sel_hi:[0,1,1]")
        for q in range(2):
            a.e(f"v_pk_fma_f32 {vr(X+2*q,2)}, {vr(X+2*q,2)}, {vr(GU+2*q,2)}, {vr(MU+2*q,2)}")
        a.e(f"v_cvt_pk_bf16_f32 v{MU}, v{X}, v{X+1}")
        a.e(f"v_cvt_pk_bf16_f32 v{MU+1}, v{X+2}, v{X+3}")
        a.e(f"buffer_store_dwordx2 {vr(MU,2)}, v{vO}, s[{S_Y}:{S_Y+3}], {soff} offen")
    def t4_addr(tid, V):
        a.e(f"v_add_lshl_u32 v{V[0]}, v{tid}, s{sLP}, 3")
        a.e(f"v_add_lshl_u32 v{V[2]}, v{tid}, s{sLO}, 3")
        a.e(f"v_lshlrev_b32 v{V[4]}, {3 if T5 else 4}, v{tid}")
        a.e(f"v_add_u32 v{V[1]}, {STR2}, v{V[0]}")
        a.e(f"v_add_u32 v{V[3]}, {STR2}, v{V[2]}")
    def t4_mload(ks, M2, V):
        for k in ks:
            a.e(f"s_add_u32 s{sT0}, s{sOM}, {4096*k}")
            if k == 6: a.e(f"s_mov_b64 exec, s[{sK6}:{sK6+1}]")
            a.e(f"buffer_load_dwordx2 {vr(M2[k],2)}, v{V[2]}, s[{S_MM}:{S_MM+3}], s{sT0} offen")
            if k == 6: a.e(f"s_mov_b64 exec, -1")
    def t4_post(tg, ks, X, GU, MU, SO, PP, RB, V, vCK, mid=None):
        def m6(k, on):
            if k == 6: a.e(f"s_mov_b64 exec, s[{sK6}:{sK6+1}]" if on else "s_mov_b64 exec, -1")
        a.e("s_setprio 3")
        a.e("s_waitcnt lgkmcnt(0)")
        a.e("s_barrier")
        stamp(12)
        a.lg = []
        a.lds(f"ds_read_b32 v{vCK}, v{vZERO} offset:{K2_VI}", 'V')
        for k in ks:
            for q in range(2):
                a.lds(f"ds_read_b64 {vr(PP[k]+2*q,2)}, v{V[q]} offset:{ACC + 4096*k}", ('S', k))
        for k in ks:
            m6(k, 1)
            for q in range(2):
                a.lds(f"ds_read_b64 {vr(SO[k]+2*q,2)}, v{V[2+q]} offset:{ACC + 4096*k}", ('O', k))
            m6(k, 0)
        for k in ks:
            a.e(f"s_add_u32 s{sT0}, s{sXS}, {8192*k}")
            a.wlg(('S', k))
            if k == ks[0]: a.e(f"v_or_b32 v{PP[k]}, v{PP[k]}, v{vCK}")
            m6(k, 1)
            a.e(f"buffer_store_dwordx4 {vr(PP[k],4)}, v{V[4]}, s[{S_WS}:{S_WS+3}], s{sT0} offen sc1")
            m6(k, 0)
        stamp(13)
        a.e(f"v_readfirstlane_b32 s{sT2}, v{vCK}")
        if mid: mid()
        if 6 in ks:
            for q in range(4): a.e(f"v_mov_b32 v{PP[6]+q}, 0")
        a.wlg0()
        for k in ks:
            for q in range(2):
                a.e(f"v_or3_b32 v{vCK}, v{vCK}, v{SO[k]+2*q}, v{SO[k]+2*q+1}")
            for q in range(4):
                a.e(f"v_xor_b32 v{SO[k]+q}, s{sTOP}, v{SO[k]+q}")
        a.e(f"v_and_b32 v{vCK}, s{sTOP}, v{vCK}")
        a.e(f"s_mov_b32 s{sT1}, {1 << 14}")
        a.e(f"s_cmp_lg_u32 s{sT2}, 0")
        a.e(f"s_cbranch_scc1 K2_TE{tg}")
        if cfg.get('k2_w1', 1): a.e("s_waitcnt vmcnt(0)")
        stamp(14)
        a.e(f"K2_PW{tg}:")
        for k in ks:
            a.e(f"s_add_u32 s{sT0}, s{sXR}, {8192*k}")
            m6(k, 1)
            a.e(f"buffer_load_dwordx4 {vr(PP[k],4)}, v{V[4]}, s[{S_WS}:{S_WS+3}], s{sT0} offen sc1")
            m6(k, 0)
        a.e("s_waitcnt vmcnt(0)")
        for i, k in enumerate(ks):
            a.e(f"v_or3_b32 v{RB}, v{PP[k]}, v{PP[k]+1}, {'v%d' % RB if i else 0}")
            a.e(f"v_or3_b32 v{RB}, v{PP[k]+2}, v{PP[k]+3}, v{RB}")
        a.e(f"v_and_b32 v{RB}, s{sTOP}, v{RB}")
        a.e(f"v_cmp_ne_u32 vcc, 0, v{RB}")
        a.e(f"s_cbranch_vccnz K2_PR{tg}")
        stamp(7)
        for k in ks:
            S_ = PP[k]
            if k == 6:
                a.e(f"s_cmp_lg_u32 s{sWAVE}, 0")
                a.e(f"s_cbranch_scc1 K2_TE{tg}")
            m6(k, 1)
            for q in range(4):
                a.e(f"v_pk_add_u16 v{S_+q}, v{S_+q}, v{SO[k]+q}")
            for d in range(4):
                a.e(f"v_cvt_f32_i32_sdwa v{RB+d}, sext(v{S_+(d>>1)}) dst_sel:DWORD dst_unused:UNUSED_PAD src0_sel:WORD_{d&1}")
            for d in range(4):
                a.e(f"v_cvt_f32_i32_sdwa v{SO[k]+d}, sext(v{S_+2+(d>>1)}) dst_sel:DWORD dst_unused:UNUSED_PAD src0_sel:WORD_{d&1}")
            for q in range(2):
                a.e(f"v_pk_mul_f32 {vr(RB+2*q,2)}, {vr(X[k]+2*q,2)}, {vr(RB+2*q,2)}")
            a.e(f"s_add_u32 s{sT0}, s{sOM}, {4096*k}")
            for q in range(2):
                a.e(f"v_pk_fma_f32 {vr(RB+2*q,2)}, {vr(X[k]+4+2*q,2)}, {vr(SO[k]+2*q,2)}, {vr(RB+2*q,2)}")
            t4_fin(X[k], GU[k], MU[k], RB, S_, f"s{sT0}", V[2])
            m6(k, 0)
        a.e(f"K2_TE{tg}:")
        stamp(9)
        vTRq = vTR
        a.e(f"v_cmp_ne_u32 vcc, 0, v{vCK}")
        a.e(f"s_and_b64 exec, exec, vcc")
        a.e(f"ds_or_b32 v{vZERO}, v{vCK} offset:{K2_VI}")
        a.e(f"s_mov_b64 exec, -1")
        a.e("s_waitcnt lgkmcnt(0)")
        def retry():
            a.e(f"K2_PR{tg}:")
            for i, k in enumerate(ks):
                a.e(f"v_max3_u32 v{RB}, v{PP[k]}, v{PP[k]+1}, {'v%d' % RB if i else 0}")
                a.e(f"v_max3_u32 v{RB}, v{PP[k]+2}, v{PP[k]+3}, v{RB}")
            a.e(f"v_cmp_eq_u32 vcc, -1, v{RB}")
            a.e(f"s_cbranch_vccz K2_PV{tg}")
            if cfg.get('k2_prslp', 0): a.e(f"s_sleep {cfg['k2_prslp']}")
            nonlocal vTR
            sv = vTR; vTR = vTRq
            stamp(8)
            vTR = sv
            a.e(f"s_sub_u32 s{sT1}, s{sT1}, 1")
            a.e(f"s_cbranch_scc0 K2_PW{tg}")
            a.e(f"K2_PV{tg}:")
            a.e(f"v_mov_b32 v{vCK}, 0x8000")
            a.e(f"s_branch K2_TE{tg}")
        return retry
    def t5_dist(ks, X, vA, tmp):
        a.e(f"v_lshrrev_b32 v{tmp}, 2, v{vA}")
        for k in ks: a.e(f"v_mov_b32 v{X[k]}, 0")
        a.e(f"s_lshr_b32 s{sT1}, s{sOM}, 2")
        for k in ks:
            a.e(f"s_add_u32 s{sT0}, s{sT1}, {1024*k}")
            if k == 6: a.e(f"s_mov_b64 exec, s[{sK6}:{sK6+1}]")
            a.e(f"buffer_load_short_d16_hi v{X[k]}, v{tmp}, s[{S_D}:{S_D+3}], s{sT0} offen")
            if k == 6: a.e(f"s_mov_b64 exec, -1")
    def t5_agg(X, S, RB, out, sBI):
        for q in range(4):
            a.e(f"v_pk_sub_i16 v{S+q}, v{S+q}, s{sBI}")
        for d in range(4):
            a.e(f"v_cvt_f32_i32_sdwa v{RB+d}, sext(v{S+(d>>1)}) dst_sel:DWORD dst_unused:UNUSED_PAD src0_sel:WORD_{d&1}")
        for q in range(2):
            a.e(f"v_pk_mul_f32 {vr(RB+2*q,2)}, {vr(X+2*q,2)}, {vr(RB+2*q,2)}")
        for d in range(4):
            a.e(f"v_cvt_f32_i32_sdwa v{X+d}, sext(v{S+2+(d>>1)}) dst_sel:DWORD dst_unused:UNUSED_PAD src0_sel:WORD_{d&1}")
        for q in range(2):
            a.e(f"v_pk_fma_f32 {vr(out+2*q,2)}, {vr(X+4+2*q,2)}, {vr(X+2*q,2)}, {vr(RB+2*q,2)}")
    def t5_post(tg, ks, XP, X, G, M, SP, SO, RB, V, vCK, mid=None):
        def m6(k, on):
            if k == 6: a.e(f"s_mov_b64 exec, s[{sK6}:{sK6+1}]" if on else "s_mov_b64 exec, -1")
        def skip6(k, lab):
            if k == 6:
                a.e(f"s_cmp_lg_u32 s{sWAVE}, 0")
                a.e(f"s_cbranch_scc1 {lab}")
        sBI = sN
        a.e(f"s_mov_b32 s{sBI}, 0x40004000")
        a.e("s_setprio 3")
        a.e("s_waitcnt lgkmcnt(0)")
        a.e("s_barrier")
        stamp(12)
        a.lg = []
        a.lds(f"ds_read_b32 v{vCK}, v{vZERO} offset:{K2_VI}", 'V')
        for R_, o, nm in ((SP, 0, 'S'), (SO, 2, 'O')):
            for k in ks:
                m6(k, 1)
                for q in range(2):
                    a.lds(f"ds_read_b64 {vr(R_[k]+2*q,2)}, v{V[o+q]} offset:{ACC + 4096*k}", (nm, k))
                m6(k, 0)
        a.wlg(('S', ks[-1]))
        for k in ks:
            for q in range(2):
                a.e(f"v_or3_b32 v{vCK}, v{vCK}, v{SP[k]+2*q}, v{SP[k]+2*q+1}")
        a.e(f"v_and_b32 v{vCK}, s{sTOP}, v{vCK}")
        a.e(f"v_cmp_eq_u32 vcc, 0, v{vCK}")
        for k in ks:
            skip6(k, f"K2_NS{tg}")
            m6(k, 1)
            t5_agg(XP[k], SP[k], RB, RB, sBI)
            a.e(f"s_add_u32 s{sT0}, s{sXS}, {4096*k}")
            a.e(f"v_cvt_pk_bf16_f32 v{SP[k]}, v{RB}, v{RB+1}")
            a.e(f"v_cvt_pk_bf16_f32 v{SP[k]+1}, v{RB+2}, v{RB+3}")
            if k == ks[0]: a.e(f"v_cndmask_b32 v{SP[k]}, -2, v{SP[k]}, vcc")
            a.e(f"buffer_store_dwordx2 {vr(SP[k],2)}, v{V[4]}, s[{S_WS}:{S_WS+3}], s{sT0} offen sc1")
            m6(k, 0)
        a.e(f"K2_NS{tg}:")
        stamp(13)
        if mid: mid()
        a.wlg0()
        for k in ks:
            for q in range(2):
                a.e(f"v_or3_b32 v{vCK}, v{vCK}, v{SO[k]+2*q}, v{SO[k]+2*q+1}")
        a.e(f"v_and_b32 v{vCK}, s{sTOP}, v{vCK}")
        a.e(f"v_cmp_ne_u32 vcc, 0, v{vCK}")
        a.e(f"s_cbranch_vccnz K2_TE{tg}")
        def loads():
            for k in ks:
                a.e(f"s_add_u32 s{sT0}, s{sXR}, {4096*k}")
                m6(k, 1)
                a.e(f"buffer_load_dwordx2 {vr(SP[k],2)}, v{V[4]}, s[{S_WS}:{S_WS+3}], s{sT0} offen sc1")
                m6(k, 0)
        EL = cfg.get('k2_el' + tg, 0)
        if EL: loads()
        MF = cfg.get('mf', 0)
        WT = SP[ks[0]] + 2
        if MF:
            for i in range(4):
                a.e(f"s_mov_b32 exec_lo, {hex(0x11111111 << i)}")
                a.e(f"s_mov_b32 exec_hi, {hex(0x11111111 << i)}")
                for r in range(2):
                    a.e(f"s_pack_{'hh' if i & 1 else 'll'}_b32_b16 s{sT0}, s{S_WR+4*r+(i>>1)}, s{S_WR+4*r+2+(i>>1)}")
                    a.e(f"v_mov_b32 v{WT+r}, s{sT0}")
            a.e("s_mov_b64 exec, -1")
        for k in ks:
            skip6(k, f"K2_NO{tg}")
            t5_agg(X[k], SO[k], RB, RB if MF else SO[k], sBI)
            if MF:
                for q in range(2): a.e(f"v_cvt_pk_bf16_f32 v{X[k]+q}, v{RB+2*q}, v{RB+2*q+1}")
            unpack(XP[k], G[k])
            if MF: a.e(f"v_mfma_f32_4x4x4_16b_bf16 {vr(SO[k],4)}, {vr(WT,2)}, {vr(X[k],2)}, 0")
            unpack(XP[k] + 4, M[k])
        a.e(f"K2_NO{tg}:")
        a.e(f"s_mov_b32 s{sT1}, {1 << 14}")
        a.e(f"s_mov_b32 s{sT2}, 0xff800000")
        if EL: a.e(f"s_branch K2_PX{tg}")
        elif cfg.get('k2_w1' + tg, 0): a.e("s_waitcnt vmcnt(0)")
        stamp(14)
        a.e(f"K2_PW{tg}:")
        loads()
        a.e(f"K2_PX{tg}:")
        a.e("s_waitcnt vmcnt(0)")
        for i, k in enumerate(ks):
            a.e(f"v_max3_u32 v{RB}, v{SP[k]}, v{SP[k]+1}, {'v%d' % RB if i else 0}")
        a.e(f"v_cmp_le_u32 vcc, s{sT2}, v{RB}")
        a.e(f"s_cbranch_vccnz K2_PR{tg}")
        stamp(7)
        for k in ks[:3] if MF else []:
            a.e(f"v_mfma_f32_4x4x4_16b_bf16 {vr(SO[k],4)}, {vr(WT,2)}, {vr(SP[k],2)}, {vr(SO[k],4)}")
        for k in ks if MF else []:
            skip6(k, f"K2_TE{tg}")
            if k == 6: a.e(f"v_mfma_f32_4x4x4_16b_bf16 {vr(SO[k],4)}, {vr(WT,2)}, {vr(SP[k],2)}, {vr(SO[k],4)}")
            a.e(f"s_add_u32 s{sT0}, s{sOM}, {4096*k}")
            for q in range(2):
                a.e(f"v_pk_fma_f32 {vr(SO[k]+2*q,2)}, {vr(SO[k]+2*q,2)}, {vr(XP[k]+2*q,2)}, {vr(XP[k]+4+2*q,2)}")
            for q in range(2): a.e(f"v_cvt_pk_bf16_f32 v{X[k]+q}, v{SO[k]+2*q}, v{SO[k]+2*q+1}")
            m6(k, 1)
            a.e(f"buffer_store_dwordx2 {vr(X[k],2)}, v{V[2]}, s[{S_Y}:{S_Y+3}], s{sT0} offen")
            m6(k, 0)
        for k in [] if MF else ks:
            skip6(k, f"K2_TE{tg}")
            m6(k, 1)
            unpack(RB, SP[k])
            a.e(f"s_add_u32 s{sT0}, s{sOM}, {4096*k}")
            for q in range(2):
                a.e(f"v_pk_add_f32 {vr(RB+2*q,2)}, {vr(RB+2*q,2)}, {vr(SO[k]+2*q,2)}")
            t4_fin(X[k], XP[k], XP[k] + 4, RB, SP[k], f"s{sT0}", V[2])
            m6(k, 0)
        a.e(f"K2_TE{tg}:")
        stamp(9)
        vTRq = vTR
        a.e(f"v_cmp_ne_u32 vcc, 0, v{vCK}")
        a.e(f"s_and_b64 exec, exec, vcc")
        a.e(f"ds_or_b32 v{vZERO}, v{vCK} offset:{K2_VI}")
        a.e(f"s_mov_b64 exec, -1")
        a.e("s_waitcnt lgkmcnt(0)")
        def retry():
            nonlocal vTR
            a.e(f"K2_PR{tg}:")
            a.e(f"v_cmp_eq_u32 vcc, -1, v{RB}")
            a.e(f"s_cbranch_vccz K2_PV{tg}")
            if cfg.get('k2_prslp', 0): a.e(f"s_sleep {cfg['k2_prslp']}")
            sv = vTR; vTR = vTRq
            stamp(8)
            vTR = sv
            a.e(f"s_sub_u32 s{sT1}, s{sT1}, 1")
            a.e(f"s_cbranch_scc0 K2_PW{tg}")
            a.e(f"K2_PV{tg}:")
            a.e(f"v_mov_b32 v{vCK}, 0x8000")
            a.e(f"s_branch K2_TE{tg}")
        return retry
    def tail5_head(ks, V, vCK, DB0, WOP, RB):
        nonlocal vTR
        mk = lambda b_, n: {k: b_ + n * i for i, k in enumerate(ks)}
        XP, X, G, M, SP, SO = mk(8, 8), mk(40, 8), mk(72, 2), mk(80, 2), mk(88, 4), mk(104, 4)
        if TRACE:
            a.e(f"v_mov_b32 v87, v{vTR}")
            vTR = 87
        def pre():
            for q in range(4): a.e(f"v_mov_b32 v{SP[0]+q}, -1")
            a.e(f"v_lshlrev_b32 v{V[4]}, 4, v0")
            if PZL:
                a.e("K2_PZ0:")
                pzone("K2_PZ1")
                a.e("s_branch K2_PZ0")
                a.e("K2_PZ1:")
            for k in range(3 if PZL else 0, 4):
                a.e(f"s_add_u32 s{sT0}, s{sXS}, {8192*k}")
                if k == 3: a.e(f"s_mov_b64 exec, s[{sK6}:{sK6+1}]")
                a.e(f"buffer_store_dwordx4 {vr(SP[0],4)}, v{V[4]}, s[{S_WS}:{S_WS+3}], s{sT0} offen sc1")
            a.e("s_mov_b64 exec, -1")
            poll(DB0 + 6, K2_GI, "1", 0)
            a.e(f"s_mov_b32 s{sGI}, s{sT0}")
            a.e(f"s_mov_b32 s{sGI+1}, s{sT0}")
        t4_setup(0, DB0, WOP, [], S_C, pre)
        t4_addr(0, V)
        t5_dist(ks, XP, V[0], DB0 + 2)
        t5_dist(ks, X, V[2], DB0 + 3)
        t4_mload(ks[:3] if TRACE else ks, M, V)
        a.e(f"s_lshl_b32 s{sT1}, s{sWAVE}, 4")
        a.e(f"s_lshl_b32 s{sT2}, s{sT2}, 7")
        a.e(f"s_add_u32 s{sT2}, s{sT1}, s{sT2}")
        a.e(f"s_xor_b32 s{sT1}, s{sT2}, {128 << 7}")
        a.e(f"s_add_u32 s{sT2}, s{sT2}, {FL_OFF}")
        a.e(f"s_add_u32 s{sT1}, s{sT1}, {FL_OFF}")
        a.e("s_waitcnt vmcnt(0) lgkmcnt(0)")
        a.e("s_mov_b64 exec, 1")
        a.e(f"buffer_store_dword v{SP[0]}, v{vZERO}, s[{S_WS}:{S_WS+3}], s{sT1} offen sc1")
        a.e("s_mov_b64 exec, -1")
        stamp(6)
        t4_consts(WOP, S_C)
        KD = SP[1]
        t4_acomp([(XP[k], None) for k in ks[:3]] + [(X[k], G[k]) for k in ks[:3]], KD, DB0, WOP, RB, S_C)
        a.e(f"s_cmp_lg_u32 s{sWAVE}, 0")
        a.e("s_cbranch_scc1 K2_NA6")
        t4_acomp([(XP[6], None), (X[6], G[6])], KD, DB0, WOP, RB, S_C)
        a.e("K2_NA6:")
        for q in range(4):
            a.e(f"v_mov_b32 v{SO[6]+q}, 0")
            a.e(f"v_mov_b32 v{SP[6]+q}, 0")
        return lambda: t5_post("P", ks, XP, X, G, M, SP, SO, RB, V, vCK)
    def tail3():
        nonlocal vTR
        ks = [0, 1, 2, 6]
        X = {k: 8 + 24 * i for i, k in enumerate(ks)}
        GU = {k: X[k] + 8 for k in ks}; MU = {k: X[k] + 12 for k in ks}
        SO = {k: X[k] + 16 for k in ks}; PP = {k: X[k] + 20 for k in ks}
        DB0, WOP, RB, KD, vCK = 104, 120, 124, 6, 7
        V = [1, 3, 4, 5, 6]
        a.e("K2_PTAIL:")
        a.e(f"s_setprio {cfg.get('k2_tprio', 2)}")
        if T5:
            post5 = tail5_head(ks, V, vCK, DB0, WOP, RB)
        else:
            if TRACE:
                a.e(f"v_mov_b32 v{MU[6]+3}, v{vTR}")
                vTR = MU[6] + 3
            def pre():
                poll(DB0 + 6, K2_GI, "1", 0)
                a.e(f"s_mov_b32 s{sGI}, s{sT0}")
                a.e(f"s_mov_b32 s{sGI+1}, s{sT0}")
            t4_setup(0, DB0, WOP, [(k, X[k]) for k in ks], S_C, pre)
            t4_addr(0, V)
            t4_mload(ks, PP, V)
            a.e(f"s_lshl_b32 s{sT1}, s{sWAVE}, 4")
            a.e(f"s_lshl_b32 s{sT2}, s{sT2}, 7")
            a.e(f"s_add_u32 s{sT2}, s{sT1}, s{sT2}")
            a.e(f"s_add_u32 s{sT2}, s{sT2}, {FL_OFF}")
            a.e("s_waitcnt vmcnt(0) lgkmcnt(0)")
            t4_consts(WOP, S_C)
            t4_acomp([(X[k], SO[k]) for k in ks[:3]], SO[6] + 2, DB0, WOP, RB, S_C)
            for k in ks[:3]:
                unpack(GU[k], SO[k]); unpack(MU[k], PP[k])
            a.e(f"s_cmp_lg_u32 s{sWAVE}, 0")
            a.e("s_cbranch_scc1 K2_NA6")
            t4_acomp([(X[6], SO[6])], SO[6] + 2, DB0, WOP, RB, S_C)
            unpack(GU[6], SO[6])
            if not TRACE: unpack(MU[6], PP[6])
            a.e("K2_NA6:")
            for q in range(4): a.e(f"v_mov_b32 v{SO[6]+q}, 0")
        stamp(11)
        a.e(f"s_mov_b32 s{sT0}, {1 << 14}")
        a.e("s_branch K2_FL1")
        a.e("K2_FL0:")
        a.e(f"s_sleep {cfg.get('k2_flslp', 4)}")
        a.e(f"s_sub_u32 s{sT0}, s{sT0}, 1")
        a.e("s_cbranch_scc0 K2_FL1")
        a.e(f"v_mov_b32 v{vCK}, 0x8000")
        a.e(f"ds_or_b32 v{vZERO}, v{vCK} offset:{K2_VI}")
        a.e("s_branch K2_FL2")
        a.e("K2_FL1:")
        a.e(f"buffer_load_dword v{vCK}, v{vZERO}, s[{S_WS}:{S_WS+3}], s{sT2} offen sc1")
        a.e("s_waitcnt vmcnt(0)")
        a.e(f"v_cmp_eq_u32 vcc, 0, v{vCK}")
        a.e("s_cbranch_vccnz K2_FL0")
        a.e("K2_FL2:")
        retry = post5() if T5 else t4_post("P", ks, X, GU, MU, SO, PP, RB, V, vCK)
        if TRACE:
            a.e(f"v_mov_b32 v127, v{vTR}")
            vTR = 127
        a.e("s_barrier")
        a.e(f"ds_read_b32 v{vCK}, v{vZERO} offset:{K2_VI}")
        a.e("s_waitcnt lgkmcnt(0)")
        a.e(f"v_cmp_ne_u32 vcc, 0, v{vCK}")
        a.e("s_cbranch_vccz K2_FIN")
        a.e("s_barrier")
        a.e("s_waitcnt vmcnt(0)")
        a.e("s_barrier")
        a.e("K2_SFIN:")
        x, vT, vL = X[0], V[0], X[1]
        a.e(f"ds_read_b32 v{vCK}, v{vZERO} offset:{K2_GI}")
        a.e(f"v_mov_b32 v{vT}, v0")
        a.e(f"s_lshr_b32 s{sT2}, s{sOM}, 2")
        a.e(f"s_mov_b32 s{sT1}, 0")
        a.e("s_waitcnt lgkmcnt(0)")
        a.e(f"v_readfirstlane_b32 s{sGI}, v{vCK}")
        a.e(f"v_readfirstlane_b32 s{sGI+1}, v{vCK}")
        a.e("K2_SFL:")
        a.e(f"v_min_u32 v{vL}, {EPB - 1}, v{vT}")
        a.e(f"v_add_lshl_u32 v{V[2]}, v{vL}, s{sLO}, 3")
        a.e(f"v_lshlrev_b32 v{vL}, 2, v{vL}")
        a.e(f"v_add_u32 v{vL+1}, {STR2}, v{vL}")
        a.e(f"v_lshrrev_b32 v{vL+2}, 2, v{V[2]}")
        a.e(f"buffer_load_ushort v{x}, v{vL+2}, s[{S_D}:{S_D+3}], s{sT2} offen")
        a.e(f"buffer_load_dwordx2 {vr(PP[0],2)}, v{V[2]}, s[{S_MM}:{S_MM+3}], s{sOM} offen")
        a.e("s_waitcnt vmcnt(0)")
        a.e(f"v_lshlrev_b32 v{x}, 16, v{x}")
        t4_acomp([(x, SO[0])], SO[6] + 2, DB0, WOP, RB, S_C)
        unpack(GU[0], SO[0]); unpack(MU[0], PP[0])
        for q in range(8):
            a.e(f"ds_read_b32 v{DB0+q}, v{vL+(q>>2)} offset:{ACC + (q&3)*ACC_STR}")
        a.e("s_waitcnt lgkmcnt(0)")
        for q in range(8):
            a.e(f"v_cvt_f32_i32 v{DB0+q}, v{DB0+q}")
        for q in range(2):
            a.e(f"v_pk_mul_f32 {vr(RB+2*q,2)}, {vr(x+2*q,2)}, {vr(DB0+2*q,2)}")
        for q in range(2):
            a.e(f"v_pk_fma_f32 {vr(RB+2*q,2)}, {vr(x+4+2*q,2)}, {vr(DB0+4+2*q,2)}, {vr(RB+2*q,2)}")
        t4_fin(x, GU[0], MU[0], RB, DB0 + 8, f"s{sOM}", V[2])
        a.e(f"v_add_u32 v{vT}, 512, v{vT}")
        a.e(f"s_add_u32 s{sT1}, s{sT1}, 1")
        a.e(f"s_cmp_lt_u32 s{sT1}, 7")
        a.e("s_cbranch_scc1 K2_SFL")
        a.e("s_branch K2_FIN")
        retry()
    T3 = cfg.get('t3', False)
    if T3: tail3()
    else: tail_old()

    a.e("K2_CONS:")
    vFD, vA4, vA2 = 3, 4, 5
    SW_, SA_ = 6, 19
    CUR = 32
    COL = {3: [0,1,2,3,0,1,2,3,0,1,2,3,4], 2: [0,1,2,0,1,2,0,1,2,0,1,2,3],
           4: [0,1,2,3,4,5,0,1,2,3,4,5,6], 5: [0,1,2,3,4,5,0,1,2,3,4,5,6]}.get(D, list(range(13)))
    NCOL = max(COL) + 1
    RSTR = 6 if D <= 5 else 4
    LB = CUR + 4 * 13
    TB = 104
    RT, vCK, vC4, vCT = 120, 124, 125, 126
    MXR = TB
    sG, sGN, sMG, sNB, sSEL, sMX, sLAST = 40, 42, 44, 46, 48, 49, 50
    def fill(first):
        if first:
            a.e(f"v_cmp_le_u32 vcc, {ACC//16}, v{vCT}")
            a.e(f"s_mov_b64 exec, vcc")
            a.e(f"ds_write_b128 v{TB+8}, {vr(TB+4,4)}")
            a.e(f"s_mov_b64 exec, -1")
        for k in range(1, 8):
            a.e(f"ds_write_b128 v{TB+8}, {vr(TB+4,4)} offset:{k*8192}")
        a.e(f"v_add_u32 v{TB+8}, 65536, v{TB+8}")
        for k in range(4):
            a.e(f"ds_write_b128 v{TB+8}, {vr(TB+4,4)} offset:{k*8192}")
        a.e(f"v_cmp_gt_u32 vcc, {(K2_SA - 12*8192)//16}, v{vCT}")
        a.e(f"s_mov_b64 exec, vcc")
        a.e(f"ds_write_b128 v{TB+8}, {vr(TB+4,4)} offset:{4*8192}")
        a.e(f"s_mov_b64 exec, -1")
    def mdsrd(hreg):
        a.e(f"s_mul_i32 s{sT0}, {hreg}, {MD_TSTR}")
        a.e(f"s_add_u32 s{sT0}, s{sT0}, {MD_OFF}")
        a.e(f"s_add_u32 s{S_MD}, s{S_WS}, s{sT0}")
        a.e(f"s_addc_u32 s{S_MD+1}, s{S_WS+1}, 0")
        a.e(f"s_or_b32 s{S_MD+1}, s{S_MD+1}, 0x80000")
    def setscale(t):
        a.e(f"v_min_f32 v{t}, 0x71800000, v{t}")
        a.e(f"v_rcp_f32 v{t+1}, v{t}")
        a.e(f"v_add_f32 v{t+2}, v{t}, v{t}")
        a.e(f"v_readlane_b32 s{sG}, v{t}, 63")
        a.e(f"v_readlane_b32 s{sG+1}, v{t+2}, 63")
        a.e("s_lshl_b64 exec, 1, 63")
        a.e(f"ds_write_b32 v{vZERO}, v{t+1} offset:{K2_GI}")
        a.e("s_mov_b64 exec, -1")
        a.e(f"s_xor_b32 s{sGN}, s{sG}, 0x80000000")
    a.e(f"s_sub_u32 s{sWAVE}, s{sWAVE}, 8")
    a.e(f"v_add_u32 v{vCT}, -512, v0")
    a.e(f"v_mov_b32 v{TB+9}, 0x40004000")
    a.e(f"v_cmp_le_u32 vcc, {ACC//16}, v{vCT}")
    a.e(f"v_lshlrev_b32 v{TB+8}, 4, v{vCT}")
    for k in range(4):
        a.e(f"v_cndmask_b32 v{TB+4+k}, 0, v{TB+9}, vcc")
    a.e(f"ds_write_b128 v{TB+8}, {vr(TB+4,4)}")
    for k in range(4):
        a.e(f"v_mov_b32 v{TB+4+k}, v{TB+9}")
    a.e(f"v_lshlrev_b32 v{TB+9}, 5, v{vLANE}")
    a.e(f"s_mov_b32 s{sT1}, {MX_OFF}")
    a.e("s_waitcnt lgkmcnt(0)")
    a.e("s_barrier")
    a.e(f"buffer_load_dwordx4 {vr(CUR,4)}, v{TB+9}, s[{S_WS}:{S_WS+3}], s{sT1} offen")
    a.e(f"buffer_load_dwordx4 {vr(CUR+4,4)}, v{TB+9}, s[{S_WS}:{S_WS+3}], s{sT1} offen offset:16")
    CK = [3, 4, 5]
    CX = {k: 74 + 10 * i for i, k in enumerate(CK)}
    CWOP, CSC = 56, 52
    if T5:
        CX = {k: 74 + 8 * i for i, k in enumerate(CK)}
        t4_setup(vCT, 64, CWOP, [], CSC)
        a.e(f"v_add_lshl_u32 v66, v{vCT}, s{sLP}, 3")
        t5_dist(CK, CX, 66, 66)
    elif T3: t4_setup(vCT, 64, CWOP, [(k, CX[k]) for k in CK], CSC)
    fill(False)
    a.e(f"s_lshr_b32 s{sT1}, s{sB}, 7")
    mdsrd(f"s{sT1}")
    a.e(f"s_mov_b32 s{S_MD+2}, {E//2}")
    a.e(f"s_mov_b32 s{S_MD+3}, 0x00020000")
    a.e(f"s_mov_b32 s{sFFF8}, 0xfff8")
    a.e(f"s_mov_b32 s{sMG}, {f2h(8388608.0 + 32768.0)}")
    a.e(f"s_mov_b32 s{sMG+1}, {f2h(8388608.0 + 32768.0)}")
    a.e(f"s_mov_b32 s{sNB}, 0x7fff8000")
    a.e(f"s_mov_b32 s{sNB+1}, 0x7fff7fff")
    a.e(f"s_mov_b32 s{sSEL}, 0x05040100")
    a.e(f"s_lshl_b32 s{sT0}, s{sWAVE}, 2")
    a.e(f"v_mov_b32 v{vFD}, s{sT0}")
    for s in range(NS):
        a.e(f"v_mov_b32 v{SW_+s}, {hex(DUMMY)}")
        a.e(f"v_mov_b32 v{SA_+s}, 0")
    for k in range(4):
        a.e(f"v_mov_b32 v{RT+k}, 0")
    a.e(f"s_mov_b32 s{sCNT}, 0")
    t = TB + 4
    a.e("s_waitcnt vmcnt(0)")
    a.e(f"v_max3_u32 v{MXR}, v{CUR}, v{CUR+2}, v{CUR+4}")
    a.e(f"v_add_f32 v{MXR+1}, v{CUR+1}, v{CUR+3}")
    a.e(f"v_add_f32 v{MXR+2}, v{CUR+5}, v{CUR+7}")
    a.e(f"v_max_u32 v{MXR}, v{MXR}, v{CUR+6}")
    a.e(f"v_add_f32 v{MXR+1}, v{MXR+1}, v{MXR+2}")
    dpp_scan(a, MXR, "v_max_u32")
    dpp_scan(a, MXR + 1, "v_add_f32")
    a.e(f"v_rcp_f32 v{t}, v{MXR}")
    a.e(f"v_mul_f32 v{MXR+2}, {f2h(4.0 * E / cfg.get('crest', 32.0))}, v{MXR}")
    a.e(f"v_readlane_b32 s{sMX}, v{MXR}, 63")
    a.e(f"v_cmp_nle_f32 vcc, v{MXR+2}, v{MXR+1}")
    a.e(f"v_mul_f32 v{t}, {f2h(cfg.get('qmax', 4096.0))}, v{t}")
    a.e(f"s_lshr_b32 s{sT0}, vcc_hi, 16")
    a.e(f"s_and_b32 s{sT0}, s{sT0}, 0x8000")
    a.e(f"v_mov_b32 v{vCK}, s{sT0}")
    setscale(t)
    stamp(6)

    uid = [0]
    stubs = []
    NOX = cfg.get('nox', True)
    def lreg(cur): return cur + (5 if NOX else 4) if D <= 5 else LB + (cur - CUR) // 4
    def alpha1(W, cur):
        L = lreg(cur)
        a.e(f"v_and_b32 v{L}, {hex(cfg.get('x_gmask', IDXM))}, v{W}")
        if not cfg.get('x_nog'):
            a.e(f"buffer_load_dwordx2 {vr(cur,2)}, v{L}, s[{S_MD}:{S_MD+3}], 0 idxen")
    def cosines(A, C_, mid=None, c2=1):
        tc = TB + 2
        a.e(f"v_mul_f32 v{tc}, 0.15915494, v{A}")
        a.e(f"v_fract_f32 v{tc}, v{tc}")
        a.e(f"v_cos_f32 v{tc}, v{tc}")
        if mid: a.e(mid)
        a.e(f"v_pk_mul_f32 {vr(C_,2)}, {vr(tc,2)}, s[{sG}:{sG+1}] op_sel_hi:[0,1]")
        a.e(f"v_fma_f32 v{C_+c2}, v{C_+1}, v{tc}, s{sGN}")
    def alpha2(W, A, cur):
        cosines(A, cur + 2, f"v_and_b32_sdwa v{lreg(cur)}, v{W}, s{sFFF8} dst_sel:DWORD dst_unused:UNUSED_PAD src0_sel:WORD_1 src1_sel:DWORD", 2 if NOX else 1)
    def orrt():
        a.e(f"v_or3_b32 v{vCK}, v{vCK}, v{RT}, v{RT+1}")
        a.e(f"v_or3_b32 v{vCK}, v{vCK}, v{RT+2}, v{RT+3}")
    def beta(cur, vm):
        G0, C_, L = cur, cur + 2, lreg(cur)
        M_, X = TB + 4, TB + 8
        a.e(f"s_waitcnt vmcnt({vm})")
        unpack(M_, G0)
        for l in range(2):
            for q in range(2):
                if NOX:
                    a.e(f"v_pk_fma_f32 {vr(X+4*l+2*q,2)}, {vr(M_+2*q,2)}, {vr(C_+2*l,2)}, s[{sMG}:{sMG+1}] op_sel_hi:[1,0,1]")
                else:
                    a.e(f"v_pk_fma_f32 {vr(X+4*l+2*q,2)}, {vr(M_+2*q,2)}, {vr(C_,2)}, s[{sMG}:{sMG+1}] op_sel:[0,{l},0] op_sel_hi:[1,{l},1]")
        for q in range(4):
            a.e(f"v_perm_b32 v{M_+q}, v{X+2*q+1}, v{X+2*q}, s{sSEL}")
        for l in range(2):
            a.e(f"v_lshl_add_u64 {vr(M_+2*l,2)}, {vr(M_+2*l,2)}, 0, s[{sNB}:{sNB+1}]")
        a.e(f"s_waitcnt lgkmcnt(0)")
        orrt()
        for l in range(2):
            a.e(f"ds_add_rtn_u64 {vr(RT+2*l,2)}, v{L}, {vr(M_+2*l,2)} offset:{ACC + l*STR2}")
    def cur(s): return CUR + RSTR * COL[s]
    def fdone(val):
        uid[0] += 1
        a.e(f"s_waitcnt lgkmcnt(0)")
        orrt()
        a.e(f"v_and_b32 v{vCK}, 0x80008000, v{vCK}")
        a.e(f"v_cmp_ne_u32 vcc, 0, v{vCK}")
        a.e(f"v_mov_b32 v{TB+4}, {val}")
        a.e(f"s_mov_b64 exec, vcc")
        a.e(f"ds_or_b32 v{vZERO}, v{vCK} offset:{K2_VI}")
        a.e("s_mov_b64 exec, 1")
        a.e(f"ds_write_b32 v{vFD}, v{TB+4} offset:{K2C_FD}")
        a.e("s_mov_b64 exec, -1")
    def step(s, cnt_of, stub=False, mid=None):
        p = (s - D) % NS
        alpha1(SW_ + s, cur(s))
        alpha2(SW_ + s, SA_ + s, cur(s))
        if mid: mid()
        uid[0] += 1
        a.e(f"s_cmp_le_u32 s{cnt_of(p)}, {p}")
        if stub:
            a.e(f"s_cbranch_scc1 K2_ST{uid[0]}")
            stubs.append(uid[0])
        else:
            a.e(f"s_cbranch_scc1 K2_SB{uid[0]}")
        u = uid[0]
        beta(cur(p), D)
        a.e(f"K2_SB{u}:")
    def readslot(s):
        uid[0] += 1
        a.e(f"s_cmp_le_u32 s{sCNT}, {s}")
        a.e(f"s_cbranch_scc1 K2_RD{uid[0]}")
        a.e(f"ds_read_b32 v{SW_+s}, v{vA4} offset:{256*s}")
        a.e(f"ds_read_u16_d16_hi v{SA_+s}, v{vA2} offset:{128*s}")
        a.e(f"s_branch K2_RE{uid[0]}")
        a.e(f"K2_RD{uid[0]}:")
        a.e(f"v_mov_b32 v{SW_+s}, {hex(DUMMY)}")
        a.e(f"K2_RE{uid[0]}:")
    a.e(f"v_mov_b32 v{vC4}, 4")
    signal(vC4, K2_FS)
    if T3:
        a.e(f"v_readlane_b32 s{sGI}, v{t+1}, 63")
        a.e(f"v_readlane_b32 s{sGI+1}, v{t+1}, 63")
        a.e("s_waitcnt lgkmcnt(0)")
    if T5:
        t4_consts(CWOP, CSC, 98)
        t4_acomp([(CX[k], None) for k in CK], 64, 32, 98, 60, CSC)
        stamp(5)
    elif T3:
        t4_consts(CWOP, CSC)
        t4_acomp([(CX[k], CX[k] + 8) for k in CK], 64, 32, CWOP, 60, CSC)
        stamp(5)
        for q in range(4): a.e(f"v_mov_b32 v{TB+4+q}, -1")
        a.e(f"v_lshlrev_b32 v{TB+8}, 4, v{vCT}")
        if cfg.get('k2_pzw', 32): poll(TB, K2_FH, str(cfg.get('k2_pzw', 32)), 2)
        for k in range(7):
            a.e(f"s_add_u32 s{sT0}, s{sXS}, {8192*k}")
            if k == 6: a.e(f"s_mov_b64 exec, s[{sK6}:{sK6+1}]")
            a.e(f"buffer_store_dwordx4 {vr(TB+4,4)}, v{TB+8}, s[{S_WS}:{S_WS+3}], s{sT0} offen sc1")
        a.e(f"s_lshl_b32 s{sT0}, s{sB}, 7")
        a.e(f"s_lshl_b32 s{sT1}, s{sWAVE}, 4")
        a.e(f"s_add_u32 s{sT0}, s{sT0}, s{sT1}")
        a.e(f"s_add_u32 s{sT0}, s{sT0}, {FL_OFF}")
        a.e("s_waitcnt vmcnt(0)")
        a.e("s_mov_b64 exec, 1")
        a.e(f"buffer_store_dword v{vC4}, v{vZERO}, s[{S_WS}:{S_WS+3}], s{sT0} offen sc1")
        a.e("s_mov_b64 exec, -1")
    a.e(f"s_mov_b32 s{sTG}, 32")
    if cfg.get('k2_cprio', 0): a.e(f"s_setprio {cfg['k2_cprio']}")
    a.e("K2_CLOOP:")
    a.e(f"ds_read_b64 {vr(TB,2)}, v{vZERO} offset:{K2_FS}")
    a.e(f"s_mov_b32 s{sCNP}, s{sCNT}")
    a.e(f"s_add_u32 s{sTG}, s{sTG}, 32")
    step(NS - 2, lambda p: sCNP, stub=True)
    stamp(7)
    a.e("K2_CPOLL:")
    a.e(f"v_readfirstlane_b32 s{sT0}, v{TB}")
    a.e(f"v_readfirstlane_b32 s{sN}, v{TB+1}")
    a.e(f"s_cmp_lt_u32 s{sT0}, s{sTG}")
    a.e("s_cbranch_scc1 K2_CPOLL2")
    stamp(8)
    if 'k2_lag' in cfg and cfg.get('k2_lag0', 0) < 0: a.e("s_setprio 1")
    a.e(f"s_and_b32 s{sLAST}, s{sN}, 1")
    a.e(f"s_add_u32 s{sT0}, s{sN}, 252")
    a.e(f"s_lshr_b32 s{sT0}, s{sT0}, 8")
    a.e(f"s_mul_i32 s{sT1}, s{sT0}, s{sWAVE}")
    a.e(f"s_add_u32 s{sT0}, s{sT1}, s{sT0}")
    a.e(f"s_lshr_b32 s{sT1}, s{sT1}, 3")
    a.e(f"s_lshr_b32 s{sT0}, s{sT0}, 3")
    a.e(f"s_sub_u32 s{sCNT}, s{sT0}, s{sT1}")
    a.e(f"s_lshl_b32 s{sT1}, s{sT1}, 7")
    a.e(f"s_add_u32 s{sT0}, s{sT1}, {K2_SA}")
    a.e(f"s_lshl_b32 s{sT1}, s{sT1}, 1")
    a.e(f"s_add_u32 s{sT1}, s{sT1}, {K2_SW}")
    a.e(f"v_lshl_add_u32 v{vA4}, v{vLANE}, 2, s{sT1}")
    a.e(f"v_lshl_add_u32 v{vA2}, v{vLANE}, 1, s{sT0}")
    a.e(f"s_cmp_lt_u32 s{sCNT}, {NS-1}")
    a.e("s_cbranch_scc1 K2_RSLOW")
    for s in range(NS - 1):
        a.e(f"ds_read_b32 v{SW_+s}, v{vA4} offset:{256*s}")
        a.e(f"ds_read_u16_d16_hi v{SA_+s}, v{vA2} offset:{128*s}")
    a.e("K2_RDONE:")
    step(NS - 1, lambda p: sCNP, stub=True)
    readslot(NS - 1)
    a.e(f"s_cmp_gt_u32 s{sCNT}, {NS}")
    a.e("s_cbranch_scc1 K2_EXTRA")
    a.e("K2_NOEXTRA:")
    signal(vC4, K2_FR)
    assert D < NS - LATE
    for s in range(NS - LATE):
        if TRACE and s in cfg.get('trace_steps', [0, 4, 8]): stamp(9)
        if 'k2_lag' in cfg and s == cfg.get('k2_lag0', 0): a.e("s_setprio 1")
        if s == cfg.get('k2_lag', -1): a.e(f"s_setprio {cfg.get('k2_lagp', 2)}")
        step(s, lambda p: sCNP if p >= NS - D else sCNT, mid=(lambda: fdone(f"s{sTG}")) if s == D and not T3 else None)
    a.e(f"s_cmp_eq_u32 s{sLAST}, 0")
    a.e("s_cbranch_scc1 K2_CLOOP")
    step(NS - 2, lambda p: sCNT)
    step(NS - 1, lambda p: sCNT)
    for i in range(D):
        p = NS - D + i
        uid[0] += 1
        u = uid[0]
        a.e(f"s_cmp_le_u32 s{sCNT}, {p}")
        a.e(f"s_cbranch_scc1 K2_SB{u}")
        beta(cur(p), D - 1 - i)
        a.e(f"K2_SB{u}:")
    fdone("0x7fffffff")
    stamp(10)
    if T5:
        mk = lambda b_, n: {k: b_ + n * i for i, k in enumerate(CK)}
        CV = [68, 69, 70, 71, 72]
        CO, CG, CM = mk(8, 8), mk(32, 2), mk(38, 2)
        a.e("s_waitcnt vmcnt(0)")
        t4_addr(vCT, CV)
        t5_dist(CK, CO, CV[2], 73)
        t4_mload(CK, CM, CV)
        CPRE = cfg.get('k2_cpre', 0)
        if CPRE:
            a.e(f"s_cmp_ge_u32 s{sWAVE}, {CPRE}")
            a.e("s_cbranch_scc1 K2_CP0")
            a.e("s_setprio 0")
            a.e(f"s_waitcnt vmcnt({len(CK)})")
            t4_acomp([(CO[k], CG[k]) for k in CK], 6, 104, 98, 120, CSC)
            a.e("K2_CP0:")
        def cmid():
            a.e(f"s_waitcnt vmcnt({len(CK)})")
            if CPRE:
                a.e(f"s_cmp_lt_u32 s{sWAVE}, {CPRE}")
                a.e("s_cbranch_scc1 K2_CP1")
            t4_acomp([(CO[k], CG[k]) for k in CK], 6, 104, 98, 120, CSC)
            a.e("K2_CP1:")
        cretry = t5_post("C", CK, CX, CO, CG, CM, mk(44, 4), mk(56, 4), 120, CV, vCK, cmid)
    elif T3:
        CV = [62, 63, 64, 65, 66]
        CM = {k: 56 + 2 * i for i, k in enumerate(CK)}
        CG = {k: 8 + 16 * i for i, k in enumerate(CK)}
        a.e("s_waitcnt vmcnt(0)")
        t4_addr(vCT, CV)
        t4_mload(CK, CM, CV)
        def cmid():
            for k in CK: unpack(CG[k], CX[k] + 8)
            a.e(f"s_waitcnt vmcnt({len(CK)})")
            for k in CK: unpack(CG[k] + 4, CM[k])
        cretry = t4_post("C", CK, CX, CG, {k: CG[k] + 4 for k in CK}, {k: CG[k] + 8 for k in CK}, {k: CG[k] + 12 for k in CK}, TB, CV, vCK, cmid)
    else:
        a.e("s_waitcnt lgkmcnt(0)")
        a.e("s_barrier")
    if cfg.get('x_dump'):
        a.e(f"s_mul_i32 s{sT0}, s{sB}, {13*8192}")
        a.e(f"s_add_u32 s{sT0}, s{sT0}, 0x6000000")
        a.e(f"v_lshlrev_b32 v{TB+8}, 4, v{vCT}")
        for k in range(13):
            a.e(f"ds_read_b128 {vr(TB+4,4)}, v{TB+8}")
            a.e("s_waitcnt lgkmcnt(0)")
            a.e(f"buffer_store_dwordx4 {vr(TB+4,4)}, v{TB+8}, s[{S_WS}:{S_WS+3}], s{sT0} offen")
            a.e("s_waitcnt vmcnt(0)")
            a.e(f"v_add_u32 v{TB+8}, 8192, v{TB+8}")
    a.e("s_barrier")
    a.e(f"ds_read_b32 v{vCK}, v{vZERO} offset:{K2_VI}")
    a.e("s_waitcnt vmcnt(0) lgkmcnt(0)")
    a.e(f"v_cmp_ne_u32 vcc, 0, v{vCK}")
    a.e("s_cbranch_vccz K2_FIN")
    RR, QL, vI, vE, vTL, PW, CC2, GM = 6, 32, 22, 23, 24, 26, 30, 40
    a.e(f"s_and_b32 s{sT0}, s{sB}, 127")
    a.e(f"s_lshl_b32 s{sT0}, s{sT0}, 4")
    a.e(f"v_mul_u32_u24 v{vI}, {REC_STR}, v{vCT}")
    a.e(f"v_add_u32 v{vI}, s{sT0}, v{vI}")
    a.e(f"s_mov_b32 s{sT0}, {REC_OFF}")
    for q in range(4):
        a.e(f"buffer_load_dwordx4 {vr(QL+4*q,4)}, v{vI}, s[{S_WS}:{S_WS+3}], s{sT0} offen offset:{(q>>1)*2048 + (q&1)*16}")
    for k in range(4):
        a.e(f"v_mov_b32 v{TB+4+k}, 0")
    a.e(f"v_lshlrev_b32 v{TB+8}, 4, v{vCT}")
    fill(True)
    a.e(f"s_mov_b32 s{sT0}, {cfg.get('tile_s', TILE_B)}")
    a.e(f"v_mul_lo_u32 v{vTL}, v{vCT}, s{sT0}")
    a.e(f"s_mov_b32 s{sT1}, 0x07060302")
    a.e(f"v_mov_b32 v{vI}, 0")
    a.e("s_waitcnt vmcnt(0)")
    for k in range(16):
        b_ = QL + 8 * (k >> 3) + ((k & 7) >> 1)
        a.e(f"v_perm_b32 v{RR+k}, v{b_+4}, v{b_}, s{sT1 if k & 1 else sSEL}")
        a.e(f"v_sub_u32_sdwa v{vE}, v{RR+k}, v{RR+k} dst_sel:DWORD dst_unused:UNUSED_PAD src0_sel:WORD_1 src1_sel:WORD_0")
        a.e(f"v_add_u32 v{vI}, v{vI}, v{vE}")
    a.e(f"ds_add_u32 v{vZERO}, v{vI} offset:{K2_NB}")
    a.e("s_waitcnt lgkmcnt(0)")
    a.e("s_barrier")
    a.e(f"ds_read_b32 v{t}, v{vZERO} offset:{K2_NB}")
    a.e(f"s_lshr_b32 s{sT1}, s{sB}, 7")
    a.e(f"s_mul_i32 s{sT1}, s{sT1}, {EPB}")
    a.e(f"s_sub_u32 s{sLAST}, {EPB}, s{sT1}")
    a.e(f"s_mov_b32 s{sJ}, 0")
    a.e("s_waitcnt lgkmcnt(0)")
    a.e(f"v_cvt_f32_u32 v{t}, v{t}")
    a.e(f"v_mul_f32 v{t}, s{sMX}, v{t}")
    a.e(f"v_rcp_f32 v{t}, v{t}")
    a.e(f"v_mul_f32 v{t}, 0x4efc0000, v{t}")
    setscale(t)
    a.e("K2_SJ:")
    a.e(f"s_lshr_b32 s{sT1}, s{sJ}, 3")
    mdsrd(f"s{sT1}")
    a.e(f"v_and_b32 v{vI}, 0xffff, v{RR}")
    a.e(f"v_lshrrev_b32 v{vE}, 16, v{RR}")
    for k in range(15):
        a.e(f"v_mov_b32 v{RR+k}, v{RR+k+1}")
    a.e("K2_SI:")
    a.e(f"v_cmp_lt_u32 vcc, v{vI}, v{vE}")
    a.e("s_cbranch_vccz K2_SN")
    a.e(f"s_mov_b64 exec, vcc")
    a.e(f"v_lshrrev_b32 v{GM}, 1, v{vI}")
    a.e(f"v_mad_u32_u24 v{GM}, v{GM}, 12, v{vTL}")
    a.e(f"buffer_load_dwordx3 {vr(PW,3)}, v{GM}, s[{S_WS}:{S_WS+3}], 0 offen")
    a.e(f"v_and_b32 v{GM}, 1, v{vI}")
    a.e(f"v_cmp_eq_u32 vcc, 1, v{GM}")
    a.e(f"v_add_u32 v{vI}, 1, v{vI}")
    a.e("s_waitcnt vmcnt(0)")
    a.e(f"v_cndmask_b32 v{PW}, v{PW}, v{PW+2}, vcc")
    a.e(f"v_lshlrev_b32 v{PW+2}, 16, v{PW+1}")
    a.e(f"v_and_b32 v{PW+1}, s{sHI}, v{PW+1}")
    a.e(f"v_cndmask_b32 v{PW+1}, v{PW+2}, v{PW+1}, vcc")
    a.e(f"v_and_b32 v{GM+2}, {hex(IDXM)}, v{PW}")
    a.e(f"buffer_load_dwordx2 {vr(GM,2)}, v{GM+2}, s[{S_MD}:{S_MD+3}], 0 idxen")
    cosines(PW + 1, CC2, None, 2)
    a.e(f"v_lshrrev_b32 v{PW}, 19, v{PW}")
    a.e(f"v_subrev_u32 v{PW}, s{sLAST}, v{PW}")
    a.e(f"v_cmp_gt_u32 vcc, {EPB}, v{PW}")
    a.e(f"v_lshlrev_b32 v{PW}, 2, v{PW}")
    a.e(f"v_add_u32 v{PW+1}, {STR2}, v{PW}")
    a.e("s_waitcnt vmcnt(0)")
    unpack(TB + 4, GM)
    for l in range(2):
        for q in range(2):
            a.e(f"v_pk_mul_f32 {vr(TB+8+4*l+2*q,2)}, {vr(TB+4+2*q,2)}, {vr(CC2+2*l,2)} op_sel_hi:[1,0]")
    for q in range(8):
        a.e(f"v_cvt_rpi_i32_f32 v{TB+8+q}, v{TB+8+q}")
    a.e(f"s_mov_b64 exec, vcc")
    for q in range(8):
        a.e(f"ds_add_u32 v{PW+(q>>2)}, v{TB+8+q} offset:{ACC + (q&3)*ACC_STR}")
    a.e(f"s_mov_b64 exec, -1")
    a.e("s_branch K2_SI")
    a.e("K2_SN:")
    a.e(f"s_add_u32 s{sJ}, s{sJ}, 1")
    a.e(f"s_cmp_lt_u32 s{sJ}, 16")
    a.e("s_cbranch_scc1 K2_SJ")
    a.e("s_waitcnt lgkmcnt(0)")
    a.e("s_barrier")
    a.e("s_branch K2_FIN")

    if T3: cretry()
    for u in stubs:
        a.e(f"K2_ST{u}:")
        a.e("s_waitcnt lgkmcnt(0)")
        a.e(f"s_branch K2_SB{u}")
    a.e("K2_CPOLL2:")
    if cfg.get('k2_cslp', 0): a.e(f"s_sleep {cfg['k2_cslp']}")
    a.e(f"ds_read_b64 {vr(TB,2)}, v{vZERO} offset:{K2_FS}")
    a.e("s_waitcnt lgkmcnt(0)")
    a.e("s_branch K2_CPOLL")
    a.e("K2_RSLOW:")
    for s in range(NS - 1):
        readslot(s)
    a.e("s_branch K2_RDONE")
    a.e("K2_EXTRA:")
    XW, XC = TB, cur(0)
    for s in range(NS, 16):
        if s > NS:
            a.e(f"s_cmp_le_u32 s{sCNT}, {s}")
            a.e("s_cbranch_scc1 K2_NOEXTRA")
        a.e(f"v_mov_b32 v{XW+1}, 0")
        a.e(f"ds_read_b32 v{XW}, v{vA4} offset:{256*s}")
        a.e(f"ds_read_u16_d16_hi v{XW+1}, v{vA2} offset:{128*s}")
        a.e("s_waitcnt lgkmcnt(0)")
        alpha1(XW, XC)
        alpha2(XW, XW + 1, XC)
        beta(XC, 0)
    a.e("s_branch K2_NOEXTRA")

    a.e("K2_FIN:")
    if TRACE:
        a.e("s_waitcnt vmcnt(0)")
        stamp(10)
        a.e(f"s_cmp_lg_u32 s2, {cfg.get('trace_wg', 77)}")
        a.e("s_cbranch_scc1 K2_END")
        a.e(f"s_load_dwordx2 s[{S_X}:{S_X+1}], s[0:1], 96")
        a.e(f"s_mov_b32 s{S_X+2}, 4096")
        a.e(f"s_mov_b32 s{S_X+3}, 0x00020000")
        a.e("s_waitcnt lgkmcnt(0)")
        a.e(f"v_lshlrev_b32 v1, 2, v0")
        a.e(f"buffer_store_dword v{vTR}, v1, s[{S_X}:{S_X+3}], 0 offen")
    if cfg.get('rt'): rt_end(a, 1, S_X)
    a.e("K2_END:")
    a.e("s_endpgm")
    return fix_hazards(a.lines)
```

```python
from asmlib import *
from consts import *
from k1 import dpp_scan, rt_end
import math, struct

NS = 13
DUMMY = (2 * EPB << 19) | 0x7FFFF
IDXM = 0x7FFFF
K2_GI = K2_NB + 8
K2_VI = K2_NB + 12
K2_FS = K2_NB + 32
K2_NCELL = K2_FS + 4
K2_FH = K2_FS + 8
K2_DN = K2_FS + 12
K2_FP = K2_FS + 16
K2_FR = K2_FS + 20
ACC = K2C_ACC
STR2 = 2 * ACC2_STR
def f2h(x): return hex(struct.unpack('<I', struct.pack('<f', x))[0])
def h2f(x): return struct.unpack('<f', struct.pack('<I', x))[0]
KAP = math.sqrt(10.0 * math.log2(math.e))

def gen_k2(cfg):
    a = Asm()
    D = cfg.get('k2_d', 5)
    LATE = 2
    PPRIO = cfg.get('k2_pprio', 3)
    SPLIT = cfg.get('split', True)
    S_WS, S_MD, S_X, S_Y = 4, 8, 12, 16
    sWAVE, sB, sJ, sWIN, sTOT, sN, sCNT, sT0, sT1, sT2, sFFF8, sHI, sCNP, sOOB = range(20, 34)
    sM = 34
    sDN = 36
    sTG = 37
    sR6 = 38
    sMODE = 39
    puid = [0]
    def poll(vt, off, tgt, slp=None):
        puid[0] += 1
        SLP = cfg.get('k2_slp', 0) if slp is None else slp
        if SLP:
            a.e(f"s_branch K2_PM{puid[0]}")
        a.e(f"K2_PL{puid[0]}:")
        if SLP:
            a.e(f"s_sleep {SLP}")
            a.e(f"K2_PM{puid[0]}:")
        a.e(f"ds_read_b32 v{vt}, v{vZERO} offset:{off}")
        a.e("s_waitcnt lgkmcnt(0)")
        a.e(f"v_readfirstlane_b32 s{sT0}, v{vt}")
        a.e(f"s_cmp_lt_u32 s{sT0}, {tgt}")
        a.e(f"s_cbranch_scc1 K2_PL{puid[0]}")
    def signal(vone, off):
        a.e("s_mov_b64 exec, 1")
        a.e(f"ds_add_u32 v{vZERO}, v{vone} offset:{off}")
        a.e("s_mov_b64 exec, -1")
    MSK = 40
    sPT, sPA = 88, 91
    TRACE = cfg.get('trace', False)
    vTR = 127
    def stamp(i):
        if TRACE:
            if i < 0:
                a.e(f"s_mov_b32 s{sPA}, 0")
                a.e(f"v_mov_b32 v{vTR}, 0")
                i = 15
            a.e(f"s_memtime s[{sPT}:{sPT+1}]")
            a.e("s_waitcnt lgkmcnt(0)")
            a.e(f"s_andn2_b32 s{sPT}, s{sPT}, 15")
            a.e(f"s_or_b32 s{sPT}, s{sPT}, {i}")
            a.e(f"s_mov_b32 m0, s{sPA}")
            a.e(f"s_add_u32 s{sPA}, s{sPA}, 1")
            a.e(f"s_min_u32 s{sPA}, s{sPA}, 63")
            a.e(f"v_writelane_b32 v{vTR}, s{sPT}, m0")
    vLANE, vZERO = 1, 2
    T_ = 100

    a.e(f"s_cmp_ge_u32 s2, {NWG}")
    a.e("s_cbranch_scc1 K2_END")
    if cfg.get('rt'): a.e("s_memrealtime s[96:97]")
    stamp(-1)
    a.e(f"s_load_dwordx2 s[{S_WS}:{S_WS+1}], s[0:1], 104")
    a.e(f"s_mov_b32 s{S_WS+2}, {WS_BYTES}")
    a.e(f"s_mov_b32 s{S_WS+3}, 0x00020000")
    a.e(f"v_lshrrev_b32 v{T_}, 6, v0")
    a.e(f"v_and_b32 v{vLANE}, 63, v0")
    a.e(f"v_readfirstlane_b32 s{sWAVE}, v{T_}")
    a.e(f"s_and_b32 s{sB}, s2, 7")
    a.e(f"s_lshl_b32 s{sB}, s{sB}, 5")
    a.e(f"s_lshr_b32 s{sT0}, s2, 3")
    a.e(f"s_or_b32 s{sB}, s{sB}, s{sT0}")
    a.e(f"s_mov_b32 s{sHI}, 0xffff0000")
    a.e(f"s_mov_b32 s{sOOB}, 0x80000000")
    a.e(f"v_mov_b32 v{vZERO}, 0")
    a.e(f"s_cmp_ge_u32 s{sWAVE}, 8")
    a.e("s_cbranch_scc1 K2_CONS")

    vL12, vTB, vCN, vSCR, vFOUR, vL16 = range(3, 9)
    R = 10
    def P(c): return 18 + 4 * c
    U, KA, OLD = 50, 66, 82
    if PPRIO: a.e(f"s_setprio {PPRIO}")
    a.e(f"s_mov_b32 s{sT0}, {cfg.get('tile_s', TILE_B)}")
    a.e(f"v_mul_lo_u32 v{vTB}, v0, s{sT0}")
    RL = 20
    a.e(f"s_lshl_b32 s{sT0}, s{sB}, 4")
    a.e(f"v_mul_u32_u24 v{T_+1}, {REC_STR}, v0")
    a.e(f"v_add_u32 v{T_+1}, s{sT0}, v{T_+1}")
    a.e(f"s_mov_b32 s{sT0}, {REC_OFF}")
    a.e("s_waitcnt lgkmcnt(0)")
    a.e(f"buffer_load_dwordx4 {vr(RL,4)}, v{T_+1}, s[{S_WS}:{S_WS+3}], s{sT0} offen")
    a.e(f"buffer_load_dwordx4 {vr(RL+4,4)}, v{T_+1}, s[{S_WS}:{S_WS+3}], s{sT0} offen offset:16")
    a.e("s_barrier")
    a.e(f"v_mul_u32_u24 v{vL12}, 12, v{vLANE}")
    a.e(f"v_lshlrev_b32 v{vL16}, 4, v{vLANE}")
    a.e(f"v_mov_b32 v{vFOUR}, 4")
    a.e(f"v_min_u32 v{vCN}, 1, v{vLANE}")
    a.e(f"v_lshlrev_b32 v{vSCR}, 3, v0")
    a.e(f"v_add_u32 v{vSCR}, {K2_SCR}, v{vSCR}")
    a.e(f"v_mov_b32 v{T_+2}, 0")
    a.e(f"v_mov_b32 v{T_+3}, 0")
    a.e(f"ds_write_b64 v{vSCR}, {vr(T_+2,2)}")
    a.e(f"s_mov_b32 s{sTG}, 0")
    a.e(f"s_mov_b32 s{sDN}, 0")
    PZL = cfg.get('t5') and cfg.get('k2_pzl', 1)
    if PZL:
        a.e(f"s_lshl_b32 s{sMODE}, s{sB}, 15")
        a.e(f"s_add_u32 s{sMODE}, s{sMODE}, {XB_OFF}")
        for q in range(4): a.e(f"v_mov_b32 v{88+q}, -1")
        a.e(f"v_lshlrev_b32 v92, 4, v0")
    else: a.e(f"s_mov_b32 s{sMODE}, 0")
    def pzone(lab):
        a.e(f"s_and_b32 s{sT0}, s{sMODE}, 0x6000")
        a.e(f"s_cmp_eq_u32 s{sT0}, 0x6000")
        a.e(f"s_cbranch_scc1 {lab}")
        a.e(f"buffer_store_dwordx4 v[88:91], v92, s[{S_WS}:{S_WS+3}], s{sMODE} offen sc1")
        a.e(f"s_add_u32 s{sMODE}, s{sMODE}, 8192")
    for k in range(4):
        a.e(f"v_mov_b32 v{OLD+k}, 0")
    a.e(f"s_mov_b32 s{sJ}, 8")
    a.e(f"s_mov_b32 s{sWIN}, 0")
    a.e(f"s_mov_b32 s{sT0}, 0x05040100")
    a.e(f"s_mov_b32 s{sT1}, 0x07060302")
    a.e("s_waitcnt vmcnt(0) lgkmcnt(0)")
    for k in range(8):
        a.e(f"v_perm_b32 v{R+k}, v{RL+4+(k>>1)}, v{RL+(k>>1)}, s{sT1 if k & 1 else sT0}")
    if SPLIT:
        a.e(f"s_cmp_lt_u32 s{sB}, 128")
        a.e("s_cbranch_scc1 K2_NOSWAP")
        a.e(f"v_swap_b32 v{R+6}, v{R+7}")
        a.e("K2_NOSWAP:")
    stamp(0)

    def rotate():
        for k in range(7):
            a.e(f"v_mov_b32 v{R+k}, v{R+k+1}")
        a.e(f"v_mov_b32 v{R+7}, 0")
        a.e(f"s_sub_u32 s{sJ}, s{sJ}, 1")

    a.e("K2_PLOOP:")
    s_, e_, p0, n_, inc, S_, V_, x_, sl, y_, el = range(T_, T_ + 11)
    a.e(f"v_and_b32 v{s_}, 0xffff, v{R}")
    a.e(f"v_lshrrev_b32 v{e_}, 16, v{R}")
    a.e(f"v_lshrrev_b32 v{p0}, 1, v{s_}")
    a.e(f"v_add_u32 v{n_}, 1, v{e_}")
    a.e(f"v_cmp_gt_u32 s[{sM}:{sM+1}], v{e_}, v{s_}")
    a.e(f"v_lshrrev_b32 v{n_}, 1, v{n_}")
    a.e(f"v_sub_u32 v{n_}, v{n_}, v{p0}")
    a.e(f"v_cndmask_b32 v{n_}, 0, v{n_}, s[{sM}:{sM+1}]")
    a.e(f"v_mov_b32 v{inc}, v{n_}")
    dpp_scan(a, inc)
    a.e(f"v_readlane_b32 s{sTOT}, v{inc}, 63")
    a.e(f"s_cmp_lt_u32 s{sWIN}, s{sTOT}")
    a.e(f"s_cbranch_scc1 K2_FGO")
    a.e(f"s_cmp_eq_u32 s{sJ}, 0")
    a.e(f"s_cbranch_scc1 K2_FGO")
    rotate()
    a.e(f"s_mov_b32 s{sWIN}, 0")
    a.e(f"s_branch K2_PLOOP")
    a.e(f"K2_FGO:")
    a.e(f"v_subrev_u32 v{inc}, s{sWIN}, v{inc}")
    a.e(f"v_sub_u32 v{S_}, v{inc}, v{n_}")
    a.e(f"v_add_u32 v{el}, -1, v{inc}")
    if cfg.get('x_al'):
        a.e(f"v_mul_u32_u24 v{V_}, 3, v{p0}")
        a.e(f"v_and_b32 v{V_}, 0xffe0, v{V_}")
        a.e(f"v_add_u32 v{V_}, 2, v{V_}")
        a.e(f"v_mul_u32_u24 v{V_}, 21846, v{V_}")
        a.e(f"v_lshrrev_b32 v{V_}, 16, v{V_}")
        a.e(f"v_sub_u32 v{V_}, v{V_}, v{S_}")
    else:
        a.e(f"v_sub_u32 v{V_}, v{p0}, v{S_}")
    a.e(f"v_mad_i32_i24 v{V_}, v{V_}, 12, v{vTB}")
    a.e(f"v_cmp_le_i32 vcc, 0, v{S_}")
    a.e(f"v_and_b32 v{x_}, 1, v{s_}")
    a.e(f"s_and_b64 vcc, vcc, s[{sM}:{sM+1}]")
    a.e(f"v_max_i32 v{sl}, 0, v{S_}")
    a.e(f"v_cndmask_b32 v{x_}, 0, v{x_}, vcc")
    a.e(f"v_lshl_or_b32 v{x_}, v{x_}, 6, v{vCN}")
    a.e(f"v_and_b32 v{y_}, 1, v{e_}")
    a.e(f"v_lshlrev_b32 v{y_}, 7, v{y_}")
    def marker(val, slot, tmp):
        a.e(f"v_lshrrev_b32 v{tmp}, 3, v{slot}")
        a.e(f"v_and_b32 v{tmp}, 0x18, v{tmp}")
        a.e(f"v_lshlrev_b32 v{val}, v{tmp}, v{val}")
        a.e(f"v_lshrrev_b32 v{tmp}, 8, v{slot}")
        a.e(f"v_cmp_gt_u32 vcc, 512, v{slot}")
        a.e(f"v_and_b32 v{slot}, 63, v{slot}")
        a.e(f"v_sub_u32 v{slot}, v{slot}, v{vLANE}")
        a.e(f"v_lshl_add_u32 v{slot}, v{slot}, 1, v{tmp}")
        a.e(f"v_lshl_add_u32 v{slot}, v{slot}, 2, v{vSCR}")
    marker(x_, sl, s_)
    a.e(f"s_mov_b64 exec, vcc")
    a.e(f"ds_add_u32 v{sl}, v{x_}")
    a.e(f"s_mov_b64 exec, -1")
    marker(y_, el, s_)
    a.e(f"s_and_b64 exec, vcc, s[{sM}:{sM+1}]")
    a.e(f"ds_add_u32 v{el}, v{y_}")
    a.e(f"s_mov_b64 exec, -1")
    RAW, RW2, CN = T_ + 12, T_ + 14, T_ + 16
    AD = T_ + 18
    a.e(f"ds_read_b64 {vr(RAW,2)}, v{vSCR}")
    a.e(f"v_mov_b32 v{RW2}, 0")
    a.e(f"v_mov_b32 v{RW2+1}, 0")
    a.e(f"ds_write_b64 v{vSCR}, {vr(RW2,2)}")
    a.e(f"s_sub_u32 s{sT2}, s{sTOT}, s{sWIN}")
    a.e("s_waitcnt lgkmcnt(1)")
    for h in range(2):
        a.e(f"v_and_b32 v{CN+h}, 0x3f3f3f3f, v{RAW+h}")
    for h in range(2):
        a.e(f"v_lshlrev_b32 v{RW2+h}, 1, v{RAW+h}")
    mk = []
    for c in range(8):
        mk.append(f"v_cmp_le_i32_sdwa s[{MSK+4*c}:{MSK+4*c+1}], 0, sext(v{RW2+(c>>2)}) src0_sel:DWORD src1_sel:BYTE_{c&3}")
        mk.append(f"v_cmp_le_i32_sdwa s[{MSK+4*c+2}:{MSK+4*c+3}], 0, sext(v{RAW+(c>>2)}) src0_sel:DWORD src1_sel:BYTE_{c&3}")
    dp = [f"row_shr:{sh} row_mask:0xf bank_mask:0xf bound_ctrl:0" for sh in (1, 2, 4, 8)] + \
         ["row_bcast:15 row_mask:0xa bank_mask:0xf", "row_bcast:31 row_mask:0xc bank_mask:0xf"]
    for d_ in dp:
        for h in range(2):
            a.e(f"v_add_u32_dpp v{CN+h}, v{CN+h}, v{CN+h} {d_}")
        a.e(mk.pop(0))
    a.e(f"v_readlane_b32 s{sT0}, v{CN}, 63")
    a.e(f"v_readlane_b32 s{sT1}, v{CN+1}, 63")
    a.e(mk.pop(0)); a.e(mk.pop(0))
    a.e(f"s_mul_i32 s{sM}, s{sT0}, 0x01010101")
    a.e(f"s_lshl_b32 s{sT0}, s{sM}, 8")
    a.e(f"s_lshr_b32 s{sM}, s{sM}, 24")
    a.e(f"s_lshl_b32 s{sT1}, s{sT1}, 8")
    a.e(f"s_add_u32 s{sT1}, s{sT1}, s{sM}")
    a.e(f"s_mul_i32 s{sT1}, s{sT1}, 0x01010101")
    a.e(f"v_add_u32 v{CN}, s{sT0}, v{CN}")
    a.e(f"v_add_u32 v{CN+1}, s{sT1}, v{CN+1}")
    for c in range(8):
        a.e(f"v_lshlrev_b32_sdwa v{AD+c}, 2, v{CN+(c>>2)} dst_sel:DWORD dst_unused:UNUSED_PAD src0_sel:DWORD src1_sel:BYTE_{c&3}")
        a.e(f"ds_bpermute_b32 v{AD+c}, v{AD+c}, v{V_}")
    for m_ in mk: a.e(m_)
    a.e(f"v_mov_b32 v{s_}, s{sOOB}")
    a.e(f"v_add_u32 v{e_}, {768*4}, v{vL12}")
    for c in range(8):
        a.e(f"v_cmp_gt_i32 vcc, s{sT2}, v{vLANE}")
        a.e(f"s_sub_u32 s{sT2}, s{sT2}, 64")
        a.e(f"s_and_b64 s[{MSK+4*c}:{MSK+4*c+1}], s[{MSK+4*c}:{MSK+4*c+1}], vcc")
        a.e(f"s_and_b64 s[{MSK+4*c+2}:{MSK+4*c+3}], s[{MSK+4*c+2}:{MSK+4*c+3}], vcc")
        a.e(f"s_waitcnt lgkmcnt({7-c})")
        a.e(f"v_add_u32 v{AD+c}, v{AD+c}, v{vL12 if c < 4 else e_}")
        a.e(f"v_cndmask_b32 v{AD+c}, v{s_}, v{AD+c}, vcc")
        a.e(f"buffer_load_dwordx3 {vr(P(c),3)}, v{AD+c}, s[{S_WS}:{S_WS+3}], 0 offen offset:{768*(c&3)}")
    a.e(f"s_add_u32 s{sWIN}, s{sWIN}, 512")
    a.e(f"s_cmp_lt_u32 s{sWIN}, s{sTOT}")
    a.e(f"s_cbranch_scc1 K2_FDONE")
    a.e(f"s_mov_b32 s{sWIN}, 0")
    a.e(f"s_cmp_eq_u32 s{sJ}, 0")
    a.e(f"s_cbranch_scc1 K2_FDONE")
    rotate()
    a.e(f"K2_FDONE:")
    stamp(1)
    if 'k2_sprio' in cfg and cfg.get('k2_sprio_at', 0) == 2: a.e(f"s_setprio {cfg['k2_sprio']}")
    vPL = cfg.get('vpl', 86)
    poll(vPL, K2_FP, f"s{sTG}")
    a.e(f"s_add_u32 s{sTG}, s{sTG}, 32")
    a.e(f"s_cmp_lt_u32 s{sDN}, 0xff00")
    a.e(f"s_cselect_b32 s{sR6}, s{sTG}, s{sR6}")
    a.e(f"s_cmp_le_u32 s{sJ}, {1 if SPLIT else 0}")
    a.e(f"s_cselect_b32 s{sT0}, 0x100, 0")
    a.e(f"s_cmp_eq_u32 s{sJ}, 0")
    a.e(f"s_addc_u32 s{sT0}, s{sT0}, 0")
    a.e(f"s_lshl_b32 s{sT0}, s{sT0}, s{sWAVE}")
    a.e(f"v_mov_b32 v{vPL}, s{sT0}")
    for c in range(8):
        a.e(f"s_waitcnt vmcnt({7-c})")
        for h in range(2):
            i = 2 * c + h
            a.e(f"v_lshlrev_b32_sdwa v{KA+i}, 2, v{P(c)+2*h} dst_sel:DWORD dst_unused:UNUSED_PAD src0_sel:DWORD src1_sel:BYTE_1")
        for h in range(2):
            i = 2 * c + h
            a.e(f"s_mov_b64 exec, s[{MSK+2*i}:{MSK+2*i+1}]")
            a.e(f"ds_add_rtn_u32 v{U+i}, v{KA+i}, v{vFOUR}")
        if c < 7: a.e("s_mov_b64 exec, -1")
    a.e("s_mov_b64 exec, 1")
    a.e(f"ds_or_b32 v{vZERO}, v{vPL} offset:{K2_DN}")
    a.e(f"ds_add_u32 v{vZERO}, v{vFOUR} offset:{K2_FH}")
    a.e("s_mov_b64 exec, -1")
    stamp(2)
    if PZL:
        if PZL > 1:
            a.e(f"s_cmp_lt_u32 s{sTG}, {32*PZL}")
            a.e(f"s_cbranch_scc1 K2_PLH")
        pzone("K2_PLH")
    a.e(f"K2_PLH:")
    a.e(f"ds_read_b64 {vr(vPL,2)}, v{vZERO} offset:{K2_FH}")
    a.e("s_waitcnt lgkmcnt(0)")
    a.e(f"v_readfirstlane_b32 s{sT0}, v{vPL}")
    a.e(f"s_cmp_lt_u32 s{sT0}, s{sTG}")
    a.e(f"s_cbranch_scc1 K2_PLH")
    stamp(3)
    if 'k2_sprio' in cfg and cfg.get('k2_sprio_at', 0) == 0: a.e(f"s_setprio {cfg['k2_sprio']}")
    NW, CC, TT, BS = T_, T_ + 4, T_ + 8, T_ + 12
    a.e(f"ds_read_b128 {vr(NW,4)}, v{vL16}")
    signal(vFOUR, K2_FP)
    a.e(f"v_readfirstlane_b32 s{sDN}, v{vPL+1}")
    a.e("s_waitcnt lgkmcnt(1)")
    for k in range(4):
        a.e(f"v_sub_u32 v{CC+k}, v{NW+k}, v{OLD+k}")
    a.e(f"v_add_u32 v{TT}, v{CC}, v{CC+1}")
    a.e(f"v_add3_u32 v{TT}, v{TT}, v{CC+2}, v{CC+3}")
    a.e(f"v_sub_u32 v{TT+1}, {K2_SW}, v{TT}")
    dpp_scan(a, TT)
    a.e(f"v_add_u32 v{TT+1}, v{TT+1}, v{TT}")
    a.e(f"v_readlane_b32 s{sN}, v{TT}, 63")
    for k in range(4):
        a.e(f"v_sub_u32 v{BS+k}, v{TT+1}, v{OLD+k}")
        if k < 3:
            a.e(f"v_add_u32 v{TT+1}, v{TT+1}, v{CC+k}")
        a.e(f"v_mov_b32 v{OLD+k}, v{NW+k}")
    a.e(f"ds_write_b128 v{vL16}, {vr(BS,4)} offset:{K2_BASE}")
    for i in range(16):
        a.e(f"ds_read_b32 v{KA+i}, v{KA+i} offset:{K2_BASE}")
    a.e(f"s_sub_u32 s{sT1}, s{sTG}, 32")
    stamp(4)
    poll(vPL, K2_FR, f"s{sT1}")
    stamp(5)
    if 'k2_sprio' in cfg and cfg.get('k2_sprio_at', 0) == 1: a.e(f"s_setprio {cfg['k2_sprio']}")
    a.e(f"s_cmp_lg_u32 s{sWAVE}, 0")
    a.e(f"s_cbranch_scc1 K2_NOPAD")
    a.e(f"s_add_u32 s{sT0}, s{sN}, {K2_SW}")
    a.e(f"v_lshl_add_u32 v{TT}, v{vLANE}, 2, s{sT0}")
    a.e(f"v_mov_b32 v{TT+1}, {hex(DUMMY)}")
    a.e(f"ds_write_b32 v{TT}, v{TT+1}")
    a.e(f"v_lshrrev_b32 v{TT}, 1, v{TT}")
    a.e(f"v_cmp_gt_u32 vcc, {K2_SW//2 + 16384}, v{TT}")
    a.e(f"s_cmp_eq_u32 s{sDN}, 0xffff")
    a.e(f"s_addc_u32 s{sT0}, s{sN}, 0")
    a.e(f"v_mov_b32 v{TT+3}, s{sT0}")
    a.e(f"ds_write_b32 v{vZERO}, v{TT+3} offset:{K2_NCELL}")
    a.e(f"s_mov_b64 exec, vcc")
    if not cfg.get('x_nopad'): a.e(f"ds_write_b16 v{TT}, v{vZERO} offset:{K2_SA - K2_SW//2}")
    a.e(f"s_mov_b64 exec, -1")
    a.e("K2_NOPAD:")
    for i in range(16):
        a.e(f"v_add_u32 v{U+i}, v{U+i}, v{KA+i}")
        a.e(f"v_lshrrev_b32 v{KA+i}, 1, v{U+i}")
    for i in range(16):
        c, h = i >> 1, i & 1
        a.e(f"s_mov_b64 exec, s[{MSK+2*i}:{MSK+2*i+1}]")
        a.e(f"ds_write_b32 v{U+i}, v{P(c)+2*h}")
        a.e(f"ds_write_b16{'_d16_hi' if h else ''} v{KA+i}, v{P(c)+1} offset:{K2_SA - K2_SW//2}")
    signal(vFOUR, K2_FS)
    stamp(4)
    if 'k2_sprio' in cfg: a.e(f"s_setprio {PPRIO}")
    a.e(f"s_cmp_lg_u32 s{sDN}, 0xffff")
    a.e("s_cbranch_scc1 K2_PLOOP")

    def tail_old():
        a.e("K2_PTAIL:")
        a.e(f"s_setprio {cfg.get('k2_tprio', 2)}")
        S_W1, S_W2, S_C, S_D, S_MM = 40, 44, 48, 56, 60
        sGI, sEP, sEO, sLP, sLO, sK6 = 64, 66, 67, 68, 69, 70
        S_WA = 72
        S_WR = 92 if TRACE else 88
        sBI, sTOP = sJ, sWIN
        DI, WOP, AA, MM, GG = 10, 24, 32, 88, 8
        DB0, XX, RB, vOF, vCK = 104, 120, 28, 3, 126
        a.e(f"s_load_dwordx2 s[{S_D}:{S_D+1}], s[0:1], 24")
        a.e(f"s_load_dwordx2 s[{S_W2}:{S_W2+1}], s[0:1], 56")
        a.e(f"s_load_dwordx2 s[{S_W1}:{S_W1+1}], s[0:1], 64")
        a.e(f"s_load_dwordx2 s[{S_MM}:{S_MM+1}], s[0:1], 0")
        a.e(f"s_load_dwordx2 s[{S_X}:{S_X+1}], s[0:1], 80")
        a.e(f"s_load_dwordx2 s[{S_Y}:{S_Y+1}], s[0:1], 88")
        for sr_, n in ((S_D, E * 2), (S_W1, 128), (S_W2, 64), (S_MM, E * 8), (S_Y, E * 8)):
            a.e(f"s_mov_b32 s{sr_+2}, {n}")
            a.e(f"s_mov_b32 s{sr_+3}, 0x00020000")
        a.e(f"s_lshr_b32 s{sT0}, s{sB}, 7")
        a.e(f"s_and_b32 s{sT1}, s{sB}, 127")
        a.e(f"s_mul_i32 s{sLP}, s{sT0}, {EPB}")
        a.e(f"s_sub_u32 s{sLO}, {EPB}, s{sLP}")
        a.e(f"s_mul_i32 s{sT1}, s{sT1}, {2*EPB}")
        a.e(f"s_add_u32 s{sEP}, s{sT1}, s{sLP}")
        a.e(f"s_add_u32 s{sEO}, s{sT1}, s{sLO}")
        a.e(f"s_mov_b32 s{sBI}, 0x40004000")
        a.e(f"s_mov_b32 s{sTOP}, 0x80008000")
        for k in range(14):
            a.e(f"v_mov_b32 v{DI+k}, 0")
        for q in range(8):
            a.e(f"v_mov_b32 v{WOP+q}, 0")
        a.e(f"v_add_lshl_u32 v{XX+2}, v0, s{sEP}, 1")
        a.e(f"v_add_lshl_u32 v{XX+4}, v0, s{sEO}, 1")
        a.e(f"v_add_u32 v{XX+3}, 4096, v{XX+2}")
        a.e(f"v_add_u32 v{XX+5}, 4096, v{XX+4}")
        a.e(f"v_and_b32 v{DB0+1}, 3, v{vLANE}")
        a.e(f"v_lshlrev_b32 v{DB0+1}, 1, v{DB0+1}")
        a.e(f"v_and_or_b32 v{DB0}, v{vLANE}, 8, v{DB0+1}")
        a.e(f"v_lshlrev_b32 v{vOF+2}, 3, v0")
        a.e(f"v_mov_b32 v{DB0+2}, s{sOOB}")
        a.e(f"v_cmp_gt_u32 s[{sK6}:{sK6+1}], {EPB - 3072}, v0")
        a.e(f"v_lshlrev_b32 v{vOF}, 2, v{XX+4}")
        a.e(f"v_add_u32 v{vOF+1}, {6*4096}, v{vOF}")
        a.e(f"v_cndmask_b32 v{vOF+1}, v{DB0+2}, v{vOF+1}, s[{sK6}:{sK6+1}]")
        a.e(f"v_cndmask_b32 v{vOF+3}, v{DB0+2}, v{vOF+2}, s[{sK6}:{sK6+1}]")
        poll(XX, K2_GI, "1", 0)
        a.e(f"s_mov_b32 s{sGI}, s{sT0}")
        a.e(f"s_mov_b32 s{sGI+1}, s{sT0}")
        a.e(f"s_load_dwordx8 s[{S_WR}:{S_WR+7}], s[{S_X}:{S_X+1}], 0")
        a.vm = []
        for k in range(7):
            a.vmem(f"buffer_load_short_d16_hi v{DI+k}, v{XX+2+(k>>2)}, s[{S_D}:{S_D+3}], 0 offen offset:{(k&3)*1024}", ('D', k))
        a.e(f"s_mov_b32 exec_lo, 0x00000f0f")
        a.e(f"s_mov_b32 exec_hi, 0x0000f0f0")
        for r in range(8):
            a.vmem(f"buffer_load_short_d16{'_hi' if r & 1 else ''} v{WOP+(r>>1)+4*(r&1)}, v{DB0}, s[{S_W1}:{S_W1+3}], 0 offen offset:{16*r}", 'W')
        a.e(f"s_mov_b32 exec_lo, 0x000f0000")
        a.e(f"s_mov_b32 exec_hi, 0x00f00000")
        for r in range(8):
            a.vmem(f"buffer_load_short_d16{'_hi' if r & 1 else ''} v{WOP+(r>>1)+4*(r&1)}, v{DB0+1}, s[{S_W2}:{S_W2+3}], 0 offen offset:{8*r}", 'W')
        a.e(f"s_mov_b64 exec, -1")
        for k in range(7):
            a.vmem(f"buffer_load_short_d16_hi v{DI+7+k}, v{XX+4+(k>>2)}, s[{S_D}:{S_D+3}], 0 offen offset:{(k&3)*1024}", ('D', 7 + k))
        for k in range(7):
            a.e(f"s_mov_b32 s{sT0}, {4096*k if k < 6 else 0}")
            a.vmem(f"buffer_load_dwordx2 {vr(MM+2*k,2)}, v{vOF + (k == 6)}, s[{S_MM}:{S_MM+3}], s{sT0} offen", 'M')
        for r in range(8):
            a.e(f"s_mov_b32 s{S_C+r}, {f2h(-KAP * h2f(CENTERS[r]))}")
        a.e(f"s_add_u32 s{sR6}, s{sR6}, 64")
        a.wvm('W')
        for q in range(4):
            a.e(f"v_or_b32 v{WOP+q}, v{WOP+q}, v{WOP+4+q}")
        def rbf(dv, X):
            a.e(f"v_mul_f32 v{102}, {f2h(KAP)}, v{dv}")
            for q in range(4):
                a.e(f"v_pk_add_f32 {vr(X+2*q,2)}, {vr(102,2)}, s[{S_C+2*q}:{S_C+2*q+1}] op_sel_hi:[0,1]")
            for q in range(4):
                a.e(f"v_pk_mul_f32 {vr(X+2*q,2)}, {vr(X+2*q,2)}, {vr(X+2*q,2)}")
            for r in range(8):
                a.e(f"v_exp_f32 v{X+r}, -v{X+r}")
        def acomp(base, own, hook=None):
            rbf(base, AA)
            for k in range(7):
                X = AA + 8 * k
                for q in range(4):
                    a.e(f"v_cvt_pk_bf16_f32 v{RB+q}, v{X+2*q}, v{X+2*q+1}")
                if not cfg.get('x_nomfma'): a.e(f"v_mfma_f32_32x32x16_bf16 {vr(DB0,16)}, {vr(WOP,4)}, {vr(RB,4)}, 0")
                if k < 6: rbf(base + k + 1, X + 8)
                for d in range(4):
                    a.e(f"v_pk_mul_f32 {vr(X+2*d,2)}, {vr(DB0+2*d,2)}, s[{sGI}:{sGI+1}]")
                if own:
                    for q in range(2):
                        a.e(f"v_cvt_pk_bf16_f32 v{GG+2*k+q}, v{DB0+8+2*q}, v{DB0+9+2*q}")
                if hook: hook(k)
        a.e(f"s_cmp_lg_u32 s{sMODE}, 0")
        a.e("s_cbranch_scc1 K2_TOWN")
        acomp(DI, False)
        stamp(11)
        a.e(f"v_and_b32 v{XX+1}, 7, v{vLANE}")
        a.e(f"v_lshlrev_b32 v{XX+1}, 2, v{XX+1}")
        a.e(f"v_add_lshl_u32 v{XX+2}, v0, s{sLP}, 3")
        a.e(f"v_add_u32 v{XX+3}, {STR2}, v{XX+2}")
        a.e(f"s_mul_i32 s{sT2}, s{sB}, {XB_STR}")
        a.e(f"s_add_u32 s{sT2}, s{sT2}, {XB_OFF}")
        a.wvm0()
        a.e("s_branch K2_FD1")
        a.e("K2_FD0:")
        a.e(f"s_sleep {cfg.get('k2_fdslp', 2)}")
        a.e("K2_FD1:")
        a.e(f"ds_read_b32 v{XX}, v{XX+1} offset:{K2C_FD}")
        a.e("s_waitcnt lgkmcnt(0)")
        a.e(f"v_cmp_gt_u32 vcc, s{sR6}, v{XX}")
        a.e("s_cbranch_vccnz K2_FD0")
        a.e("s_setprio 3")
        stamp(12)
        a.lg = []
        a.lds(f"ds_read_b32 v{vCK}, v{vZERO} offset:{K2_VI}", 'V')
        def sread(k, dst):
            for q in range(2):
                a.lds(f"ds_read_b64 {vr(dst+2*q,2)}, v{XX+2+q} offset:{ACC + 4096*k}", ('S', k))
        def agg(k, S, tmp, init):
            X = AA + 8 * k
            if k == 6: a.e(f"s_mov_b64 exec, s[{sK6}:{sK6+1}]")
            a.e(f"v_or3_b32 v{vCK}, v{vCK}, v{S}, v{S+1}")
            a.e(f"v_or3_b32 v{vCK}, v{vCK}, v{S+2}, v{S+3}")
            if k == 6: a.e(f"s_mov_b64 exec, -1")
            for q in range(4):
                a.e(f"v_pk_sub_i16 v{S+q}, v{S+q}, s{sBI}")
            for d in range(4):
                a.e(f"v_cvt_f32_i32_sdwa v{tmp+d}, sext(v{S+(d>>1)}) dst_sel:DWORD dst_unused:UNUSED_PAD src0_sel:WORD_{d&1}")
            for q in range(2):
                if init:
                    a.e(f"v_pk_fma_f32 {vr(RB+2*q,2)}, {vr(X+2*q,2)}, {vr(tmp+2*q,2)}, {vr(RB+2*q,2)}")
                else:
                    a.e(f"v_pk_mul_f32 {vr(RB+2*q,2)}, {vr(X+2*q,2)}, {vr(tmp+2*q,2)}")
            for d in range(4):
                a.e(f"v_cvt_f32_i32_sdwa v{X+d}, sext(v{S+2+(d>>1)}) dst_sel:DWORD dst_unused:UNUSED_PAD src0_sel:WORD_{d&1}")
            for q in range(2):
                a.e(f"v_pk_fma_f32 {vr(RB+2*q,2)}, {vr(X+4+2*q,2)}, {vr(X+2*q,2)}, {vr(RB+2*q,2)}")
        for k in range(3): sread(k, DB0 + 4 * k)
        for k in range(7):
            if k + 3 < 7: sread(k + 3, DB0 + 4 * ((k + 3) % 4))
            a.wlg(('S', k))
            agg(k, DB0 + 4 * (k % 4), 8, False)
            a.e(f"v_cvt_pk_bf16_f32 v{AA+8*k}, v{RB}, v{RB+1}")
            a.e(f"v_cvt_pk_bf16_f32 v{AA+8*k+1}, v{RB+2}, v{RB+3}")
            a.vmem(f"buffer_store_dwordx2 {vr(AA+8*k,2)}, v{vOF+2+(k == 6)}, s[{S_WS}:{S_WS+3}], s{sT2} offen sc1", 'X')
            a.e(f"s_add_u32 s{sT2}, s{sT2}, 4096")
        a.e(f"s_setprio {cfg.get('k2_tprio', 2)}")
        a.e(f"v_and_b32 v{vCK}, s{sTOP}, v{vCK}")
        a.e(f"v_cmp_ne_u32 vcc, 0, v{vCK}")
        a.e(f"s_cmp_lg_u64 vcc, 0")
        a.e(f"s_cselect_b32 s{sT0}, 0x8004, 4")
        a.e(f"v_mov_b32 v{vFOUR}, s{sT0}")
        stamp(13)
        a.e(f"s_lshl_b32 s{sT1}, s{sWAVE}, 4")
        a.e(f"s_add_u32 s{sT1}, s{sT1}, {FL_OFF}")
        a.e(f"s_lshl_b32 s{sT2}, s{sB}, 7")
        a.e(f"s_add_u32 s{sEP}, s{sT1}, s{sT2}")
        a.e(f"s_xor_b32 s{sT2}, s{sT2}, {128 << 7}")
        a.e(f"s_add_u32 s{sLP}, s{sT1}, s{sT2}")
        a.e("K2_TOWN:")
        FLK = cfg.get('k2_flk', 1)
        def flag(k):
            if k == FLK:
                a.wvm0()
                a.e(f"s_cmp_lg_u32 s{sMODE}, 0")
                a.e("s_cbranch_scc1 K2_NOFLAG")
                a.e("s_mov_b64 exec, 1")
                a.e(f"buffer_store_dword v{vFOUR}, v{vZERO}, s[{S_WS}:{S_WS+3}], s{sEP} offen sc1")
                a.e("s_mov_b64 exec, -1")
                a.e("K2_NOFLAG:")
        DO2 = 120
        a.e("s_waitcnt vmcnt(7)")
        for k in range(7):
            a.e(f"v_mov_b32 v{DO2+k}, v{DI+7+k}")
        if FLK < 0: flag(FLK)
        acomp(DO2, True, flag)
        a.e("s_waitcnt lgkmcnt(0)")
        for d in range(4):
            for h in range(2):
                src = S_WR + 2 * d + h
                a.e(f"s_lshl_b32 s{S_WA+4*d+2*h}, s{src}, 16")
                a.e(f"s_and_b32 s{S_WA+4*d+2*h+1}, s{src}, s{sHI}")
        a.e(f"s_cmp_lg_u32 s{sMODE}, 0")
        a.e("s_cbranch_scc1 K2_SFIN")
        stamp(14)
        a.e(f"s_mov_b32 s{sT0}, {1 << 14}")
        a.e(f"s_xor_b32 s{sT2}, s{sB}, 128")
        a.e(f"s_mul_i32 s{sT2}, s{sT2}, {XB_STR}")
        a.e(f"s_add_u32 s{sT2}, s{sT2}, {XB_OFF}")
        a.e("s_branch K2_FL1")
        a.e("K2_FL0:")
        a.e(f"s_sleep {cfg.get('k2_flslp', 4)}")
        a.e(f"v_mov_b32 v{vCK}, 0x8000")
        a.e(f"s_sub_u32 s{sT0}, s{sT0}, 1")
        a.e("s_cbranch_scc1 K2_FL2")
        a.e("K2_FL1:")
        a.e(f"buffer_load_dword v{vCK}, v{vZERO}, s[{S_WS}:{S_WS+3}], s{sLP} offen sc1")
        a.e("s_waitcnt vmcnt(0)")
        a.e(f"v_cmp_eq_u32 vcc, 0, v{vCK}")
        a.e("s_cbranch_vccnz K2_FL0")
        a.e("K2_FL2:")
        a.e("s_setprio 3")
        PP = [22, 24, 26, 102, 116, 118, 124]
        for k in range(7):
            a.e(f"buffer_load_dwordx2 {vr(PP[k],2)}, v{vOF+2+(k == 6)}, s[{S_WS}:{S_WS+3}], s{sT2} offen sc1")
            a.e(f"s_add_u32 s{sT2}, s{sT2}, 4096")
        a.e(f"v_add_lshl_u32 v{XX+2}, v0, s{sLO}, 3")
        a.e(f"v_add_u32 v{XX+3}, {STR2}, v{XX+2}")
        stamp(6)
        a.e("s_barrier")
        stamp(7)
        def unpack(dst, src):
            a.e(f"v_lshlrev_b32 v{dst}, 16, v{src}")
            a.e(f"v_and_b32 v{dst+1}, s{sHI}, v{src}")
            a.e(f"v_lshlrev_b32 v{dst+2}, 16, v{src+1}")
            a.e(f"v_and_b32 v{dst+3}, s{sHI}, v{src+1}")
        def finish(k):
            X = AA + 8 * k
            a.e(f"v_mov_b32 v{DB0+8}, v{RB+1}")
            a.e(f"v_mov_b32 v{DB0+10}, v{RB+3}")
            unpack(X + 4, GG + 2 * k)
            for d in range(4):
                src = RB + d if d % 2 == 0 else DB0 + 7 + d
                for q in range(2):
                    w = f"s[{S_WA+4*d+2*q}:{S_WA+4*d+2*q+1}]"
                    if d == 0:
                        a.e(f"v_pk_mul_f32 {vr(X+2*q,2)}, {vr(RB,2)}, {w} op_sel_hi:[0,1]")
                    else:
                        a.e(f"v_pk_fma_f32 {vr(X+2*q,2)}, {vr(src,2)}, {w}, {vr(X+2*q,2)} op_sel_hi:[0,1,1]")
            unpack(RB, MM + 2 * k)
            for q in range(2):
                a.e(f"v_pk_fma_f32 {vr(X+2*q,2)}, {vr(X+2*q,2)}, {vr(X+4+2*q,2)}, {vr(RB+2*q,2)}")
            a.e(f"v_cvt_pk_bf16_f32 v{MM+2*k}, v{X}, v{X+1}")
            a.e(f"v_cvt_pk_bf16_f32 v{MM+2*k+1}, v{X+2}, v{X+3}")
            a.e(f"s_mov_b32 s{sT0}, {4096*k if k < 6 else 0}")
            a.e(f"buffer_store_dwordx2 {vr(MM+2*k,2)}, v{vOF + (k == 6)}, s[{S_Y}:{S_Y+3}], s{sT0} offen")
        a.lg = []
        sread(0, DB0)
        for k in range(7):
            if k + 1 < 7: sread(k + 1, DB0 + 4 * ((k + 1) & 1))
            if k == 0: a.wvm0()
            unpack(RB, PP[k])
            a.wlg(('S', k))
            agg(k, DB0 + 4 * (k & 1), DB0 + 8, True)
            finish(k)
        a.e(f"v_and_b32 v{vCK}, s{sTOP}, v{vCK}")
        a.e(f"v_cmp_ne_u32 vcc, 0, v{vCK}")
        a.e(f"s_and_b64 exec, exec, vcc")
        a.e(f"ds_or_b32 v{vZERO}, v{vCK} offset:{K2_VI}")
        a.e(f"s_mov_b64 exec, -1")
        a.e("s_waitcnt lgkmcnt(0)")
        a.e("s_barrier")
        a.e(f"ds_read_b32 v{vCK}, v{vZERO} offset:{K2_VI}")
        a.e("s_waitcnt lgkmcnt(0)")
        a.e(f"v_cmp_ne_u32 vcc, 0, v{vCK}")
        a.e("s_cbranch_vccz K2_FIN")
        a.e(f"s_mov_b32 s{sMODE}, 1")
        a.e("s_barrier")
        a.e("s_waitcnt vmcnt(0)")
        a.e("s_barrier")
        a.e("s_branch K2_PTAIL")
        a.e("K2_SFIN:")
        a.e(f"v_lshlrev_b32 v{XX+2}, 2, v0")
        a.e(f"v_add_u32 v{XX+3}, {STR2}, v{XX+2}")
        for k in range(7):
            X = AA + 8 * k
            for q in range(8):
                a.e(f"ds_read_b32 v{DB0+q}, v{XX+2+(q>>2)} offset:{ACC + (q&3)*ACC_STR + 2048*k}")
            a.e("s_waitcnt lgkmcnt(0)")
            for q in range(8):
                a.e(f"v_cvt_f32_i32 v{DB0+q}, v{DB0+q}")
            for q in range(2):
                a.e(f"v_pk_mul_f32 {vr(RB+2*q,2)}, {vr(X+2*q,2)}, {vr(DB0+2*q,2)}")
            for q in range(2):
                a.e(f"v_pk_fma_f32 {vr(RB+2*q,2)}, {vr(X+4+2*q,2)}, {vr(DB0+4+2*q,2)}, {vr(RB+2*q,2)}")
            finish(k)
        a.e("s_branch K2_FIN")
    def unpack(dst, src):
        a.e(f"v_lshlrev_b32 v{dst}, 16, v{src}")
        a.e(f"v_and_b32 v{dst+1}, s{sHI}, v{src}")
        a.e(f"v_lshlrev_b32 v{dst+2}, 16, v{src+1}")
        a.e(f"v_and_b32 v{dst+3}, s{sHI}, v{src+1}")
    T5 = cfg.get('t5', False)
    XBS = 32768 if T5 else 7 * 8192
    S_W1, S_W2, S_C, S_D, S_MM = 52, 56, 8, 60, 64
    sGI, sK6, S_WA = 68, 70, 72
    S_WR = 92 if TRACE else 88
    sLP, sLO, sOM, sXS, sXR, sTOP = sJ, sWIN, sTOT, sDN, sR6, sOOB
    WL = T5 and cfg.get('k2_wl', 0)
    def t4_setup(tid, T, WOP, dregs, SC, pre=None, now=False):
        a.e(f"s_load_dwordx2 s[{S_D}:{S_D+1}], s[0:1], 24")
        a.e(f"s_load_dwordx2 s[{S_W2}:{S_W2+1}], s[0:1], 56")
        a.e(f"s_load_dwordx2 s[{S_W1}:{S_W1+1}], s[0:1], 64")
        a.e(f"s_load_dwordx2 s[{S_MM}:{S_MM+1}], s[0:1], 0")
        a.e(f"s_load_dwordx2 s[{S_WA}:{S_WA+1}], s[0:1], 80")
        a.e(f"s_load_dwordx2 s[{S_Y}:{S_Y+1}], s[0:1], 88")
        for sr_, n in ((S_D, E * 2), (S_W1, 128), (S_W2, 64), (S_MM, E * 8), (S_Y, E * 8)):
            a.e(f"s_mov_b32 s{sr_+2}, {n}")
            a.e(f"s_mov_b32 s{sr_+3}, 0x00020000")
        a.e(f"s_lshr_b32 s{sT0}, s{sB}, 7")
        a.e(f"s_and_b32 s{sT1}, s{sB}, 127")
        a.e(f"s_mul_i32 s{sLP}, s{sT0}, {EPB}")
        a.e(f"s_sub_u32 s{sLO}, {EPB}, s{sLP}")
        a.e(f"s_mul_i32 s{sT1}, s{sT1}, {2*EPB}")
        a.e(f"s_lshl_b32 s{sOM}, s{sT1}, 3")
        a.e(f"s_add_u32 s{sT1}, s{sT1}, s{sLO}")
        a.e(f"s_mul_i32 s{sXS}, s{sB}, {XBS}")
        a.e(f"s_add_u32 s{sXS}, s{sXS}, {XB_OFF}")
        a.e(f"s_xor_b32 s{sT2}, s{sB}, 128")
        a.e(f"s_mul_i32 s{sXR}, s{sT2}, {XBS}")
        a.e(f"s_add_u32 s{sXR}, s{sXR}, {XB_OFF}")
        a.e(f"s_mov_b32 s{sTOP}, 0x80008000")
        for k, r_ in dregs: a.e(f"v_mov_b32 v{r_}, 0")
        if not now:
            for q in range(8): a.e(f"v_mov_b32 v{WOP+q}, 0")
            if dregs or not WL:
                a.e(f"v_add_lshl_u32 v{T+2}, v{tid}, s{sT1}, 1")
                a.e(f"v_add_u32 v{T+3}, 4096, v{T+2}")
            a.e(f"v_and_b32 v{T+1}, 3, v{tid}")
            a.e(f"v_lshlrev_b32 v{T+1}, 1, v{T+1}")
            a.e(f"v_and_or_b32 v{T}, v{tid}, 8, v{T+1}")
        a.e(f"v_cmp_gt_u32 s[{sK6}:{sK6+1}], {EPB - 3072}, v{tid}")
        if pre: pre()
        a.e("s_waitcnt lgkmcnt(0)")
        a.e(f"s_load_dwordx8 s[{S_WR}:{S_WR+7}], s[{S_WA}:{S_WA+1}], 0")
        for k, r_ in dregs:
            a.e(f"buffer_load_short_d16_hi v{r_}, v{T+2+(k>>2)}, s[{S_D}:{S_D+3}], 0 offen offset:{(k&3)*1024}")
        if now:
            a.e(f"v_add_u32 v{T}, {K2_LDS}, v{vL16}")
            a.e(f"ds_read_b128 {vr(WOP,4)}, v{T}")
            return
        a.e(f"s_mov_b32 exec_lo, 0x00000f0f")
        a.e(f"s_mov_b32 exec_hi, 0x0000f0f0")
        for r in range(8):
            a.e(f"buffer_load_short_d16{'_hi' if r & 1 else ''} v{WOP+(r>>1)+4*(r&1)}, v{T}, s[{S_W1}:{S_W1+3}], 0 offen offset:{16*r}")
        a.e(f"s_mov_b32 exec_lo, 0x000f0000")
        a.e(f"s_mov_b32 exec_hi, 0x00f00000")
        for r in range(8):
            a.e(f"buffer_load_short_d16{'_hi' if r & 1 else ''} v{WOP+(r>>1)+4*(r&1)}, v{T+1}, s[{S_W2}:{S_W2+3}], 0 offen offset:{8*r}")
        a.e(f"s_mov_b64 exec, -1")
    def t4_consts(WOP, SC, dst=None):
        for q in range(0 if WL else 4):
            a.e(f"v_or_b32 v{(WOP if dst is None else dst)+q}, v{WOP+q}, v{WOP+4+q}")
        for r in range(8):
            a.e(f"s_mov_b32 s{SC+r}, {f2h(-KAP * h2f(CENTERS[r]))}")
        for d in range(4):
            for h in range(2):
                src = S_WR + 2 * d + h
                a.e(f"s_lshl_b32 s{S_WA+4*d+2*h}, s{src}, 16")
                a.e(f"s_and_b32 s{S_WA+4*d+2*h+1}, s{src}, s{sHI}")
    def t4_acomp(items, KD, DB0, WOP, RB, SC):
        def rbf(X):
            a.e(f"v_mul_f32 v{KD}, {f2h(KAP)}, v{X}")
            for q in range(4):
                a.e(f"v_pk_add_f32 {vr(X+2*q,2)}, {vr(KD,2)}, s[{SC+2*q}:{SC+2*q+1}] op_sel_hi:[0,1]")
            for q in range(4):
                a.e(f"v_pk_mul_f32 {vr(X+2*q,2)}, {vr(X+2*q,2)}, {vr(X+2*q,2)}")
            for r in range(8):
                a.e(f"v_exp_f32 v{X+r}, -v{X+r}")
        rbf(items[0][0])
        for i, (X, G) in enumerate(items):
            for q in range(4):
                a.e(f"v_cvt_pk_bf16_f32 v{RB+q}, v{X+2*q}, v{X+2*q+1}")
            a.e(f"v_mfma_f32_32x32x16_bf16 {vr(DB0,16)}, {vr(WOP,4)}, {vr(RB,4)}, 0")
            if i + 1 < len(items): rbf(items[i+1][0])
            for d in range(4):
                a.e(f"v_pk_mul_f32 {vr(X+2*d,2)}, {vr(DB0+2*d,2)}, s[{sGI}:{sGI+1}]")
            for q in range(2 if G is not None else 0):
                a.e(f"v_cvt_pk_bf16_f32 v{G+q}, v{DB0+8+2*q}, v{DB0+9+2*q}")
    def t4_fin(X, GU, MU, RB, T, soff, vO):
        a.e(f"v_mov_b32 v{T}, v{RB+1}")
        a.e(f"v_mov_b32 v{T+2}, v{RB+3}")
        for d in (0, 2, 1, 3):
            src = RB + d if d % 2 == 0 else T - 1 + d
            for q in range(2):
                w = f"s[{S_WA+4*d+2*q}:{S_WA+4*d+2*q+1}]"
                if d == 0:
                    a.e(f"v_pk_mul_f32 {vr(X+2*q,2)}, {vr(RB,2)}, {w} op_sel_hi:[0,1]")
                else:
                    a.e(f"v_pk_fma_f32 {vr(X+2*q,2)}, {vr(src,2)}, {w}, {vr(X+2*q,2)} op_sel_hi:[0,1,1]")
        for q in range(2):
            a.e(f"v_pk_fma_f32 {vr(X+2*q,2)}, {vr(X+2*q,2)}, {vr(GU+2*q,2)}, {vr(MU+2*q,2)}")
        a.e(f"v_cvt_pk_bf16_f32 v{MU}, v{X}, v{X+1}")
        a.e(f"v_cvt_pk_bf16_f32 v{MU+1}, v{X+2}, v{X+3}")
        a.e(f"buffer_store_dwordx2 {vr(MU,2)}, v{vO}, s[{S_Y}:{S_Y+3}], {soff} offen")
    def t4_addr(tid, V):
        a.e(f"v_add_lshl_u32 v{V[0]}, v{tid}, s{sLP}, 3")
        a.e(f"v_add_lshl_u32 v{V[2]}, v{tid}, s{sLO}, 3")
        a.e(f"v_lshlrev_b32 v{V[4]}, {3 if T5 else 4}, v{tid}")
        a.e(f"v_add_u32 v{V[1]}, {STR2}, v{V[0]}")
        a.e(f"v_add_u32 v{V[3]}, {STR2}, v{V[2]}")
    def t4_mload(ks, M2, V):
        for k in ks:
            a.e(f"s_add_u32 s{sT0}, s{sOM}, {4096*k}")
            if k == 6: a.e(f"s_mov_b64 exec, s[{sK6}:{sK6+1}]")
            a.e(f"buffer_load_dwordx2 {vr(M2[k],2)}, v{V[2]}, s[{S_MM}:{S_MM+3}], s{sT0} offen")
            if k == 6: a.e(f"s_mov_b64 exec, -1")
    def t4_post(tg, ks, X, GU, MU, SO, PP, RB, V, vCK, mid=None):
        def m6(k, on):
            if k == 6: a.e(f"s_mov_b64 exec, s[{sK6}:{sK6+1}]" if on else "s_mov_b64 exec, -1")
        a.e("s_setprio 3")
        a.e("s_waitcnt lgkmcnt(0)")
        a.e("s_barrier")
        stamp(12)
        a.lg = []
        a.lds(f"ds_read_b32 v{vCK}, v{vZERO} offset:{K2_VI}", 'V')
        for k in ks:
            for q in range(2):
                a.lds(f"ds_read_b64 {vr(PP[k]+2*q,2)}, v{V[q]} offset:{ACC + 4096*k}", ('S', k))
        for k in ks:
            m6(k, 1)
            for q in range(2):
                a.lds(f"ds_read_b64 {vr(SO[k]+2*q,2)}, v{V[2+q]} offset:{ACC + 4096*k}", ('O', k))
            m6(k, 0)
        for k in ks:
            a.e(f"s_add_u32 s{sT0}, s{sXS}, {8192*k}")
            a.wlg(('S', k))
            if k == ks[0]: a.e(f"v_or_b32 v{PP[k]}, v{PP[k]}, v{vCK}")
            m6(k, 1)
            a.e(f"buffer_store_dwordx4 {vr(PP[k],4)}, v{V[4]}, s[{S_WS}:{S_WS+3}], s{sT0} offen sc1")
            m6(k, 0)
        stamp(13)
        a.e(f"v_readfirstlane_b32 s{sT2}, v{vCK}")
        if mid: mid()
        if 6 in ks:
            for q in range(4): a.e(f"v_mov_b32 v{PP[6]+q}, 0")
        a.wlg0()
        for k in ks:
            for q in range(2):
                a.e(f"v_or3_b32 v{vCK}, v{vCK}, v{SO[k]+2*q}, v{SO[k]+2*q+1}")
            for q in range(4):
                a.e(f"v_xor_b32 v{SO[k]+q}, s{sTOP}, v{SO[k]+q}")
        a.e(f"v_and_b32 v{vCK}, s{sTOP}, v{vCK}")
        a.e(f"s_mov_b32 s{sT1}, {1 << 14}")
        a.e(f"s_cmp_lg_u32 s{sT2}, 0")
        a.e(f"s_cbranch_scc1 K2_TE{tg}")
        if cfg.get('k2_w1', 1): a.e("s_waitcnt vmcnt(0)")
        stamp(14)
        a.e(f"K2_PW{tg}:")
        for k in ks:
            a.e(f"s_add_u32 s{sT0}, s{sXR}, {8192*k}")
            m6(k, 1)
            a.e(f"buffer_load_dwordx4 {vr(PP[k],4)}, v{V[4]}, s[{S_WS}:{S_WS+3}], s{sT0} offen sc1")
            m6(k, 0)
        a.e("s_waitcnt vmcnt(0)")
        for i, k in enumerate(ks):
            a.e(f"v_or3_b32 v{RB}, v{PP[k]}, v{PP[k]+1}, {'v%d' % RB if i else 0}")
            a.e(f"v_or3_b32 v{RB}, v{PP[k]+2}, v{PP[k]+3}, v{RB}")
        a.e(f"v_and_b32 v{RB}, s{sTOP}, v{RB}")
        a.e(f"v_cmp_ne_u32 vcc, 0, v{RB}")
        a.e(f"s_cbranch_vccnz K2_PR{tg}")
        stamp(7)
        for k in ks:
            S_ = PP[k]
            if k == 6:
                a.e(f"s_cmp_lg_u32 s{sWAVE}, 0")
                a.e(f"s_cbranch_scc1 K2_TE{tg}")
            m6(k, 1)
            for q in range(4):
                a.e(f"v_pk_add_u16 v{S_+q}, v{S_+q}, v{SO[k]+q}")
            for d in range(4):
                a.e(f"v_cvt_f32_i32_sdwa v{RB+d}, sext(v{S_+(d>>1)}) dst_sel:DWORD dst_unused:UNUSED_PAD src0_sel:WORD_{d&1}")
            for d in range(4):
                a.e(f"v_cvt_f32_i32_sdwa v{SO[k]+d}, sext(v{S_+2+(d>>1)}) dst_sel:DWORD dst_unused:UNUSED_PAD src0_sel:WORD_{d&1}")
            for q in range(2):
                a.e(f"v_pk_mul_f32 {vr(RB+2*q,2)}, {vr(X[k]+2*q,2)}, {vr(RB+2*q,2)}")
            a.e(f"s_add_u32 s{sT0}, s{sOM}, {4096*k}")
            for q in range(2):
                a.e(f"v_pk_fma_f32 {vr(RB+2*q,2)}, {vr(X[k]+4+2*q,2)}, {vr(SO[k]+2*q,2)}, {vr(RB+2*q,2)}")
            t4_fin(X[k], GU[k], MU[k], RB, S_, f"s{sT0}", V[2])
            m6(k, 0)
        a.e(f"K2_TE{tg}:")
        stamp(9)
        vTRq = vTR
        a.e(f"v_cmp_ne_u32 vcc, 0, v{vCK}")
        a.e(f"s_and_b64 exec, exec, vcc")
        a.e(f"ds_or_b32 v{vZERO}, v{vCK} offset:{K2_VI}")
        a.e(f"s_mov_b64 exec, -1")
        a.e("s_waitcnt lgkmcnt(0)")
        def retry():
            a.e(f"K2_PR{tg}:")
            for i, k in enumerate(ks):
                a.e(f"v_max3_u32 v{RB}, v{PP[k]}, v{PP[k]+1}, {'v%d' % RB if i else 0}")
                a.e(f"v_max3_u32 v{RB}, v{PP[k]+2}, v{PP[k]+3}, v{RB}")
            a.e(f"v_cmp_eq_u32 vcc, -1, v{RB}")
            a.e(f"s_cbranch_vccz K2_PV{tg}")
            if cfg.get('k2_prslp', 0): a.e(f"s_sleep {cfg['k2_prslp']}")
            nonlocal vTR
            sv = vTR; vTR = vTRq
            stamp(8)
            vTR = sv
            a.e(f"s_sub_u32 s{sT1}, s{sT1}, 1")
            a.e(f"s_cbranch_scc0 K2_PW{tg}")
            a.e(f"K2_PV{tg}:")
            a.e(f"v_mov_b32 v{vCK}, 0x8000")
            a.e(f"s_branch K2_TE{tg}")
        return retry
    def t5_dist(ks, X, vA, tmp):
        a.e(f"v_lshrrev_b32 v{tmp}, 2, v{vA}")
        for k in ks: a.e(f"v_mov_b32 v{X[k]}, 0")
        a.e(f"s_lshr_b32 s{sT1}, s{sOM}, 2")
        for k in ks:
            a.e(f"s_add_u32 s{sT0}, s{sT1}, {1024*k}")
            if k == 6: a.e(f"s_mov_b64 exec, s[{sK6}:{sK6+1}]")
            a.e(f"buffer_load_short_d16_hi v{X[k]}, v{tmp}, s[{S_D}:{S_D+3}], s{sT0} offen")
            if k == 6: a.e(f"s_mov_b64 exec, -1")
    def t5_agg(X, S, RB, out, sBI):
        for q in range(4):
            a.e(f"v_pk_sub_i16 v{S+q}, v{S+q}, s{sBI}")
        for d in range(4):
            a.e(f"v_cvt_f32_i32_sdwa v{RB+d}, sext(v{S+(d>>1)}) dst_sel:DWORD dst_unused:UNUSED_PAD src0_sel:WORD_{d&1}")
        for q in range(2):
            a.e(f"v_pk_mul_f32 {vr(RB+2*q,2)}, {vr(X+2*q,2)}, {vr(RB+2*q,2)}")
        for d in range(4):
            a.e(f"v_cvt_f32_i32_sdwa v{X+d}, sext(v{S+2+(d>>1)}) dst_sel:DWORD dst_unused:UNUSED_PAD src0_sel:WORD_{d&1}")
        for q in range(2):
            a.e(f"v_pk_fma_f32 {vr(out+2*q,2)}, {vr(X+4+2*q,2)}, {vr(X+2*q,2)}, {vr(RB+2*q,2)}")
    def t5_post(tg, ks, XP, X, G, M, SP, SO, RB, V, vCK, mid=None, early=None):
        def m6(k, on):
            if k == 6: a.e(f"s_mov_b64 exec, s[{sK6}:{sK6+1}]" if on else "s_mov_b64 exec, -1")
        def skip6(k, lab):
            if k == 6:
                a.e(f"s_cmp_lg_u32 s{sWAVE}, 0")
                a.e(f"s_cbranch_scc1 {lab}")
        sBI = sN
        a.e(f"s_mov_b32 s{sBI}, 0x40004000")
        a.e(f"s_setprio {cfg.get('k2_px' + tg, 3)}")
        a.e("s_waitcnt lgkmcnt(0)")
        a.e("s_barrier")
        stamp(12)
        a.lg = []
        a.lds(f"ds_read_b32 v{vCK}, v{vZERO} offset:{K2_VI}", 'V')
        for R_, o, nm in ((SP, 0, 'S'), (SO, 2, 'O')):
            for k in ks:
                m6(k, 1)
                for q in range(2):
                    a.lds(f"ds_read_b64 {vr(R_[k]+2*q,2)}, v{V[o+q]} offset:{ACC + 4096*k}", (nm, k))
                m6(k, 0)
        if early: early()
        a.wlg(('S', ks[-1]))
        for k in ks:
            for q in range(2):
                a.e(f"v_or3_b32 v{vCK}, v{vCK}, v{SP[k]+2*q}, v{SP[k]+2*q+1}")
        a.e(f"v_and_b32 v{vCK}, s{sTOP}, v{vCK}")
        a.e(f"v_cmp_eq_u32 vcc, 0, v{vCK}")
        for k in ks:
            skip6(k, f"K2_NS{tg}")
            m6(k, 1)
            t5_agg(XP[k], SP[k], RB, RB, sBI)
            a.e(f"s_add_u32 s{sT0}, s{sXS}, {4096*k}")
            a.e(f"v_cvt_pk_bf16_f32 v{SP[k]}, v{RB}, v{RB+1}")
            a.e(f"v_cvt_pk_bf16_f32 v{SP[k]+1}, v{RB+2}, v{RB+3}")
            if k == ks[0]: a.e(f"v_cndmask_b32 v{SP[k]}, -2, v{SP[k]}, vcc")
            a.e(f"buffer_store_dwordx2 {vr(SP[k],2)}, v{V[4]}, s[{S_WS}:{S_WS+3}], s{sT0} offen sc1")
            m6(k, 0)
        a.e(f"K2_NS{tg}:")
        if 'k2_ps' + tg in cfg: a.e(f"s_setprio {cfg['k2_ps' + tg]}")
        stamp(13)
        if mid: mid()
        a.wlg0()
        for k in ks:
            for q in range(2):
                a.e(f"v_or3_b32 v{vCK}, v{vCK}, v{SO[k]+2*q}, v{SO[k]+2*q+1}")
        a.e(f"v_and_b32 v{vCK}, s{sTOP}, v{vCK}")
        a.e(f"v_cmp_ne_u32 vcc, 0, v{vCK}")
        a.e(f"s_cbranch_vccnz K2_TE{tg}")
        def loads():
            for k in ks:
                a.e(f"s_add_u32 s{sT0}, s{sXR}, {4096*k}")
                m6(k, 1)
                a.e(f"buffer_load_dwordx2 {vr(SP[k],2)}, v{V[4]}, s[{S_WS}:{S_WS+3}], s{sT0} offen sc1")
                m6(k, 0)
        EL = cfg.get('k2_el' + tg, 0)
        if EL: loads()
        MF = cfg.get('mf', 0)
        WT = SP[ks[0]] + 2
        if MF:
            for i in range(4):
                a.e(f"s_mov_b32 exec_lo, {hex(0x11111111 << i)}")
                a.e(f"s_mov_b32 exec_hi, {hex(0x11111111 << i)}")
                for r in range(2):
                    a.e(f"s_pack_{'hh' if i & 1 else 'll'}_b32_b16 s{sT0}, s{S_WR+4*r+(i>>1)}, s{S_WR+4*r+2+(i>>1)}")
                    a.e(f"v_mov_b32 v{WT+r}, s{sT0}")
            a.e("s_mov_b64 exec, -1")
        for k in ks:
            skip6(k, f"K2_NO{tg}")
            t5_agg(X[k], SO[k], RB, RB if MF else SO[k], sBI)
            if MF:
                for q in range(2): a.e(f"v_cvt_pk_bf16_f32 v{X[k]+q}, v{RB+2*q}, v{RB+2*q+1}")
            unpack(XP[k], G[k])
            if MF: a.e(f"v_mfma_f32_4x4x4_16b_bf16 {vr(SO[k],4)}, {vr(WT,2)}, {vr(X[k],2)}, 0")
            unpack(XP[k] + 4, M[k])
        a.e(f"K2_NO{tg}:")
        a.e(f"s_mov_b32 s{sT1}, {1 << 14}")
        a.e(f"s_mov_b32 s{sT2}, 0xff800000")
        if EL: a.e(f"s_branch K2_PX{tg}")
        elif cfg.get('k2_w1' + tg, 0): a.e("s_waitcnt vmcnt(0)")
        stamp(14)
        a.e(f"K2_PW{tg}:")
        loads()
        a.e(f"K2_PX{tg}:")
        a.e("s_waitcnt vmcnt(0)")
        for i, k in enumerate(ks):
            a.e(f"v_max3_u32 v{RB}, v{SP[k]}, v{SP[k]+1}, {'v%d' % RB if i else 0}")
        a.e(f"v_cmp_le_u32 vcc, s{sT2}, v{RB}")
        a.e(f"s_cbranch_vccnz K2_PR{tg}")
        stamp(7)
        for k in ks[:3] if MF else []:
            a.e(f"v_mfma_f32_4x4x4_16b_bf16 {vr(SO[k],4)}, {vr(WT,2)}, {vr(SP[k],2)}, {vr(SO[k],4)}")
        for k in ks if MF else []:
            skip6(k, f"K2_TE{tg}")
            if k == 6: a.e(f"v_mfma_f32_4x4x4_16b_bf16 {vr(SO[k],4)}, {vr(WT,2)}, {vr(SP[k],2)}, {vr(SO[k],4)}")
            a.e(f"s_add_u32 s{sT0}, s{sOM}, {4096*k}")
            for q in range(2):
                a.e(f"v_pk_fma_f32 {vr(SO[k]+2*q,2)}, {vr(SO[k]+2*q,2)}, {vr(XP[k]+2*q,2)}, {vr(XP[k]+4+2*q,2)}")
            for q in range(2): a.e(f"v_cvt_pk_bf16_f32 v{X[k]+q}, v{SO[k]+2*q}, v{SO[k]+2*q+1}")
            m6(k, 1)
            a.e(f"buffer_store_dwordx2 {vr(X[k],2)}, v{V[2]}, s[{S_Y}:{S_Y+3}], s{sT0} offen")
            m6(k, 0)
        for k in [] if MF else ks:
            skip6(k, f"K2_TE{tg}")
            m6(k, 1)
            unpack(RB, SP[k])
            a.e(f"s_add_u32 s{sT0}, s{sOM}, {4096*k}")
            for q in range(2):
                a.e(f"v_pk_add_f32 {vr(RB+2*q,2)}, {vr(RB+2*q,2)}, {vr(SO[k]+2*q,2)}")
            t4_fin(X[k], XP[k], XP[k] + 4, RB, SP[k], f"s{sT0}", V[2])
            m6(k, 0)
        a.e(f"K2_TE{tg}:")
        stamp(9)
        vTRq = vTR
        a.e(f"v_cmp_ne_u32 vcc, 0, v{vCK}")
        a.e(f"s_and_b64 exec, exec, vcc")
        a.e(f"ds_or_b32 v{vZERO}, v{vCK} offset:{K2_VI}")
        a.e(f"s_mov_b64 exec, -1")
        a.e("s_waitcnt lgkmcnt(0)")
        def retry():
            nonlocal vTR
            a.e(f"K2_PR{tg}:")
            a.e(f"v_cmp_eq_u32 vcc, -1, v{RB}")
            a.e(f"s_cbranch_vccz K2_PV{tg}")
            if cfg.get('k2_prslp', 0): a.e(f"s_sleep {cfg['k2_prslp']}")
            sv = vTR; vTR = vTRq
            stamp(8)
            vTR = sv
            a.e(f"s_sub_u32 s{sT1}, s{sT1}, 1")
            a.e(f"s_cbranch_scc0 K2_PW{tg}")
            a.e(f"K2_PV{tg}:")
            a.e(f"v_mov_b32 v{vCK}, 0x8000")
            a.e(f"s_branch K2_TE{tg}")
        return retry
    def tail5_head(ks, V, vCK, DB0, WOP, RB):
        nonlocal vTR
        mk = lambda b_, n: {k: b_ + n * i for i, k in enumerate(ks)}
        XP, X, G, M, SP, SO = mk(8, 8), mk(40, 8), mk(72, 2), mk(80, 2), mk(88, 4), mk(104, 4)
        if TRACE:
            a.e(f"v_mov_b32 v87, v{vTR}")
            vTR = 87
        def pre():
            for q in range(4): a.e(f"v_mov_b32 v{SP[0]+q}, -1")
            a.e(f"v_lshlrev_b32 v{V[4]}, 4, v0")
            if PZL:
                a.e("K2_PZ0:")
                pzone("K2_PZ1")
                a.e("s_branch K2_PZ0")
                a.e("K2_PZ1:")
            for k in range(3 if PZL else 0, 4):
                a.e(f"s_add_u32 s{sT0}, s{sXS}, {8192*k}")
                if k == 3: a.e(f"s_mov_b64 exec, s[{sK6}:{sK6+1}]")
                a.e(f"buffer_store_dwordx4 {vr(SP[0],4)}, v{V[4]}, s[{S_WS}:{S_WS+3}], s{sT0} offen sc1")
            a.e("s_mov_b64 exec, -1")
            poll(DB0 + 6, K2_GI, "1", 0)
            a.e(f"s_mov_b32 s{sGI}, s{sT0}")
            a.e(f"s_mov_b32 s{sGI+1}, s{sT0}")
        t4_setup(0, DB0, WOP, [], S_C, pre, now=WL)
        t4_addr(0, V)
        t5_dist(ks, XP, V[0], DB0 + 2)
        t5_dist(ks, X, V[2], DB0 + 3)
        t4_mload(ks[:3] if TRACE else ks, M, V)
        if cfg.get('k2_lb', 0) > 1:
            a.e(f"s_cmp_lt_u32 s{sWAVE}, {cfg.get('k2_cpre', 0)}")
            a.e("s_cbranch_scc1 K2_NPF")
            t5_dist([3, 4, 5], {3: 93, 4: 94, 5: 95}, V[2], DB0 + 4)
            t4_mload([3, 4, 5], {3: 96, 4: 98, 5: 100}, V)
            a.e("K2_NPF:")
        a.e(f"s_lshl_b32 s{sT1}, s{sWAVE}, 4")
        a.e(f"s_lshl_b32 s{sT2}, s{sT2}, 7")
        a.e(f"s_add_u32 s{sT2}, s{sT1}, s{sT2}")
        a.e(f"s_xor_b32 s{sT1}, s{sT2}, {128 << 7}")
        a.e(f"s_add_u32 s{sT2}, s{sT2}, {FL_OFF}")
        a.e(f"s_add_u32 s{sT1}, s{sT1}, {FL_OFF}")
        a.e("s_waitcnt vmcnt(0) lgkmcnt(0)")
        a.e("s_mov_b64 exec, 1")
        a.e(f"buffer_store_dword v{SP[0]}, v{vZERO}, s[{S_WS}:{S_WS+3}], s{sT1} offen sc1")
        a.e("s_mov_b64 exec, -1")
        stamp(6)
        if 'k2_aprio' in cfg: a.e(f"s_setprio {cfg['k2_aprio']}")
        t4_consts(WOP, S_C)
        KD = SP[1]
        t4_acomp([(XP[k], None) for k in ks[:3]] + [(X[k], G[k]) for k in ks[:3]], KD, DB0, WOP, RB, S_C)
        a.e(f"s_cmp_lg_u32 s{sWAVE}, 0")
        a.e("s_cbranch_scc1 K2_NA6")
        t4_acomp([(XP[6], None), (X[6], G[6])], KD, DB0, WOP, RB, S_C)
        a.e("K2_NA6:")
        for q in range(4):
            a.e(f"v_mov_b32 v{SO[6]+q}, 0")
            a.e(f"v_mov_b32 v{SP[6]+q}, 0")
        return lambda: t5_post("P", ks, XP, X, G, M, SP, SO, RB, V, vCK)
    def tail3():
        nonlocal vTR
        ks = [0, 1, 2, 6]
        X = {k: 8 + 24 * i for i, k in enumerate(ks)}
        GU = {k: X[k] + 8 for k in ks}; MU = {k: X[k] + 12 for k in ks}
        SO = {k: X[k] + 16 for k in ks}; PP = {k: X[k] + 20 for k in ks}
        DB0, WOP, RB, KD, vCK = 104, 120, 124, 6, 7
        V = [1, 3, 4, 5, 6]
        a.e("K2_PTAIL:")
        a.e(f"s_setprio {cfg.get('k2_tprio', 2)}")
        if T5:
            post5 = tail5_head(ks, V, vCK, DB0, WOP, RB)
        else:
            if TRACE:
                a.e(f"v_mov_b32 v{MU[6]+3}, v{vTR}")
                vTR = MU[6] + 3
            def pre():
                poll(DB0 + 6, K2_GI, "1", 0)
                a.e(f"s_mov_b32 s{sGI}, s{sT0}")
                a.e(f"s_mov_b32 s{sGI+1}, s{sT0}")
            t4_setup(0, DB0, WOP, [(k, X[k]) for k in ks], S_C, pre)
            t4_addr(0, V)
            t4_mload(ks, PP, V)
            a.e(f"s_lshl_b32 s{sT1}, s{sWAVE}, 4")
            a.e(f"s_lshl_b32 s{sT2}, s{sT2}, 7")
            a.e(f"s_add_u32 s{sT2}, s{sT1}, s{sT2}")
            a.e(f"s_add_u32 s{sT2}, s{sT2}, {FL_OFF}")
            a.e("s_waitcnt vmcnt(0) lgkmcnt(0)")
            t4_consts(WOP, S_C)
            t4_acomp([(X[k], SO[k]) for k in ks[:3]], SO[6] + 2, DB0, WOP, RB, S_C)
            for k in ks[:3]:
                unpack(GU[k], SO[k]); unpack(MU[k], PP[k])
            a.e(f"s_cmp_lg_u32 s{sWAVE}, 0")
            a.e("s_cbranch_scc1 K2_NA6")
            t4_acomp([(X[6], SO[6])], SO[6] + 2, DB0, WOP, RB, S_C)
            unpack(GU[6], SO[6])
            if not TRACE: unpack(MU[6], PP[6])
            a.e("K2_NA6:")
            for q in range(4): a.e(f"v_mov_b32 v{SO[6]+q}, 0")
        stamp(11)
        a.e(f"s_mov_b32 s{sT0}, {1 << 14}")
        a.e("s_branch K2_FL1")
        a.e("K2_FL0:")
        a.e(f"s_sleep {cfg.get('k2_flslp', 4)}")
        a.e(f"s_sub_u32 s{sT0}, s{sT0}, 1")
        a.e("s_cbranch_scc0 K2_FL1")
        a.e(f"v_mov_b32 v{vCK}, 0x8000")
        a.e(f"ds_or_b32 v{vZERO}, v{vCK} offset:{K2_VI}")
        a.e("s_branch K2_FL2")
        a.e("K2_FL1:")
        a.e(f"buffer_load_dword v{vCK}, v{vZERO}, s[{S_WS}:{S_WS+3}], s{sT2} offen sc1")
        a.e("s_waitcnt vmcnt(0)")
        a.e(f"v_cmp_eq_u32 vcc, 0, v{vCK}")
        a.e("s_cbranch_vccnz K2_FL0")
        a.e("K2_FL2:")
        retry = post5() if T5 else t4_post("P", ks, X, GU, MU, SO, PP, RB, V, vCK)
        if TRACE:
            a.e(f"v_mov_b32 v127, v{vTR}")
            vTR = 127
        a.e("s_barrier")
        a.e(f"ds_read_b32 v{vCK}, v{vZERO} offset:{K2_VI}")
        a.e("s_waitcnt lgkmcnt(0)")
        a.e(f"v_cmp_ne_u32 vcc, 0, v{vCK}")
        a.e("s_cbranch_vccz K2_FIN")
        a.e("s_barrier")
        a.e("s_waitcnt vmcnt(0)")
        a.e("s_barrier")
        a.e("K2_SFIN:")
        x, vT, vL = X[0], V[0], X[1]
        a.e(f"ds_read_b32 v{vCK}, v{vZERO} offset:{K2_GI}")
        a.e(f"v_mov_b32 v{vT}, v0")
        a.e(f"s_lshr_b32 s{sT2}, s{sOM}, 2")
        a.e(f"s_mov_b32 s{sT1}, 0")
        a.e("s_waitcnt lgkmcnt(0)")
        a.e(f"v_readfirstlane_b32 s{sGI}, v{vCK}")
        a.e(f"v_readfirstlane_b32 s{sGI+1}, v{vCK}")
        a.e("K2_SFL:")
        a.e(f"v_min_u32 v{vL}, {EPB - 1}, v{vT}")
        a.e(f"v_add_lshl_u32 v{V[2]}, v{vL}, s{sLO}, 3")
        a.e(f"v_lshlrev_b32 v{vL}, 2, v{vL}")
        a.e(f"v_add_u32 v{vL+1}, {STR2}, v{vL}")
        a.e(f"v_lshrrev_b32 v{vL+2}, 2, v{V[2]}")
        a.e(f"buffer_load_ushort v{x}, v{vL+2}, s[{S_D}:{S_D+3}], s{sT2} offen")
        a.e(f"buffer_load_dwordx2 {vr(PP[0],2)}, v{V[2]}, s[{S_MM}:{S_MM+3}], s{sOM} offen")
        a.e("s_waitcnt vmcnt(0)")
        a.e(f"v_lshlrev_b32 v{x}, 16, v{x}")
        t4_acomp([(x, SO[0])], SO[6] + 2, DB0, WOP, RB, S_C)
        unpack(GU[0], SO[0]); unpack(MU[0], PP[0])
        for q in range(8):
            a.e(f"ds_read_b32 v{DB0+q}, v{vL+(q>>2)} offset:{ACC + (q&3)*ACC_STR}")
        a.e("s_waitcnt lgkmcnt(0)")
        for q in range(8):
            a.e(f"v_cvt_f32_i32 v{DB0+q}, v{DB0+q}")
        for q in range(2):
            a.e(f"v_pk_mul_f32 {vr(RB+2*q,2)}, {vr(x+2*q,2)}, {vr(DB0+2*q,2)}")
        for q in range(2):
            a.e(f"v_pk_fma_f32 {vr(RB+2*q,2)}, {vr(x+4+2*q,2)}, {vr(DB0+4+2*q,2)}, {vr(RB+2*q,2)}")
        t4_fin(x, GU[0], MU[0], RB, DB0 + 8, f"s{sOM}", V[2])
        a.e(f"v_add_u32 v{vT}, 512, v{vT}")
        a.e(f"s_add_u32 s{sT1}, s{sT1}, 1")
        a.e(f"s_cmp_lt_u32 s{sT1}, 7")
        a.e("s_cbranch_scc1 K2_SFL")
        a.e("s_branch K2_FIN")
        retry()
    T3 = cfg.get('t3', False)
    if T3: tail3()
    else: tail_old()

    a.e("K2_CONS:")
    vFD, vA4, vA2 = 3, 4, 5
    SW_, SA_ = 6, 19
    CUR = 32
    COL = {3: [0,1,2,3,0,1,2,3,0,1,2,3,4], 2: [0,1,2,0,1,2,0,1,2,0,1,2,3],
           4: [0,1,2,3,4,5,0,1,2,3,4,5,6], 5: [0,1,2,3,4,5,0,1,2,3,4,5,6]}.get(D, list(range(13)))
    NCOL = max(COL) + 1
    RSTR = 6 if D <= 5 else 4
    LB = CUR + 4 * 13
    TB = 104
    RT, vCK, vC4, vCT = 120, 124, 125, 126
    MXR = TB
    sG, sGN, sMG, sNB, sSEL, sMX, sLAST = 40, 42, 44, 46, 48, 49, 50
    def fill(first):
        if first:
            a.e(f"v_cmp_le_u32 vcc, {ACC//16}, v{vCT}")
            a.e(f"s_mov_b64 exec, vcc")
            a.e(f"ds_write_b128 v{TB+8}, {vr(TB+4,4)}")
            a.e(f"s_mov_b64 exec, -1")
        for k in range(1, 8):
            a.e(f"ds_write_b128 v{TB+8}, {vr(TB+4,4)} offset:{k*8192}")
        a.e(f"v_add_u32 v{TB+8}, 65536, v{TB+8}")
        for k in range(4):
            a.e(f"ds_write_b128 v{TB+8}, {vr(TB+4,4)} offset:{k*8192}")
        a.e(f"v_cmp_gt_u32 vcc, {(K2_SA - 12*8192)//16}, v{vCT}")
        a.e(f"s_mov_b64 exec, vcc")
        a.e(f"ds_write_b128 v{TB+8}, {vr(TB+4,4)} offset:{4*8192}")
        a.e(f"s_mov_b64 exec, -1")
    def mdsrd(hreg):
        a.e(f"s_mul_i32 s{sT0}, {hreg}, {MD_TSTR}")
        a.e(f"s_add_u32 s{sT0}, s{sT0}, {MD_OFF}")
        a.e(f"s_add_u32 s{S_MD}, s{S_WS}, s{sT0}")
        a.e(f"s_addc_u32 s{S_MD+1}, s{S_WS+1}, 0")
        a.e(f"s_or_b32 s{S_MD+1}, s{S_MD+1}, 0x80000")
    def setscale(t):
        a.e(f"v_min_f32 v{t}, 0x71800000, v{t}")
        a.e(f"v_rcp_f32 v{t+1}, v{t}")
        a.e(f"v_add_f32 v{t+2}, v{t}, v{t}")
        a.e(f"v_readlane_b32 s{sG}, v{t}, 63")
        a.e(f"v_readlane_b32 s{sG+1}, v{t+2}, 63")
        a.e("s_lshl_b64 exec, 1, 63")
        a.e(f"ds_write_b32 v{vZERO}, v{t+1} offset:{K2_GI}")
        a.e("s_mov_b64 exec, -1")
        a.e(f"s_xor_b32 s{sGN}, s{sG}, 0x80000000")
    a.e(f"s_sub_u32 s{sWAVE}, s{sWAVE}, 8")
    a.e(f"v_add_u32 v{vCT}, -512, v0")
    a.e(f"v_mov_b32 v{TB+9}, 0x40004000")
    a.e(f"v_cmp_le_u32 vcc, {ACC//16}, v{vCT}")
    a.e(f"v_lshlrev_b32 v{TB+8}, 4, v{vCT}")
    for k in range(4):
        a.e(f"v_cndmask_b32 v{TB+4+k}, 0, v{TB+9}, vcc")
    a.e(f"ds_write_b128 v{TB+8}, {vr(TB+4,4)}")
    for k in range(4):
        a.e(f"v_mov_b32 v{TB+4+k}, v{TB+9}")
    a.e(f"v_lshlrev_b32 v{TB+9}, 5, v{vLANE}")
    a.e(f"s_mov_b32 s{sT1}, {MX_OFF}")
    a.e("s_waitcnt lgkmcnt(0)")
    a.e("s_barrier")
    a.e(f"buffer_load_dwordx4 {vr(CUR,4)}, v{TB+9}, s[{S_WS}:{S_WS+3}], s{sT1} offen")
    a.e(f"buffer_load_dwordx4 {vr(CUR+4,4)}, v{TB+9}, s[{S_WS}:{S_WS+3}], s{sT1} offen offset:16")
    CK = [3, 4, 5]
    CX = {k: 74 + 10 * i for i, k in enumerate(CK)}
    CWOP, CSC = 56, 52
    if T5:
        CX = {k: 74 + 8 * i for i, k in enumerate(CK)}
        t4_setup(vCT, 64, CWOP, [], CSC)
        a.e(f"v_add_lshl_u32 v66, v{vCT}, s{sLP}, 3")
        t5_dist(CK, CX, 66, 66)
    elif T3: t4_setup(vCT, 64, CWOP, [(k, CX[k]) for k in CK], CSC)
    fill(False)
    a.e(f"s_lshr_b32 s{sT1}, s{sB}, 7")
    mdsrd(f"s{sT1}")
    a.e(f"s_mov_b32 s{S_MD+2}, {E//2}")
    a.e(f"s_mov_b32 s{S_MD+3}, 0x00020000")
    a.e(f"s_mov_b32 s{sFFF8}, 0xfff8")
    a.e(f"s_mov_b32 s{sMG}, {f2h(8388608.0 + 32768.0)}")
    a.e(f"s_mov_b32 s{sMG+1}, {f2h(8388608.0 + 32768.0)}")
    a.e(f"s_mov_b32 s{sNB}, 0x7fff8000")
    a.e(f"s_mov_b32 s{sNB+1}, 0x7fff7fff")
    a.e(f"s_mov_b32 s{sSEL}, 0x05040100")
    a.e(f"s_lshl_b32 s{sT0}, s{sWAVE}, 2")
    a.e(f"v_mov_b32 v{vFD}, s{sT0}")
    for s in range(NS):
        a.e(f"v_mov_b32 v{SW_+s}, {hex(DUMMY)}")
        a.e(f"v_mov_b32 v{SA_+s}, 0")
    for k in range(4):
        a.e(f"v_mov_b32 v{RT+k}, 0")
    a.e(f"s_mov_b32 s{sCNT}, 0")
    t = TB + 4
    if WL:
        a.e(f"v_lshlrev_b32 v67, 4, v{vLANE}")
        a.e(f"v_add_u32 v67, {K2_LDS}, v67")
    a.e("s_waitcnt vmcnt(0)")
    if WL:
        for q in range(4): a.e(f"v_or_b32 v{98+q}, v{CWOP+q}, v{CWOP+4+q}")
        a.e(f"ds_write_b128 v67, v[98:101]")
    a.e(f"v_max3_u32 v{MXR}, v{CUR}, v{CUR+2}, v{CUR+4}")
    a.e(f"v_add_f32 v{MXR+1}, v{CUR+1}, v{CUR+3}")
    a.e(f"v_add_f32 v{MXR+2}, v{CUR+5}, v{CUR+7}")
    a.e(f"v_max_u32 v{MXR}, v{MXR}, v{CUR+6}")
    a.e(f"v_add_f32 v{MXR+1}, v{MXR+1}, v{MXR+2}")
    dpp_scan(a, MXR, "v_max_u32")
    dpp_scan(a, MXR + 1, "v_add_f32")
    a.e(f"v_rcp_f32 v{t}, v{MXR}")
    a.e(f"v_mul_f32 v{MXR+2}, {f2h(4.0 * E / cfg.get('crest', 32.0))}, v{MXR}")
    a.e(f"v_readlane_b32 s{sMX}, v{MXR}, 63")
    a.e(f"v_cmp_nle_f32 vcc, v{MXR+2}, v{MXR+1}")
    a.e(f"v_mul_f32 v{t}, {f2h(cfg.get('qmax', 4096.0))}, v{t}")
    a.e(f"s_lshr_b32 s{sT0}, vcc_hi, 16")
    a.e(f"s_and_b32 s{sT0}, s{sT0}, 0x8000")
    a.e(f"v_mov_b32 v{vCK}, s{sT0}")
    setscale(t)
    stamp(6)

    uid = [0]
    stubs = []
    NOX = cfg.get('nox', True)
    def lreg(cur): return cur + (5 if NOX else 4) if D <= 5 else LB + (cur - CUR) // 4
    def alpha1(W, cur):
        L = lreg(cur)
        a.e(f"v_and_b32 v{L}, {hex(cfg.get('x_gmask', IDXM))}, v{W}")
        if not cfg.get('x_nog'):
            a.e(f"buffer_load_dwordx2 {vr(cur,2)}, v{L}, s[{S_MD}:{S_MD+3}], 0 idxen")
    def cosines(A, C_, mid=None, c2=1):
        tc = TB + 2
        a.e(f"v_mul_f32 v{tc}, 0.15915494, v{A}")
        a.e(f"v_fract_f32 v{tc}, v{tc}")
        a.e(f"v_cos_f32 v{tc}, v{tc}")
        if mid: a.e(mid)
        a.e(f"v_pk_mul_f32 {vr(C_,2)}, {vr(tc,2)}, s[{sG}:{sG+1}] op_sel_hi:[0,1]")
        a.e(f"v_fma_f32 v{C_+c2}, v{C_+1}, v{tc}, s{sGN}")
    def alpha2(W, A, cur):
        cosines(A, cur + 2, f"v_and_b32_sdwa v{lreg(cur)}, v{W}, s{sFFF8} dst_sel:DWORD dst_unused:UNUSED_PAD src0_sel:WORD_1 src1_sel:DWORD", 2 if NOX else 1)
    def orrt():
        a.e(f"v_or3_b32 v{vCK}, v{vCK}, v{RT}, v{RT+1}")
        a.e(f"v_or3_b32 v{vCK}, v{vCK}, v{RT+2}, v{RT+3}")
    def beta(cur, vm):
        G0, C_, L = cur, cur + 2, lreg(cur)
        M_, X = TB + 4, TB + 8
        a.e(f"s_waitcnt vmcnt({vm})")
        unpack(M_, G0)
        for l in range(2):
            for q in range(2):
                if NOX:
                    a.e(f"v_pk_fma_f32 {vr(X+4*l+2*q,2)}, {vr(M_+2*q,2)}, {vr(C_+2*l,2)}, s[{sMG}:{sMG+1}] op_sel_hi:[1,0,1]")
                else:
                    a.e(f"v_pk_fma_f32 {vr(X+4*l+2*q,2)}, {vr(M_+2*q,2)}, {vr(C_,2)}, s[{sMG}:{sMG+1}] op_sel:[0,{l},0] op_sel_hi:[1,{l},1]")
        for q in range(4):
            a.e(f"v_perm_b32 v{M_+q}, v{X+2*q+1}, v{X+2*q}, s{sSEL}")
        for l in range(2):
            a.e(f"v_lshl_add_u64 {vr(M_+2*l,2)}, {vr(M_+2*l,2)}, 0, s[{sNB}:{sNB+1}]")
        a.e(f"s_waitcnt lgkmcnt(0)")
        orrt()
        for l in range(2):
            a.e(f"ds_add_rtn_u64 {vr(RT+2*l,2)}, v{L}, {vr(M_+2*l,2)} offset:{ACC + l*STR2}")
    def cur(s): return CUR + RSTR * COL[s]
    def fdone(val):
        uid[0] += 1
        a.e(f"s_waitcnt lgkmcnt(0)")
        orrt()
        a.e(f"v_and_b32 v{vCK}, 0x80008000, v{vCK}")
        a.e(f"v_cmp_ne_u32 vcc, 0, v{vCK}")
        if cfg.get('k2_lb', 0):
            a.e(f"s_mov_b64 exec, vcc")
            a.e(f"ds_or_b32 v{vZERO}, v{vCK} offset:{K2_VI}")
            a.e("s_mov_b64 exec, -1")
            return
        a.e(f"v_mov_b32 v{TB+4}, {val}")
        a.e(f"s_mov_b64 exec, vcc")
        a.e(f"ds_or_b32 v{vZERO}, v{vCK} offset:{K2_VI}")
        a.e("s_mov_b64 exec, 1")
        a.e(f"ds_write_b32 v{vFD}, v{TB+4} offset:{K2C_FD}")
        a.e("s_mov_b64 exec, -1")
    def step(s, cnt_of, stub=False, mid=None):
        p = (s - D) % NS
        alpha1(SW_ + s, cur(s))
        alpha2(SW_ + s, SA_ + s, cur(s))
        if mid: mid()
        uid[0] += 1
        a.e(f"s_cmp_le_u32 s{cnt_of(p)}, {p}")
        if stub:
            a.e(f"s_cbranch_scc1 K2_ST{uid[0]}")
            stubs.append(uid[0])
        else:
            a.e(f"s_cbranch_scc1 K2_SB{uid[0]}")
        u = uid[0]
        beta(cur(p), D)
        a.e(f"K2_SB{u}:")
    def readslot(s):
        uid[0] += 1
        a.e(f"s_cmp_le_u32 s{sCNT}, {s}")
        a.e(f"s_cbranch_scc1 K2_RD{uid[0]}")
        a.e(f"ds_read_b32 v{SW_+s}, v{vA4} offset:{256*s}")
        a.e(f"ds_read_u16_d16_hi v{SA_+s}, v{vA2} offset:{128*s}")
        a.e(f"s_branch K2_RE{uid[0]}")
        a.e(f"K2_RD{uid[0]}:")
        a.e(f"v_mov_b32 v{SW_+s}, {hex(DUMMY)}")
        a.e(f"K2_RE{uid[0]}:")
    a.e(f"v_mov_b32 v{vC4}, 4")
    signal(vC4, K2_FS)
    if T3:
        a.e(f"v_readlane_b32 s{sGI}, v{t+1}, 63")
        a.e(f"v_readlane_b32 s{sGI+1}, v{t+1}, 63")
        a.e("s_waitcnt lgkmcnt(0)")
    if T5:
        t4_consts(CWOP, CSC, 98)
        t4_acomp([(CX[k], None) for k in CK], 64, 32, 98, 60, CSC)
        stamp(5)
    elif T3:
        t4_consts(CWOP, CSC)
        t4_acomp([(CX[k], CX[k] + 8) for k in CK], 64, 32, CWOP, 60, CSC)
        stamp(5)
        for q in range(4): a.e(f"v_mov_b32 v{TB+4+q}, -1")
        a.e(f"v_lshlrev_b32 v{TB+8}, 4, v{vCT}")
        if cfg.get('k2_pzw', 32): poll(TB, K2_FH, str(cfg.get('k2_pzw', 32)), 2)
        for k in range(7):
            a.e(f"s_add_u32 s{sT0}, s{sXS}, {8192*k}")
            if k == 6: a.e(f"s_mov_b64 exec, s[{sK6}:{sK6+1}]")
            a.e(f"buffer_store_dwordx4 {vr(TB+4,4)}, v{TB+8}, s[{S_WS}:{S_WS+3}], s{sT0} offen sc1")
        a.e(f"s_lshl_b32 s{sT0}, s{sB}, 7")
        a.e(f"s_lshl_b32 s{sT1}, s{sWAVE}, 4")
        a.e(f"s_add_u32 s{sT0}, s{sT0}, s{sT1}")
        a.e(f"s_add_u32 s{sT0}, s{sT0}, {FL_OFF}")
        a.e("s_waitcnt vmcnt(0)")
        a.e("s_mov_b64 exec, 1")
        a.e(f"buffer_store_dword v{vC4}, v{vZERO}, s[{S_WS}:{S_WS+3}], s{sT0} offen sc1")
        a.e("s_mov_b64 exec, -1")
    a.e(f"s_mov_b32 s{sTG}, 32")
    if cfg.get('k2_cprio', 0): a.e(f"s_setprio {cfg['k2_cprio']}")
    a.e("K2_CLOOP:")
    a.e(f"ds_read_b64 {vr(TB,2)}, v{vZERO} offset:{K2_FS}")
    a.e(f"s_mov_b32 s{sCNP}, s{sCNT}")
    a.e(f"s_add_u32 s{sTG}, s{sTG}, 32")
    step(NS - 2, lambda p: sCNP, stub=True)
    stamp(7)
    a.e("K2_CPOLL:")
    a.e(f"v_readfirstlane_b32 s{sT0}, v{TB}")
    a.e(f"v_readfirstlane_b32 s{sN}, v{TB+1}")
    a.e(f"s_cmp_lt_u32 s{sT0}, s{sTG}")
    a.e("s_cbranch_scc1 K2_CPOLL2")
    stamp(8)
    if 'k2_lag' in cfg and cfg.get('k2_lag0', 0) < 0: a.e("s_setprio 1")
    a.e(f"s_and_b32 s{sLAST}, s{sN}, 1")
    a.e(f"s_add_u32 s{sT0}, s{sN}, 252")
    a.e(f"s_lshr_b32 s{sT0}, s{sT0}, 8")
    a.e(f"s_mul_i32 s{sT1}, s{sT0}, s{sWAVE}")
    a.e(f"s_add_u32 s{sT0}, s{sT1}, s{sT0}")
    a.e(f"s_lshr_b32 s{sT1}, s{sT1}, 3")
    a.e(f"s_lshr_b32 s{sT0}, s{sT0}, 3")
    a.e(f"s_sub_u32 s{sCNT}, s{sT0}, s{sT1}")
    a.e(f"s_lshl_b32 s{sT1}, s{sT1}, 7")
    a.e(f"s_add_u32 s{sT0}, s{sT1}, {K2_SA}")
    a.e(f"s_lshl_b32 s{sT1}, s{sT1}, 1")
    a.e(f"s_add_u32 s{sT1}, s{sT1}, {K2_SW}")
    a.e(f"v_lshl_add_u32 v{vA4}, v{vLANE}, 2, s{sT1}")
    a.e(f"v_lshl_add_u32 v{vA2}, v{vLANE}, 1, s{sT0}")
    a.e(f"s_cmp_lt_u32 s{sCNT}, {NS-1}")
    a.e("s_cbranch_scc1 K2_RSLOW")
    for s in range(NS - 1):
        a.e(f"ds_read_b32 v{SW_+s}, v{vA4} offset:{256*s}")
        a.e(f"ds_read_u16_d16_hi v{SA_+s}, v{vA2} offset:{128*s}")
    a.e("K2_RDONE:")
    step(NS - 1, lambda p: sCNP, stub=True)
    readslot(NS - 1)
    a.e(f"s_cmp_gt_u32 s{sCNT}, {NS}")
    a.e("s_cbranch_scc1 K2_EXTRA")
    a.e("K2_NOEXTRA:")
    signal(vC4, K2_FR)
    assert D < NS - LATE
    for s in range(NS - LATE):
        if TRACE and s in cfg.get('trace_steps', [0, 4, 8]): stamp(9)
        if 'k2_lag' in cfg and s == cfg.get('k2_lag0', 0): a.e("s_setprio 1")
        if s == cfg.get('k2_lag', -1): a.e(f"s_setprio {cfg.get('k2_lagp', 2)}")
        step(s, lambda p: sCNP if p >= NS - D else sCNT, mid=(lambda: fdone(f"s{sTG}")) if s == D and not T3 else None)
    a.e(f"s_cmp_eq_u32 s{sLAST}, 0")
    a.e("s_cbranch_scc1 K2_CLOOP")
    step(NS - 2, lambda p: sCNT)
    step(NS - 1, lambda p: sCNT)
    for i in range(D):
        p = NS - D + i
        uid[0] += 1
        u = uid[0]
        a.e(f"s_cmp_le_u32 s{sCNT}, {p}")
        a.e(f"s_cbranch_scc1 K2_SB{u}")
        beta(cur(p), D - 1 - i)
        a.e(f"K2_SB{u}:")
    fdone("0x7fffffff")
    stamp(10)
    if T5:
        mk = lambda b_, n: {k: b_ + n * i for i, k in enumerate(CK)}
        CV = [68, 69, 70, 71, 72]
        CO, CG, CM = mk(8, 8), mk(32, 2), mk(38, 2)
        a.e("s_waitcnt vmcnt(0)")
        t4_addr(vCT, CV)
        LBF = cfg.get('k2_lb', 0)
        def cloads():
            t5_dist(CK, CO, CV[2], 73)
            t4_mload(CK, CM, CV)
        if not LBF: cloads()
        CPRE = cfg.get('k2_cpre', 0)
        def cearly():
            a.e(f"s_cmp_lt_u32 s{sWAVE}, {CPRE}")
            a.e("s_cbranch_scc1 K2_CP2")
            cloads()
            a.e("K2_CP2:")
        if CPRE:
            a.e(f"s_cmp_ge_u32 s{sWAVE}, {CPRE}")
            a.e("s_cbranch_scc1 K2_CP0")
            a.e("s_setprio 0")
            if LBF: cloads()
            a.e(f"s_waitcnt vmcnt({len(CK)})")
            t4_acomp([(CO[k], CG[k]) for k in CK], 6, 104, 98, 120, CSC)
            a.e("K2_CP0:")
        def cmid():
            a.e(f"s_waitcnt vmcnt({len(CK)})")
            if CPRE:
                a.e(f"s_cmp_lt_u32 s{sWAVE}, {CPRE}")
                a.e("s_cbranch_scc1 K2_CP1")
            t4_acomp([(CO[k], CG[k]) for k in CK], 6, 104, 98, 120, CSC)
            a.e("K2_CP1:")
        cretry = t5_post("C", CK, CX, CO, CG, CM, mk(44, 4), mk(56, 4), 120, CV, vCK, cmid, cearly if LBF else None)
    elif T3:
        CV = [62, 63, 64, 65, 66]
        CM = {k: 56 + 2 * i for i, k in enumerate(CK)}
        CG = {k: 8 + 16 * i for i, k in enumerate(CK)}
        a.e("s_waitcnt vmcnt(0)")
        t4_addr(vCT, CV)
        t4_mload(CK, CM, CV)
        def cmid():
            for k in CK: unpack(CG[k], CX[k] + 8)
            a.e(f"s_waitcnt vmcnt({len(CK)})")
            for k in CK: unpack(CG[k] + 4, CM[k])
        cretry = t4_post("C", CK, CX, CG, {k: CG[k] + 4 for k in CK}, {k: CG[k] + 8 for k in CK}, {k: CG[k] + 12 for k in CK}, TB, CV, vCK, cmid)
    else:
        a.e("s_waitcnt lgkmcnt(0)")
        a.e("s_barrier")
    if cfg.get('x_dump'):
        a.e(f"s_mul_i32 s{sT0}, s{sB}, {13*8192}")
        a.e(f"s_add_u32 s{sT0}, s{sT0}, 0x6000000")
        a.e(f"v_lshlrev_b32 v{TB+8}, 4, v{vCT}")
        for k in range(13):
            a.e(f"ds_read_b128 {vr(TB+4,4)}, v{TB+8}")
            a.e("s_waitcnt lgkmcnt(0)")
            a.e(f"buffer_store_dwordx4 {vr(TB+4,4)}, v{TB+8}, s[{S_WS}:{S_WS+3}], s{sT0} offen")
            a.e("s_waitcnt vmcnt(0)")
            a.e(f"v_add_u32 v{TB+8}, 8192, v{TB+8}")
    a.e("s_barrier")
    a.e(f"ds_read_b32 v{vCK}, v{vZERO} offset:{K2_VI}")
    a.e("s_waitcnt vmcnt(0) lgkmcnt(0)")
    a.e(f"v_cmp_ne_u32 vcc, 0, v{vCK}")
    a.e("s_cbranch_vccz K2_FIN")
    RR, QL, vI, vE, vTL, PW, CC2, GM = 6, 32, 22, 23, 24, 26, 30, 40
    a.e(f"s_and_b32 s{sT0}, s{sB}, 127")
    a.e(f"s_lshl_b32 s{sT0}, s{sT0}, 4")
    a.e(f"v_mul_u32_u24 v{vI}, {REC_STR}, v{vCT}")
    a.e(f"v_add_u32 v{vI}, s{sT0}, v{vI}")
    a.e(f"s_mov_b32 s{sT0}, {REC_OFF}")
    for q in range(4):
        a.e(f"buffer_load_dwordx4 {vr(QL+4*q,4)}, v{vI}, s[{S_WS}:{S_WS+3}], s{sT0} offen offset:{(q>>1)*2048 + (q&1)*16}")
    for k in range(4):
        a.e(f"v_mov_b32 v{TB+4+k}, 0")
    a.e(f"v_lshlrev_b32 v{TB+8}, 4, v{vCT}")
    fill(True)
    a.e(f"s_mov_b32 s{sT0}, {cfg.get('tile_s', TILE_B)}")
    a.e(f"v_mul_lo_u32 v{vTL}, v{vCT}, s{sT0}")
    a.e(f"s_mov_b32 s{sT1}, 0x07060302")
    a.e(f"v_mov_b32 v{vI}, 0")
    a.e("s_waitcnt vmcnt(0)")
    for k in range(16):
        b_ = QL + 8 * (k >> 3) + ((k & 7) >> 1)
        a.e(f"v_perm_b32 v{RR+k}, v{b_+4}, v{b_}, s{sT1 if k & 1 else sSEL}")
        a.e(f"v_sub_u32_sdwa v{vE}, v{RR+k}, v{RR+k} dst_sel:DWORD dst_unused:UNUSED_PAD src0_sel:WORD_1 src1_sel:WORD_0")
        a.e(f"v_add_u32 v{vI}, v{vI}, v{vE}")
    a.e(f"ds_add_u32 v{vZERO}, v{vI} offset:{K2_NB}")
    a.e("s_waitcnt lgkmcnt(0)")
    a.e("s_barrier")
    a.e(f"ds_read_b32 v{t}, v{vZERO} offset:{K2_NB}")
    a.e(f"s_lshr_b32 s{sT1}, s{sB}, 7")
    a.e(f"s_mul_i32 s{sT1}, s{sT1}, {EPB}")
    a.e(f"s_sub_u32 s{sLAST}, {EPB}, s{sT1}")
    a.e(f"s_mov_b32 s{sJ}, 0")
    a.e("s_waitcnt lgkmcnt(0)")
    a.e(f"v_cvt_f32_u32 v{t}, v{t}")
    a.e(f"v_mul_f32 v{t}, s{sMX}, v{t}")
    a.e(f"v_rcp_f32 v{t}, v{t}")
    a.e(f"v_mul_f32 v{t}, 0x4efc0000, v{t}")
    setscale(t)
    a.e("K2_SJ:")
    a.e(f"s_lshr_b32 s{sT1}, s{sJ}, 3")
    mdsrd(f"s{sT1}")
    a.e(f"v_and_b32 v{vI}, 0xffff, v{RR}")
    a.e(f"v_lshrrev_b32 v{vE}, 16, v{RR}")
    for k in range(15):
        a.e(f"v_mov_b32 v{RR+k}, v{RR+k+1}")
    a.e("K2_SI:")
    a.e(f"v_cmp_lt_u32 vcc, v{vI}, v{vE}")
    a.e("s_cbranch_vccz K2_SN")
    a.e(f"s_mov_b64 exec, vcc")
    a.e(f"v_lshrrev_b32 v{GM}, 1, v{vI}")
    a.e(f"v_mad_u32_u24 v{GM}, v{GM}, 12, v{vTL}")
    a.e(f"buffer_load_dwordx3 {vr(PW,3)}, v{GM}, s[{S_WS}:{S_WS+3}], 0 offen")
    a.e(f"v_and_b32 v{GM}, 1, v{vI}")
    a.e(f"v_cmp_eq_u32 vcc, 1, v{GM}")
    a.e(f"v_add_u32 v{vI}, 1, v{vI}")
    a.e("s_waitcnt vmcnt(0)")
    a.e(f"v_cndmask_b32 v{PW}, v{PW}, v{PW+2}, vcc")
    a.e(f"v_lshlrev_b32 v{PW+2}, 16, v{PW+1}")
    a.e(f"v_and_b32 v{PW+1}, s{sHI}, v{PW+1}")
    a.e(f"v_cndmask_b32 v{PW+1}, v{PW+2}, v{PW+1}, vcc")
    a.e(f"v_and_b32 v{GM+2}, {hex(IDXM)}, v{PW}")
    a.e(f"buffer_load_dwordx2 {vr(GM,2)}, v{GM+2}, s[{S_MD}:{S_MD+3}], 0 idxen")
    cosines(PW + 1, CC2, None, 2)
    a.e(f"v_lshrrev_b32 v{PW}, 19, v{PW}")
    a.e(f"v_subrev_u32 v{PW}, s{sLAST}, v{PW}")
    a.e(f"v_cmp_gt_u32 vcc, {EPB}, v{PW}")
    a.e(f"v_lshlrev_b32 v{PW}, 2, v{PW}")
    a.e(f"v_add_u32 v{PW+1}, {STR2}, v{PW}")
    a.e("s_waitcnt vmcnt(0)")
    unpack(TB + 4, GM)
    for l in range(2):
        for q in range(2):
            a.e(f"v_pk_mul_f32 {vr(TB+8+4*l+2*q,2)}, {vr(TB+4+2*q,2)}, {vr(CC2+2*l,2)} op_sel_hi:[1,0]")
    for q in range(8):
        a.e(f"v_cvt_rpi_i32_f32 v{TB+8+q}, v{TB+8+q}")
    a.e(f"s_mov_b64 exec, vcc")
    for q in range(8):
        a.e(f"ds_add_u32 v{PW+(q>>2)}, v{TB+8+q} offset:{ACC + (q&3)*ACC_STR}")
    a.e(f"s_mov_b64 exec, -1")
    a.e("s_branch K2_SI")
    a.e("K2_SN:")
    a.e(f"s_add_u32 s{sJ}, s{sJ}, 1")
    a.e(f"s_cmp_lt_u32 s{sJ}, 16")
    a.e("s_cbranch_scc1 K2_SJ")
    a.e("s_waitcnt lgkmcnt(0)")
    a.e("s_barrier")
    a.e("s_branch K2_FIN")

    if T3: cretry()
    for u in stubs:
        a.e(f"K2_ST{u}:")
        a.e("s_waitcnt lgkmcnt(0)")
        a.e(f"s_branch K2_SB{u}")
    a.e("K2_CPOLL2:")
    if cfg.get('k2_cslp', 0): a.e(f"s_sleep {cfg['k2_cslp']}")
    a.e(f"ds_read_b64 {vr(TB,2)}, v{vZERO} offset:{K2_FS}")
    a.e("s_waitcnt lgkmcnt(0)")
    a.e("s_branch K2_CPOLL")
    a.e("K2_RSLOW:")
    for s in range(NS - 1):
        readslot(s)
    a.e("s_branch K2_RDONE")
    a.e("K2_EXTRA:")
    XW, XC = TB, cur(0)
    for s in range(NS, 16):
        if s > NS:
            a.e(f"s_cmp_le_u32 s{sCNT}, {s}")
            a.e("s_cbranch_scc1 K2_NOEXTRA")
        a.e(f"v_mov_b32 v{XW+1}, 0")
        a.e(f"ds_read_b32 v{XW}, v{vA4} offset:{256*s}")
        a.e(f"ds_read_u16_d16_hi v{XW+1}, v{vA2} offset:{128*s}")
        a.e("s_waitcnt lgkmcnt(0)")
        alpha1(XW, XC)
        alpha2(XW, XW + 1, XC)
        beta(XC, 0)
    a.e("s_branch K2_NOEXTRA")

    a.e("K2_FIN:")
    if TRACE:
        a.e("s_waitcnt vmcnt(0)")
        stamp(10)
        a.e(f"s_cmp_lg_u32 s2, {cfg.get('trace_wg', 77)}")
        a.e("s_cbranch_scc1 K2_END")
        a.e(f"s_load_dwordx2 s[{S_X}:{S_X+1}], s[0:1], 96")
        a.e(f"s_mov_b32 s{S_X+2}, 4096")
        a.e(f"s_mov_b32 s{S_X+3}, 0x00020000")
        a.e("s_waitcnt lgkmcnt(0)")
        a.e(f"v_lshlrev_b32 v1, 2, v0")
        a.e(f"buffer_store_dword v{vTR}, v1, s[{S_X}:{S_X+3}], 0 offen")
    if cfg.get('rt'): rt_end(a, 1, S_X)
    a.e("K2_END:")
    a.e("s_endpgm")
    return fix_hazards(a.lines)
```

```python
from asmlib import *
from consts import *
from k1 import dpp_scan, rt_end
import math, struct

NS = 13
DUMMY = (2 * EPB << 19) | 0x7FFFF
IDXM = 0x7FFFF
K2_GI = K2_NB + 8
K2_VI = K2_NB + 12
K2_FS = K2_NB + 32
K2_NCELL = K2_FS + 4
K2_FH = K2_FS + 8
K2_DN = K2_FS + 12
K2_FP = K2_FS + 16
K2_FR = K2_FS + 20
ACC = K2C_ACC
STR2 = 2 * ACC2_STR
def f2h(x): return hex(struct.unpack('<I', struct.pack('<f', x))[0])
def h2f(x): return struct.unpack('<f', struct.pack('<I', x))[0]
KAP = math.sqrt(10.0 * math.log2(math.e))

def gen_k2(cfg):
    a = Asm()
    D = cfg.get('k2_d', 5)
    LATE = 2
    PPRIO = cfg.get('k2_pprio', 3)
    SPLIT = cfg.get('split', True)
    S_WS, S_MD, S_X, S_Y = 4, 8, 12, 16
    sWAVE, sB, sJ, sWIN, sTOT, sN, sCNT, sT0, sT1, sT2, sFFF8, sHI, sCNP, sOOB = range(20, 34)
    sM = 34
    sDN = 36
    sTG = 37
    sR6 = 38
    sMODE = 39
    puid = [0]
    def poll(vt, off, tgt, slp=None):
        puid[0] += 1
        SLP = cfg.get('k2_slp', 0) if slp is None else slp
        if SLP:
            a.e(f"s_branch K2_PM{puid[0]}")
        a.e(f"K2_PL{puid[0]}:")
        if SLP:
            a.e(f"s_sleep {SLP}")
            a.e(f"K2_PM{puid[0]}:")
        a.e(f"ds_read_b32 v{vt}, v{vZERO} offset:{off}")
        a.e("s_waitcnt lgkmcnt(0)")
        a.e(f"v_readfirstlane_b32 s{sT0}, v{vt}")
        a.e(f"s_cmp_lt_u32 s{sT0}, {tgt}")
        a.e(f"s_cbranch_scc1 K2_PL{puid[0]}")
    def signal(vone, off):
        a.e("s_mov_b64 exec, 1")
        a.e(f"ds_add_u32 v{vZERO}, v{vone} offset:{off}")
        a.e("s_mov_b64 exec, -1")
    MSK = 40
    sPT, sPA = 88, 91
    TRACE = cfg.get('trace', False)
    vTR = 127
    def stamp(i):
        if TRACE:
            if i < 0:
                a.e(f"s_mov_b32 s{sPA}, 0")
                a.e(f"v_mov_b32 v{vTR}, 0")
                i = 15
            a.e(f"s_memtime s[{sPT}:{sPT+1}]")
            a.e("s_waitcnt lgkmcnt(0)")
            a.e(f"s_andn2_b32 s{sPT}, s{sPT}, 15")
            a.e(f"s_or_b32 s{sPT}, s{sPT}, {i}")
            a.e(f"s_mov_b32 m0, s{sPA}")
            a.e(f"s_add_u32 s{sPA}, s{sPA}, 1")
            a.e(f"s_min_u32 s{sPA}, s{sPA}, 63")
            a.e(f"v_writelane_b32 v{vTR}, s{sPT}, m0")
    vLANE, vZERO = 1, 2
    T_ = 100

    a.e(f"s_cmp_ge_u32 s2, {NWG}")
    a.e("s_cbranch_scc1 K2_END")
    if cfg.get('rt'): a.e("s_memrealtime s[96:97]")
    stamp(-1)
    a.e(f"s_load_dwordx2 s[{S_WS}:{S_WS+1}], s[0:1], 104")
    a.e(f"s_mov_b32 s{S_WS+2}, {WS_BYTES}")
    a.e(f"s_mov_b32 s{S_WS+3}, 0x00020000")
    a.e(f"v_lshrrev_b32 v{T_}, 6, v0")
    a.e(f"v_and_b32 v{vLANE}, 63, v0")
    a.e(f"v_readfirstlane_b32 s{sWAVE}, v{T_}")
    a.e(f"s_and_b32 s{sB}, s2, 7")
    a.e(f"s_lshl_b32 s{sB}, s{sB}, 5")
    a.e(f"s_lshr_b32 s{sT0}, s2, 3")
    a.e(f"s_or_b32 s{sB}, s{sB}, s{sT0}")
    a.e(f"s_mov_b32 s{sHI}, 0xffff0000")
    a.e(f"s_mov_b32 s{sOOB}, 0x80000000")
    a.e(f"v_mov_b32 v{vZERO}, 0")
    a.e(f"s_cmp_ge_u32 s{sWAVE}, 8")
    a.e("s_cbranch_scc1 K2_CONS")

    vL12, vTB, vCN, vSCR, vFOUR, vL16 = range(3, 9)
    R = 10
    def P(c): return 18 + 4 * c
    U, KA, OLD = 50, 66, 82
    if PPRIO: a.e(f"s_setprio {PPRIO}")
    a.e(f"s_mov_b32 s{sT0}, {cfg.get('tile_s', TILE_B)}")
    a.e(f"v_mul_lo_u32 v{vTB}, v0, s{sT0}")
    RL = 20
    a.e(f"s_lshl_b32 s{sT0}, s{sB}, 4")
    a.e(f"v_mul_u32_u24 v{T_+1}, {REC_STR}, v0")
    a.e(f"v_add_u32 v{T_+1}, s{sT0}, v{T_+1}")
    a.e(f"s_mov_b32 s{sT0}, {REC_OFF}")
    a.e("s_waitcnt lgkmcnt(0)")
    a.e(f"buffer_load_dwordx4 {vr(RL,4)}, v{T_+1}, s[{S_WS}:{S_WS+3}], s{sT0} offen")
    a.e(f"buffer_load_dwordx4 {vr(RL+4,4)}, v{T_+1}, s[{S_WS}:{S_WS+3}], s{sT0} offen offset:16")
    a.e("s_barrier")
    a.e(f"v_mul_u32_u24 v{vL12}, 12, v{vLANE}")
    a.e(f"v_lshlrev_b32 v{vL16}, 4, v{vLANE}")
    a.e(f"v_mov_b32 v{vFOUR}, 4")
    a.e(f"v_min_u32 v{vCN}, 1, v{vLANE}")
    a.e(f"v_lshlrev_b32 v{vSCR}, 3, v0")
    a.e(f"v_add_u32 v{vSCR}, {K2_SCR}, v{vSCR}")
    a.e(f"v_mov_b32 v{T_+2}, 0")
    a.e(f"v_mov_b32 v{T_+3}, 0")
    a.e(f"ds_write_b64 v{vSCR}, {vr(T_+2,2)}")
    a.e(f"s_mov_b32 s{sTG}, 0")
    a.e(f"s_mov_b32 s{sDN}, 0")
    PZL = cfg.get('t5') and cfg.get('k2_pzl', 1)
    if PZL:
        a.e(f"s_lshl_b32 s{sMODE}, s{sB}, 15")
        a.e(f"s_add_u32 s{sMODE}, s{sMODE}, {XB_OFF}")
        for q in range(4): a.e(f"v_mov_b32 v{88+q}, -1")
        a.e(f"v_lshlrev_b32 v92, 4, v0")
    else: a.e(f"s_mov_b32 s{sMODE}, 0")
    def pzone(lab):
        a.e(f"s_and_b32 s{sT0}, s{sMODE}, 0x6000")
        a.e(f"s_cmp_eq_u32 s{sT0}, 0x6000")
        a.e(f"s_cbranch_scc1 {lab}")
        a.e(f"buffer_store_dwordx4 v[88:91], v92, s[{S_WS}:{S_WS+3}], s{sMODE} offen sc1{cfg.get('k2_pst', '')}")
        a.e(f"s_add_u32 s{sMODE}, s{sMODE}, 8192")
    for k in range(4):
        a.e(f"v_mov_b32 v{OLD+k}, 0")
    a.e(f"s_mov_b32 s{sJ}, 8")
    a.e(f"s_mov_b32 s{sWIN}, 0")
    a.e(f"s_mov_b32 s{sT0}, 0x05040100")
    a.e(f"s_mov_b32 s{sT1}, 0x07060302")
    a.e("s_waitcnt vmcnt(0) lgkmcnt(0)")
    for k in range(8):
        a.e(f"v_perm_b32 v{R+k}, v{RL+4+(k>>1)}, v{RL+(k>>1)}, s{sT1 if k & 1 else sT0}")
    if SPLIT:
        a.e(f"s_cmp_lt_u32 s{sB}, 128")
        a.e("s_cbranch_scc1 K2_NOSWAP")
        a.e(f"v_swap_b32 v{R+6}, v{R+7}")
        a.e("K2_NOSWAP:")
    stamp(0)

    def rotate():
        for k in range(7):
            a.e(f"v_mov_b32 v{R+k}, v{R+k+1}")
        a.e(f"v_mov_b32 v{R+7}, 0")
        a.e(f"s_sub_u32 s{sJ}, s{sJ}, 1")

    a.e("K2_PLOOP:")
    s_, e_, p0, n_, inc, S_, V_, x_, sl, y_, el = range(T_, T_ + 11)
    a.e(f"v_and_b32 v{s_}, 0xffff, v{R}")
    a.e(f"v_lshrrev_b32 v{e_}, 16, v{R}")
    a.e(f"v_lshrrev_b32 v{p0}, 1, v{s_}")
    a.e(f"v_add_u32 v{n_}, 1, v{e_}")
    a.e(f"v_cmp_gt_u32 s[{sM}:{sM+1}], v{e_}, v{s_}")
    a.e(f"v_lshrrev_b32 v{n_}, 1, v{n_}")
    a.e(f"v_sub_u32 v{n_}, v{n_}, v{p0}")
    a.e(f"v_cndmask_b32 v{n_}, 0, v{n_}, s[{sM}:{sM+1}]")
    a.e(f"v_mov_b32 v{inc}, v{n_}")
    dpp_scan(a, inc)
    a.e(f"v_readlane_b32 s{sTOT}, v{inc}, 63")
    a.e(f"s_cmp_lt_u32 s{sWIN}, s{sTOT}")
    a.e(f"s_cbranch_scc1 K2_FGO")
    a.e(f"s_cmp_eq_u32 s{sJ}, 0")
    a.e(f"s_cbranch_scc1 K2_FGO")
    rotate()
    a.e(f"s_mov_b32 s{sWIN}, 0")
    a.e(f"s_branch K2_PLOOP")
    a.e(f"K2_FGO:")
    a.e(f"v_subrev_u32 v{inc}, s{sWIN}, v{inc}")
    a.e(f"v_sub_u32 v{S_}, v{inc}, v{n_}")
    a.e(f"v_add_u32 v{el}, -1, v{inc}")
    if cfg.get('x_al'):
        a.e(f"v_mul_u32_u24 v{V_}, 3, v{p0}")
        a.e(f"v_and_b32 v{V_}, 0xffe0, v{V_}")
        a.e(f"v_add_u32 v{V_}, 2, v{V_}")
        a.e(f"v_mul_u32_u24 v{V_}, 21846, v{V_}")
        a.e(f"v_lshrrev_b32 v{V_}, 16, v{V_}")
        a.e(f"v_sub_u32 v{V_}, v{V_}, v{S_}")
    else:
        a.e(f"v_sub_u32 v{V_}, v{p0}, v{S_}")
    a.e(f"v_mad_i32_i24 v{V_}, v{V_}, 12, v{vTB}")
    a.e(f"v_cmp_le_i32 vcc, 0, v{S_}")
    a.e(f"v_and_b32 v{x_}, 1, v{s_}")
    a.e(f"s_and_b64 vcc, vcc, s[{sM}:{sM+1}]")
    a.e(f"v_max_i32 v{sl}, 0, v{S_}")
    a.e(f"v_cndmask_b32 v{x_}, 0, v{x_}, vcc")
    a.e(f"v_lshl_or_b32 v{x_}, v{x_}, 6, v{vCN}")
    a.e(f"v_and_b32 v{y_}, 1, v{e_}")
    a.e(f"v_lshlrev_b32 v{y_}, 7, v{y_}")
    def marker(val, slot, tmp):
        a.e(f"v_lshrrev_b32 v{tmp}, 3, v{slot}")
        a.e(f"v_and_b32 v{tmp}, 0x18, v{tmp}")
        a.e(f"v_lshlrev_b32 v{val}, v{tmp}, v{val}")
        a.e(f"v_lshrrev_b32 v{tmp}, 8, v{slot}")
        a.e(f"v_cmp_gt_u32 vcc, 512, v{slot}")
        a.e(f"v_and_b32 v{slot}, 63, v{slot}")
        a.e(f"v_sub_u32 v{slot}, v{slot}, v{vLANE}")
        a.e(f"v_lshl_add_u32 v{slot}, v{slot}, 1, v{tmp}")
        a.e(f"v_lshl_add_u32 v{slot}, v{slot}, 2, v{vSCR}")
    marker(x_, sl, s_)
    a.e(f"s_mov_b64 exec, vcc")
    a.e(f"ds_add_u32 v{sl}, v{x_}")
    a.e(f"s_mov_b64 exec, -1")
    marker(y_, el, s_)
    a.e(f"s_and_b64 exec, vcc, s[{sM}:{sM+1}]")
    a.e(f"ds_add_u32 v{el}, v{y_}")
    a.e(f"s_mov_b64 exec, -1")
    RAW, RW2, CN = T_ + 12, T_ + 14, T_ + 16
    AD = T_ + 18
    a.e(f"ds_read_b64 {vr(RAW,2)}, v{vSCR}")
    a.e(f"v_mov_b32 v{RW2}, 0")
    a.e(f"v_mov_b32 v{RW2+1}, 0")
    a.e(f"ds_write_b64 v{vSCR}, {vr(RW2,2)}")
    a.e(f"s_sub_u32 s{sT2}, s{sTOT}, s{sWIN}")
    a.e("s_waitcnt lgkmcnt(1)")
    for h in range(2):
        a.e(f"v_and_b32 v{CN+h}, 0x3f3f3f3f, v{RAW+h}")
    for h in range(2):
        a.e(f"v_lshlrev_b32 v{RW2+h}, 1, v{RAW+h}")
    mk = []
    for c in range(8):
        mk.append(f"v_cmp_le_i32_sdwa s[{MSK+4*c}:{MSK+4*c+1}], 0, sext(v{RW2+(c>>2)}) src0_sel:DWORD src1_sel:BYTE_{c&3}")
        mk.append(f"v_cmp_le_i32_sdwa s[{MSK+4*c+2}:{MSK+4*c+3}], 0, sext(v{RAW+(c>>2)}) src0_sel:DWORD src1_sel:BYTE_{c&3}")
    dp = [f"row_shr:{sh} row_mask:0xf bank_mask:0xf bound_ctrl:0" for sh in (1, 2, 4, 8)] + \
         ["row_bcast:15 row_mask:0xa bank_mask:0xf", "row_bcast:31 row_mask:0xc bank_mask:0xf"]
    for d_ in dp:
        for h in range(2):
            a.e(f"v_add_u32_dpp v{CN+h}, v{CN+h}, v{CN+h} {d_}")
        a.e(mk.pop(0))
    a.e(f"v_readlane_b32 s{sT0}, v{CN}, 63")
    a.e(f"v_readlane_b32 s{sT1}, v{CN+1}, 63")
    a.e(mk.pop(0)); a.e(mk.pop(0))
    a.e(f"s_mul_i32 s{sM}, s{sT0}, 0x01010101")
    a.e(f"s_lshl_b32 s{sT0}, s{sM}, 8")
    a.e(f"s_lshr_b32 s{sM}, s{sM}, 24")
    a.e(f"s_lshl_b32 s{sT1}, s{sT1}, 8")
    a.e(f"s_add_u32 s{sT1}, s{sT1}, s{sM}")
    a.e(f"s_mul_i32 s{sT1}, s{sT1}, 0x01010101")
    a.e(f"v_add_u32 v{CN}, s{sT0}, v{CN}")
    a.e(f"v_add_u32 v{CN+1}, s{sT1}, v{CN+1}")
    for c in range(8):
        a.e(f"v_lshlrev_b32_sdwa v{AD+c}, 2, v{CN+(c>>2)} dst_sel:DWORD dst_unused:UNUSED_PAD src0_sel:DWORD src1_sel:BYTE_{c&3}")
        a.e(f"ds_bpermute_b32 v{AD+c}, v{AD+c}, v{V_}")
    for m_ in mk: a.e(m_)
    a.e(f"v_mov_b32 v{s_}, s{sOOB}")
    a.e(f"v_add_u32 v{e_}, {768*4}, v{vL12}")
    for c in range(8):
        a.e(f"v_cmp_gt_i32 vcc, s{sT2}, v{vLANE}")
        a.e(f"s_sub_u32 s{sT2}, s{sT2}, 64")
        a.e(f"s_and_b64 s[{MSK+4*c}:{MSK+4*c+1}], s[{MSK+4*c}:{MSK+4*c+1}], vcc")
        a.e(f"s_and_b64 s[{MSK+4*c+2}:{MSK+4*c+3}], s[{MSK+4*c+2}:{MSK+4*c+3}], vcc")
        a.e(f"s_waitcnt lgkmcnt({7-c})")
        a.e(f"v_add_u32 v{AD+c}, v{AD+c}, v{vL12 if c < 4 else e_}")
        a.e(f"v_cndmask_b32 v{AD+c}, v{s_}, v{AD+c}, vcc")
        a.e(f"buffer_load_dwordx3 {vr(P(c),3)}, v{AD+c}, s[{S_WS}:{S_WS+3}], 0 offen offset:{768*(c&3)}{cfg.get('k2_tld', '')}")
    a.e(f"s_add_u32 s{sWIN}, s{sWIN}, 512")
    a.e(f"s_cmp_lt_u32 s{sWIN}, s{sTOT}")
    a.e(f"s_cbranch_scc1 K2_FDONE")
    a.e(f"s_mov_b32 s{sWIN}, 0")
    a.e(f"s_cmp_eq_u32 s{sJ}, 0")
    a.e(f"s_cbranch_scc1 K2_FDONE")
    rotate()
    a.e(f"K2_FDONE:")
    stamp(1)
    if 'k2_sprio' in cfg and cfg.get('k2_sprio_at', 0) == 2: a.e(f"s_setprio {cfg['k2_sprio']}")
    vPL = cfg.get('vpl', 86)
    poll(vPL, K2_FP, f"s{sTG}")
    a.e(f"s_add_u32 s{sTG}, s{sTG}, 32")
    a.e(f"s_cmp_lt_u32 s{sDN}, 0xff00")
    a.e(f"s_cselect_b32 s{sR6}, s{sTG}, s{sR6}")
    a.e(f"s_cmp_le_u32 s{sJ}, {1 if SPLIT else 0}")
    a.e(f"s_cselect_b32 s{sT0}, 0x100, 0")
    a.e(f"s_cmp_eq_u32 s{sJ}, 0")
    a.e(f"s_addc_u32 s{sT0}, s{sT0}, 0")
    a.e(f"s_lshl_b32 s{sT0}, s{sT0}, s{sWAVE}")
    a.e(f"v_mov_b32 v{vPL}, s{sT0}")
    for c in range(8):
        a.e(f"s_waitcnt vmcnt({7-c})")
        for h in range(2):
            i = 2 * c + h
            a.e(f"v_lshlrev_b32_sdwa v{KA+i}, 2, v{P(c)+2*h} dst_sel:DWORD dst_unused:UNUSED_PAD src0_sel:DWORD src1_sel:BYTE_1")
        for h in range(2):
            i = 2 * c + h
            a.e(f"s_mov_b64 exec, s[{MSK+2*i}:{MSK+2*i+1}]")
            a.e(f"ds_add_rtn_u32 v{U+i}, v{KA+i}, v{vFOUR}")
        if c < 7: a.e("s_mov_b64 exec, -1")
    a.e("s_mov_b64 exec, 1")
    a.e(f"ds_or_b32 v{vZERO}, v{vPL} offset:{K2_DN}")
    a.e(f"ds_add_u32 v{vZERO}, v{vFOUR} offset:{K2_FH}")
    a.e("s_mov_b64 exec, -1")
    stamp(2)
    if PZL:
        if PZL > 1:
            a.e(f"s_cmp_lt_u32 s{sTG}, {32*PZL}")
            a.e(f"s_cbranch_scc1 K2_PLH")
        pzone("K2_PLH")
    a.e(f"K2_PLH:")
    a.e(f"ds_read_b64 {vr(vPL,2)}, v{vZERO} offset:{K2_FH}")
    a.e("s_waitcnt lgkmcnt(0)")
    a.e(f"v_readfirstlane_b32 s{sT0}, v{vPL}")
    a.e(f"s_cmp_lt_u32 s{sT0}, s{sTG}")
    a.e(f"s_cbranch_scc1 K2_PLH")
    stamp(3)
    if 'k2_sprio' in cfg and cfg.get('k2_sprio_at', 0) == 0: a.e(f"s_setprio {cfg['k2_sprio']}")
    NW, CC, TT, BS = T_, T_ + 4, T_ + 8, T_ + 12
    a.e(f"ds_read_b128 {vr(NW,4)}, v{vL16}")
    signal(vFOUR, K2_FP)
    a.e(f"v_readfirstlane_b32 s{sDN}, v{vPL+1}")
    a.e("s_waitcnt lgkmcnt(1)")
    for k in range(4):
        a.e(f"v_sub_u32 v{CC+k}, v{NW+k}, v{OLD+k}")
    a.e(f"v_add_u32 v{TT}, v{CC}, v{CC+1}")
    a.e(f"v_add3_u32 v{TT}, v{TT}, v{CC+2}, v{CC+3}")
    a.e(f"v_sub_u32 v{TT+1}, {K2_SW}, v{TT}")
    dpp_scan(a, TT)
    a.e(f"v_add_u32 v{TT+1}, v{TT+1}, v{TT}")
    a.e(f"v_readlane_b32 s{sN}, v{TT}, 63")
    for k in range(4):
        a.e(f"v_sub_u32 v{BS+k}, v{TT+1}, v{OLD+k}")
        if k < 3:
            a.e(f"v_add_u32 v{TT+1}, v{TT+1}, v{CC+k}")
        a.e(f"v_mov_b32 v{OLD+k}, v{NW+k}")
    a.e(f"ds_write_b128 v{vL16}, {vr(BS,4)} offset:{K2_BASE}")
    for i in range(16):
        a.e(f"ds_read_b32 v{KA+i}, v{KA+i} offset:{K2_BASE}")
    a.e(f"s_sub_u32 s{sT1}, s{sTG}, 32")
    stamp(4)
    poll(vPL, K2_FR, f"s{sT1}")
    stamp(5)
    if 'k2_sprio' in cfg and cfg.get('k2_sprio_at', 0) == 1: a.e(f"s_setprio {cfg['k2_sprio']}")
    a.e(f"s_cmp_lg_u32 s{sWAVE}, 0")
    a.e(f"s_cbranch_scc1 K2_NOPAD")
    a.e(f"s_add_u32 s{sT0}, s{sN}, {K2_SW}")
    a.e(f"v_lshl_add_u32 v{TT}, v{vLANE}, 2, s{sT0}")
    a.e(f"v_mov_b32 v{TT+1}, {hex(DUMMY)}")
    a.e(f"ds_write_b32 v{TT}, v{TT+1}")
    a.e(f"v_lshrrev_b32 v{TT}, 1, v{TT}")
    a.e(f"v_cmp_gt_u32 vcc, {K2_SW//2 + 16384}, v{TT}")
    a.e(f"s_cmp_eq_u32 s{sDN}, 0xffff")
    a.e(f"s_addc_u32 s{sT0}, s{sN}, 0")
    a.e(f"v_mov_b32 v{TT+3}, s{sT0}")
    a.e(f"ds_write_b32 v{vZERO}, v{TT+3} offset:{K2_NCELL}")
    a.e(f"s_mov_b64 exec, vcc")
    if not cfg.get('x_nopad'): a.e(f"ds_write_b16 v{TT}, v{vZERO} offset:{K2_SA - K2_SW//2}")
    a.e(f"s_mov_b64 exec, -1")
    a.e("K2_NOPAD:")
    for i in range(16):
        a.e(f"v_add_u32 v{U+i}, v{U+i}, v{KA+i}")
        a.e(f"v_lshrrev_b32 v{KA+i}, 1, v{U+i}")
    for i in range(16):
        c, h = i >> 1, i & 1
        a.e(f"s_mov_b64 exec, s[{MSK+2*i}:{MSK+2*i+1}]")
        a.e(f"ds_write_b32 v{U+i}, v{P(c)+2*h}")
        a.e(f"ds_write_b16{'_d16_hi' if h else ''} v{KA+i}, v{P(c)+1} offset:{K2_SA - K2_SW//2}")
    signal(vFOUR, K2_FS)
    stamp(4)
    if 'k2_sprio' in cfg: a.e(f"s_setprio {PPRIO}")
    a.e(f"s_cmp_lg_u32 s{sDN}, 0xffff")
    a.e("s_cbranch_scc1 K2_PLOOP")

    def tail_old():
        a.e("K2_PTAIL:")
        a.e(f"s_setprio {cfg.get('k2_tprio', 2)}")
        S_W1, S_W2, S_C, S_D, S_MM = 40, 44, 48, 56, 60
        sGI, sEP, sEO, sLP, sLO, sK6 = 64, 66, 67, 68, 69, 70
        S_WA = 72
        S_WR = 92 if TRACE else 88
        sBI, sTOP = sJ, sWIN
        DI, WOP, AA, MM, GG = 10, 24, 32, 88, 8
        DB0, XX, RB, vOF, vCK = 104, 120, 28, 3, 126
        a.e(f"s_load_dwordx2 s[{S_D}:{S_D+1}], s[0:1], 24")
        a.e(f"s_load_dwordx2 s[{S_W2}:{S_W2+1}], s[0:1], 56")
        a.e(f"s_load_dwordx2 s[{S_W1}:{S_W1+1}], s[0:1], 64")
        a.e(f"s_load_dwordx2 s[{S_MM}:{S_MM+1}], s[0:1], 0")
        a.e(f"s_load_dwordx2 s[{S_X}:{S_X+1}], s[0:1], 80")
        a.e(f"s_load_dwordx2 s[{S_Y}:{S_Y+1}], s[0:1], 88")
        for sr_, n in ((S_D, E * 2), (S_W1, 128), (S_W2, 64), (S_MM, E * 8), (S_Y, E * 8)):
            a.e(f"s_mov_b32 s{sr_+2}, {n}")
            a.e(f"s_mov_b32 s{sr_+3}, 0x00020000")
        a.e(f"s_lshr_b32 s{sT0}, s{sB}, 7")
        a.e(f"s_and_b32 s{sT1}, s{sB}, 127")
        a.e(f"s_mul_i32 s{sLP}, s{sT0}, {EPB}")
        a.e(f"s_sub_u32 s{sLO}, {EPB}, s{sLP}")
        a.e(f"s_mul_i32 s{sT1}, s{sT1}, {2*EPB}")
        a.e(f"s_add_u32 s{sEP}, s{sT1}, s{sLP}")
        a.e(f"s_add_u32 s{sEO}, s{sT1}, s{sLO}")
        a.e(f"s_mov_b32 s{sBI}, 0x40004000")
        a.e(f"s_mov_b32 s{sTOP}, 0x80008000")
        for k in range(14):
            a.e(f"v_mov_b32 v{DI+k}, 0")
        for q in range(8):
            a.e(f"v_mov_b32 v{WOP+q}, 0")
        a.e(f"v_add_lshl_u32 v{XX+2}, v0, s{sEP}, 1")
        a.e(f"v_add_lshl_u32 v{XX+4}, v0, s{sEO}, 1")
        a.e(f"v_add_u32 v{XX+3}, 4096, v{XX+2}")
        a.e(f"v_add_u32 v{XX+5}, 4096, v{XX+4}")
        a.e(f"v_and_b32 v{DB0+1}, 3, v{vLANE}")
        a.e(f"v_lshlrev_b32 v{DB0+1}, 1, v{DB0+1}")
        a.e(f"v_and_or_b32 v{DB0}, v{vLANE}, 8, v{DB0+1}")
        a.e(f"v_lshlrev_b32 v{vOF+2}, 3, v0")
        a.e(f"v_mov_b32 v{DB0+2}, s{sOOB}")
        a.e(f"v_cmp_gt_u32 s[{sK6}:{sK6+1}], {EPB - 3072}, v0")
        a.e(f"v_lshlrev_b32 v{vOF}, 2, v{XX+4}")
        a.e(f"v_add_u32 v{vOF+1}, {6*4096}, v{vOF}")
        a.e(f"v_cndmask_b32 v{vOF+1}, v{DB0+2}, v{vOF+1}, s[{sK6}:{sK6+1}]")
        a.e(f"v_cndmask_b32 v{vOF+3}, v{DB0+2}, v{vOF+2}, s[{sK6}:{sK6+1}]")
        poll(XX, K2_GI, "1", 0)
        a.e(f"s_mov_b32 s{sGI}, s{sT0}")
        a.e(f"s_mov_b32 s{sGI+1}, s{sT0}")
        a.e(f"s_load_dwordx8 s[{S_WR}:{S_WR+7}], s[{S_X}:{S_X+1}], 0")
        a.vm = []
        for k in range(7):
            a.vmem(f"buffer_load_short_d16_hi v{DI+k}, v{XX+2+(k>>2)}, s[{S_D}:{S_D+3}], 0 offen offset:{(k&3)*1024}", ('D', k))
        a.e(f"s_mov_b32 exec_lo, 0x00000f0f")
        a.e(f"s_mov_b32 exec_hi, 0x0000f0f0")
        for r in range(8):
            a.vmem(f"buffer_load_short_d16{'_hi' if r & 1 else ''} v{WOP+(r>>1)+4*(r&1)}, v{DB0}, s[{S_W1}:{S_W1+3}], 0 offen offset:{16*r}", 'W')
        a.e(f"s_mov_b32 exec_lo, 0x000f0000")
        a.e(f"s_mov_b32 exec_hi, 0x00f00000")
        for r in range(8):
            a.vmem(f"buffer_load_short_d16{'_hi' if r & 1 else ''} v{WOP+(r>>1)+4*(r&1)}, v{DB0+1}, s[{S_W2}:{S_W2+3}], 0 offen offset:{8*r}", 'W')
        a.e(f"s_mov_b64 exec, -1")
        for k in range(7):
            a.vmem(f"buffer_load_short_d16_hi v{DI+7+k}, v{XX+4+(k>>2)}, s[{S_D}:{S_D+3}], 0 offen offset:{(k&3)*1024}", ('D', 7 + k))
        for k in range(7):
            a.e(f"s_mov_b32 s{sT0}, {4096*k if k < 6 else 0}")
            a.vmem(f"buffer_load_dwordx2 {vr(MM+2*k,2)}, v{vOF + (k == 6)}, s[{S_MM}:{S_MM+3}], s{sT0} offen", 'M')
        for r in range(8):
            a.e(f"s_mov_b32 s{S_C+r}, {f2h(-KAP * h2f(CENTERS[r]))}")
        a.e(f"s_add_u32 s{sR6}, s{sR6}, 64")
        a.wvm('W')
        for q in range(4):
            a.e(f"v_or_b32 v{WOP+q}, v{WOP+q}, v{WOP+4+q}")
        def rbf(dv, X):
            a.e(f"v_mul_f32 v{102}, {f2h(KAP)}, v{dv}")
            for q in range(4):
                a.e(f"v_pk_add_f32 {vr(X+2*q,2)}, {vr(102,2)}, s[{S_C+2*q}:{S_C+2*q+1}] op_sel_hi:[0,1]")
            for q in range(4):
                a.e(f"v_pk_mul_f32 {vr(X+2*q,2)}, {vr(X+2*q,2)}, {vr(X+2*q,2)}")
            for r in range(8):
                a.e(f"v_exp_f32 v{X+r}, -v{X+r}")
        def acomp(base, own, hook=None):
            rbf(base, AA)
            for k in range(7):
                X = AA + 8 * k
                for q in range(4):
                    a.e(f"v_cvt_pk_bf16_f32 v{RB+q}, v{X+2*q}, v{X+2*q+1}")
                if not cfg.get('x_nomfma'): a.e(f"v_mfma_f32_32x32x16_bf16 {vr(DB0,16)}, {vr(WOP,4)}, {vr(RB,4)}, 0")
                if k < 6: rbf(base + k + 1, X + 8)
                for d in range(4):
                    a.e(f"v_pk_mul_f32 {vr(X+2*d,2)}, {vr(DB0+2*d,2)}, s[{sGI}:{sGI+1}]")
                if own:
                    for q in range(2):
                        a.e(f"v_cvt_pk_bf16_f32 v{GG+2*k+q}, v{DB0+8+2*q}, v{DB0+9+2*q}")
                if hook: hook(k)
        a.e(f"s_cmp_lg_u32 s{sMODE}, 0")
        a.e("s_cbranch_scc1 K2_TOWN")
        acomp(DI, False)
        stamp(11)
        a.e(f"v_and_b32 v{XX+1}, 7, v{vLANE}")
        a.e(f"v_lshlrev_b32 v{XX+1}, 2, v{XX+1}")
        a.e(f"v_add_lshl_u32 v{XX+2}, v0, s{sLP}, 3")
        a.e(f"v_add_u32 v{XX+3}, {STR2}, v{XX+2}")
        a.e(f"s_mul_i32 s{sT2}, s{sB}, {XB_STR}")
        a.e(f"s_add_u32 s{sT2}, s{sT2}, {XB_OFF}")
        a.wvm0()
        a.e("s_branch K2_FD1")
        a.e("K2_FD0:")
        a.e(f"s_sleep {cfg.get('k2_fdslp', 2)}")
        a.e("K2_FD1:")
        a.e(f"ds_read_b32 v{XX}, v{XX+1} offset:{K2C_FD}")
        a.e("s_waitcnt lgkmcnt(0)")
        a.e(f"v_cmp_gt_u32 vcc, s{sR6}, v{XX}")
        a.e("s_cbranch_vccnz K2_FD0")
        a.e("s_setprio 3")
        stamp(12)
        a.lg = []
        a.lds(f"ds_read_b32 v{vCK}, v{vZERO} offset:{K2_VI}", 'V')
        def sread(k, dst):
            for q in range(2):
                a.lds(f"ds_read_b64 {vr(dst+2*q,2)}, v{XX+2+q} offset:{ACC + 4096*k}", ('S', k))
        def agg(k, S, tmp, init):
            X = AA + 8 * k
            if k == 6: a.e(f"s_mov_b64 exec, s[{sK6}:{sK6+1}]")
            a.e(f"v_or3_b32 v{vCK}, v{vCK}, v{S}, v{S+1}")
            a.e(f"v_or3_b32 v{vCK}, v{vCK}, v{S+2}, v{S+3}")
            if k == 6: a.e(f"s_mov_b64 exec, -1")
            for q in range(4):
                a.e(f"v_pk_sub_i16 v{S+q}, v{S+q}, s{sBI}")
            for d in range(4):
                a.e(f"v_cvt_f32_i32_sdwa v{tmp+d}, sext(v{S+(d>>1)}) dst_sel:DWORD dst_unused:UNUSED_PAD src0_sel:WORD_{d&1}")
            for q in range(2):
                if init:
                    a.e(f"v_pk_fma_f32 {vr(RB+2*q,2)}, {vr(X+2*q,2)}, {vr(tmp+2*q,2)}, {vr(RB+2*q,2)}")
                else:
                    a.e(f"v_pk_mul_f32 {vr(RB+2*q,2)}, {vr(X+2*q,2)}, {vr(tmp+2*q,2)}")
            for d in range(4):
                a.e(f"v_cvt_f32_i32_sdwa v{X+d}, sext(v{S+2+(d>>1)}) dst_sel:DWORD dst_unused:UNUSED_PAD src0_sel:WORD_{d&1}")
            for q in range(2):
                a.e(f"v_pk_fma_f32 {vr(RB+2*q,2)}, {vr(X+4+2*q,2)}, {vr(X+2*q,2)}, {vr(RB+2*q,2)}")
        for k in range(3): sread(k, DB0 + 4 * k)
        for k in range(7):
            if k + 3 < 7: sread(k + 3, DB0 + 4 * ((k + 3) % 4))
            a.wlg(('S', k))
            agg(k, DB0 + 4 * (k % 4), 8, False)
            a.e(f"v_cvt_pk_bf16_f32 v{AA+8*k}, v{RB}, v{RB+1}")
            a.e(f"v_cvt_pk_bf16_f32 v{AA+8*k+1}, v{RB+2}, v{RB+3}")
            a.vmem(f"buffer_store_dwordx2 {vr(AA+8*k,2)}, v{vOF+2+(k == 6)}, s[{S_WS}:{S_WS+3}], s{sT2} offen sc1", 'X')
            a.e(f"s_add_u32 s{sT2}, s{sT2}, 4096")
        a.e(f"s_setprio {cfg.get('k2_tprio', 2)}")
        a.e(f"v_and_b32 v{vCK}, s{sTOP}, v{vCK}")
        a.e(f"v_cmp_ne_u32 vcc, 0, v{vCK}")
        a.e(f"s_cmp_lg_u64 vcc, 0")
        a.e(f"s_cselect_b32 s{sT0}, 0x8004, 4")
        a.e(f"v_mov_b32 v{vFOUR}, s{sT0}")
        stamp(13)
        a.e(f"s_lshl_b32 s{sT1}, s{sWAVE}, 4")
        a.e(f"s_add_u32 s{sT1}, s{sT1}, {FL_OFF}")
        a.e(f"s_lshl_b32 s{sT2}, s{sB}, 7")
        a.e(f"s_add_u32 s{sEP}, s{sT1}, s{sT2}")
        a.e(f"s_xor_b32 s{sT2}, s{sT2}, {128 << 7}")
        a.e(f"s_add_u32 s{sLP}, s{sT1}, s{sT2}")
        a.e("K2_TOWN:")
        FLK = cfg.get('k2_flk', 1)
        def flag(k):
            if k == FLK:
                a.wvm0()
                a.e(f"s_cmp_lg_u32 s{sMODE}, 0")
                a.e("s_cbranch_scc1 K2_NOFLAG")
                a.e("s_mov_b64 exec, 1")
                a.e(f"buffer_store_dword v{vFOUR}, v{vZERO}, s[{S_WS}:{S_WS+3}], s{sEP} offen sc1")
                a.e("s_mov_b64 exec, -1")
                a.e("K2_NOFLAG:")
        DO2 = 120
        a.e("s_waitcnt vmcnt(7)")
        for k in range(7):
            a.e(f"v_mov_b32 v{DO2+k}, v{DI+7+k}")
        if FLK < 0: flag(FLK)
        acomp(DO2, True, flag)
        a.e("s_waitcnt lgkmcnt(0)")
        for d in range(4):
            for h in range(2):
                src = S_WR + 2 * d + h
                a.e(f"s_lshl_b32 s{S_WA+4*d+2*h}, s{src}, 16")
                a.e(f"s_and_b32 s{S_WA+4*d+2*h+1}, s{src}, s{sHI}")
        a.e(f"s_cmp_lg_u32 s{sMODE}, 0")
        a.e("s_cbranch_scc1 K2_SFIN")
        stamp(14)
        a.e(f"s_mov_b32 s{sT0}, {1 << 14}")
        a.e(f"s_xor_b32 s{sT2}, s{sB}, 128")
        a.e(f"s_mul_i32 s{sT2}, s{sT2}, {XB_STR}")
        a.e(f"s_add_u32 s{sT2}, s{sT2}, {XB_OFF}")
        a.e("s_branch K2_FL1")
        a.e("K2_FL0:")
        a.e(f"s_sleep {cfg.get('k2_flslp', 4)}")
        a.e(f"v_mov_b32 v{vCK}, 0x8000")
        a.e(f"s_sub_u32 s{sT0}, s{sT0}, 1")
        a.e("s_cbranch_scc1 K2_FL2")
        a.e("K2_FL1:")
        a.e(f"buffer_load_dword v{vCK}, v{vZERO}, s[{S_WS}:{S_WS+3}], s{sLP} offen sc1")
        a.e("s_waitcnt vmcnt(0)")
        a.e(f"v_cmp_eq_u32 vcc, 0, v{vCK}")
        a.e("s_cbranch_vccnz K2_FL0")
        a.e("K2_FL2:")
        a.e("s_setprio 3")
        PP = [22, 24, 26, 102, 116, 118, 124]
        for k in range(7):
            a.e(f"buffer_load_dwordx2 {vr(PP[k],2)}, v{vOF+2+(k == 6)}, s[{S_WS}:{S_WS+3}], s{sT2} offen sc1")
            a.e(f"s_add_u32 s{sT2}, s{sT2}, 4096")
        a.e(f"v_add_lshl_u32 v{XX+2}, v0, s{sLO}, 3")
        a.e(f"v_add_u32 v{XX+3}, {STR2}, v{XX+2}")
        stamp(6)
        a.e("s_barrier")
        stamp(7)
        def unpack(dst, src):
            a.e(f"v_lshlrev_b32 v{dst}, 16, v{src}")
            a.e(f"v_and_b32 v{dst+1}, s{sHI}, v{src}")
            a.e(f"v_lshlrev_b32 v{dst+2}, 16, v{src+1}")
            a.e(f"v_and_b32 v{dst+3}, s{sHI}, v{src+1}")
        def finish(k):
            X = AA + 8 * k
            a.e(f"v_mov_b32 v{DB0+8}, v{RB+1}")
            a.e(f"v_mov_b32 v{DB0+10}, v{RB+3}")
            unpack(X + 4, GG + 2 * k)
            for d in range(4):
                src = RB + d if d % 2 == 0 else DB0 + 7 + d
                for q in range(2):
                    w = f"s[{S_WA+4*d+2*q}:{S_WA+4*d+2*q+1}]"
                    if d == 0:
                        a.e(f"v_pk_mul_f32 {vr(X+2*q,2)}, {vr(RB,2)}, {w} op_sel_hi:[0,1]")
                    else:
                        a.e(f"v_pk_fma_f32 {vr(X+2*q,2)}, {vr(src,2)}, {w}, {vr(X+2*q,2)} op_sel_hi:[0,1,1]")
            unpack(RB, MM + 2 * k)
            for q in range(2):
                a.e(f"v_pk_fma_f32 {vr(X+2*q,2)}, {vr(X+2*q,2)}, {vr(X+4+2*q,2)}, {vr(RB+2*q,2)}")
            a.e(f"v_cvt_pk_bf16_f32 v{MM+2*k}, v{X}, v{X+1}")
            a.e(f"v_cvt_pk_bf16_f32 v{MM+2*k+1}, v{X+2}, v{X+3}")
            a.e(f"s_mov_b32 s{sT0}, {4096*k if k < 6 else 0}")
            a.e(f"buffer_store_dwordx2 {vr(MM+2*k,2)}, v{vOF + (k == 6)}, s[{S_Y}:{S_Y+3}], s{sT0} offen")
        a.lg = []
        sread(0, DB0)
        for k in range(7):
            if k + 1 < 7: sread(k + 1, DB0 + 4 * ((k + 1) & 1))
            if k == 0: a.wvm0()
            unpack(RB, PP[k])
            a.wlg(('S', k))
            agg(k, DB0 + 4 * (k & 1), DB0 + 8, True)
            finish(k)
        a.e(f"v_and_b32 v{vCK}, s{sTOP}, v{vCK}")
        a.e(f"v_cmp_ne_u32 vcc, 0, v{vCK}")
        a.e(f"s_and_b64 exec, exec, vcc")
        a.e(f"ds_or_b32 v{vZERO}, v{vCK} offset:{K2_VI}")
        a.e(f"s_mov_b64 exec, -1")
        a.e("s_waitcnt lgkmcnt(0)")
        a.e("s_barrier")
        a.e(f"ds_read_b32 v{vCK}, v{vZERO} offset:{K2_VI}")
        a.e("s_waitcnt lgkmcnt(0)")
        a.e(f"v_cmp_ne_u32 vcc, 0, v{vCK}")
        a.e("s_cbranch_vccz K2_FIN")
        a.e(f"s_mov_b32 s{sMODE}, 1")
        a.e("s_barrier")
        a.e("s_waitcnt vmcnt(0)")
        a.e("s_barrier")
        a.e("s_branch K2_PTAIL")
        a.e("K2_SFIN:")
        a.e(f"v_lshlrev_b32 v{XX+2}, 2, v0")
        a.e(f"v_add_u32 v{XX+3}, {STR2}, v{XX+2}")
        for k in range(7):
            X = AA + 8 * k
            for q in range(8):
                a.e(f"ds_read_b32 v{DB0+q}, v{XX+2+(q>>2)} offset:{ACC + (q&3)*ACC_STR + 2048*k}")
            a.e("s_waitcnt lgkmcnt(0)")
            for q in range(8):
                a.e(f"v_cvt_f32_i32 v{DB0+q}, v{DB0+q}")
            for q in range(2):
                a.e(f"v_pk_mul_f32 {vr(RB+2*q,2)}, {vr(X+2*q,2)}, {vr(DB0+2*q,2)}")
            for q in range(2):
                a.e(f"v_pk_fma_f32 {vr(RB+2*q,2)}, {vr(X+4+2*q,2)}, {vr(DB0+4+2*q,2)}, {vr(RB+2*q,2)}")
            finish(k)
        a.e("s_branch K2_FIN")
    def unpack(dst, src):
        a.e(f"v_lshlrev_b32 v{dst}, 16, v{src}")
        a.e(f"v_and_b32 v{dst+1}, s{sHI}, v{src}")
        a.e(f"v_lshlrev_b32 v{dst+2}, 16, v{src+1}")
        a.e(f"v_and_b32 v{dst+3}, s{sHI}, v{src+1}")
    T5 = cfg.get('t5', False)
    XBS = 32768 if T5 else 7 * 8192
    S_W1, S_W2, S_C, S_D, S_MM = 52, 56, 8, 60, 64
    sGI, sK6, S_WA = 68, 70, 72
    S_WR = 92 if TRACE else 88
    sLP, sLO, sOM, sXS, sXR, sTOP = sJ, sWIN, sTOT, sDN, sR6, sOOB
    WL = T5 and cfg.get('k2_wl', 0)
    def t4_setup(tid, T, WOP, dregs, SC, pre=None, now=False):
        a.e(f"s_load_dwordx2 s[{S_D}:{S_D+1}], s[0:1], 24")
        a.e(f"s_load_dwordx2 s[{S_W2}:{S_W2+1}], s[0:1], 56")
        a.e(f"s_load_dwordx2 s[{S_W1}:{S_W1+1}], s[0:1], 64")
        a.e(f"s_load_dwordx2 s[{S_MM}:{S_MM+1}], s[0:1], 0")
        a.e(f"s_load_dwordx2 s[{S_WA}:{S_WA+1}], s[0:1], 80")
        a.e(f"s_load_dwordx2 s[{S_Y}:{S_Y+1}], s[0:1], 88")
        for sr_, n in ((S_D, E * 2), (S_W1, 128), (S_W2, 64), (S_MM, E * 8), (S_Y, E * 8)):
            a.e(f"s_mov_b32 s{sr_+2}, {n}")
            a.e(f"s_mov_b32 s{sr_+3}, 0x00020000")
        a.e(f"s_lshr_b32 s{sT0}, s{sB}, 7")
        a.e(f"s_and_b32 s{sT1}, s{sB}, 127")
        a.e(f"s_mul_i32 s{sLP}, s{sT0}, {EPB}")
        a.e(f"s_sub_u32 s{sLO}, {EPB}, s{sLP}")
        a.e(f"s_mul_i32 s{sT1}, s{sT1}, {2*EPB}")
        a.e(f"s_lshl_b32 s{sOM}, s{sT1}, 3")
        a.e(f"s_add_u32 s{sT1}, s{sT1}, s{sLO}")
        a.e(f"s_mul_i32 s{sXS}, s{sB}, {XBS}")
        a.e(f"s_add_u32 s{sXS}, s{sXS}, {XB_OFF}")
        a.e(f"s_xor_b32 s{sT2}, s{sB}, 128")
        a.e(f"s_mul_i32 s{sXR}, s{sT2}, {XBS}")
        a.e(f"s_add_u32 s{sXR}, s{sXR}, {XB_OFF}")
        a.e(f"s_mov_b32 s{sTOP}, 0x80008000")
        for k, r_ in dregs: a.e(f"v_mov_b32 v{r_}, 0")
        if not now:
            for q in range(8): a.e(f"v_mov_b32 v{WOP+q}, 0")
            if dregs or not WL:
                a.e(f"v_add_lshl_u32 v{T+2}, v{tid}, s{sT1}, 1")
                a.e(f"v_add_u32 v{T+3}, 4096, v{T+2}")
            a.e(f"v_and_b32 v{T+1}, 3, v{tid}")
            a.e(f"v_lshlrev_b32 v{T+1}, 1, v{T+1}")
            a.e(f"v_and_or_b32 v{T}, v{tid}, 8, v{T+1}")
        a.e(f"v_cmp_gt_u32 s[{sK6}:{sK6+1}], {EPB - 3072}, v{tid}")
        if pre: pre()
        a.e("s_waitcnt lgkmcnt(0)")
        a.e(f"s_load_dwordx8 s[{S_WR}:{S_WR+7}], s[{S_WA}:{S_WA+1}], 0")
        for k, r_ in dregs:
            a.e(f"buffer_load_short_d16_hi v{r_}, v{T+2+(k>>2)}, s[{S_D}:{S_D+3}], 0 offen offset:{(k&3)*1024}")
        if now:
            a.e(f"v_add_u32 v{T}, {K2_LDS}, v{vL16}")
            a.e(f"ds_read_b128 {vr(WOP,4)}, v{T}")
            return
        if WL == 2:
            a.e(f"s_cmp_lg_u32 s{sWAVE}, 0")
            a.e("s_cbranch_scc1 K2_NOW")
        a.e(f"s_mov_b32 exec_lo, 0x00000f0f")
        a.e(f"s_mov_b32 exec_hi, 0x0000f0f0")
        for r in range(8):
            a.e(f"buffer_load_short_d16{'_hi' if r & 1 else ''} v{WOP+(r>>1)+4*(r&1)}, v{T}, s[{S_W1}:{S_W1+3}], 0 offen offset:{16*r}")
        a.e(f"s_mov_b32 exec_lo, 0x000f0000")
        a.e(f"s_mov_b32 exec_hi, 0x00f00000")
        for r in range(8):
            a.e(f"buffer_load_short_d16{'_hi' if r & 1 else ''} v{WOP+(r>>1)+4*(r&1)}, v{T+1}, s[{S_W2}:{S_W2+3}], 0 offen offset:{8*r}")
        a.e(f"s_mov_b64 exec, -1")
        if WL == 2: a.e("K2_NOW:")
    def t4_consts(WOP, SC, dst=None):
        for q in range(0 if WL else 4):
            a.e(f"v_or_b32 v{(WOP if dst is None else dst)+q}, v{WOP+q}, v{WOP+4+q}")
        for r in range(8):
            a.e(f"s_mov_b32 s{SC+r}, {f2h(-KAP * h2f(CENTERS[r]))}")
        for d in range(4):
            for h in range(2):
                src = S_WR + 2 * d + h
                a.e(f"s_lshl_b32 s{S_WA+4*d+2*h}, s{src}, 16")
                a.e(f"s_and_b32 s{S_WA+4*d+2*h+1}, s{src}, s{sHI}")
    def t4_acomp(items, KD, DB0, WOP, RB, SC):
        def rbf(X):
            a.e(f"v_mul_f32 v{KD}, {f2h(KAP)}, v{X}")
            for q in range(4):
                a.e(f"v_pk_add_f32 {vr(X+2*q,2)}, {vr(KD,2)}, s[{SC+2*q}:{SC+2*q+1}] op_sel_hi:[0,1]")
            for q in range(4):
                a.e(f"v_pk_mul_f32 {vr(X+2*q,2)}, {vr(X+2*q,2)}, {vr(X+2*q,2)}")
            for r in range(8):
                a.e(f"v_exp_f32 v{X+r}, -v{X+r}")
        rbf(items[0][0])
        for i, (X, G) in enumerate(items):
            for q in range(4):
                a.e(f"v_cvt_pk_bf16_f32 v{RB+q}, v{X+2*q}, v{X+2*q+1}")
            a.e(f"v_mfma_f32_32x32x16_bf16 {vr(DB0,16)}, {vr(WOP,4)}, {vr(RB,4)}, 0")
            if i + 1 < len(items): rbf(items[i+1][0])
            for d in range(4):
                a.e(f"v_pk_mul_f32 {vr(X+2*d,2)}, {vr(DB0+2*d,2)}, s[{sGI}:{sGI+1}]")
            for q in range(2 if G is not None else 0):
                a.e(f"v_cvt_pk_bf16_f32 v{G+q}, v{DB0+8+2*q}, v{DB0+9+2*q}")
    def t4_fin(X, GU, MU, RB, T, soff, vO):
        a.e(f"v_mov_b32 v{T}, v{RB+1}")
        a.e(f"v_mov_b32 v{T+2}, v{RB+3}")
        for d in (0, 2, 1, 3):
            src = RB + d if d % 2 == 0 else T - 1 + d
            for q in range(2):
                w = f"s[{S_WA+4*d+2*q}:{S_WA+4*d+2*q+1}]"
                if d == 0:
                    a.e(f"v_pk_mul_f32 {vr(X+2*q,2)}, {vr(RB,2)}, {w} op_sel_hi:[0,1]")
                else:
                    a.e(f"v_pk_fma_f32 {vr(X+2*q,2)}, {vr(src,2)}, {w}, {vr(X+2*q,2)} op_sel_hi:[0,1,1]")
        for q in range(2):
            a.e(f"v_pk_fma_f32 {vr(X+2*q,2)}, {vr(X+2*q,2)}, {vr(GU+2*q,2)}, {vr(MU+2*q,2)}")
        a.e(f"v_cvt_pk_bf16_f32 v{MU}, v{X}, v{X+1}")
        a.e(f"v_cvt_pk_bf16_f32 v{MU+1}, v{X+2}, v{X+3}")
        a.e(f"buffer_store_dwordx2 {vr(MU,2)}, v{vO}, s[{S_Y}:{S_Y+3}], {soff} offen")
    def t4_addr(tid, V):
        a.e(f"v_add_lshl_u32 v{V[0]}, v{tid}, s{sLP}, 3")
        a.e(f"v_add_lshl_u32 v{V[2]}, v{tid}, s{sLO}, 3")
        a.e(f"v_lshlrev_b32 v{V[4]}, {3 if T5 else 4}, v{tid}")
        a.e(f"v_add_u32 v{V[1]}, {STR2}, v{V[0]}")
        a.e(f"v_add_u32 v{V[3]}, {STR2}, v{V[2]}")
    def t4_mload(ks, M2, V):
        for k in ks:
            a.e(f"s_add_u32 s{sT0}, s{sOM}, {4096*k}")
            if k == 6: a.e(f"s_mov_b64 exec, s[{sK6}:{sK6+1}]")
            a.e(f"buffer_load_dwordx2 {vr(M2[k],2)}, v{V[2]}, s[{S_MM}:{S_MM+3}], s{sT0} offen{cfg.get('k2_mld', '')}")
            if k == 6: a.e(f"s_mov_b64 exec, -1")
    def t4_post(tg, ks, X, GU, MU, SO, PP, RB, V, vCK, mid=None):
        def m6(k, on):
            if k == 6: a.e(f"s_mov_b64 exec, s[{sK6}:{sK6+1}]" if on else "s_mov_b64 exec, -1")
        a.e("s_setprio 3")
        a.e("s_waitcnt lgkmcnt(0)")
        a.e("s_barrier")
        stamp(12)
        a.lg = []
        a.lds(f"ds_read_b32 v{vCK}, v{vZERO} offset:{K2_VI}", 'V')
        for k in ks:
            for q in range(2):
                a.lds(f"ds_read_b64 {vr(PP[k]+2*q,2)}, v{V[q]} offset:{ACC + 4096*k}", ('S', k))
        for k in ks:
            m6(k, 1)
            for q in range(2):
                a.lds(f"ds_read_b64 {vr(SO[k]+2*q,2)}, v{V[2+q]} offset:{ACC + 4096*k}", ('O', k))
            m6(k, 0)
        for k in ks:
            a.e(f"s_add_u32 s{sT0}, s{sXS}, {8192*k}")
            a.wlg(('S', k))
            if k == ks[0]: a.e(f"v_or_b32 v{PP[k]}, v{PP[k]}, v{vCK}")
            m6(k, 1)
            a.e(f"buffer_store_dwordx4 {vr(PP[k],4)}, v{V[4]}, s[{S_WS}:{S_WS+3}], s{sT0} offen sc1")
            m6(k, 0)
        stamp(13)
        a.e(f"v_readfirstlane_b32 s{sT2}, v{vCK}")
        if mid: mid()
        if 6 in ks:
            for q in range(4): a.e(f"v_mov_b32 v{PP[6]+q}, 0")
        a.wlg0()
        for k in ks:
            for q in range(2):
                a.e(f"v_or3_b32 v{vCK}, v{vCK}, v{SO[k]+2*q}, v{SO[k]+2*q+1}")
            for q in range(4):
                a.e(f"v_xor_b32 v{SO[k]+q}, s{sTOP}, v{SO[k]+q}")
        a.e(f"v_and_b32 v{vCK}, s{sTOP}, v{vCK}")
        a.e(f"s_mov_b32 s{sT1}, {1 << 14}")
        a.e(f"s_cmp_lg_u32 s{sT2}, 0")
        a.e(f"s_cbranch_scc1 K2_TE{tg}")
        if cfg.get('k2_w1', 1): a.e("s_waitcnt vmcnt(0)")
        stamp(14)
        a.e(f"K2_PW{tg}:")
        for k in ks:
            a.e(f"s_add_u32 s{sT0}, s{sXR}, {8192*k}")
            m6(k, 1)
            a.e(f"buffer_load_dwordx4 {vr(PP[k],4)}, v{V[4]}, s[{S_WS}:{S_WS+3}], s{sT0} offen sc1")
            m6(k, 0)
        a.e("s_waitcnt vmcnt(0)")
        for i, k in enumerate(ks):
            a.e(f"v_or3_b32 v{RB}, v{PP[k]}, v{PP[k]+1}, {'v%d' % RB if i else 0}")
            a.e(f"v_or3_b32 v{RB}, v{PP[k]+2}, v{PP[k]+3}, v{RB}")
        a.e(f"v_and_b32 v{RB}, s{sTOP}, v{RB}")
        a.e(f"v_cmp_ne_u32 vcc, 0, v{RB}")
        a.e(f"s_cbranch_vccnz K2_PR{tg}")
        stamp(7)
        for k in ks:
            S_ = PP[k]
            if k == 6:
                a.e(f"s_cmp_lg_u32 s{sWAVE}, 0")
                a.e(f"s_cbranch_scc1 K2_TE{tg}")
            m6(k, 1)
            for q in range(4):
                a.e(f"v_pk_add_u16 v{S_+q}, v{S_+q}, v{SO[k]+q}")
            for d in range(4):
                a.e(f"v_cvt_f32_i32_sdwa v{RB+d}, sext(v{S_+(d>>1)}) dst_sel:DWORD dst_unused:UNUSED_PAD src0_sel:WORD_{d&1}")
            for d in range(4):
                a.e(f"v_cvt_f32_i32_sdwa v{SO[k]+d}, sext(v{S_+2+(d>>1)}) dst_sel:DWORD dst_unused:UNUSED_PAD src0_sel:WORD_{d&1}")
            for q in range(2):
                a.e(f"v_pk_mul_f32 {vr(RB+2*q,2)}, {vr(X[k]+2*q,2)}, {vr(RB+2*q,2)}")
            a.e(f"s_add_u32 s{sT0}, s{sOM}, {4096*k}")
            for q in range(2):
                a.e(f"v_pk_fma_f32 {vr(RB+2*q,2)}, {vr(X[k]+4+2*q,2)}, {vr(SO[k]+2*q,2)}, {vr(RB+2*q,2)}")
            t4_fin(X[k], GU[k], MU[k], RB, S_, f"s{sT0}", V[2])
            m6(k, 0)
        a.e(f"K2_TE{tg}:")
        stamp(9)
        vTRq = vTR
        a.e(f"v_cmp_ne_u32 vcc, 0, v{vCK}")
        a.e(f"s_and_b64 exec, exec, vcc")
        a.e(f"ds_or_b32 v{vZERO}, v{vCK} offset:{K2_VI}")
        a.e(f"s_mov_b64 exec, -1")
        a.e("s_waitcnt lgkmcnt(0)")
        def retry():
            a.e(f"K2_PR{tg}:")
            for i, k in enumerate(ks):
                a.e(f"v_max3_u32 v{RB}, v{PP[k]}, v{PP[k]+1}, {'v%d' % RB if i else 0}")
                a.e(f"v_max3_u32 v{RB}, v{PP[k]+2}, v{PP[k]+3}, v{RB}")
            a.e(f"v_cmp_eq_u32 vcc, -1, v{RB}")
            a.e(f"s_cbranch_vccz K2_PV{tg}")
            if cfg.get('k2_prslp', 0): a.e(f"s_sleep {cfg['k2_prslp']}")
            nonlocal vTR
            sv = vTR; vTR = vTRq
            stamp(8)
            vTR = sv
            a.e(f"s_sub_u32 s{sT1}, s{sT1}, 1")
            a.e(f"s_cbranch_scc0 K2_PW{tg}")
            a.e(f"K2_PV{tg}:")
            a.e(f"v_mov_b32 v{vCK}, 0x8000")
            a.e(f"s_branch K2_TE{tg}")
        return retry
    def t5_dist(ks, X, vA, tmp):
        a.e(f"v_lshrrev_b32 v{tmp}, 2, v{vA}")
        for k in ks: a.e(f"v_mov_b32 v{X[k]}, 0")
        a.e(f"s_lshr_b32 s{sT1}, s{sOM}, 2")
        for k in ks:
            a.e(f"s_add_u32 s{sT0}, s{sT1}, {1024*k}")
            if k == 6: a.e(f"s_mov_b64 exec, s[{sK6}:{sK6+1}]")
            a.e(f"buffer_load_short_d16_hi v{X[k]}, v{tmp}, s[{S_D}:{S_D+3}], s{sT0} offen")
            if k == 6: a.e(f"s_mov_b64 exec, -1")
    def t5_agg(X, S, RB, out, sBI):
        for q in range(4):
            a.e(f"v_pk_sub_i16 v{S+q}, v{S+q}, s{sBI}")
        for d in range(4):
            a.e(f"v_cvt_f32_i32_sdwa v{RB+d}, sext(v{S+(d>>1)}) dst_sel:DWORD dst_unused:UNUSED_PAD src0_sel:WORD_{d&1}")
        for q in range(2):
            a.e(f"v_pk_mul_f32 {vr(RB+2*q,2)}, {vr(X+2*q,2)}, {vr(RB+2*q,2)}")
        for d in range(4):
            a.e(f"v_cvt_f32_i32_sdwa v{X+d}, sext(v{S+2+(d>>1)}) dst_sel:DWORD dst_unused:UNUSED_PAD src0_sel:WORD_{d&1}")
        for q in range(2):
            a.e(f"v_pk_fma_f32 {vr(out+2*q,2)}, {vr(X+4+2*q,2)}, {vr(X+2*q,2)}, {vr(RB+2*q,2)}")
    def t5_post(tg, ks, XP, X, G, M, SP, SO, RB, V, vCK, mid=None, early=None):
        def m6(k, on):
            if k == 6: a.e(f"s_mov_b64 exec, s[{sK6}:{sK6+1}]" if on else "s_mov_b64 exec, -1")
        def skip6(k, lab):
            if k == 6:
                a.e(f"s_cmp_lg_u32 s{sWAVE}, 0")
                a.e(f"s_cbranch_scc1 {lab}")
        sBI = sN
        a.e(f"s_mov_b32 s{sBI}, 0x40004000")
        a.e(f"s_setprio {cfg.get('k2_px' + tg, 3)}")
        a.e("s_waitcnt lgkmcnt(0)")
        a.e("s_barrier")
        stamp(12)
        a.lg = []
        a.lds(f"ds_read_b32 v{vCK}, v{vZERO} offset:{K2_VI}", 'V')
        for R_, o, nm in ((SP, 0, 'S'), (SO, 2, 'O')):
            for k in ks:
                m6(k, 1)
                for q in range(2):
                    a.lds(f"ds_read_b64 {vr(R_[k]+2*q,2)}, v{V[o+q]} offset:{ACC + 4096*k}", (nm, k))
                m6(k, 0)
        if early: early()
        a.wlg(('S', ks[-1]))
        for k in ks:
            for q in range(2):
                a.e(f"v_or3_b32 v{vCK}, v{vCK}, v{SP[k]+2*q}, v{SP[k]+2*q+1}")
        a.e(f"v_and_b32 v{vCK}, s{sTOP}, v{vCK}")
        a.e(f"v_cmp_eq_u32 vcc, 0, v{vCK}")
        for k in ks:
            skip6(k, f"K2_NS{tg}")
            m6(k, 1)
            t5_agg(XP[k], SP[k], RB, RB, sBI)
            a.e(f"s_add_u32 s{sT0}, s{sXS}, {4096*k}")
            a.e(f"v_cvt_pk_bf16_f32 v{SP[k]}, v{RB}, v{RB+1}")
            a.e(f"v_cvt_pk_bf16_f32 v{SP[k]+1}, v{RB+2}, v{RB+3}")
            if k == ks[0]: a.e(f"v_cndmask_b32 v{SP[k]}, -2, v{SP[k]}, vcc")
            a.e(f"buffer_store_dwordx2 {vr(SP[k],2)}, v{V[4]}, s[{S_WS}:{S_WS+3}], s{sT0} offen sc1")
            m6(k, 0)
        a.e(f"K2_NS{tg}:")
        if 'k2_ps' + tg in cfg: a.e(f"s_setprio {cfg['k2_ps' + tg]}")
        stamp(13)
        if mid: mid()
        a.wlg0()
        for k in ks:
            for q in range(2):
                a.e(f"v_or3_b32 v{vCK}, v{vCK}, v{SO[k]+2*q}, v{SO[k]+2*q+1}")
        a.e(f"v_and_b32 v{vCK}, s{sTOP}, v{vCK}")
        a.e(f"v_cmp_ne_u32 vcc, 0, v{vCK}")
        a.e(f"s_cbranch_vccnz K2_TE{tg}")
        def loads():
            for k in ks:
                a.e(f"s_add_u32 s{sT0}, s{sXR}, {4096*k}")
                m6(k, 1)
                a.e(f"buffer_load_dwordx2 {vr(SP[k],2)}, v{V[4]}, s[{S_WS}:{S_WS+3}], s{sT0} offen sc1")
                m6(k, 0)
        EL = cfg.get('k2_el' + tg, 0)
        if EL: loads()
        MF = cfg.get('mf', 0)
        WT = SP[ks[0]] + 2
        if MF:
            for i in range(4):
                a.e(f"s_mov_b32 exec_lo, {hex(0x11111111 << i)}")
                a.e(f"s_mov_b32 exec_hi, {hex(0x11111111 << i)}")
                for r in range(2):
                    a.e(f"s_pack_{'hh' if i & 1 else 'll'}_b32_b16 s{sT0}, s{S_WR+4*r+(i>>1)}, s{S_WR+4*r+2+(i>>1)}")
                    a.e(f"v_mov_b32 v{WT+r}, s{sT0}")
            a.e("s_mov_b64 exec, -1")
        for k in ks:
            skip6(k, f"K2_NO{tg}")
            t5_agg(X[k], SO[k], RB, RB if MF else SO[k], sBI)
            if MF:
                for q in range(2): a.e(f"v_cvt_pk_bf16_f32 v{X[k]+q}, v{RB+2*q}, v{RB+2*q+1}")
            unpack(XP[k], G[k])
            if MF: a.e(f"v_mfma_f32_4x4x4_16b_bf16 {vr(SO[k],4)}, {vr(WT,2)}, {vr(X[k],2)}, 0")
            unpack(XP[k] + 4, M[k])
        a.e(f"K2_NO{tg}:")
        a.e(f"s_mov_b32 s{sT1}, {1 << 14}")
        a.e(f"s_mov_b32 s{sT2}, 0xff800000")
        if EL: a.e(f"s_branch K2_PX{tg}")
        elif cfg.get('k2_w1' + tg, 0): a.e("s_waitcnt vmcnt(0)")
        stamp(14)
        a.e(f"K2_PW{tg}:")
        loads()
        a.e(f"K2_PX{tg}:")
        a.e("s_waitcnt vmcnt(0)")
        for i, k in enumerate(ks):
            a.e(f"v_max3_u32 v{RB}, v{SP[k]}, v{SP[k]+1}, {'v%d' % RB if i else 0}")
        a.e(f"v_cmp_le_u32 vcc, s{sT2}, v{RB}")
        a.e(f"s_cbranch_vccnz K2_PR{tg}")
        stamp(7)
        for k in ks[:3] if MF else []:
            a.e(f"v_mfma_f32_4x4x4_16b_bf16 {vr(SO[k],4)}, {vr(WT,2)}, {vr(SP[k],2)}, {vr(SO[k],4)}")
        for k in ks if MF else []:
            skip6(k, f"K2_TE{tg}")
            if k == 6: a.e(f"v_mfma_f32_4x4x4_16b_bf16 {vr(SO[k],4)}, {vr(WT,2)}, {vr(SP[k],2)}, {vr(SO[k],4)}")
            a.e(f"s_add_u32 s{sT0}, s{sOM}, {4096*k}")
            for q in range(2):
                a.e(f"v_pk_fma_f32 {vr(SO[k]+2*q,2)}, {vr(SO[k]+2*q,2)}, {vr(XP[k]+2*q,2)}, {vr(XP[k]+4+2*q,2)}")
            for q in range(2): a.e(f"v_cvt_pk_bf16_f32 v{X[k]+q}, v{SO[k]+2*q}, v{SO[k]+2*q+1}")
            m6(k, 1)
            a.e(f"buffer_store_dwordx2 {vr(X[k],2)}, v{V[2]}, s[{S_Y}:{S_Y+3}], s{sT0} offen{cfg.get('k2_ost', '')}")
            m6(k, 0)
        for k in [] if MF else ks:
            skip6(k, f"K2_TE{tg}")
            m6(k, 1)
            unpack(RB, SP[k])
            a.e(f"s_add_u32 s{sT0}, s{sOM}, {4096*k}")
            for q in range(2):
                a.e(f"v_pk_add_f32 {vr(RB+2*q,2)}, {vr(RB+2*q,2)}, {vr(SO[k]+2*q,2)}")
            t4_fin(X[k], XP[k], XP[k] + 4, RB, SP[k], f"s{sT0}", V[2])
            m6(k, 0)
        a.e(f"K2_TE{tg}:")
        stamp(9)
        vTRq = vTR
        a.e(f"v_cmp_ne_u32 vcc, 0, v{vCK}")
        a.e(f"s_and_b64 exec, exec, vcc")
        a.e(f"ds_or_b32 v{vZERO}, v{vCK} offset:{K2_VI}")
        a.e(f"s_mov_b64 exec, -1")
        a.e("s_waitcnt lgkmcnt(0)")
        def retry():
            nonlocal vTR
            a.e(f"K2_PR{tg}:")
            a.e(f"v_cmp_eq_u32 vcc, -1, v{RB}")
            a.e(f"s_cbranch_vccz K2_PV{tg}")
            if cfg.get('k2_prslp', 0): a.e(f"s_sleep {cfg['k2_prslp']}")
            sv = vTR; vTR = vTRq
            stamp(8)
            vTR = sv
            a.e(f"s_sub_u32 s{sT1}, s{sT1}, 1")
            a.e(f"s_cbranch_scc0 K2_PW{tg}")
            a.e(f"K2_PV{tg}:")
            a.e(f"v_mov_b32 v{vCK}, 0x8000")
            a.e(f"s_branch K2_TE{tg}")
        return retry
    def tail5_head(ks, V, vCK, DB0, WOP, RB):
        nonlocal vTR
        mk = lambda b_, n: {k: b_ + n * i for i, k in enumerate(ks)}
        XP, X, G, M, SP, SO = mk(8, 8), mk(40, 8), mk(72, 2), mk(80, 2), mk(88, 4), mk(104, 4)
        if TRACE:
            a.e(f"v_mov_b32 v87, v{vTR}")
            vTR = 87
        def pre():
            for q in range(4): a.e(f"v_mov_b32 v{SP[0]+q}, -1")
            a.e(f"v_lshlrev_b32 v{V[4]}, 4, v0")
            if PZL:
                a.e("K2_PZ0:")
                pzone("K2_PZ1")
                a.e("s_branch K2_PZ0")
                a.e("K2_PZ1:")
            for k in range(3 if PZL else 0, 4):
                a.e(f"s_add_u32 s{sT0}, s{sXS}, {8192*k}")
                if k == 3: a.e(f"s_mov_b64 exec, s[{sK6}:{sK6+1}]")
                a.e(f"buffer_store_dwordx4 {vr(SP[0],4)}, v{V[4]}, s[{S_WS}:{S_WS+3}], s{sT0} offen sc1")
            a.e("s_mov_b64 exec, -1")
            poll(DB0 + 6, K2_GI, "1", 0)
            a.e(f"s_mov_b32 s{sGI}, s{sT0}")
            a.e(f"s_mov_b32 s{sGI+1}, s{sT0}")
        t4_setup(0, DB0, WOP, [], S_C, pre, now=WL)
        t4_addr(0, V)
        t5_dist(ks, XP, V[0], DB0 + 2)
        t5_dist(ks, X, V[2], DB0 + 3)
        t4_mload(ks[:3] if TRACE else ks, M, V)
        if cfg.get('k2_lb', 0) > 1:
            a.e(f"s_cmp_lt_u32 s{sWAVE}, {cfg.get('k2_cpre', 0)}")
            a.e("s_cbranch_scc1 K2_NPF")
            t5_dist([3, 4, 5], {3: 93, 4: 94, 5: 95}, V[2], DB0 + 4)
            t4_mload([3, 4, 5], {3: 96, 4: 98, 5: 100}, V)
            a.e("K2_NPF:")
        a.e(f"s_lshl_b32 s{sT1}, s{sWAVE}, 4")
        a.e(f"s_lshl_b32 s{sT2}, s{sT2}, 7")
        a.e(f"s_add_u32 s{sT2}, s{sT1}, s{sT2}")
        a.e(f"s_xor_b32 s{sT1}, s{sT2}, {128 << 7}")
        a.e(f"s_add_u32 s{sT2}, s{sT2}, {FL_OFF}")
        a.e(f"s_add_u32 s{sT1}, s{sT1}, {FL_OFF}")
        a.e("s_waitcnt vmcnt(0) lgkmcnt(0)")
        a.e("s_mov_b64 exec, 1")
        a.e(f"buffer_store_dword v{SP[0]}, v{vZERO}, s[{S_WS}:{S_WS+3}], s{sT1} offen sc1")
        a.e("s_mov_b64 exec, -1")
        stamp(6)
        if 'k2_aprio' in cfg: a.e(f"s_setprio {cfg['k2_aprio']}")
        t4_consts(WOP, S_C)
        KD = SP[1]
        t4_acomp([(XP[k], None) for k in ks[:3]] + [(X[k], G[k]) for k in ks[:3]], KD, DB0, WOP, RB, S_C)
        a.e(f"s_cmp_lg_u32 s{sWAVE}, 0")
        a.e("s_cbranch_scc1 K2_NA6")
        t4_acomp([(XP[6], None), (X[6], G[6])], KD, DB0, WOP, RB, S_C)
        a.e("K2_NA6:")
        for q in range(4):
            a.e(f"v_mov_b32 v{SO[6]+q}, 0")
            a.e(f"v_mov_b32 v{SP[6]+q}, 0")
        return lambda: t5_post("P", ks, XP, X, G, M, SP, SO, RB, V, vCK)
    def tail3():
        nonlocal vTR
        ks = [0, 1, 2, 6]
        X = {k: 8 + 24 * i for i, k in enumerate(ks)}
        GU = {k: X[k] + 8 for k in ks}; MU = {k: X[k] + 12 for k in ks}
        SO = {k: X[k] + 16 for k in ks}; PP = {k: X[k] + 20 for k in ks}
        DB0, WOP, RB, KD, vCK = 104, 120, 124, 6, 7
        V = [1, 3, 4, 5, 6]
        a.e("K2_PTAIL:")
        a.e(f"s_setprio {cfg.get('k2_tprio', 2)}")
        if T5:
            post5 = tail5_head(ks, V, vCK, DB0, WOP, RB)
        else:
            if TRACE:
                a.e(f"v_mov_b32 v{MU[6]+3}, v{vTR}")
                vTR = MU[6] + 3
            def pre():
                poll(DB0 + 6, K2_GI, "1", 0)
                a.e(f"s_mov_b32 s{sGI}, s{sT0}")
                a.e(f"s_mov_b32 s{sGI+1}, s{sT0}")
            t4_setup(0, DB0, WOP, [(k, X[k]) for k in ks], S_C, pre)
            t4_addr(0, V)
            t4_mload(ks, PP, V)
            a.e(f"s_lshl_b32 s{sT1}, s{sWAVE}, 4")
            a.e(f"s_lshl_b32 s{sT2}, s{sT2}, 7")
            a.e(f"s_add_u32 s{sT2}, s{sT1}, s{sT2}")
            a.e(f"s_add_u32 s{sT2}, s{sT2}, {FL_OFF}")
            a.e("s_waitcnt vmcnt(0) lgkmcnt(0)")
            t4_consts(WOP, S_C)
            t4_acomp([(X[k], SO[k]) for k in ks[:3]], SO[6] + 2, DB0, WOP, RB, S_C)
            for k in ks[:3]:
                unpack(GU[k], SO[k]); unpack(MU[k], PP[k])
            a.e(f"s_cmp_lg_u32 s{sWAVE}, 0")
            a.e("s_cbranch_scc1 K2_NA6")
            t4_acomp([(X[6], SO[6])], SO[6] + 2, DB0, WOP, RB, S_C)
            unpack(GU[6], SO[6])
            if not TRACE: unpack(MU[6], PP[6])
            a.e("K2_NA6:")
            for q in range(4): a.e(f"v_mov_b32 v{SO[6]+q}, 0")
        stamp(11)
        a.e(f"s_mov_b32 s{sT0}, {1 << 14}")
        a.e("s_branch K2_FL1")
        a.e("K2_FL0:")
        a.e(f"s_sleep {cfg.get('k2_flslp', 4)}")
        a.e(f"s_sub_u32 s{sT0}, s{sT0}, 1")
        a.e("s_cbranch_scc0 K2_FL1")
        a.e(f"v_mov_b32 v{vCK}, 0x8000")
        a.e(f"ds_or_b32 v{vZERO}, v{vCK} offset:{K2_VI}")
        a.e("s_branch K2_FL2")
        a.e("K2_FL1:")
        a.e(f"buffer_load_dword v{vCK}, v{vZERO}, s[{S_WS}:{S_WS+3}], s{sT2} offen sc1")
        a.e("s_waitcnt vmcnt(0)")
        a.e(f"v_cmp_eq_u32 vcc, 0, v{vCK}")
        a.e("s_cbranch_vccnz K2_FL0")
        a.e("K2_FL2:")
        retry = post5() if T5 else t4_post("P", ks, X, GU, MU, SO, PP, RB, V, vCK)
        if TRACE:
            a.e(f"v_mov_b32 v127, v{vTR}")
            vTR = 127
        a.e("s_barrier")
        a.e(f"ds_read_b32 v{vCK}, v{vZERO} offset:{K2_VI}")
        a.e("s_waitcnt lgkmcnt(0)")
        a.e(f"v_cmp_ne_u32 vcc, 0, v{vCK}")
        a.e("s_cbranch_vccz K2_FIN")
        a.e("s_barrier")
        a.e("s_waitcnt vmcnt(0)")
        a.e("s_barrier")
        a.e("K2_SFIN:")
        x, vT, vL = X[0], V[0], X[1]
        a.e(f"ds_read_b32 v{vCK}, v{vZERO} offset:{K2_GI}")
        a.e(f"v_mov_b32 v{vT}, v0")
        a.e(f"s_lshr_b32 s{sT2}, s{sOM}, 2")
        a.e(f"s_mov_b32 s{sT1}, 0")
        a.e("s_waitcnt lgkmcnt(0)")
        a.e(f"v_readfirstlane_b32 s{sGI}, v{vCK}")
        a.e(f"v_readfirstlane_b32 s{sGI+1}, v{vCK}")
        a.e("K2_SFL:")
        a.e(f"v_min_u32 v{vL}, {EPB - 1}, v{vT}")
        a.e(f"v_add_lshl_u32 v{V[2]}, v{vL}, s{sLO}, 3")
        a.e(f"v_lshlrev_b32 v{vL}, 2, v{vL}")
        a.e(f"v_add_u32 v{vL+1}, {STR2}, v{vL}")
        a.e(f"v_lshrrev_b32 v{vL+2}, 2, v{V[2]}")
        a.e(f"buffer_load_ushort v{x}, v{vL+2}, s[{S_D}:{S_D+3}], s{sT2} offen")
        a.e(f"buffer_load_dwordx2 {vr(PP[0],2)}, v{V[2]}, s[{S_MM}:{S_MM+3}], s{sOM} offen")
        a.e("s_waitcnt vmcnt(0)")
        a.e(f"v_lshlrev_b32 v{x}, 16, v{x}")
        t4_acomp([(x, SO[0])], SO[6] + 2, DB0, WOP, RB, S_C)
        unpack(GU[0], SO[0]); unpack(MU[0], PP[0])
        for q in range(8):
            a.e(f"ds_read_b32 v{DB0+q}, v{vL+(q>>2)} offset:{ACC + (q&3)*ACC_STR}")
        a.e("s_waitcnt lgkmcnt(0)")
        for q in range(8):
            a.e(f"v_cvt_f32_i32 v{DB0+q}, v{DB0+q}")
        for q in range(2):
            a.e(f"v_pk_mul_f32 {vr(RB+2*q,2)}, {vr(x+2*q,2)}, {vr(DB0+2*q,2)}")
        for q in range(2):
            a.e(f"v_pk_fma_f32 {vr(RB+2*q,2)}, {vr(x+4+2*q,2)}, {vr(DB0+4+2*q,2)}, {vr(RB+2*q,2)}")
        t4_fin(x, GU[0], MU[0], RB, DB0 + 8, f"s{sOM}", V[2])
        a.e(f"v_add_u32 v{vT}, 512, v{vT}")
        a.e(f"s_add_u32 s{sT1}, s{sT1}, 1")
        a.e(f"s_cmp_lt_u32 s{sT1}, 7")
        a.e("s_cbranch_scc1 K2_SFL")
        a.e("s_branch K2_FIN")
        retry()
    T3 = cfg.get('t3', False)
    if T3: tail3()
    else: tail_old()

    a.e("K2_CONS:")
    vFD, vA4, vA2 = 3, 4, 5
    SW_, SA_ = 6, 19
    CUR = 32
    COL = {3: [0,1,2,3,0,1,2,3,0,1,2,3,4], 2: [0,1,2,0,1,2,0,1,2,0,1,2,3],
           4: [0,1,2,3,4,5,0,1,2,3,4,5,6], 5: [0,1,2,3,4,5,0,1,2,3,4,5,6]}.get(D, list(range(13)))
    NCOL = max(COL) + 1
    RSTR = 6 if D <= 5 else 4
    LB = CUR + 4 * 13
    TB = 104
    RT, vCK, vC4, vCT = 120, 124, 125, 126
    MXR = TB
    sG, sGN, sMG, sNB, sSEL, sMX, sLAST = 40, 42, 44, 46, 48, 49, 50
    def fill(first):
        if first:
            a.e(f"v_cmp_le_u32 vcc, {ACC//16}, v{vCT}")
            a.e(f"s_mov_b64 exec, vcc")
            a.e(f"ds_write_b128 v{TB+8}, {vr(TB+4,4)}")
            a.e(f"s_mov_b64 exec, -1")
        for k in range(1, 8):
            a.e(f"ds_write_b128 v{TB+8}, {vr(TB+4,4)} offset:{k*8192}")
        a.e(f"v_add_u32 v{TB+8}, 65536, v{TB+8}")
        for k in range(4):
            a.e(f"ds_write_b128 v{TB+8}, {vr(TB+4,4)} offset:{k*8192}")
        a.e(f"v_cmp_gt_u32 vcc, {(K2_SA - 12*8192)//16}, v{vCT}")
        a.e(f"s_mov_b64 exec, vcc")
        a.e(f"ds_write_b128 v{TB+8}, {vr(TB+4,4)} offset:{4*8192}")
        a.e(f"s_mov_b64 exec, -1")
    def mdsrd(hreg):
        a.e(f"s_mul_i32 s{sT0}, {hreg}, {MD_TSTR}")
        a.e(f"s_add_u32 s{sT0}, s{sT0}, {MD_OFF}")
        a.e(f"s_add_u32 s{S_MD}, s{S_WS}, s{sT0}")
        a.e(f"s_addc_u32 s{S_MD+1}, s{S_WS+1}, 0")
        a.e(f"s_or_b32 s{S_MD+1}, s{S_MD+1}, 0x80000")
    def setscale(t, first=False):
        a.e(f"v_min_f32 v{t}, 0x71800000, v{t}")
        a.e(f"v_rcp_f32 v{t+1}, v{t}")
        a.e(f"v_add_f32 v{t+2}, v{t}, v{t}")
        a.e(f"v_readlane_b32 s{sG}, v{t}, 63")
        a.e(f"v_readlane_b32 s{sG+1}, v{t+2}, 63")
        if first:
            a.e(f"s_cmp_eq_u32 s{sWAVE}, 0")
            a.e("s_cselect_b32 exec_hi, 0x80000000, 0")
            a.e("s_mov_b32 exec_lo, 0")
        else: a.e("s_lshl_b64 exec, 1, 63")
        a.e(f"ds_write_b32 v{vZERO}, v{t+1} offset:{K2_GI}")
        a.e("s_mov_b64 exec, -1")
        a.e(f"s_xor_b32 s{sGN}, s{sG}, 0x80000000")
    a.e(f"s_sub_u32 s{sWAVE}, s{sWAVE}, 8")
    a.e(f"v_add_u32 v{vCT}, -512, v0")
    a.e(f"v_mov_b32 v{TB+9}, 0x40004000")
    a.e(f"v_cmp_le_u32 vcc, {ACC//16}, v{vCT}")
    a.e(f"v_lshlrev_b32 v{TB+8}, 4, v{vCT}")
    for k in range(4):
        a.e(f"v_cndmask_b32 v{TB+4+k}, 0, v{TB+9}, vcc")
    a.e(f"ds_write_b128 v{TB+8}, {vr(TB+4,4)}")
    for k in range(4):
        a.e(f"v_mov_b32 v{TB+4+k}, v{TB+9}")
    a.e(f"v_lshlrev_b32 v{TB+9}, 5, v{vLANE}")
    a.e(f"s_mov_b32 s{sT1}, {MX_OFF}")
    a.e("s_waitcnt lgkmcnt(0)")
    a.e("s_barrier")
    a.e(f"buffer_load_dwordx4 {vr(CUR,4)}, v{TB+9}, s[{S_WS}:{S_WS+3}], s{sT1} offen")
    a.e(f"buffer_load_dwordx4 {vr(CUR+4,4)}, v{TB+9}, s[{S_WS}:{S_WS+3}], s{sT1} offen offset:16")
    CK = [3, 4, 5]
    CX = {k: 74 + 10 * i for i, k in enumerate(CK)}
    CWOP, CSC = 56, 52
    if T5:
        CX = {k: 74 + 8 * i for i, k in enumerate(CK)}
        t4_setup(vCT, 64, CWOP, [], CSC)
        a.e(f"v_add_lshl_u32 v66, v{vCT}, s{sLP}, 3")
        t5_dist(CK, CX, 66, 66)
    elif T3: t4_setup(vCT, 64, CWOP, [(k, CX[k]) for k in CK], CSC)
    fill(False)
    a.e(f"s_lshr_b32 s{sT1}, s{sB}, 7")
    mdsrd(f"s{sT1}")
    a.e(f"s_mov_b32 s{S_MD+2}, {E//2}")
    a.e(f"s_mov_b32 s{S_MD+3}, 0x00020000")
    a.e(f"s_mov_b32 s{sFFF8}, 0xfff8")
    a.e(f"s_mov_b32 s{sMG}, {f2h(8388608.0 + 32768.0)}")
    a.e(f"s_mov_b32 s{sMG+1}, {f2h(8388608.0 + 32768.0)}")
    a.e(f"s_mov_b32 s{sNB}, 0x7fff8000")
    a.e(f"s_mov_b32 s{sNB+1}, 0x7fff7fff")
    a.e(f"s_mov_b32 s{sSEL}, 0x05040100")
    a.e(f"s_lshl_b32 s{sT0}, s{sWAVE}, 2")
    a.e(f"v_mov_b32 v{vFD}, s{sT0}")
    for s in range(NS):
        a.e(f"v_mov_b32 v{SW_+s}, {hex(DUMMY)}")
        a.e(f"v_mov_b32 v{SA_+s}, 0")
    for k in range(4):
        a.e(f"v_mov_b32 v{RT+k}, 0")
    a.e(f"s_mov_b32 s{sCNT}, 0")
    t = TB + 4
    if WL:
        a.e(f"v_lshlrev_b32 v67, 4, v{vLANE}")
        a.e(f"v_add_u32 v67, {K2_LDS}, v67")
    a.e("s_waitcnt vmcnt(0)")
    if WL:
        if WL == 2:
            a.e(f"s_cmp_lg_u32 s{sWAVE}, 0")
            a.e("s_cbranch_scc1 K2_NOW2")
        for q in range(4): a.e(f"v_or_b32 v{98+q}, v{CWOP+q}, v{CWOP+4+q}")
        a.e(f"ds_write_b128 v67, v[98:101]")
        a.e("K2_NOW2:")
    a.e(f"v_max3_u32 v{MXR}, v{CUR}, v{CUR+2}, v{CUR+4}")
    a.e(f"v_add_f32 v{MXR+1}, v{CUR+1}, v{CUR+3}")
    a.e(f"v_add_f32 v{MXR+2}, v{CUR+5}, v{CUR+7}")
    a.e(f"v_max_u32 v{MXR}, v{MXR}, v{CUR+6}")
    a.e(f"v_add_f32 v{MXR+1}, v{MXR+1}, v{MXR+2}")
    dpp_scan(a, MXR, "v_max_u32")
    dpp_scan(a, MXR + 1, "v_add_f32")
    a.e(f"v_rcp_f32 v{t}, v{MXR}")
    a.e(f"v_mul_f32 v{MXR+2}, {f2h(4.0 * E / cfg.get('crest', 32.0))}, v{MXR}")
    a.e(f"v_readlane_b32 s{sMX}, v{MXR}, 63")
    a.e(f"v_cmp_nle_f32 vcc, v{MXR+2}, v{MXR+1}")
    a.e(f"v_mul_f32 v{t}, {f2h(cfg.get('qmax', 4096.0))}, v{t}")
    a.e(f"s_lshr_b32 s{sT0}, vcc_hi, 16")
    a.e(f"s_and_b32 s{sT0}, s{sT0}, 0x8000")
    a.e(f"v_mov_b32 v{vCK}, s{sT0}")
    setscale(t, WL == 2)
    stamp(6)

    uid = [0]
    stubs = []
    NOX = cfg.get('nox', True)
    def lreg(cur): return cur + (5 if NOX else 4) if D <= 5 else LB + (cur - CUR) // 4
    def alpha1(W, cur):
        L = lreg(cur)
        a.e(f"v_and_b32 v{L}, {hex(cfg.get('x_gmask', IDXM))}, v{W}")
        if not cfg.get('x_nog'):
            a.e(f"buffer_load_dwordx2 {vr(cur,2)}, v{L}, s[{S_MD}:{S_MD+3}], 0 idxen")
    def cosines(A, C_, mid=None, c2=1):
        tc = TB + 2
        a.e(f"v_mul_f32 v{tc}, 0.15915494, v{A}")
        a.e(f"v_fract_f32 v{tc}, v{tc}")
        a.e(f"v_cos_f32 v{tc}, v{tc}")
        if mid: a.e(mid)
        a.e(f"v_pk_mul_f32 {vr(C_,2)}, {vr(tc,2)}, s[{sG}:{sG+1}] op_sel_hi:[0,1]")
        a.e(f"v_fma_f32 v{C_+c2}, v{C_+1}, v{tc}, s{sGN}")
    def alpha2(W, A, cur):
        cosines(A, cur + 2, f"v_and_b32_sdwa v{lreg(cur)}, v{W}, s{sFFF8} dst_sel:DWORD dst_unused:UNUSED_PAD src0_sel:WORD_1 src1_sel:DWORD", 2 if NOX else 1)
    def orrt():
        a.e(f"v_or3_b32 v{vCK}, v{vCK}, v{RT}, v{RT+1}")
        a.e(f"v_or3_b32 v{vCK}, v{vCK}, v{RT+2}, v{RT+3}")
    def beta(cur, vm):
        G0, C_, L = cur, cur + 2, lreg(cur)
        M_, X = TB + 4, TB + 8
        a.e(f"s_waitcnt vmcnt({vm})")
        unpack(M_, G0)
        for l in range(2):
            for q in range(2):
                if NOX:
                    a.e(f"v_pk_fma_f32 {vr(X+4*l+2*q,2)}, {vr(M_+2*q,2)}, {vr(C_+2*l,2)}, s[{sMG}:{sMG+1}] op_sel_hi:[1,0,1]")
                else:
                    a.e(f"v_pk_fma_f32 {vr(X+4*l+2*q,2)}, {vr(M_+2*q,2)}, {vr(C_,2)}, s[{sMG}:{sMG+1}] op_sel:[0,{l},0] op_sel_hi:[1,{l},1]")
        for q in range(4):
            a.e(f"v_perm_b32 v{M_+q}, v{X+2*q+1}, v{X+2*q}, s{sSEL}")
        for l in range(2):
            a.e(f"v_lshl_add_u64 {vr(M_+2*l,2)}, {vr(M_+2*l,2)}, 0, s[{sNB}:{sNB+1}]")
        a.e(f"s_waitcnt lgkmcnt(0)")
        orrt()
        for l in range(2):
            a.e(f"ds_add_rtn_u64 {vr(RT+2*l,2)}, v{L}, {vr(M_+2*l,2)} offset:{ACC + l*STR2}")
    def cur(s): return CUR + RSTR * COL[s]
    def fdone(val):
        uid[0] += 1
        a.e(f"s_waitcnt lgkmcnt(0)")
        orrt()
        a.e(f"v_and_b32 v{vCK}, 0x80008000, v{vCK}")
        a.e(f"v_cmp_ne_u32 vcc, 0, v{vCK}")
        if cfg.get('k2_lb', 0):
            a.e(f"s_mov_b64 exec, vcc")
            a.e(f"ds_or_b32 v{vZERO}, v{vCK} offset:{K2_VI}")
            a.e("s_mov_b64 exec, -1")
            return
        a.e(f"v_mov_b32 v{TB+4}, {val}")
        a.e(f"s_mov_b64 exec, vcc")
        a.e(f"ds_or_b32 v{vZERO}, v{vCK} offset:{K2_VI}")
        a.e("s_mov_b64 exec, 1")
        a.e(f"ds_write_b32 v{vFD}, v{TB+4} offset:{K2C_FD}")
        a.e("s_mov_b64 exec, -1")
    def step(s, cnt_of, stub=False, mid=None):
        p = (s - D) % NS
        alpha1(SW_ + s, cur(s))
        alpha2(SW_ + s, SA_ + s, cur(s))
        if mid: mid()
        uid[0] += 1
        a.e(f"s_cmp_le_u32 s{cnt_of(p)}, {p}")
        if stub:
            a.e(f"s_cbranch_scc1 K2_ST{uid[0]}")
            stubs.append(uid[0])
        else:
            a.e(f"s_cbranch_scc1 K2_SB{uid[0]}")
        u = uid[0]
        beta(cur(p), D)
        a.e(f"K2_SB{u}:")
    def readslot(s):
        uid[0] += 1
        a.e(f"s_cmp_le_u32 s{sCNT}, {s}")
        a.e(f"s_cbranch_scc1 K2_RD{uid[0]}")
        a.e(f"ds_read_b32 v{SW_+s}, v{vA4} offset:{256*s}")
        a.e(f"ds_read_u16_d16_hi v{SA_+s}, v{vA2} offset:{128*s}")
        a.e(f"s_branch K2_RE{uid[0]}")
        a.e(f"K2_RD{uid[0]}:")
        a.e(f"v_mov_b32 v{SW_+s}, {hex(DUMMY)}")
        a.e(f"K2_RE{uid[0]}:")
    a.e(f"v_mov_b32 v{vC4}, 4")
    signal(vC4, K2_FS)
    if T3:
        a.e(f"v_readlane_b32 s{sGI}, v{t+1}, 63")
        a.e(f"v_readlane_b32 s{sGI+1}, v{t+1}, 63")
        a.e("s_waitcnt lgkmcnt(0)")
    if T5:
        if WL == 2:
            poll(TB, K2_GI, "1", 1)
            a.e(f"ds_read_b128 v[98:101], v67")
            a.e("s_waitcnt lgkmcnt(0)")
        t4_consts(CWOP, CSC, 98)
        t4_acomp([(CX[k], None) for k in CK], 64, 32, 98, 60, CSC)
        stamp(5)
    elif T3:
        t4_consts(CWOP, CSC)
        t4_acomp([(CX[k], CX[k] + 8) for k in CK], 64, 32, CWOP, 60, CSC)
        stamp(5)
        for q in range(4): a.e(f"v_mov_b32 v{TB+4+q}, -1")
        a.e(f"v_lshlrev_b32 v{TB+8}, 4, v{vCT}")
        if cfg.get('k2_pzw', 32): poll(TB, K2_FH, str(cfg.get('k2_pzw', 32)), 2)
        for k in range(7):
            a.e(f"s_add_u32 s{sT0}, s{sXS}, {8192*k}")
            if k == 6: a.e(f"s_mov_b64 exec, s[{sK6}:{sK6+1}]")
            a.e(f"buffer_store_dwordx4 {vr(TB+4,4)}, v{TB+8}, s[{S_WS}:{S_WS+3}], s{sT0} offen sc1")
        a.e(f"s_lshl_b32 s{sT0}, s{sB}, 7")
        a.e(f"s_lshl_b32 s{sT1}, s{sWAVE}, 4")
        a.e(f"s_add_u32 s{sT0}, s{sT0}, s{sT1}")
        a.e(f"s_add_u32 s{sT0}, s{sT0}, {FL_OFF}")
        a.e("s_waitcnt vmcnt(0)")
        a.e("s_mov_b64 exec, 1")
        a.e(f"buffer_store_dword v{vC4}, v{vZERO}, s[{S_WS}:{S_WS+3}], s{sT0} offen sc1")
        a.e("s_mov_b64 exec, -1")
    a.e(f"s_mov_b32 s{sTG}, 32")
    if cfg.get('k2_cprio', 0): a.e(f"s_setprio {cfg['k2_cprio']}")
    a.e("K2_CLOOP:")
    a.e(f"ds_read_b64 {vr(TB,2)}, v{vZERO} offset:{K2_FS}")
    a.e(f"s_mov_b32 s{sCNP}, s{sCNT}")
    a.e(f"s_add_u32 s{sTG}, s{sTG}, 32")
    step(NS - 2, lambda p: sCNP, stub=True)
    stamp(7)
    a.e("K2_CPOLL:")
    a.e(f"v_readfirstlane_b32 s{sT0}, v{TB}")
    a.e(f"v_readfirstlane_b32 s{sN}, v{TB+1}")
    a.e(f"s_cmp_lt_u32 s{sT0}, s{sTG}")
    a.e("s_cbranch_scc1 K2_CPOLL2")
    stamp(8)
    if 'k2_lag' in cfg and cfg.get('k2_lag0', 0) < 0: a.e("s_setprio 1")
    a.e(f"s_and_b32 s{sLAST}, s{sN}, 1")
    a.e(f"s_add_u32 s{sT0}, s{sN}, 252")
    a.e(f"s_lshr_b32 s{sT0}, s{sT0}, 8")
    if cfg.get('k2_uneven'):
        a.e(f"s_mul_i32 s{sT1}, s{sT0}, {cfg['k2_uneven']}")
        a.e(f"s_lshr_b32 s{sT1}, s{sT1}, 6")
        a.e(f"s_min_u32 s{sT1}, s{sT1}, {4*NS}")
        a.e(f"s_lshr_b32 s{sT2}, s{sT0}, 1")
        a.e(f"s_max_u32 s{sT1}, s{sT1}, s{sT2}")
        a.e(f"s_sub_u32 s{sT0}, s{sT0}, s{sT1}")
        a.e(f"s_cmp_lt_u32 s{sWAVE}, 4")
        a.e(f"s_cselect_b32 s{sT0}, s{sT1}, s{sT0}")
        a.e(f"s_cselect_b32 s{sT2}, 0, s{sT1}")
        a.e(f"s_and_b32 s{sT1}, s{sWAVE}, 3")
        a.e(f"s_mul_i32 s{sT1}, s{sT1}, s{sT0}")
        a.e(f"s_add_u32 s{sT0}, s{sT1}, s{sT0}")
        a.e(f"s_lshr_b32 s{sT1}, s{sT1}, 2")
        a.e(f"s_lshr_b32 s{sT0}, s{sT0}, 2")
        a.e(f"s_sub_u32 s{sCNT}, s{sT0}, s{sT1}")
        a.e(f"s_add_u32 s{sT1}, s{sT1}, s{sT2}")
    else:
        a.e(f"s_mul_i32 s{sT1}, s{sT0}, s{sWAVE}")
        a.e(f"s_add_u32 s{sT0}, s{sT1}, s{sT0}")
        a.e(f"s_lshr_b32 s{sT1}, s{sT1}, 3")
        a.e(f"s_lshr_b32 s{sT0}, s{sT0}, 3")
        a.e(f"s_sub_u32 s{sCNT}, s{sT0}, s{sT1}")
    a.e(f"s_lshl_b32 s{sT1}, s{sT1}, 7")
    a.e(f"s_add_u32 s{sT0}, s{sT1}, {K2_SA}")
    a.e(f"s_lshl_b32 s{sT1}, s{sT1}, 1")
    a.e(f"s_add_u32 s{sT1}, s{sT1}, {K2_SW}")
    a.e(f"v_lshl_add_u32 v{vA4}, v{vLANE}, 2, s{sT1}")
    a.e(f"v_lshl_add_u32 v{vA2}, v{vLANE}, 1, s{sT0}")
    a.e(f"s_cmp_lt_u32 s{sCNT}, {NS-1}")
    a.e("s_cbranch_scc1 K2_RSLOW")
    for s in range(NS - 1):
        a.e(f"ds_read_b32 v{SW_+s}, v{vA4} offset:{256*s}")
        a.e(f"ds_read_u16_d16_hi v{SA_+s}, v{vA2} offset:{128*s}")
    a.e("K2_RDONE:")
    step(NS - 1, lambda p: sCNP, stub=True)
    readslot(NS - 1)
    a.e(f"s_cmp_gt_u32 s{sCNT}, {NS}")
    a.e("s_cbranch_scc1 K2_EXTRA")
    a.e("K2_NOEXTRA:")
    signal(vC4, K2_FR)
    assert D < NS - LATE
    for s in range(NS - LATE):
        if TRACE and s in cfg.get('trace_steps', [0, 4, 8]): stamp(9)
        if 'k2_lag' in cfg and s == cfg.get('k2_lag0', 0): a.e("s_setprio 1")
        if s == cfg.get('k2_lag', -1): a.e(f"s_setprio {cfg.get('k2_lagp', 2)}")
        step(s, lambda p: sCNP if p >= NS - D else sCNT, mid=(lambda: fdone(f"s{sTG}")) if s == D and not T3 else None)
    a.e(f"s_cmp_eq_u32 s{sLAST}, 0")
    a.e("s_cbranch_scc1 K2_CLOOP")
    step(NS - 2, lambda p: sCNT)
    step(NS - 1, lambda p: sCNT)
    for i in range(D):
        p = NS - D + i
        uid[0] += 1
        u = uid[0]
        a.e(f"s_cmp_le_u32 s{sCNT}, {p}")
        a.e(f"s_cbranch_scc1 K2_SB{u}")
        beta(cur(p), D - 1 - i)
        a.e(f"K2_SB{u}:")
    fdone("0x7fffffff")
    stamp(10)
    if T5:
        mk = lambda b_, n: {k: b_ + n * i for i, k in enumerate(CK)}
        CV = [68, 69, 70, 71, 72]
        CO, CG, CM = mk(8, 8), mk(32, 2), mk(38, 2)
        a.e("s_waitcnt vmcnt(0)")
        t4_addr(vCT, CV)
        LBF = cfg.get('k2_lb', 0)
        def cloads():
            t5_dist(CK, CO, CV[2], 73)
            t4_mload(CK, CM, CV)
        if not LBF: cloads()
        CPRE = cfg.get('k2_cpre', 0)
        def cearly():
            a.e(f"s_cmp_lt_u32 s{sWAVE}, {CPRE}")
            a.e("s_cbranch_scc1 K2_CP2")
            cloads()
            a.e("K2_CP2:")
        if CPRE:
            a.e(f"s_cmp_ge_u32 s{sWAVE}, {CPRE}")
            a.e("s_cbranch_scc1 K2_CP0")
            a.e("s_setprio 0")
            if LBF: cloads()
            a.e(f"s_waitcnt vmcnt({len(CK)})")
            t4_acomp([(CO[k], CG[k]) for k in CK], 6, 104, 98, 120, CSC)
            a.e("K2_CP0:")
        def cmid():
            a.e(f"s_waitcnt vmcnt({len(CK)})")
            if CPRE:
                a.e(f"s_cmp_lt_u32 s{sWAVE}, {CPRE}")
                a.e("s_cbranch_scc1 K2_CP1")
            t4_acomp([(CO[k], CG[k]) for k in CK], 6, 104, 98, 120, CSC)
            a.e("K2_CP1:")
        cretry = t5_post("C", CK, CX, CO, CG, CM, mk(44, 4), mk(56, 4), 120, CV, vCK, cmid, cearly if LBF else None)
    elif T3:
        CV = [62, 63, 64, 65, 66]
        CM = {k: 56 + 2 * i for i, k in enumerate(CK)}
        CG = {k: 8 + 16 * i for i, k in enumerate(CK)}
        a.e("s_waitcnt vmcnt(0)")
        t4_addr(vCT, CV)
        t4_mload(CK, CM, CV)
        def cmid():
            for k in CK: unpack(CG[k], CX[k] + 8)
            a.e(f"s_waitcnt vmcnt({len(CK)})")
            for k in CK: unpack(CG[k] + 4, CM[k])
        cretry = t4_post("C", CK, CX, CG, {k: CG[k] + 4 for k in CK}, {k: CG[k] + 8 for k in CK}, {k: CG[k] + 12 for k in CK}, TB, CV, vCK, cmid)
    else:
        a.e("s_waitcnt lgkmcnt(0)")
        a.e("s_barrier")
    if cfg.get('x_dump'):
        a.e(f"s_mul_i32 s{sT0}, s{sB}, {13*8192}")
        a.e(f"s_add_u32 s{sT0}, s{sT0}, 0x6000000")
        a.e(f"v_lshlrev_b32 v{TB+8}, 4, v{vCT}")
        for k in range(13):
            a.e(f"ds_read_b128 {vr(TB+4,4)}, v{TB+8}")
            a.e("s_waitcnt lgkmcnt(0)")
            a.e(f"buffer_store_dwordx4 {vr(TB+4,4)}, v{TB+8}, s[{S_WS}:{S_WS+3}], s{sT0} offen")
            a.e("s_waitcnt vmcnt(0)")
            a.e(f"v_add_u32 v{TB+8}, 8192, v{TB+8}")
    a.e("s_barrier")
    a.e(f"ds_read_b32 v{vCK}, v{vZERO} offset:{K2_VI}")
    a.e("s_waitcnt vmcnt(0) lgkmcnt(0)")
    a.e(f"v_cmp_ne_u32 vcc, 0, v{vCK}")
    a.e("s_cbranch_vccz K2_FIN")
    RR, QL, vI, vE, vTL, PW, CC2, GM = 6, 32, 22, 23, 24, 26, 30, 40
    a.e(f"s_and_b32 s{sT0}, s{sB}, 127")
    a.e(f"s_lshl_b32 s{sT0}, s{sT0}, 4")
    a.e(f"v_mul_u32_u24 v{vI}, {REC_STR}, v{vCT}")
    a.e(f"v_add_u32 v{vI}, s{sT0}, v{vI}")
    a.e(f"s_mov_b32 s{sT0}, {REC_OFF}")
    for q in range(4):
        a.e(f"buffer_load_dwordx4 {vr(QL+4*q,4)}, v{vI}, s[{S_WS}:{S_WS+3}], s{sT0} offen offset:{(q>>1)*2048 + (q&1)*16}")
    for k in range(4):
        a.e(f"v_mov_b32 v{TB+4+k}, 0")
    a.e(f"v_lshlrev_b32 v{TB+8}, 4, v{vCT}")
    fill(True)
    a.e(f"s_mov_b32 s{sT0}, {cfg.get('tile_s', TILE_B)}")
    a.e(f"v_mul_lo_u32 v{vTL}, v{vCT}, s{sT0}")
    a.e(f"s_mov_b32 s{sT1}, 0x07060302")
    a.e(f"v_mov_b32 v{vI}, 0")
    a.e("s_waitcnt vmcnt(0)")
    for k in range(16):
        b_ = QL + 8 * (k >> 3) + ((k & 7) >> 1)
        a.e(f"v_perm_b32 v{RR+k}, v{b_+4}, v{b_}, s{sT1 if k & 1 else sSEL}")
        a.e(f"v_sub_u32_sdwa v{vE}, v{RR+k}, v{RR+k} dst_sel:DWORD dst_unused:UNUSED_PAD src0_sel:WORD_1 src1_sel:WORD_0")
        a.e(f"v_add_u32 v{vI}, v{vI}, v{vE}")
    a.e(f"ds_add_u32 v{vZERO}, v{vI} offset:{K2_NB}")
    a.e("s_waitcnt lgkmcnt(0)")
    a.e("s_barrier")
    a.e(f"ds_read_b32 v{t}, v{vZERO} offset:{K2_NB}")
    a.e(f"s_lshr_b32 s{sT1}, s{sB}, 7")
    a.e(f"s_mul_i32 s{sT1}, s{sT1}, {EPB}")
    a.e(f"s_sub_u32 s{sLAST}, {EPB}, s{sT1}")
    a.e(f"s_mov_b32 s{sJ}, 0")
    a.e("s_waitcnt lgkmcnt(0)")
    a.e(f"v_cvt_f32_u32 v{t}, v{t}")
    a.e(f"v_mul_f32 v{t}, s{sMX}, v{t}")
    a.e(f"v_rcp_f32 v{t}, v{t}")
    a.e(f"v_mul_f32 v{t}, 0x4efc0000, v{t}")
    setscale(t)
    a.e("K2_SJ:")
    a.e(f"s_lshr_b32 s{sT1}, s{sJ}, 3")
    mdsrd(f"s{sT1}")
    a.e(f"v_and_b32 v{vI}, 0xffff, v{RR}")
    a.e(f"v_lshrrev_b32 v{vE}, 16, v{RR}")
    for k in range(15):
        a.e(f"v_mov_b32 v{RR+k}, v{RR+k+1}")
    a.e("K2_SI:")
    a.e(f"v_cmp_lt_u32 vcc, v{vI}, v{vE}")
    a.e("s_cbranch_vccz K2_SN")
    a.e(f"s_mov_b64 exec, vcc")
    a.e(f"v_lshrrev_b32 v{GM}, 1, v{vI}")
    a.e(f"v_mad_u32_u24 v{GM}, v{GM}, 12, v{vTL}")
    a.e(f"buffer_load_dwordx3 {vr(PW,3)}, v{GM}, s[{S_WS}:{S_WS+3}], 0 offen")
    a.e(f"v_and_b32 v{GM}, 1, v{vI}")
    a.e(f"v_cmp_eq_u32 vcc, 1, v{GM}")
    a.e(f"v_add_u32 v{vI}, 1, v{vI}")
    a.e("s_waitcnt vmcnt(0)")
    a.e(f"v_cndmask_b32 v{PW}, v{PW}, v{PW+2}, vcc")
    a.e(f"v_lshlrev_b32 v{PW+2}, 16, v{PW+1}")
    a.e(f"v_and_b32 v{PW+1}, s{sHI}, v{PW+1}")
    a.e(f"v_cndmask_b32 v{PW+1}, v{PW+2}, v{PW+1}, vcc")
    a.e(f"v_and_b32 v{GM+2}, {hex(IDXM)}, v{PW}")
    a.e(f"buffer_load_dwordx2 {vr(GM,2)}, v{GM+2}, s[{S_MD}:{S_MD+3}], 0 idxen")
    cosines(PW + 1, CC2, None, 2)
    a.e(f"v_lshrrev_b32 v{PW}, 19, v{PW}")
    a.e(f"v_subrev_u32 v{PW}, s{sLAST}, v{PW}")
    a.e(f"v_cmp_gt_u32 vcc, {EPB}, v{PW}")
    a.e(f"v_lshlrev_b32 v{PW}, 2, v{PW}")
    a.e(f"v_add_u32 v{PW+1}, {STR2}, v{PW}")
    a.e("s_waitcnt vmcnt(0)")
    unpack(TB + 4, GM)
    for l in range(2):
        for q in range(2):
            a.e(f"v_pk_mul_f32 {vr(TB+8+4*l+2*q,2)}, {vr(TB+4+2*q,2)}, {vr(CC2+2*l,2)} op_sel_hi:[1,0]")
    for q in range(8):
        a.e(f"v_cvt_rpi_i32_f32 v{TB+8+q}, v{TB+8+q}")
    a.e(f"s_mov_b64 exec, vcc")
    for q in range(8):
        a.e(f"ds_add_u32 v{PW+(q>>2)}, v{TB+8+q} offset:{ACC + (q&3)*ACC_STR}")
    a.e(f"s_mov_b64 exec, -1")
    a.e("s_branch K2_SI")
    a.e("K2_SN:")
    a.e(f"s_add_u32 s{sJ}, s{sJ}, 1")
    a.e(f"s_cmp_lt_u32 s{sJ}, 16")
    a.e("s_cbranch_scc1 K2_SJ")
    a.e("s_waitcnt lgkmcnt(0)")
    a.e("s_barrier")
    a.e("s_branch K2_FIN")

    if T3: cretry()
    for u in stubs:
        a.e(f"K2_ST{u}:")
        a.e("s_waitcnt lgkmcnt(0)")
        a.e(f"s_branch K2_SB{u}")
    a.e("K2_CPOLL2:")
    if cfg.get('k2_cslp', 0): a.e(f"s_sleep {cfg['k2_cslp']}")
    a.e(f"ds_read_b64 {vr(TB,2)}, v{vZERO} offset:{K2_FS}")
    a.e("s_waitcnt lgkmcnt(0)")
    a.e("s_branch K2_CPOLL")
    a.e("K2_RSLOW:")
    for s in range(NS - 1):
        readslot(s)
    a.e("s_branch K2_RDONE")
    a.e("K2_EXTRA:")
    XW, XC = TB, cur(0)
    for s in range(NS, 16):
        if s > NS:
            a.e(f"s_cmp_le_u32 s{sCNT}, {s}")
            a.e("s_cbranch_scc1 K2_NOEXTRA")
        a.e(f"v_mov_b32 v{XW+1}, 0")
        a.e(f"ds_read_b32 v{XW}, v{vA4} offset:{256*s}")
        a.e(f"ds_read_u16_d16_hi v{XW+1}, v{vA2} offset:{128*s}")
        a.e("s_waitcnt lgkmcnt(0)")
        alpha1(XW, XC)
        alpha2(XW, XW + 1, XC)
        beta(XC, 0)
    a.e("s_branch K2_NOEXTRA")

    a.e("K2_FIN:")
    if TRACE:
        a.e("s_waitcnt vmcnt(0)")
        stamp(10)
        a.e(f"s_cmp_lg_u32 s2, {cfg.get('trace_wg', 77)}")
        a.e("s_cbranch_scc1 K2_END")
        a.e(f"s_load_dwordx2 s[{S_X}:{S_X+1}], s[0:1], 96")
        a.e(f"s_mov_b32 s{S_X+2}, 4096")
        a.e(f"s_mov_b32 s{S_X+3}, 0x00020000")
        a.e("s_waitcnt lgkmcnt(0)")
        a.e(f"v_lshlrev_b32 v1, 2, v0")
        a.e(f"buffer_store_dword v{vTR}, v1, s[{S_X}:{S_X+3}], 0 offen")
    if cfg.get('rt'): rt_end(a, 1, S_X)
    a.e("K2_END:")
    a.e("s_endpgm")
    return fix_hazards(a.lines)
```
